```python
import torch

def _softmax(x, axis=-1):
    return torch.softmax(x, dim=axis)
def _gelu(x):
    return torch.nn.functional.gelu(x, approximate="tanh")
def _silu(x):
    return torch.nn.functional.silu(x)
def _sigmoid(x):
    return torch.sigmoid(x)
def _layernorm(x, axis=-1, eps=1e-5):
    m = x.mean(dim=axis, keepdim=True)
    v = x.var(dim=axis, keepdim=True, unbiased=False)
    return (x - m) / torch.sqrt(v + eps)
def _scatter_add(tgt, idx, src, axis=0):
    return tgt.clone().index_add_(axis, idx, src)
def _segment_sum(src, seg, n):
    out = torch.zeros((n,) + src.shape[1:], dtype=src.dtype)
    return out.index_add_(0, seg, src)
def _pad(x, pw):
    flat = tuple(v for pair in reversed(pw) for v in pair)
    return torch.nn.functional.pad(x, flat)

kernel_name = 'sequential_preLN__sliding_block_cached__dense_activation_gelu__decode'

def setup_inputs():

    _w = (lambda a: (lambda t: t.to(torch.bfloat16) if t.is_floating_point() else t)(torch.as_tensor(a)))
    def _A_setup():
        B, Sq, D = 2, 1, 512
        Hq, Hkv, Sk, Dh = 32, 8, 8192, 128
        assert Hq % Hkv == 0, (Hq, Hkv)
        return {
            "x": _w((lambda *s: torch.randn(*s, dtype=torch.bfloat16) * 0.05)(B, Sq, D)),
            "k_cache": _w((lambda *s: torch.randn(*s, dtype=torch.bfloat16) * 3.2)(B, Hkv, Sk, Dh)),
            "v_cache": _w((lambda *s: torch.randn(*s, dtype=torch.bfloat16) * 0.8)(B, Hkv, Sk, Dh)),
            "wq": _w((lambda *s: torch.randn(*s, dtype=torch.bfloat16) * 3.2)(D, Hq * Dh) * (D ** -0.5)),
            "wo": _w((lambda *s: torch.randn(*s, dtype=torch.bfloat16) * 0.8)(Hq * Dh, D) * ((Hq * Dh) ** -0.5)),
        }
    _A_in = _A_setup()

    def _B_setup():
        B, S, D, F = 2, 1, 512, 1792
        return {
            "x": _w((lambda *s: torch.randn(*s, dtype=torch.bfloat16) * 0.05)(B, S, D)),
            "w1": _w((lambda *s: torch.randn(*s, dtype=torch.bfloat16) * 3.2)(D, F) * (D ** -0.5)),
            "b1": _w((lambda *s: torch.randn(*s, dtype=torch.bfloat16) * 3.2)(F) * 0.01),
            "w2": _w((lambda *s: torch.randn(*s, dtype=torch.bfloat16) * 0.4)(F, D) * (F ** -0.5)),
            "b2": _w((lambda *s: torch.randn(*s, dtype=torch.bfloat16) * 0.4)(D) * 0.01),
        }
    _B_in = _B_setup()

    return {
        "A_x": _A_in["x"],
        "A_k_cache": _A_in["k_cache"],
        "A_v_cache": _A_in["v_cache"],
        "A_wq": _A_in["wq"],
        "A_wo": _A_in["wo"],
        "B_x": _B_in["x"],
        "B_w1": _B_in["w1"],
        "B_b1": _B_in["b1"],
        "B_w2": _B_in["w2"],
        "B_b2": _B_in["b2"],
    }

def reference(A_x, A_k_cache, A_v_cache, A_wq, A_wo, B_x, B_w1, B_b1, B_w2, B_b2):
    def _A_ref(x, k_cache, v_cache, wq, wo):
        B, Sq, D = x.shape
        Hq, Dh = 32, 128
        Hkv, Sk = k_cache.shape[1], k_cache.shape[2]
        W = min(4096, max(256, Sk // 4))
        rep = Hq // Hkv
        q = (lambda x, *d: x.permute(*d))((x @ wq).reshape(B, Sq, Hq, Dh), 0, 2, 1, 3)
        k = (lambda x, n, axis: torch.repeat_interleave(x, n, dim=axis))(k_cache[:, :, Sk - W:, :], rep, axis=1)
        v = (lambda x, n, axis: torch.repeat_interleave(x, n, dim=axis))(v_cache[:, :, Sk - W:, :], rep, axis=1)
        scores = torch.einsum("bhqd,bhkd->bhqk", q, k) * (Dh ** -0.5)
        p = _softmax(scores, axis=-1)
        o = torch.einsum("bhqk,bhkd->bhqd", p, v)
        return (lambda x, *d: x.permute(*d))(o, 0, 2, 1, 3).reshape(B, Sq, Hq * Dh) @ wo

    def _B_ref(x, w1, b1, w2, b2):
        h = torch.einsum("bsd,df->bsf", x, w1) + b1
        h = _gelu(h)
        return torch.einsum("bsf,fd->bsd", h, w2) + b2

    x = A_x
    h = x + _A_ref(_layernorm(x, axis=-1), A_k_cache, A_v_cache, A_wq, A_wo)
    h2 = h + _B_ref(_layernorm(h, axis=-1), B_w1, B_b1, B_w2, B_b2)
    return h2
```

```python
import sys

NAME = "sequential_preLN__sliding_block_cached__dense_activation_gelu__decode"

CFG = dict(
    nt=True,
    timeout=1 << 18,
    stamps=False,
)
for a in sys.argv[1:]:
    if "=" in a:
        k, v = a.split("=")
        CFG[k] = int(v)

NT = " nt" if CFG["nt"] else ""

WS_QP = 0x00000
WS_ST = 0x20000
WS_PN = 0x28000
WS_AP = 0x68000
WS_Y = 0x70000
WS_TS = 0xB0000
WS_SIZE = 0x100000

L_MISC = 0
L_V = 10240
L_WQ = L_V + 32768
L_WX = L_WQ + 16384
L_W2 = L_WX + 32768
L_XN = L_MISC + 0
L_QL = L_MISC + 512
L_SC = L_MISC + 1536
L_ML = L_MISC + 5632
L_FLAG = L_MISC + 5664
L_RED = L_MISC + 5696
L_HN = L_MISC + 6720
L_RED2 = L_MISC + 8768
LDS_BYTES = L_W2 + 32768

LOG2E = 1.4426950408889634
SCALE = 128 ** -0.5

import struct


def f2u(f):
    return struct.unpack("<I", struct.pack("<f", f))[0]


out = []


def A(s):
    out.append("    " + s)


def L(s):
    out.append(s + ":")


def C(s):
    out.append("    ; " + s)


def nop(n):
    while n > 0:
        k = min(n, 16)
        A(f"s_nop {k-1}")
        n -= k


_lbl = [0]


def newlbl(p="L"):
    _lbl[0] += 1
    return f"{p}_{_lbl[0]}"


def vr(a, n=1):
    return f"v{a}" if n == 1 else f"v[{a}:{a+n-1}]"


def sr(a, n=1):
    return f"s{a}" if n == 1 else f"s[{a}:{a+n-1}]"


P_X, P_K, P_V, P_WQ, P_WO, P_BX, P_W1, P_B1, P_W2, P_B2, P_OUT, P_DBG, P_WS = [8 + 2 * i for i in range(13)]
S_WAVE, S_X, S_IDX, S_B, S_SPL = 3, 4, 5, 6, 7
SRD_WS, SRD_DBG, SRD_A, SRD_B, SRD_C = 36, 40, 44, 48, 52
S_T0, S_T1, S_T2, S_T3 = 56, 57, 58, 59
S_TO = 60
S_ROLE = 61
S_SUB = 62
S_T4, S_T5, S_T6, S_T7 = 63, 64, 65, 66
S_EX = 68
S_C0, S_C1, S_C2 = 70, 71, 72
S_TS = 74


def srd(d, p, size):
    A(f"s_mov_b32 s{d}, s{p}")
    A(f"s_mov_b32 s{d+1}, s{p+1}")
    A(f"s_mov_b32 s{d+2}, {size:#x}")
    A(f"s_mov_b32 s{d+3}, 0x00020000")


def stamp(slot, vt=255):
    if not CFG["stamps"]:
        return
    A(f"s_memrealtime s[{S_TS}:{S_TS+1}]")
    A("s_waitcnt lgkmcnt(0)")
    A(f"v_mov_b32 v{vt}, s{S_TS}")
    A(f"s_lshl_b32 s{S_TS}, s2, 9")
    A(f"s_lshl_b32 s{S_TS+1}, s{S_WAVE}, 6")
    A(f"s_add_u32 s{S_TS}, s{S_TS}, s{S_TS+1}")
    A(f"s_add_u32 s{S_TS}, s{S_TS}, {WS_TS + slot*4}")
    A(f"v_mov_b32 v{vt-1}, 0")
    A(f"s_mov_b64 s[{S_EX}:{S_EX+1}], exec")
    A("s_mov_b64 exec, 1")
    A(f"buffer_store_dword v{vt}, v{vt-1}, s[{SRD_WS}:{SRD_WS+3}], s{S_TS} offen")
    A(f"s_mov_b64 exec, s[{S_EX}:{S_EX+1}]")


NSTAMP = 1 if CFG["stamps"] else 0


def dpp_steps(op, regs):
    ctrls = ["quad_perm:[1,0,3,2]", "quad_perm:[2,3,0,1]", "row_half_mirror", "row_mirror"]
    for c in ctrls:
        pad = max(0, 2 - (len(regs) - 1))
        nop(pad) if pad else None
        for r in regs:
            A(f"{op}_dpp v{r}, v{r}, v{r} {c} row_mask:0xf bank_mask:0xf")


def swap_steps(op, regs, tmps):
    for sw in ["v_permlane16_swap_b32", "v_permlane32_swap_b32"]:
        for r, t in zip(regs, tmps):
            A(f"v_mov_b32 v{t}, v{r}")
        pad = max(0, 2 - (len(regs) - 1))
        nop(pad) if pad else None
        for r, t in zip(regs, tmps):
            A(f"{sw} v{r}, v{t}")
        for r, t in zip(regs, tmps):
            A(f"{op} v{r}, v{r}, v{t}")


def allreduce(op, regs, tmps):
    nop(2)
    dpp_steps(op, regs)
    swap_steps(op, regs, tmps)


def lds_wait(flag_off, vt, va):
    l = newlbl("Lw")
    e = newlbl("Lwe")
    A(f"v_mov_b32 v{va}, {flag_off}")
    A(f"s_mov_b32 s{S_TO}, {CFG['timeout']}")
    L(l)
    A(f"ds_read_b32 v{vt}, v{va}")
    A(f"s_sub_u32 s{S_TO}, s{S_TO}, 1")
    A(f"s_cbranch_scc1 {e}")
    A("s_waitcnt lgkmcnt(0)")
    A(f"v_readfirstlane_b32 s{S_T0}, v{vt}")
    A(f"s_cmp_eq_u32 s{S_T0}, 0")
    A(f"s_cbranch_scc1 {l}")
    L(e)
    A("s_waitcnt lgkmcnt(0)")


def lds_set(flag_off, vt, va):
    A("s_waitcnt lgkmcnt(0)")
    A(f"v_mov_b32 v{va}, {flag_off}")
    A(f"v_mov_b32 v{vt}, 1")
    A(f"ds_write_b32 v{va}, v{vt}")


def max_tree(regs, t):
    regs = list(regs)
    A(f"v_max3_u32 v{t}, v{regs[0]}, v{regs[1]}, v{regs[2]}")
    i = 3
    while i + 1 < len(regs):
        A(f"v_max3_u32 v{t}, v{t}, v{regs[i]}, v{regs[i+1]}")
        i += 2
    if i < len(regs):
        A(f"v_max_u32 v{t}, v{t}, v{regs[i]}")


def poll(loads, regs, t):
    l = newlbl("Lp")
    e = newlbl("Lpe")
    A(f"s_mov_b32 s{S_TO}, {CFG['timeout']}")
    L(l)
    loads()
    A(f"s_sub_u32 s{S_TO}, s{S_TO}, 1")
    A(f"s_cbranch_scc1 {e}")
    A("s_waitcnt vmcnt(0)")
    max_tree(regs, t)
    A(f"v_cmp_eq_u32 vcc, -1, v{t}")
    A("s_cmp_lg_u64 vcc, 0")
    A(f"s_cbranch_scc1 {l}")
    L(e)
    A("s_waitcnt vmcnt(0)")


def poll_flags(off_reg_setup, ndw, vbase, t, va):
    l = newlbl("Lf")
    e = newlbl("Lfe")
    A(f"s_mov_b32 s{S_TO}, {CFG['timeout']}")
    L(l)
    for i in range(ndw // 4):
        A(f"buffer_load_dwordx4 v[{vbase+4*i}:{vbase+4*i+3}], v{va}, s[{SRD_DBG}:{SRD_DBG+3}], 0 offen offset:{16*i} sc1")
    A(f"s_sub_u32 s{S_TO}, s{S_TO}, 1")
    A(f"s_cbranch_scc1 {e}")
    A("s_waitcnt vmcnt(0)")
    A(f"v_min3_u32 v{t}, v{vbase}, v{vbase+1}, v{vbase+2}")
    A(f"v_min_u32 v{t}, v{t}, v{vbase+3}")
    if ndw == 8:
        A(f"v_min3_u32 v{t}, v{t}, v{vbase+4}, v{vbase+5}")
        A(f"v_min3_u32 v{t}, v{t}, v{vbase+6}, v{vbase+7}")
    A(f"v_cmp_eq_u32 vcc, 0, v{t}")
    A("s_cmp_lg_u64 vcc, 0")
    A(f"s_cbranch_scc1 {l}")
    L(e)
    A("s_waitcnt vmcnt(0)")


def bf16r(dst, src):
    A(f"v_cvt_pk_bf16_f32 v{dst}, v{src}, v{src}")
    A(f"v_lshlrev_b32 v{dst}, 16, v{dst}")


def unpack8(dst, src):
    for i in range(4):
        A(f"v_lshlrev_b32 v{dst+2*i}, 16, v{src+i}")
        A(f"v_and_b32 v{dst+2*i+1}, 0xffff0000, v{src+i}")


def layernorm(xs, nb, tmp, outp):
    s = [tmp + i for i in range(nb)]
    q = [tmp + nb + i for i in range(nb)]
    t = [tmp + 2 * nb + i for i in range(nb)]
    mb = [tmp + 3 * nb + i for i in range(nb)]
    d = [tmp + 4 * nb + 8 * i for i in range(nb)]
    for i in range(nb):
        x = xs[i]
        A(f"v_add_f32 v{s[i]}, v{x}, v{x+1}")
        A(f"v_add_f32 v{t[i]}, v{x+2}, v{x+3}")
        A(f"v_add_f32 v{q[i]}, v{x+4}, v{x+5}")
        A(f"v_add_f32 v{mb[i]}, v{x+6}, v{x+7}")
        A(f"v_add_f32 v{s[i]}, v{s[i]}, v{t[i]}")
        A(f"v_add_f32 v{q[i]}, v{q[i]}, v{mb[i]}")
        A(f"v_add_f32 v{s[i]}, v{s[i]}, v{q[i]}")
    allreduce("v_add_f32", s, t)
    for i in range(nb):
        A(f"v_mul_f32 v{s[i]}, {f2u(1.0/512):#x}, v{s[i]}")
    for i in range(nb):
        x = xs[i]
        for j in range(8):
            A(f"v_sub_f32 v{d[i]+j}, v{x+j}, v{s[i]}")
        A(f"v_mul_f32 v{q[i]}, v{d[i]}, v{d[i]}")
        for j in range(1, 8):
            A(f"v_fmac_f32 v{q[i]}, v{d[i]+j}, v{d[i]+j}")
        bf16r(mb[i], s[i])
    allreduce("v_add_f32", q, t)
    for i in range(nb):
        A(f"v_mul_f32 v{q[i]}, {f2u(1.0/512):#x}, v{q[i]}")
        bf16r(q[i], q[i])
        A(f"v_add_f32 v{q[i]}, {f2u(1e-5):#x}, v{q[i]}")
        bf16r(q[i], q[i])
        A(f"v_sqrt_f32 v{q[i]}, v{q[i]}")
        nop(1)
        bf16r(q[i], q[i])
        A(f"v_rcp_f32 v{q[i]}, v{q[i]}")
    for i in range(nb):
        x = xs[i]
        for j in range(8):
            A(f"v_sub_f32 v{d[i]+j}, v{x+j}, v{mb[i]}")
        for j in range(4):
            A(f"v_cvt_pk_bf16_f32 v{outp[i]+j}, v{d[i]+2*j}, v{d[i]+2*j+1}")
        unpack8(d[i], outp[i])
        for j in range(8):
            A(f"v_mul_f32 v{d[i]+j}, v{d[i]+j}, v{q[i]}")
        for j in range(4):
            A(f"v_cvt_pk_bf16_f32 v{outp[i]+j}, v{d[i]+2*j}, v{d[i]+2*j+1}")


def mfma(d, a, b, c=None):
    cc = f"v[{c}:{c+3}]" if c is not None else "0"
    A(f"v_mfma_f32_16x16x32_bf16 v[{d}:{d+3}], v[{a}:{a+3}], v[{b}:{b+3}], {cc}")


MASK_N2 = "0x0003000300030003"
MASK_N4 = "0x000f000f000f000f"


def set_exec(mask):
    lo = int(mask, 16) & 0xffffffff
    hi = int(mask, 16) >> 32
    A(f"s_mov_b32 exec_lo, {lo:#x}")
    A(f"s_mov_b32 exec_hi, {hi:#x}")


out.append(f"""; fused pre-LN attention(decode, sliding window) + gelu MLP, persistent kernel
; @launch grid=(256,1,1) block=(384,1,1) lds={LDS_BYTES}
.amdgcn_target "amdgcn-amd-amdhsa--gfx950"
.text
.globl {NAME}_kernel
.p2align 8
.type {NAME}_kernel,@function
{NAME}_kernel:""")

A("s_cmp_ge_u32 s2, 256")
A("s_cbranch_scc1 L_end")
A("s_load_dwordx16 s[8:23], s[0:1], 0")
A("s_load_dwordx8 s[24:31], s[0:1], 64")
A("s_load_dwordx2 s[32:33], s[0:1], 96")
A("v_lshrrev_b32 v1, 6, v0")
A("v_and_b32 v0, 63, v0")
A(f"s_and_b32 s{S_X}, s2, 7")
A(f"v_readfirstlane_b32 s{S_WAVE}, v1")
A(f"s_lshr_b32 s{S_IDX}, s2, 3")
A(f"s_lshr_b32 s{S_B}, s{S_IDX}, 4")
A(f"s_and_b32 s{S_SPL}, s{S_IDX}, 15")
C("role: idx 4..10 -> mlp (mi = x*7+idx-4); idx>=16 -> wo (chunk = idx-16)")
A(f"s_mov_b32 s{S_ROLE}, 0")
A(f"s_mov_b32 s{S_SUB}, 0")
A(f"s_sub_u32 s{S_T0}, s{S_IDX}, 4")
A(f"s_mul_i32 s{S_T1}, s{S_X}, 7")
A(f"s_add_u32 s{S_T1}, s{S_T1}, s{S_T0}")
A(f"s_cmp_lt_u32 s{S_T0}, 7")
A(f"s_cselect_b32 s{S_ROLE}, 2, s{S_ROLE}")
A(f"s_cselect_b32 s{S_SUB}, s{S_T1}, s{S_SUB}")
A(f"s_cmp_ge_u32 s{S_IDX}, 16")
A(f"s_cselect_b32 s{S_ROLE}, 1, s{S_ROLE}")
A(f"s_cselect_b32 s{S_SUB}, s{S_SPL}, s{S_SUB}")
A("s_waitcnt lgkmcnt(0)")
srd(SRD_WS, P_WS, WS_SIZE)
srd(SRD_DBG, P_DBG, 256)
A(f"s_cmp_eq_u32 s{S_WAVE}, 4")
A("s_cbranch_scc1 L_w4")
A(f"s_cmp_eq_u32 s{S_WAVE}, 5")
A("s_cbranch_scc1 L_w5")

V_K = 16
V_Q = 48
V_S = 64
V_SM = 72
V_T = 84
V_WX = 128
V_W2 = 160
V_G = 192

stamp(0)
C("---- small loads needed late (x residual for F, b1, G's x and b2)")
srd(SRD_A, P_X, 2048)
A("v_lshlrev_b32 v2, 4, v0")
A(f"s_and_b32 s{S_T0}, s{S_WAVE}, 1")
A(f"s_lshl_b32 s{S_T0}, s{S_T0}, 10")
A(f"buffer_load_dwordx4 v[{V_SM}:{V_SM+3}], v2, s[{SRD_A}:{SRD_A+3}], s{S_T0} offen")
A(f"s_lshl_b32 s{S_T1}, s{S_X}, 5")
A(f"s_add_u32 s{S_T1}, s{S_T1}, s{S_IDX}")
A(f"s_lshl_b32 s{S_T2}, s{S_T1}, 3")
A("v_mov_b32 v3, 0")
A(f"buffer_load_dwordx2 v[{V_SM+8}:{V_SM+9}], v3, s[{SRD_A}:{SRD_A+3}], s{S_T2} offen")
srd(SRD_B, P_B2, 1024)
A(f"s_and_b32 s{S_T2}, s{S_T2}, 1023")
A(f"buffer_load_dwordx2 v[{V_SM+10}:{V_SM+11}], v3, s[{SRD_B}:{SRD_B+3}], s{S_T2} offen")
srd(SRD_C, P_B1, 3584)
A("v_lshrrev_b32 v4, 4, v0")
A("v_lshlrev_b32 v5, 3, v4")
A(f"s_lshl_b32 s{S_T2}, s{S_SUB}, 6")
A(f"buffer_load_dwordx2 v[{V_SM+4}:{V_SM+5}], v5, s[{SRD_C}:{SRD_C+3}], s{S_T2} offen")
A(f"buffer_load_dwordx2 v[{V_SM+6}:{V_SM+7}], v5, s[{SRD_C}:{SRD_C+3}], s{S_T2} offen offset:32")

C("---- K loads")
srd(SRD_A, P_K, 0x2000000)
srd(SRD_B, P_V, 0x2000000)
A(f"s_lshl_b32 s{S_T0}, s{S_B}, 3")
A(f"s_add_u32 s{S_T0}, s{S_T0}, s{S_X}")
A(f"s_lshl_b32 s{S_T0}, s{S_T0}, 13")
A(f"s_lshl_b32 s{S_T1}, s{S_SPL}, 7")
A(f"s_add_u32 s{S_T0}, s{S_T0}, s{S_T1}")
A(f"s_lshl_b32 s{S_T1}, s{S_WAVE}, 5")
A(f"s_add_u32 s{S_T0}, s{S_T0}, s{S_T1}")
A(f"s_add_u32 s{S_T0}, s{S_T0}, 6144")
A(f"s_lshl_b32 s{S_T4}, s{S_T0}, 8")
A(f"s_add_u32 s{S_T5}, s{S_T4}, 4096")
A("v_and_b32 v6, 15, v0")
A("v_lshlrev_b32 v7, 8, v6")
A("v_lshl_add_u32 v7, v4, 4, v7")
for tt in range(2):
    for kp in range(4):
        r = V_K + (tt * 4 + kp) * 4
        so = S_T4 if tt == 0 else S_T5
        A(f"buffer_load_dwordx4 v[{r}:{r+3}], v7, s[{SRD_A}:{SRD_A+3}], s{so} offen offset:{kp*64}{NT}")
C("---- DMA lane offsets (V/W2 style): pos=l>>3, r=(l>>1)&3, half=l&1")
A("v_lshrrev_b32 v8, 3, v0")
A("v_bfe_u32 v9, v0, 1, 2")
A("v_and_b32 v10, 1, v0")
A("v_lshlrev_b32 v11, 5, v8")
A("v_lshl_add_u32 v11, v10, 4, v11")
A("v_lshl_add_u32 v12, v9, 8, v11")
A("v_xor_b32 v13, 32, v12")
A("v_lshl_add_u32 v14, v9, 10, v11")
A("v_xor_b32 v15, 32, v14")
A("s_barrier")
C("---- V DMA after half of K arrived")
A(f"s_waitcnt vmcnt(4)")
A(f"s_lshl_b32 s{S_T0}, s{S_WAVE}, 13")
A(f"s_add_u32 s{S_T6}, s{S_T0}, {L_V}")
A(f"s_mov_b32 m0, s{S_T6}")
A(f"s_add_u32 s{S_T6}, s{S_T6}, 4096")
for be in range(4):
    A(f"buffer_load_dwordx4 v{12 + (be & 1)}, s[{SRD_B}:{SRD_B+3}], s{S_T4} offen offset:{be*1024}{NT} lds")
A(f"s_mov_b32 m0, s{S_T6}")
A("s_nop 0")
for be in range(4):
    A(f"buffer_load_dwordx4 v{12 + (be & 1)}, s[{SRD_B}:{SRD_B+3}], s{S_T5} offen offset:{be*1024}{NT} lds")
C("---- WX DMA (wo or w1 tile) after K arrived")
A(f"s_waitcnt vmcnt(8)")
A(f"s_cmp_eq_u32 s{S_ROLE}, 0")
A("s_cbranch_scc1 L_nowx")
A(f"s_lshl_b32 s{S_T1}, s{S_X}, 9")
A(f"s_cmp_eq_u32 s{S_ROLE}, 1")
A(f"s_movk_i32 s{S_C0}, 3584")
A(f"s_cselect_b32 s{S_C0}, 1024, s{S_C0}")
A(f"s_cselect_b32 s{SRD_C}, s{P_WO}, s{P_W1}")
A(f"s_cselect_b32 s{SRD_C+1}, s{P_WO+1}, s{P_W1+1}")
A(f"s_mov_b32 s{S_T0}, 0x400000")
A(f"s_cselect_b32 s{SRD_C+2}, s{S_T0}, {512*3584}")
A(f"s_mov_b32 s{SRD_C+3}, 0x00020000")
A(f"s_cselect_b32 s{S_T0}, s{S_T1}, 0")
A(f"s_lshl_b32 s{S_T1}, s{S_WAVE}, 7")
A(f"s_add_u32 s{S_T0}, s{S_T0}, s{S_T1}")
A(f"s_mul_i32 s{S_T0}, s{S_T0}, s{S_C0}")
A(f"s_lshl_b32 s{S_T1}, s{S_SUB}, 6")
A(f"s_add_u32 s{S_T0}, s{S_T0}, s{S_T1}")
A(f"v_bfe_u32 v{V_T}, v0, 3, 2")
A(f"v_lshl_add_u32 v{V_T}, v{V_T}, 3, v9")
A(f"v_mul_lo_u32 v{V_T}, v{V_T}, s{S_C0}")
A(f"v_lshrrev_b32 v{V_T+1}, 5, v0")
A(f"v_lshl_add_u32 v{V_T}, v{V_T+1}, 5, v{V_T}")
A(f"v_lshl_add_u32 v{V_T}, v10, 4, v{V_T}")
A(f"s_lshl_b32 s{S_T1}, s{S_WAVE}, 13")
A(f"s_add_u32 s{S_T1}, s{S_T1}, {L_WX}")
A(f"s_lshl_b32 s{S_C1}, s{S_C0}, 2")
A(f"s_mul_i32 s{S_C2}, s{S_C0}, 28")
for kp in range(4):
    for h in range(2):
        A(f"s_mov_b32 m0, s{S_T1}")
        A(f"s_add_u32 s{S_T1}, s{S_T1}, 1024")
        A(f"buffer_load_dwordx4 v{V_T}, s[{SRD_C}:{SRD_C+3}], s{S_T0} offen{NT} lds")
        A(f"s_add_u32 s{S_T0}, s{S_T0}, s{S_C1 if h == 0 else S_C2}")
L("L_nowx")
stamp(1)
C("---- wait q, QK^T")
lds_wait(L_FLAG + 4, V_T, V_T + 1)
stamp(2)
A(f"v_and_b32 v{V_T}, 3, v0")
A(f"v_lshlrev_b32 v{V_T}, 8, v{V_T}")
A(f"v_lshl_add_u32 v{V_T}, v4, 4, v{V_T}")
for kp in range(4):
    A(f"ds_read_b128 v[{V_Q+4*kp}:{V_Q+4*kp+3}], v{V_T} offset:{L_QL + kp*64}")
A("s_waitcnt lgkmcnt(0)")
for kp in range(4):
    for tt in range(2):
        mfma(V_S + 4 * tt, V_K + (tt * 4 + kp) * 4, V_Q + 4 * kp, None if kp == 0 else V_S + 4 * tt)
nop(8)
C("scores: s = bf16(bf16(acc)*scale)")
S2 = V_T
PK = V_T + 8
for j in range(4):
    A(f"v_cvt_pk_bf16_f32 v{PK+j}, v{V_S+2*j}, v{V_S+2*j+1}")
unpack8(S2, PK)
A(f"s_mov_b32 s{S_T0}, {f2u(SCALE):#x}")
for j in range(8):
    A(f"v_mul_f32 v{S2+j}, s{S_T0}, v{S2+j}")
for j in range(4):
    A(f"v_cvt_pk_bf16_f32 v{PK+j}, v{S2+2*j}, v{S2+2*j+1}")
unpack8(S2, PK)
MM = V_T + 12
assert MM % 2 == 0
TT = V_T + 14
EX = V_T + 16
A(f"v_max3_f32 v{MM}, v{S2}, v{S2+1}, v{S2+2}")
A(f"v_max3_f32 v{MM}, v{MM}, v{S2+3}, v{S2+4}")
A(f"v_max3_f32 v{MM}, v{MM}, v{S2+5}, v{S2+6}")
A(f"v_max_f32 v{MM}, v{MM}, v{S2+7}")
swap_steps("v_max_f32", [MM], [TT])
A(f"s_mov_b32 s{S_T0}, {f2u(LOG2E):#x}")
for j in range(8):
    A(f"v_sub_f32 v{EX+j}, v{S2+j}, v{MM}")
for j in range(8):
    A(f"v_mul_f32 v{EX+j}, s{S_T0}, v{EX+j}")
for j in range(8):
    A(f"v_exp_f32 v{EX+j}, v{EX+j}")
nop(1)
A(f"v_add_f32 v{MM+1}, v{EX}, v{EX+1}")
A(f"v_add_f32 v{TT}, v{EX+2}, v{EX+3}")
A(f"v_add_f32 v{TT+1}, v{EX+4}, v{EX+5}")
A(f"v_add_f32 v{EX}, v{EX+6}, v{EX+7}")
A(f"v_add_f32 v{MM+1}, v{MM+1}, v{TT}")
A(f"v_add_f32 v{EX}, v{EX}, v{TT+1}")
A(f"v_add_f32 v{MM+1}, v{MM+1}, v{EX}")
swap_steps("v_add_f32", [MM + 1], [TT])
C("publish stats: lanes 0..3")
A(f"s_lshl_b32 s{S_T0}, s{S_X}, 1")
A(f"s_add_u32 s{S_T0}, s{S_T0}, s{S_B}")
A(f"s_lshl_b32 s{S_T1}, s{S_T0}, 6")
A(f"s_lshl_b32 s{S_T2}, s{S_SPL}, 2")
A(f"s_add_u32 s{S_T1}, s{S_T1}, s{S_T2}")
A(f"s_add_u32 s{S_T1}, s{S_T1}, s{S_WAVE}")
A(f"s_lshl_b32 s{S_T1}, s{S_T1}, 5")
A(f"s_add_u32 s{S_T1}, s{S_T1}, {WS_ST}")
A(f"v_lshlrev_b32 v{TT}, 3, v0")
A("s_mov_b64 exec, 15")
A(f"buffer_store_dwordx2 v[{MM}:{MM+1}], v{TT}, s[{SRD_WS}:{SRD_WS+3}], s{S_T1} offen sc1")
A("s_mov_b64 exec, -1")
stamp(3)
C("---- W2 DMA (mlp)")
A(f"s_cmp_lg_u32 s{S_ROLE}, 2")
A("s_cbranch_scc1 L_now2")
srd(SRD_C, P_W2, 1792 * 1024)
A(f"s_lshl_b32 s{S_T0}, s{S_SUB}, 15")
A(f"s_lshl_b32 s{S_T1}, s{S_WAVE}, 8")
A(f"s_add_u32 s{S_T0}, s{S_T0}, s{S_T1}")
A(f"s_lshl_b32 s{S_T1}, s{S_WAVE}, 13")
A(f"s_add_u32 s{S_T1}, s{S_T1}, {L_W2}")
for be in range(8):
    A(f"s_mov_b32 m0, s{S_T1}")
    A(f"s_add_u32 s{S_T1}, s{S_T1}, 1024")
    A(f"buffer_load_dwordx4 v{14 + (be & 1)}, s[{SRD_C}:{SRD_C+3}], s{S_T0} offen{NT} lds")
    A(f"s_add_u32 s{S_T0}, s{S_T0}, 4096")
L("L_now2")
C("---- wait global M, 1/L ; p")
lds_wait(L_FLAG + 8, TT, TT + 1)
stamp(4)
A(f"v_and_b32 v{TT}, 3, v0")
A(f"v_lshlrev_b32 v{TT}, 3, v{TT}")
A(f"ds_read_b64 v[{MM}:{MM+1}], v{TT} offset:{L_ML}")
A("s_waitcnt lgkmcnt(0)")
A(f"s_mov_b32 s{S_T0}, {f2u(LOG2E):#x}")
for j in range(8):
    A(f"v_sub_f32 v{EX+j}, v{S2+j}, v{MM}")
for j in range(8):
    A(f"v_mul_f32 v{EX+j}, s{S_T0}, v{EX+j}")
for j in range(8):
    A(f"v_exp_f32 v{EX+j}, v{EX+j}")
nop(1)
for j in range(8):
    A(f"v_mul_f32 v{EX+j}, v{EX+j}, v{MM+1}")
for j in range(4):
    A(f"v_cvt_pk_bf16_f32 v{PK+j}, v{EX+2*j}, v{EX+2*j+1}")
A(f"s_lshl_b32 s{S_T0}, s{S_WAVE}, 10")
A(f"v_add_u32 v{TT}, s{S_T0}, v2")
A(f"ds_write_b128 v{TT}, v[{PK}:{PK+3}] offset:{L_SC}")
C("V tr-read addresses")
VA0 = V_T + 24
VA1 = V_T + 25
A(f"v_lshlrev_b32 v{VA0}, 10, v4")
A(f"v_lshl_add_u32 v{VA0}, v6, 3, v{VA0}")
A(f"v_and_b32 v{VA1}, 1, v4")
A(f"v_lshl_add_u32 v{VA0}, v{VA1}, 7, v{VA0}")
A(f"v_xor_b32 v{VA1}, 128, v{VA0}")
VB0 = V_T + 26
VB1 = V_T + 27
A(f"s_lshl_b32 s{S_T0}, s{S_WAVE}, 8")
A(f"v_add_u32 v{VB0}, s{S_T0}, v{VA0}")
A(f"v_add_u32 v{VB1}, s{S_T0}, v{VA1}")
C("wait own V DMA")
ns = 4 * NSTAMP
lw1, lw2, lwd = newlbl(), newlbl(), newlbl()
A(f"s_cmp_eq_u32 s{S_ROLE}, 1")
A(f"s_cbranch_scc1 {lw1}")
A(f"s_cmp_eq_u32 s{S_ROLE}, 2")
A(f"s_cbranch_scc1 {lw2}")
A(f"s_waitcnt vmcnt({1+ns}) lgkmcnt(0)")
A(f"s_branch {lwd}")
L(lw1)
A(f"s_waitcnt vmcnt({9+ns}) lgkmcnt(0)")
A(f"s_branch {lwd}")
L(lw2)
A(f"s_waitcnt vmcnt({17+ns}) lgkmcnt(0)")
L(lwd)
A("s_barrier")
stamp(5)
C("---- PV")
PB = V_Q
VF = V_K
for t in range(4):
    A(f"ds_read_b128 v[{PB+4*t}:{PB+4*t+3}], v2 offset:{L_SC + t*1024}")
    for c2 in range(2):
        for h in range(2):
            r = VF + (t * 2 + c2) * 4 + 2 * h
            A(f"ds_read_b64_tr_b16 v[{r}:{r+1}], v{VB0 + c2} offset:{L_V + t*8192 + h*4096}")
for t in range(4):
    A(f"s_waitcnt lgkmcnt({(3-t)*5})")
    for c2 in range(2):
        mfma(V_S + 4 * c2, VF + (t * 2 + c2) * 4, PB + 4 * t, None if t == 0 else V_S + 4 * c2)
C("PN store address: lane (n<4, g): n*256 + (32w + 16c2 + 4g)*2")
A(f"v_lshlrev_b32 v{TT}, 8, v6")
A(f"v_lshl_add_u32 v{TT}, v4, 3, v{TT}")
A(f"s_lshl_b32 s{S_T0}, s{S_IDX}, 10")
A(f"s_lshl_b32 s{S_T1}, s{S_X}, 15")
A(f"s_add_u32 s{S_T0}, s{S_T0}, s{S_T1}")
A(f"s_lshl_b32 s{S_T1}, s{S_WAVE}, 6")
A(f"s_add_u32 s{S_T0}, s{S_T0}, s{S_T1}")
A(f"s_add_u32 s{S_T0}, s{S_T0}, {WS_PN}")
nop(2)
for j in range(4):
    A(f"v_cvt_pk_bf16_f32 v{PK+j}, v{V_S+2*j}, v{V_S+2*j+1}")
set_exec(MASK_N4)
A(f"buffer_store_dwordx2 v[{PK}:{PK+1}], v{TT}, s[{SRD_WS}:{SRD_WS+3}], s{S_T0} offen sc1")
A(f"buffer_store_dwordx2 v[{PK+2}:{PK+3}], v{TT}, s[{SRD_WS}:{SRD_WS+3}], s{S_T0} offen offset:32 sc1")
A("s_mov_b64 exec, -1")
stamp(6)
A(f"s_cmp_eq_u32 s{S_ROLE}, 0")
A("s_cbranch_scc1 L_G")
C("---- pre-read WX operand (wo / w1)")
A("s_waitcnt vmcnt(0)")
A("v_lshlrev_b32 v3, 3, v0")
A(f"s_lshl_b32 s{S_T0}, s{S_WAVE}, 13")
A(f"s_add_u32 s{S_T0}, s{S_T0}, {L_WX}")
A(f"v_add_u32 v{TT}, s{S_T0}, v3")
for kp in range(4):
    for ct in range(2):
        for h in range(2):
            r = V_WX + (kp * 2 + ct) * 4 + 2 * h
            A(f"ds_read_b64_tr_b16 v[{r}:{r+1}], v{TT} offset:{kp*2048 + h*1024 + ct*512}")
A(f"s_cmp_eq_u32 s{S_ROLE}, 2")
A("s_cbranch_scc1 L_F")

C("==== E: wo projection")
A(f"v_lshlrev_b32 v{TT}, 10, v6")
A(f"v_lshl_add_u32 v{TT}, v4, 4, v{TT}")
A(f"s_lshl_b32 s{S_T1}, s{S_X}, 15")
A(f"s_lshl_b32 s{S_T2}, s{S_WAVE}, 8")
A(f"s_add_u32 s{S_T1}, s{S_T1}, s{S_T2}")
A(f"s_add_u32 s{S_T1}, s{S_T1}, {WS_PN}")
A(f"s_add_u32 s{S_T2}, s{S_T1}, 16384")


def e_loads():
    for bp in range(2):
        for kp in range(4):
            r = V_G + (bp * 4 + kp) * 4
            A(f"buffer_load_dwordx4 v[{r}:{r+3}], v{TT}, s[{SRD_WS}:{SRD_WS+3}], s{S_T1 if bp == 0 else S_T2} offen offset:{kp*64} sc1")


poll(e_loads, range(V_G, V_G + 32), TT + 1)
stamp(7)
A("s_waitcnt lgkmcnt(0)")
EA = V_K
for kp in range(4):
    for bp in range(2):
        for ct in range(2):
            d = EA + (bp * 2 + ct) * 4
            mfma(d, V_G + (bp * 4 + kp) * 4, V_WX + (kp * 2 + ct) * 4, None if kp == 0 else d)
nop(5)
for i in range(4):
    d = EA + 4 * i
    A(f"v_add_f32 v{d}, v{d}, v{d+1}")
    A(f"v_add_f32 v{d+2}, v{d+2}, v{d+3}")
for i in range(4):
    d = EA + 4 * i
    A(f"v_add_f32 v{d}, v{d}, v{d+2}")
t00, t01, t10, t11 = EA, EA + 4, EA + 8, EA + 12
nop(1)
A(f"v_permlane32_swap_b32 v{t00}, v{t10}")
A(f"v_permlane32_swap_b32 v{t01}, v{t11}")
A(f"v_add_f32 v{t00}, v{t00}, v{t10}")
A(f"v_add_f32 v{t01}, v{t01}, v{t11}")
nop(2)
A(f"v_permlane16_swap_b32 v{t00}, v{t01}")
A(f"v_add_f32 v{t00}, v{t00}, v{t01}")
A("v_lshlrev_b32 v3, 2, v0")
A(f"s_lshl_b32 s{S_T0}, s{S_WAVE}, 8")
A(f"v_add_u32 v{TT}, s{S_T0}, v3")
A(f"ds_write_b32 v{TT}, v{t00} offset:{L_RED}")
A("s_waitcnt lgkmcnt(0)")
A("s_barrier")
A(f"s_cmp_lg_u32 s{S_WAVE}, 0")
A("s_cbranch_scc1 L_end")
for i in range(4):
    A(f"ds_read_b32 v{EA+i}, v3 offset:{L_RED + i*256}")
A(f"v_lshrrev_b32 v{TT}, 5, v0")
A(f"v_lshlrev_b32 v{TT}, 11, v{TT}")
A(f"v_and_b32 v{TT+1}, 31, v0")
A(f"v_lshl_add_u32 v{TT}, v{TT+1}, 2, v{TT}")
A(f"s_lshl_b32 s{S_T0}, s{S_X}, 12")
A(f"s_lshl_b32 s{S_T1}, s{S_SUB}, 7")
A(f"s_add_u32 s{S_T0}, s{S_T0}, s{S_T1}")
A(f"s_add_u32 s{S_T0}, s{S_T0}, {WS_AP}")
A("s_waitcnt lgkmcnt(0)")
A(f"v_add_f32 v{EA}, v{EA}, v{EA+1}")
A(f"v_add_f32 v{EA+2}, v{EA+2}, v{EA+3}")
A(f"v_add_f32 v{EA}, v{EA}, v{EA+2}")
A(f"buffer_store_dword v{EA}, v{TT}, s[{SRD_WS}:{SRD_WS+3}], s{S_T0} offen sc1")
stamp(8)
A("s_branch L_G")

L("L_F")
C("==== F: MLP")
C("pre-read W2 operand")
A(f"s_lshl_b32 s{S_T0}, s{S_WAVE}, 13")
A(f"s_add_u32 s{S_T0}, s{S_T0}, {L_W2}")
A(f"v_add_u32 v{VB0}, s{S_T0}, v{VA0}")
A(f"v_add_u32 v{VB1}, s{S_T0}, v{VA1}")
for ct in range(8):
    for h in range(2):
        r = V_W2 + ct * 4 + 2 * h
        A(f"ds_read_b64_tr_b16 v[{r}:{r+1}], v{VB0 + (ct & 1)} offset:{(ct >> 1)*256 + h*4096}")
A(f"s_cmp_ge_u32 s{S_WAVE}, 2")
A("s_cbranch_scc1 L_F1")
C("group-done flags")
A(f"v_mov_b32 v{TT}, 128")
poll_flags(None, 8, V_G, TT + 1, TT)
C("gather AP for b = wave")
A(f"v_lshlrev_b32 v{TT}, 5, v0")
A(f"s_lshl_b32 s{S_T0}, s{S_WAVE}, 11")
A(f"s_add_u32 s{S_T0}, s{S_T0}, {WS_AP}")
SX = 80
for xp in range(8):
    A(f"s_add_u32 s{SX+xp}, s{S_T0}, {xp*4096}")


def f_loads():
    for xp in range(8):
        for hh in range(2):
            r = V_G + xp * 8 + hh * 4
            A(f"buffer_load_dwordx4 v[{r}:{r+3}], v{TT}, s[{SRD_WS}:{SRD_WS+3}], s{SX+xp} offen offset:{hh*16} sc1")


poll(f_loads, range(V_G, V_G + 64), TT + 1)
stamp(7)
for st in (4, 2, 1):
    for xp in range(st):
        for j in range(8):
            A(f"v_add_f32 v{V_G+xp*8+j}, v{V_G+xp*8+j}, v{V_G+(xp+st)*8+j}")
HX = V_K
HP = V_K + 8
for j in range(4):
    A(f"v_cvt_pk_bf16_f32 v{HP+j}, v{V_G+2*j}, v{V_G+2*j+1}")
unpack8(V_G, HP)
unpack8(HX, V_SM)
for j in range(8):
    A(f"v_add_f32 v{HX+j}, v{HX+j}, v{V_G+j}")
for j in range(4):
    A(f"v_cvt_pk_bf16_f32 v{HP+j}, v{HX+2*j}, v{HX+2*j+1}")
unpack8(HX, HP)
layernorm([HX], 1, V_G + 16, [HP])
A(f"s_lshl_b32 s{S_T0}, s{S_WAVE}, 10")
A(f"v_add_u32 v{TT}, s{S_T0}, v2")
A(f"ds_write_b128 v{TT}, v[{HP}:{HP+3}] offset:{L_HN}")
L("L_F1")
C("act operand address: (l&1)*1024 + (128w + 8g)*2")
A(f"v_and_b32 v{TT+1}, 1, v0")
A(f"v_lshlrev_b32 v{TT+2}, 10, v{TT+1}")
A(f"v_lshl_add_u32 v{TT+2}, v4, 4, v{TT+2}")
A(f"s_lshl_b32 s{S_T0}, s{S_WAVE}, 8")
A(f"v_add_u32 v{TT+2}, s{S_T0}, v{TT+2}")
C("RED2 write addr: w*256 + n*128 + 4g*4")
A(f"v_lshlrev_b32 v{TT+3}, 7, v6")
A(f"v_lshl_add_u32 v{TT+3}, v4, 4, v{TT+3}")
A(f"v_add_u32 v{TT+3}, s{S_T0}, v{TT+3}")
C("RED2 read addr: (l&1)*128 + g*16")
A(f"v_lshlrev_b32 v{TT+4}, 7, v{TT+1}")
A(f"v_lshl_add_u32 v{TT+4}, v4, 4, v{TT+4}")
C("b1 unpack")
B1 = V_T + 32
unpack8(B1, V_SM + 4)
A("s_waitcnt lgkmcnt(0)")
A("s_barrier")
stamp(8)
for kp in range(4):
    A(f"ds_read_b128 v[{V_Q+4*kp}:{V_Q+4*kp+3}], v{TT+2} offset:{L_HN + kp*64}")
for kp in range(4):
    A(f"s_waitcnt lgkmcnt({3-kp})")
    for ct in range(2):
        mfma(V_S + 4 * ct, V_WX + (kp * 2 + ct) * 4, V_Q + 4 * kp, None if kp == 0 else V_S + 4 * ct)
nop(8)
set_exec(MASK_N2)
A(f"ds_write_b128 v{TT+3}, v[{V_S}:{V_S+3}] offset:{L_RED2}")
A(f"ds_write_b128 v{TT+3}, v[{V_S+4}:{V_S+7}] offset:{L_RED2 + 64}")
A("s_mov_b64 exec, -1")
A("s_waitcnt lgkmcnt(0)")
A("s_barrier")
U = V_G
for wp in range(4):
    A(f"ds_read_b128 v[{U+wp*8}:{U+wp*8+3}], v{TT+4} offset:{L_RED2 + wp*256}")
    A(f"ds_read_b128 v[{U+wp*8+4}:{U+wp*8+7}], v{TT+4} offset:{L_RED2 + wp*256 + 64}")
A("s_waitcnt lgkmcnt(0)")
for j in range(8):
    A(f"v_add_f32 v{U+j}, v{U+j}, v{U+8+j}")
    A(f"v_add_f32 v{U+16+j}, v{U+16+j}, v{U+24+j}")
for j in range(8):
    A(f"v_add_f32 v{U+j}, v{U+j}, v{U+16+j}")
for j in range(4):
    A(f"v_cvt_pk_bf16_f32 v{HP+j}, v{U+2*j}, v{U+2*j+1}")
unpack8(U, HP)
for j in range(8):
    A(f"v_add_f32 v{U+j}, v{U+j}, v{B1+j}")
for j in range(4):
    A(f"v_cvt_pk_bf16_f32 v{HP+j}, v{U+2*j}, v{U+2*j+1}")
unpack8(U, HP)
C("gelu(x) = x / (1 + exp(-2u)), u = c0*(x + c1 x^3)")
import math
c0 = math.sqrt(2.0 / math.pi)
k0 = -2.0 * c0 * LOG2E
k1 = k0 * 0.044715
A(f"s_mov_b32 s{S_T0}, {f2u(k1):#x}")
A(f"v_mov_b32 v{U+31}, {f2u(k0):#x}")
for j in range(8):
    A(f"v_mul_f32 v{U+8+j}, v{U+j}, v{U+j}")
for j in range(8):
    A(f"v_fma_f32 v{U+8+j}, v{U+8+j}, s{S_T0}, v{U+31}")
for j in range(8):
    A(f"v_mul_f32 v{U+8+j}, v{U+8+j}, v{U+j}")
for j in range(8):
    A(f"v_exp_f32 v{U+8+j}, v{U+8+j}")
nop(1)
for j in range(8):
    A(f"v_add_f32 v{U+8+j}, 1.0, v{U+8+j}")
for j in range(8):
    A(f"v_rcp_f32 v{U+8+j}, v{U+8+j}")
nop(1)
for j in range(8):
    A(f"v_mul_f32 v{U+j}, v{U+j}, v{U+8+j}")
for j in range(4):
    A(f"v_cvt_pk_bf16_f32 v{HP+j}, v{U+2*j}, v{U+2*j+1}")
C("Y store addr: n*2048 + (128w + 4g)*4")
A(f"v_lshlrev_b32 v{TT}, 11, v6")
A(f"v_lshl_add_u32 v{TT}, v4, 4, v{TT}")
A(f"s_lshl_b32 s{S_T0}, s{S_SUB}, 12")
A(f"s_lshl_b32 s{S_T1}, s{S_WAVE}, 9")
A(f"s_add_u32 s{S_T0}, s{S_T0}, s{S_T1}")
A(f"s_add_u32 s{S_T0}, s{S_T0}, {WS_Y}")
YA = V_G + 32
for ct in range(8):
    mfma(YA + 4 * ct, V_W2 + 4 * ct, HP, None)
nop(1)
set_exec(MASK_N2)
for ct in range(8):
    if ct == 7:
        nop(1)
    A(f"buffer_store_dwordx4 v[{YA+4*ct}:{YA+4*ct+3}], v{TT}, s[{SRD_WS}:{SRD_WS+3}], s{S_T0} offen offset:{ct*64} sc1")
A("s_mov_b64 exec, -1")
stamp(9)

L("L_G")
A(f"s_cmp_lg_u32 s{S_WAVE}, 0")
A("s_cbranch_scc1 L_end")
C("==== G: final reduce of 4 outputs; k = x*32+idx")
A(f"v_mov_b32 v{TT}, 128")
poll_flags(None, 8, V_G, TT + 1, TT)
A(f"s_lshl_b32 s{S_T1}, s{S_X}, 5")
A(f"s_add_u32 s{S_T1}, s{S_T1}, s{S_IDX}")
A(f"s_lshl_b32 s{S_T2}, s{S_T1}, 4")
A(f"s_add_u32 s{S_T3}, s{S_T2}, {WS_AP}")
A(f"s_add_u32 s{S_T2}, s{S_T2}, {WS_Y}")
A(f"v_lshlrev_b32 v{TT}, 12, v0")
GA = V_G
A("s_mov_b64 exec, 0xff")


def g1_loads():
    A(f"buffer_load_dwordx4 v[{GA}:{GA+3}], v{TT}, s[{SRD_WS}:{SRD_WS+3}], s{S_T3} offen sc1")


poll(g1_loads, range(GA, GA + 4), TT + 1)
A("s_mov_b64 exec, -1")
nop(2)
for c in ["quad_perm:[1,0,3,2]", "quad_perm:[2,3,0,1]", "row_half_mirror"]:
    for j in range(4):
        A(f"v_add_f32_dpp v{GA+j}, v{GA+j}, v{GA+j} {c} row_mask:0xf bank_mask:0xf")
GH = V_G + 8
GP = V_G + 16
A(f"v_cvt_pk_bf16_f32 v{GP}, v{GA}, v{GA+1}")
A(f"v_cvt_pk_bf16_f32 v{GP+1}, v{GA+2}, v{GA+3}")
for j in range(2):
    A(f"v_lshlrev_b32 v{GA+2*j}, 16, v{GP+j}")
    A(f"v_and_b32 v{GA+2*j+1}, 0xffff0000, v{GP+j}")
    A(f"v_lshlrev_b32 v{GH+2*j}, 16, v{V_SM+8+j}")
    A(f"v_and_b32 v{GH+2*j+1}, 0xffff0000, v{V_SM+8+j}")
for j in range(4):
    A(f"v_add_f32 v{GH+j}, v{GH+j}, v{GA+j}")
A(f"v_cvt_pk_bf16_f32 v{GP}, v{GH}, v{GH+1}")
A(f"v_cvt_pk_bf16_f32 v{GP+1}, v{GH+2}, v{GH+3}")
GB = V_G + 20
for j in range(2):
    A(f"v_lshlrev_b32 v{GH+2*j}, 16, v{GP+j}")
    A(f"v_and_b32 v{GH+2*j+1}, 0xffff0000, v{GP+j}")
    A(f"v_lshlrev_b32 v{GB+2*j}, 16, v{V_SM+10+j}")
    A(f"v_and_b32 v{GB+2*j+1}, 0xffff0000, v{V_SM+10+j}")
GY = V_G + 24
for j in range(4):
    A(f"v_mov_b32 v{GY+j}, 0")
srd(SRD_A, P_OUT, 2048)
A("s_mov_b32 exec_lo, -1")
A("s_mov_b32 exec_hi, 0x00ffffff")


def g2_loads():
    A(f"buffer_load_dwordx4 v[{GY}:{GY+3}], v{TT}, s[{SRD_WS}:{SRD_WS+3}], s{S_T2} offen sc1")


poll(g2_loads, range(GY, GY + 4), TT + 1)
A("s_mov_b64 exec, -1")
stamp(10)
allreduce("v_add_f32", [GY + j for j in range(4)], [GY + 4 + j for j in range(4)])
A(f"v_cvt_pk_bf16_f32 v{GP}, v{GY}, v{GY+1}")
A(f"v_cvt_pk_bf16_f32 v{GP+1}, v{GY+2}, v{GY+3}")
for j in range(2):
    A(f"v_lshlrev_b32 v{GY+2*j}, 16, v{GP+j}")
    A(f"v_and_b32 v{GY+2*j+1}, 0xffff0000, v{GP+j}")
for j in range(4):
    A(f"v_add_f32 v{GY+j}, v{GY+j}, v{GB+j}")
A(f"v_cvt_pk_bf16_f32 v{GP}, v{GY}, v{GY+1}")
A(f"v_cvt_pk_bf16_f32 v{GP+1}, v{GY+2}, v{GY+3}")
for j in range(2):
    A(f"v_lshlrev_b32 v{GY+2*j}, 16, v{GP+j}")
    A(f"v_and_b32 v{GY+2*j+1}, 0xffff0000, v{GP+j}")
for j in range(4):
    A(f"v_add_f32 v{GY+j}, v{GY+j}, v{GH+j}")
A(f"v_cvt_pk_bf16_f32 v{GP}, v{GY}, v{GY+1}")
A(f"v_cvt_pk_bf16_f32 v{GP+1}, v{GY+2}, v{GY+3}")
A(f"s_lshl_b32 s{S_T2}, s{S_T1}, 3")
A("v_mov_b32 v3, 0")
A("s_mov_b64 exec, 1")
A(f"buffer_store_dwordx2 v[{GP}:{GP+1}], v3, s[{SRD_A}:{SRD_A+3}], s{S_T2} offen")
A("s_mov_b64 exec, -1")
stamp(11)
A("s_endpgm")

L("L_w4")
stamp(0)
srd(SRD_A, P_X, 2048)
A("v_lshlrev_b32 v2, 4, v0")
A(f"buffer_load_dwordx4 v[4:7], v2, s[{SRD_A}:{SRD_A+3}], 0 offen")
A(f"buffer_load_dwordx4 v[8:11], v2, s[{SRD_A}:{SRD_A+3}], 0 offen offset:1024")
srd(SRD_B, P_WQ, 0x400000)
C("lane: ct=l>>4, within=(l>>1)&7, half=l&1; rowpart = 8*(within>>2)+(within&3)")
A("v_bfe_u32 v3, v0, 3, 1")
A("v_bfe_u32 v12, v0, 1, 2")
A("v_lshl_add_u32 v3, v3, 3, v12")
A("v_lshlrev_b32 v3, 13, v3")
A("v_lshrrev_b32 v12, 4, v0")
A("v_lshl_add_u32 v3, v12, 5, v3")
A("v_and_b32 v13, 1, v0")
A("v_lshl_add_u32 v3, v13, 4, v3")
A(f"s_lshr_b32 s{S_T4}, s{S_IDX}, 3")
A(f"s_and_b32 s{S_T5}, s{S_IDX}, 7")
A(f"s_lshl_b32 s{S_T0}, s{S_T4}, 20")
A(f"s_lshl_b32 s{S_T1}, s{S_X}, 10")
A(f"s_add_u32 s{S_T0}, s{S_T0}, s{S_T1}")
A(f"s_lshl_b32 s{S_T1}, s{S_T5}, 7")
A(f"s_add_u32 s{S_T0}, s{S_T0}, s{S_T1}")
rowoff = [0, 16, 4, 20]
for kp in range(4):
    for be in range(4):
        A(f"s_mov_b32 m0, {L_WQ + kp*4096 + be*1024}")
        A(f"s_add_u32 s{S_T1}, s{S_T0}, {(32*kp + rowoff[be])*8192}")
        A(f"buffer_load_dwordx4 v3, s[{SRD_B}:{SRD_B+3}], s{S_T1} offen{NT} lds")
C("clear own outbound slots")
for j in range(4):
    A(f"v_mov_b32 v{16+j}, -1")
A(f"s_lshl_b32 s{S_T0}, s{S_X}, 15")
A(f"s_lshl_b32 s{S_T1}, s{S_IDX}, 10")
A(f"s_add_u32 s{S_T0}, s{S_T0}, s{S_T1}")
A(f"s_add_u32 s{S_T0}, s{S_T0}, {WS_PN}")
A(f"buffer_store_dwordx4 v[16:19], v2, s[{SRD_WS}:{SRD_WS+3}], s{S_T0} offen sc1")
A(f"s_lshl_b32 s{S_T0}, s{S_X}, 12")
A(f"s_lshl_b32 s{S_T1}, s{S_IDX}, 7")
A(f"s_add_u32 s{S_T0}, s{S_T0}, s{S_T1}")
A(f"s_add_u32 s{S_T0}, s{S_T0}, {WS_ST}")
A("s_mov_b64 exec, 0xff")
A(f"buffer_store_dwordx4 v[16:19], v2, s[{SRD_WS}:{SRD_WS+3}], s{S_T0} offen sc1")
A("s_mov_b64 exec, -1")
A(f"s_cmp_lg_u32 s{S_ROLE}, 1")
A("s_cbranch_scc1 L_w4a")
A("v_lshrrev_b32 v14, 3, v0")
A("v_lshlrev_b32 v14, 11, v14")
A("v_and_b32 v15, 7, v0")
A("v_lshl_add_u32 v14, v15, 4, v14")
A(f"s_lshl_b32 s{S_T0}, s{S_X}, 12")
A(f"s_lshl_b32 s{S_T1}, s{S_SUB}, 7")
A(f"s_add_u32 s{S_T0}, s{S_T0}, s{S_T1}")
A(f"s_add_u32 s{S_T0}, s{S_T0}, {WS_AP}")
A("s_mov_b64 exec, 0xffff")
A(f"buffer_store_dwordx4 v[16:19], v14, s[{SRD_WS}:{SRD_WS+3}], s{S_T0} offen sc1")
A("s_mov_b64 exec, -1")
L("L_w4a")
A(f"s_cmp_lg_u32 s{S_ROLE}, 2")
A("s_cbranch_scc1 L_w4b")
A(f"s_lshl_b32 s{S_T0}, s{S_SUB}, 12")
A(f"s_add_u32 s{S_T0}, s{S_T0}, {WS_Y}")
for i in range(4):
    A(f"buffer_store_dwordx4 v[16:19], v2, s[{SRD_WS}:{SRD_WS+3}], s{S_T0} offen offset:{i*1024} sc1")
L("L_w4b")
A("s_barrier")
C("wait x (oldest two loads); at most 16 dma + 6 stores after them")
A(f"s_waitcnt vmcnt(18)")
unpack8(24, 4)
unpack8(32, 8)
layernorm([24, 32], 2, 48, [40, 44])
C("write xn rows [128rb, +128): lanes 16rb..16rb+15")
A(f"s_lshl_b32 s{S_T0}, s{S_T4}, 4")
A(f"s_mov_b64 s[{S_EX}:{S_EX+1}], 0xffff")
A(f"s_lshl_b64 s[{S_EX}:{S_EX+1}], s[{S_EX}:{S_EX+1}], s{S_T0}")
A("v_and_b32 v14, 15, v0")
A("v_lshlrev_b32 v14, 4, v14")
A(f"s_mov_b64 exec, s[{S_EX}:{S_EX+1}]")
A(f"ds_write_b128 v14, v[40:43] offset:{L_XN}")
A(f"ds_write_b128 v14, v[44:47] offset:{L_XN + 256}")
A("s_mov_b64 exec, -1")
C("act operand addr: (l&1)*256 + g*16")
A("v_lshlrev_b32 v14, 8, v13")
A("v_lshl_add_u32 v14, v12, 4, v14")
A("s_waitcnt lgkmcnt(0)")
for kp in range(4):
    A(f"ds_read_b128 v[{80+4*kp}:{80+4*kp+3}], v14 offset:{L_XN + kp*64}")
C("weights tr-read addr: (l>>5)*1024 + (l&31)*8")
A("v_lshrrev_b32 v15, 5, v0")
A("v_lshlrev_b32 v15, 10, v15")
A("v_and_b32 v20, 31, v0")
A("v_lshl_add_u32 v15, v20, 3, v15")
C("QP store addr: n*16384 + 4g*4 ; soffset = QP + rb*32768 + (x*512+cc*64)*4")
A("v_and_b32 v20, 15, v0")
A("v_lshlrev_b32 v20, 14, v20")
A("v_lshl_add_u32 v20, v12, 4, v20")
A(f"s_lshl_b32 s{S_T0}, s{S_T4}, 15")
A(f"s_lshl_b32 s{S_T1}, s{S_X}, 11")
A(f"s_add_u32 s{S_T0}, s{S_T0}, s{S_T1}")
A(f"s_lshl_b32 s{S_T1}, s{S_T5}, 8")
A(f"s_add_u32 s{S_T6}, s{S_T0}, s{S_T1}")
if WS_QP:
    A(f"s_add_u32 s{S_T6}, s{S_T6}, {WS_QP}")
stamp(1)
lds_wait(L_FLAG + 0, 21, 22)
stamp(2)
A("s_waitcnt vmcnt(0)")
stamp(3)
WF = 96
for kp in range(4):
    for ct in range(4):
        for h in range(2):
            r = WF + (kp * 4 + ct) * 4 + 2 * h
            A(f"ds_read_b64_tr_b16 v[{r}:{r+1}], v15 offset:{L_WQ + kp*4096 + h*2048 + ct*256}")
    if kp == 0:
        continue
    A(f"s_waitcnt lgkmcnt(8)")
    for ct in range(4):
        mfma(160 + 4 * ct, WF + ((kp - 1) * 4 + ct) * 4, 80 + 4 * (kp - 1), None if kp == 1 else 160 + 4 * ct)
A("s_waitcnt lgkmcnt(0)")
for ct in range(4):
    mfma(160 + 4 * ct, WF + (3 * 4 + ct) * 4, 80 + 12, 160 + 4 * ct)
nop(5)
set_exec(MASK_N2)
for ct in range(4):
    if ct:
        nop(1)
    A(f"buffer_store_dwordx4 v[{160+4*ct}:{160+4*ct+3}], v20, s[{SRD_WS}:{SRD_WS+3}], s{S_T6} offen offset:{ct*64} sc1")
A("s_mov_b64 exec, -1")
stamp(4)
A("s_endpgm")

L("L_w5")
stamp(0)
A("v_mov_b32 v4, 0")
A("v_mov_b32 v5, 0")
A("v_mov_b32 v6, 0")
A("v_mov_b32 v7, 0")
A(f"v_mov_b32 v3, {L_FLAG}")
A("ds_write_b96 v3, v[4:6]")
A("v_lshlrev_b32 v2, 4, v0")
A(f"s_cmp_ge_u32 s{S_IDX}, 4")
A("s_cbranch_scc1 L_w5a")
C("clear QP[rb=idx][0..1][x*512..+511]")
for j in range(4):
    A(f"v_mov_b32 v{16+j}, -1")
A(f"s_lshl_b32 s{S_T0}, s{S_IDX}, 15")
A(f"s_lshl_b32 s{S_T1}, s{S_X}, 11")
A(f"s_add_u32 s{S_T0}, s{S_T0}, s{S_T1}")
if WS_QP:
    A(f"s_add_u32 s{S_T0}, s{S_T0}, {WS_QP}")
A(f"s_add_u32 s{S_T1}, s{S_T0}, 16384")
A(f"buffer_store_dwordx4 v[16:19], v2, s[{SRD_WS}:{SRD_WS+3}], s{S_T0} offen sc1")
A(f"buffer_store_dwordx4 v[16:19], v2, s[{SRD_WS}:{SRD_WS+3}], s{S_T0} offen offset:1024 sc1")
A(f"buffer_store_dwordx4 v[16:19], v2, s[{SRD_WS}:{SRD_WS+3}], s{S_T1} offen sc1")
A(f"buffer_store_dwordx4 v[16:19], v2, s[{SRD_WS}:{SRD_WS+3}], s{S_T1} offen offset:1024 sc1")
L("L_w5a")
A("s_waitcnt lgkmcnt(0)")
A("s_barrier")
A(f"s_cmp_ge_u32 s{S_IDX}, 4")
A("s_cbranch_scc1 L_w5b")
A("s_waitcnt vmcnt(0)")
A(f"s_lshl_b32 s{S_T0}, s{S_X}, 2")
A(f"s_add_u32 s{S_T0}, s{S_T0}, s{S_IDX}")
A(f"s_lshl_b32 s{S_T0}, s{S_T0}, 2")
A("v_mov_b32 v5, 1")
A("s_mov_b64 exec, 1")
A(f"buffer_store_dword v5, v4, s[{SRD_DBG}:{SRD_DBG+3}], s{S_T0} offen sc1")
A("s_mov_b64 exec, -1")
L("L_w5b")
A(f"s_lshl_b32 s{S_T0}, s{S_X}, 4")
A(f"v_mov_b32 v8, s{S_T0}")
poll_flags(None, 4, 12, 9, 8)
lds_set(L_FLAG + 0, 9, 10)
stamp(1)
C("gather q partials: lane cols 8l..8l+7")
A("v_lshlrev_b32 v8, 5, v0")
A(f"s_lshl_b32 s{S_T0}, s{S_B}, 14")
A(f"s_lshl_b32 s{S_T1}, s{S_X}, 11")
A(f"s_add_u32 s{S_T0}, s{S_T0}, s{S_T1}")
for rb in range(4):
    A(f"s_add_u32 s{80+rb}, s{S_T0}, {WS_QP + rb*32768}")


def q_loads():
    for rb in range(4):
        for hh in range(2):
            r = 16 + rb * 8 + hh * 4
            A(f"buffer_load_dwordx4 v[{r}:{r+3}], v8, s[{SRD_WS}:{SRD_WS+3}], s{80+rb} offen offset:{hh*16} sc1")


poll(q_loads, range(16, 48), 9)
for j in range(8):
    A(f"v_add_f32 v{16+j}, v{16+j}, v{24+j}")
    A(f"v_add_f32 v{32+j}, v{32+j}, v{40+j}")
for j in range(8):
    A(f"v_add_f32 v{16+j}, v{16+j}, v{32+j}")
for j in range(4):
    A(f"v_cvt_pk_bf16_f32 v{48+j}, v{16+2*j}, v{16+2*j+1}")
A(f"ds_write_b128 v2, v[48:51] offset:{L_QL}")
lds_set(L_FLAG + 4, 9, 10)
stamp(2)
A(f"s_cmp_lg_u32 s{S_IDX}, 0")
A("s_cbranch_scc1 L_w5c")
A(f"s_lshl_b32 s{S_T0}, s{S_X}, 2")
A(f"s_add_u32 s{S_T0}, s{S_T0}, 128")
A("v_mov_b32 v5, 1")
A("s_mov_b64 exec, 1")
A(f"buffer_store_dword v5, v4, s[{SRD_DBG}:{SRD_DBG+3}], s{S_T0} offen sc1")
A("s_mov_b64 exec, -1")
L("L_w5c")
C("gather stats: lane = wave-split")
A(f"s_lshl_b32 s{S_T0}, s{S_X}, 12")
A(f"s_lshl_b32 s{S_T1}, s{S_B}, 11")
A(f"s_add_u32 s{S_T0}, s{S_T0}, s{S_T1}")
A(f"s_add_u32 s{S_T1}, s{S_T0}, {WS_ST}")


def s_loads():
    A(f"buffer_load_dwordx4 v[16:19], v8, s[{SRD_WS}:{SRD_WS+3}], s{S_T1} offen sc1")
    A(f"buffer_load_dwordx4 v[20:23], v8, s[{SRD_WS}:{SRD_WS+3}], s{S_T1} offen offset:16 sc1")


poll(s_loads, range(16, 24), 9)
stamp(3)
for h in range(4):
    A(f"v_mov_b32 v{24+2*h}, v{16+2*h}")
allreduce("v_max_f32", [24, 26, 28, 30], [32, 33, 34, 35])
A(f"s_mov_b32 s{S_T0}, {f2u(LOG2E):#x}")
for h in range(4):
    A(f"v_sub_f32 v{16+2*h}, v{16+2*h}, v{24+2*h}")
for h in range(4):
    A(f"v_mul_f32 v{16+2*h}, s{S_T0}, v{16+2*h}")
for h in range(4):
    A(f"v_exp_f32 v{16+2*h}, v{16+2*h}")
nop(1)
for h in range(4):
    A(f"v_mul_f32 v{25+2*h}, v{16+2*h}, v{17+2*h}")
allreduce("v_add_f32", [25, 27, 29, 31], [32, 33, 34, 35])
for h in range(4):
    A(f"v_rcp_f32 v{25+2*h}, v{25+2*h}")
A(f"v_mov_b32 v3, {L_ML}")
A("s_mov_b64 exec, 1")
nop(1)
A("ds_write_b128 v3, v[24:27]")
A("ds_write_b128 v3, v[28:31] offset:16")
A("s_mov_b64 exec, -1")
lds_set(L_FLAG + 8, 9, 10)
stamp(4)
A("s_waitcnt lgkmcnt(0)")
L("L_end")
A("s_endpgm")

out.append(f""".section .rodata,"a"
.p2align 6
.amdhsa_kernel {NAME}_kernel
  .amdhsa_next_free_vgpr 256
  .amdhsa_next_free_sgpr 96
  .amdhsa_accum_offset 256
  .amdhsa_group_segment_fixed_size 0
  .amdhsa_kernarg_size 104
  .amdhsa_user_sgpr_count 2
  .amdhsa_user_sgpr_kernarg_segment_ptr 1
  .amdhsa_system_sgpr_workgroup_id_x 1
.end_amdhsa_kernel""")

print("\n".join(out))
```

```python
import sys, struct, math

NAME = "sequential_preLN__sliding_block_cached__dense_activation_gelu__decode"

CFG = dict(nt=1, timeout=1 << 18, stamps=0, dual=1, kwait=4, vwait=8, tsleep0=8, tsleep=4, kdelay=0)
for a in sys.argv[1:]:
    if "=" in a:
        k, v = a.split("=")
        CFG[k] = int(v)
NT = " nt" if CFG["nt"] else ""

WS_QP = 0x00000
WS_ST = 0x20000
WS_PNA = 0x28000
WS_PNB = 0x68000
WS_AP = 0xA8000
WS_Y = 0xB0000
YP = 4096 + 128
WS_TS = 0xF0000
WS_SIZE = 0x200000

L_XN = 0
L_QL = 512
L_SC = 1536
L_MX = 5632
L_FLAG = 5696
L_TAG = 5712
L_RED = 5728
L_HN = 6752
L_RED2 = 8800
L_V = 10240
L_WQ = L_V + 32768
L_WX = L_WQ + 16384
L_W2 = L_WX + 32768
PNP = 1040
LDS_BYTES = L_W2 + 32 * PNP

LOG2E = 1.4426950408889634
SCALE = 128 ** -0.5


def f2u(f):
    return struct.unpack("<I", struct.pack("<f", f))[0]


out = []


def A(s):
    out.append("    " + s)


def L(s):
    out.append(s + ":")


def C(s):
    out.append("    ; " + s)


def nop(n):
    while n > 0:
        k = min(n, 16)
        A(f"s_nop {k-1}")
        n -= k


_lbl = [0]


def newlbl(p="L"):
    _lbl[0] += 1
    return f"{p}_{_lbl[0]}"


P_X, P_K, P_V, P_WQ, P_WO, P_BX, P_W1, P_B1, P_W2, P_B2, P_OUT, P_DBG, P_WS = [8 + 2 * i for i in range(13)]
S_WAVE, S_X, S_IDX, S_B, S_SPL = 3, 4, 5, 6, 7
SRD_WS, SRD_DBG, SRD_A, SRD_B, SRD_C = 36, 40, 44, 48, 52
S_T0, S_T1, S_T2, S_T3 = 56, 57, 58, 59
S_TO = 60
S_ROLE = 61
S_SUB = 62
S_T4, S_T5, S_T6, S_T7 = 63, 64, 65, 66
S_EX = 68
S_C0, S_C1, S_C2 = 70, 71, 72
S_TS = 74
S_STB = 76
WS = f"s[{SRD_WS}:{SRD_WS+3}]"
DBG = f"s[{SRD_DBG}:{SRD_DBG+3}]"
SA = f"s[{SRD_A}:{SRD_A+3}]"
SB = f"s[{SRD_B}:{SRD_B+3}]"
SC_ = f"s[{SRD_C}:{SRD_C+3}]"


def srd(d, p, size):
    A(f"s_mov_b32 s{d}, s{p}")
    A(f"s_mov_b32 s{d+1}, s{p+1}")
    A(f"s_mov_b32 s{d+2}, {size:#x}")
    A(f"s_mov_b32 s{d+3}, 0x00020000")


def stamp(slot):
    if CFG["stamps"]:
        A(f"s_memrealtime s[{S_STB+2*slot}:{S_STB+2*slot+1}]")


def stamp_init():
    if CFG["stamps"]:
        for i in range(13):
            A(f"s_mov_b32 s{S_STB+2*i}, 0")


def stamp_flush():
    if not CFG["stamps"]:
        return
    A("s_waitcnt lgkmcnt(0)")
    A("s_mov_b64 exec, -1")
    A("v_mov_b32 v1, 0")
    for i in range(13):
        A(f"v_writelane_b32 v1, s{S_STB+2*i}, {i}")
    A(f"s_lshl_b32 s{S_TS}, s2, 9")
    A(f"s_lshl_b32 s{S_TS+1}, s{S_WAVE}, 6")
    A(f"s_add_u32 s{S_TS}, s{S_TS}, s{S_TS+1}")
    A(f"s_add_u32 s{S_TS}, s{S_TS}, {WS_TS}")
    A("v_lshlrev_b32 v2, 2, v0")
    A("s_mov_b64 exec, 0xffff")
    A(f"buffer_store_dword v1, v2, {WS}, s{S_TS} offen")


def dpp_steps(op, regs, ctrls):
    for c in ctrls:
        pad = max(0, 2 - (len(regs) - 1))
        if pad:
            nop(pad)
        for r in regs:
            A(f"{op}_dpp v{r}, v{r}, v{r} {c} row_mask:0xf bank_mask:0xf")


ROW_ALL = ["quad_perm:[1,0,3,2]", "quad_perm:[2,3,0,1]", "row_half_mirror", "row_mirror"]
ROW_HI = ["row_ror:4", "row_ror:8"]


def swap_steps(op, regs, tmps, which=(16, 32)):
    for wd in which:
        sw = f"v_permlane{wd}_swap_b32"
        for r, t in zip(regs, tmps):
            A(f"v_mov_b32 v{t}, v{r}")
        pad = max(0, 2 - (len(regs) - 1))
        if pad:
            nop(pad)
        for r, t in zip(regs, tmps):
            A(f"{sw} v{r}, v{t}")
        for r, t in zip(regs, tmps):
            A(f"{op} v{r}, v{r}, v{t}")


def allreduce(op, regs, tmps):
    nop(2)
    dpp_steps(op, regs, ROW_ALL)
    swap_steps(op, regs, tmps)


def lds_wait(flag_off, vt, va):
    l, e = newlbl("Lw"), newlbl("Lwe")
    A(f"v_mov_b32 v{va}, {flag_off}")
    A(f"s_mov_b32 s{S_TO}, {CFG['timeout']}")
    L(l)
    A(f"ds_read_b32 v{vt}, v{va}")
    A(f"s_sub_u32 s{S_TO}, s{S_TO}, 1")
    A(f"s_cbranch_scc1 {e}")
    A("s_waitcnt lgkmcnt(0)")
    A(f"v_readfirstlane_b32 s{S_T0}, v{vt}")
    A(f"s_cmp_eq_u32 s{S_T0}, 0")
    A(f"s_cbranch_scc1 {l}")
    L(e)
    A("s_waitcnt lgkmcnt(0)")


def lds_set(flag_off, vt, va):
    A("s_waitcnt lgkmcnt(0)")
    A(f"v_mov_b32 v{va}, {flag_off}")
    A(f"v_mov_b32 v{vt}, 1")
    A(f"ds_write_b32 v{va}, v{vt}")


def max_tree(regs, t):
    regs = list(regs)
    if len(regs) == 2:
        A(f"v_max_u32 v{t}, v{regs[0]}, v{regs[1]}")
        return
    A(f"v_max3_u32 v{t}, v{regs[0]}, v{regs[1]}, v{regs[2]}")
    i = 3
    while i + 1 < len(regs):
        A(f"v_max3_u32 v{t}, v{t}, v{regs[i]}, v{regs[i+1]}")
        i += 2
    if i < len(regs):
        A(f"v_max_u32 v{t}, v{t}, v{regs[i]}")


def poll(loads, regs, t, pre=None):
    l, e = newlbl("Lp"), newlbl("Lpe")
    A(f"s_mov_b32 s{S_TO}, {CFG['timeout']}")
    L(l)
    if pre:
        pre()
    loads()
    A(f"s_sub_u32 s{S_TO}, s{S_TO}, 1")
    A(f"s_cbranch_scc1 {e}")
    A("s_waitcnt vmcnt(0)")
    max_tree(regs, t)
    A(f"v_cmp_eq_u32 vcc, -1, v{t}")
    A("s_cmp_lg_u64 vcc, 0")
    A(f"s_cbranch_scc1 {l}")
    L(e)
    A("s_waitcnt vmcnt(0)")


S_MSK = 73


def tag(quad, tg, rnd=True):
    if rnd:
        for j in range(4):
            A(f"v_add_u32 v{quad+j}, 0x200, v{quad+j}")
    for j in range(4):
        A(f"v_bfi_b32 v{quad+j}, s{S_MSK}, v{tg+j}, v{quad+j}")


def tpoll(loads, regs, t, tg):
    l, e = newlbl("Lt"), newlbl("Lte")
    regs = list(regs)
    A(f"s_mov_b32 s{S_TO}, {CFG['timeout']}")
    L(l)
    loads()
    A(f"s_sub_u32 s{S_TO}, s{S_TO}, 1")
    A(f"s_cbranch_scc1 {e}")
    A("s_waitcnt vmcnt(0)")
    for i, r in enumerate(regs):
        A(f"v_xor_b32 v{r}, v{r}, v{tg + (i & 3)}")
    A(f"v_or3_b32 v{t}, v{regs[0]}, v{regs[1]}, v{regs[2]}")
    i = 3
    while i + 1 < len(regs):
        A(f"v_or3_b32 v{t}, v{t}, v{regs[i]}, v{regs[i+1]}")
        i += 2
    if i < len(regs):
        A(f"v_or_b32 v{t}, v{t}, v{regs[i]}")
    A(f"v_and_b32 v{t}, s{S_MSK}, v{t}")
    A(f"v_cmp_ne_u32 vcc, 0, v{t}")
    A("s_cmp_lg_u64 vcc, 0")
    A(f"s_cbranch_scc1 {l}")
    L(e)
    A("s_waitcnt vmcnt(0)")


def spoll_flags(soff_reg, ndw, sbase):
    l, e = newlbl("Lf"), newlbl("Lfe")
    A(f"s_mov_b32 s{S_TO}, {CFG['timeout']}")
    L(l)
    A(f"s_load_dwordx{ndw} s[{sbase}:{sbase+ndw-1}], s[{P_DBG}:{P_DBG+1}], s{soff_reg} glc")
    A(f"s_sub_u32 s{S_TO}, s{S_TO}, 1")
    A(f"s_cbranch_scc1 {e}")
    A("s_waitcnt lgkmcnt(0)")
    A(f"s_min_u32 s{S_T0}, s{sbase}, s{sbase+1}")
    for i in range(2, ndw):
        A(f"s_min_u32 s{S_T0}, s{S_T0}, s{sbase+i}")
    A(f"s_cmp_eq_u32 s{S_T0}, 0")
    A(f"s_cbranch_scc1 {l}")
    L(e)
    A("s_waitcnt lgkmcnt(0)")


def bf16r(dst, src):
    A(f"v_cvt_pk_bf16_f32 v{dst}, v{src}, v{src}")
    A(f"v_lshlrev_b32 v{dst}, 16, v{dst}")


def unpack(dst, src, n):
    for i in range(n):
        A(f"v_lshlrev_b32 v{dst+2*i}, 16, v{src+i}")
        A(f"v_and_b32 v{dst+2*i+1}, 0xffff0000, v{src+i}")


def pack(dst, src, n):
    for i in range(n):
        A(f"v_cvt_pk_bf16_f32 v{dst+i}, v{src+2*i}, v{src+2*i+1}")


def layernorm(xs, nb, tmp, outp):
    s = [tmp + i for i in range(nb)]
    q = [tmp + nb + i for i in range(nb)]
    t = [tmp + 2 * nb + i for i in range(nb)]
    mb = [tmp + 3 * nb + i for i in range(nb)]
    d = [tmp + 4 * nb + 8 * i for i in range(nb)]
    for i in range(nb):
        x = xs[i]
        A(f"v_add_f32 v{s[i]}, v{x}, v{x+1}")
        A(f"v_add_f32 v{t[i]}, v{x+2}, v{x+3}")
        A(f"v_add_f32 v{q[i]}, v{x+4}, v{x+5}")
        A(f"v_add_f32 v{mb[i]}, v{x+6}, v{x+7}")
        A(f"v_add_f32 v{s[i]}, v{s[i]}, v{t[i]}")
        A(f"v_add_f32 v{q[i]}, v{q[i]}, v{mb[i]}")
        A(f"v_add_f32 v{s[i]}, v{s[i]}, v{q[i]}")
    allreduce("v_add_f32", s, t)
    for i in range(nb):
        A(f"v_mul_f32 v{s[i]}, {f2u(1.0/512):#x}, v{s[i]}")
    for i in range(nb):
        x = xs[i]
        for j in range(8):
            A(f"v_sub_f32 v{d[i]+j}, v{x+j}, v{s[i]}")
        A(f"v_mul_f32 v{q[i]}, v{d[i]}, v{d[i]}")
        for j in range(1, 8):
            A(f"v_fmac_f32 v{q[i]}, v{d[i]+j}, v{d[i]+j}")
        bf16r(mb[i], s[i])
    allreduce("v_add_f32", q, t)
    for i in range(nb):
        A(f"v_mul_f32 v{q[i]}, {f2u(1.0/512):#x}, v{q[i]}")
        bf16r(q[i], q[i])
        A(f"v_add_f32 v{q[i]}, {f2u(1e-5):#x}, v{q[i]}")
        bf16r(q[i], q[i])
        A(f"v_sqrt_f32 v{q[i]}, v{q[i]}")
        nop(1)
        bf16r(q[i], q[i])
        A(f"v_rcp_f32 v{q[i]}, v{q[i]}")
    for i in range(nb):
        x = xs[i]
        for j in range(8):
            A(f"v_sub_f32 v{d[i]+j}, v{x+j}, v{mb[i]}")
        pack(outp[i], d[i], 4)
        unpack(d[i], outp[i], 4)
        for j in range(8):
            A(f"v_mul_f32 v{d[i]+j}, v{d[i]+j}, v{q[i]}")
        pack(outp[i], d[i], 4)


def mfma(d, a, b, c=None):
    cc = f"v[{c}:{c+3}]" if c is not None else "0"
    A(f"v_mfma_f32_16x16x32_bf16 v[{d}:{d+3}], v[{a}:{a+3}], v[{b}:{b+3}], {cc}")


MASK_N2 = 0x0003000300030003
MASK_N4 = 0x000f000f000f000f


def set_exec(mask):
    A(f"s_mov_b32 exec_lo, {mask & 0xffffffff:#x}")
    A(f"s_mov_b32 exec_hi, {mask >> 32:#x}")


out.append(f"""; fused pre-LN attention(decode, sliding window) + gelu MLP, persistent kernel
; @launch grid=(256,1,1) block=(384,1,1) lds={LDS_BYTES}
.amdgcn_target "amdgcn-amd-amdhsa--gfx950"
.text
.globl {NAME}_kernel
.p2align 8
.type {NAME}_kernel,@function
{NAME}_kernel:""")

A("s_cmp_ge_u32 s2, 256")
A("s_cbranch_scc1 L_end")
A("s_load_dwordx16 s[8:23], s[0:1], 0")
A("s_load_dwordx8 s[24:31], s[0:1], 64")
A("s_load_dwordx2 s[32:33], s[0:1], 96")
A("v_lshrrev_b32 v1, 6, v0")
A("v_and_b32 v0, 63, v0")
A(f"s_and_b32 s{S_X}, s2, 7")
A(f"v_readfirstlane_b32 s{S_WAVE}, v1")
A(f"s_lshr_b32 s{S_IDX}, s2, 3")
A(f"s_lshr_b32 s{S_B}, s{S_IDX}, 4")
A(f"s_and_b32 s{S_SPL}, s{S_IDX}, 15")
C("roles: idx 0..3 -> G(j=idx), 4..10 -> mlp (mi=x*7+idx-4), 11..14 -> G(j=idx-7), 15 none, >=16 wo(chunk=idx-16)")
A(f"s_lshl_b32 s{S_T2}, s{S_X}, 3")
A(f"s_add_u32 s{S_SUB}, s{S_T2}, s{S_IDX}")
A(f"s_mov_b32 s{S_ROLE}, 3")
A(f"s_sub_u32 s{S_T3}, s{S_SUB}, 7")
A(f"s_mul_i32 s{S_T1}, s{S_X}, 7")
A(f"s_add_u32 s{S_T1}, s{S_T1}, s{S_IDX}")
A(f"s_sub_u32 s{S_T1}, s{S_T1}, 4")
A(f"s_cmp_ge_u32 s{S_IDX}, 4")
A(f"s_cselect_b32 s{S_ROLE}, 2, s{S_ROLE}")
A(f"s_cselect_b32 s{S_SUB}, s{S_T1}, s{S_SUB}")
A(f"s_cmp_ge_u32 s{S_IDX}, 11")
A(f"s_cselect_b32 s{S_ROLE}, 3, s{S_ROLE}")
A(f"s_cselect_b32 s{S_SUB}, s{S_T3}, s{S_SUB}")
A(f"s_cmp_eq_u32 s{S_IDX}, 15")
A(f"s_cselect_b32 s{S_ROLE}, 0, s{S_ROLE}")
A(f"s_cmp_ge_u32 s{S_IDX}, 16")
A(f"s_cselect_b32 s{S_ROLE}, 1, s{S_ROLE}")
A(f"s_cselect_b32 s{S_SUB}, s{S_SPL}, s{S_SUB}")
A("v_lshlrev_b32 v2, 4, v0")
A("v_lshrrev_b32 v4, 4, v0")
A("v_and_b32 v6, 15, v0")
A("s_waitcnt lgkmcnt(0)")
srd(SRD_WS, P_WS, WS_SIZE)
A(f"s_movk_i32 s{S_MSK}, 0x3ff")
stamp_init()
stamp(0)
A(f"s_cmp_eq_u32 s{S_WAVE}, 4")
A("s_cbranch_scc1 L_w4")
A(f"s_cmp_eq_u32 s{S_WAVE}, 5")
A("s_cbranch_scc1 L_w5")

V_K = 16
V_Q = 48
V_S = 64
V_SM = 72
V_T = 84
V_WX = 128
V_W2 = 160
V_G = 192

srd(SRD_A, P_K, 0x2000000)
srd(SRD_B, P_V, 0x2000000)
A(f"s_lshl_b32 s{S_T0}, s{S_B}, 3")
A(f"s_add_u32 s{S_T0}, s{S_T0}, s{S_X}")
A(f"s_lshl_b32 s{S_T0}, s{S_T0}, 13")
A(f"s_lshl_b32 s{S_T1}, s{S_SPL}, 7")
A(f"s_add_u32 s{S_T0}, s{S_T0}, s{S_T1}")
A(f"s_lshl_b32 s{S_T1}, s{S_WAVE}, 5")
A(f"s_add_u32 s{S_T0}, s{S_T0}, s{S_T1}")
A(f"s_add_u32 s{S_T0}, s{S_T0}, 6144")
A(f"s_lshl_b32 s{S_T4}, s{S_T0}, 8")
A(f"s_add_u32 s{S_T5}, s{S_T4}, 4096")
A("v_lshlrev_b32 v7, 8, v6")
A("v_lshl_add_u32 v7, v4, 4, v7")
C("DMA lane offsets (V/W2 style): pos=l>>3, r=(l>>1)&3, half=l&1")
A("v_lshrrev_b32 v8, 3, v0")
A("v_bfe_u32 v9, v0, 1, 2")
A("v_and_b32 v10, 1, v0")
A("v_lshlrev_b32 v11, 5, v8")
A("v_lshl_add_u32 v11, v10, 4, v11")
A("v_lshl_add_u32 v12, v9, 8, v11")
A("v_xor_b32 v13, 32, v12")
A("v_lshl_add_u32 v14, v9, 10, v11")
A("v_xor_b32 v15, 32, v14")
C("PN store addr: lane (n<4,g): n*64 + g*16 ; soffset = x*32768 + idx*1024 + w*256")
V_PNA = 80
V_TG = 124
S_PNA, S_PNB = 34, 35
A(f"v_lshlrev_b32 v{V_PNA}, 6, v6")
A(f"v_lshl_add_u32 v{V_PNA}, v4, 4, v{V_PNA}")
A(f"s_lshl_b32 s{S_T2}, s{S_IDX}, 10")
A(f"s_lshl_b32 s{S_T1}, s{S_X}, 15")
A(f"s_add_u32 s{S_T2}, s{S_T2}, s{S_T1}")
A(f"s_lshl_b32 s{S_T0}, s{S_WAVE}, 8")
A(f"s_add_u32 s{S_T2}, s{S_T2}, s{S_T0}")
A(f"s_add_u32 s{S_PNB}, s{S_T2}, {WS_PNB}")
A(f"s_add_u32 s{S_PNA}, s{S_T2}, {WS_PNA}")
for j in range(4):
    A(f"v_mov_b32 v{V_TG+j}, -1")
A("s_barrier")
if CFG["kdelay"]:
    lds_wait(L_FLAG + 8, V_T, V_T + 1)
C("---- K loads")
for tt in range(2):
    for kp in range(4):
        r = V_K + (tt * 4 + kp) * 4
        A(f"buffer_load_dwordx4 v[{r}:{r+3}], v7, {SA}, s{S_T4 if tt == 0 else S_T5} offen offset:{kp*64}{NT}")
C("---- small loads (role dependent, 2 loads each)")
lsm2, lsm3, lsme = newlbl(), newlbl(), newlbl()
A(f"s_cmp_eq_u32 s{S_ROLE}, 2")
A(f"s_cbranch_scc1 {lsm2}")
C("default/G: x[16gi+4c..], b2[..] ; lane c=l&3")
srd(SRD_C, P_X, 2048)
A(f"v_and_b32 v{V_T}, 3, v0")
A(f"v_lshlrev_b32 v{V_T}, 3, v{V_T}")
A(f"s_lshl_b32 s{S_T0}, s{S_SUB}, 5")
A(f"buffer_load_dwordx2 v[{V_SM}:{V_SM+1}], v{V_T}, {SC_}, s{S_T0} offen{NT}")
srd(SRD_C, P_B2, 1024)
A(f"s_and_b32 s{S_T0}, s{S_T0}, 1023")
A(f"buffer_load_dwordx2 v[{V_SM+2}:{V_SM+3}], v{V_T}, {SC_}, s{S_T0} offen{NT}")
A(f"buffer_load_dwordx2 v[{V_SM+4}:{V_SM+5}], v{V_T}, {SC_}, s{S_T0} offen{NT}")
A(f"buffer_load_dwordx2 v[{V_SM+6}:{V_SM+7}], v{V_T}, {SC_}, s{S_T0} offen{NT}")
A(f"s_branch {lsme}")
L(lsm2)
C("mlp: x[b=w&1][4l..], [256+4l..] ; b1[mi*32+4g..], +16")
srd(SRD_C, P_X, 2048)
A(f"v_lshlrev_b32 v{V_T}, 3, v0")
A(f"s_and_b32 s{S_T0}, s{S_WAVE}, 1")
A(f"s_lshl_b32 s{S_T0}, s{S_T0}, 10")
A(f"buffer_load_dwordx2 v[{V_SM}:{V_SM+1}], v{V_T}, {SC_}, s{S_T0} offen{NT}")
A(f"buffer_load_dwordx2 v[{V_SM+2}:{V_SM+3}], v{V_T}, {SC_}, s{S_T0} offen offset:512{NT}")
srd(SRD_C, P_B1, 3584)
A(f"v_lshlrev_b32 v{V_T}, 3, v4")
A(f"s_lshl_b32 s{S_T0}, s{S_SUB}, 6")
A(f"buffer_load_dwordx2 v[{V_SM+4}:{V_SM+5}], v{V_T}, {SC_}, s{S_T0} offen{NT}")
A(f"buffer_load_dwordx2 v[{V_SM+6}:{V_SM+7}], v{V_T}, {SC_}, s{S_T0} offen offset:32{NT}")
L(lsme)
C("---- clear own PN bytes (both copies)")
set_exec(MASK_N4)
A(f"buffer_store_dwordx4 v[{V_TG}:{V_TG+3}], v{V_PNA}, {WS}, s{S_PNA} offen sc1")
A(f"buffer_store_dwordx4 v[{V_TG}:{V_TG+3}], v{V_PNA}, {WS}, s{S_PNB} offen sc1")
A("s_mov_b64 exec, -1")
C("---- V DMA")
A(f"s_waitcnt vmcnt({6 + CFG['kwait']})")
A(f"s_lshl_b32 s{S_T0}, s{S_WAVE}, 13")
A(f"s_add_u32 s{S_T6}, s{S_T0}, {L_V}")
A(f"s_mov_b32 m0, s{S_T6}")
A(f"s_add_u32 s{S_T6}, s{S_T6}, 4096")
for be in range(4):
    A(f"buffer_load_dwordx4 v{12 + (be & 1)}, {SB}, s{S_T4} offen offset:{be*1024}{NT} lds")
A(f"s_mov_b32 m0, s{S_T6}")
A("s_nop 0")
for be in range(4):
    A(f"buffer_load_dwordx4 v{12 + (be & 1)}, {SB}, s{S_T5} offen offset:{be*1024}{NT} lds")
C("---- WX DMA (wo or w1 tile)")
A(f"s_waitcnt vmcnt({6 + CFG['vwait']})")
stamp(1)
A(f"s_sub_u32 s{S_T0}, s{S_ROLE}, 1")
A(f"s_cmp_ge_u32 s{S_T0}, 2")
A("s_cbranch_scc1 L_nowx")
A(f"s_lshl_b32 s{S_T1}, s{S_X}, 9")
A(f"s_movk_i32 s{S_C0}, 3584")
A(f"s_mov_b32 s{S_T0}, 0x400000")
A(f"s_cmp_eq_u32 s{S_ROLE}, 1")
A(f"s_cselect_b32 s{S_C0}, 1024, s{S_C0}")
A(f"s_cselect_b32 s{SRD_C}, s{P_WO}, s{P_W1}")
A(f"s_cselect_b32 s{SRD_C+1}, s{P_WO+1}, s{P_W1+1}")
A(f"s_cselect_b32 s{SRD_C+2}, s{S_T0}, {512*3584}")
A(f"s_mov_b32 s{SRD_C+3}, 0x00020000")
A(f"s_cselect_b32 s{S_T0}, s{S_T1}, 0")
A(f"s_lshl_b32 s{S_T1}, s{S_WAVE}, 7")
A(f"s_add_u32 s{S_T0}, s{S_T0}, s{S_T1}")
A(f"s_mul_i32 s{S_T0}, s{S_T0}, s{S_C0}")
A(f"s_lshl_b32 s{S_T1}, s{S_SUB}, 6")
A(f"s_add_u32 s{S_T0}, s{S_T0}, s{S_T1}")
C("lane: ct=l>>5, p=(l>>1)&15, half=l&1 ; row = p (+16 per instr)")
A(f"v_bfe_u32 v{V_T}, v0, 1, 4")
A(f"v_mul_lo_u32 v{V_T}, v{V_T}, s{S_C0}")
A(f"v_lshrrev_b32 v{V_T+1}, 5, v0")
A(f"v_lshl_add_u32 v{V_T}, v{V_T+1}, 5, v{V_T}")
A(f"v_lshl_add_u32 v{V_T}, v10, 4, v{V_T}")
A(f"s_lshl_b32 s{S_T1}, s{S_WAVE}, 13")
A(f"s_add_u32 s{S_T1}, s{S_T1}, {L_WX}")
A(f"s_lshl_b32 s{S_C1}, s{S_C0}, 4")
for i in range(8):
    A(f"s_mov_b32 m0, s{S_T1}")
    A(f"s_add_u32 s{S_T1}, s{S_T1}, 1024")
    A(f"buffer_load_dwordx4 v{V_T}, {SC_}, s{S_T0} offen{NT} lds")
    A(f"s_add_u32 s{S_T0}, s{S_T0}, s{S_C1}")
L("L_nowx")
C("---- wait q, QK^T")
A(f"v_and_b32 v{V_T+2}, 3, v0")
A(f"v_lshlrev_b32 v{V_T+3}, 8, v{V_T+2}")
A(f"v_lshl_add_u32 v{V_T+3}, v4, 4, v{V_T+3}")
lds_wait(L_FLAG + 4, V_T, V_T + 1)
stamp(2)
A(f"v_mov_b32 v{V_T}, 0")
A(f"ds_read_b128 v[{V_TG}:{V_TG+3}], v{V_T} offset:{L_TAG}")
for kp in range(4):
    A(f"ds_read_b128 v[{V_Q+4*kp}:{V_Q+4*kp+3}], v{V_T+3} offset:{L_QL + kp*64}")
for kp in range(4):
    A(f"s_waitcnt lgkmcnt({3-kp})")
    for tt in range(2):
        mfma(V_S + 4 * tt, V_K + (tt * 4 + kp) * 4, V_Q + 4 * kp, None if kp == 0 else V_S + 4 * tt)
S2 = V_T + 4
PK = V_T + 12
MM = V_T + 16
TT = V_T + 20
EX = V_T + 24
C("MX write addr: w*16 + head*4 (lanes 0..3)")
A(f"s_lshl_b32 s{S_T0}, s{S_WAVE}, 4")
A(f"v_lshl_add_u32 v{TT+2}, v0, 2, s{S_T0}")
A(f"v_lshlrev_b32 v{TT+3}, 2, v{V_T+2}")
A(f"s_mov_b32 s{S_T0}, {f2u(SCALE):#x}")
A(f"s_mov_b32 s{S_T1}, {f2u(LOG2E):#x}")
nop(3)
pack(PK, V_S, 4)
unpack(S2, PK, 4)
for j in range(8):
    A(f"v_mul_f32 v{S2+j}, s{S_T0}, v{S2+j}")
pack(PK, S2, 4)
unpack(S2, PK, 4)
A(f"v_max3_f32 v{MM}, v{S2}, v{S2+1}, v{S2+2}")
A(f"v_max3_f32 v{MM}, v{MM}, v{S2+3}, v{S2+4}")
A(f"v_max3_f32 v{MM}, v{MM}, v{S2+5}, v{S2+6}")
A(f"v_max_f32 v{MM}, v{MM}, v{S2+7}")
swap_steps("v_max_f32", [MM], [TT])
A("s_mov_b64 exec, 15")
A(f"ds_write_b32 v{TT+2}, v{MM} offset:{L_MX}")
A("s_mov_b64 exec, -1")
for j in range(8):
    A(f"v_mul_f32 v{S2+j}, s{S_T1}, v{S2+j}")
A("s_waitcnt lgkmcnt(0)")
A("s_barrier")
for wp in range(4):
    A(f"ds_read_b32 v{EX+wp}, v{TT+3} offset:{L_MX + wp*16}")
A("s_waitcnt lgkmcnt(0)")
A(f"v_max3_f32 v{MM}, v{EX}, v{EX+1}, v{EX+2}")
A(f"v_max_f32 v{MM}, v{MM}, v{EX+3}")
A(f"v_mul_f32 v{MM}, s{S_T1}, v{MM}")
A(f"v_and_b32 v{MM}, 0xfffffc00, v{MM}")
for j in range(8):
    A(f"v_sub_f32 v{EX+j}, v{S2+j}, v{MM}")
for j in range(8):
    A(f"v_exp_f32 v{EX+j}, v{EX+j}")
A(f"s_lshl_b32 s{S_T0}, s{S_WAVE}, 10")
A(f"v_add_u32 v{TT+2}, s{S_T0}, v2")
pack(PK, EX, 4)
A(f"ds_write_b128 v{TT+2}, v[{PK}:{PK+3}] offset:{L_SC}")
A(f"v_add_f32 v{MM+1}, v{EX}, v{EX+1}")
A(f"v_add_f32 v{TT}, v{EX+2}, v{EX+3}")
A(f"v_add_f32 v{TT+1}, v{EX+4}, v{EX+5}")
A(f"v_add_f32 v{EX}, v{EX+6}, v{EX+7}")
A(f"v_add_f32 v{MM+1}, v{MM+1}, v{TT}")
A(f"v_add_f32 v{EX}, v{EX}, v{TT+1}")
A(f"v_add_f32 v{MM+1}, v{MM+1}, v{EX}")
swap_steps("v_add_f32", [MM + 1], [TT])
C("publish stats: lanes 0,2 store (m_n,l_n,m_n+1,l_n+1)")
A(f"s_lshl_b32 s{S_T0}, s{S_X}, 12")
A(f"s_lshl_b32 s{S_T1}, s{S_IDX}, 7")
A(f"s_add_u32 s{S_T0}, s{S_T0}, s{S_T1}")
A(f"s_lshl_b32 s{S_T1}, s{S_WAVE}, 5")
A(f"s_add_u32 s{S_T0}, s{S_T0}, s{S_T1}")
A(f"s_add_u32 s{S_T0}, s{S_T0}, {WS_ST}")
A(f"v_mov_b32_dpp v{MM+2}, v{MM} quad_perm:[1,1,3,3] row_mask:0xf bank_mask:0xf")
A(f"v_mov_b32_dpp v{MM+3}, v{MM+1} quad_perm:[1,1,3,3] row_mask:0xf bank_mask:0xf")
A(f"v_lshlrev_b32 v{TT}, 3, v0")
tag(MM, V_TG, rnd=False)
C("own PN clears must be complete before the stats become visible")
lc1, lcd = newlbl(), newlbl()
A(f"s_sub_u32 s{S_T1}, s{S_ROLE}, 1")
A(f"s_cmp_lt_u32 s{S_T1}, 2")
A(f"s_cbranch_scc1 {lc1}")
A("s_waitcnt vmcnt(8)")
A(f"s_branch {lcd}")
L(lc1)
A("s_waitcnt vmcnt(16)")
L(lcd)
A("s_mov_b64 exec, 5")
A(f"buffer_store_dwordx4 v[{MM}:{MM+3}], v{TT}, {WS}, s{S_T0} offen sc1")
A("s_mov_b64 exec, -1")
stamp(3)
C("---- W2 DMA (mlp)")
A(f"s_cmp_lg_u32 s{S_ROLE}, 2")
A("s_cbranch_scc1 L_now2")
srd(SRD_C, P_W2, 1792 * 1024)
A(f"s_lshl_b32 s{S_T0}, s{S_SUB}, 15")
A(f"s_lshl_b32 s{S_T1}, s{S_WAVE}, 8")
A(f"s_add_u32 s{S_T0}, s{S_T0}, s{S_T1}")
A(f"s_lshl_b32 s{S_T1}, s{S_WAVE}, 13")
A(f"s_add_u32 s{S_T1}, s{S_T1}, {L_W2}")
for be in range(8):
    A(f"s_mov_b32 m0, s{S_T1}")
    A(f"s_add_u32 s{S_T1}, s{S_T1}, 1024")
    A(f"buffer_load_dwordx4 v{14 + (be & 1)}, {SC_}, s{S_T0} offen{NT} lds")
    A(f"s_add_u32 s{S_T0}, s{S_T0}, 4096")
L("L_now2")
C("V tr-read addresses")
VA0, VA1, VB0, VB1 = V_T + 32, V_T + 33, V_T + 34, V_T + 35
A(f"v_lshlrev_b32 v{VA0}, 10, v4")
A(f"v_lshl_add_u32 v{VA0}, v6, 3, v{VA0}")
A(f"v_and_b32 v{VA1}, 1, v4")
A(f"v_lshl_add_u32 v{VA0}, v{VA1}, 7, v{VA0}")
A(f"v_xor_b32 v{VA1}, 128, v{VA0}")
A(f"s_lshl_b32 s{S_T0}, s{S_WAVE}, 8")
A(f"v_add_u32 v{VB0}, s{S_T0}, v{VA0}")
A(f"v_add_u32 v{VB1}, s{S_T0}, v{VA1}")
C("wait own V DMA")
lw1, lw2, lwd = newlbl(), newlbl(), newlbl()
A(f"s_cmp_eq_u32 s{S_ROLE}, 1")
A(f"s_cbranch_scc1 {lw1}")
A(f"s_cmp_eq_u32 s{S_ROLE}, 2")
A(f"s_cbranch_scc1 {lw2}")
A(f"s_waitcnt vmcnt(1) lgkmcnt(0)")
A(f"s_branch {lwd}")
L(lw1)
A(f"s_waitcnt vmcnt(9) lgkmcnt(0)")
A(f"s_branch {lwd}")
L(lw2)
A(f"s_waitcnt vmcnt(17) lgkmcnt(0)")
L(lwd)
stamp(4)
A("s_barrier")
stamp(5)
C("---- PV")
PB = V_Q
VF = V_K
for t in range(4):
    A(f"ds_read_b128 v[{PB+4*t}:{PB+4*t+3}], v2 offset:{L_SC + t*1024}")
    for c2 in range(2):
        for h in range(2):
            r = VF + (t * 2 + c2) * 4 + 2 * h
            A(f"ds_read_b64_tr_b16 v[{r}:{r+1}], v{VB0 + c2} offset:{L_V + t*8192 + h*4096}")
for t in range(4):
    A(f"s_waitcnt lgkmcnt({(3-t)*5})")
    for c2 in range(2):
        mfma(V_S + 4 * c2, VF + (t * 2 + c2) * 4, PB + 4 * t, None if t == 0 else V_S + 4 * c2)
nop(7)
pack(PK, V_S, 4)
set_exec(MASK_N4)
if CFG["dual"]:
    A(f"buffer_store_dwordx4 v[{PK}:{PK+3}], v{V_PNA}, {WS}, s{S_PNA} offen")
A(f"buffer_store_dwordx4 v[{PK}:{PK+3}], v{V_PNA}, {WS}, s{S_PNB} offen sc1")
A("s_mov_b64 exec, -1")
stamp(6)
A(f"s_cmp_eq_u32 s{S_ROLE}, 0")
A("s_cbranch_scc1 L_exit")
A(f"s_cmp_eq_u32 s{S_ROLE}, 3")
A("s_cbranch_scc1 L_G")
A(f"s_cmp_eq_u32 s{S_ROLE}, 2")
A("s_cbranch_scc1 L_F")


def wx_preread():
    A("v_lshlrev_b32 v3, 3, v0")
    A(f"s_lshl_b32 s{S_T0}, s{S_WAVE}, 13")
    A(f"s_add_u32 s{S_T0}, s{S_T0}, {L_WX}")
    A(f"v_add_u32 v{TT}, s{S_T0}, v3")
    for kp in range(4):
        for ct in range(2):
            for h in range(2):
                r = V_WX + (kp * 2 + ct) * 4 + 2 * h
                A(f"ds_read_b64_tr_b16 v[{r}:{r+1}], v{TT} offset:{kp*2048 + h*1024 + ct*512}")


C("==== E: wo projection")
C("stats: lane l=(s',w'): granule (w>>1) of ST[x][b'][l]")
A(f"v_lshlrev_b32 v{TT+2}, 5, v0")
A(f"s_lshl_b32 s{S_T1}, s{S_X}, 12")
A(f"s_lshr_b32 s{S_T2}, s{S_WAVE}, 1")
A(f"s_lshl_b32 s{S_T2}, s{S_T2}, 4")
A(f"s_add_u32 s{S_T1}, s{S_T1}, s{S_T2}")
A(f"s_add_u32 s{S_T1}, s{S_T1}, {WS_ST}")
SM0 = V_T + 4
SG = V_G


def st_loads():
    A(f"buffer_load_dwordx4 v[{SG}:{SG+3}], v{TT+2}, {WS}, s{S_T1} offen sc1")
    A(f"buffer_load_dwordx4 v[{SG+4}:{SG+7}], v{TT+2}, {WS}, s{S_T1} offen offset:2048 sc1")


tpoll(st_loads, range(SG, SG + 8), TT, V_TG)
stamp(9)
A(f"s_and_b32 s{S_T1}, s{S_WAVE}, 1")
A(f"s_cmp_eq_u32 s{S_T1}, 1")
A(f"s_cselect_b64 s[{S_EX}:{S_EX+1}], -1, 0")
for bp in range(2):
    for j in range(2):
        A(f"v_cndmask_b32 v{SM0+2*bp+j}, v{SG+4*bp+j}, v{SG+4*bp+2+j}, s[{S_EX}:{S_EX+1}]")
wx_preread()
C("first PN poll issue can overlap: compute f")
MG = V_T + 8
A(f"v_mov_b32 v{MG}, v{SM0}")
A(f"v_mov_b32 v{MG+1}, v{SM0+2}")
allreduce("v_max_f32", [MG, MG + 1], [MG + 2, MG + 3])
A(f"v_sub_f32 v{SM0}, v{SM0}, v{MG}")
A(f"v_sub_f32 v{SM0+2}, v{SM0+2}, v{MG+1}")
A(f"v_exp_f32 v{SM0}, v{SM0}")
A(f"v_exp_f32 v{SM0+2}, v{SM0+2}")
nop(1)
A(f"v_mul_f32 v{MG}, v{SM0}, v{SM0+1}")
A(f"v_mul_f32 v{MG+1}, v{SM0+2}, v{SM0+3}")
allreduce("v_add_f32", [MG, MG + 1], [MG + 2, MG + 3])
A(f"v_rcp_f32 v{MG}, v{MG}")
A(f"v_rcp_f32 v{MG+1}, v{MG+1}")
nop(1)
A(f"v_mul_f32 v{SM0}, v{SM0}, v{MG}")
A(f"v_mul_f32 v{SM0+2}, v{SM0+2}, v{MG+1}")
FW = V_T + 24
nop(1)
for bp in range(2):
    for r in range(4):
        A(f"v_mov_b32_dpp v{FW+4*bp+r}, v{SM0+2*bp} row_newbcast:{4*r} row_mask:0xf bank_mask:0xf")
C("gather PN: wave j loads producers 8j..8j+7 (contiguous 8KB)")
A(f"s_lshl_b32 s{S_T1}, s{S_X}, 15")
A(f"s_lshl_b32 s{S_T2}, s{S_WAVE}, 13")
A(f"s_add_u32 s{S_T1}, s{S_T1}, s{S_T2}")
A(f"s_add_u32 s{S_C0}, s{S_T1}, {WS_PNA if CFG['dual'] else WS_PNB}")
A(f"s_add_u32 s{S_C1}, s{S_T1}, {WS_PNB}")
C("LDS stage write addr: (8w+i)*PNP + l*16 ; frag read addr: s'*PNP + w*64 + g*16")
A(f"s_mul_i32 s{S_T2}, s{S_WAVE}, {8*PNP}")
A(f"s_add_u32 s{S_T2}, s{S_T2}, {L_W2}")
A(f"v_add_u32 v{TT+2}, s{S_T2}, v2")
A(f"s_movk_i32 s{S_T2}, {PNP}")
A(f"v_mul_lo_u32 v{TT+3}, v6, s{S_T2}")
A(f"v_lshl_add_u32 v{TT+3}, v4, 4, v{TT+3}")
A(f"s_lshl_b32 s{S_T2}, s{S_WAVE}, 6")
A(f"s_add_u32 s{S_T2}, s{S_T2}, {L_W2}")
A(f"v_add_u32 v{TT+3}, s{S_T2}, v{TT+3}")


def e_pre():
    A(f"s_and_b32 s{S_T0}, s{S_TO}, 3")
    A(f"s_cmp_eq_u32 s{S_T0}, 1")
    A(f"s_cselect_b32 s{S_T1}, s{S_C1}, s{S_C0}")
    A(f"s_add_u32 s{S_T2}, s{S_T1}, 4096")


def e_loads():
    for i in range(8):
        r = V_G + i * 4
        A(f"buffer_load_dwordx4 v[{r}:{r+3}], v2, {WS}, s{S_T1 if i < 4 else S_T2} offen offset:{(i&3)*1024} sc1")


poll(e_loads, range(V_G, V_G + 32), TT + 1, pre=e_pre)
stamp(7)
for i in range(8):
    r = V_G + i * 4
    A(f"ds_write_b128 v{TT+2}, v[{r}:{r+3}] offset:{i*PNP}")
A("s_waitcnt lgkmcnt(0)")
A("s_barrier")
for kp in range(4):
    for bp in range(2):
        r = V_G + (kp * 2 + bp) * 4
        A(f"ds_read_b128 v[{r}:{r+3}], v{TT+3} offset:{bp*16*PNP + kp*256}")
EA = V_K
for kp in range(4):
    A(f"s_waitcnt lgkmcnt({(3-kp)*2})")
    for bp in range(2):
        for ct in range(2):
            d = EA + (bp * 2 + ct) * 4
            mfma(d, V_G + (kp * 2 + bp) * 4, V_WX + (kp * 2 + ct) * 4, None if kp == 0 else d)
A("v_lshlrev_b32 v3, 2, v0")
A(f"s_lshl_b32 s{S_T0}, s{S_WAVE}, 8")
A(f"v_add_u32 v{TT}, s{S_T0}, v3")
nop(3)
for i in range(4):
    d = EA + 4 * i
    f = FW + 4 * (i >> 1)
    A(f"v_mul_f32 v{d}, v{d}, v{f}")
    A(f"v_mul_f32 v{d+2}, v{d+2}, v{f+2}")
    A(f"v_fmac_f32 v{d}, v{d+1}, v{f+1}")
    A(f"v_fmac_f32 v{d+2}, v{d+3}, v{f+3}")
for i in range(4):
    d = EA + 4 * i
    A(f"v_add_f32 v{d}, v{d}, v{d+2}")
t00, t01, t10, t11 = EA, EA + 4, EA + 8, EA + 12
nop(1)
A(f"v_permlane32_swap_b32 v{t00}, v{t10}")
A(f"v_permlane32_swap_b32 v{t01}, v{t11}")
A(f"v_add_f32 v{t00}, v{t00}, v{t10}")
A(f"v_add_f32 v{t01}, v{t01}, v{t11}")
nop(2)
A(f"v_permlane16_swap_b32 v{t00}, v{t01}")
A(f"v_add_f32 v{t00}, v{t00}, v{t01}")
A(f"ds_write_b32 v{TT}, v{t00} offset:{L_RED}")
A("s_waitcnt lgkmcnt(0)")
A("s_barrier")
A(f"s_cmp_lg_u32 s{S_WAVE}, 0")
A("s_cbranch_scc1 L_exit")
A("s_mov_b64 exec, 0xffff")
for i in range(4):
    A(f"ds_read_b128 v[{EA+4*i}:{EA+4*i+3}], v2 offset:{L_RED + i*256}")
C("AP addr: lane j<16: (j>>3)*2048 + (j&7)*16")
A(f"v_lshrrev_b32 v{TT}, 3, v0")
A(f"v_lshlrev_b32 v{TT}, 11, v{TT}")
A(f"v_and_b32 v{TT+1}, 7, v0")
A(f"v_lshl_add_u32 v{TT}, v{TT+1}, 4, v{TT}")
A(f"s_lshl_b32 s{S_T0}, s{S_X}, 12")
A(f"s_lshl_b32 s{S_T1}, s{S_SUB}, 7")
A(f"s_add_u32 s{S_T0}, s{S_T0}, s{S_T1}")
A(f"s_add_u32 s{S_T0}, s{S_T0}, {WS_AP}")
A("s_waitcnt lgkmcnt(0)")
for j in range(4):
    A(f"v_add_f32 v{EA+j}, v{EA+j}, v{EA+4+j}")
    A(f"v_add_f32 v{EA+8+j}, v{EA+8+j}, v{EA+12+j}")
for j in range(4):
    A(f"v_add_f32 v{EA+j}, v{EA+j}, v{EA+8+j}")
tag(EA, V_TG)
A(f"buffer_store_dwordx4 v[{EA}:{EA+3}], v{TT}, {WS}, s{S_T0} offen sc1")
stamp(8)
A("s_branch L_exit")

L("L_F")
C("==== F: MLP")
A("s_waitcnt vmcnt(0)")
wx_preread()
A(f"s_lshl_b32 s{S_T0}, s{S_WAVE}, 13")
A(f"s_add_u32 s{S_T0}, s{S_T0}, {L_W2}")
A(f"v_add_u32 v{VB0}, s{S_T0}, v{VA0}")
A(f"v_add_u32 v{VB1}, s{S_T0}, v{VA1}")
for ct in range(8):
    for h in range(2):
        r = V_W2 + ct * 4 + 2 * h
        A(f"ds_read_b64_tr_b16 v[{r}:{r+1}], v{VB0 + (ct & 1)} offset:{(ct >> 1)*256 + h*4096}")
C("act operand address: (l&1)*1024 + w*256 + g*16")
A0, A1, A2 = V_T + 36, V_T + 37, V_T + 38
A(f"v_lshlrev_b32 v{A0}, 10, v10")
A(f"v_lshl_add_u32 v{A0}, v4, 4, v{A0}")
A(f"s_lshl_b32 s{S_T0}, s{S_WAVE}, 8")
A(f"v_add_u32 v{A0}, s{S_T0}, v{A0}")
C("RED2 write addr: w*256 + n*128 + g*16")
A(f"v_lshlrev_b32 v{A1}, 7, v6")
A(f"v_lshl_add_u32 v{A1}, v4, 4, v{A1}")
A(f"v_add_u32 v{A1}, s{S_T0}, v{A1}")
C("RED2 read addr: (l&1)*128 + g*16")
A(f"v_lshlrev_b32 v{A2}, 7, v10")
A(f"v_lshl_add_u32 v{A2}, v4, 4, v{A2}")
B1 = V_T + 24
unpack(B1, V_SM + 4, 4)
C("Y store addr: n*2048 + g*16 ; soff = Y + mi*YP + w*512")
YAD = V_T + 39
A(f"v_lshlrev_b32 v{YAD}, 11, v6")
A(f"v_lshl_add_u32 v{YAD}, v4, 4, v{YAD}")
A(f"s_mul_i32 s{S_C2}, s{S_SUB}, {YP}")
A(f"s_lshl_b32 s{S_T1}, s{S_WAVE}, 9")
A(f"s_add_u32 s{S_C2}, s{S_C2}, s{S_T1}")
A(f"s_add_u32 s{S_C2}, s{S_C2}, {WS_Y}")
A(f"s_cmp_ge_u32 s{S_WAVE}, 2")
A("s_cbranch_scc1 L_F1")
HX = V_K
HP = V_K + 8
unpack(HX, V_SM, 4)
C("hn write addr: cols 4l..4l+3: blk=(l>>3)*64 + (l&3)*16 + ((l>>2)&1)*8 ; second piece +512")
A(f"v_lshlrev_b32 v{TT+2}, 6, v8")
A(f"v_and_b32 v{TT+3}, 3, v0")
A(f"v_lshl_add_u32 v{TT+2}, v{TT+3}, 4, v{TT+2}")
A(f"v_bfe_u32 v{TT+3}, v0, 2, 1")
A(f"v_lshl_add_u32 v{TT+2}, v{TT+3}, 3, v{TT+2}")
A(f"s_lshl_b32 s{S_T0}, s{S_WAVE}, 10")
A(f"v_add_u32 v{TT+2}, s{S_T0}, v{TT+2}")
C("gather AP for b = wave")
A(f"s_lshl_b32 s{S_T0}, s{S_WAVE}, 11")
A(f"s_add_u32 s{S_T0}, s{S_T0}, {WS_AP}")
SX = 8
for xp in range(8):
    A(f"s_add_u32 s{SX+xp}, s{S_T0}, {xp*4096}")


def f_loads():
    for xp in range(8):
        for hh in range(2):
            r = V_G + xp * 8 + hh * 4
            A(f"buffer_load_dwordx4 v[{r}:{r+3}], v2, {WS}, s{SX+xp} offen offset:{hh*1024} sc1")


tpoll(f_loads, range(V_G, V_G + 64), TT, V_TG)
stamp(7)
for st in (4, 2, 1):
    for xp in range(st):
        for j in range(0, 8, 2):
            a = V_G + xp * 8 + j
            b = V_G + (xp + st) * 8 + j
            A(f"v_pk_add_f32 v[{a}:{a+1}], v[{a}:{a+1}], v[{b}:{b+1}]")
pack(HP, V_G, 4)
unpack(V_G, HP, 4)
for j in range(8):
    A(f"v_add_f32 v{HX+j}, v{HX+j}, v{V_G+j}")
pack(HP, HX, 4)
unpack(HX, HP, 4)
layernorm([HX], 1, V_G + 16, [HP])
A(f"ds_write_b64 v{TT+2}, v[{HP}:{HP+1}] offset:{L_HN}")
A(f"ds_write_b64 v{TT+2}, v[{HP+2}:{HP+3}] offset:{L_HN + 512}")
L("L_F1")
A("s_waitcnt lgkmcnt(0)")
A("s_barrier")
stamp(8)
for kp in range(4):
    A(f"ds_read_b128 v[{V_Q+4*kp}:{V_Q+4*kp+3}], v{A0} offset:{L_HN + kp*64}")
for kp in range(4):
    A(f"s_waitcnt lgkmcnt({3-kp})")
    for ct in range(2):
        mfma(V_S + 4 * ct, V_WX + (kp * 2 + ct) * 4, V_Q + 4 * kp, None if kp == 0 else V_S + 4 * ct)
nop(6)
set_exec(MASK_N2)
A(f"ds_write_b128 v{A1}, v[{V_S}:{V_S+3}] offset:{L_RED2}")
A(f"ds_write_b128 v{A1}, v[{V_S+4}:{V_S+7}] offset:{L_RED2 + 64}")
A("s_mov_b64 exec, -1")
A("s_waitcnt lgkmcnt(0)")
A("s_barrier")
U = V_G
for wp in range(4):
    A(f"ds_read_b128 v[{U+wp*8}:{U+wp*8+3}], v{A2} offset:{L_RED2 + wp*256}")
    A(f"ds_read_b128 v[{U+wp*8+4}:{U+wp*8+7}], v{A2} offset:{L_RED2 + wp*256 + 64}")
c0 = math.sqrt(2.0 / math.pi)
k0 = -2.0 * c0 * LOG2E
k1 = k0 * 0.044715
A(f"s_mov_b32 s{S_T0}, {f2u(k1):#x}")
A(f"v_mov_b32 v{TT}, {f2u(k0):#x}")
A("s_waitcnt lgkmcnt(0)")
for j in range(0, 8, 2):
    A(f"v_pk_add_f32 v[{U+j}:{U+j+1}], v[{U+j}:{U+j+1}], v[{U+8+j}:{U+8+j+1}]")
    A(f"v_pk_add_f32 v[{U+16+j}:{U+16+j+1}], v[{U+16+j}:{U+16+j+1}], v[{U+24+j}:{U+24+j+1}]")
for j in range(0, 8, 2):
    A(f"v_pk_add_f32 v[{U+j}:{U+j+1}], v[{U+j}:{U+j+1}], v[{U+16+j}:{U+16+j+1}]")
pack(HP, U, 4)
unpack(U, HP, 4)
for j in range(8):
    A(f"v_add_f32 v{U+j}, v{U+j}, v{B1+j}")
pack(HP, U, 4)
unpack(U, HP, 4)
C("gelu(x) = x / (1 + exp(-2u)), u = c0*(x + c1 x^3)")
for j in range(8):
    A(f"v_mul_f32 v{U+8+j}, v{U+j}, v{U+j}")
for j in range(8):
    A(f"v_fma_f32 v{U+8+j}, v{U+8+j}, s{S_T0}, v{TT}")
for j in range(8):
    A(f"v_mul_f32 v{U+8+j}, v{U+8+j}, v{U+j}")
for j in range(8):
    A(f"v_exp_f32 v{U+8+j}, v{U+8+j}")
for j in range(8):
    A(f"v_add_f32 v{U+8+j}, 1.0, v{U+8+j}")
for j in range(8):
    A(f"v_rcp_f32 v{U+8+j}, v{U+8+j}")
for j in range(8):
    A(f"v_mul_f32 v{U+j}, v{U+j}, v{U+8+j}")
pack(HP, U, 4)
nop(2)
YA = V_G + 32
for ct in range(8):
    mfma(YA + 4 * ct, V_W2 + 4 * ct, HP, None)
nop(1)
set_exec(MASK_N2)
for ct in range(8):
    tag(YA + 4 * ct, V_TG)
    A(f"buffer_store_dwordx4 v[{YA+4*ct}:{YA+4*ct+3}], v{YAD}, {WS}, s{S_C2} offen offset:{ct*64} sc1")
A("s_mov_b64 exec, -1")
stamp(9)
A("s_branch L_exit")

L("L_G")
A(f"s_cmp_lg_u32 s{S_WAVE}, 0")
A("s_cbranch_scc1 L_exit")
C("==== G: final reduce of 16 outputs (16gi..16gi+15)")
A(f"s_lshl_b32 s{S_T2}, s{S_SUB}, 6")
A(f"s_add_u32 s{S_T3}, s{S_T2}, {WS_AP}")
A(f"s_add_u32 s{S_T2}, s{S_T2}, {WS_Y}")
A(f"v_lshrrev_b32 v{TT+2}, 2, v0")
A(f"v_and_b32 v{TT+3}, 3, v0")
A(f"v_lshlrev_b32 v{TT}, 12, v{TT+2}")
A(f"v_lshl_add_u32 v{TT}, v{TT+3}, 4, v{TT}")
A(f"s_movk_i32 s{S_T0}, {YP}")
A(f"v_mul_lo_u32 v{TT+2}, v{TT+2}, s{S_T0}")
A(f"v_lshl_add_u32 v{TT+2}, v{TT+3}, 4, v{TT+2}")
for i in range(1, 4):
    A(f"s_add_u32 s{8+i}, s{S_T2}, {16*i*YP}")
GA = V_G
A("s_mov_b32 exec_hi, 0")


def g1_loads():
    A(f"buffer_load_dwordx4 v[{GA}:{GA+3}], v{TT}, {WS}, s{S_T3} offen sc1")


tpoll(g1_loads, range(GA, GA + 4), V_T, V_TG)
A("s_mov_b64 exec, -1")
stamp(7)
nop(1)
dpp_steps("v_add_f32", [GA + j for j in range(4)], ROW_HI)
swap_steps("v_add_f32", [GA + j for j in range(4)], [GA + 4 + j for j in range(4)], which=(16,))
GH = V_G + 8
GP = V_G + 16
GB = V_G + 20
pack(GP, GA, 2)
unpack(GA, GP, 2)
unpack(GH, V_SM, 2)
for j in range(4):
    A(f"v_add_f32 v{GH+j}, v{GH+j}, v{GA+j}")
pack(GP, GH, 2)
unpack(GH, GP, 2)
unpack(GB, V_SM + 2, 2)
GY = V_G + 24
srd(SRD_A, P_OUT, 2048)


def g2_loads():
    for j in range(4):
        A(f"v_mov_b32 v{GY+12+j}, v{V_TG+j}")
    A(f"buffer_load_dwordx4 v[{GY}:{GY+3}], v{TT+2}, {WS}, s{S_T2} offen sc1")
    A(f"buffer_load_dwordx4 v[{GY+4}:{GY+7}], v{TT+2}, {WS}, s9 offen sc1")
    A(f"buffer_load_dwordx4 v[{GY+8}:{GY+11}], v{TT+2}, {WS}, s10 offen sc1")
    A("s_mov_b32 exec_hi, 0")
    A(f"buffer_load_dwordx4 v[{GY+12}:{GY+15}], v{TT+2}, {WS}, s11 offen sc1")
    A("s_mov_b32 exec_hi, -1")


tpoll(g2_loads, range(GY, GY + 16), V_T, V_TG)
stamp(10)
for j in range(4):
    A(f"v_add_f32 v{GY+j}, v{GY+j}, v{GY+4+j}")
    A(f"v_add_f32 v{GY+8+j}, v{GY+8+j}, v{GY+12+j}")
for j in range(4):
    A(f"v_add_f32 v{GY+j}, v{GY+j}, v{GY+8+j}")
dpp_steps("v_add_f32", [GY + j for j in range(4)], ROW_HI)
swap_steps("v_add_f32", [GY + j for j in range(4)], [GY + 4 + j for j in range(4)])
pack(GP, GY, 2)
unpack(GY, GP, 2)
for j in range(4):
    A(f"v_add_f32 v{GY+j}, v{GY+j}, v{GB+j}")
pack(GP, GY, 2)
unpack(GY, GP, 2)
for j in range(4):
    A(f"v_add_f32 v{GY+j}, v{GY+j}, v{GH+j}")
pack(GP, GY, 2)
A(f"s_lshl_b32 s{S_T2}, s{S_SUB}, 5")
A("v_lshlrev_b32 v3, 3, v0")
A("s_mov_b64 exec, 15")
A(f"buffer_store_dwordx2 v[{GP}:{GP+1}], v3, {SA}, s{S_T2} offen")
stamp(11)
A("s_branch L_exit")

L("L_w4")
srd(SRD_A, P_X, 2048)
A(f"buffer_load_dwordx4 v[8:11], v2, {SA}, 0 offen{NT}")
A(f"buffer_load_dwordx4 v[12:15], v2, {SA}, 0 offen offset:1024{NT}")
srd(SRD_B, P_WQ, 0x400000)
C("lane: ct=l>>4, within=(l>>1)&7 (row), half=l&1")
A("v_bfe_u32 v3, v0, 1, 3")
A("v_lshlrev_b32 v3, 13, v3")
A("v_lshl_add_u32 v3, v4, 5, v3")
A("v_and_b32 v5, 1, v0")
A("v_lshl_add_u32 v3, v5, 4, v3")
A(f"s_lshr_b32 s{S_T4}, s{S_IDX}, 3")
A(f"s_and_b32 s{S_T5}, s{S_IDX}, 7")
A(f"s_lshl_b32 s{S_T0}, s{S_T4}, 20")
A(f"s_lshl_b32 s{S_T1}, s{S_X}, 10")
A(f"s_add_u32 s{S_T0}, s{S_T0}, s{S_T1}")
A(f"s_lshl_b32 s{S_T1}, s{S_T5}, 7")
A(f"s_add_u32 s{S_T0}, s{S_T0}, s{S_T1}")
for i in range(16):
    A(f"s_mov_b32 m0, {L_WQ + i*1024}")
    A(f"s_add_u32 s{S_T1}, s{S_T0}, {8*i*8192}")
    A(f"buffer_load_dwordx4 v3, {SB}, s{S_T1} offen{NT} lds")
A("s_barrier")
C("xn write addr (lane t'=l&15): (t'>>2)*64 + (t'&1)*32 + ((t'>>1)&1)*8 ; second +16")
A("v_bfe_u32 v16, v0, 2, 2")
A("v_lshlrev_b32 v16, 6, v16")
A("v_lshl_add_u32 v16, v5, 5, v16")
A("v_bfe_u32 v17, v0, 1, 1")
A("v_lshl_add_u32 v16, v17, 3, v16")
A(f"s_lshl_b32 s{S_T0}, s{S_T4}, 4")
A(f"s_mov_b64 s[{S_EX}:{S_EX+1}], 0xffff")
A(f"s_lshl_b64 s[{S_EX}:{S_EX+1}], s[{S_EX}:{S_EX+1}], s{S_T0}")
C("act operand addr: (l&1)*256 + g*16")
A("v_lshlrev_b32 v17, 8, v5")
A("v_lshl_add_u32 v17, v4, 4, v17")
C("weights tr-read addr: (l>>5)*1024 + (l&31)*8")
A("v_lshrrev_b32 v18, 5, v0")
A("v_lshlrev_b32 v18, 10, v18")
A("v_and_b32 v19, 31, v0")
A("v_lshl_add_u32 v18, v19, 3, v18")
C("QP store addr: n*8192 + g*16 ; soffset = QP + x*16384 + rb*2048 + cc*256")
A("v_lshlrev_b32 v19, 13, v6")
A("v_lshl_add_u32 v19, v4, 4, v19")
A(f"s_lshl_b32 s{S_T2}, s{S_X}, 14")
A(f"s_lshl_b32 s{S_T1}, s{S_IDX}, 8")
A(f"s_add_u32 s{S_T6}, s{S_T2}, s{S_T1}")
A(f"s_lshl_b32 s{S_T1}, s{S_B}, 13")
A(f"s_add_u32 s{S_T7}, s{S_T2}, s{S_T1}")
A(f"s_add_u32 s{S_C0}, s{S_T7}, 4096")
A("s_waitcnt vmcnt(16)")
if CFG["kdelay"]:
    lds_set(L_FLAG + 8, 20, 21)
unpack(24, 8, 4)
unpack(32, 12, 4)
layernorm([24, 32], 2, 48, [40, 44])
A(f"s_mov_b64 exec, s[{S_EX}:{S_EX+1}]")
A(f"ds_write_b64 v16, v[40:41] offset:{L_XN}")
A(f"ds_write_b64 v16, v[42:43] offset:{L_XN + 16}")
A(f"ds_write_b64 v16, v[44:45] offset:{L_XN + 256}")
A(f"ds_write_b64 v16, v[46:47] offset:{L_XN + 256 + 16}")
A("s_mov_b64 exec, -1")
A("s_waitcnt lgkmcnt(0)")
for kp in range(4):
    A(f"ds_read_b128 v[{80+4*kp}:{80+4*kp+3}], v17 offset:{L_XN + kp*64}")
stamp(1)
WF = 96
for kp in range(4):
    A(f"s_waitcnt vmcnt({12 - 4*kp})")
    for ct in range(4):
        for h in range(2):
            r = WF + (kp * 4 + ct) * 4 + 2 * h
            A(f"ds_read_b64_tr_b16 v[{r}:{r+1}], v18 offset:{L_WQ + kp*4096 + h*2048 + ct*256}")
    if kp == 0:
        continue
    A(f"s_waitcnt lgkmcnt(8)")
    for ct in range(4):
        mfma(160 + 4 * ct, WF + ((kp - 1) * 4 + ct) * 4, 80 + 4 * (kp - 1), None if kp == 1 else 160 + 4 * ct)
stamp(2)
A("s_waitcnt lgkmcnt(0)")
for ct in range(4):
    mfma(160 + 4 * ct, WF + (3 * 4 + ct) * 4, 80 + 12, 160 + 4 * ct)
lds_wait(L_FLAG + 0, 21, 22)
A("v_mov_b32 v21, 0")
A(f"ds_read_b128 v[60:63], v21 offset:{L_TAG}")
A("s_waitcnt lgkmcnt(0)")
stamp(3)
set_exec(MASK_N2)
for ct in range(4):
    tag(160 + 4 * ct, 60)
    A(f"buffer_store_dwordx4 v[{160+4*ct}:{160+4*ct+3}], v19, {WS}, s{S_T6} offen offset:{ct*64} sc1")
A("s_mov_b64 exec, -1")
C("gather q partials [rb][512]: lane cols 4l.. and 256+4l..")


def q_loads():
    for i in range(8):
        r = 24 + i * 4
        A(f"buffer_load_dwordx4 v[{r}:{r+3}], v2, {WS}, s{S_T7 if i < 4 else S_C0} offen offset:{(i&3)*1024} sc1")


tpoll(q_loads, range(24, 56), 20, 60)
for j in range(0, 8, 2):
    A(f"v_pk_add_f32 v[{24+j}:{25+j}], v[{24+j}:{25+j}], v[{32+j}:{33+j}]")
    A(f"v_pk_add_f32 v[{40+j}:{41+j}], v[{40+j}:{41+j}], v[{48+j}:{49+j}]")
for j in range(0, 8, 2):
    A(f"v_pk_add_f32 v[{24+j}:{25+j}], v[{24+j}:{25+j}], v[{40+j}:{41+j}]")
pack(56, 24, 4)
A("v_lshlrev_b32 v3, 3, v0")
A(f"ds_write_b64 v3, v[56:57] offset:{L_QL}")
A(f"ds_write_b64 v3, v[58:59] offset:{L_QL + 512}")
lds_set(L_FLAG + 4, 21, 22)
stamp(4)
A("s_branch L_exit")

L("L_w5")
srd(SRD_DBG, P_DBG, 256)
A("v_mov_b32 v8, 0")
A("v_mov_b32 v9, 0")
A("s_cmp_lg_u32 s2, 0")
A("s_cbranch_scc1 L_w5a")
C("workgroup 0 publishes the launch tag: (time_lo, time_hi | 0x80000000)")
A("s_memrealtime s[8:9]")
A("s_waitcnt lgkmcnt(0)")
A("s_or_b32 s9, s9, 0x80000000")
A("v_mov_b32 v10, s8")
A("v_mov_b32 v11, s9")
A("v_lshlrev_b32 v12, 6, v0")
A("s_mov_b64 exec, 15")
A(f"buffer_store_dwordx2 v[10:11], v12, {DBG}, 0 offen sc1")
A("s_mov_b64 exec, -1")
L("L_w5a")
A(f"v_mov_b32 v3, {L_FLAG}")
A("v_mov_b32 v10, 0")
A("ds_write_b96 v3, v[8:10]")
A("s_waitcnt lgkmcnt(0)")
A("s_barrier")
lt, lte = newlbl(), newlbl()
A(f"s_and_b32 s{S_T1}, s{S_IDX}, 3")
A(f"s_lshl_b32 s{S_T1}, s{S_T1}, 6")
A(f"s_mov_b32 s{S_TO}, {CFG['timeout']}")
A(f"s_sleep {CFG['tsleep0']}")
L(lt)
A(f"s_load_dwordx2 s[8:9], s[{P_DBG}:{P_DBG+1}], s{S_T1} glc")
A(f"s_sub_u32 s{S_TO}, s{S_TO}, 1")
A(f"s_cbranch_scc1 {lte}")
A("s_waitcnt lgkmcnt(0)")
A(f"s_cmp_lg_u32 s9, 0")
A(f"s_cbranch_scc1 {lte}")
A(f"s_sleep {CFG['tsleep']}")
A(f"s_branch {lt}")
L(lte)
A("s_waitcnt lgkmcnt(0)")
A("v_mov_b32 v10, s8")
A("v_mov_b32 v11, s9")
stamp(1)
A("v_and_b32 v12, 0x3ff, v10")
A("v_bfe_u32 v13, v10, 10, 10")
A("v_bfe_u32 v14, v10, 20, 10")
A("v_alignbit_b32 v15, v11, v10, 30")
A("v_and_b32 v15, 0x3ff, v15")
A(f"v_mov_b32 v3, {L_TAG}")
A("ds_write_b128 v3, v[12:15]")
lds_set(L_FLAG + 0, 9, 10)
A("s_waitcnt lgkmcnt(0)")
L("L_exit")
stamp_flush()
L("L_end")
A("s_endpgm")

out.append(f""".section .rodata,"a"
.p2align 6
.amdhsa_kernel {NAME}_kernel
  .amdhsa_next_free_vgpr 256
  .amdhsa_next_free_sgpr 102
  .amdhsa_accum_offset 256
  .amdhsa_group_segment_fixed_size 0
  .amdhsa_kernarg_size 104
  .amdhsa_user_sgpr_count 2
  .amdhsa_user_sgpr_kernarg_segment_ptr 1
  .amdhsa_system_sgpr_workgroup_id_x 1
.end_amdhsa_kernel""")

print("\n".join(out))
```

```python
import sys, struct, math

NAME = "sequential_preLN__sliding_block_cached__dense_activation_gelu__decode"

CFG = dict(nt=1, timeout=1 << 18, stamps=0, dual=1, tsleep0=10, tsleep=3, tsleepa=40, qsleep=0, mwin=0, touch=1, bmask=15)
for a in sys.argv[1:]:
    if "=" in a:
        k, v = a.split("=")
        CFG[k] = int(v)
NT = " nt" if CFG["nt"] else ""

WS_Q = 0x00000
RECP = 1152
WS_PNA = 0x10000
WS_PNB = 0x50000
WS_XQA = 0x90000
WS_XQB = 0x80000
WS_AP = 0xA8000
WS_Y = 0xB0000
YP = 4096 + 128
WS_TS = 0xF0000
WS_SIZE = 0x200000

L_QL = 0
L_XN = 0
L_SC = 2048
L_QR = 2048
L_HN = 4096
L_RED = 6144
L_STS = 8192
L_QS = 9216
L_H1 = 9216
L_ZERO = 9728
L_MX = 10240
L_LS = 10368
L_FLAG = 10496
L_TAG = 10512
L_FL2 = 10544
L_DUM = 10560
BIG = 11264
L_K = BIG
L_V = BIG + 65536
L_WQ = BIG
L_WO = BIG + 32768
L_WX = BIG + 32768
L_W2 = BIG + 65536
L_PS = BIG + 98304
PNP = 1040
LDS_BYTES = BIG + 131072

LOG2E = 1.4426950408889634
SCALE = 128 ** -0.5


def f2u(f):
    return struct.unpack("<I", struct.pack("<f", f))[0]


out = []


def A(s):
    out.append("    " + s)


def L(s):
    out.append(s + ":")


def C(s):
    out.append("    ; " + s)


def nop(n):
    while n > 0:
        k = min(n, 16)
        A(f"s_nop {k-1}")
        n -= k


_lbl = [0]


def newlbl(p="L"):
    _lbl[0] += 1
    return f"{p}_{_lbl[0]}"


P_X, P_K, P_V, P_WQ, P_WO, P_BX, P_W1, P_B1, P_W2, P_B2, P_OUT, P_DBG, P_WS = [36 + 2 * i for i in range(13)]
S_WAVE, S_X, S_A, S_B, S_SPL = 3, 4, 5, 6, 7
SRD_WS, SRD_A, SRD_B, SRD_C = 8, 12, 16, 20
S_T0, S_T1, S_T2, S_T3, S_T4, S_T5 = 24, 25, 26, 27, 28, 29
S_TO, S_ROLE, S_SUB, S_NT, S_PNA, S_PNB = 30, 31, 32, 33, 34, 35
S_Q = 36
S_TG = 100
WS = f"s[{SRD_WS}:{SRD_WS+3}]"
SA = f"s[{SRD_A}:{SRD_A+3}]"
SB = f"s[{SRD_B}:{SRD_B+3}]"
SC_ = f"s[{SRD_C}:{SRD_C+3}]"
V_ST = 1
V_MSK = 5


def srd(d, p, size):
    A(f"s_mov_b32 s{d}, s{p}")
    A(f"s_mov_b32 s{d+1}, s{p+1}")
    A(f"s_mov_b32 s{d+2}, {size:#x}")
    A(f"s_mov_b32 s{d+3}, 0x00020000")


def stamp(slot):
    if CFG["stamps"]:
        A("s_memrealtime s[0:1]")
        A("s_waitcnt lgkmcnt(0)")
        A(f"v_writelane_b32 v{V_ST}, s0, {slot}")


def stamp_flush():
    if not CFG["stamps"]:
        return
    A("s_mov_b64 exec, -1")
    A("s_lshl_b32 s0, s2, 10")
    A(f"s_lshl_b32 s1, s{S_WAVE}, 6")
    A("s_add_u32 s0, s0, s1")
    A(f"s_add_u32 s0, s0, {WS_TS}")
    A("v_lshlrev_b32 v2, 2, v0")
    A("s_mov_b64 exec, 0xffff")
    A(f"buffer_store_dword v{V_ST}, v2, {WS}, s0 offen")


def dpp_steps(op, regs, ctrls):
    for c in ctrls:
        pad = max(0, 2 - (len(regs) - 1))
        if pad:
            nop(pad)
        for r in regs:
            A(f"{op}_dpp v{r}, v{r}, v{r} {c} row_mask:0xf bank_mask:0xf")


ROW_ALL = ["quad_perm:[1,0,3,2]", "quad_perm:[2,3,0,1]", "row_half_mirror", "row_mirror"]
ROW_HI = ["row_ror:4", "row_ror:8"]


def swap_steps(op, regs, tmps, which=(16, 32)):
    for wd in which:
        sw = f"v_permlane{wd}_swap_b32"
        for r, t in zip(regs, tmps):
            A(f"v_mov_b32 v{t}, v{r}")
        pad = max(0, 2 - (len(regs) - 1))
        if pad:
            nop(pad)
        for r, t in zip(regs, tmps):
            A(f"{sw} v{r}, v{t}")
        for r, t in zip(regs, tmps):
            A(f"{op} v{r}, v{r}, v{t}")


def allreduce(op, regs, tmps):
    nop(2)
    dpp_steps(op, regs, ROW_ALL)
    swap_steps(op, regs, tmps)


def lds_wait(flag_off, vt, va, sleep=0):
    l, e = newlbl("Lw"), newlbl("Lwe")
    A(f"v_mov_b32 v{va}, {flag_off}")
    A(f"s_mov_b32 s{S_TO}, {CFG['timeout']}")
    L(l)
    if sleep:
        A(f"s_sleep {sleep}")
    A(f"ds_read_b32 v{vt}, v{va}")
    A(f"s_sub_u32 s{S_TO}, s{S_TO}, 1")
    A(f"s_cbranch_scc1 {e}")
    A("s_waitcnt lgkmcnt(0)")
    A(f"v_readfirstlane_b32 s{S_T0}, v{vt}")
    A(f"s_cmp_eq_u32 s{S_T0}, 0")
    A(f"s_cbranch_scc1 {l}")
    L(e)
    A("s_waitcnt lgkmcnt(0)")


def lds_set(flag_off, vt, va):
    A("s_waitcnt lgkmcnt(0)")
    A(f"v_mov_b32 v{va}, {flag_off}")
    A(f"v_mov_b32 v{vt}, 1")
    A(f"ds_write_b32 v{va}, v{vt}")


def lds_sync(cnt_off, n, vt, va):
    l, e = newlbl("Ls"), newlbl("Lse")
    A(f"v_mov_b32 v{va}, {cnt_off}")
    A(f"v_mov_b32 v{vt}, 1")
    A("s_mov_b64 exec, 1")
    A(f"ds_add_u32 v{va}, v{vt}")
    A("s_mov_b64 exec, -1")
    A(f"s_mov_b32 s{S_TO}, {CFG['timeout']}")
    L(l)
    A(f"ds_read_b32 v{vt}, v{va}")
    A(f"s_sub_u32 s{S_TO}, s{S_TO}, 1")
    A(f"s_cbranch_scc1 {e}")
    A("s_waitcnt lgkmcnt(0)")
    A(f"v_readfirstlane_b32 s{S_T0}, v{vt}")
    A(f"s_cmp_lt_u32 s{S_T0}, {n}")
    A(f"s_cbranch_scc1 {l}")
    L(e)
    A("s_waitcnt lgkmcnt(0)")


def tree3(op3, op2, regs, t):
    regs = list(regs)
    A(f"{op3} v{t}, v{regs[0]}, v{regs[1]}, v{regs[2]}")
    i = 3
    while i + 1 < len(regs):
        A(f"{op3} v{t}, v{t}, v{regs[i]}, v{regs[i+1]}")
        i += 2
    if i < len(regs):
        A(f"{op2} v{t}, v{t}, v{regs[i]}")


def tag(quad, tg):
    for j in range(4):
        A(f"v_add_u32 v{quad+j}, 0x200, v{quad+j}")
    for j in range(4):
        A(f"v_bfi_b32 v{quad+j}, v{V_MSK}, v{tg+j}, v{quad+j}")


def tpoll(loads, regs, t, tg):
    l, e = newlbl("Lt"), newlbl("Lte")
    regs = list(regs)
    A(f"s_mov_b32 s{S_TO}, {CFG['timeout']}")
    L(l)
    loads()
    A(f"s_sub_u32 s{S_TO}, s{S_TO}, 1")
    A(f"s_cbranch_scc1 {e}")
    A("s_waitcnt vmcnt(0)")
    for i, r in enumerate(regs):
        A(f"v_xor_b32 v{r}, v{r}, v{tg + (i & 3)}")
    tree3("v_or3_b32", "v_or_b32", regs, t)
    A(f"v_and_b32 v{t}, v{V_MSK}, v{t}")
    A(f"v_cmp_ne_u32 vcc, 0, v{t}")
    A("s_cmp_lg_u64 vcc, 0")
    A(f"s_cbranch_scc1 {l}")
    L(e)
    A("s_waitcnt vmcnt(0)")


def bf16r(dst, src):
    A(f"v_cvt_pk_bf16_f32 v{dst}, v{src}, v{src}")
    A(f"v_lshlrev_b32 v{dst}, 16, v{dst}")


def unpack(dst, src, n):
    for i in range(n):
        A(f"v_lshlrev_b32 v{dst+2*i}, 16, v{src+i}")
        A(f"v_and_b32 v{dst+2*i+1}, 0xffff0000, v{src+i}")


def pack(dst, src, n):
    for i in range(n):
        A(f"v_cvt_pk_bf16_f32 v{dst+i}, v{src+2*i}, v{src+2*i+1}")


def layernorm(xs, nb, tmp, outp):
    s = [tmp + i for i in range(nb)]
    q = [tmp + nb + i for i in range(nb)]
    t = [tmp + 2 * nb + i for i in range(nb)]
    mb = [tmp + 3 * nb + i for i in range(nb)]
    d = [tmp + 4 * nb + 8 * i for i in range(nb)]
    for i in range(nb):
        x = xs[i]
        A(f"v_add_f32 v{s[i]}, v{x}, v{x+1}")
        A(f"v_add_f32 v{t[i]}, v{x+2}, v{x+3}")
        A(f"v_add_f32 v{q[i]}, v{x+4}, v{x+5}")
        A(f"v_add_f32 v{mb[i]}, v{x+6}, v{x+7}")
        A(f"v_add_f32 v{s[i]}, v{s[i]}, v{t[i]}")
        A(f"v_add_f32 v{q[i]}, v{q[i]}, v{mb[i]}")
        A(f"v_add_f32 v{s[i]}, v{s[i]}, v{q[i]}")
    allreduce("v_add_f32", s, t)
    for i in range(nb):
        A(f"v_mul_f32 v{s[i]}, {f2u(1.0/512):#x}, v{s[i]}")
    for i in range(nb):
        x = xs[i]
        for j in range(8):
            A(f"v_sub_f32 v{d[i]+j}, v{x+j}, v{s[i]}")
        A(f"v_mul_f32 v{q[i]}, v{d[i]}, v{d[i]}")
        for j in range(1, 8):
            A(f"v_fmac_f32 v{q[i]}, v{d[i]+j}, v{d[i]+j}")
        bf16r(mb[i], s[i])
    nop(2)
    dpp_steps("v_add_f32", q, ROW_ALL)
    for i in range(nb):
        x = xs[i]
        for j in range(8):
            A(f"v_sub_f32 v{d[i]+j}, v{x+j}, v{mb[i]}")
        pack(outp[i], d[i], 4)
        unpack(d[i], outp[i], 4)
    swap_steps("v_add_f32", q, t)
    for i in range(nb):
        A(f"v_mul_f32 v{q[i]}, {f2u(1.0/512):#x}, v{q[i]}")
        bf16r(q[i], q[i])
        A(f"v_add_f32 v{q[i]}, {f2u(1e-5):#x}, v{q[i]}")
        bf16r(q[i], q[i])
        A(f"v_sqrt_f32 v{q[i]}, v{q[i]}")
        nop(1)
        bf16r(q[i], q[i])
        A(f"v_rcp_f32 v{q[i]}, v{q[i]}")
    nop(1)
    for i in range(nb):
        for j in range(8):
            A(f"v_mul_f32 v{d[i]+j}, v{d[i]+j}, v{q[i]}")
        pack(outp[i], d[i], 4)


def mfma(d, a, b, c=None):
    cc = f"v[{c}:{c+3}]" if c is not None else "0"
    A(f"v_mfma_f32_16x16x32_bf16 v[{d}:{d+3}], v[{a}:{a+3}], v[{b}:{b+3}], {cc}")


MASK_N2 = 0x0003000300030003
MASK_N4 = 0x000f000f000f000f


def set_exec(mask):
    A(f"s_mov_b32 exec_lo, {mask & 0xffffffff:#x}")
    A(f"s_mov_b32 exec_hi, {mask >> 32:#x}")


def tag_poll(sleep0, sel):
    lt, lte = newlbl(), newlbl()
    A(f"s_and_b32 s{S_T1}, s{sel}, 3")
    A(f"s_lshl_b32 s{S_T1}, s{S_T1}, 6")
    A(f"s_mov_b32 s{S_TO}, {CFG['timeout']}")
    if sleep0:
        A(f"s_sleep {sleep0}")
    L(lt)
    A(f"s_load_dwordx2 s[{S_TG}:{S_TG+1}], s[{P_DBG}:{P_DBG+1}], s{S_T1} glc")
    A(f"s_sub_u32 s{S_TO}, s{S_TO}, 1")
    A(f"s_cbranch_scc1 {lte}")
    A("s_waitcnt lgkmcnt(0)")
    A(f"s_cmp_lg_u32 s{S_TG+1}, 0")
    A(f"s_cbranch_scc1 {lte}")
    A(f"s_sleep {CFG['tsleep']}")
    A(f"s_branch {lt}")
    L(lte)
    A("s_waitcnt lgkmcnt(0)")
    A(f"v_mov_b32 v100, s{S_TG}")
    A(f"v_mov_b32 v101, s{S_TG+1}")
    A("v_and_b32 v104, 0x3ff, v100")
    A("v_bfe_u32 v105, v100, 10, 10")
    A("v_bfe_u32 v106, v100, 20, 10")
    A("v_alignbit_b32 v107, v101, v100, 30")
    A("v_and_b32 v107, 0x3ff, v107")
    A(f"v_mov_b32 v102, {L_TAG}")
    A("ds_write_b64 v102, v[100:101]")
    A("ds_write_b128 v102, v[104:107] offset:16")
    lds_set(L_FLAG, 100, 101)


XNT = ' nt' if CFG.get('xnt', 0) else ''
out.append(f"""; fused pre-LN attention(decode, sliding window) + gelu MLP, persistent kernel
; @launch grid=(256,1,1) block=(640,1,1) lds={LDS_BYTES}
.amdgcn_target "amdgcn-amd-amdhsa--gfx950"
.text
.globl {NAME}_kernel
.p2align 8
.type {NAME}_kernel,@function
{NAME}_kernel:""")

A("s_cmp_ge_u32 s2, 256")
A("s_cbranch_scc1 L_end")
A("s_load_dwordx16 s[36:51], s[0:1], 0")
A("s_load_dwordx8 s[52:59], s[0:1], 64")
A("s_load_dwordx2 s[60:61], s[0:1], 96")
A("v_lshrrev_b32 v1, 6, v0")
A("v_and_b32 v0, 63, v0")
A(f"s_and_b32 s{S_X}, s2, 7")
A(f"v_readfirstlane_b32 s{S_WAVE}, v1")
A(f"s_lshr_b32 s{S_A}, s2, 3")
A("v_lshlrev_b32 v2, 4, v0")
A("v_lshrrev_b32 v4, 4, v0")
A(f"v_mov_b32 v{V_MSK}, 0x3ff")
A("v_and_b32 v6, 15, v0")
A("v_lshrrev_b32 v8, 3, v0")
A("v_bfe_u32 v9, v0, 1, 2")
A("v_and_b32 v10, 1, v0")
A("v_lshlrev_b32 v11, 5, v8")
A("v_lshl_add_u32 v11, v10, 4, v11")
if CFG["stamps"]:
    A(f"v_mov_b32 v{V_ST}, 0")
A(f"s_cmp_lg_u32 s{S_WAVE}, 9")
A("s_cbranch_scc1 L_nz")
C("wave 9 zeroes the LDS flags")
for j in range(4):
    A(f"v_mov_b32 v{12+j}, 0")
A(f"v_mov_b32 v3, {L_FLAG}")
A("ds_write_b128 v3, v[12:15]")
A(f"ds_write_b128 v3, v[12:15] offset:{L_FL2 - L_FLAG}")
L("L_nz")
A("s_waitcnt lgkmcnt(0)")
srd(SRD_WS, P_WS, WS_SIZE)
stamp(0)
A(f"s_cmp_lt_u32 s{S_A}, 16")
A("s_cbranch_scc1 L_GV")

V_K = 16
V_Q = 48
V_S = 64
V_SM = 72
V_PNA = 80
V_T = 84
V_TG = 124
V_G = 128

A(f"s_sub_u32 s{S_A}, s{S_A}, 16")
A(f"s_lshr_b32 s{S_B}, s{S_A}, 3")
C("PN record offsets")
A(f"s_lshl_b32 s{S_T0}, s{S_X}, 4")
A(f"s_add_u32 s{S_T0}, s{S_T0}, s{S_A}")
A(f"s_mul_i32 s{S_T0}, s{S_T0}, {RECP}")
A(f"s_add_u32 s{S_PNA}, s{S_T0}, {WS_PNA}")
A(f"s_add_u32 s{S_PNB}, s{S_T0}, {WS_PNB}")
srd(SRD_C, P_OUT, 2048)
A(f"s_cmp_ge_u32 s{S_WAVE}, 8")
A("s_cbranch_scc1 L_ldr")
A(f"s_lshl_b32 s{S_T1}, s{S_WAVE}, 8")
A(f"s_add_u32 s{S_PNA}, s{S_PNA}, s{S_T1}")
A(f"s_add_u32 s{S_PNB}, s{S_PNB}, s{S_T1}")
A(f"v_lshlrev_b32 v{V_PNA}, 6, v6")
A(f"v_lshl_add_u32 v{V_PNA}, v4, 4, v{V_PNA}")
C("G role: even a -> gi = x*8 + a/2 (wave 0)")
A(f"s_lshl_b32 s{S_T0}, s{S_X}, 3")
A(f"s_lshr_b32 s{S_T1}, s{S_A}, 1")
A(f"s_add_u32 s{S_SUB}, s{S_T0}, s{S_T1}")
A(f"s_and_b32 s{S_ROLE}, s{S_A}, 1")
A(f"s_or_b32 s{S_ROLE}, s{S_ROLE}, s{S_WAVE}")
A(f"s_cmp_lg_u32 s{S_ROLE}, 0")
A("s_cbranch_scc1 L_nogsm")
srd(SRD_B, P_X, 2048)
A(f"v_and_b32 v{V_T}, 3, v0")
A(f"v_lshlrev_b32 v{V_T}, 3, v{V_T}")
A(f"s_lshl_b32 s{S_T0}, s{S_SUB}, 5")
A(f"buffer_load_dwordx2 v[{V_SM}:{V_SM+1}], v{V_T}, {SB}, s{S_T0} offen{XNT}")
srd(SRD_B, P_B2, 1024)
A(f"s_and_b32 s{S_T0}, s{S_T0}, 1023")
A(f"buffer_load_dwordx2 v[{V_SM+2}:{V_SM+3}], v{V_T}, {SB}, s{S_T0} offen{XNT}")
L("L_nogsm")
A("s_barrier")
C("pre-touch this wave's q lines so that they are resident at the memory side")
A(f"s_lshl_b32 s{S_T1}, s{S_X}, 12")
A(f"s_lshl_b32 s{S_T2}, s{S_B}, 11")
A(f"s_add_u32 s{S_T1}, s{S_T1}, s{S_T2}")
A(f"s_lshl_b32 s{S_T2}, s{S_WAVE}, 8")
A(f"s_add_u32 s{S_T1}, s{S_T1}, s{S_T2}")
A(f"s_add_u32 s{S_T2}, s{SRD_WS}, s{S_T1}")
A(f"s_addc_u32 s{S_T3}, s{SRD_WS+1}, 0")
if CFG["touch"]:
    for i in range(4):
        A(f"s_load_dword s{64+i}, s[{S_T2}:{S_T3}], {WS_Q + 64*i} glc")
C("K fragment addresses: K + w*8192 + m*256 + ((4k+g)^m)*16")
KA = V_T + 36
A(f"s_lshl_b32 s{S_T0}, s{S_WAVE}, 13")
A(f"s_add_u32 s{S_T0}, s{S_T0}, {L_K}")
for kp in range(4):
    A(f"v_add_u32 v{KA+kp}, {4*kp}, v4")
    A(f"v_xor_b32 v{KA+kp}, v{KA+kp}, v6")
    A(f"v_lshlrev_b32 v{KA+kp}, 4, v{KA+kp}")
    A(f"v_lshl_add_u32 v{KA+kp}, v6, 8, v{KA+kp}")
    A(f"v_add_u32 v{KA+kp}, s{S_T0}, v{KA+kp}")
A(f"s_cmp_lg_u32 s{S_WAVE}, 7")
A("s_cbranch_scc1 L_ntp")
tag_poll(CFG["tsleepa"], S_A)
L("L_ntp")
lds_wait(L_FLAG, V_T + 2, V_T + 3)
A(f"v_mov_b32 v{V_T}, 0")
A(f"ds_read_b64 v[{V_T+2}:{V_T+3}], v{V_T} offset:{L_TAG}")
A(f"ds_read_b128 v[{V_TG}:{V_TG+3}], v{V_T} offset:{L_TAG + 16}")
A("s_waitcnt lgkmcnt(0)")
A(f"v_readfirstlane_b32 s{S_TG}, v{V_T+2}")
A(f"v_readfirstlane_b32 s{S_TG+1}, v{V_T+3}")
stamp(1)
S2 = V_T + 4
PK = V_T + 12
MM = V_T + 16
TT = V_T + 20
EX = V_T + 24
QA = V_T + 1
A(f"s_lshl_b32 s{S_T0}, s{S_WAVE}, 7")
A(f"v_lshl_add_u32 v{QA}, v0, 2, s{S_T0}")
A(f"v_and_b32 v{V_T+2}, 3, v0")
A(f"v_lshlrev_b32 v{V_T+3}, 8, v{V_T+2}")
A(f"v_lshl_add_u32 v{V_T+3}, v4, 4, v{V_T+3}")
A(f"s_lshl_b32 s{S_T0}, s{S_WAVE}, 2")
A(f"v_lshl_add_u32 v{TT+2}, v0, 5, s{S_T0}")
A(f"v_lshlrev_b32 v{TT+3}, 5, v{V_T+2}")
C("---- scalar gather of q: this wave's 256 bytes (16 granules {d0,d1,T0,T1})")
lq, lqe = newlbl("Lq"), newlbl("Lqe")
stamp(12)
A(f"s_mov_b32 s{S_TO}, {CFG['timeout']}")
L(lq)
for i in range(4):
    A(f"s_load_dwordx16 s[{S_Q+16*i}:{S_Q+16*i+15}], s[{S_T2}:{S_T3}], {WS_Q + 64*i} glc")
A(f"s_sub_u32 s{S_TO}, s{S_TO}, 1")
A(f"s_cbranch_scc1 {lqe}")
A("s_waitcnt lgkmcnt(0)")
A(f"s_and_b64 s[{S_T4}:{S_T5}], s[{S_Q+2}:{S_Q+3}], s[{S_Q+6}:{S_Q+7}]")
A(f"s_or_b64 s[{S_T0}:{S_T1}], s[{S_Q+2}:{S_Q+3}], s[{S_Q+6}:{S_Q+7}]")
for gq in range(2, 16):
    A(f"s_and_b64 s[{S_T4}:{S_T5}], s[{S_T4}:{S_T5}], s[{S_Q+4*gq+2}:{S_Q+4*gq+3}]")
    A(f"s_or_b64 s[{S_T0}:{S_T1}], s[{S_T0}:{S_T1}], s[{S_Q+4*gq+2}:{S_Q+4*gq+3}]")
A(f"s_xor_b64 s[{S_T4}:{S_T5}], s[{S_T4}:{S_T5}], s[{S_TG}:{S_TG+1}]")
A(f"s_xor_b64 s[{S_T0}:{S_T1}], s[{S_T0}:{S_T1}], s[{S_TG}:{S_TG+1}]")
A(f"s_or_b64 s[{S_T4}:{S_T5}], s[{S_T4}:{S_T5}], s[{S_T0}:{S_T1}]")
A(f"s_cbranch_scc1 {lq}")
L(lqe)
A("s_waitcnt lgkmcnt(0)")
stamp(8)
if CFG["stamps"]:
    A(f"s_sub_u32 s0, {CFG['timeout']}, s{S_TO}")
    A(f"v_writelane_b32 v{V_ST}, s0, 9")
for gq in range(16):
    A(f"v_writelane_b32 v{V_T}, s{S_Q+4*gq}, {2*gq}")
    A(f"v_writelane_b32 v{V_T}, s{S_Q+4*gq+1}, {2*gq+1}")
A("s_mov_b32 exec_hi, 0")
A(f"ds_write_b32 v{QA}, v{V_T} offset:{L_QL}")
A("s_mov_b32 exec_hi, -1")
C("K fragments as soon as K landed")
lds_wait(L_FLAG + 4, V_T, TT, sleep=1)
for kp in range(4):
    for tt in range(2):
        r = V_K + (tt * 4 + kp) * 4
        A(f"ds_read_b128 v[{r}:{r+3}], v{KA+kp} offset:{tt*4096}")
C("poll the q operand itself (LDS sentinel)")
l1, l1e = newlbl("Lqo"), newlbl("Lqoe")
A(f"s_mov_b32 s{S_TO}, {CFG['timeout']}")
L(l1)
for kp in range(4):
    A(f"ds_read_b128 v[{V_Q+4*kp}:{V_Q+4*kp+3}], v{V_T+3} offset:{L_QL + kp*64}")
A(f"s_sub_u32 s{S_TO}, s{S_TO}, 1")
A(f"s_cbranch_scc1 {l1e}")
A("s_waitcnt lgkmcnt(0)")
tree3("v_max3_u32", "v_max_u32", range(V_Q, V_Q + 16), TT)
A(f"v_cmp_eq_u32 vcc, -1, v{TT}")
A("s_cmp_lg_u64 vcc, 0")
A(f"s_cbranch_scc1 {l1}")
L(l1e)
A("s_waitcnt lgkmcnt(0)")
for kp in range(4):
    for tt in range(2):
        mfma(V_S + 4 * tt, V_K + (tt * 4 + kp) * 4, V_Q + 4 * kp, None if kp == 0 else V_S + 4 * tt)
stamp(2)
A(f"s_mov_b32 s{S_T0}, {f2u(SCALE):#x}")
A(f"s_mov_b32 s{S_T1}, {f2u(LOG2E):#x}")
nop(6)
pack(PK, V_S, 4)
unpack(S2, PK, 4)
for j in range(8):
    A(f"v_mul_f32 v{S2+j}, s{S_T0}, v{S2+j}")
pack(PK, S2, 4)
unpack(S2, PK, 4)
A(f"v_max3_f32 v{MM}, v{S2}, v{S2+1}, v{S2+2}")
A(f"v_max3_f32 v{MM}, v{MM}, v{S2+3}, v{S2+4}")
A(f"v_max3_f32 v{MM}, v{MM}, v{S2+5}, v{S2+6}")
A(f"v_max_f32 v{MM}, v{MM}, v{S2+7}")
swap_steps("v_max_f32", [MM], [TT])
A("s_mov_b64 exec, 15")
A(f"ds_write_b32 v{TT+2}, v{MM} offset:{L_MX}")
A("s_mov_b64 exec, -1")
for j in range(8):
    A(f"v_mul_f32 v{S2+j}, s{S_T1}, v{S2+j}")
l2, l2e = newlbl("Lmx"), newlbl("Lmxe")
A(f"s_mov_b32 s{S_TO}, {CFG['timeout']}")
L(l2)
A(f"ds_read_b128 v[{EX}:{EX+3}], v{TT+3} offset:{L_MX}")
A(f"ds_read_b128 v[{EX+4}:{EX+7}], v{TT+3} offset:{L_MX + 16}")
A(f"s_sub_u32 s{S_TO}, s{S_TO}, 1")
A(f"s_cbranch_scc1 {l2e}")
A("s_waitcnt lgkmcnt(0)")
tree3("v_max3_u32", "v_max_u32", range(EX, EX + 8), TT)
tree3("v_max3_f32", "v_max_f32", range(EX, EX + 8), MM)
A(f"v_cmp_eq_u32 vcc, -1, v{TT}")
A("s_cmp_lg_u64 vcc, 0")
A(f"s_cbranch_scc1 {l2}")
L(l2e)
A("s_waitcnt lgkmcnt(0)")
A(f"v_mul_f32 v{MM}, s{S_T1}, v{MM}")
for j in range(8):
    A(f"v_sub_f32 v{EX+j}, v{S2+j}, v{MM}")
for j in range(8):
    A(f"v_exp_f32 v{EX+j}, v{EX+j}")
A(f"s_lshl_b32 s{S_T0}, s{S_WAVE}, 10")
A(f"v_add_u32 v{TT}, s{S_T0}, v2")
pack(PK, EX, 4)
A(f"ds_write_b128 v{TT}, v[{PK}:{PK+3}] offset:{L_SC}")
A(f"v_add_f32 v{MM+1}, v{EX}, v{EX+1}")
A(f"v_add_f32 v{TT}, v{EX+2}, v{EX+3}")
A(f"v_add_f32 v{TT+1}, v{EX+4}, v{EX+5}")
A(f"v_add_f32 v{EX}, v{EX+6}, v{EX+7}")
A(f"v_add_f32 v{MM+1}, v{MM+1}, v{TT}")
A(f"v_add_f32 v{EX}, v{EX}, v{TT+1}")
A(f"v_add_f32 v{MM+1}, v{MM+1}, v{EX}")
swap_steps("v_add_f32", [MM + 1], [TT])
A("s_mov_b64 exec, 15")
A(f"ds_write_b32 v{TT+2}, v{MM+1} offset:{L_LS}")
A("s_mov_b64 exec, -1")
stamp(3)
VA0, VA1, VB0, VB1 = V_T + 32, V_T + 33, V_T + 34, V_T + 35


def vw2_addr():
    A(f"v_lshlrev_b32 v{VA0}, 10, v4")
    A(f"v_lshl_add_u32 v{VA0}, v6, 3, v{VA0}")
    A(f"v_and_b32 v{VA1}, 1, v4")
    A(f"v_lshl_add_u32 v{VA0}, v{VA1}, 7, v{VA0}")
    A(f"v_xor_b32 v{VA1}, 128, v{VA0}")


vw2_addr()
A(f"s_lshl_b32 s{S_T0}, s{S_WAVE}, 8")
A(f"s_add_u32 s{S_T0}, s{S_T0}, {L_V}")
A(f"v_add_u32 v{VB0}, s{S_T0}, v{VA0}")
A(f"v_add_u32 v{VB1}, s{S_T0}, v{VA1}")
A("s_waitcnt lgkmcnt(0)")
A("s_barrier")
stamp(5)
A(f"s_cmp_gt_u32 s{S_WAVE}, 4")
A("s_cbranch_scc1 L_exit")
A(f"s_cmp_lt_u32 s{S_WAVE}, 4")
A("s_cbranch_scc1 L_pv")
C("---- wave 4: publish stats {m,l,T0,T1} per head (lanes 0..3)")
A(f"ds_read_b128 v[{EX}:{EX+3}], v{TT+3} offset:{L_LS}")
A(f"ds_read_b128 v[{EX+4}:{EX+7}], v{TT+3} offset:{L_LS + 16}")
A(f"v_mov_b32 v{MM+2}, s{S_TG}")
A(f"v_mov_b32 v{MM+3}, s{S_TG+1}")
A("s_waitcnt lgkmcnt(0)")
for j in range(4):
    A(f"v_add_f32 v{EX+j}, v{EX+j}, v{EX+4+j}")
A(f"v_add_f32 v{EX}, v{EX}, v{EX+1}")
A(f"v_add_f32 v{EX+2}, v{EX+2}, v{EX+3}")
A(f"v_add_f32 v{MM+1}, v{EX}, v{EX+2}")
A("s_mov_b64 exec, 15")
if CFG["dual"]:
    A(f"buffer_store_dwordx4 v[{MM}:{MM+3}], v2, {WS}, s{S_PNA} offen")
A(f"buffer_store_dwordx4 v[{MM}:{MM+3}], v2, {WS}, s{S_PNB} offen sc1")
A("s_branch L_exit")
L("L_pv")
C("---- PV (waves 0..3, 32 dims each, 8 k-steps)")
PB = V_G
VF = V_K


def pv_reads(t):
    A(f"ds_read_b128 v[{PB+4*t}:{PB+4*t+3}], v2 offset:{L_SC + t*1024}")
    for c2 in range(2):
        for h in range(2):
            r = VF + ((t % 6) * 2 + c2) * 4 + 2 * h
            A(f"ds_read_b64_tr_b16 v[{r}:{r+1}], v{VB0 + c2} offset:{t*8192 + h*4096}")


for t in range(3):
    pv_reads(t)
for t in range(8):
    A(f"s_waitcnt lgkmcnt({min(2, 7 - t)*5})")
    for c2 in range(2):
        mfma(V_S + 4 * c2, VF + ((t % 6) * 2 + c2) * 4, PB + 4 * t, None if t == 0 else V_S + 4 * c2)
    if t + 3 < 8:
        pv_reads(t + 3)
nop(7)
pack(PK, V_S, 4)
set_exec(MASK_N4)
if CFG["dual"]:
    A(f"buffer_store_dwordx4 v[{PK}:{PK+3}], v{V_PNA}, {WS}, s{S_PNA} offen")
A(f"buffer_store_dwordx4 v[{PK}:{PK+3}], v{V_PNA}, {WS}, s{S_PNB} offen sc1")
A("s_mov_b64 exec, -1")
stamp(6)
A(f"s_cmp_lg_u32 s{S_ROLE}, 0")
A("s_cbranch_scc1 L_exit")

C("==== G: final reduce of 16 outputs (16gi..16gi+15)")
A(f"s_lshl_b32 s{S_T2}, s{S_SUB}, 6")
A(f"s_add_u32 s{S_T3}, s{S_T2}, {WS_AP}")
A(f"s_add_u32 s{S_T2}, s{S_T2}, {WS_Y}")
A(f"v_lshrrev_b32 v{TT+2}, 2, v0")
A(f"v_and_b32 v{TT+3}, 3, v0")
A(f"v_lshlrev_b32 v{TT}, 12, v{TT+2}")
A(f"v_lshl_add_u32 v{TT}, v{TT+3}, 4, v{TT}")
A(f"s_movk_i32 s{S_T0}, {YP}")
A(f"v_mul_lo_u32 v{TT+2}, v{TT+2}, s{S_T0}")
A(f"v_lshl_add_u32 v{TT+2}, v{TT+3}, 4, v{TT+2}")
for i in range(1, 4):
    A(f"s_add_u32 s{40+i}, s{S_T2}, {16*i*YP}")
GA = V_G
A("s_mov_b32 exec_hi, 0")


def g1_loads():
    A(f"buffer_load_dwordx4 v[{GA}:{GA+3}], v{TT}, {WS}, s{S_T3} offen sc1")


tpoll(g1_loads, range(GA, GA + 4), V_T, V_TG)
A("s_mov_b64 exec, -1")
stamp(7)
nop(1)
dpp_steps("v_add_f32", [GA + j for j in range(4)], ROW_HI)
swap_steps("v_add_f32", [GA + j for j in range(4)], [GA + 4 + j for j in range(4)], which=(16,))
GH = V_G + 8
GP = V_G + 16
GB = V_G + 20
pack(GP, GA, 2)
unpack(GA, GP, 2)
unpack(GH, V_SM, 2)
for j in range(4):
    A(f"v_add_f32 v{GH+j}, v{GH+j}, v{GA+j}")
pack(GP, GH, 2)
unpack(GH, GP, 2)
unpack(GB, V_SM + 2, 2)
GY = V_K


def g2_loads():
    for j in range(4):
        A(f"v_mov_b32 v{GY+12+j}, v{V_TG+j}")
    A(f"buffer_load_dwordx4 v[{GY}:{GY+3}], v{TT+2}, {WS}, s{S_T2} offen sc1")
    A(f"buffer_load_dwordx4 v[{GY+4}:{GY+7}], v{TT+2}, {WS}, s41 offen sc1")
    A(f"buffer_load_dwordx4 v[{GY+8}:{GY+11}], v{TT+2}, {WS}, s42 offen sc1")
    A("s_mov_b32 exec_hi, 0")
    A(f"buffer_load_dwordx4 v[{GY+12}:{GY+15}], v{TT+2}, {WS}, s43 offen sc1")
    A("s_mov_b32 exec_hi, -1")


tpoll(g2_loads, range(GY, GY + 16), V_T, V_TG)
stamp(10)
for j in range(4):
    A(f"v_add_f32 v{GY+j}, v{GY+j}, v{GY+4+j}")
    A(f"v_add_f32 v{GY+8+j}, v{GY+8+j}, v{GY+12+j}")
for j in range(4):
    A(f"v_add_f32 v{GY+j}, v{GY+j}, v{GY+8+j}")
dpp_steps("v_add_f32", [GY + j for j in range(4)], ROW_HI)
swap_steps("v_add_f32", [GY + j for j in range(4)], [GY + 4 + j for j in range(4)])
pack(GP, GY, 2)
unpack(GY, GP, 2)
for j in range(4):
    A(f"v_add_f32 v{GY+j}, v{GY+j}, v{GB+j}")
pack(GP, GY, 2)
unpack(GY, GP, 2)
for j in range(4):
    A(f"v_add_f32 v{GY+j}, v{GY+j}, v{GH+j}")
pack(GP, GY, 2)
A(f"s_lshl_b32 s{S_T2}, s{S_SUB}, 5")
A("v_lshlrev_b32 v3, 3, v0")
A("s_mov_b64 exec, 15")
A(f"buffer_store_dwordx2 v[{GP}:{GP+1}], v3, {SC_}, s{S_T2} offen")
stamp(11)
A("s_branch L_exit")

L("L_ldr")
C("kv byte offset: ((b*8+x)*8192 + 6144 + 256 s)*256")
A(f"s_lshl_b32 s{S_T0}, s{S_B}, 3")
A(f"s_add_u32 s{S_T0}, s{S_T0}, s{S_X}")
A(f"s_lshl_b32 s{S_T0}, s{S_T0}, 5")
A(f"s_and_b32 s{S_T1}, s{S_A}, 7")
A(f"s_add_u32 s{S_T0}, s{S_T0}, s{S_T1}")
A(f"s_add_u32 s{S_T0}, s{S_T0}, 24")
A(f"s_lshl_b32 s{S_T3}, s{S_T0}, 16")
A(f"s_mov_b32 s{S_T2}, 0")
A(f"s_cmp_eq_u32 s{S_WAVE}, 9")
A("s_cbranch_scc1 L_ldv")
srd(SRD_A, P_K, 0x2000000)
for j in range(4):
    A(f"v_mov_b32 v{16+j}, -1")
A(f"ds_write_b128 v2, v[16:19] offset:{L_QL}")
A("s_mov_b64 exec, 0xff")
A(f"ds_write_b128 v2, v[16:19] offset:{L_MX}")
A("s_mov_b64 exec, -1")
C("K DMA lane offsets: r4=l>>4, p=l&15: r4*256 + ((p ^ (4i+r4))*16)")
for i in range(4):
    A(f"v_add_u32 v{12+i}, {4*i}, v4")
    A(f"v_xor_b32 v{12+i}, v{12+i}, v6")
    A(f"v_lshlrev_b32 v{12+i}, 4, v{12+i}")
    A(f"v_lshl_add_u32 v{12+i}, v4, 8, v{12+i}")
A(f"s_mov_b32 s{S_T1}, {L_K}")
L("L_ldk1")
A(f"s_mov_b32 m0, s{S_T1}")
A(f"s_add_u32 s{S_T1}, s{S_T1}, 4096")
for i in range(4):
    A(f"buffer_load_dwordx4 v{12+i}, {SA}, s{S_T3} offen offset:{i*1024}{NT} lds")
A(f"s_add_u32 s{S_T3}, s{S_T3}, 4096")
A(f"s_add_u32 s{S_T2}, s{S_T2}, 1")
A(f"s_cmp_eq_u32 s{S_T2}, 1")
A("s_cbranch_scc0 L_ldk2")
A("s_waitcnt lgkmcnt(0)")
A("s_barrier")
L("L_ldk2")
A(f"s_cmp_lt_u32 s{S_T2}, 16")
A("s_cbranch_scc1 L_ldk1")
lds_set(L_FL2, 16, 17)
stamp(1)
A("s_waitcnt vmcnt(0)")
stamp(4)
lds_set(L_FLAG + 4, 16, 17)
A("s_waitcnt lgkmcnt(0)")
A("s_branch L_exit")
L("L_ldv")
srd(SRD_B, P_V, 0x2000000)
A("v_lshl_add_u32 v12, v9, 8, v11")
A("v_xor_b32 v13, 32, v12")
for j in range(4):
    A(f"v_mov_b32 v{16+j}, -1")
A("s_barrier")
A(f"buffer_store_dwordx4 v[16:19], v2, {WS}, s{S_PNA} offen sc1")
A(f"buffer_store_dwordx4 v[16:19], v2, {WS}, s{S_PNB} offen sc1")
lds_wait(L_FL2, 20, 21)
A(f"s_mov_b32 s{S_T1}, {L_V}")
L("L_ldv1")
A(f"s_mov_b32 m0, s{S_T1}")
A(f"s_add_u32 s{S_T1}, s{S_T1}, 4096")
for be in range(4):
    A(f"buffer_load_dwordx4 v{12 + (be & 1)}, {SB}, s{S_T3} offen offset:{be*1024}{NT} lds")
A(f"s_add_u32 s{S_T3}, s{S_T3}, 4096")
A(f"s_add_u32 s{S_T2}, s{S_T2}, 1")
A(f"s_cmp_lt_u32 s{S_T2}, 16")
A("s_cbranch_scc1 L_ldv1")
stamp(1)
A("s_waitcnt vmcnt(0)")
stamp(4)
A("s_barrier")
A("s_branch L_exit")

L("L_GV")
A("s_or_b32 s24, s2, s3")
A("s_cmp_lg_u32 s24, 0")
A("s_cbranch_scc1 L_gv0")
C("workgroup 0 wave 0 publishes the launch tag (4 replicas)")
srd(SRD_C, P_DBG, 256)
A("s_memrealtime s[24:25]")
A("s_waitcnt lgkmcnt(0)")
A("s_or_b32 s25, s25, 0x80000000")
A("v_mov_b32 v14, s24")
A("v_mov_b32 v15, s25")
A("v_lshlrev_b32 v12, 6, v0")
A("s_mov_b64 exec, 15")
A(f"buffer_store_dwordx2 v[14:15], v12, {SC_}, 0 offen sc1")
A("s_mov_b64 exec, -1")
L("L_gv0")
A(f"s_mul_i32 s{S_SUB}, s{S_X}, 7")
A(f"s_add_u32 s{S_SUB}, s{S_SUB}, s{S_A}")
A(f"s_sub_u32 s{S_SUB}, s{S_SUB}, 8")
A(f"s_mov_b32 s{S_ROLE}, 2")
A(f"s_cmp_lt_u32 s{S_A}, 8")
A(f"s_cselect_b32 s{S_ROLE}, 1, s{S_ROLE}")
A(f"s_cselect_b32 s{S_SUB}, s{S_A}, s{S_SUB}")
A(f"s_cmp_eq_u32 s{S_A}, 15")
A(f"s_cselect_b32 s{S_ROLE}, 0, s{S_ROLE}")
A(f"s_cmp_ge_u32 s{S_WAVE}, 8")
A("s_cbranch_scc1 L_gld")
A(f"s_cmp_eq_u32 s{S_WAVE}, 6")
A("s_cbranch_scc1 L_qc")
A("s_barrier")
A(f"s_cmp_lg_u32 s{S_WAVE}, 7")
A("s_cbranch_scc1 L_gv2")
tag_poll(CFG["tsleep0"], S_A)
stamp(5)
A("s_branch L_qm2")
L("L_gv2")
A("s_branch L_qm2")

C("---- GEMV loaders (waves 8,9)")
L("L_gld")
A(f"s_and_b32 s{S_T5}, s{S_WAVE}, 1")
C("WX style lane offsets: ct=l>>5, p=(l>>1)&15 (row), half")
A("v_bfe_u32 v3, v0, 1, 4")
A("v_lshrrev_b32 v12, 5, v0")
A("v_lshlrev_b32 v12, 5, v12")
A("v_lshl_add_u32 v12, v10, 4, v12")
A("s_barrier")
A(f"s_cmp_eq_u32 s{S_ROLE}, 0")
A("s_cbranch_scc1 L_exit")
A(f"s_cmp_eq_u32 s{S_ROLE}, 2")
A("s_cbranch_scc1 L_gld2")
C("wo tile: 512 rows x 128 B; loader i: rows 256i.. (32 instrs of 8 rows)")
srd(SRD_C, P_WO, 0x400000)
A("v_bfe_u32 v3, v0, 1, 3")
A("v_lshlrev_b32 v3, 10, v3")
A("v_lshl_add_u32 v3, v4, 5, v3")
A("v_lshl_add_u32 v3, v10, 4, v3")
A(f"s_lshl_b32 s{S_T3}, s{S_X}, 19")
A(f"s_lshl_b32 s{S_T1}, s{S_T5}, 18")
A(f"s_add_u32 s{S_T3}, s{S_T3}, s{S_T1}")
A(f"s_lshl_b32 s{S_T1}, s{S_SUB}, 7")
A(f"s_add_u32 s{S_T3}, s{S_T3}, s{S_T1}")
A(f"s_lshl_b32 s{S_T4}, s{S_T5}, 15")
A(f"s_add_u32 s{S_T4}, s{S_T4}, {L_WO}")
lds_wait(L_FLAG + 8, 16, 17, sleep=2)
A(f"s_mov_b32 s{S_T2}, 0")
L("L_gld1")
for i in range(4):
    A(f"s_mov_b32 m0, s{S_T4}")
    A(f"s_add_u32 s{S_T4}, s{S_T4}, 1024")
    A(f"buffer_load_dwordx4 v3, {SC_}, s{S_T3} offen{NT} lds")
    A(f"s_add_u32 s{S_T3}, s{S_T3}, 8192")
A(f"s_add_u32 s{S_T2}, s{S_T2}, 1")
A(f"s_cmp_lt_u32 s{S_T2}, 8")
A("s_cbranch_scc1 L_gld1")
A("s_branch L_gld5")
L("L_gld2")
A(f"s_cmp_eq_u32 s{S_T5}, 1")
A("s_cbranch_scc1 L_gld3")
srd(SRD_C, P_W1, 512 * 3584)
A(f"s_lshl_b32 s{S_T3}, s{S_SUB}, 6")
A(f"s_movk_i32 s{S_T1}, 3584")
A(f"v_mul_lo_u32 v13, v3, s{S_T1}")
A("v_add_u32 v13, v13, v12")
lds_wait(L_FLAG + 8, 16, 17, sleep=2)
A(f"s_mov_b32 s{S_T1}, {L_WX}")
A(f"s_mov_b32 s{S_T2}, 0")
L("L_gld4")
for i in range(4):
    A(f"s_mov_b32 m0, s{S_T1}")
    A(f"s_add_u32 s{S_T1}, s{S_T1}, 1024")
    A(f"buffer_load_dwordx4 v13, {SC_}, s{S_T3} offen{NT} lds")
    A(f"s_add_u32 s{S_T3}, s{S_T3}, {16*3584}")
if CFG["mwin"]:
    A(f"s_waitcnt vmcnt({CFG['mwin']})")
A(f"s_add_u32 s{S_T2}, s{S_T2}, 1")
A(f"s_cmp_lt_u32 s{S_T2}, 8")
A("s_cbranch_scc1 L_gld4")
A("s_branch L_gld5")
L("L_gld3")
srd(SRD_C, P_W2, 1792 * 1024)
A("v_lshl_add_u32 v14, v9, 10, v11")
A("v_xor_b32 v15, 32, v14")
A(f"s_lshl_b32 s{S_T3}, s{S_SUB}, 15")
lds_wait(L_FLAG + 8, 16, 17, sleep=2)
A(f"s_mov_b32 s{S_T1}, {L_W2}")
A(f"s_mov_b32 s{S_T2}, 0")
L("L_gld6")
for be in range(8):
    A(f"s_mov_b32 m0, s{S_T1}")
    A(f"s_add_u32 s{S_T1}, s{S_T1}, 1024")
    A(f"s_add_u32 s{S_T4}, s{S_T3}, {be*4096}")
    A(f"buffer_load_dwordx4 v{14 + (be & 1)}, {SC_}, s{S_T4} offen{NT} lds")
    if CFG["mwin"] and be % 4 == 3:
        A(f"s_waitcnt vmcnt({CFG['mwin']})")
A(f"s_add_u32 s{S_T3}, s{S_T3}, 256")
A(f"s_add_u32 s{S_T2}, s{S_T2}, 1")
A(f"s_cmp_lt_u32 s{S_T2}, 4")
A("s_cbranch_scc1 L_gld6")
L("L_gld5")
A("s_waitcnt vmcnt(0)")
stamp(4)
A("s_barrier")
A("s_branch L_exit")

C("---- q projection: wave 6 loads and computes everything")
L("L_qc")
srd(SRD_A, P_X, 2048)
A(f"buffer_load_dwordx4 v[16:19], v2, {SA}, 0 offen")
A(f"buffer_load_dwordx4 v[20:23], v2, {SA}, 0 offen offset:1024")
if CFG["touch"]:
    A(f"s_lshl_b32 s{S_T1}, s{S_X}, 4")
    A(f"s_add_u32 s{S_T1}, s{S_T1}, s{S_A}")
    A(f"s_lshl_b32 s{S_T1}, s{S_T1}, 9")
    A(f"s_add_u32 s{S_T1}, s{S_T1}, {WS_XQA}")
    A("s_mov_b32 exec_hi, 0")
    A(f"buffer_load_dwordx4 v[72:75], v2, {WS}, s{S_T1} offen sc1")
    A("s_mov_b32 exec_hi, -1")
srd(SRD_B, P_WQ, 0x400000)
A("v_bfe_u32 v13, v0, 1, 3")
A("v_lshlrev_b32 v13, 13, v13")
A("v_lshl_add_u32 v13, v4, 5, v13")
A("v_lshl_add_u32 v13, v10, 4, v13")
A(f"s_and_b32 s{S_B}, s{S_A}, 1")
A(f"s_lshl_b32 s{S_T0}, s{S_B}, 21")
A(f"s_lshl_b32 s{S_T1}, s{S_X}, 10")
A(f"s_add_u32 s{S_T0}, s{S_T0}, s{S_T1}")
A(f"s_lshr_b32 s{S_T1}, s{S_A}, 1")
A(f"s_lshl_b32 s{S_T1}, s{S_T1}, 7")
A(f"s_add_u32 s{S_T0}, s{S_T0}, s{S_T1}")
for i in range(32):
    A(f"s_mov_b32 m0, {L_WQ + i*1024}")
    A(f"s_add_u32 s{S_T1}, s{S_T0}, {i*0x10000}")
    A(f"buffer_load_dwordx4 v13, {SB}, s{S_T1} offen{NT} lds")
A("s_barrier")
A("v_lshrrev_b32 v12, 2, v0")
A("v_lshlrev_b32 v12, 6, v12")
A("v_lshl_add_u32 v12, v10, 5, v12")
A("v_bfe_u32 v13, v0, 1, 1")
A("v_lshl_add_u32 v12, v13, 3, v12")
A("v_lshlrev_b32 v13, 10, v10")
A("v_lshl_add_u32 v13, v4, 4, v13")
A(f"s_lshl_b32 s{S_T1}, s{S_B}, 9")
A(f"v_add_u32 v13, s{S_T1}, v13")
A("v_lshrrev_b32 v14, 5, v0")
A("v_lshlrev_b32 v14, 10, v14")
A("v_and_b32 v15, 31, v0")
A("v_lshl_add_u32 v14, v15, 3, v14")
C("exchange lane map: n=l&15<8: b=n&1, half2=(n>>1)&1, cs=(n>>2)&1 ; XQ off = cs*256 + b*128 + g*32 + half2*16")
A("v_bfe_u32 v70, v0, 2, 1")
A("v_lshlrev_b32 v69, 6, v70")
A("v_lshl_add_u32 v69, v4, 4, v69")
A("v_lshl_add_u32 v69, v10, 11, v69")
A("v_lshlrev_b32 v70, 8, v70")
A("v_lshl_add_u32 v70, v10, 7, v70")
A("v_lshl_add_u32 v70, v4, 5, v70")
A("v_bfe_u32 v15, v0, 1, 1")
A("v_lshl_add_u32 v70, v15, 4, v70")
A(f"s_lshl_b32 s{S_T5}, s{S_X}, 12")
A(f"s_lshl_b32 s{S_T1}, s{S_A}, 7")
A(f"s_add_u32 s{S_T5}, s{S_T5}, s{S_T1}")
A(f"s_lshl_b32 s{S_T1}, s{S_X}, 4")
A(f"s_add_u32 s{S_T1}, s{S_T1}, s{S_A}")
A(f"s_lshl_b32 s62, s{S_T1}, 9")
A(f"s_xor_b32 s63, s62, 512")
A(f"s_add_u32 s64, s62, {WS_XQB}")
A(f"s_add_u32 s62, s62, {WS_XQA}")
A(f"s_add_u32 s65, s63, {WS_XQB}")
A(f"s_add_u32 s63, s63, {WS_XQA}")
A("s_mov_b32 s66, 0xcccccccc")
A("s_mov_b32 s67, 0xcccccccc")
A("s_mov_b32 s68, 0xf0f0f0f0")
A("s_mov_b32 s69, 0xf0f0f0f0")
A(f"s_waitcnt vmcnt({32 + CFG['touch']})")
unpack(24, 16, 4)
unpack(32, 20, 4)
layernorm([24, 32], 2, 44, [16, 20])
A(f"ds_write_b64 v12, v[16:17] offset:{L_XN}")
A(f"ds_write_b64 v12, v[18:19] offset:{L_XN + 16}")
A(f"ds_write_b64 v12, v[20:21] offset:{L_XN + 1024}")
A(f"ds_write_b64 v12, v[22:23] offset:{L_XN + 1024 + 16}")
A("s_waitcnt lgkmcnt(0)")
XA = 96
for kp in range(8):
    A(f"ds_read_b128 v[{XA+4*kp}:{XA+4*kp+3}], v13 offset:{L_XN + kp*64}")
stamp(1)
lds_wait(L_FLAG, 16, 17)
A("v_mov_b32 v16, 0")
A(f"ds_read_b64 v[58:59], v16 offset:{L_TAG}")
A(f"ds_read_b64 v[62:63], v16 offset:{L_TAG}")
WF = 24
QD = 144
for kp in range(8):
    A(f"s_waitcnt vmcnt({28 - 4*kp})")
    if kp == 7:
        stamp(2)
    for ct in range(4):
        for h in range(2):
            r = WF + ((kp & 1) * 4 + ct) * 4 + 2 * h
            A(f"ds_read_b64_tr_b16 v[{r}:{r+1}], v14 offset:{L_WQ + kp*4096 + h*2048 + ct*256}")
    for ct in range(4):
        A(f"s_waitcnt lgkmcnt({6 - 2*ct})")
        mfma(QD + 4 * ct, WF + ((kp & 1) * 4 + ct) * 4, XA + 4 * kp, None if kp == 0 else QD + 4 * ct)
C("select: lo half cts (0,1) -> v[24:25], hi half cts (2,3) -> v[26:27]")
nop(5)
for hf in range(2):
    a, b = QD + 8 * hf, QD + 8 * hf + 4
    for j in range(2):
        A(f"v_cndmask_b32 v{28+j}, v{a+j}, v{a+2+j}, s[66:67]")
        A(f"v_cndmask_b32 v{30+j}, v{b+j}, v{b+2+j}, s[66:67]")
    for j in range(2):
        A(f"v_cndmask_b32 v{24+2*hf+j}, v{28+j}, v{30+j}, s[68:69]")
A(f"s_cmp_eq_u32 s{S_B}, 0")
A(f"s_cselect_b64 vcc, -1, 0")
set_exec(0x00ff00ff00ff00ff)
A("v_cndmask_b32 v56, v24, v26, vcc")
A("v_cndmask_b32 v57, v25, v27, vcc")
A("v_cndmask_b32 v60, v26, v24, vcc")
A("v_cndmask_b32 v61, v27, v25, vcc")
A(f"buffer_store_dwordx4 v[56:59], v70, {WS}, s{63 if CFG['dual'] else 65} offen{'' if CFG['dual'] else ' sc1'}")
stamp(6)
lx, lxe, lxs = newlbl("Lx"), newlbl("Lxe"), newlbl("Lxs")
A(f"s_mov_b32 s{S_TO}, {CFG['timeout']}")
L(lx)
if CFG["dual"]:
    A(f"s_cmp_lg_u32 s{S_TO}, {CFG['timeout'] - 4}")
    A(f"s_cbranch_scc1 {lxs}")
    C("partner not seen through L2 yet: also send the coherent copy")
    A(f"buffer_store_dwordx4 v[56:59], v70, {WS}, s65 offen sc1")
    L(lxs)
A(f"s_and_b32 s{S_T0}, s{S_TO}, 7")
A(f"s_cmp_eq_u32 s{S_T0}, 1")
A(f"s_cselect_b32 s{S_T1}, s64, s{62 if CFG['dual'] else 64}")
A(f"buffer_load_dwordx4 v[24:27], v70, {WS}, s{S_T1} offen sc1")
A(f"s_sub_u32 s{S_TO}, s{S_TO}, 1")
A(f"s_cbranch_scc1 {lxe}")
A("s_waitcnt vmcnt(0)")
A("v_cmp_ne_u64 vcc, v[26:27], v[58:59]")
A("s_cmp_lg_u64 vcc, 0")
A(f"s_cbranch_scc1 {lx}")
L(lxe)
A("s_waitcnt vmcnt(0)")
A("v_pk_add_f32 v[60:61], v[60:61], v[24:25]")
A("v_cvt_pk_bf16_f32 v60, v60, v61")
nop(2)
A("v_mov_b32_dpp v61, v60 quad_perm:[2,3,0,1] row_mask:0xf bank_mask:0xf")
set_exec(0x0033003300330033)
A(f"buffer_store_dwordx4 v[60:63], v69, {WS}, s{S_T5} offen sc1")
if CFG["dual"]:
    C("always leave a coherent copy for the partner")
    set_exec(0x00ff00ff00ff00ff)
    A(f"buffer_store_dwordx4 v[56:59], v70, {WS}, s65 offen sc1")
A("s_mov_b64 exec, -1")
lds_set(L_FLAG + 8, 16, 17)
stamp(3)
L("L_qm2")
A(f"s_cmp_eq_u32 s{S_ROLE}, 0")
A("s_cbranch_scc1 L_exit")
lds_wait(L_FLAG, 16, 17)
A(f"v_mov_b32 v{V_T}, 0")
A(f"ds_read_b64 v[{TT+2}:{TT+3}], v{V_T} offset:{L_TAG}")
A(f"ds_read_b128 v[{V_TG}:{V_TG+3}], v{V_T} offset:{L_TAG + 16}")
A(f"s_cmp_eq_u32 s{S_ROLE}, 2")
A("s_cbranch_scc1 L_F")

C("==== E: wo projection, 8 waves: head=w&3, col half=w>>2; wave gathers records 2w,2w+1")
V_WX = 16
A(f"s_lshl_b32 s{S_T1}, s{S_X}, 4")
A(f"s_lshl_b32 s{S_T2}, s{S_WAVE}, 1")
A(f"s_add_u32 s{S_T1}, s{S_T1}, s{S_T2}")
A(f"s_mul_i32 s{S_T1}, s{S_T1}, {RECP}")
A(f"s_add_u32 s{S_PNA}, s{S_T1}, {WS_PNA if CFG['dual'] else WS_PNB}")
A(f"s_add_u32 s{S_PNB}, s{S_T1}, {WS_PNB}")
EA0, EA1, EA2, EA3, EA4, EA5 = V_T + 36, V_T + 37, V_T + 38, V_T + 39, V_T + 2, V_T + 3
C("stats gather addr: lane<8: (l>>2)*RECP + (l&3)*16 (+1024)")
A(f"v_lshrrev_b32 v{EA0}, 2, v0")
A(f"s_movk_i32 s{S_T2}, {RECP}")
A(f"v_mul_lo_u32 v{EA0}, v{EA0}, s{S_T2}")
A(f"v_and_b32 v{EA1}, 3, v0")
A(f"v_lshl_add_u32 v{EA0}, v{EA1}, 4, v{EA0}")
A(f"s_mul_i32 s{S_T2}, s{S_WAVE}, {2*PNP}")
A(f"s_add_u32 s{S_T2}, s{S_T2}, {L_PS}")
A(f"v_add_u32 v{EA1}, s{S_T2}, v2")
A(f"s_lshl_b32 s{S_T2}, s{S_WAVE}, 7")
A(f"v_add_u32 v{EA2}, s{S_T2}, v2")
A(f"s_and_b32 s{S_T4}, s{S_WAVE}, 3")
A(f"s_lshr_b32 s{S_T5}, s{S_WAVE}, 2")
A(f"s_movk_i32 s{S_T2}, {PNP}")
A(f"v_mul_lo_u32 v{EA3}, v6, s{S_T2}")
A(f"v_lshl_add_u32 v{EA3}, v4, 4, v{EA3}")
A(f"s_lshl_b32 s{S_T2}, s{S_T4}, 6")
A(f"s_add_u32 s{S_T2}, s{S_T2}, {L_PS}")
A(f"v_add_u32 v{EA3}, s{S_T2}, v{EA3}")
A(f"v_lshlrev_b32 v{EA4}, 6, v6")
A(f"s_lshl_b32 s{S_T2}, s{S_T4}, 4")
A(f"v_add_u32 v{EA4}, s{S_T2}, v{EA4}")
A(f"s_lshl_b32 s{S_T2}, s{S_T4}, 9")
A(f"s_lshl_b32 s{S_T3}, s{S_T5}, 8")
A(f"s_add_u32 s{S_T2}, s{S_T2}, s{S_T3}")
A(f"v_lshl_add_u32 v{EA5}, v0, 2, s{S_T2}")
C("weights tr-read addr: WO + hd*16384 + ch*512 + (l>>5)*1024 + (l&31)*8")
A(f"v_lshrrev_b32 v{TT}, 5, v0")
A(f"v_lshlrev_b32 v{TT}, 10, v{TT}")
A(f"v_and_b32 v{TT+1}, 31, v0")
A(f"v_lshl_add_u32 v{TT}, v{TT+1}, 3, v{TT}")
A(f"s_lshl_b32 s{S_T2}, s{S_T4}, 14")
A(f"s_lshl_b32 s{S_T3}, s{S_T5}, 9")
A(f"s_add_u32 s{S_T2}, s{S_T2}, s{S_T3}")
A(f"s_add_u32 s{S_T2}, s{S_T2}, {L_WO}")
A(f"v_add_u32 v{TT}, s{S_T2}, v{TT}")
A(f"v_mul_u32_u24 v{V_T+32}, 80, v4")
C("final-stage addresses (wave 0, lanes<32): RED read / AP write")
A(f"v_bfe_u32 v{V_T+33}, v0, 3, 1")
A(f"v_lshlrev_b32 v{V_T+33}, 8, v{V_T+33}")
A(f"v_lshl_add_u32 v{V_T+33}, v4, 7, v{V_T+33}")
A(f"v_and_b32 v{V_T+34}, 7, v0")
A(f"v_lshl_add_u32 v{V_T+33}, v{V_T+34}, 4, v{V_T+33}")
A(f"v_lshlrev_b32 v{V_T+34}, 11, v4")
A(f"v_lshl_add_u32 v{V_T+34}, v6, 4, v{V_T+34}")
A(f"s_lshl_b32 s{S_NT}, s{S_X}, 12")
A(f"s_lshl_b32 s{S_T1}, s{S_SUB}, 8")
A(f"s_add_u32 s{S_NT}, s{S_NT}, s{S_T1}")
A(f"s_add_u32 s{S_NT}, s{S_NT}, {WS_AP}")
A("s_waitcnt vmcnt(0) lgkmcnt(0)")
A("s_barrier")
stamp(4)
for kp in range(4):
    for c in range(2):
        for h in range(2):
            r = V_WX + (kp * 2 + c) * 4 + 2 * h
            A(f"ds_read_b64_tr_b16 v[{r}:{r+1}], v{TT} offset:{kp*4096 + h*2048 + c*256}")
SG = V_G + 8
le, lee = newlbl("Le"), newlbl("Lee")
A(f"s_mov_b32 s{S_TO}, {CFG['timeout']}")
L(le)
A(f"s_and_b32 s{S_T0}, s{S_TO}, {CFG['bmask']}")
A(f"s_cmp_eq_u32 s{S_T0}, 1")
A(f"s_cselect_b32 s{S_T1}, s{S_PNB}, s{S_PNA}")
A(f"v_mov_b32 v{SG+2}, v{TT+2}")
A(f"v_mov_b32 v{SG+3}, v{TT+3}")
A("s_mov_b64 exec, 0xff")
A(f"buffer_load_dwordx4 v[{SG}:{SG+3}], v{EA0}, {WS}, s{S_T1} offen offset:1024 sc1")
A("s_mov_b64 exec, -1")
for i in range(2):
    r = V_G + i * 4
    A(f"buffer_load_dwordx4 v[{r}:{r+3}], v2, {WS}, s{S_T1} offen offset:{i*RECP} sc1")
A(f"s_sub_u32 s{S_TO}, s{S_TO}, 1")
A(f"s_cbranch_scc1 {lee}")
A("s_waitcnt vmcnt(0)")
tree3("v_max3_u32", "v_max_u32", range(V_G, V_G + 8), TT)
A(f"v_cmp_eq_u32 vcc, -1, v{TT}")
A(f"v_cmp_ne_u64 s[{S_T2}:{S_T3}], v[{SG+2}:{SG+3}], v[{TT+2}:{TT+3}]")
A(f"s_or_b64 vcc, vcc, s[{S_T2}:{S_T3}]")
A(f"s_cbranch_scc1 {le}")
L(lee)
A("s_waitcnt vmcnt(0)")
stamp(7)
for i in range(2):
    r = V_G + i * 4
    A(f"ds_write_b128 v{EA1}, v[{r}:{r+3}] offset:{i*PNP}")
A("s_mov_b64 exec, 0xff")
A(f"ds_write_b128 v{EA2}, v[{SG}:{SG+3}] offset:{L_STS}")
A("s_mov_b64 exec, -1")
A("s_waitcnt lgkmcnt(0)")
A("s_barrier")
SM0 = V_T + 4
MG = V_T + 8
FW = V_T + 24
A(f"ds_read_b64 v[{SM0}:{SM0+1}], v{EA4} offset:{L_STS}")
for kp in range(4):
    r = V_G + kp * 4
    A(f"ds_read_b128 v[{r}:{r+3}], v{EA3} offset:{kp*256}")
EA = V_S
A("s_waitcnt lgkmcnt(4)")
A(f"v_mov_b32 v{MG}, v{SM0}")
R8 = ROW_ALL[:3]
fill = []
for c in R8:
    fill.append(["s_nop 0", f"v_max_f32_dpp v{MG}, v{MG}, v{MG} {c} row_mask:0xf bank_mask:0xf"])
fill.append([f"v_sub_f32 v{SM0}, v{SM0}, v{MG}", f"v_exp_f32 v{SM0}, v{SM0}", "s_nop 0", f"v_mul_f32 v{MG}, v{SM0}, v{SM0+1}"])
for c in R8:
    fill.append(["s_nop 0", f"v_add_f32_dpp v{MG}, v{MG}, v{MG} {c} row_mask:0xf bank_mask:0xf"])
fill.append([f"v_rcp_f32 v{MG}, v{MG}", "s_nop 0", f"v_mul_f32 v{SM0}, v{SM0}, v{MG}"])
fi = 0
for kp in range(4):
    A(f"s_waitcnt lgkmcnt({3-kp})")
    for c in range(2):
        d = EA + c * 4
        mfma(d, V_G + kp * 4, V_WX + (kp * 2 + c) * 4, None if kp == 0 else d)
        for ins in fill[fi]:
            A(ins)
        fi += 1
assert fi == len(fill)
for r in range(4):
    A(f"ds_bpermute_b32 v{FW+r}, v{V_T+32}, v{SM0} offset:{4*r}")
A("s_waitcnt lgkmcnt(0)")
for c in range(2):
    d = EA + 4 * c
    A(f"v_mul_f32 v{d}, v{d}, v{FW}")
    A(f"v_mul_f32 v{d+2}, v{d+2}, v{FW+2}")
    A(f"v_fmac_f32 v{d}, v{d+1}, v{FW+1}")
    A(f"v_fmac_f32 v{d+2}, v{d+3}, v{FW+3}")
for c in range(2):
    d = EA + 4 * c
    A(f"v_add_f32 v{d}, v{d}, v{d+2}")
nop(2)
A(f"v_permlane16_swap_b32 v{EA}, v{EA+4}")
A(f"v_add_f32 v{EA}, v{EA}, v{EA+4}")
A(f"ds_write_b32 v{EA5}, v{EA} offset:{L_RED}")
A("s_waitcnt lgkmcnt(0)")
A("s_barrier")
A(f"s_cmp_lg_u32 s{S_WAVE}, 0")
A("s_cbranch_scc1 L_exit")
A("s_mov_b32 exec_hi, 0")
for i in range(4):
    A(f"ds_read_b128 v[{V_G+4*i}:{V_G+4*i+3}], v{V_T+33} offset:{L_RED + i*512}")
A("s_waitcnt lgkmcnt(0)")
for j in (0, 2):
    A(f"v_pk_add_f32 v[{V_G+j}:{V_G+j+1}], v[{V_G+j}:{V_G+j+1}], v[{V_G+4+j}:{V_G+5+j}]")
    A(f"v_pk_add_f32 v[{V_G+8+j}:{V_G+9+j}], v[{V_G+8+j}:{V_G+9+j}], v[{V_G+12+j}:{V_G+13+j}]")
for j in (0, 2):
    A(f"v_pk_add_f32 v[{V_G+j}:{V_G+j+1}], v[{V_G+j}:{V_G+j+1}], v[{V_G+8+j}:{V_G+9+j}]")
tag(V_G, V_TG)
A(f"buffer_store_dwordx4 v[{V_G}:{V_G+3}], v{V_T+34}, {WS}, s{S_NT} offen sc1")
stamp(8)
A("s_branch L_exit")

L("L_F")
C("==== F: MLP. 8 waves gather (b=w>>2, 128-col quarter q=w&3); waves 0..3 also do w1/gelu/w2")
V_W2 = 128
FG = 48
HX = 64
lds_wait(L_FLAG + 8, 16, 17, sleep=4)
C("x[b][128q + 4(l&31)..] ; b1[mi*32 + (l&31)]")
srd(SRD_A, P_X, 2048)
A("v_and_b32 v12, 31, v0")
A("v_lshlrev_b32 v13, 3, v12")
A(f"s_lshl_b32 s{S_T0}, s{S_WAVE}, 8")
A(f"buffer_load_dwordx2 v[{V_SM}:{V_SM+1}], v13, {SA}, s{S_T0} offen")
srd(SRD_C, P_B1, 3584)
A("v_lshlrev_b32 v13, 1, v12")
A(f"s_lshl_b32 s{S_T0}, s{S_SUB}, 6")
A(f"buffer_load_ushort v{V_SM+2}, v13, {SC_}, s{S_T0} offen")
C("gather addr: (l>>5)*4096 + (l&31)*16 ; soffset = AP + w*512 + i*8192")
GAD, HA, STW, STR = V_T, V_T + 1, V_T + 2, V_T + 3
A(f"v_lshrrev_b32 v{GAD}, 5, v0")
A(f"v_lshlrev_b32 v{GAD}, 12, v{GAD}")
A(f"v_lshl_add_u32 v{GAD}, v12, 4, v{GAD}")
A(f"s_lshl_b32 s{S_T0}, s{S_WAVE}, 9")
A(f"s_add_u32 s{S_T0}, s{S_T0}, {WS_AP}")
SX = 62
for i in range(4):
    A(f"s_add_u32 s{SX+i}, s{S_T0}, {i*8192}")
C("hn write addr (cols 4j.., j=l&31): w*256 + (j>>3)*64 + (j&3)*16 + ((j>>2)&1)*8")
A(f"v_lshrrev_b32 v{HA}, 3, v12")
A(f"v_lshlrev_b32 v{HA}, 6, v{HA}")
A("v_and_b32 v13, 3, v0")
A(f"v_lshl_add_u32 v{HA}, v13, 4, v{HA}")
A("v_bfe_u32 v13, v0, 2, 1")
A(f"v_lshl_add_u32 v{HA}, v13, 3, v{HA}")
A(f"s_lshl_b32 s{S_T0}, s{S_WAVE}, 8")
A(f"v_add_u32 v{HA}, s{S_T0}, v{HA}")
C("LN stats exchange: STS + w*8 ; read STS + b*32 (sentinel initialised)")
A(f"s_lshl_b32 s{S_T0}, s{S_WAVE}, 3")
A(f"v_mov_b32 v{STW}, s{S_T0}")
A(f"s_lshr_b32 s{S_T0}, s{S_WAVE}, 2")
A(f"s_lshl_b32 s{S_T0}, s{S_T0}, 5")
A(f"v_mov_b32 v{STR}, s{S_T0}")
A("v_mov_b32 v14, -1")
A("v_mov_b32 v15, -1")
A(f"ds_write_b64 v{STW}, v[14:15] offset:{L_STS}")
C("compute-wave addresses")
vw2_addr()
A(f"s_lshl_b32 s{S_T0}, s{S_WAVE}, 13")
A(f"s_add_u32 s{S_T1}, s{S_T0}, {L_W2}")
A(f"v_add_u32 v{VB0}, s{S_T1}, v{VA0}")
A(f"v_add_u32 v{VB1}, s{S_T1}, v{VA1}")
A(f"s_add_u32 s{S_T1}, s{S_T0}, {L_WX}")
A(f"v_lshl_add_u32 v{TT}, v0, 3, s{S_T1}")
A0, A1, A2, YAD = V_T + 36, V_T + 37, V_T + 38, V_T + 39
A(f"v_lshlrev_b32 v{A0}, 10, v10")
A(f"v_lshl_add_u32 v{A0}, v4, 4, v{A0}")
A(f"s_lshl_b32 s{S_T0}, s{S_WAVE}, 8")
A(f"v_add_u32 v{A0}, s{S_T0}, v{A0}")
A(f"v_lshlrev_b32 v{A1}, 7, v6")
A(f"v_lshl_add_u32 v{A1}, v4, 4, v{A1}")
A(f"v_add_u32 v{A1}, s{S_T0}, v{A1}")
C("h1 write addr: lane (b=l>>5, c=l&31): H1 + w*128 + b*64 + ((c>>2)&3)*16 + (c>>4)*8 + (c&3)*2")
A(f"v_lshrrev_b32 v{A2}, 5, v0")
A(f"v_lshlrev_b32 v{A2}, 6, v{A2}")
A("v_bfe_u32 v13, v0, 2, 2")
A(f"v_lshl_add_u32 v{A2}, v13, 4, v{A2}")
A("v_bfe_u32 v13, v0, 4, 1")
A(f"v_lshl_add_u32 v{A2}, v13, 3, v{A2}")
A("v_and_b32 v13, 3, v0")
A(f"v_lshl_add_u32 v{A2}, v13, 1, v{A2}")
A(f"s_lshl_b32 s{S_T1}, s{S_WAVE}, 7")
A(f"s_add_u32 s{S_T1}, s{S_T1}, {L_H1}")
A(f"v_add_u32 v{A2}, s{S_T1}, v{A2}")
C("B_ct operand addresses: (n>>1)==ct ? H1 + w*128 + (n&1)*64 + g*16 : ZERO")
BA = V_T + 24
A("v_lshlrev_b32 v13, 6, v10")
A("v_lshl_add_u32 v13, v4, 4, v13")
A(f"v_add_u32 v13, s{S_T1}, v13")
A(f"v_mov_b32 v14, {L_ZERO}")
A("v_bfe_u32 v15, v0, 1, 3")
for ct in range(8):
    A(f"v_cmp_eq_u32 vcc, {ct}, v15")
    A("s_nop 1")
    A(f"v_cndmask_b32 v{BA+ct}, v14, v13, vcc")
for j in range(4):
    A(f"v_mov_b32 v{16+j}, 0")
A(f"ds_write_b128 v14, v[16:19]")
C("Y store addr: (n&1)*2048 + (n>>1)*64 + g*16 ; soff = Y + mi*YP + w*512")
A(f"v_lshlrev_b32 v{YAD}, 11, v10")
A(f"v_lshl_add_u32 v{YAD}, v15, 6, v{YAD}")
A(f"v_lshl_add_u32 v{YAD}, v4, 4, v{YAD}")
S_Y = 70
A(f"s_mul_i32 s{S_Y}, s{S_SUB}, {YP}")
A(f"s_lshl_b32 s{S_T1}, s{S_WAVE}, 9")
A(f"s_add_u32 s{S_Y}, s{S_Y}, s{S_T1}")
A(f"s_add_u32 s{S_Y}, s{S_Y}, {WS_Y}")
A("v_lshlrev_b32 v3, 2, v0")
A("s_waitcnt vmcnt(0) lgkmcnt(0)")
unpack(HX, V_SM, 2)
A(f"v_lshlrev_b32 v{V_SM+2}, 16, v{V_SM+2}")
A("s_barrier")
stamp(4)
A(f"s_cmp_ge_u32 s{S_WAVE}, 4")
A("s_cbranch_scc1 L_F1")
for kp in range(4):
    for ct in range(2):
        for h in range(2):
            r = V_WX + (kp * 2 + ct) * 4 + 2 * h
            A(f"ds_read_b64_tr_b16 v[{r}:{r+1}], v{TT} offset:{kp*2048 + h*1024 + ct*512}")
A("s_waitcnt lgkmcnt(0)")
for ct in range(8):
    for h in range(2):
        r = V_W2 + ct * 4 + 2 * h
        A(f"ds_read_b64_tr_b16 v[{r}:{r+1}], v{VB0 + (ct & 1)} offset:{(ct >> 1)*256 + h*4096}")
L("L_F1")


def f_loads():
    for i in range(4):
        r = FG + i * 4
        A(f"buffer_load_dwordx4 v[{r}:{r+3}], v{GAD}, {WS}, s{SX+i} offen sc1")


tpoll(f_loads, range(FG, FG + 16), TT, V_TG)
stamp(7)
for j in (0, 2):
    A(f"v_pk_add_f32 v[{FG+j}:{FG+j+1}], v[{FG+j}:{FG+j+1}], v[{FG+4+j}:{FG+5+j}]")
    A(f"v_pk_add_f32 v[{FG+8+j}:{FG+9+j}], v[{FG+8+j}:{FG+9+j}], v[{FG+12+j}:{FG+13+j}]")
for j in (0, 2):
    A(f"v_pk_add_f32 v[{FG+j}:{FG+j+1}], v[{FG+j}:{FG+j+1}], v[{FG+8+j}:{FG+9+j}]")
swap_steps("v_add_f32", [FG + j for j in range(4)], [FG + 4 + j for j in range(4)], which=(32,))
HP = FG + 8
pack(HP, FG, 2)
unpack(FG, HP, 2)
for j in range(4):
    A(f"v_add_f32 v{HX+j}, v{HX+j}, v{FG+j}")
pack(HP, HX, 2)
unpack(HX, HP, 2)
C("local stats around pivot c = h[first]")
A("s_nop 0")
A(f"v_readfirstlane_b32 s{S_T2}, v{HX}")
A("s_nop 1")
for j in range(4):
    A(f"v_subrev_f32 v{FG+j}, s{S_T2}, v{HX+j}")
SS, SQ = FG + 10, FG + 11
A(f"v_add_f32 v{SS}, v{FG}, v{FG+1}")
A(f"v_mul_f32 v{SQ}, v{FG}, v{FG}")
A(f"v_add_f32 v{FG+4}, v{FG+2}, v{FG+3}")
A(f"v_fmac_f32 v{SQ}, v{FG+1}, v{FG+1}")
A(f"v_add_f32 v{SS}, v{SS}, v{FG+4}")
A(f"v_fmac_f32 v{SQ}, v{FG+2}, v{FG+2}")
A(f"v_fmac_f32 v{SQ}, v{FG+3}, v{FG+3}")
nop(1)
dpp_steps("v_add_f32", [SS, SQ], ROW_ALL)
swap_steps("v_add_f32", [SS, SQ], [FG + 4, FG + 5], which=(16,))
C("mean_w = c + s/128 ; M2_w = ss - s*s/128")
A(f"v_mul_f32 v{FG+4}, {f2u(1.0/128):#x}, v{SS}")
A(f"v_fma_f32 v{SQ}, -v{FG+4}, v{SS}, v{SQ}")
A(f"v_add_f32 v{SS}, s{S_T2}, v{FG+4}")
A("s_mov_b64 exec, 1")
A(f"ds_write_b64 v{STW}, v[{SS}:{SQ}] offset:{L_STS}")
A("s_mov_b64 exec, -1")
l3, l3e = newlbl("Lst"), newlbl("Lste")
A(f"s_mov_b32 s{S_TO}, {CFG['timeout']}")
L(l3)
A(f"ds_read_b128 v[{FG}:{FG+3}], v{STR} offset:{L_STS}")
A(f"ds_read_b128 v[{FG+4}:{FG+7}], v{STR} offset:{L_STS + 16}")
A(f"s_sub_u32 s{S_TO}, s{S_TO}, 1")
A(f"s_cbranch_scc1 {l3e}")
A("s_waitcnt lgkmcnt(0)")
tree3("v_max3_u32", "v_max_u32", range(FG, FG + 8), TT)
A(f"v_cmp_eq_u32 vcc, -1, v{TT}")
A("s_cmp_lg_u64 vcc, 0")
A(f"s_cbranch_scc1 {l3}")
L(l3e)
A("s_waitcnt lgkmcnt(0)")
MEAN, VAR, TM = FG + 8, FG + 9, FG + 10
A(f"v_add_f32 v{MEAN}, v{FG}, v{FG+2}")
A(f"v_add_f32 v{TM}, v{FG+4}, v{FG+6}")
A(f"v_add_f32 v{VAR}, v{FG+1}, v{FG+3}")
A(f"v_add_f32 v{MEAN}, v{MEAN}, v{TM}")
A(f"v_add_f32 v{TM}, v{FG+5}, v{FG+7}")
A(f"v_mul_f32 v{MEAN}, 0.25, v{MEAN}" if False else f"v_mul_f32 v{MEAN}, {f2u(0.25):#x}, v{MEAN}")
A(f"v_add_f32 v{VAR}, v{VAR}, v{TM}")
for j in range(4):
    A(f"v_sub_f32 v{FG+2*j}, v{FG+2*j}, v{MEAN}")
A(f"v_mul_f32 v{TM}, v{FG}, v{FG}")
for j in range(1, 4):
    A(f"v_fmac_f32 v{TM}, v{FG+2*j}, v{FG+2*j}")
A(f"v_mul_f32 v{VAR}, {f2u(1.0/512):#x}, v{VAR}")
A(f"v_fmac_f32 v{VAR}, {f2u(0.25):#x}, v{TM}")
bf16r(MEAN, MEAN)
bf16r(VAR, VAR)
for j in range(4):
    A(f"v_sub_f32 v{FG+j}, v{HX+j}, v{MEAN}")
A(f"v_add_f32 v{VAR}, {f2u(1e-5):#x}, v{VAR}")
pack(HP + 4, FG, 2)
bf16r(VAR, VAR)
unpack(FG, HP + 4, 2)
A(f"v_sqrt_f32 v{VAR}, v{VAR}")
nop(1)
bf16r(VAR, VAR)
A(f"v_rcp_f32 v{VAR}, v{VAR}")
nop(1)
for j in range(4):
    A(f"v_mul_f32 v{FG+j}, v{FG+j}, v{VAR}")
pack(HP + 4, FG, 2)
A("s_mov_b32 exec_hi, 0")
A(f"ds_write_b64 v{HA}, v[{HP+4}:{HP+5}] offset:{L_HN}")
A("s_mov_b32 exec_hi, -1")
c0 = math.sqrt(2.0 / math.pi)
k0 = -2.0 * c0 * LOG2E
k1 = k0 * 0.044715
A(f"s_mov_b32 s{S_T1}, {f2u(k1):#x}")
A(f"v_mov_b32 v{TT}, {f2u(k0):#x}")
A("s_waitcnt lgkmcnt(0)")
A("s_barrier")
stamp(8)
A(f"s_cmp_ge_u32 s{S_WAVE}, 4")
A("s_cbranch_scc1 L_exit")
for kp in range(4):
    A(f"ds_read_b128 v[{V_Q+4*kp}:{V_Q+4*kp+3}], v{A0} offset:{L_HN + kp*64}")
for kp in range(4):
    A(f"s_waitcnt lgkmcnt({3-kp})")
    for ct in range(2):
        mfma(V_S + 4 * ct, V_WX + (kp * 2 + ct) * 4, V_Q + 4 * kp, None if kp == 0 else V_S + 4 * ct)
nop(6)
set_exec(MASK_N2)
A(f"ds_write_b128 v{A1}, v[{V_S}:{V_S+3}] offset:{L_RED}")
A(f"ds_write_b128 v{A1}, v[{V_S+4}:{V_S+7}] offset:{L_RED + 64}")
A("s_mov_b64 exec, -1")
A("s_waitcnt lgkmcnt(0)")
A("s_barrier")
U = 16
for wp in range(4):
    A(f"ds_read_b32 v{U+wp}, v3 offset:{L_RED + wp*256}")
A("s_waitcnt lgkmcnt(0)")
A(f"v_add_f32 v{U}, v{U}, v{U+1}")
A(f"v_add_f32 v{U+2}, v{U+2}, v{U+3}")
A(f"v_add_f32 v{U}, v{U}, v{U+2}")
bf16r(U, U)
A(f"v_add_f32 v{U}, v{U}, v{V_SM+2}")
bf16r(U, U)
A(f"v_mul_f32 v{U+1}, v{U}, v{U}")
A(f"v_fma_f32 v{U+1}, v{U+1}, s{S_T1}, v{TT}")
A(f"v_mul_f32 v{U+1}, v{U+1}, v{U}")
A(f"v_exp_f32 v{U+1}, v{U+1}")
nop(1)
A(f"v_add_f32 v{U+1}, 1.0, v{U+1}")
A(f"v_rcp_f32 v{U+1}, v{U+1}")
nop(1)
A(f"v_mul_f32 v{U}, v{U}, v{U+1}")
A(f"v_cvt_pk_bf16_f32 v{U}, v{U}, v{U}")
A(f"ds_write_b16 v{A2}, v{U}")
BO = 32
for ct in range(8):
    A(f"ds_read_b128 v[{BO+4*ct}:{BO+4*ct+3}], v{BA+ct}")
YA = 24
for ct in range(8):
    A(f"s_waitcnt lgkmcnt({7-ct})")
    mfma(YA, V_W2 + 4 * ct, BO + 4 * ct, None if ct == 0 else YA)
nop(8)
tag(YA, V_TG)
A(f"buffer_store_dwordx4 v[{YA}:{YA+3}], v{YAD}, {WS}, s{S_Y} offen sc1")
stamp(9)
L("L_exit")
stamp_flush()
L("L_end")
A("s_endpgm")

out.append(f""".section .rodata,"a"
.p2align 6
.amdhsa_kernel {NAME}_kernel
  .amdhsa_next_free_vgpr 168
  .amdhsa_next_free_sgpr 102
  .amdhsa_accum_offset 168
  .amdhsa_group_segment_fixed_size 0
  .amdhsa_kernarg_size 104
  .amdhsa_user_sgpr_count 2
  .amdhsa_user_sgpr_kernarg_segment_ptr 1
  .amdhsa_system_sgpr_workgroup_id_x 1
.end_amdhsa_kernel""")

print("\n".join(out))
```

```python
import sys, struct, math

NAME = "sequential_preLN__sliding_block_cached__dense_activation_gelu__decode"

CFG = dict(nt=1, timeout=1 << 18, stamps=0, dual=1, tsleep0=10, tsleep=3, tsleepa=40, qsleep=0, mwin=0, touch=1, bmask=15)
for a in sys.argv[1:]:
    if "=" in a:
        k, v = a.split("=")
        CFG[k] = int(v)
NT = " nt" if CFG["nt"] else ""

WS_Q = 0x00000
RECP = 1152
WS_PNA = 0x10000
WS_PNB = 0x50000
WS_XQA = 0x90000
WS_XQB = 0x80000
WS_AP = 0xA8000
WS_Y = 0xB0000
YP = 4096 + 128
WS_TS = 0xF0000
WS_SIZE = 0x200000

L_QL = 0
L_XN = 0
L_SC = 2048
L_QR = 2048
L_HN = 4096
L_RED = 6144
L_STS = 8192
L_QS = 9216
L_H1 = 9216
L_ZERO = 9728
L_MX = 10240
L_LS = 10368
L_FLAG = 10496
L_TAG = 10512
L_FL2 = 10544
L_DUM = 10560
BIG = 11264
L_K = BIG
L_V = BIG + 65536
L_WQ = BIG
L_WO = BIG + 32768
L_WX = BIG + 32768
L_W2 = BIG + 65536
L_PS = BIG + 98304
PNP = 1040
LDS_BYTES = BIG + 131072

LOG2E = 1.4426950408889634
SCALE = 128 ** -0.5


def f2u(f):
    return struct.unpack("<I", struct.pack("<f", f))[0]


out = []


def A(s):
    out.append("    " + s)


def L(s):
    out.append(s + ":")


def C(s):
    out.append("    ; " + s)


def nop(n):
    while n > 0:
        k = min(n, 16)
        A(f"s_nop {k-1}")
        n -= k


_lbl = [0]


def newlbl(p="L"):
    _lbl[0] += 1
    return f"{p}_{_lbl[0]}"


P_X, P_K, P_V, P_WQ, P_WO, P_BX, P_W1, P_B1, P_W2, P_B2, P_OUT, P_DBG, P_WS = [36 + 2 * i for i in range(13)]
S_WAVE, S_X, S_A, S_B, S_SPL = 3, 4, 5, 6, 7
SRD_WS, SRD_A, SRD_B, SRD_C = 8, 12, 16, 20
S_T0, S_T1, S_T2, S_T3, S_T4, S_T5 = 24, 25, 26, 27, 28, 29
S_TO, S_ROLE, S_SUB, S_NT, S_PNA, S_PNB = 30, 31, 32, 33, 34, 35
S_Q = 36
S_TG = 100
WS = f"s[{SRD_WS}:{SRD_WS+3}]"
SA = f"s[{SRD_A}:{SRD_A+3}]"
SB = f"s[{SRD_B}:{SRD_B+3}]"
SC_ = f"s[{SRD_C}:{SRD_C+3}]"
V_ST = 1
V_MSK = 5


def srd(d, p, size):
    A(f"s_mov_b32 s{d}, s{p}")
    A(f"s_mov_b32 s{d+1}, s{p+1}")
    A(f"s_mov_b32 s{d+2}, {size:#x}")
    A(f"s_mov_b32 s{d+3}, 0x00020000")


def stamp(slot):
    if CFG["stamps"]:
        A("s_memrealtime s[0:1]")
        A("s_waitcnt lgkmcnt(0)")
        A(f"v_writelane_b32 v{V_ST}, s0, {slot}")


def stamp_flush():
    if not CFG["stamps"]:
        return
    if CFG["stamps"] == 2:
        A("s_mov_b64 exec, -1")
        A(f"v_mov_b32 v2, {L_TAG}")
        A("ds_read_b32 v3, v2")
        A("s_waitcnt lgkmcnt(0)")
        A(f"v_sub_u32 v3, v{V_ST}, v3")
        A("v_max_i32 v3, 0, v3")
        A("v_lshlrev_b32 v2, 2, v0")
        A("v_add_co_u32 v166, vcc, v166, v2")
        A("v_addc_co_u32 v167, vcc, 0, v167, vcc")
        A(f"v_cmp_ne_u32 vcc, 0, v{V_ST}")
        A("s_bitcmp1_b32 vcc_lo, 11")
        A("s_cbranch_scc0 L_end")
        A("s_and_b64 exec, vcc, 0x1fff")
        A("s_cbranch_execz L_end")
        A("global_atomic_umax v[166:167], v3, off offset:8")
        return
    A("s_mov_b64 exec, -1")
    A("s_lshl_b32 s0, s2, 10")
    A(f"s_lshl_b32 s1, s{S_WAVE}, 6")
    A("s_add_u32 s0, s0, s1")
    A(f"s_add_u32 s0, s0, {WS_TS}")
    A("v_lshlrev_b32 v2, 2, v0")
    A("s_mov_b64 exec, 0xffff")
    A(f"buffer_store_dword v{V_ST}, v2, {WS}, s0 offen")


def dpp_steps(op, regs, ctrls):
    for c in ctrls:
        pad = max(0, 2 - (len(regs) - 1))
        if pad:
            nop(pad)
        for r in regs:
            A(f"{op}_dpp v{r}, v{r}, v{r} {c} row_mask:0xf bank_mask:0xf")


ROW_ALL = ["quad_perm:[1,0,3,2]", "quad_perm:[2,3,0,1]", "row_half_mirror", "row_mirror"]
ROW_HI = ["row_ror:4", "row_ror:8"]


def swap_steps(op, regs, tmps, which=(16, 32)):
    for wd in which:
        sw = f"v_permlane{wd}_swap_b32"
        for r, t in zip(regs, tmps):
            A(f"v_mov_b32 v{t}, v{r}")
        pad = max(0, 2 - (len(regs) - 1))
        if pad:
            nop(pad)
        for r, t in zip(regs, tmps):
            A(f"{sw} v{r}, v{t}")
        for r, t in zip(regs, tmps):
            A(f"{op} v{r}, v{r}, v{t}")


def allreduce(op, regs, tmps):
    nop(2)
    dpp_steps(op, regs, ROW_ALL)
    swap_steps(op, regs, tmps)


def lds_wait(flag_off, vt, va, sleep=0):
    l, e = newlbl("Lw"), newlbl("Lwe")
    A(f"v_mov_b32 v{va}, {flag_off}")
    A(f"s_mov_b32 s{S_TO}, {CFG['timeout']}")
    L(l)
    if sleep:
        A(f"s_sleep {sleep}")
    A(f"ds_read_b32 v{vt}, v{va}")
    A(f"s_sub_u32 s{S_TO}, s{S_TO}, 1")
    A(f"s_cbranch_scc1 {e}")
    A("s_waitcnt lgkmcnt(0)")
    A(f"v_readfirstlane_b32 s{S_T0}, v{vt}")
    A(f"s_cmp_eq_u32 s{S_T0}, 0")
    A(f"s_cbranch_scc1 {l}")
    L(e)
    A("s_waitcnt lgkmcnt(0)")


def lds_set(flag_off, vt, va):
    A("s_waitcnt lgkmcnt(0)")
    A(f"v_mov_b32 v{va}, {flag_off}")
    A(f"v_mov_b32 v{vt}, 1")
    A(f"ds_write_b32 v{va}, v{vt}")


def lds_sync(cnt_off, n, vt, va):
    l, e = newlbl("Ls"), newlbl("Lse")
    A(f"v_mov_b32 v{va}, {cnt_off}")
    A(f"v_mov_b32 v{vt}, 1")
    A("s_mov_b64 exec, 1")
    A(f"ds_add_u32 v{va}, v{vt}")
    A("s_mov_b64 exec, -1")
    A(f"s_mov_b32 s{S_TO}, {CFG['timeout']}")
    L(l)
    A(f"ds_read_b32 v{vt}, v{va}")
    A(f"s_sub_u32 s{S_TO}, s{S_TO}, 1")
    A(f"s_cbranch_scc1 {e}")
    A("s_waitcnt lgkmcnt(0)")
    A(f"v_readfirstlane_b32 s{S_T0}, v{vt}")
    A(f"s_cmp_lt_u32 s{S_T0}, {n}")
    A(f"s_cbranch_scc1 {l}")
    L(e)
    A("s_waitcnt lgkmcnt(0)")


def tree3(op3, op2, regs, t):
    regs = list(regs)
    A(f"{op3} v{t}, v{regs[0]}, v{regs[1]}, v{regs[2]}")
    i = 3
    while i + 1 < len(regs):
        A(f"{op3} v{t}, v{t}, v{regs[i]}, v{regs[i+1]}")
        i += 2
    if i < len(regs):
        A(f"{op2} v{t}, v{t}, v{regs[i]}")


def tag(quad, tg):
    for j in range(4):
        A(f"v_add_u32 v{quad+j}, 0x200, v{quad+j}")
    for j in range(4):
        A(f"v_bfi_b32 v{quad+j}, v{V_MSK}, v{tg+j}, v{quad+j}")


def tpoll(loads, regs, t, tg):
    l, e = newlbl("Lt"), newlbl("Lte")
    regs = list(regs)
    A(f"s_mov_b32 s{S_TO}, {CFG['timeout']}")
    L(l)
    loads()
    A(f"s_sub_u32 s{S_TO}, s{S_TO}, 1")
    A(f"s_cbranch_scc1 {e}")
    A("s_waitcnt vmcnt(0)")
    for i, r in enumerate(regs):
        A(f"v_xor_b32 v{r}, v{r}, v{tg + (i & 3)}")
    tree3("v_or3_b32", "v_or_b32", regs, t)
    A(f"v_and_b32 v{t}, v{V_MSK}, v{t}")
    A(f"v_cmp_ne_u32 vcc, 0, v{t}")
    A("s_cmp_lg_u64 vcc, 0")
    A(f"s_cbranch_scc1 {l}")
    L(e)
    A("s_waitcnt vmcnt(0)")


def bf16r(dst, src):
    A(f"v_cvt_pk_bf16_f32 v{dst}, v{src}, v{src}")
    A(f"v_lshlrev_b32 v{dst}, 16, v{dst}")


def unpack(dst, src, n):
    for i in range(n):
        A(f"v_lshlrev_b32 v{dst+2*i}, 16, v{src+i}")
        A(f"v_and_b32 v{dst+2*i+1}, 0xffff0000, v{src+i}")


def pack(dst, src, n):
    for i in range(n):
        A(f"v_cvt_pk_bf16_f32 v{dst+i}, v{src+2*i}, v{src+2*i+1}")


def layernorm(xs, nb, tmp, outp):
    s = [tmp + i for i in range(nb)]
    q = [tmp + nb + i for i in range(nb)]
    t = [tmp + 2 * nb + i for i in range(nb)]
    mb = [tmp + 3 * nb + i for i in range(nb)]
    d = [tmp + 4 * nb + 8 * i for i in range(nb)]
    for i in range(nb):
        x = xs[i]
        A(f"v_add_f32 v{s[i]}, v{x}, v{x+1}")
        A(f"v_add_f32 v{t[i]}, v{x+2}, v{x+3}")
        A(f"v_add_f32 v{q[i]}, v{x+4}, v{x+5}")
        A(f"v_add_f32 v{mb[i]}, v{x+6}, v{x+7}")
        A(f"v_add_f32 v{s[i]}, v{s[i]}, v{t[i]}")
        A(f"v_add_f32 v{q[i]}, v{q[i]}, v{mb[i]}")
        A(f"v_add_f32 v{s[i]}, v{s[i]}, v{q[i]}")
    allreduce("v_add_f32", s, t)
    for i in range(nb):
        A(f"v_mul_f32 v{s[i]}, {f2u(1.0/512):#x}, v{s[i]}")
    for i in range(nb):
        x = xs[i]
        for j in range(8):
            A(f"v_sub_f32 v{d[i]+j}, v{x+j}, v{s[i]}")
        A(f"v_mul_f32 v{q[i]}, v{d[i]}, v{d[i]}")
        for j in range(1, 8):
            A(f"v_fmac_f32 v{q[i]}, v{d[i]+j}, v{d[i]+j}")
        bf16r(mb[i], s[i])
    nop(2)
    dpp_steps("v_add_f32", q, ROW_ALL)
    for i in range(nb):
        x = xs[i]
        for j in range(8):
            A(f"v_sub_f32 v{d[i]+j}, v{x+j}, v{mb[i]}")
        pack(outp[i], d[i], 4)
        unpack(d[i], outp[i], 4)
    swap_steps("v_add_f32", q, t)
    for i in range(nb):
        A(f"v_mul_f32 v{q[i]}, {f2u(1.0/512):#x}, v{q[i]}")
        bf16r(q[i], q[i])
        A(f"v_add_f32 v{q[i]}, {f2u(1e-5):#x}, v{q[i]}")
        bf16r(q[i], q[i])
        A(f"v_sqrt_f32 v{q[i]}, v{q[i]}")
        nop(1)
        bf16r(q[i], q[i])
        A(f"v_rcp_f32 v{q[i]}, v{q[i]}")
    nop(1)
    for i in range(nb):
        for j in range(8):
            A(f"v_mul_f32 v{d[i]+j}, v{d[i]+j}, v{q[i]}")
        pack(outp[i], d[i], 4)


def mfma(d, a, b, c=None):
    cc = f"v[{c}:{c+3}]" if c is not None else "0"
    A(f"v_mfma_f32_16x16x32_bf16 v[{d}:{d+3}], v[{a}:{a+3}], v[{b}:{b+3}], {cc}")


MASK_N2 = 0x0003000300030003
MASK_N4 = 0x000f000f000f000f


def set_exec(mask):
    A(f"s_mov_b32 exec_lo, {mask & 0xffffffff:#x}")
    A(f"s_mov_b32 exec_hi, {mask >> 32:#x}")


def tag_poll(sleep0, sel):
    lt, lte = newlbl(), newlbl()
    A(f"s_and_b32 s{S_T1}, s{sel}, 3")
    A(f"s_lshl_b32 s{S_T1}, s{S_T1}, 6")
    A(f"s_mov_b32 s{S_TO}, {CFG['timeout']}")
    if sleep0:
        A(f"s_sleep {sleep0}")
    L(lt)
    A(f"s_load_dwordx2 s[{S_TG}:{S_TG+1}], s[{P_DBG}:{P_DBG+1}], s{S_T1} glc")
    A(f"s_sub_u32 s{S_TO}, s{S_TO}, 1")
    A(f"s_cbranch_scc1 {lte}")
    A("s_waitcnt lgkmcnt(0)")
    A(f"s_cmp_lg_u32 s{S_TG+1}, 0")
    A(f"s_cbranch_scc1 {lte}")
    A(f"s_sleep {CFG['tsleep']}")
    A(f"s_branch {lt}")
    L(lte)
    A("s_waitcnt lgkmcnt(0)")
    A(f"v_mov_b32 v100, s{S_TG}")
    A(f"v_mov_b32 v101, s{S_TG+1}")
    A("v_and_b32 v104, 0x3ff, v100")
    A("v_bfe_u32 v105, v100, 10, 10")
    A("v_bfe_u32 v106, v100, 20, 10")
    A("v_alignbit_b32 v107, v101, v100, 30")
    A("v_and_b32 v107, 0x3ff, v107")
    A(f"v_mov_b32 v102, {L_TAG}")
    A("ds_write_b64 v102, v[100:101]")
    A("ds_write_b128 v102, v[104:107] offset:16")
    lds_set(L_FLAG, 100, 101)


XNT = ' nt' if CFG.get('xnt', 0) else ''
out.append(f"""; fused pre-LN attention(decode, sliding window) + gelu MLP, persistent kernel
; @launch grid=(256,1,1) block=(640,1,1) lds={LDS_BYTES}
.amdgcn_target "amdgcn-amd-amdhsa--gfx950"
.text
.globl {NAME}_kernel
.p2align 8
.type {NAME}_kernel,@function
{NAME}_kernel:""")

A("s_cmp_ge_u32 s2, 256")
A("s_cbranch_scc1 L_end")
A("s_load_dwordx16 s[36:51], s[0:1], 0")
A("s_load_dwordx8 s[52:59], s[0:1], 64")
A("s_load_dwordx2 s[60:61], s[0:1], 96")
A("v_lshrrev_b32 v1, 6, v0")
A("v_and_b32 v0, 63, v0")
A(f"s_and_b32 s{S_X}, s2, 7")
A(f"v_readfirstlane_b32 s{S_WAVE}, v1")
A(f"s_lshr_b32 s{S_A}, s2, 3")
A("v_lshlrev_b32 v2, 4, v0")
A("v_lshrrev_b32 v4, 4, v0")
A(f"v_mov_b32 v{V_MSK}, 0x3ff")
A("v_and_b32 v6, 15, v0")
A("v_lshrrev_b32 v8, 3, v0")
A("v_bfe_u32 v9, v0, 1, 2")
A("v_and_b32 v10, 1, v0")
A("v_lshlrev_b32 v11, 5, v8")
A("v_lshl_add_u32 v11, v10, 4, v11")
if CFG["stamps"]:
    A(f"v_mov_b32 v{V_ST}, 0")
A(f"s_cmp_lg_u32 s{S_WAVE}, 9")
A("s_cbranch_scc1 L_nz")
C("wave 9 zeroes the LDS flags")
for j in range(4):
    A(f"v_mov_b32 v{12+j}, 0")
A(f"v_mov_b32 v3, {L_FLAG}")
A("ds_write_b128 v3, v[12:15]")
A(f"ds_write_b128 v3, v[12:15] offset:{L_FL2 - L_FLAG}")
L("L_nz")
A("s_waitcnt lgkmcnt(0)")
srd(SRD_WS, P_WS, WS_SIZE)
if CFG["stamps"] == 2:
    A(f"v_mov_b32 v166, s{P_DBG}")
    A(f"v_mov_b32 v167, s{P_DBG+1}")
stamp(0)
A(f"s_cmp_lt_u32 s{S_A}, 16")
A("s_cbranch_scc1 L_GV")

V_K = 16
V_Q = 48
V_S = 64
V_SM = 72
V_PNA = 80
V_T = 84
V_TG = 124
V_G = 128

A(f"s_sub_u32 s{S_A}, s{S_A}, 16")
A(f"s_lshr_b32 s{S_B}, s{S_A}, 3")
C("PN record offsets")
A(f"s_lshl_b32 s{S_T0}, s{S_X}, 4")
A(f"s_add_u32 s{S_T0}, s{S_T0}, s{S_A}")
A(f"s_mul_i32 s{S_T0}, s{S_T0}, {RECP}")
A(f"s_add_u32 s{S_PNA}, s{S_T0}, {WS_PNA}")
A(f"s_add_u32 s{S_PNB}, s{S_T0}, {WS_PNB}")
srd(SRD_C, P_OUT, 2048)
A(f"s_cmp_ge_u32 s{S_WAVE}, 8")
A("s_cbranch_scc1 L_ldr")
A(f"s_lshl_b32 s{S_T1}, s{S_WAVE}, 8")
A(f"s_add_u32 s{S_PNA}, s{S_PNA}, s{S_T1}")
A(f"s_add_u32 s{S_PNB}, s{S_PNB}, s{S_T1}")
A(f"v_lshlrev_b32 v{V_PNA}, 6, v6")
A(f"v_lshl_add_u32 v{V_PNA}, v4, 4, v{V_PNA}")
C("G role: even a -> gi = x*8 + a/2 (wave 0)")
A(f"s_lshl_b32 s{S_T0}, s{S_X}, 3")
A(f"s_lshr_b32 s{S_T1}, s{S_A}, 1")
A(f"s_add_u32 s{S_SUB}, s{S_T0}, s{S_T1}")
A(f"s_and_b32 s{S_ROLE}, s{S_A}, 1")
A(f"s_or_b32 s{S_ROLE}, s{S_ROLE}, s{S_WAVE}")
A(f"s_cmp_lg_u32 s{S_ROLE}, 0")
A("s_cbranch_scc1 L_nogsm")
srd(SRD_B, P_X, 2048)
A(f"v_and_b32 v{V_T}, 3, v0")
A(f"v_lshlrev_b32 v{V_T}, 3, v{V_T}")
A(f"s_lshl_b32 s{S_T0}, s{S_SUB}, 5")
A(f"buffer_load_dwordx2 v[{V_SM}:{V_SM+1}], v{V_T}, {SB}, s{S_T0} offen{XNT}")
srd(SRD_B, P_B2, 1024)
A(f"s_and_b32 s{S_T0}, s{S_T0}, 1023")
A(f"buffer_load_dwordx2 v[{V_SM+2}:{V_SM+3}], v{V_T}, {SB}, s{S_T0} offen{XNT}")
L("L_nogsm")
A("s_barrier")
C("pre-touch this wave's q lines so that they are resident at the memory side")
A(f"s_lshl_b32 s{S_T1}, s{S_X}, 12")
A(f"s_lshl_b32 s{S_T2}, s{S_B}, 11")
A(f"s_add_u32 s{S_T1}, s{S_T1}, s{S_T2}")
A(f"s_lshl_b32 s{S_T2}, s{S_WAVE}, 8")
A(f"s_add_u32 s{S_T1}, s{S_T1}, s{S_T2}")
A(f"s_add_u32 s{S_T2}, s{SRD_WS}, s{S_T1}")
A(f"s_addc_u32 s{S_T3}, s{SRD_WS+1}, 0")
if CFG["touch"]:
    for i in range(4):
        A(f"s_load_dword s{64+i}, s[{S_T2}:{S_T3}], {WS_Q + 64*i} glc")
C("K fragment addresses: K + w*8192 + m*256 + ((4k+g)^m)*16")
KA = V_T + 36
A(f"s_lshl_b32 s{S_T0}, s{S_WAVE}, 13")
A(f"s_add_u32 s{S_T0}, s{S_T0}, {L_K}")
for kp in range(4):
    A(f"v_add_u32 v{KA+kp}, {4*kp}, v4")
    A(f"v_xor_b32 v{KA+kp}, v{KA+kp}, v6")
    A(f"v_lshlrev_b32 v{KA+kp}, 4, v{KA+kp}")
    A(f"v_lshl_add_u32 v{KA+kp}, v6, 8, v{KA+kp}")
    A(f"v_add_u32 v{KA+kp}, s{S_T0}, v{KA+kp}")
A(f"s_cmp_lg_u32 s{S_WAVE}, 7")
A("s_cbranch_scc1 L_ntp")
tag_poll(CFG["tsleepa"], S_A)
L("L_ntp")
lds_wait(L_FLAG, V_T + 2, V_T + 3)
A(f"v_mov_b32 v{V_T}, 0")
A(f"ds_read_b64 v[{V_T+2}:{V_T+3}], v{V_T} offset:{L_TAG}")
A(f"ds_read_b128 v[{V_TG}:{V_TG+3}], v{V_T} offset:{L_TAG + 16}")
A("s_waitcnt lgkmcnt(0)")
A(f"v_readfirstlane_b32 s{S_TG}, v{V_T+2}")
A(f"v_readfirstlane_b32 s{S_TG+1}, v{V_T+3}")
stamp(1)
S2 = V_T + 4
PK = V_T + 12
MM = V_T + 16
TT = V_T + 20
EX = V_T + 24
QA = V_T + 1
A(f"s_lshl_b32 s{S_T0}, s{S_WAVE}, 7")
A(f"v_lshl_add_u32 v{QA}, v0, 2, s{S_T0}")
A(f"v_and_b32 v{V_T+2}, 3, v0")
A(f"v_lshlrev_b32 v{V_T+3}, 8, v{V_T+2}")
A(f"v_lshl_add_u32 v{V_T+3}, v4, 4, v{V_T+3}")
A(f"s_lshl_b32 s{S_T0}, s{S_WAVE}, 2")
A(f"v_lshl_add_u32 v{TT+2}, v0, 5, s{S_T0}")
A(f"v_lshlrev_b32 v{TT+3}, 5, v{V_T+2}")
C("---- scalar gather of q: this wave's 256 bytes (16 granules {d0,d1,T0,T1})")
lq, lqe = newlbl("Lq"), newlbl("Lqe")
stamp(12)
A(f"s_mov_b32 s{S_TO}, {CFG['timeout']}")
L(lq)
for i in range(4):
    A(f"s_load_dwordx16 s[{S_Q+16*i}:{S_Q+16*i+15}], s[{S_T2}:{S_T3}], {WS_Q + 64*i} glc")
A(f"s_sub_u32 s{S_TO}, s{S_TO}, 1")
A(f"s_cbranch_scc1 {lqe}")
A("s_waitcnt lgkmcnt(0)")
A(f"s_and_b64 s[{S_T4}:{S_T5}], s[{S_Q+2}:{S_Q+3}], s[{S_Q+6}:{S_Q+7}]")
A(f"s_or_b64 s[{S_T0}:{S_T1}], s[{S_Q+2}:{S_Q+3}], s[{S_Q+6}:{S_Q+7}]")
for gq in range(2, 16):
    A(f"s_and_b64 s[{S_T4}:{S_T5}], s[{S_T4}:{S_T5}], s[{S_Q+4*gq+2}:{S_Q+4*gq+3}]")
    A(f"s_or_b64 s[{S_T0}:{S_T1}], s[{S_T0}:{S_T1}], s[{S_Q+4*gq+2}:{S_Q+4*gq+3}]")
A(f"s_xor_b64 s[{S_T4}:{S_T5}], s[{S_T4}:{S_T5}], s[{S_TG}:{S_TG+1}]")
A(f"s_xor_b64 s[{S_T0}:{S_T1}], s[{S_T0}:{S_T1}], s[{S_TG}:{S_TG+1}]")
A(f"s_or_b64 s[{S_T4}:{S_T5}], s[{S_T4}:{S_T5}], s[{S_T0}:{S_T1}]")
A(f"s_cbranch_scc1 {lq}")
L(lqe)
A("s_waitcnt lgkmcnt(0)")
stamp(8)
if CFG["stamps"] == 1:
    A(f"s_sub_u32 s0, {CFG['timeout']}, s{S_TO}")
    A(f"v_writelane_b32 v{V_ST}, s0, 9")
for gq in range(16):
    A(f"v_writelane_b32 v{V_T}, s{S_Q+4*gq}, {2*gq}")
    A(f"v_writelane_b32 v{V_T}, s{S_Q+4*gq+1}, {2*gq+1}")
A("s_mov_b32 exec_hi, 0")
A(f"ds_write_b32 v{QA}, v{V_T} offset:{L_QL}")
A("s_mov_b32 exec_hi, -1")
C("K fragments as soon as K landed")
lds_wait(L_FLAG + 4, V_T, TT, sleep=1)
for kp in range(4):
    for tt in range(2):
        r = V_K + (tt * 4 + kp) * 4
        A(f"ds_read_b128 v[{r}:{r+3}], v{KA+kp} offset:{tt*4096}")
C("poll the q operand itself (LDS sentinel)")
l1, l1e = newlbl("Lqo"), newlbl("Lqoe")
A(f"s_mov_b32 s{S_TO}, {CFG['timeout']}")
L(l1)
for kp in range(4):
    A(f"ds_read_b128 v[{V_Q+4*kp}:{V_Q+4*kp+3}], v{V_T+3} offset:{L_QL + kp*64}")
A(f"s_sub_u32 s{S_TO}, s{S_TO}, 1")
A(f"s_cbranch_scc1 {l1e}")
A("s_waitcnt lgkmcnt(0)")
tree3("v_max3_u32", "v_max_u32", range(V_Q, V_Q + 16), TT)
A(f"v_cmp_eq_u32 vcc, -1, v{TT}")
A("s_cmp_lg_u64 vcc, 0")
A(f"s_cbranch_scc1 {l1}")
L(l1e)
A("s_waitcnt lgkmcnt(0)")
for kp in range(4):
    for tt in range(2):
        mfma(V_S + 4 * tt, V_K + (tt * 4 + kp) * 4, V_Q + 4 * kp, None if kp == 0 else V_S + 4 * tt)
stamp(2)
A(f"s_mov_b32 s{S_T0}, {f2u(SCALE):#x}")
A(f"s_mov_b32 s{S_T1}, {f2u(LOG2E):#x}")
nop(6)
pack(PK, V_S, 4)
unpack(S2, PK, 4)
for j in range(8):
    A(f"v_mul_f32 v{S2+j}, s{S_T0}, v{S2+j}")
pack(PK, S2, 4)
unpack(S2, PK, 4)
A(f"v_max3_f32 v{MM}, v{S2}, v{S2+1}, v{S2+2}")
A(f"v_max3_f32 v{MM}, v{MM}, v{S2+3}, v{S2+4}")
A(f"v_max3_f32 v{MM}, v{MM}, v{S2+5}, v{S2+6}")
A(f"v_max_f32 v{MM}, v{MM}, v{S2+7}")
swap_steps("v_max_f32", [MM], [TT])
A("s_mov_b64 exec, 15")
A(f"ds_write_b32 v{TT+2}, v{MM} offset:{L_MX}")
A("s_mov_b64 exec, -1")
for j in range(8):
    A(f"v_mul_f32 v{S2+j}, s{S_T1}, v{S2+j}")
l2, l2e = newlbl("Lmx"), newlbl("Lmxe")
A(f"s_mov_b32 s{S_TO}, {CFG['timeout']}")
L(l2)
A(f"ds_read_b128 v[{EX}:{EX+3}], v{TT+3} offset:{L_MX}")
A(f"ds_read_b128 v[{EX+4}:{EX+7}], v{TT+3} offset:{L_MX + 16}")
A(f"s_sub_u32 s{S_TO}, s{S_TO}, 1")
A(f"s_cbranch_scc1 {l2e}")
A("s_waitcnt lgkmcnt(0)")
tree3("v_max3_u32", "v_max_u32", range(EX, EX + 8), TT)
tree3("v_max3_f32", "v_max_f32", range(EX, EX + 8), MM)
A(f"v_cmp_eq_u32 vcc, -1, v{TT}")
A("s_cmp_lg_u64 vcc, 0")
A(f"s_cbranch_scc1 {l2}")
L(l2e)
A("s_waitcnt lgkmcnt(0)")
A(f"v_mul_f32 v{MM}, s{S_T1}, v{MM}")
for j in range(8):
    A(f"v_sub_f32 v{EX+j}, v{S2+j}, v{MM}")
for j in range(8):
    A(f"v_exp_f32 v{EX+j}, v{EX+j}")
A(f"s_lshl_b32 s{S_T0}, s{S_WAVE}, 10")
A(f"v_add_u32 v{TT}, s{S_T0}, v2")
pack(PK, EX, 4)
A(f"ds_write_b128 v{TT}, v[{PK}:{PK+3}] offset:{L_SC}")
A(f"v_add_f32 v{MM+1}, v{EX}, v{EX+1}")
A(f"v_add_f32 v{TT}, v{EX+2}, v{EX+3}")
A(f"v_add_f32 v{TT+1}, v{EX+4}, v{EX+5}")
A(f"v_add_f32 v{EX}, v{EX+6}, v{EX+7}")
A(f"v_add_f32 v{MM+1}, v{MM+1}, v{TT}")
A(f"v_add_f32 v{EX}, v{EX}, v{TT+1}")
A(f"v_add_f32 v{MM+1}, v{MM+1}, v{EX}")
swap_steps("v_add_f32", [MM + 1], [TT])
A("s_mov_b64 exec, 15")
A(f"ds_write_b32 v{TT+2}, v{MM+1} offset:{L_LS}")
A("s_mov_b64 exec, -1")
stamp(3)
VA0, VA1, VB0, VB1 = V_T + 32, V_T + 33, V_T + 34, V_T + 35


def vw2_addr():
    A(f"v_lshlrev_b32 v{VA0}, 10, v4")
    A(f"v_lshl_add_u32 v{VA0}, v6, 3, v{VA0}")
    A(f"v_and_b32 v{VA1}, 1, v4")
    A(f"v_lshl_add_u32 v{VA0}, v{VA1}, 7, v{VA0}")
    A(f"v_xor_b32 v{VA1}, 128, v{VA0}")


vw2_addr()
A(f"s_lshl_b32 s{S_T0}, s{S_WAVE}, 8")
A(f"s_add_u32 s{S_T0}, s{S_T0}, {L_V}")
A(f"v_add_u32 v{VB0}, s{S_T0}, v{VA0}")
A(f"v_add_u32 v{VB1}, s{S_T0}, v{VA1}")
A("s_waitcnt lgkmcnt(0)")
A("s_barrier")
stamp(5)
A(f"s_cmp_gt_u32 s{S_WAVE}, 4")
A("s_cbranch_scc1 L_exit")
A(f"s_cmp_lt_u32 s{S_WAVE}, 4")
A("s_cbranch_scc1 L_pv")
C("---- wave 4: publish stats {m,l,T0,T1} per head (lanes 0..3)")
A(f"ds_read_b128 v[{EX}:{EX+3}], v{TT+3} offset:{L_LS}")
A(f"ds_read_b128 v[{EX+4}:{EX+7}], v{TT+3} offset:{L_LS + 16}")
A(f"v_mov_b32 v{MM+2}, s{S_TG}")
A(f"v_mov_b32 v{MM+3}, s{S_TG+1}")
A("s_waitcnt lgkmcnt(0)")
for j in range(4):
    A(f"v_add_f32 v{EX+j}, v{EX+j}, v{EX+4+j}")
A(f"v_add_f32 v{EX}, v{EX}, v{EX+1}")
A(f"v_add_f32 v{EX+2}, v{EX+2}, v{EX+3}")
A(f"v_add_f32 v{MM+1}, v{EX}, v{EX+2}")
A("s_mov_b64 exec, 15")
if CFG["dual"]:
    A(f"buffer_store_dwordx4 v[{MM}:{MM+3}], v2, {WS}, s{S_PNA} offen")
A(f"buffer_store_dwordx4 v[{MM}:{MM+3}], v2, {WS}, s{S_PNB} offen sc1")
A("s_branch L_exit")
L("L_pv")
C("---- PV (waves 0..3, 32 dims each, 8 k-steps)")
PB = V_G
VF = V_K


def pv_reads(t):
    A(f"ds_read_b128 v[{PB+4*t}:{PB+4*t+3}], v2 offset:{L_SC + t*1024}")
    for c2 in range(2):
        for h in range(2):
            r = VF + ((t % 6) * 2 + c2) * 4 + 2 * h
            A(f"ds_read_b64_tr_b16 v[{r}:{r+1}], v{VB0 + c2} offset:{t*8192 + h*4096}")


for t in range(3):
    pv_reads(t)
for t in range(8):
    A(f"s_waitcnt lgkmcnt({min(2, 7 - t)*5})")
    for c2 in range(2):
        mfma(V_S + 4 * c2, VF + ((t % 6) * 2 + c2) * 4, PB + 4 * t, None if t == 0 else V_S + 4 * c2)
    if t + 3 < 8:
        pv_reads(t + 3)
nop(7)
pack(PK, V_S, 4)
set_exec(MASK_N4)
if CFG["dual"]:
    A(f"buffer_store_dwordx4 v[{PK}:{PK+3}], v{V_PNA}, {WS}, s{S_PNA} offen")
A(f"buffer_store_dwordx4 v[{PK}:{PK+3}], v{V_PNA}, {WS}, s{S_PNB} offen sc1")
A("s_mov_b64 exec, -1")
stamp(6)
A(f"s_cmp_lg_u32 s{S_ROLE}, 0")
A("s_cbranch_scc1 L_exit")

C("==== G: final reduce of 16 outputs (16gi..16gi+15)")
A(f"s_lshl_b32 s{S_T2}, s{S_SUB}, 6")
A(f"s_add_u32 s{S_T3}, s{S_T2}, {WS_AP}")
A(f"s_add_u32 s{S_T2}, s{S_T2}, {WS_Y}")
A(f"v_lshrrev_b32 v{TT+2}, 2, v0")
A(f"v_and_b32 v{TT+3}, 3, v0")
A(f"v_lshlrev_b32 v{TT}, 12, v{TT+2}")
A(f"v_lshl_add_u32 v{TT}, v{TT+3}, 4, v{TT}")
A(f"s_movk_i32 s{S_T0}, {YP}")
A(f"v_mul_lo_u32 v{TT+2}, v{TT+2}, s{S_T0}")
A(f"v_lshl_add_u32 v{TT+2}, v{TT+3}, 4, v{TT+2}")
for i in range(1, 4):
    A(f"s_add_u32 s{40+i}, s{S_T2}, {16*i*YP}")
GA = V_G
A("s_mov_b32 exec_hi, 0")


def g1_loads():
    A(f"buffer_load_dwordx4 v[{GA}:{GA+3}], v{TT}, {WS}, s{S_T3} offen sc1")


tpoll(g1_loads, range(GA, GA + 4), V_T, V_TG)
A("s_mov_b64 exec, -1")
stamp(7)
nop(1)
dpp_steps("v_add_f32", [GA + j for j in range(4)], ROW_HI)
swap_steps("v_add_f32", [GA + j for j in range(4)], [GA + 4 + j for j in range(4)], which=(16,))
GH = V_G + 8
GP = V_G + 16
GB = V_G + 20
pack(GP, GA, 2)
unpack(GA, GP, 2)
unpack(GH, V_SM, 2)
for j in range(4):
    A(f"v_add_f32 v{GH+j}, v{GH+j}, v{GA+j}")
pack(GP, GH, 2)
unpack(GH, GP, 2)
unpack(GB, V_SM + 2, 2)
GY = V_K


def g2_loads():
    for j in range(4):
        A(f"v_mov_b32 v{GY+12+j}, v{V_TG+j}")
    A(f"buffer_load_dwordx4 v[{GY}:{GY+3}], v{TT+2}, {WS}, s{S_T2} offen sc1")
    A(f"buffer_load_dwordx4 v[{GY+4}:{GY+7}], v{TT+2}, {WS}, s41 offen sc1")
    A(f"buffer_load_dwordx4 v[{GY+8}:{GY+11}], v{TT+2}, {WS}, s42 offen sc1")
    A("s_mov_b32 exec_hi, 0")
    A(f"buffer_load_dwordx4 v[{GY+12}:{GY+15}], v{TT+2}, {WS}, s43 offen sc1")
    A("s_mov_b32 exec_hi, -1")


tpoll(g2_loads, range(GY, GY + 16), V_T, V_TG)
stamp(10)
for j in range(4):
    A(f"v_add_f32 v{GY+j}, v{GY+j}, v{GY+4+j}")
    A(f"v_add_f32 v{GY+8+j}, v{GY+8+j}, v{GY+12+j}")
for j in range(4):
    A(f"v_add_f32 v{GY+j}, v{GY+j}, v{GY+8+j}")
dpp_steps("v_add_f32", [GY + j for j in range(4)], ROW_HI)
swap_steps("v_add_f32", [GY + j for j in range(4)], [GY + 4 + j for j in range(4)])
pack(GP, GY, 2)
unpack(GY, GP, 2)
for j in range(4):
    A(f"v_add_f32 v{GY+j}, v{GY+j}, v{GB+j}")
pack(GP, GY, 2)
unpack(GY, GP, 2)
for j in range(4):
    A(f"v_add_f32 v{GY+j}, v{GY+j}, v{GH+j}")
pack(GP, GY, 2)
A(f"s_lshl_b32 s{S_T2}, s{S_SUB}, 5")
A("v_lshlrev_b32 v3, 3, v0")
A("s_mov_b64 exec, 15")
A(f"buffer_store_dwordx2 v[{GP}:{GP+1}], v3, {SC_}, s{S_T2} offen")
stamp(11)
A("s_branch L_exit")

L("L_ldr")
C("kv byte offset: ((b*8+x)*8192 + 6144 + 256 s)*256")
A(f"s_lshl_b32 s{S_T0}, s{S_B}, 3")
A(f"s_add_u32 s{S_T0}, s{S_T0}, s{S_X}")
A(f"s_lshl_b32 s{S_T0}, s{S_T0}, 5")
A(f"s_and_b32 s{S_T1}, s{S_A}, 7")
A(f"s_add_u32 s{S_T0}, s{S_T0}, s{S_T1}")
A(f"s_add_u32 s{S_T0}, s{S_T0}, 24")
A(f"s_lshl_b32 s{S_T3}, s{S_T0}, 16")
A(f"s_mov_b32 s{S_T2}, 0")
A(f"s_cmp_eq_u32 s{S_WAVE}, 9")
A("s_cbranch_scc1 L_ldv")
srd(SRD_A, P_K, 0x2000000)
for j in range(4):
    A(f"v_mov_b32 v{16+j}, -1")
A(f"ds_write_b128 v2, v[16:19] offset:{L_QL}")
A("s_mov_b64 exec, 0xff")
A(f"ds_write_b128 v2, v[16:19] offset:{L_MX}")
A("s_mov_b64 exec, -1")
C("K DMA lane offsets: r4=l>>4, p=l&15: r4*256 + ((p ^ (4i+r4))*16)")
for i in range(4):
    A(f"v_add_u32 v{12+i}, {4*i}, v4")
    A(f"v_xor_b32 v{12+i}, v{12+i}, v6")
    A(f"v_lshlrev_b32 v{12+i}, 4, v{12+i}")
    A(f"v_lshl_add_u32 v{12+i}, v4, 8, v{12+i}")
A(f"s_mov_b32 s{S_T1}, {L_K}")
L("L_ldk1")
A(f"s_mov_b32 m0, s{S_T1}")
A(f"s_add_u32 s{S_T1}, s{S_T1}, 4096")
for i in range(4):
    A(f"buffer_load_dwordx4 v{12+i}, {SA}, s{S_T3} offen offset:{i*1024}{NT} lds")
A(f"s_add_u32 s{S_T3}, s{S_T3}, 4096")
A(f"s_add_u32 s{S_T2}, s{S_T2}, 1")
A(f"s_cmp_eq_u32 s{S_T2}, 1")
A("s_cbranch_scc0 L_ldk2")
A("s_waitcnt lgkmcnt(0)")
A("s_barrier")
L("L_ldk2")
A(f"s_cmp_lt_u32 s{S_T2}, 16")
A("s_cbranch_scc1 L_ldk1")
lds_set(L_FL2, 16, 17)
stamp(1)
A("s_waitcnt vmcnt(0)")
stamp(4)
lds_set(L_FLAG + 4, 16, 17)
A("s_waitcnt lgkmcnt(0)")
A("s_branch L_exit")
L("L_ldv")
srd(SRD_B, P_V, 0x2000000)
A("v_lshl_add_u32 v12, v9, 8, v11")
A("v_xor_b32 v13, 32, v12")
for j in range(4):
    A(f"v_mov_b32 v{16+j}, -1")
A("s_barrier")
A(f"buffer_store_dwordx4 v[16:19], v2, {WS}, s{S_PNA} offen sc1")
A(f"buffer_store_dwordx4 v[16:19], v2, {WS}, s{S_PNB} offen sc1")
lds_wait(L_FL2, 20, 21)
A(f"s_mov_b32 s{S_T1}, {L_V}")
L("L_ldv1")
A(f"s_mov_b32 m0, s{S_T1}")
A(f"s_add_u32 s{S_T1}, s{S_T1}, 4096")
for be in range(4):
    A(f"buffer_load_dwordx4 v{12 + (be & 1)}, {SB}, s{S_T3} offen offset:{be*1024}{NT} lds")
A(f"s_add_u32 s{S_T3}, s{S_T3}, 4096")
A(f"s_add_u32 s{S_T2}, s{S_T2}, 1")
A(f"s_cmp_lt_u32 s{S_T2}, 16")
A("s_cbranch_scc1 L_ldv1")
stamp(1)
A("s_waitcnt vmcnt(0)")
stamp(4)
A("s_barrier")
A("s_branch L_exit")

L("L_GV")
A("s_or_b32 s24, s2, s3")
A("s_cmp_lg_u32 s24, 0")
A("s_cbranch_scc1 L_gv0")
C("workgroup 0 wave 0 publishes the launch tag (4 replicas)")
srd(SRD_C, P_DBG, 256)
A("s_memrealtime s[24:25]")
A("s_waitcnt lgkmcnt(0)")
A("s_or_b32 s25, s25, 0x80000000")
A("v_mov_b32 v14, s24")
A("v_mov_b32 v15, s25")
A("v_lshlrev_b32 v12, 6, v0")
A("s_mov_b64 exec, 15")
A(f"buffer_store_dwordx2 v[14:15], v12, {SC_}, 0 offen sc1")
A("s_mov_b64 exec, -1")
L("L_gv0")
A(f"s_mul_i32 s{S_SUB}, s{S_X}, 7")
A(f"s_add_u32 s{S_SUB}, s{S_SUB}, s{S_A}")
A(f"s_sub_u32 s{S_SUB}, s{S_SUB}, 8")
A(f"s_mov_b32 s{S_ROLE}, 2")
A(f"s_cmp_lt_u32 s{S_A}, 8")
A(f"s_cselect_b32 s{S_ROLE}, 1, s{S_ROLE}")
A(f"s_cselect_b32 s{S_SUB}, s{S_A}, s{S_SUB}")
A(f"s_cmp_eq_u32 s{S_A}, 15")
A(f"s_cselect_b32 s{S_ROLE}, 0, s{S_ROLE}")
A(f"s_cmp_ge_u32 s{S_WAVE}, 8")
A("s_cbranch_scc1 L_gld")
A(f"s_cmp_eq_u32 s{S_WAVE}, 6")
A("s_cbranch_scc1 L_qc")
A("s_barrier")
A(f"s_cmp_lg_u32 s{S_WAVE}, 7")
A("s_cbranch_scc1 L_gv2")
tag_poll(CFG["tsleep0"], S_A)
stamp(5)
A("s_branch L_qm2")
L("L_gv2")
A("s_branch L_qm2")

C("---- GEMV loaders (waves 8,9)")
L("L_gld")
A(f"s_and_b32 s{S_T5}, s{S_WAVE}, 1")
C("WX style lane offsets: ct=l>>5, p=(l>>1)&15 (row), half")
A("v_bfe_u32 v3, v0, 1, 4")
A("v_lshrrev_b32 v12, 5, v0")
A("v_lshlrev_b32 v12, 5, v12")
A("v_lshl_add_u32 v12, v10, 4, v12")
A("s_barrier")
A(f"s_cmp_eq_u32 s{S_ROLE}, 0")
A("s_cbranch_scc1 L_exit")
A(f"s_cmp_eq_u32 s{S_ROLE}, 2")
A("s_cbranch_scc1 L_gld2")
C("wo tile: 512 rows x 128 B; loader i: rows 256i.. (32 instrs of 8 rows)")
srd(SRD_C, P_WO, 0x400000)
A("v_bfe_u32 v3, v0, 1, 3")
A("v_lshlrev_b32 v3, 10, v3")
A("v_lshl_add_u32 v3, v4, 5, v3")
A("v_lshl_add_u32 v3, v10, 4, v3")
A(f"s_lshl_b32 s{S_T3}, s{S_X}, 19")
A(f"s_lshl_b32 s{S_T1}, s{S_T5}, 18")
A(f"s_add_u32 s{S_T3}, s{S_T3}, s{S_T1}")
A(f"s_lshl_b32 s{S_T1}, s{S_SUB}, 7")
A(f"s_add_u32 s{S_T3}, s{S_T3}, s{S_T1}")
A(f"s_lshl_b32 s{S_T4}, s{S_T5}, 15")
A(f"s_add_u32 s{S_T4}, s{S_T4}, {L_WO}")
lds_wait(L_FLAG + 8, 16, 17, sleep=2)
A(f"s_mov_b32 s{S_T2}, 0")
L("L_gld1")
for i in range(4):
    A(f"s_mov_b32 m0, s{S_T4}")
    A(f"s_add_u32 s{S_T4}, s{S_T4}, 1024")
    A(f"buffer_load_dwordx4 v3, {SC_}, s{S_T3} offen{NT} lds")
    A(f"s_add_u32 s{S_T3}, s{S_T3}, 8192")
A(f"s_add_u32 s{S_T2}, s{S_T2}, 1")
A(f"s_cmp_lt_u32 s{S_T2}, 8")
A("s_cbranch_scc1 L_gld1")
A("s_branch L_gld5")
L("L_gld2")
A(f"s_cmp_eq_u32 s{S_T5}, 1")
A("s_cbranch_scc1 L_gld3")
srd(SRD_C, P_W1, 512 * 3584)
A(f"s_lshl_b32 s{S_T3}, s{S_SUB}, 6")
A(f"s_movk_i32 s{S_T1}, 3584")
A(f"v_mul_lo_u32 v13, v3, s{S_T1}")
A("v_add_u32 v13, v13, v12")
lds_wait(L_FLAG + 8, 16, 17, sleep=2)
A(f"s_mov_b32 s{S_T1}, {L_WX}")
A(f"s_mov_b32 s{S_T2}, 0")
L("L_gld4")
for i in range(4):
    A(f"s_mov_b32 m0, s{S_T1}")
    A(f"s_add_u32 s{S_T1}, s{S_T1}, 1024")
    A(f"buffer_load_dwordx4 v13, {SC_}, s{S_T3} offen{NT} lds")
    A(f"s_add_u32 s{S_T3}, s{S_T3}, {16*3584}")
if CFG["mwin"]:
    A(f"s_waitcnt vmcnt({CFG['mwin']})")
A(f"s_add_u32 s{S_T2}, s{S_T2}, 1")
A(f"s_cmp_lt_u32 s{S_T2}, 8")
A("s_cbranch_scc1 L_gld4")
A("s_branch L_gld5")
L("L_gld3")
srd(SRD_C, P_W2, 1792 * 1024)
A("v_lshl_add_u32 v14, v9, 10, v11")
A("v_xor_b32 v15, 32, v14")
A(f"s_lshl_b32 s{S_T3}, s{S_SUB}, 15")
lds_wait(L_FLAG + 8, 16, 17, sleep=2)
A(f"s_mov_b32 s{S_T1}, {L_W2}")
A(f"s_mov_b32 s{S_T2}, 0")
L("L_gld6")
for be in range(8):
    A(f"s_mov_b32 m0, s{S_T1}")
    A(f"s_add_u32 s{S_T1}, s{S_T1}, 1024")
    A(f"s_add_u32 s{S_T4}, s{S_T3}, {be*4096}")
    A(f"buffer_load_dwordx4 v{14 + (be & 1)}, {SC_}, s{S_T4} offen{NT} lds")
    if CFG["mwin"] and be % 4 == 3:
        A(f"s_waitcnt vmcnt({CFG['mwin']})")
A(f"s_add_u32 s{S_T3}, s{S_T3}, 256")
A(f"s_add_u32 s{S_T2}, s{S_T2}, 1")
A(f"s_cmp_lt_u32 s{S_T2}, 4")
A("s_cbranch_scc1 L_gld6")
L("L_gld5")
A("s_waitcnt vmcnt(0)")
stamp(4)
A("s_barrier")
A("s_branch L_exit")

C("---- q projection: wave 6 loads and computes everything")
L("L_qc")
srd(SRD_A, P_X, 2048)
A(f"buffer_load_dwordx4 v[16:19], v2, {SA}, 0 offen")
A(f"buffer_load_dwordx4 v[20:23], v2, {SA}, 0 offen offset:1024")
if CFG["touch"]:
    A(f"s_lshl_b32 s{S_T1}, s{S_X}, 4")
    A(f"s_add_u32 s{S_T1}, s{S_T1}, s{S_A}")
    A(f"s_lshl_b32 s{S_T1}, s{S_T1}, 9")
    A(f"s_add_u32 s{S_T1}, s{S_T1}, {WS_XQA}")
    A("s_mov_b32 exec_hi, 0")
    A(f"buffer_load_dwordx4 v[72:75], v2, {WS}, s{S_T1} offen sc1")
    A("s_mov_b32 exec_hi, -1")
srd(SRD_B, P_WQ, 0x400000)
A("v_bfe_u32 v13, v0, 1, 3")
A("v_lshlrev_b32 v13, 13, v13")
A("v_lshl_add_u32 v13, v4, 5, v13")
A("v_lshl_add_u32 v13, v10, 4, v13")
A(f"s_and_b32 s{S_B}, s{S_A}, 1")
A(f"s_lshl_b32 s{S_T0}, s{S_B}, 21")
A(f"s_lshl_b32 s{S_T1}, s{S_X}, 10")
A(f"s_add_u32 s{S_T0}, s{S_T0}, s{S_T1}")
A(f"s_lshr_b32 s{S_T1}, s{S_A}, 1")
A(f"s_lshl_b32 s{S_T1}, s{S_T1}, 7")
A(f"s_add_u32 s{S_T0}, s{S_T0}, s{S_T1}")
for i in range(32):
    A(f"s_mov_b32 m0, {L_WQ + i*1024}")
    A(f"s_add_u32 s{S_T1}, s{S_T0}, {i*0x10000}")
    A(f"buffer_load_dwordx4 v13, {SB}, s{S_T1} offen{NT} lds")
A("s_barrier")
A("v_lshrrev_b32 v12, 2, v0")
A("v_lshlrev_b32 v12, 6, v12")
A("v_lshl_add_u32 v12, v10, 5, v12")
A("v_bfe_u32 v13, v0, 1, 1")
A("v_lshl_add_u32 v12, v13, 3, v12")
A("v_lshlrev_b32 v13, 10, v10")
A("v_lshl_add_u32 v13, v4, 4, v13")
A(f"s_lshl_b32 s{S_T1}, s{S_B}, 9")
A(f"v_add_u32 v13, s{S_T1}, v13")
A("v_lshrrev_b32 v14, 5, v0")
A("v_lshlrev_b32 v14, 10, v14")
A("v_and_b32 v15, 31, v0")
A("v_lshl_add_u32 v14, v15, 3, v14")
C("exchange lane map: n=l&15<8: b=n&1, half2=(n>>1)&1, cs=(n>>2)&1 ; XQ off = cs*256 + b*128 + g*32 + half2*16")
A("v_bfe_u32 v70, v0, 2, 1")
A("v_lshlrev_b32 v69, 6, v70")
A("v_lshl_add_u32 v69, v4, 4, v69")
A("v_lshl_add_u32 v69, v10, 11, v69")
A("v_lshlrev_b32 v70, 8, v70")
A("v_lshl_add_u32 v70, v10, 7, v70")
A("v_lshl_add_u32 v70, v4, 5, v70")
A("v_bfe_u32 v15, v0, 1, 1")
A("v_lshl_add_u32 v70, v15, 4, v70")
A(f"s_lshl_b32 s{S_T5}, s{S_X}, 12")
A(f"s_lshl_b32 s{S_T1}, s{S_A}, 7")
A(f"s_add_u32 s{S_T5}, s{S_T5}, s{S_T1}")
A(f"s_lshl_b32 s{S_T1}, s{S_X}, 4")
A(f"s_add_u32 s{S_T1}, s{S_T1}, s{S_A}")
A(f"s_lshl_b32 s62, s{S_T1}, 9")
A(f"s_xor_b32 s63, s62, 512")
A(f"s_add_u32 s64, s62, {WS_XQB}")
A(f"s_add_u32 s62, s62, {WS_XQA}")
A(f"s_add_u32 s65, s63, {WS_XQB}")
A(f"s_add_u32 s63, s63, {WS_XQA}")
A("s_mov_b32 s66, 0xcccccccc")
A("s_mov_b32 s67, 0xcccccccc")
A("s_mov_b32 s68, 0xf0f0f0f0")
A("s_mov_b32 s69, 0xf0f0f0f0")
A(f"s_waitcnt vmcnt({32 + CFG['touch']})")
unpack(24, 16, 4)
unpack(32, 20, 4)
layernorm([24, 32], 2, 44, [16, 20])
A(f"ds_write_b64 v12, v[16:17] offset:{L_XN}")
A(f"ds_write_b64 v12, v[18:19] offset:{L_XN + 16}")
A(f"ds_write_b64 v12, v[20:21] offset:{L_XN + 1024}")
A(f"ds_write_b64 v12, v[22:23] offset:{L_XN + 1024 + 16}")
A("s_waitcnt lgkmcnt(0)")
XA = 96
for kp in range(8):
    A(f"ds_read_b128 v[{XA+4*kp}:{XA+4*kp+3}], v13 offset:{L_XN + kp*64}")
stamp(1)
lds_wait(L_FLAG, 16, 17)
A("v_mov_b32 v16, 0")
A(f"ds_read_b64 v[58:59], v16 offset:{L_TAG}")
A(f"ds_read_b64 v[62:63], v16 offset:{L_TAG}")
WF = 24
QD = 144
for kp in range(8):
    A(f"s_waitcnt vmcnt({28 - 4*kp})")
    if kp == 7:
        stamp(2)
    for ct in range(4):
        for h in range(2):
            r = WF + ((kp & 1) * 4 + ct) * 4 + 2 * h
            A(f"ds_read_b64_tr_b16 v[{r}:{r+1}], v14 offset:{L_WQ + kp*4096 + h*2048 + ct*256}")
    for ct in range(4):
        A(f"s_waitcnt lgkmcnt({6 - 2*ct})")
        mfma(QD + 4 * ct, WF + ((kp & 1) * 4 + ct) * 4, XA + 4 * kp, None if kp == 0 else QD + 4 * ct)
C("select: lo half cts (0,1) -> v[24:25], hi half cts (2,3) -> v[26:27]")
nop(5)
for hf in range(2):
    a, b = QD + 8 * hf, QD + 8 * hf + 4
    for j in range(2):
        A(f"v_cndmask_b32 v{28+j}, v{a+j}, v{a+2+j}, s[66:67]")
        A(f"v_cndmask_b32 v{30+j}, v{b+j}, v{b+2+j}, s[66:67]")
    for j in range(2):
        A(f"v_cndmask_b32 v{24+2*hf+j}, v{28+j}, v{30+j}, s[68:69]")
A(f"s_cmp_eq_u32 s{S_B}, 0")
A(f"s_cselect_b64 vcc, -1, 0")
set_exec(0x00ff00ff00ff00ff)
A("v_cndmask_b32 v56, v24, v26, vcc")
A("v_cndmask_b32 v57, v25, v27, vcc")
A("v_cndmask_b32 v60, v26, v24, vcc")
A("v_cndmask_b32 v61, v27, v25, vcc")
A(f"buffer_store_dwordx4 v[56:59], v70, {WS}, s{63 if CFG['dual'] else 65} offen{'' if CFG['dual'] else ' sc1'}")
stamp(6)
lx, lxe, lxs = newlbl("Lx"), newlbl("Lxe"), newlbl("Lxs")
A(f"s_mov_b32 s{S_TO}, {CFG['timeout']}")
L(lx)
if CFG["dual"]:
    A(f"s_cmp_lg_u32 s{S_TO}, {CFG['timeout'] - 4}")
    A(f"s_cbranch_scc1 {lxs}")
    C("partner not seen through L2 yet: also send the coherent copy")
    A(f"buffer_store_dwordx4 v[56:59], v70, {WS}, s65 offen sc1")
    L(lxs)
A(f"s_and_b32 s{S_T0}, s{S_TO}, 7")
A(f"s_cmp_eq_u32 s{S_T0}, 1")
A(f"s_cselect_b32 s{S_T1}, s64, s{62 if CFG['dual'] else 64}")
A(f"buffer_load_dwordx4 v[24:27], v70, {WS}, s{S_T1} offen sc1")
A(f"s_sub_u32 s{S_TO}, s{S_TO}, 1")
A(f"s_cbranch_scc1 {lxe}")
A("s_waitcnt vmcnt(0)")
A("v_cmp_ne_u64 vcc, v[26:27], v[58:59]")
A("s_cmp_lg_u64 vcc, 0")
A(f"s_cbranch_scc1 {lx}")
L(lxe)
A("s_waitcnt vmcnt(0)")
A("v_pk_add_f32 v[60:61], v[60:61], v[24:25]")
A("v_cvt_pk_bf16_f32 v60, v60, v61")
nop(2)
A("v_mov_b32_dpp v61, v60 quad_perm:[2,3,0,1] row_mask:0xf bank_mask:0xf")
set_exec(0x0033003300330033)
A(f"buffer_store_dwordx4 v[60:63], v69, {WS}, s{S_T5} offen sc1")
if CFG["dual"]:
    C("always leave a coherent copy for the partner")
    set_exec(0x00ff00ff00ff00ff)
    A(f"buffer_store_dwordx4 v[56:59], v70, {WS}, s65 offen sc1")
A("s_mov_b64 exec, -1")
lds_set(L_FLAG + 8, 16, 17)
stamp(3)
L("L_qm2")
A(f"s_cmp_eq_u32 s{S_ROLE}, 0")
A("s_cbranch_scc1 L_exit")
lds_wait(L_FLAG, 16, 17)
A(f"v_mov_b32 v{V_T}, 0")
A(f"ds_read_b64 v[{TT+2}:{TT+3}], v{V_T} offset:{L_TAG}")
A(f"ds_read_b128 v[{V_TG}:{V_TG+3}], v{V_T} offset:{L_TAG + 16}")
A(f"s_cmp_eq_u32 s{S_ROLE}, 2")
A("s_cbranch_scc1 L_F")

C("==== E: wo projection, 8 waves: head=w&3, col half=w>>2; wave gathers records 2w,2w+1")
V_WX = 16
A(f"s_lshl_b32 s{S_T1}, s{S_X}, 4")
A(f"s_lshl_b32 s{S_T2}, s{S_WAVE}, 1")
A(f"s_add_u32 s{S_T1}, s{S_T1}, s{S_T2}")
A(f"s_mul_i32 s{S_T1}, s{S_T1}, {RECP}")
A(f"s_add_u32 s{S_PNA}, s{S_T1}, {WS_PNA if CFG['dual'] else WS_PNB}")
A(f"s_add_u32 s{S_PNB}, s{S_T1}, {WS_PNB}")
EA0, EA1, EA2, EA3, EA4, EA5 = V_T + 36, V_T + 37, V_T + 38, V_T + 39, V_T + 2, V_T + 3
C("stats gather addr: lane<8: (l>>2)*RECP + (l&3)*16 (+1024)")
A(f"v_lshrrev_b32 v{EA0}, 2, v0")
A(f"s_movk_i32 s{S_T2}, {RECP}")
A(f"v_mul_lo_u32 v{EA0}, v{EA0}, s{S_T2}")
A(f"v_and_b32 v{EA1}, 3, v0")
A(f"v_lshl_add_u32 v{EA0}, v{EA1}, 4, v{EA0}")
A(f"s_mul_i32 s{S_T2}, s{S_WAVE}, {2*PNP}")
A(f"s_add_u32 s{S_T2}, s{S_T2}, {L_PS}")
A(f"v_add_u32 v{EA1}, s{S_T2}, v2")
A(f"s_lshl_b32 s{S_T2}, s{S_WAVE}, 7")
A(f"v_add_u32 v{EA2}, s{S_T2}, v2")
A(f"s_and_b32 s{S_T4}, s{S_WAVE}, 3")
A(f"s_lshr_b32 s{S_T5}, s{S_WAVE}, 2")
A(f"s_movk_i32 s{S_T2}, {PNP}")
A(f"v_mul_lo_u32 v{EA3}, v6, s{S_T2}")
A(f"v_lshl_add_u32 v{EA3}, v4, 4, v{EA3}")
A(f"s_lshl_b32 s{S_T2}, s{S_T4}, 6")
A(f"s_add_u32 s{S_T2}, s{S_T2}, {L_PS}")
A(f"v_add_u32 v{EA3}, s{S_T2}, v{EA3}")
A(f"v_lshlrev_b32 v{EA4}, 6, v6")
A(f"s_lshl_b32 s{S_T2}, s{S_T4}, 4")
A(f"v_add_u32 v{EA4}, s{S_T2}, v{EA4}")
A(f"s_lshl_b32 s{S_T2}, s{S_T4}, 9")
A(f"s_lshl_b32 s{S_T3}, s{S_T5}, 8")
A(f"s_add_u32 s{S_T2}, s{S_T2}, s{S_T3}")
A(f"v_lshl_add_u32 v{EA5}, v0, 2, s{S_T2}")
C("weights tr-read addr: WO + hd*16384 + ch*512 + (l>>5)*1024 + (l&31)*8")
A(f"v_lshrrev_b32 v{TT}, 5, v0")
A(f"v_lshlrev_b32 v{TT}, 10, v{TT}")
A(f"v_and_b32 v{TT+1}, 31, v0")
A(f"v_lshl_add_u32 v{TT}, v{TT+1}, 3, v{TT}")
A(f"s_lshl_b32 s{S_T2}, s{S_T4}, 14")
A(f"s_lshl_b32 s{S_T3}, s{S_T5}, 9")
A(f"s_add_u32 s{S_T2}, s{S_T2}, s{S_T3}")
A(f"s_add_u32 s{S_T2}, s{S_T2}, {L_WO}")
A(f"v_add_u32 v{TT}, s{S_T2}, v{TT}")
A(f"v_mul_u32_u24 v{V_T+32}, 80, v4")
C("final-stage addresses (wave 0, lanes<32): RED read / AP write")
A(f"v_bfe_u32 v{V_T+33}, v0, 3, 1")
A(f"v_lshlrev_b32 v{V_T+33}, 8, v{V_T+33}")
A(f"v_lshl_add_u32 v{V_T+33}, v4, 7, v{V_T+33}")
A(f"v_and_b32 v{V_T+34}, 7, v0")
A(f"v_lshl_add_u32 v{V_T+33}, v{V_T+34}, 4, v{V_T+33}")
A(f"v_lshlrev_b32 v{V_T+34}, 11, v4")
A(f"v_lshl_add_u32 v{V_T+34}, v6, 4, v{V_T+34}")
A(f"s_lshl_b32 s{S_NT}, s{S_X}, 12")
A(f"s_lshl_b32 s{S_T1}, s{S_SUB}, 8")
A(f"s_add_u32 s{S_NT}, s{S_NT}, s{S_T1}")
A(f"s_add_u32 s{S_NT}, s{S_NT}, {WS_AP}")
A("s_waitcnt vmcnt(0) lgkmcnt(0)")
A("s_barrier")
stamp(4)
for kp in range(4):
    for c in range(2):
        for h in range(2):
            r = V_WX + (kp * 2 + c) * 4 + 2 * h
            A(f"ds_read_b64_tr_b16 v[{r}:{r+1}], v{TT} offset:{kp*4096 + h*2048 + c*256}")
SG = V_G + 8
le, lee = newlbl("Le"), newlbl("Lee")
A(f"s_mov_b32 s{S_TO}, {CFG['timeout']}")
L(le)
A(f"s_and_b32 s{S_T0}, s{S_TO}, {CFG['bmask']}")
A(f"s_cmp_eq_u32 s{S_T0}, 1")
A(f"s_cselect_b32 s{S_T1}, s{S_PNB}, s{S_PNA}")
A(f"v_mov_b32 v{SG+2}, v{TT+2}")
A(f"v_mov_b32 v{SG+3}, v{TT+3}")
A("s_mov_b64 exec, 0xff")
A(f"buffer_load_dwordx4 v[{SG}:{SG+3}], v{EA0}, {WS}, s{S_T1} offen offset:1024 sc1")
A("s_mov_b64 exec, -1")
for i in range(2):
    r = V_G + i * 4
    A(f"buffer_load_dwordx4 v[{r}:{r+3}], v2, {WS}, s{S_T1} offen offset:{i*RECP} sc1")
A(f"s_sub_u32 s{S_TO}, s{S_TO}, 1")
A(f"s_cbranch_scc1 {lee}")
A("s_waitcnt vmcnt(0)")
tree3("v_max3_u32", "v_max_u32", range(V_G, V_G + 8), TT)
A(f"v_cmp_eq_u32 vcc, -1, v{TT}")
A(f"v_cmp_ne_u64 s[{S_T2}:{S_T3}], v[{SG+2}:{SG+3}], v[{TT+2}:{TT+3}]")
A(f"s_or_b64 vcc, vcc, s[{S_T2}:{S_T3}]")
A(f"s_cbranch_scc1 {le}")
L(lee)
A("s_waitcnt vmcnt(0)")
stamp(7)
for i in range(2):
    r = V_G + i * 4
    A(f"ds_write_b128 v{EA1}, v[{r}:{r+3}] offset:{i*PNP}")
A("s_mov_b64 exec, 0xff")
A(f"ds_write_b128 v{EA2}, v[{SG}:{SG+3}] offset:{L_STS}")
A("s_mov_b64 exec, -1")
A("s_waitcnt lgkmcnt(0)")
A("s_barrier")
SM0 = V_T + 4
MG = V_T + 8
FW = V_T + 24
A(f"ds_read_b64 v[{SM0}:{SM0+1}], v{EA4} offset:{L_STS}")
for kp in range(4):
    r = V_G + kp * 4
    A(f"ds_read_b128 v[{r}:{r+3}], v{EA3} offset:{kp*256}")
EA = V_S
A("s_waitcnt lgkmcnt(4)")
A(f"v_mov_b32 v{MG}, v{SM0}")
R8 = ROW_ALL[:3]
fill = []
for c in R8:
    fill.append(["s_nop 0", f"v_max_f32_dpp v{MG}, v{MG}, v{MG} {c} row_mask:0xf bank_mask:0xf"])
fill.append([f"v_sub_f32 v{SM0}, v{SM0}, v{MG}", f"v_exp_f32 v{SM0}, v{SM0}", "s_nop 0", f"v_mul_f32 v{MG}, v{SM0}, v{SM0+1}"])
for c in R8:
    fill.append(["s_nop 0", f"v_add_f32_dpp v{MG}, v{MG}, v{MG} {c} row_mask:0xf bank_mask:0xf"])
fill.append([f"v_rcp_f32 v{MG}, v{MG}", "s_nop 0", f"v_mul_f32 v{SM0}, v{SM0}, v{MG}"])
fi = 0
for kp in range(4):
    A(f"s_waitcnt lgkmcnt({3-kp})")
    for c in range(2):
        d = EA + c * 4
        mfma(d, V_G + kp * 4, V_WX + (kp * 2 + c) * 4, None if kp == 0 else d)
        for ins in fill[fi]:
            A(ins)
        fi += 1
assert fi == len(fill)
for r in range(4):
    A(f"ds_bpermute_b32 v{FW+r}, v{V_T+32}, v{SM0} offset:{4*r}")
A("s_waitcnt lgkmcnt(0)")
for c in range(2):
    d = EA + 4 * c
    A(f"v_mul_f32 v{d}, v{d}, v{FW}")
    A(f"v_mul_f32 v{d+2}, v{d+2}, v{FW+2}")
    A(f"v_fmac_f32 v{d}, v{d+1}, v{FW+1}")
    A(f"v_fmac_f32 v{d+2}, v{d+3}, v{FW+3}")
for c in range(2):
    d = EA + 4 * c
    A(f"v_add_f32 v{d}, v{d}, v{d+2}")
nop(2)
A(f"v_permlane16_swap_b32 v{EA}, v{EA+4}")
A(f"v_add_f32 v{EA}, v{EA}, v{EA+4}")
A(f"ds_write_b32 v{EA5}, v{EA} offset:{L_RED}")
A("s_waitcnt lgkmcnt(0)")
A("s_barrier")
A(f"s_cmp_lg_u32 s{S_WAVE}, 0")
A("s_cbranch_scc1 L_exit")
A("s_mov_b32 exec_hi, 0")
for i in range(4):
    A(f"ds_read_b128 v[{V_G+4*i}:{V_G+4*i+3}], v{V_T+33} offset:{L_RED + i*512}")
A("s_waitcnt lgkmcnt(0)")
for j in (0, 2):
    A(f"v_pk_add_f32 v[{V_G+j}:{V_G+j+1}], v[{V_G+j}:{V_G+j+1}], v[{V_G+4+j}:{V_G+5+j}]")
    A(f"v_pk_add_f32 v[{V_G+8+j}:{V_G+9+j}], v[{V_G+8+j}:{V_G+9+j}], v[{V_G+12+j}:{V_G+13+j}]")
for j in (0, 2):
    A(f"v_pk_add_f32 v[{V_G+j}:{V_G+j+1}], v[{V_G+j}:{V_G+j+1}], v[{V_G+8+j}:{V_G+9+j}]")
tag(V_G, V_TG)
A(f"buffer_store_dwordx4 v[{V_G}:{V_G+3}], v{V_T+34}, {WS}, s{S_NT} offen sc1")
stamp(8)
A("s_branch L_exit")

L("L_F")
C("==== F: MLP. 8 waves gather (b=w>>2, 128-col quarter q=w&3); waves 0..3 also do w1/gelu/w2")
V_W2 = 128
FG = 48
HX = 64
lds_wait(L_FLAG + 8, 16, 17, sleep=4)
C("x[b][128q + 4(l&31)..] ; b1[mi*32 + (l&31)]")
srd(SRD_A, P_X, 2048)
A("v_and_b32 v12, 31, v0")
A("v_lshlrev_b32 v13, 3, v12")
A(f"s_lshl_b32 s{S_T0}, s{S_WAVE}, 8")
A(f"buffer_load_dwordx2 v[{V_SM}:{V_SM+1}], v13, {SA}, s{S_T0} offen")
srd(SRD_C, P_B1, 3584)
A("v_lshlrev_b32 v13, 1, v12")
A(f"s_lshl_b32 s{S_T0}, s{S_SUB}, 6")
A(f"buffer_load_ushort v{V_SM+2}, v13, {SC_}, s{S_T0} offen")
C("gather addr: (l>>5)*4096 + (l&31)*16 ; soffset = AP + w*512 + i*8192")
GAD, HA, STW, STR = V_T, V_T + 1, V_T + 2, V_T + 3
A(f"v_lshrrev_b32 v{GAD}, 5, v0")
A(f"v_lshlrev_b32 v{GAD}, 12, v{GAD}")
A(f"v_lshl_add_u32 v{GAD}, v12, 4, v{GAD}")
A(f"s_lshl_b32 s{S_T0}, s{S_WAVE}, 9")
A(f"s_add_u32 s{S_T0}, s{S_T0}, {WS_AP}")
SX = 62
for i in range(4):
    A(f"s_add_u32 s{SX+i}, s{S_T0}, {i*8192}")
C("hn write addr (cols 4j.., j=l&31): w*256 + (j>>3)*64 + (j&3)*16 + ((j>>2)&1)*8")
A(f"v_lshrrev_b32 v{HA}, 3, v12")
A(f"v_lshlrev_b32 v{HA}, 6, v{HA}")
A("v_and_b32 v13, 3, v0")
A(f"v_lshl_add_u32 v{HA}, v13, 4, v{HA}")
A("v_bfe_u32 v13, v0, 2, 1")
A(f"v_lshl_add_u32 v{HA}, v13, 3, v{HA}")
A(f"s_lshl_b32 s{S_T0}, s{S_WAVE}, 8")
A(f"v_add_u32 v{HA}, s{S_T0}, v{HA}")
C("LN stats exchange: STS + w*8 ; read STS + b*32 (sentinel initialised)")
A(f"s_lshl_b32 s{S_T0}, s{S_WAVE}, 3")
A(f"v_mov_b32 v{STW}, s{S_T0}")
A(f"s_lshr_b32 s{S_T0}, s{S_WAVE}, 2")
A(f"s_lshl_b32 s{S_T0}, s{S_T0}, 5")
A(f"v_mov_b32 v{STR}, s{S_T0}")
A("v_mov_b32 v14, -1")
A("v_mov_b32 v15, -1")
A(f"ds_write_b64 v{STW}, v[14:15] offset:{L_STS}")
C("compute-wave addresses")
vw2_addr()
A(f"s_lshl_b32 s{S_T0}, s{S_WAVE}, 13")
A(f"s_add_u32 s{S_T1}, s{S_T0}, {L_W2}")
A(f"v_add_u32 v{VB0}, s{S_T1}, v{VA0}")
A(f"v_add_u32 v{VB1}, s{S_T1}, v{VA1}")
A(f"s_add_u32 s{S_T1}, s{S_T0}, {L_WX}")
A(f"v_lshl_add_u32 v{TT}, v0, 3, s{S_T1}")
A0, A1, A2, YAD = V_T + 36, V_T + 37, V_T + 38, V_T + 39
A(f"v_lshlrev_b32 v{A0}, 10, v10")
A(f"v_lshl_add_u32 v{A0}, v4, 4, v{A0}")
A(f"s_lshl_b32 s{S_T0}, s{S_WAVE}, 8")
A(f"v_add_u32 v{A0}, s{S_T0}, v{A0}")
A(f"v_lshlrev_b32 v{A1}, 7, v6")
A(f"v_lshl_add_u32 v{A1}, v4, 4, v{A1}")
A(f"v_add_u32 v{A1}, s{S_T0}, v{A1}")
C("h1 write addr: lane (b=l>>5, c=l&31): H1 + w*128 + b*64 + ((c>>2)&3)*16 + (c>>4)*8 + (c&3)*2")
A(f"v_lshrrev_b32 v{A2}, 5, v0")
A(f"v_lshlrev_b32 v{A2}, 6, v{A2}")
A("v_bfe_u32 v13, v0, 2, 2")
A(f"v_lshl_add_u32 v{A2}, v13, 4, v{A2}")
A("v_bfe_u32 v13, v0, 4, 1")
A(f"v_lshl_add_u32 v{A2}, v13, 3, v{A2}")
A("v_and_b32 v13, 3, v0")
A(f"v_lshl_add_u32 v{A2}, v13, 1, v{A2}")
A(f"s_lshl_b32 s{S_T1}, s{S_WAVE}, 7")
A(f"s_add_u32 s{S_T1}, s{S_T1}, {L_H1}")
A(f"v_add_u32 v{A2}, s{S_T1}, v{A2}")
C("B_ct operand addresses: (n>>1)==ct ? H1 + w*128 + (n&1)*64 + g*16 : ZERO")
BA = V_T + 24
A("v_lshlrev_b32 v13, 6, v10")
A("v_lshl_add_u32 v13, v4, 4, v13")
A(f"v_add_u32 v13, s{S_T1}, v13")
A(f"v_mov_b32 v14, {L_ZERO}")
A("v_bfe_u32 v15, v0, 1, 3")
for ct in range(8):
    A(f"v_cmp_eq_u32 vcc, {ct}, v15")
    A("s_nop 1")
    A(f"v_cndmask_b32 v{BA+ct}, v14, v13, vcc")
for j in range(4):
    A(f"v_mov_b32 v{16+j}, 0")
A(f"ds_write_b128 v14, v[16:19]")
C("Y store addr: (n&1)*2048 + (n>>1)*64 + g*16 ; soff = Y + mi*YP + w*512")
A(f"v_lshlrev_b32 v{YAD}, 11, v10")
A(f"v_lshl_add_u32 v{YAD}, v15, 6, v{YAD}")
A(f"v_lshl_add_u32 v{YAD}, v4, 4, v{YAD}")
S_Y = 70
A(f"s_mul_i32 s{S_Y}, s{S_SUB}, {YP}")
A(f"s_lshl_b32 s{S_T1}, s{S_WAVE}, 9")
A(f"s_add_u32 s{S_Y}, s{S_Y}, s{S_T1}")
A(f"s_add_u32 s{S_Y}, s{S_Y}, {WS_Y}")
A("v_lshlrev_b32 v3, 2, v0")
A("s_waitcnt vmcnt(0) lgkmcnt(0)")
unpack(HX, V_SM, 2)
A(f"v_lshlrev_b32 v{V_SM+2}, 16, v{V_SM+2}")
A("s_barrier")
stamp(4)
A(f"s_cmp_ge_u32 s{S_WAVE}, 4")
A("s_cbranch_scc1 L_F1")
for kp in range(4):
    for ct in range(2):
        for h in range(2):
            r = V_WX + (kp * 2 + ct) * 4 + 2 * h
            A(f"ds_read_b64_tr_b16 v[{r}:{r+1}], v{TT} offset:{kp*2048 + h*1024 + ct*512}")
A("s_waitcnt lgkmcnt(0)")
for ct in range(8):
    for h in range(2):
        r = V_W2 + ct * 4 + 2 * h
        A(f"ds_read_b64_tr_b16 v[{r}:{r+1}], v{VB0 + (ct & 1)} offset:{(ct >> 1)*256 + h*4096}")
L("L_F1")


def f_loads():
    for i in range(4):
        r = FG + i * 4
        A(f"buffer_load_dwordx4 v[{r}:{r+3}], v{GAD}, {WS}, s{SX+i} offen sc1")


tpoll(f_loads, range(FG, FG + 16), TT, V_TG)
stamp(7)
for j in (0, 2):
    A(f"v_pk_add_f32 v[{FG+j}:{FG+j+1}], v[{FG+j}:{FG+j+1}], v[{FG+4+j}:{FG+5+j}]")
    A(f"v_pk_add_f32 v[{FG+8+j}:{FG+9+j}], v[{FG+8+j}:{FG+9+j}], v[{FG+12+j}:{FG+13+j}]")
for j in (0, 2):
    A(f"v_pk_add_f32 v[{FG+j}:{FG+j+1}], v[{FG+j}:{FG+j+1}], v[{FG+8+j}:{FG+9+j}]")
swap_steps("v_add_f32", [FG + j for j in range(4)], [FG + 4 + j for j in range(4)], which=(32,))
HP = FG + 8
pack(HP, FG, 2)
unpack(FG, HP, 2)
for j in range(4):
    A(f"v_add_f32 v{HX+j}, v{HX+j}, v{FG+j}")
pack(HP, HX, 2)
unpack(HX, HP, 2)
C("local stats around pivot c = h[first]")
A("s_nop 0")
A(f"v_readfirstlane_b32 s{S_T2}, v{HX}")
A("s_nop 1")
for j in range(4):
    A(f"v_subrev_f32 v{FG+j}, s{S_T2}, v{HX+j}")
SS, SQ = FG + 10, FG + 11
A(f"v_add_f32 v{SS}, v{FG}, v{FG+1}")
A(f"v_mul_f32 v{SQ}, v{FG}, v{FG}")
A(f"v_add_f32 v{FG+4}, v{FG+2}, v{FG+3}")
A(f"v_fmac_f32 v{SQ}, v{FG+1}, v{FG+1}")
A(f"v_add_f32 v{SS}, v{SS}, v{FG+4}")
A(f"v_fmac_f32 v{SQ}, v{FG+2}, v{FG+2}")
A(f"v_fmac_f32 v{SQ}, v{FG+3}, v{FG+3}")
nop(1)
dpp_steps("v_add_f32", [SS, SQ], ROW_ALL)
swap_steps("v_add_f32", [SS, SQ], [FG + 4, FG + 5], which=(16,))
C("mean_w = c + s/128 ; M2_w = ss - s*s/128")
A(f"v_mul_f32 v{FG+4}, {f2u(1.0/128):#x}, v{SS}")
A(f"v_fma_f32 v{SQ}, -v{FG+4}, v{SS}, v{SQ}")
A(f"v_add_f32 v{SS}, s{S_T2}, v{FG+4}")
A("s_mov_b64 exec, 1")
A(f"ds_write_b64 v{STW}, v[{SS}:{SQ}] offset:{L_STS}")
A("s_mov_b64 exec, -1")
l3, l3e = newlbl("Lst"), newlbl("Lste")
A(f"s_mov_b32 s{S_TO}, {CFG['timeout']}")
L(l3)
A(f"ds_read_b128 v[{FG}:{FG+3}], v{STR} offset:{L_STS}")
A(f"ds_read_b128 v[{FG+4}:{FG+7}], v{STR} offset:{L_STS + 16}")
A(f"s_sub_u32 s{S_TO}, s{S_TO}, 1")
A(f"s_cbranch_scc1 {l3e}")
A("s_waitcnt lgkmcnt(0)")
tree3("v_max3_u32", "v_max_u32", range(FG, FG + 8), TT)
A(f"v_cmp_eq_u32 vcc, -1, v{TT}")
A("s_cmp_lg_u64 vcc, 0")
A(f"s_cbranch_scc1 {l3}")
L(l3e)
A("s_waitcnt lgkmcnt(0)")
MEAN, VAR, TM = FG + 8, FG + 9, FG + 10
A(f"v_add_f32 v{MEAN}, v{FG}, v{FG+2}")
A(f"v_add_f32 v{TM}, v{FG+4}, v{FG+6}")
A(f"v_add_f32 v{VAR}, v{FG+1}, v{FG+3}")
A(f"v_add_f32 v{MEAN}, v{MEAN}, v{TM}")
A(f"v_add_f32 v{TM}, v{FG+5}, v{FG+7}")
A(f"v_mul_f32 v{MEAN}, 0.25, v{MEAN}" if False else f"v_mul_f32 v{MEAN}, {f2u(0.25):#x}, v{MEAN}")
A(f"v_add_f32 v{VAR}, v{VAR}, v{TM}")
for j in range(4):
    A(f"v_sub_f32 v{FG+2*j}, v{FG+2*j}, v{MEAN}")
A(f"v_mul_f32 v{TM}, v{FG}, v{FG}")
for j in range(1, 4):
    A(f"v_fmac_f32 v{TM}, v{FG+2*j}, v{FG+2*j}")
A(f"v_mul_f32 v{VAR}, {f2u(1.0/512):#x}, v{VAR}")
A(f"v_fmac_f32 v{VAR}, {f2u(0.25):#x}, v{TM}")
bf16r(MEAN, MEAN)
bf16r(VAR, VAR)
for j in range(4):
    A(f"v_sub_f32 v{FG+j}, v{HX+j}, v{MEAN}")
A(f"v_add_f32 v{VAR}, {f2u(1e-5):#x}, v{VAR}")
pack(HP + 4, FG, 2)
bf16r(VAR, VAR)
unpack(FG, HP + 4, 2)
A(f"v_sqrt_f32 v{VAR}, v{VAR}")
nop(1)
bf16r(VAR, VAR)
A(f"v_rcp_f32 v{VAR}, v{VAR}")
nop(1)
for j in range(4):
    A(f"v_mul_f32 v{FG+j}, v{FG+j}, v{VAR}")
pack(HP + 4, FG, 2)
A("s_mov_b32 exec_hi, 0")
A(f"ds_write_b64 v{HA}, v[{HP+4}:{HP+5}] offset:{L_HN}")
A("s_mov_b32 exec_hi, -1")
c0 = math.sqrt(2.0 / math.pi)
k0 = -2.0 * c0 * LOG2E
k1 = k0 * 0.044715
A(f"s_mov_b32 s{S_T1}, {f2u(k1):#x}")
A(f"v_mov_b32 v{TT}, {f2u(k0):#x}")
A("s_waitcnt lgkmcnt(0)")
A("s_barrier")
stamp(8)
A(f"s_cmp_ge_u32 s{S_WAVE}, 4")
A("s_cbranch_scc1 L_exit")
for kp in range(4):
    A(f"ds_read_b128 v[{V_Q+4*kp}:{V_Q+4*kp+3}], v{A0} offset:{L_HN + kp*64}")
for kp in range(4):
    A(f"s_waitcnt lgkmcnt({3-kp})")
    for ct in range(2):
        mfma(V_S + 4 * ct, V_WX + (kp * 2 + ct) * 4, V_Q + 4 * kp, None if kp == 0 else V_S + 4 * ct)
nop(6)
set_exec(MASK_N2)
A(f"ds_write_b128 v{A1}, v[{V_S}:{V_S+3}] offset:{L_RED}")
A(f"ds_write_b128 v{A1}, v[{V_S+4}:{V_S+7}] offset:{L_RED + 64}")
A("s_mov_b64 exec, -1")
A("s_waitcnt lgkmcnt(0)")
A("s_barrier")
U = 16
for wp in range(4):
    A(f"ds_read_b32 v{U+wp}, v3 offset:{L_RED + wp*256}")
A("s_waitcnt lgkmcnt(0)")
A(f"v_add_f32 v{U}, v{U}, v{U+1}")
A(f"v_add_f32 v{U+2}, v{U+2}, v{U+3}")
A(f"v_add_f32 v{U}, v{U}, v{U+2}")
bf16r(U, U)
A(f"v_add_f32 v{U}, v{U}, v{V_SM+2}")
bf16r(U, U)
A(f"v_mul_f32 v{U+1}, v{U}, v{U}")
A(f"v_fma_f32 v{U+1}, v{U+1}, s{S_T1}, v{TT}")
A(f"v_mul_f32 v{U+1}, v{U+1}, v{U}")
A(f"v_exp_f32 v{U+1}, v{U+1}")
nop(1)
A(f"v_add_f32 v{U+1}, 1.0, v{U+1}")
A(f"v_rcp_f32 v{U+1}, v{U+1}")
nop(1)
A(f"v_mul_f32 v{U}, v{U}, v{U+1}")
A(f"v_cvt_pk_bf16_f32 v{U}, v{U}, v{U}")
A(f"ds_write_b16 v{A2}, v{U}")
BO = 32
for ct in range(8):
    A(f"ds_read_b128 v[{BO+4*ct}:{BO+4*ct+3}], v{BA+ct}")
YA = 24
for ct in range(8):
    A(f"s_waitcnt lgkmcnt({7-ct})")
    mfma(YA, V_W2 + 4 * ct, BO + 4 * ct, None if ct == 0 else YA)
nop(8)
tag(YA, V_TG)
A(f"buffer_store_dwordx4 v[{YA}:{YA+3}], v{YAD}, {WS}, s{S_Y} offen sc1")
stamp(9)
L("L_exit")
stamp_flush()
L("L_end")
A("s_endpgm")

out.append(f""".section .rodata,"a"
.p2align 6
.amdhsa_kernel {NAME}_kernel
  .amdhsa_next_free_vgpr 168
  .amdhsa_next_free_sgpr 102
  .amdhsa_accum_offset 168
  .amdhsa_group_segment_fixed_size 0
  .amdhsa_kernarg_size 104
  .amdhsa_user_sgpr_count 2
  .amdhsa_user_sgpr_kernarg_segment_ptr 1
  .amdhsa_system_sgpr_workgroup_id_x 1
.end_amdhsa_kernel""")

print("\n".join(out))
```

```python
import sys, struct, math

NAME = "sequential_preLN__sliding_block_cached__dense_activation_gelu__decode"

CFG = dict(nt=1, timeout=1 << 18, stamps=0, dual=1, tsleep0=10, tsleep=3, tsleepa=40, qsleep=0, mwin=0, touch=1, bmask=15, fsl=0, g1sl=0, g2sl=0, pf=29, pfw=4)
for a in sys.argv[1:]:
    if "=" in a:
        k, v = a.split("=")
        CFG[k] = int(v)
NT = " nt" if CFG["nt"] else ""

WS_Q = 0x00000
RECP = 1152
WS_PNA = 0x10000
WS_PNB = 0x50000
WS_XQA = 0x90000
WS_XQB = 0x80000
WS_AP = 0xA8000
WS_Y = 0xB0000
YP = 4096 + 128
WS_TS = 0xF0000
WS_SIZE = 0x200000

L_QL = 0
L_XN = 0
L_SC = 2048
L_QR = 2048
L_HN = 4096
L_RED = 6144
L_STS = 8192
L_QS = 9216
L_H1 = 9216
L_ZERO = 9728
L_MX = 10240
L_LS = 10368
L_FLAG = 10496
L_TAG = 10512
L_FL2 = 10544
L_DUM = 10560
BIG = 11264
L_K = BIG
L_V = BIG + 65536
L_WQ = BIG
L_WO = BIG + 32768
L_WX = BIG + 32768
L_W2 = BIG + 65536
L_PS = BIG + 98304
PNP = 1040
LDS_BYTES = BIG + 131072

LOG2E = 1.4426950408889634
SCALE = 128 ** -0.5


def f2u(f):
    return struct.unpack("<I", struct.pack("<f", f))[0]


out = []


def A(s):
    out.append("    " + s)


def L(s):
    out.append(s + ":")


def C(s):
    out.append("    ; " + s)


def nop(n):
    while n > 0:
        k = min(n, 16)
        A(f"s_nop {k-1}")
        n -= k


_lbl = [0]


def newlbl(p="L"):
    _lbl[0] += 1
    return f"{p}_{_lbl[0]}"


P_X, P_K, P_V, P_WQ, P_WO, P_BX, P_W1, P_B1, P_W2, P_B2, P_OUT, P_DBG, P_WS = [36 + 2 * i for i in range(13)]
S_WAVE, S_X, S_A, S_B, S_SPL = 3, 4, 5, 6, 7
SRD_WS, SRD_A, SRD_B, SRD_C = 8, 12, 16, 20
S_T0, S_T1, S_T2, S_T3, S_T4, S_T5 = 24, 25, 26, 27, 28, 29
S_TO, S_ROLE, S_SUB, S_NT, S_PNA, S_PNB = 30, 31, 32, 33, 34, 35
S_Q = 36
S_TG = 100
WS = f"s[{SRD_WS}:{SRD_WS+3}]"
SA = f"s[{SRD_A}:{SRD_A+3}]"
SB = f"s[{SRD_B}:{SRD_B+3}]"
SC_ = f"s[{SRD_C}:{SRD_C+3}]"
V_ST = 1
V_MSK = 5


def srd(d, p, size):
    A(f"s_mov_b32 s{d}, s{p}")
    A(f"s_mov_b32 s{d+1}, s{p+1}")
    A(f"s_mov_b32 s{d+2}, {size:#x}")
    A(f"s_mov_b32 s{d+3}, 0x00020000")


def stamp(slot):
    if CFG["stamps"]:
        A("s_memrealtime s[0:1]")
        A("s_waitcnt lgkmcnt(0)")
        A(f"v_writelane_b32 v{V_ST}, s0, {slot}")


def stamp_flush():
    if not CFG["stamps"]:
        return
    if CFG["stamps"] == 2:
        A("s_mov_b64 exec, -1")
        A(f"v_mov_b32 v2, {L_TAG}")
        A("ds_read_b32 v3, v2")
        A("s_waitcnt lgkmcnt(0)")
        A(f"v_sub_u32 v3, v{V_ST}, v3")
        A("v_max_i32 v3, 0, v3")
        A("v_lshlrev_b32 v2, 2, v0")
        A("v_add_co_u32 v166, vcc, v166, v2")
        A("v_addc_co_u32 v167, vcc, 0, v167, vcc")
        A(f"v_cmp_ne_u32 vcc, 0, v{V_ST}")
        A("s_bitcmp1_b32 vcc_lo, 11")
        A("s_cbranch_scc0 L_end")
        A("s_and_b64 exec, vcc, 0x1fff")
        A("s_cbranch_execz L_end")
        A("global_atomic_umax v[166:167], v3, off offset:8")
        return
    A("s_mov_b64 exec, -1")
    A("s_lshl_b32 s0, s2, 10")
    A(f"s_lshl_b32 s1, s{S_WAVE}, 6")
    A("s_add_u32 s0, s0, s1")
    A(f"s_add_u32 s0, s0, {WS_TS}")
    A("v_lshlrev_b32 v2, 2, v0")
    A("s_mov_b64 exec, 0xffff")
    A(f"buffer_store_dword v{V_ST}, v2, {WS}, s0 offen")


def dpp_steps(op, regs, ctrls):
    for c in ctrls:
        pad = max(0, 2 - (len(regs) - 1))
        if pad:
            nop(pad)
        for r in regs:
            A(f"{op}_dpp v{r}, v{r}, v{r} {c} row_mask:0xf bank_mask:0xf")


ROW_ALL = ["quad_perm:[1,0,3,2]", "quad_perm:[2,3,0,1]", "row_half_mirror", "row_mirror"]
ROW_HI = ["row_ror:4", "row_ror:8"]


def swap_steps(op, regs, tmps, which=(16, 32)):
    for wd in which:
        sw = f"v_permlane{wd}_swap_b32"
        for r, t in zip(regs, tmps):
            A(f"v_mov_b32 v{t}, v{r}")
        pad = max(0, 2 - (len(regs) - 1))
        if pad:
            nop(pad)
        for r, t in zip(regs, tmps):
            A(f"{sw} v{r}, v{t}")
        for r, t in zip(regs, tmps):
            A(f"{op} v{r}, v{r}, v{t}")


def allreduce(op, regs, tmps):
    nop(2)
    dpp_steps(op, regs, ROW_ALL)
    swap_steps(op, regs, tmps)


def lds_wait(flag_off, vt, va, sleep=0):
    l, e = newlbl("Lw"), newlbl("Lwe")
    A(f"v_mov_b32 v{va}, {flag_off}")
    A(f"s_mov_b32 s{S_TO}, {CFG['timeout']}")
    L(l)
    if sleep:
        A(f"s_sleep {sleep}")
    A(f"ds_read_b32 v{vt}, v{va}")
    A(f"s_sub_u32 s{S_TO}, s{S_TO}, 1")
    A(f"s_cbranch_scc1 {e}")
    A("s_waitcnt lgkmcnt(0)")
    A(f"v_readfirstlane_b32 s{S_T0}, v{vt}")
    A(f"s_cmp_eq_u32 s{S_T0}, 0")
    A(f"s_cbranch_scc1 {l}")
    L(e)
    A("s_waitcnt lgkmcnt(0)")


def lds_set(flag_off, vt, va):
    A("s_waitcnt lgkmcnt(0)")
    A(f"v_mov_b32 v{va}, {flag_off}")
    A(f"v_mov_b32 v{vt}, 1")
    A(f"ds_write_b32 v{va}, v{vt}")


def lds_sync(cnt_off, n, vt, va):
    l, e = newlbl("Ls"), newlbl("Lse")
    A(f"v_mov_b32 v{va}, {cnt_off}")
    A(f"v_mov_b32 v{vt}, 1")
    A("s_mov_b64 exec, 1")
    A(f"ds_add_u32 v{va}, v{vt}")
    A("s_mov_b64 exec, -1")
    A(f"s_mov_b32 s{S_TO}, {CFG['timeout']}")
    L(l)
    A(f"ds_read_b32 v{vt}, v{va}")
    A(f"s_sub_u32 s{S_TO}, s{S_TO}, 1")
    A(f"s_cbranch_scc1 {e}")
    A("s_waitcnt lgkmcnt(0)")
    A(f"v_readfirstlane_b32 s{S_T0}, v{vt}")
    A(f"s_cmp_lt_u32 s{S_T0}, {n}")
    A(f"s_cbranch_scc1 {l}")
    L(e)
    A("s_waitcnt lgkmcnt(0)")


def tree3(op3, op2, regs, t):
    regs = list(regs)
    A(f"{op3} v{t}, v{regs[0]}, v{regs[1]}, v{regs[2]}")
    i = 3
    while i + 1 < len(regs):
        A(f"{op3} v{t}, v{t}, v{regs[i]}, v{regs[i+1]}")
        i += 2
    if i < len(regs):
        A(f"{op2} v{t}, v{t}, v{regs[i]}")


def tag(quad, tg):
    for j in range(4):
        A(f"v_add_u32 v{quad+j}, 0x200, v{quad+j}")
    for j in range(4):
        A(f"v_bfi_b32 v{quad+j}, v{V_MSK}, v{tg+j}, v{quad+j}")


def tpoll(loads, regs, t, tg, sleep=0):
    l, e = newlbl("Lt"), newlbl("Lte")
    regs = list(regs)
    A(f"s_mov_b32 s{S_TO}, {CFG['timeout']}")
    L(l)
    if sleep:
        A(f"s_sleep {sleep}")
    loads()
    A(f"s_sub_u32 s{S_TO}, s{S_TO}, 1")
    A(f"s_cbranch_scc1 {e}")
    A("s_waitcnt vmcnt(0)")
    for i, r in enumerate(regs):
        A(f"v_xor_b32 v{r}, v{r}, v{tg + (i & 3)}")
    tree3("v_or3_b32", "v_or_b32", regs, t)
    A(f"v_and_b32 v{t}, v{V_MSK}, v{t}")
    A(f"v_cmp_ne_u32 vcc, 0, v{t}")
    A("s_cmp_lg_u64 vcc, 0")
    A(f"s_cbranch_scc1 {l}")
    L(e)
    A("s_waitcnt vmcnt(0)")


def tpoll2(loads, nld, bases, nreg, t, tg, consume):
    l, eA, eB, done = newlbl("Lu"), newlbl("LuA"), newlbl("LuB"), newlbl("Lud")

    def check(base, target):
        A(f"s_waitcnt vmcnt({nld})")
        regs = list(range(base, base + nreg))
        for i, r in enumerate(regs):
            A(f"v_xor_b32 v{r}, v{r}, v{tg + (i & 3)}")
        tree3("v_or3_b32", "v_or_b32", regs, t)
        A(f"v_and_b32 v{t}, v{V_MSK}, v{t}")
        A(f"v_cmp_ne_u32 vcc, 0, v{t}")
        A("s_cmp_eq_u64 vcc, 0")
        A(f"s_cbranch_scc1 {target}")
    A(f"s_mov_b32 s{S_TO}, {CFG['timeout']}")
    loads(bases[0])
    L(l)
    loads(bases[1])
    check(bases[0], eA)
    loads(bases[0])
    check(bases[1], eB)
    A(f"s_sub_u32 s{S_TO}, s{S_TO}, 1")
    A(f"s_cbranch_scc0 {l}")
    A("s_waitcnt vmcnt(0)")
    L(eA)
    consume(bases[0])
    A(f"s_branch {done}")
    L(eB)
    consume(bases[1])
    L(done)


def bf16r(dst, src):
    A(f"v_cvt_pk_bf16_f32 v{dst}, v{src}, v{src}")
    A(f"v_lshlrev_b32 v{dst}, 16, v{dst}")


def unpack(dst, src, n):
    for i in range(n):
        A(f"v_lshlrev_b32 v{dst+2*i}, 16, v{src+i}")
        A(f"v_and_b32 v{dst+2*i+1}, 0xffff0000, v{src+i}")


def pack(dst, src, n):
    for i in range(n):
        A(f"v_cvt_pk_bf16_f32 v{dst+i}, v{src+2*i}, v{src+2*i+1}")


def layernorm(xs, nb, tmp, outp):
    s = [tmp + i for i in range(nb)]
    q = [tmp + nb + i for i in range(nb)]
    t = [tmp + 2 * nb + i for i in range(nb)]
    mb = [tmp + 3 * nb + i for i in range(nb)]
    d = [tmp + 4 * nb + 8 * i for i in range(nb)]
    for i in range(nb):
        x = xs[i]
        A(f"v_add_f32 v{s[i]}, v{x}, v{x+1}")
        A(f"v_add_f32 v{t[i]}, v{x+2}, v{x+3}")
        A(f"v_add_f32 v{q[i]}, v{x+4}, v{x+5}")
        A(f"v_add_f32 v{mb[i]}, v{x+6}, v{x+7}")
        A(f"v_add_f32 v{s[i]}, v{s[i]}, v{t[i]}")
        A(f"v_add_f32 v{q[i]}, v{q[i]}, v{mb[i]}")
        A(f"v_add_f32 v{s[i]}, v{s[i]}, v{q[i]}")
    allreduce("v_add_f32", s, t)
    for i in range(nb):
        A(f"v_mul_f32 v{s[i]}, {f2u(1.0/512):#x}, v{s[i]}")
    for i in range(nb):
        x = xs[i]
        for j in range(8):
            A(f"v_sub_f32 v{d[i]+j}, v{x+j}, v{s[i]}")
        A(f"v_mul_f32 v{q[i]}, v{d[i]}, v{d[i]}")
        for j in range(1, 8):
            A(f"v_fmac_f32 v{q[i]}, v{d[i]+j}, v{d[i]+j}")
        bf16r(mb[i], s[i])
    nop(2)
    dpp_steps("v_add_f32", q, ROW_ALL)
    for i in range(nb):
        x = xs[i]
        for j in range(8):
            A(f"v_sub_f32 v{d[i]+j}, v{x+j}, v{mb[i]}")
        pack(outp[i], d[i], 4)
        unpack(d[i], outp[i], 4)
    swap_steps("v_add_f32", q, t)
    for i in range(nb):
        A(f"v_mul_f32 v{q[i]}, {f2u(1.0/512):#x}, v{q[i]}")
        bf16r(q[i], q[i])
        A(f"v_add_f32 v{q[i]}, {f2u(1e-5):#x}, v{q[i]}")
        bf16r(q[i], q[i])
        A(f"v_sqrt_f32 v{q[i]}, v{q[i]}")
        nop(1)
        bf16r(q[i], q[i])
        A(f"v_rcp_f32 v{q[i]}, v{q[i]}")
    nop(1)
    for i in range(nb):
        for j in range(8):
            A(f"v_mul_f32 v{d[i]+j}, v{d[i]+j}, v{q[i]}")
        pack(outp[i], d[i], 4)


def mfma(d, a, b, c=None):
    cc = f"v[{c}:{c+3}]" if c is not None else "0"
    A(f"v_mfma_f32_16x16x32_bf16 v[{d}:{d+3}], v[{a}:{a+3}], v[{b}:{b+3}], {cc}")


MASK_N2 = 0x0003000300030003
MASK_N4 = 0x000f000f000f000f


def set_exec(mask):
    A(f"s_mov_b32 exec_lo, {mask & 0xffffffff:#x}")
    A(f"s_mov_b32 exec_hi, {mask >> 32:#x}")


def tag_poll(sleep0, sel, barrier=False):
    lt, lte = newlbl(), newlbl()
    A(f"s_and_b32 s{S_T1}, s{sel}, 3")
    A(f"s_lshl_b32 s{S_T1}, s{S_T1}, 6")
    A(f"s_mov_b32 s{S_TO}, {CFG['timeout']}")
    if sleep0:
        A(f"s_sleep {sleep0}")
    L(lt)
    A(f"s_load_dwordx2 s[{S_TG}:{S_TG+1}], s[{P_DBG}:{P_DBG+1}], s{S_T1} glc")
    A(f"s_sub_u32 s{S_TO}, s{S_TO}, 1")
    A(f"s_cbranch_scc1 {lte}")
    A("s_waitcnt lgkmcnt(0)")
    A(f"s_cmp_lg_u32 s{S_TG+1}, 0")
    A(f"s_cbranch_scc1 {lte}")
    A(f"s_sleep {CFG['tsleep']}")
    A(f"s_branch {lt}")
    L(lte)
    A("s_waitcnt lgkmcnt(0)")
    A(f"v_mov_b32 v100, s{S_TG}")
    A(f"v_mov_b32 v101, s{S_TG+1}")
    A("v_and_b32 v104, 0x3ff, v100")
    A("v_bfe_u32 v105, v100, 10, 10")
    A("v_bfe_u32 v106, v100, 20, 10")
    A("v_alignbit_b32 v107, v101, v100, 30")
    A("v_and_b32 v107, 0x3ff, v107")
    A(f"v_mov_b32 v102, {L_TAG}")
    if barrier:
        A("s_barrier")
    A("ds_write_b64 v102, v[100:101]")
    A("ds_write_b128 v102, v[104:107] offset:16")
    lds_set(L_FLAG, 100, 101)


XNT = ' nt' if CFG.get('xnt', 0) else ''
out.append(f"""; fused pre-LN attention(decode, sliding window) + gelu MLP, persistent kernel
; @launch grid=(256,1,1) block=(640,1,1) lds={LDS_BYTES}
.amdgcn_target "amdgcn-amd-amdhsa--gfx950"
.text
.globl {NAME}_kernel
.p2align 8
.type {NAME}_kernel,@function
{NAME}_kernel:""")

BLK = {"head": out}


def begin(name):
    global out
    BLK[name] = []
    out = BLK[name]


def post_entry():
    A("s_waitcnt lgkmcnt(0)")
    srd(SRD_WS, P_WS, WS_SIZE)
    if CFG["stamps"] == 2:
        A(f"v_mov_b32 v166, s{P_DBG}")
        A(f"v_mov_b32 v167, s{P_DBG+1}")
    stamp(0)


def att_common():
    A(f"s_sub_u32 s{S_A}, s{S_A}, 16")
    A(f"s_lshr_b32 s{S_B}, s{S_A}, 3")
    A(f"s_lshl_b32 s{S_T0}, s{S_X}, 4")
    A(f"s_add_u32 s{S_T0}, s{S_T0}, s{S_A}")
    A(f"s_mul_i32 s{S_T0}, s{S_T0}, {RECP}")
    A(f"s_add_u32 s{S_PNA}, s{S_T0}, {WS_PNA}")
    A(f"s_add_u32 s{S_PNB}, s{S_T0}, {WS_PNB}")


def gv_common():
    A(f"s_mul_i32 s{S_SUB}, s{S_X}, 7")
    A(f"s_add_u32 s{S_SUB}, s{S_SUB}, s{S_A}")
    A(f"s_sub_u32 s{S_SUB}, s{S_SUB}, 8")
    A(f"s_mov_b32 s{S_ROLE}, 2")
    A(f"s_cmp_lt_u32 s{S_A}, 8")
    A(f"s_cselect_b32 s{S_ROLE}, 1, s{S_ROLE}")
    A(f"s_cselect_b32 s{S_SUB}, s{S_A}, s{S_SUB}")
    A(f"s_cmp_eq_u32 s{S_A}, 15")
    A(f"s_cselect_b32 s{S_ROLE}, 0, s{S_ROLE}")


def zero_flags():
    for j in range(4):
        A(f"v_mov_b32 v{12+j}, 0")
    A(f"v_mov_b32 v3, {L_FLAG}")
    A("ds_write_b128 v3, v[12:15]")
    A(f"ds_write_b128 v3, v[12:15] offset:{L_FL2 - L_FLAG}")


A("s_cmp_ge_u32 s2, 256")
A("s_cbranch_scc1 L_end")
A("s_load_dwordx16 s[36:51], s[0:1], 0")
A("s_load_dwordx8 s[52:59], s[0:1], 64")
A("s_load_dwordx2 s[60:61], s[0:1], 96")
A("v_lshrrev_b32 v1, 6, v0")
A("v_and_b32 v0, 63, v0")
A(f"s_and_b32 s{S_X}, s2, 7")
A(f"v_readfirstlane_b32 s{S_WAVE}, v1")
A(f"s_lshr_b32 s{S_A}, s2, 3")
if CFG["pf"]:
    C("early workgroups: waves 0..5 pull the kernel's code into L2 (striped)")
    A(f"s_cmp_ge_u32 s{S_WAVE}, 6")
    A("s_cbranch_scc1 L_pfe")
    A(f"s_cmp_ge_u32 s{S_A}, {CFG['pfw']}")
    A("s_cbranch_scc1 L_pfe")
    A("s_getpc_b64 s[24:25]")
    L("L_pcref")
    A(f"s_lshl_b32 s26, s{S_WAVE}, 7")
    L("L_pf")
    A("s_load_dword s27, s[24:25], s26")
    A("s_add_u32 s26, s26, 768")
    A("s_cmp_lt_u32 s26, L_end-L_pcref")
    A("s_cbranch_scc1 L_pf")
    L("L_pfe")
A("v_lshlrev_b32 v2, 4, v0")
A("v_lshrrev_b32 v4, 4, v0")
A(f"v_mov_b32 v{V_MSK}, 0x3ff")
A("v_and_b32 v6, 15, v0")
A("v_lshrrev_b32 v8, 3, v0")
A("v_bfe_u32 v9, v0, 1, 2")
A("v_and_b32 v10, 1, v0")
A("v_lshlrev_b32 v11, 5, v8")
A("v_lshl_add_u32 v11, v10, 4, v11")
if CFG["stamps"]:
    A(f"v_mov_b32 v{V_ST}, 0")
C("dispatch before waiting for the kernel arguments")
A(f"s_lshr_b32 s{S_T0}, s{S_A}, 4")
A(f"s_lshl_b32 s{S_T0}, s{S_T0}, 4")
A(f"s_or_b32 s{S_T0}, s{S_T0}, s{S_WAVE}")
A(f"s_cmp_ge_u32 s{S_T0}, 24")
A("s_cbranch_scc1 L_ldr")
A(f"s_cmp_ge_u32 s{S_T0}, 16")
A("s_cbranch_scc1 L_att")
A(f"s_cmp_lg_u32 s{S_T0}, 6")
A("s_cbranch_scc1 L_GV")

V_K = 16
V_Q = 48
V_S = 64
V_SM = 72
V_PNA = 80
V_T = 84
V_TG = 124
V_G = 128

begin("att")
L("L_att")
att_common()
post_entry()
srd(SRD_C, P_OUT, 2048)
A(f"s_lshl_b32 s{S_T1}, s{S_WAVE}, 8")
A(f"s_add_u32 s{S_PNA}, s{S_PNA}, s{S_T1}")
A(f"s_add_u32 s{S_PNB}, s{S_PNB}, s{S_T1}")
A(f"v_lshlrev_b32 v{V_PNA}, 6, v6")
A(f"v_lshl_add_u32 v{V_PNA}, v4, 4, v{V_PNA}")
C("G role: even a -> gi = x*8 + a/2 (wave 0)")
A(f"s_lshl_b32 s{S_T0}, s{S_X}, 3")
A(f"s_lshr_b32 s{S_T1}, s{S_A}, 1")
A(f"s_add_u32 s{S_SUB}, s{S_T0}, s{S_T1}")
A(f"s_and_b32 s{S_ROLE}, s{S_A}, 1")
A(f"s_or_b32 s{S_ROLE}, s{S_ROLE}, s{S_WAVE}")
A(f"s_cmp_lg_u32 s{S_ROLE}, 0")
A("s_cbranch_scc1 L_nogsm")
srd(SRD_B, P_X, 2048)
A(f"v_and_b32 v{V_T}, 3, v0")
A(f"v_lshlrev_b32 v{V_T}, 3, v{V_T}")
A(f"s_lshl_b32 s{S_T0}, s{S_SUB}, 5")
A(f"buffer_load_dwordx2 v[{V_SM}:{V_SM+1}], v{V_T}, {SB}, s{S_T0} offen{XNT}")
srd(SRD_B, P_B2, 1024)
A(f"s_and_b32 s{S_T0}, s{S_T0}, 1023")
A(f"buffer_load_dwordx2 v[{V_SM+2}:{V_SM+3}], v{V_T}, {SB}, s{S_T0} offen{XNT}")
L("L_nogsm")
A("s_barrier")
C("pre-touch this wave's q lines so that they are resident at the memory side")
A(f"s_lshl_b32 s{S_T1}, s{S_X}, 12")
A(f"s_lshl_b32 s{S_T2}, s{S_B}, 11")
A(f"s_add_u32 s{S_T1}, s{S_T1}, s{S_T2}")
A(f"s_lshl_b32 s{S_T2}, s{S_WAVE}, 8")
A(f"s_add_u32 s{S_T1}, s{S_T1}, s{S_T2}")
A(f"s_add_u32 s{S_T2}, s{SRD_WS}, s{S_T1}")
A(f"s_addc_u32 s{S_T3}, s{SRD_WS+1}, 0")
if CFG["touch"]:
    for i in range(4):
        A(f"s_load_dword s{64+i}, s[{S_T2}:{S_T3}], {WS_Q + 64*i} glc")
C("K fragment addresses: K + w*8192 + m*256 + ((4k+g)^m)*16")
KA = V_T + 36
A(f"s_lshl_b32 s{S_T0}, s{S_WAVE}, 13")
A(f"s_add_u32 s{S_T0}, s{S_T0}, {L_K}")
for kp in range(4):
    A(f"v_add_u32 v{KA+kp}, {4*kp}, v4")
    A(f"v_xor_b32 v{KA+kp}, v{KA+kp}, v6")
    A(f"v_lshlrev_b32 v{KA+kp}, 4, v{KA+kp}")
    A(f"v_lshl_add_u32 v{KA+kp}, v6, 8, v{KA+kp}")
    A(f"v_add_u32 v{KA+kp}, s{S_T0}, v{KA+kp}")
A(f"s_cmp_lg_u32 s{S_WAVE}, 7")
A("s_cbranch_scc1 L_ntp")
tag_poll(CFG["tsleepa"], S_A)
L("L_ntp")
lds_wait(L_FLAG, V_T + 2, V_T + 3)
A(f"v_mov_b32 v{V_T}, 0")
A(f"ds_read_b64 v[{V_T+2}:{V_T+3}], v{V_T} offset:{L_TAG}")
A(f"ds_read_b128 v[{V_TG}:{V_TG+3}], v{V_T} offset:{L_TAG + 16}")
A("s_waitcnt lgkmcnt(0)")
A(f"v_readfirstlane_b32 s{S_TG}, v{V_T+2}")
A(f"v_readfirstlane_b32 s{S_TG+1}, v{V_T+3}")
stamp(1)
S2 = V_T + 4
PK = V_T + 12
MM = V_T + 16
TT = V_T + 20
EX = V_T + 24
QA = V_T + 1
A(f"s_lshl_b32 s{S_T0}, s{S_WAVE}, 7")
A(f"v_lshl_add_u32 v{QA}, v0, 2, s{S_T0}")
A(f"v_and_b32 v{V_T+2}, 3, v0")
A(f"v_lshlrev_b32 v{V_T+3}, 8, v{V_T+2}")
A(f"v_lshl_add_u32 v{V_T+3}, v4, 4, v{V_T+3}")
A(f"s_lshl_b32 s{S_T0}, s{S_WAVE}, 2")
A(f"v_lshl_add_u32 v{TT+2}, v0, 5, s{S_T0}")
A(f"v_lshlrev_b32 v{TT+3}, 5, v{V_T+2}")
C("---- scalar gather of q: this wave's 256 bytes (16 granules {d0,d1,T0,T1})")
lq, lqe = newlbl("Lq"), newlbl("Lqe")
stamp(12)
A(f"s_mov_b32 s{S_TO}, {CFG['timeout']}")
L(lq)
for i in range(4):
    A(f"s_load_dwordx16 s[{S_Q+16*i}:{S_Q+16*i+15}], s[{S_T2}:{S_T3}], {WS_Q + 64*i} glc")
A(f"s_sub_u32 s{S_TO}, s{S_TO}, 1")
A(f"s_cbranch_scc1 {lqe}")
A("s_waitcnt lgkmcnt(0)")
A(f"s_and_b64 s[{S_T4}:{S_T5}], s[{S_Q+2}:{S_Q+3}], s[{S_Q+6}:{S_Q+7}]")
A(f"s_or_b64 s[{S_T0}:{S_T1}], s[{S_Q+2}:{S_Q+3}], s[{S_Q+6}:{S_Q+7}]")
for gq in range(2, 16):
    A(f"s_and_b64 s[{S_T4}:{S_T5}], s[{S_T4}:{S_T5}], s[{S_Q+4*gq+2}:{S_Q+4*gq+3}]")
    A(f"s_or_b64 s[{S_T0}:{S_T1}], s[{S_T0}:{S_T1}], s[{S_Q+4*gq+2}:{S_Q+4*gq+3}]")
A(f"s_xor_b64 s[{S_T4}:{S_T5}], s[{S_T4}:{S_T5}], s[{S_TG}:{S_TG+1}]")
A(f"s_xor_b64 s[{S_T0}:{S_T1}], s[{S_T0}:{S_T1}], s[{S_TG}:{S_TG+1}]")
A(f"s_or_b64 s[{S_T4}:{S_T5}], s[{S_T4}:{S_T5}], s[{S_T0}:{S_T1}]")
A(f"s_cbranch_scc1 {lq}")
L(lqe)
A("s_waitcnt lgkmcnt(0)")
stamp(8)
if CFG["stamps"] == 1:
    A(f"s_sub_u32 s0, {CFG['timeout']}, s{S_TO}")
    A(f"v_writelane_b32 v{V_ST}, s0, 9")
for gq in range(16):
    A(f"v_writelane_b32 v{V_T}, s{S_Q+4*gq}, {2*gq}")
    A(f"v_writelane_b32 v{V_T}, s{S_Q+4*gq+1}, {2*gq+1}")
A("s_mov_b32 exec_hi, 0")
A(f"ds_write_b32 v{QA}, v{V_T} offset:{L_QL}")
A("s_mov_b32 exec_hi, -1")
C("K fragments as soon as K landed")
lds_wait(L_FLAG + 4, V_T, TT, sleep=1)
for kp in range(4):
    for tt in range(2):
        r = V_K + (tt * 4 + kp) * 4
        A(f"ds_read_b128 v[{r}:{r+3}], v{KA+kp} offset:{tt*4096}")
C("poll the q operand itself (LDS sentinel)")
l1, l1e = newlbl("Lqo"), newlbl("Lqoe")
A(f"s_mov_b32 s{S_TO}, {CFG['timeout']}")
L(l1)
for kp in range(4):
    A(f"ds_read_b128 v[{V_Q+4*kp}:{V_Q+4*kp+3}], v{V_T+3} offset:{L_QL + kp*64}")
A(f"s_sub_u32 s{S_TO}, s{S_TO}, 1")
A(f"s_cbranch_scc1 {l1e}")
A("s_waitcnt lgkmcnt(0)")
tree3("v_max3_u32", "v_max_u32", range(V_Q, V_Q + 16), TT)
A(f"v_cmp_eq_u32 vcc, -1, v{TT}")
A("s_cmp_lg_u64 vcc, 0")
A(f"s_cbranch_scc1 {l1}")
L(l1e)
A("s_waitcnt lgkmcnt(0)")
for kp in range(4):
    for tt in range(2):
        mfma(V_S + 4 * tt, V_K + (tt * 4 + kp) * 4, V_Q + 4 * kp, None if kp == 0 else V_S + 4 * tt)
stamp(2)
A(f"s_mov_b32 s{S_T0}, {f2u(SCALE):#x}")
A(f"s_mov_b32 s{S_T1}, {f2u(LOG2E):#x}")
nop(6)
pack(PK, V_S, 4)
unpack(S2, PK, 4)
for j in range(8):
    A(f"v_mul_f32 v{S2+j}, s{S_T0}, v{S2+j}")
pack(PK, S2, 4)
unpack(S2, PK, 4)
A(f"v_max3_f32 v{MM}, v{S2}, v{S2+1}, v{S2+2}")
A(f"v_max3_f32 v{MM}, v{MM}, v{S2+3}, v{S2+4}")
A(f"v_max3_f32 v{MM}, v{MM}, v{S2+5}, v{S2+6}")
A(f"v_max_f32 v{MM}, v{MM}, v{S2+7}")
swap_steps("v_max_f32", [MM], [TT])
A("s_mov_b64 exec, 15")
A(f"ds_write_b32 v{TT+2}, v{MM} offset:{L_MX}")
A("s_mov_b64 exec, -1")
for j in range(8):
    A(f"v_mul_f32 v{S2+j}, s{S_T1}, v{S2+j}")
l2, l2e = newlbl("Lmx"), newlbl("Lmxe")
A(f"s_mov_b32 s{S_TO}, {CFG['timeout']}")
L(l2)
A(f"ds_read_b128 v[{EX}:{EX+3}], v{TT+3} offset:{L_MX}")
A(f"ds_read_b128 v[{EX+4}:{EX+7}], v{TT+3} offset:{L_MX + 16}")
A(f"s_sub_u32 s{S_TO}, s{S_TO}, 1")
A(f"s_cbranch_scc1 {l2e}")
A("s_waitcnt lgkmcnt(0)")
tree3("v_max3_u32", "v_max_u32", range(EX, EX + 8), TT)
tree3("v_max3_f32", "v_max_f32", range(EX, EX + 8), MM)
A(f"v_cmp_eq_u32 vcc, -1, v{TT}")
A("s_cmp_lg_u64 vcc, 0")
A(f"s_cbranch_scc1 {l2}")
L(l2e)
A("s_waitcnt lgkmcnt(0)")
A(f"v_mul_f32 v{MM}, s{S_T1}, v{MM}")
for j in range(8):
    A(f"v_sub_f32 v{EX+j}, v{S2+j}, v{MM}")
for j in range(8):
    A(f"v_exp_f32 v{EX+j}, v{EX+j}")
A(f"s_lshl_b32 s{S_T0}, s{S_WAVE}, 10")
A(f"v_add_u32 v{TT}, s{S_T0}, v2")
pack(PK, EX, 4)
A(f"ds_write_b128 v{TT}, v[{PK}:{PK+3}] offset:{L_SC}")
A(f"v_add_f32 v{MM+1}, v{EX}, v{EX+1}")
A(f"v_add_f32 v{TT}, v{EX+2}, v{EX+3}")
A(f"v_add_f32 v{TT+1}, v{EX+4}, v{EX+5}")
A(f"v_add_f32 v{EX}, v{EX+6}, v{EX+7}")
A(f"v_add_f32 v{MM+1}, v{MM+1}, v{TT}")
A(f"v_add_f32 v{EX}, v{EX}, v{TT+1}")
A(f"v_add_f32 v{MM+1}, v{MM+1}, v{EX}")
swap_steps("v_add_f32", [MM + 1], [TT])
A("s_mov_b64 exec, 15")
A(f"ds_write_b32 v{TT+2}, v{MM+1} offset:{L_LS}")
A("s_mov_b64 exec, -1")
stamp(3)
VA0, VA1, VB0, VB1 = V_T + 32, V_T + 33, V_T + 34, V_T + 35


def vw2_addr():
    A(f"v_lshlrev_b32 v{VA0}, 10, v4")
    A(f"v_lshl_add_u32 v{VA0}, v6, 3, v{VA0}")
    A(f"v_and_b32 v{VA1}, 1, v4")
    A(f"v_lshl_add_u32 v{VA0}, v{VA1}, 7, v{VA0}")
    A(f"v_xor_b32 v{VA1}, 128, v{VA0}")


vw2_addr()
A(f"s_lshl_b32 s{S_T0}, s{S_WAVE}, 8")
A(f"s_add_u32 s{S_T0}, s{S_T0}, {L_V}")
A(f"v_add_u32 v{VB0}, s{S_T0}, v{VA0}")
A(f"v_add_u32 v{VB1}, s{S_T0}, v{VA1}")
A("s_waitcnt lgkmcnt(0)")
A("s_barrier")
stamp(5)
A(f"s_cmp_gt_u32 s{S_WAVE}, 4")
A("s_cbranch_scc1 L_exit")
A(f"s_cmp_lt_u32 s{S_WAVE}, 4")
A("s_cbranch_scc1 L_pv")
C("---- wave 4: publish stats {m,l,T0,T1} per head (lanes 0..3)")
A(f"ds_read_b128 v[{EX}:{EX+3}], v{TT+3} offset:{L_LS}")
A(f"ds_read_b128 v[{EX+4}:{EX+7}], v{TT+3} offset:{L_LS + 16}")
A(f"v_mov_b32 v{MM+2}, s{S_TG}")
A(f"v_mov_b32 v{MM+3}, s{S_TG+1}")
A("s_waitcnt lgkmcnt(0)")
for j in range(4):
    A(f"v_add_f32 v{EX+j}, v{EX+j}, v{EX+4+j}")
A(f"v_add_f32 v{EX}, v{EX}, v{EX+1}")
A(f"v_add_f32 v{EX+2}, v{EX+2}, v{EX+3}")
A(f"v_add_f32 v{MM+1}, v{EX}, v{EX+2}")
A("s_mov_b64 exec, 15")
if CFG["dual"]:
    A(f"buffer_store_dwordx4 v[{MM}:{MM+3}], v2, {WS}, s{S_PNA} offen")
A(f"buffer_store_dwordx4 v[{MM}:{MM+3}], v2, {WS}, s{S_PNB} offen sc1")
A("s_branch L_exit")
L("L_pv")
C("---- PV (waves 0..3, 32 dims each, 8 k-steps)")
PB = V_G
VF = V_K


def pv_reads(t):
    A(f"ds_read_b128 v[{PB+4*t}:{PB+4*t+3}], v2 offset:{L_SC + t*1024}")
    for c2 in range(2):
        for h in range(2):
            r = VF + ((t % 6) * 2 + c2) * 4 + 2 * h
            A(f"ds_read_b64_tr_b16 v[{r}:{r+1}], v{VB0 + c2} offset:{t*8192 + h*4096}")


for t in range(3):
    pv_reads(t)
for t in range(8):
    A(f"s_waitcnt lgkmcnt({min(2, 7 - t)*5})")
    for c2 in range(2):
        mfma(V_S + 4 * c2, VF + ((t % 6) * 2 + c2) * 4, PB + 4 * t, None if t == 0 else V_S + 4 * c2)
    if t + 3 < 8:
        pv_reads(t + 3)
nop(7)
pack(PK, V_S, 4)
set_exec(MASK_N4)
if CFG["dual"]:
    A(f"buffer_store_dwordx4 v[{PK}:{PK+3}], v{V_PNA}, {WS}, s{S_PNA} offen")
A(f"buffer_store_dwordx4 v[{PK}:{PK+3}], v{V_PNA}, {WS}, s{S_PNB} offen sc1")
A("s_mov_b64 exec, -1")
stamp(6)
A(f"s_cmp_lg_u32 s{S_ROLE}, 0")
A("s_cbranch_scc1 L_exit")

C("==== G: final reduce of 16 outputs (16gi..16gi+15)")
A(f"s_lshl_b32 s{S_T2}, s{S_SUB}, 6")
A(f"s_add_u32 s{S_T3}, s{S_T2}, {WS_AP}")
A(f"s_add_u32 s{S_T2}, s{S_T2}, {WS_Y}")
A(f"v_lshrrev_b32 v{TT+2}, 2, v0")
A(f"v_and_b32 v{TT+3}, 3, v0")
A(f"v_lshlrev_b32 v{TT}, 12, v{TT+2}")
A(f"v_lshl_add_u32 v{TT}, v{TT+3}, 4, v{TT}")
A(f"s_movk_i32 s{S_T0}, {YP}")
A(f"v_mul_lo_u32 v{TT+2}, v{TT+2}, s{S_T0}")
A(f"v_lshl_add_u32 v{TT+2}, v{TT+3}, 4, v{TT+2}")
for i in range(1, 4):
    A(f"s_add_u32 s{40+i}, s{S_T2}, {16*i*YP}")
GA = V_G
A("s_mov_b32 exec_hi, 0")


def g1_loads():
    A(f"buffer_load_dwordx4 v[{GA}:{GA+3}], v{TT}, {WS}, s{S_T3} offen sc1")


tpoll(g1_loads, range(GA, GA + 4), V_T, V_TG, CFG['g1sl'])
A("s_mov_b64 exec, -1")
stamp(7)
nop(1)
dpp_steps("v_add_f32", [GA + j for j in range(4)], ROW_HI)
swap_steps("v_add_f32", [GA + j for j in range(4)], [GA + 4 + j for j in range(4)], which=(16,))
GH = V_G + 8
GP = V_G + 16
GB = V_G + 20
pack(GP, GA, 2)
unpack(GA, GP, 2)
unpack(GH, V_SM, 2)
for j in range(4):
    A(f"v_add_f32 v{GH+j}, v{GH+j}, v{GA+j}")
pack(GP, GH, 2)
unpack(GH, GP, 2)
unpack(GB, V_SM + 2, 2)
GY = V_K


def g2_loads():
    for j in range(4):
        A(f"v_mov_b32 v{GY+12+j}, v{V_TG+j}")
    A(f"buffer_load_dwordx4 v[{GY}:{GY+3}], v{TT+2}, {WS}, s{S_T2} offen sc1")
    A(f"buffer_load_dwordx4 v[{GY+4}:{GY+7}], v{TT+2}, {WS}, s41 offen sc1")
    A(f"buffer_load_dwordx4 v[{GY+8}:{GY+11}], v{TT+2}, {WS}, s42 offen sc1")
    A("s_mov_b32 exec_hi, 0")
    A(f"buffer_load_dwordx4 v[{GY+12}:{GY+15}], v{TT+2}, {WS}, s43 offen sc1")
    A("s_mov_b32 exec_hi, -1")


tpoll(g2_loads, range(GY, GY + 16), V_T, V_TG, CFG['g2sl'])
stamp(10)
for j in range(4):
    A(f"v_add_f32 v{GY+j}, v{GY+j}, v{GY+4+j}")
    A(f"v_add_f32 v{GY+8+j}, v{GY+8+j}, v{GY+12+j}")
for j in range(4):
    A(f"v_add_f32 v{GY+j}, v{GY+j}, v{GY+8+j}")
dpp_steps("v_add_f32", [GY + j for j in range(4)], ROW_HI)
swap_steps("v_add_f32", [GY + j for j in range(4)], [GY + 4 + j for j in range(4)])
pack(GP, GY, 2)
unpack(GY, GP, 2)
for j in range(4):
    A(f"v_add_f32 v{GY+j}, v{GY+j}, v{GB+j}")
pack(GP, GY, 2)
unpack(GY, GP, 2)
for j in range(4):
    A(f"v_add_f32 v{GY+j}, v{GY+j}, v{GH+j}")
pack(GP, GY, 2)
A(f"s_lshl_b32 s{S_T2}, s{S_SUB}, 5")
A("v_lshlrev_b32 v3, 3, v0")
A("s_mov_b64 exec, 15")
A(f"buffer_store_dwordx2 v[{GP}:{GP+1}], v3, {SC_}, s{S_T2} offen")
stamp(11)
A("s_branch L_exit")

begin("ldr")
L("L_ldr")
att_common()
C("kv byte offset: ((b*8+x)*8192 + 6144 + 256 s)*256")
A(f"s_lshl_b32 s{S_T0}, s{S_B}, 3")
A(f"s_add_u32 s{S_T0}, s{S_T0}, s{S_X}")
A(f"s_lshl_b32 s{S_T0}, s{S_T0}, 5")
A(f"s_and_b32 s{S_T1}, s{S_A}, 7")
A(f"s_add_u32 s{S_T0}, s{S_T0}, s{S_T1}")
A(f"s_add_u32 s{S_T0}, s{S_T0}, 24")
A(f"s_lshl_b32 s{S_T3}, s{S_T0}, 16")
A(f"s_mov_b32 s{S_T2}, 0")
A(f"s_cmp_eq_u32 s{S_WAVE}, 9")
A("s_cbranch_scc1 L_ldv")
C("K DMA lane offsets: r4=l>>4, p=l&15: r4*256 + ((p ^ (4i+r4))*16)")
for i in range(4):
    A(f"v_add_u32 v{12+i}, {4*i}, v4")
    A(f"v_xor_b32 v{12+i}, v{12+i}, v6")
    A(f"v_lshlrev_b32 v{12+i}, 4, v{12+i}")
    A(f"v_lshl_add_u32 v{12+i}, v4, 8, v{12+i}")
A(f"s_mov_b32 s{S_T1}, {L_K}")
post_entry()
srd(SRD_A, P_K, 0x2000000)
L("L_ldk1")
A(f"s_mov_b32 m0, s{S_T1}")
A(f"s_add_u32 s{S_T1}, s{S_T1}, 4096")
for i in range(4):
    A(f"buffer_load_dwordx4 v{12+i}, {SA}, s{S_T3} offen offset:{i*1024}{NT} lds")
A(f"s_add_u32 s{S_T3}, s{S_T3}, 4096")
A(f"s_add_u32 s{S_T2}, s{S_T2}, 1")
A(f"s_cmp_eq_u32 s{S_T2}, 6")
A("s_cbranch_scc0 L_ldk2")
A("s_barrier")
L("L_ldk2")
A(f"s_cmp_lt_u32 s{S_T2}, 16")
A("s_cbranch_scc1 L_ldk1")
lds_set(L_FL2, 16, 17)
stamp(1)
A("s_waitcnt vmcnt(0)")
stamp(4)
lds_set(L_FLAG + 4, 16, 17)
A("s_waitcnt lgkmcnt(0)")
A("s_branch L_exit")
L("L_ldv")
zero_flags()
for j in range(4):
    A(f"v_mov_b32 v{16+j}, -1")
A(f"ds_write_b128 v2, v[16:19] offset:{L_QL}")
A("s_mov_b64 exec, 0xff")
A(f"ds_write_b128 v2, v[16:19] offset:{L_MX}")
A("s_mov_b64 exec, -1")
A("v_lshl_add_u32 v12, v9, 8, v11")
A("v_xor_b32 v13, 32, v12")
post_entry()
srd(SRD_B, P_V, 0x2000000)
A("s_barrier")
A(f"buffer_store_dwordx4 v[16:19], v2, {WS}, s{S_PNA} offen sc1")
A(f"buffer_store_dwordx4 v[16:19], v2, {WS}, s{S_PNB} offen sc1")
lds_wait(L_FL2, 20, 21)
A(f"s_mov_b32 s{S_T1}, {L_V}")
L("L_ldv1")
A(f"s_mov_b32 m0, s{S_T1}")
A(f"s_add_u32 s{S_T1}, s{S_T1}, 4096")
for be in range(4):
    A(f"buffer_load_dwordx4 v{12 + (be & 1)}, {SB}, s{S_T3} offen offset:{be*1024}{NT} lds")
A(f"s_add_u32 s{S_T3}, s{S_T3}, 4096")
A(f"s_add_u32 s{S_T2}, s{S_T2}, 1")
A(f"s_cmp_lt_u32 s{S_T2}, 16")
A("s_cbranch_scc1 L_ldv1")
stamp(1)
A("s_waitcnt vmcnt(0)")
stamp(4)
A("s_barrier")
A("s_branch L_exit")

begin("gv")
L("L_GV")
gv_common()
A(f"s_cmp_lg_u32 s{S_WAVE}, 9")
A("s_cbranch_scc1 L_gvz")
zero_flags()
L("L_gvz")
post_entry()
A(f"s_cmp_ge_u32 s{S_WAVE}, 8")
A("s_cbranch_scc1 L_gld")
A(f"s_cmp_lg_u32 s{S_WAVE}, 7")
A("s_cbranch_scc1 L_gv2")
A("s_cmp_lg_u32 s2, 0")
A("s_cbranch_scc1 L_gv0")
C("workgroup 0 publishes the launch tag (4 replicas)")
srd(SRD_C, P_DBG, 256)
A("s_memrealtime s[24:25]")
A("s_waitcnt lgkmcnt(0)")
A("s_or_b32 s25, s25, 0x80000000")
A("v_mov_b32 v14, s24")
A("v_mov_b32 v15, s25")
A("v_lshlrev_b32 v12, 6, v0")
A("s_mov_b64 exec, 15")
A(f"buffer_store_dwordx2 v[14:15], v12, {SC_}, 0 offen sc1")
A("s_mov_b64 exec, -1")
L("L_gv0")
tag_poll(CFG["tsleep0"], S_A, barrier=True)
stamp(5)
A("s_branch L_qm2")
L("L_gv2")
A("s_barrier")
A("s_branch L_qm2")

C("---- GEMV loaders (waves 8,9)")
L("L_gld")
A(f"s_and_b32 s{S_T5}, s{S_WAVE}, 1")
C("WX style lane offsets: ct=l>>5, p=(l>>1)&15 (row), half")
A("v_bfe_u32 v3, v0, 1, 4")
A("v_lshrrev_b32 v12, 5, v0")
A("v_lshlrev_b32 v12, 5, v12")
A("v_lshl_add_u32 v12, v10, 4, v12")
A("s_barrier")
A(f"s_cmp_eq_u32 s{S_ROLE}, 0")
A("s_cbranch_scc1 L_exit")
A(f"s_cmp_eq_u32 s{S_ROLE}, 2")
A("s_cbranch_scc1 L_gld2")
C("wo tile: 512 rows x 128 B; loader i: rows 256i.. (32 instrs of 8 rows)")
srd(SRD_C, P_WO, 0x400000)
A("v_bfe_u32 v3, v0, 1, 3")
A("v_lshlrev_b32 v3, 10, v3")
A("v_lshl_add_u32 v3, v4, 5, v3")
A("v_lshl_add_u32 v3, v10, 4, v3")
A(f"s_lshl_b32 s{S_T3}, s{S_X}, 19")
A(f"s_lshl_b32 s{S_T1}, s{S_T5}, 18")
A(f"s_add_u32 s{S_T3}, s{S_T3}, s{S_T1}")
A(f"s_lshl_b32 s{S_T1}, s{S_SUB}, 7")
A(f"s_add_u32 s{S_T3}, s{S_T3}, s{S_T1}")
A(f"s_lshl_b32 s{S_T4}, s{S_T5}, 15")
A(f"s_add_u32 s{S_T4}, s{S_T4}, {L_WO}")
lds_wait(L_FLAG + 8, 16, 17, sleep=2)
A(f"s_mov_b32 s{S_T2}, 0")
L("L_gld1")
for i in range(4):
    A(f"s_mov_b32 m0, s{S_T4}")
    A(f"s_add_u32 s{S_T4}, s{S_T4}, 1024")
    A(f"buffer_load_dwordx4 v3, {SC_}, s{S_T3} offen{NT} lds")
    A(f"s_add_u32 s{S_T3}, s{S_T3}, 8192")
A(f"s_add_u32 s{S_T2}, s{S_T2}, 1")
A(f"s_cmp_lt_u32 s{S_T2}, 8")
A("s_cbranch_scc1 L_gld1")
A("s_branch L_gld5")
L("L_gld2")
A(f"s_cmp_eq_u32 s{S_T5}, 1")
A("s_cbranch_scc1 L_gld3")
srd(SRD_C, P_W1, 512 * 3584)
A(f"s_lshl_b32 s{S_T3}, s{S_SUB}, 6")
A(f"s_movk_i32 s{S_T1}, 3584")
A(f"v_mul_lo_u32 v13, v3, s{S_T1}")
A("v_add_u32 v13, v13, v12")
lds_wait(L_FLAG + 8, 16, 17, sleep=2)
A(f"s_mov_b32 s{S_T1}, {L_WX}")
A(f"s_mov_b32 s{S_T2}, 0")
L("L_gld4")
for i in range(4):
    A(f"s_mov_b32 m0, s{S_T1}")
    A(f"s_add_u32 s{S_T1}, s{S_T1}, 1024")
    A(f"buffer_load_dwordx4 v13, {SC_}, s{S_T3} offen{NT} lds")
    A(f"s_add_u32 s{S_T3}, s{S_T3}, {16*3584}")
if CFG["mwin"]:
    A(f"s_waitcnt vmcnt({CFG['mwin']})")
A(f"s_add_u32 s{S_T2}, s{S_T2}, 1")
A(f"s_cmp_lt_u32 s{S_T2}, 8")
A("s_cbranch_scc1 L_gld4")
A("s_branch L_gld5")
L("L_gld3")
srd(SRD_C, P_W2, 1792 * 1024)
A("v_lshl_add_u32 v14, v9, 10, v11")
A("v_xor_b32 v15, 32, v14")
A(f"s_lshl_b32 s{S_T3}, s{S_SUB}, 15")
lds_wait(L_FLAG + 8, 16, 17, sleep=2)
A(f"s_mov_b32 s{S_T1}, {L_W2}")
A(f"s_mov_b32 s{S_T2}, 0")
L("L_gld6")
for be in range(8):
    A(f"s_mov_b32 m0, s{S_T1}")
    A(f"s_add_u32 s{S_T1}, s{S_T1}, 1024")
    A(f"s_add_u32 s{S_T4}, s{S_T3}, {be*4096}")
    A(f"buffer_load_dwordx4 v{14 + (be & 1)}, {SC_}, s{S_T4} offen{NT} lds")
    if CFG["mwin"] and be % 4 == 3:
        A(f"s_waitcnt vmcnt({CFG['mwin']})")
A(f"s_add_u32 s{S_T3}, s{S_T3}, 256")
A(f"s_add_u32 s{S_T2}, s{S_T2}, 1")
A(f"s_cmp_lt_u32 s{S_T2}, 4")
A("s_cbranch_scc1 L_gld6")
L("L_gld5")
A("s_waitcnt vmcnt(0)")
stamp(4)
A("s_barrier")
A("s_branch L_exit")

begin("qc")
C("---- q projection: wave 6 loads and computes everything")
post_entry()
srd(SRD_A, P_X, 2048)
A(f"buffer_load_dwordx4 v[16:19], v2, {SA}, 0 offen")
A(f"buffer_load_dwordx4 v[20:23], v2, {SA}, 0 offen offset:1024")
if CFG["touch"]:
    A(f"s_lshl_b32 s{S_T1}, s{S_X}, 4")
    A(f"s_add_u32 s{S_T1}, s{S_T1}, s{S_A}")
    A(f"s_lshl_b32 s{S_T1}, s{S_T1}, 9")
    A(f"s_add_u32 s{S_T1}, s{S_T1}, {WS_XQA}")
    A("s_mov_b32 exec_hi, 0")
    A(f"buffer_load_dwordx4 v[72:75], v2, {WS}, s{S_T1} offen sc1")
    A("s_mov_b32 exec_hi, -1")
srd(SRD_B, P_WQ, 0x400000)
A("v_bfe_u32 v13, v0, 1, 3")
A("v_lshlrev_b32 v13, 13, v13")
A("v_lshl_add_u32 v13, v4, 5, v13")
A("v_lshl_add_u32 v13, v10, 4, v13")
A(f"s_and_b32 s{S_B}, s{S_A}, 1")
A(f"s_lshl_b32 s{S_T0}, s{S_B}, 21")
A(f"s_lshl_b32 s{S_T1}, s{S_X}, 10")
A(f"s_add_u32 s{S_T0}, s{S_T0}, s{S_T1}")
A(f"s_lshr_b32 s{S_T1}, s{S_A}, 1")
A(f"s_lshl_b32 s{S_T1}, s{S_T1}, 7")
A(f"s_add_u32 s{S_T0}, s{S_T0}, s{S_T1}")
A(f"s_mov_b32 s{S_T1}, {L_WQ}")
L("L_qc1")
for i in range(4):
    A(f"s_mov_b32 m0, s{S_T1}")
    A(f"s_add_u32 s{S_T1}, s{S_T1}, 1024")
    A(f"buffer_load_dwordx4 v13, {SB}, s{S_T0} offen{NT} lds")
    A(f"s_add_u32 s{S_T0}, s{S_T0}, 0x10000")
A(f"s_cmp_lt_u32 s{S_T1}, {L_WQ + 32768}")
A("s_cbranch_scc1 L_qc1")
gv_common()
A("v_lshrrev_b32 v12, 2, v0")
A("v_lshlrev_b32 v12, 6, v12")
A("v_lshl_add_u32 v12, v10, 5, v12")
A("v_bfe_u32 v13, v0, 1, 1")
A("v_lshl_add_u32 v12, v13, 3, v12")
A("v_lshlrev_b32 v13, 10, v10")
A("v_lshl_add_u32 v13, v4, 4, v13")
A(f"s_lshl_b32 s{S_T1}, s{S_B}, 9")
A(f"v_add_u32 v13, s{S_T1}, v13")
A("v_lshrrev_b32 v14, 5, v0")
A("v_lshlrev_b32 v14, 10, v14")
A("v_and_b32 v15, 31, v0")
A("v_lshl_add_u32 v14, v15, 3, v14")
C("exchange lane map: n=l&15<8: b=n&1, half2=(n>>1)&1, cs=(n>>2)&1 ; XQ off = cs*256 + b*128 + g*32 + half2*16")
A("v_bfe_u32 v70, v0, 2, 1")
A("v_lshlrev_b32 v69, 6, v70")
A("v_lshl_add_u32 v69, v4, 4, v69")
A("v_lshl_add_u32 v69, v10, 11, v69")
A("v_lshlrev_b32 v70, 8, v70")
A("v_lshl_add_u32 v70, v10, 7, v70")
A("v_lshl_add_u32 v70, v4, 5, v70")
A("v_bfe_u32 v15, v0, 1, 1")
A("v_lshl_add_u32 v70, v15, 4, v70")
A(f"s_lshl_b32 s{S_T5}, s{S_X}, 12")
A(f"s_lshl_b32 s{S_T1}, s{S_A}, 7")
A(f"s_add_u32 s{S_T5}, s{S_T5}, s{S_T1}")
A(f"s_lshl_b32 s{S_T1}, s{S_X}, 4")
A(f"s_add_u32 s{S_T1}, s{S_T1}, s{S_A}")
A(f"s_lshl_b32 s62, s{S_T1}, 9")
A(f"s_xor_b32 s63, s62, 512")
A(f"s_add_u32 s64, s62, {WS_XQB}")
A(f"s_add_u32 s62, s62, {WS_XQA}")
A(f"s_add_u32 s65, s63, {WS_XQB}")
A(f"s_add_u32 s63, s63, {WS_XQA}")
A("s_mov_b32 s66, 0xcccccccc")
A("s_mov_b32 s67, 0xcccccccc")
A("s_mov_b32 s68, 0xf0f0f0f0")
A("s_mov_b32 s69, 0xf0f0f0f0")
A(f"s_waitcnt vmcnt({32 + CFG['touch']})")
unpack(24, 16, 4)
unpack(32, 20, 4)
layernorm([24, 32], 2, 44, [16, 20])
A(f"ds_write_b64 v12, v[16:17] offset:{L_XN}")
A(f"ds_write_b64 v12, v[18:19] offset:{L_XN + 16}")
A(f"ds_write_b64 v12, v[20:21] offset:{L_XN + 1024}")
A(f"ds_write_b64 v12, v[22:23] offset:{L_XN + 1024 + 16}")
A("s_waitcnt lgkmcnt(0)")
XA = 96
for kp in range(8):
    A(f"ds_read_b128 v[{XA+4*kp}:{XA+4*kp+3}], v13 offset:{L_XN + kp*64}")
stamp(1)
A("s_barrier")
lds_wait(L_FLAG, 16, 17)
A("v_mov_b32 v16, 0")
A(f"ds_read_b64 v[58:59], v16 offset:{L_TAG}")
A(f"ds_read_b64 v[62:63], v16 offset:{L_TAG}")
WF = 24
QD = 144
for kp in range(8):
    A(f"s_waitcnt vmcnt({28 - 4*kp})")
    if kp == 7:
        stamp(2)
    for ct in range(4):
        for h in range(2):
            r = WF + ((kp & 1) * 4 + ct) * 4 + 2 * h
            A(f"ds_read_b64_tr_b16 v[{r}:{r+1}], v14 offset:{L_WQ + kp*4096 + h*2048 + ct*256}")
    for ct in range(4):
        A(f"s_waitcnt lgkmcnt({6 - 2*ct})")
        mfma(QD + 4 * ct, WF + ((kp & 1) * 4 + ct) * 4, XA + 4 * kp, None if kp == 0 else QD + 4 * ct)
C("select: lo half cts (0,1) -> v[24:25], hi half cts (2,3) -> v[26:27]")
nop(5)
for hf in range(2):
    a, b = QD + 8 * hf, QD + 8 * hf + 4
    for j in range(2):
        A(f"v_cndmask_b32 v{28+j}, v{a+j}, v{a+2+j}, s[66:67]")
        A(f"v_cndmask_b32 v{30+j}, v{b+j}, v{b+2+j}, s[66:67]")
    for j in range(2):
        A(f"v_cndmask_b32 v{24+2*hf+j}, v{28+j}, v{30+j}, s[68:69]")
A(f"s_cmp_eq_u32 s{S_B}, 0")
A(f"s_cselect_b64 vcc, -1, 0")
set_exec(0x00ff00ff00ff00ff)
A("v_cndmask_b32 v56, v24, v26, vcc")
A("v_cndmask_b32 v57, v25, v27, vcc")
A("v_cndmask_b32 v60, v26, v24, vcc")
A("v_cndmask_b32 v61, v27, v25, vcc")
A(f"buffer_store_dwordx4 v[56:59], v70, {WS}, s{63 if CFG['dual'] else 65} offen{'' if CFG['dual'] else ' sc1'}")
stamp(6)
lx, lxe, lxs = newlbl("Lx"), newlbl("Lxe"), newlbl("Lxs")
A(f"s_mov_b32 s{S_TO}, {CFG['timeout']}")
L(lx)
if CFG["dual"]:
    A(f"s_cmp_lg_u32 s{S_TO}, {CFG['timeout'] - 4}")
    A(f"s_cbranch_scc1 {lxs}")
    C("partner not seen through L2 yet: also send the coherent copy")
    A(f"buffer_store_dwordx4 v[56:59], v70, {WS}, s65 offen sc1")
    L(lxs)
A(f"s_and_b32 s{S_T0}, s{S_TO}, 7")
A(f"s_cmp_eq_u32 s{S_T0}, 1")
A(f"s_cselect_b32 s{S_T1}, s64, s{62 if CFG['dual'] else 64}")
A(f"buffer_load_dwordx4 v[24:27], v70, {WS}, s{S_T1} offen sc1")
A(f"s_sub_u32 s{S_TO}, s{S_TO}, 1")
A(f"s_cbranch_scc1 {lxe}")
A("s_waitcnt vmcnt(0)")
A("v_cmp_ne_u64 vcc, v[26:27], v[58:59]")
A("s_cmp_lg_u64 vcc, 0")
A(f"s_cbranch_scc1 {lx}")
L(lxe)
A("s_waitcnt vmcnt(0)")
A("v_pk_add_f32 v[60:61], v[60:61], v[24:25]")
A("v_cvt_pk_bf16_f32 v60, v60, v61")
nop(2)
A("v_mov_b32_dpp v61, v60 quad_perm:[2,3,0,1] row_mask:0xf bank_mask:0xf")
set_exec(0x0033003300330033)
A(f"buffer_store_dwordx4 v[60:63], v69, {WS}, s{S_T5} offen sc1")
if CFG["dual"]:
    C("always leave a coherent copy for the partner")
    set_exec(0x00ff00ff00ff00ff)
    A(f"buffer_store_dwordx4 v[56:59], v70, {WS}, s65 offen sc1")
A("s_mov_b64 exec, -1")
lds_set(L_FLAG + 8, 16, 17)
stamp(3)
A("s_branch L_qm2")
begin("qm2")
L("L_qm2")
A(f"s_cmp_eq_u32 s{S_ROLE}, 0")
A("s_cbranch_scc1 L_exit")
lds_wait(L_FLAG, 16, 17)
A(f"v_mov_b32 v{V_T}, 0")
A(f"ds_read_b64 v[{TT+2}:{TT+3}], v{V_T} offset:{L_TAG}")
A(f"ds_read_b128 v[{V_TG}:{V_TG+3}], v{V_T} offset:{L_TAG + 16}")
A(f"s_cmp_eq_u32 s{S_ROLE}, 2")
A("s_cbranch_scc1 L_F")

C("==== E: wo projection, 8 waves: head=w&3, col half=w>>2; wave gathers records 2w,2w+1")
V_WX = 16
A(f"s_lshl_b32 s{S_T1}, s{S_X}, 4")
A(f"s_lshl_b32 s{S_T2}, s{S_WAVE}, 1")
A(f"s_add_u32 s{S_T1}, s{S_T1}, s{S_T2}")
A(f"s_mul_i32 s{S_T1}, s{S_T1}, {RECP}")
A(f"s_add_u32 s{S_PNA}, s{S_T1}, {WS_PNA if CFG['dual'] else WS_PNB}")
A(f"s_add_u32 s{S_PNB}, s{S_T1}, {WS_PNB}")
EA0, EA1, EA2, EA3, EA4, EA5 = V_T + 36, V_T + 37, V_T + 38, V_T + 39, V_T + 2, V_T + 3
C("stats gather addr: lane<8: (l>>2)*RECP + (l&3)*16 (+1024)")
A(f"v_lshrrev_b32 v{EA0}, 2, v0")
A(f"s_movk_i32 s{S_T2}, {RECP}")
A(f"v_mul_lo_u32 v{EA0}, v{EA0}, s{S_T2}")
A(f"v_and_b32 v{EA1}, 3, v0")
A(f"v_lshl_add_u32 v{EA0}, v{EA1}, 4, v{EA0}")
A(f"s_mul_i32 s{S_T2}, s{S_WAVE}, {2*PNP}")
A(f"s_add_u32 s{S_T2}, s{S_T2}, {L_PS}")
A(f"v_add_u32 v{EA1}, s{S_T2}, v2")
A(f"s_lshl_b32 s{S_T2}, s{S_WAVE}, 7")
A(f"v_add_u32 v{EA2}, s{S_T2}, v2")
A(f"s_and_b32 s{S_T4}, s{S_WAVE}, 3")
A(f"s_lshr_b32 s{S_T5}, s{S_WAVE}, 2")
A(f"s_movk_i32 s{S_T2}, {PNP}")
A(f"v_mul_lo_u32 v{EA3}, v6, s{S_T2}")
A(f"v_lshl_add_u32 v{EA3}, v4, 4, v{EA3}")
A(f"s_lshl_b32 s{S_T2}, s{S_T4}, 6")
A(f"s_add_u32 s{S_T2}, s{S_T2}, {L_PS}")
A(f"v_add_u32 v{EA3}, s{S_T2}, v{EA3}")
A(f"v_lshlrev_b32 v{EA4}, 6, v6")
A(f"s_lshl_b32 s{S_T2}, s{S_T4}, 4")
A(f"v_add_u32 v{EA4}, s{S_T2}, v{EA4}")
A(f"s_lshl_b32 s{S_T2}, s{S_T4}, 9")
A(f"s_lshl_b32 s{S_T3}, s{S_T5}, 8")
A(f"s_add_u32 s{S_T2}, s{S_T2}, s{S_T3}")
A(f"v_lshl_add_u32 v{EA5}, v0, 2, s{S_T2}")
C("weights tr-read addr: WO + hd*16384 + ch*512 + (l>>5)*1024 + (l&31)*8")
A(f"v_lshrrev_b32 v{TT}, 5, v0")
A(f"v_lshlrev_b32 v{TT}, 10, v{TT}")
A(f"v_and_b32 v{TT+1}, 31, v0")
A(f"v_lshl_add_u32 v{TT}, v{TT+1}, 3, v{TT}")
A(f"s_lshl_b32 s{S_T2}, s{S_T4}, 14")
A(f"s_lshl_b32 s{S_T3}, s{S_T5}, 9")
A(f"s_add_u32 s{S_T2}, s{S_T2}, s{S_T3}")
A(f"s_add_u32 s{S_T2}, s{S_T2}, {L_WO}")
A(f"v_add_u32 v{TT}, s{S_T2}, v{TT}")
A(f"v_mul_u32_u24 v{V_T+32}, 80, v4")
C("final-stage addresses (wave 0, lanes<32): RED read / AP write")
A(f"v_bfe_u32 v{V_T+33}, v0, 3, 1")
A(f"v_lshlrev_b32 v{V_T+33}, 8, v{V_T+33}")
A(f"v_lshl_add_u32 v{V_T+33}, v4, 7, v{V_T+33}")
A(f"v_and_b32 v{V_T+34}, 7, v0")
A(f"v_lshl_add_u32 v{V_T+33}, v{V_T+34}, 4, v{V_T+33}")
A(f"v_lshlrev_b32 v{V_T+34}, 11, v4")
A(f"v_lshl_add_u32 v{V_T+34}, v6, 4, v{V_T+34}")
A(f"s_lshl_b32 s{S_NT}, s{S_X}, 12")
A(f"s_lshl_b32 s{S_T1}, s{S_SUB}, 8")
A(f"s_add_u32 s{S_NT}, s{S_NT}, s{S_T1}")
A(f"s_add_u32 s{S_NT}, s{S_NT}, {WS_AP}")
A("s_waitcnt vmcnt(0) lgkmcnt(0)")
A("s_barrier")
stamp(4)
for kp in range(4):
    for c in range(2):
        for h in range(2):
            r = V_WX + (kp * 2 + c) * 4 + 2 * h
            A(f"ds_read_b64_tr_b16 v[{r}:{r+1}], v{TT} offset:{kp*4096 + h*2048 + c*256}")
SG = V_G + 8
le, lee = newlbl("Le"), newlbl("Lee")
A(f"s_mov_b32 s{S_TO}, {CFG['timeout']}")
L(le)
A(f"s_and_b32 s{S_T0}, s{S_TO}, {CFG['bmask']}")
A(f"s_cmp_eq_u32 s{S_T0}, 1")
A(f"s_cselect_b32 s{S_T1}, s{S_PNB}, s{S_PNA}")
A(f"v_mov_b32 v{SG+2}, v{TT+2}")
A(f"v_mov_b32 v{SG+3}, v{TT+3}")
A("s_mov_b64 exec, 0xff")
A(f"buffer_load_dwordx4 v[{SG}:{SG+3}], v{EA0}, {WS}, s{S_T1} offen offset:1024 sc1")
A("s_mov_b64 exec, -1")
for i in range(2):
    r = V_G + i * 4
    A(f"buffer_load_dwordx4 v[{r}:{r+3}], v2, {WS}, s{S_T1} offen offset:{i*RECP} sc1")
A(f"s_sub_u32 s{S_TO}, s{S_TO}, 1")
A(f"s_cbranch_scc1 {lee}")
A("s_waitcnt vmcnt(0)")
tree3("v_max3_u32", "v_max_u32", range(V_G, V_G + 8), TT)
A(f"v_cmp_eq_u32 vcc, -1, v{TT}")
A(f"v_cmp_ne_u64 s[{S_T2}:{S_T3}], v[{SG+2}:{SG+3}], v[{TT+2}:{TT+3}]")
A(f"s_or_b64 vcc, vcc, s[{S_T2}:{S_T3}]")
A(f"s_cbranch_scc1 {le}")
L(lee)
A("s_waitcnt vmcnt(0)")
stamp(7)
for i in range(2):
    r = V_G + i * 4
    A(f"ds_write_b128 v{EA1}, v[{r}:{r+3}] offset:{i*PNP}")
A("s_mov_b64 exec, 0xff")
A(f"ds_write_b128 v{EA2}, v[{SG}:{SG+3}] offset:{L_STS}")
A("s_mov_b64 exec, -1")
A("s_waitcnt lgkmcnt(0)")
A("s_barrier")
SM0 = V_T + 4
MG = V_T + 8
FW = V_T + 24
A(f"ds_read_b64 v[{SM0}:{SM0+1}], v{EA4} offset:{L_STS}")
for kp in range(4):
    r = V_G + kp * 4
    A(f"ds_read_b128 v[{r}:{r+3}], v{EA3} offset:{kp*256}")
EA = V_S
A("s_waitcnt lgkmcnt(4)")
A(f"v_mov_b32 v{MG}, v{SM0}")
R8 = ROW_ALL[:3]
fill = []
for c in R8:
    fill.append(["s_nop 0", f"v_max_f32_dpp v{MG}, v{MG}, v{MG} {c} row_mask:0xf bank_mask:0xf"])
fill.append([f"v_sub_f32 v{SM0}, v{SM0}, v{MG}", f"v_exp_f32 v{SM0}, v{SM0}", "s_nop 0", f"v_mul_f32 v{MG}, v{SM0}, v{SM0+1}"])
for c in R8:
    fill.append(["s_nop 0", f"v_add_f32_dpp v{MG}, v{MG}, v{MG} {c} row_mask:0xf bank_mask:0xf"])
fill.append([f"v_rcp_f32 v{MG}, v{MG}", "s_nop 0", f"v_mul_f32 v{SM0}, v{SM0}, v{MG}"])
fi = 0
for kp in range(4):
    A(f"s_waitcnt lgkmcnt({3-kp})")
    for c in range(2):
        d = EA + c * 4
        mfma(d, V_G + kp * 4, V_WX + (kp * 2 + c) * 4, None if kp == 0 else d)
        for ins in fill[fi]:
            A(ins)
        fi += 1
assert fi == len(fill)
for r in range(4):
    A(f"ds_bpermute_b32 v{FW+r}, v{V_T+32}, v{SM0} offset:{4*r}")
A("s_waitcnt lgkmcnt(0)")
for c in range(2):
    d = EA + 4 * c
    A(f"v_mul_f32 v{d}, v{d}, v{FW}")
    A(f"v_mul_f32 v{d+2}, v{d+2}, v{FW+2}")
    A(f"v_fmac_f32 v{d}, v{d+1}, v{FW+1}")
    A(f"v_fmac_f32 v{d+2}, v{d+3}, v{FW+3}")
for c in range(2):
    d = EA + 4 * c
    A(f"v_add_f32 v{d}, v{d}, v{d+2}")
nop(2)
A(f"v_permlane16_swap_b32 v{EA}, v{EA+4}")
A(f"v_add_f32 v{EA}, v{EA}, v{EA+4}")
A(f"ds_write_b32 v{EA5}, v{EA} offset:{L_RED}")
A("s_waitcnt lgkmcnt(0)")
A("s_barrier")
A(f"s_cmp_lg_u32 s{S_WAVE}, 0")
A("s_cbranch_scc1 L_exit")
A("s_mov_b32 exec_hi, 0")
for i in range(4):
    A(f"ds_read_b128 v[{V_G+4*i}:{V_G+4*i+3}], v{V_T+33} offset:{L_RED + i*512}")
A("s_waitcnt lgkmcnt(0)")
for j in (0, 2):
    A(f"v_pk_add_f32 v[{V_G+j}:{V_G+j+1}], v[{V_G+j}:{V_G+j+1}], v[{V_G+4+j}:{V_G+5+j}]")
    A(f"v_pk_add_f32 v[{V_G+8+j}:{V_G+9+j}], v[{V_G+8+j}:{V_G+9+j}], v[{V_G+12+j}:{V_G+13+j}]")
for j in (0, 2):
    A(f"v_pk_add_f32 v[{V_G+j}:{V_G+j+1}], v[{V_G+j}:{V_G+j+1}], v[{V_G+8+j}:{V_G+9+j}]")
tag(V_G, V_TG)
A(f"buffer_store_dwordx4 v[{V_G}:{V_G+3}], v{V_T+34}, {WS}, s{S_NT} offen sc1")
stamp(8)
A("s_branch L_exit")

L("L_F")
C("==== F: MLP. 8 waves gather (b=w>>2, 128-col quarter q=w&3); waves 0..3 also do w1/gelu/w2")
V_W2 = 128
FG = 48
HX = 64
lds_wait(L_FLAG + 8, 16, 17, sleep=4)
C("x[b][128q + 4(l&31)..] ; b1[mi*32 + (l&31)]")
srd(SRD_A, P_X, 2048)
A("v_and_b32 v12, 31, v0")
A("v_lshlrev_b32 v13, 3, v12")
A(f"s_lshl_b32 s{S_T0}, s{S_WAVE}, 8")
A(f"buffer_load_dwordx2 v[{V_SM}:{V_SM+1}], v13, {SA}, s{S_T0} offen")
srd(SRD_C, P_B1, 3584)
A("v_lshlrev_b32 v13, 1, v12")
A(f"s_lshl_b32 s{S_T0}, s{S_SUB}, 6")
A(f"buffer_load_ushort v{V_SM+2}, v13, {SC_}, s{S_T0} offen")
C("gather addr: (l>>5)*4096 + (l&31)*16 ; soffset = AP + w*512 + i*8192")
GAD, HA, STW, STR = V_T, V_T + 1, V_T + 2, V_T + 3
A(f"v_lshrrev_b32 v{GAD}, 5, v0")
A(f"v_lshlrev_b32 v{GAD}, 12, v{GAD}")
A(f"v_lshl_add_u32 v{GAD}, v12, 4, v{GAD}")
A(f"s_lshl_b32 s{S_T0}, s{S_WAVE}, 9")
A(f"s_add_u32 s{S_T0}, s{S_T0}, {WS_AP}")
SX = 62
for i in range(4):
    A(f"s_add_u32 s{SX+i}, s{S_T0}, {i*8192}")
C("hn write addr (cols 4j.., j=l&31): w*256 + (j>>3)*64 + (j&3)*16 + ((j>>2)&1)*8")
A(f"v_lshrrev_b32 v{HA}, 3, v12")
A(f"v_lshlrev_b32 v{HA}, 6, v{HA}")
A("v_and_b32 v13, 3, v0")
A(f"v_lshl_add_u32 v{HA}, v13, 4, v{HA}")
A("v_bfe_u32 v13, v0, 2, 1")
A(f"v_lshl_add_u32 v{HA}, v13, 3, v{HA}")
A(f"s_lshl_b32 s{S_T0}, s{S_WAVE}, 8")
A(f"v_add_u32 v{HA}, s{S_T0}, v{HA}")
C("LN stats exchange: STS + w*8 ; read STS + b*32 (sentinel initialised)")
A(f"s_lshl_b32 s{S_T0}, s{S_WAVE}, 3")
A(f"v_mov_b32 v{STW}, s{S_T0}")
A(f"s_lshr_b32 s{S_T0}, s{S_WAVE}, 2")
A(f"s_lshl_b32 s{S_T0}, s{S_T0}, 5")
A(f"v_mov_b32 v{STR}, s{S_T0}")
A("v_mov_b32 v14, -1")
A("v_mov_b32 v15, -1")
A(f"ds_write_b64 v{STW}, v[14:15] offset:{L_STS}")
C("compute-wave addresses")
vw2_addr()
A(f"s_lshl_b32 s{S_T0}, s{S_WAVE}, 13")
A(f"s_add_u32 s{S_T1}, s{S_T0}, {L_W2}")
A(f"v_add_u32 v{VB0}, s{S_T1}, v{VA0}")
A(f"v_add_u32 v{VB1}, s{S_T1}, v{VA1}")
A(f"s_add_u32 s{S_T1}, s{S_T0}, {L_WX}")
A(f"v_lshl_add_u32 v{TT}, v0, 3, s{S_T1}")
A0, A1, A2, YAD = V_T + 36, V_T + 37, V_T + 38, V_T + 39
A(f"v_lshlrev_b32 v{A0}, 10, v10")
A(f"v_lshl_add_u32 v{A0}, v4, 4, v{A0}")
A(f"s_lshl_b32 s{S_T0}, s{S_WAVE}, 8")
A(f"v_add_u32 v{A0}, s{S_T0}, v{A0}")
A(f"v_lshlrev_b32 v{A1}, 7, v6")
A(f"v_lshl_add_u32 v{A1}, v4, 4, v{A1}")
A(f"v_add_u32 v{A1}, s{S_T0}, v{A1}")
C("h1 write addr: lane (b=l>>5, c=l&31): H1 + w*128 + b*64 + ((c>>2)&3)*16 + (c>>4)*8 + (c&3)*2")
A(f"v_lshrrev_b32 v{A2}, 5, v0")
A(f"v_lshlrev_b32 v{A2}, 6, v{A2}")
A("v_bfe_u32 v13, v0, 2, 2")
A(f"v_lshl_add_u32 v{A2}, v13, 4, v{A2}")
A("v_bfe_u32 v13, v0, 4, 1")
A(f"v_lshl_add_u32 v{A2}, v13, 3, v{A2}")
A("v_and_b32 v13, 3, v0")
A(f"v_lshl_add_u32 v{A2}, v13, 1, v{A2}")
A(f"s_lshl_b32 s{S_T1}, s{S_WAVE}, 7")
A(f"s_add_u32 s{S_T1}, s{S_T1}, {L_H1}")
A(f"v_add_u32 v{A2}, s{S_T1}, v{A2}")
C("B_ct operand addresses: (n>>1)==ct ? H1 + w*128 + (n&1)*64 + g*16 : ZERO")
BA = V_T + 24
A("v_lshlrev_b32 v13, 6, v10")
A("v_lshl_add_u32 v13, v4, 4, v13")
A(f"v_add_u32 v13, s{S_T1}, v13")
A(f"v_mov_b32 v14, {L_ZERO}")
A("v_bfe_u32 v15, v0, 1, 3")
for ct in range(8):
    A(f"v_cmp_eq_u32 vcc, {ct}, v15")
    A("s_nop 1")
    A(f"v_cndmask_b32 v{BA+ct}, v14, v13, vcc")
for j in range(4):
    A(f"v_mov_b32 v{16+j}, 0")
A(f"ds_write_b128 v14, v[16:19]")
C("Y store addr: (n&1)*2048 + (n>>1)*64 + g*16 ; soff = Y + mi*YP + w*512")
A(f"v_lshlrev_b32 v{YAD}, 11, v10")
A(f"v_lshl_add_u32 v{YAD}, v15, 6, v{YAD}")
A(f"v_lshl_add_u32 v{YAD}, v4, 4, v{YAD}")
S_Y = 70
A(f"s_mul_i32 s{S_Y}, s{S_SUB}, {YP}")
A(f"s_lshl_b32 s{S_T1}, s{S_WAVE}, 9")
A(f"s_add_u32 s{S_Y}, s{S_Y}, s{S_T1}")
A(f"s_add_u32 s{S_Y}, s{S_Y}, {WS_Y}")
A("v_lshlrev_b32 v3, 2, v0")
A("s_waitcnt vmcnt(0) lgkmcnt(0)")
unpack(HX, V_SM, 2)
A(f"v_lshlrev_b32 v{V_SM+2}, 16, v{V_SM+2}")
A("s_barrier")
stamp(4)
A(f"s_cmp_ge_u32 s{S_WAVE}, 4")
A("s_cbranch_scc1 L_F1")
for kp in range(4):
    for ct in range(2):
        for h in range(2):
            r = V_WX + (kp * 2 + ct) * 4 + 2 * h
            A(f"ds_read_b64_tr_b16 v[{r}:{r+1}], v{TT} offset:{kp*2048 + h*1024 + ct*512}")
A("s_waitcnt lgkmcnt(0)")
for ct in range(8):
    for h in range(2):
        r = V_W2 + ct * 4 + 2 * h
        A(f"ds_read_b64_tr_b16 v[{r}:{r+1}], v{VB0 + (ct & 1)} offset:{(ct >> 1)*256 + h*4096}")
L("L_F1")


def f_loads():
    for i in range(4):
        r = FG + i * 4
        A(f"buffer_load_dwordx4 v[{r}:{r+3}], v{GAD}, {WS}, s{SX+i} offen sc1")


tpoll(f_loads, range(FG, FG + 16), TT, V_TG, CFG['fsl'])
stamp(7)
for j in (0, 2):
    A(f"v_pk_add_f32 v[{FG+j}:{FG+j+1}], v[{FG+j}:{FG+j+1}], v[{FG+4+j}:{FG+5+j}]")
    A(f"v_pk_add_f32 v[{FG+8+j}:{FG+9+j}], v[{FG+8+j}:{FG+9+j}], v[{FG+12+j}:{FG+13+j}]")
for j in (0, 2):
    A(f"v_pk_add_f32 v[{FG+j}:{FG+j+1}], v[{FG+j}:{FG+j+1}], v[{FG+8+j}:{FG+9+j}]")
swap_steps("v_add_f32", [FG + j for j in range(4)], [FG + 4 + j for j in range(4)], which=(32,))
HP = FG + 8
pack(HP, FG, 2)
unpack(FG, HP, 2)
for j in range(4):
    A(f"v_add_f32 v{HX+j}, v{HX+j}, v{FG+j}")
pack(HP, HX, 2)
unpack(HX, HP, 2)
C("local stats around pivot c = h[first]")
A("s_nop 0")
A(f"v_readfirstlane_b32 s{S_T2}, v{HX}")
A("s_nop 1")
for j in range(4):
    A(f"v_subrev_f32 v{FG+j}, s{S_T2}, v{HX+j}")
SS, SQ = FG + 10, FG + 11
A(f"v_add_f32 v{SS}, v{FG}, v{FG+1}")
A(f"v_mul_f32 v{SQ}, v{FG}, v{FG}")
A(f"v_add_f32 v{FG+4}, v{FG+2}, v{FG+3}")
A(f"v_fmac_f32 v{SQ}, v{FG+1}, v{FG+1}")
A(f"v_add_f32 v{SS}, v{SS}, v{FG+4}")
A(f"v_fmac_f32 v{SQ}, v{FG+2}, v{FG+2}")
A(f"v_fmac_f32 v{SQ}, v{FG+3}, v{FG+3}")
nop(1)
dpp_steps("v_add_f32", [SS, SQ], ROW_ALL)
swap_steps("v_add_f32", [SS, SQ], [FG + 4, FG + 5], which=(16,))
C("mean_w = c + s/128 ; M2_w = ss - s*s/128")
A(f"v_mul_f32 v{FG+4}, {f2u(1.0/128):#x}, v{SS}")
A(f"v_fma_f32 v{SQ}, -v{FG+4}, v{SS}, v{SQ}")
A(f"v_add_f32 v{SS}, s{S_T2}, v{FG+4}")
A("s_mov_b64 exec, 1")
A(f"ds_write_b64 v{STW}, v[{SS}:{SQ}] offset:{L_STS}")
A("s_mov_b64 exec, -1")
l3, l3e = newlbl("Lst"), newlbl("Lste")
A(f"s_mov_b32 s{S_TO}, {CFG['timeout']}")
L(l3)
A(f"ds_read_b128 v[{FG}:{FG+3}], v{STR} offset:{L_STS}")
A(f"ds_read_b128 v[{FG+4}:{FG+7}], v{STR} offset:{L_STS + 16}")
A(f"s_sub_u32 s{S_TO}, s{S_TO}, 1")
A(f"s_cbranch_scc1 {l3e}")
A("s_waitcnt lgkmcnt(0)")
tree3("v_max3_u32", "v_max_u32", range(FG, FG + 8), TT)
A(f"v_cmp_eq_u32 vcc, -1, v{TT}")
A("s_cmp_lg_u64 vcc, 0")
A(f"s_cbranch_scc1 {l3}")
L(l3e)
A("s_waitcnt lgkmcnt(0)")
MEAN, VAR, TM = FG + 8, FG + 9, FG + 10
A(f"v_add_f32 v{MEAN}, v{FG}, v{FG+2}")
A(f"v_add_f32 v{TM}, v{FG+4}, v{FG+6}")
A(f"v_add_f32 v{VAR}, v{FG+1}, v{FG+3}")
A(f"v_add_f32 v{MEAN}, v{MEAN}, v{TM}")
A(f"v_add_f32 v{TM}, v{FG+5}, v{FG+7}")
A(f"v_mul_f32 v{MEAN}, 0.25, v{MEAN}" if False else f"v_mul_f32 v{MEAN}, {f2u(0.25):#x}, v{MEAN}")
A(f"v_add_f32 v{VAR}, v{VAR}, v{TM}")
for j in range(4):
    A(f"v_sub_f32 v{FG+2*j}, v{FG+2*j}, v{MEAN}")
A(f"v_mul_f32 v{TM}, v{FG}, v{FG}")
for j in range(1, 4):
    A(f"v_fmac_f32 v{TM}, v{FG+2*j}, v{FG+2*j}")
A(f"v_mul_f32 v{VAR}, {f2u(1.0/512):#x}, v{VAR}")
A(f"v_fmac_f32 v{VAR}, {f2u(0.25):#x}, v{TM}")
bf16r(MEAN, MEAN)
bf16r(VAR, VAR)
for j in range(4):
    A(f"v_sub_f32 v{FG+j}, v{HX+j}, v{MEAN}")
A(f"v_add_f32 v{VAR}, {f2u(1e-5):#x}, v{VAR}")
pack(HP + 4, FG, 2)
bf16r(VAR, VAR)
unpack(FG, HP + 4, 2)
A(f"v_sqrt_f32 v{VAR}, v{VAR}")
nop(1)
bf16r(VAR, VAR)
A(f"v_rcp_f32 v{VAR}, v{VAR}")
nop(1)
for j in range(4):
    A(f"v_mul_f32 v{FG+j}, v{FG+j}, v{VAR}")
pack(HP + 4, FG, 2)
A("s_mov_b32 exec_hi, 0")
A(f"ds_write_b64 v{HA}, v[{HP+4}:{HP+5}] offset:{L_HN}")
A("s_mov_b32 exec_hi, -1")
c0 = math.sqrt(2.0 / math.pi)
k0 = -2.0 * c0 * LOG2E
k1 = k0 * 0.044715
A(f"s_mov_b32 s{S_T1}, {f2u(k1):#x}")
A(f"v_mov_b32 v{TT}, {f2u(k0):#x}")
A("s_waitcnt lgkmcnt(0)")
A("s_barrier")
stamp(8)
A(f"s_cmp_ge_u32 s{S_WAVE}, 4")
A("s_cbranch_scc1 L_exit")
for kp in range(4):
    A(f"ds_read_b128 v[{V_Q+4*kp}:{V_Q+4*kp+3}], v{A0} offset:{L_HN + kp*64}")
for kp in range(4):
    A(f"s_waitcnt lgkmcnt({3-kp})")
    for ct in range(2):
        mfma(V_S + 4 * ct, V_WX + (kp * 2 + ct) * 4, V_Q + 4 * kp, None if kp == 0 else V_S + 4 * ct)
nop(6)
set_exec(MASK_N2)
A(f"ds_write_b128 v{A1}, v[{V_S}:{V_S+3}] offset:{L_RED}")
A(f"ds_write_b128 v{A1}, v[{V_S+4}:{V_S+7}] offset:{L_RED + 64}")
A("s_mov_b64 exec, -1")
A("s_waitcnt lgkmcnt(0)")
A("s_barrier")
U = 16
for wp in range(4):
    A(f"ds_read_b32 v{U+wp}, v3 offset:{L_RED + wp*256}")
A("s_waitcnt lgkmcnt(0)")
A(f"v_add_f32 v{U}, v{U}, v{U+1}")
A(f"v_add_f32 v{U+2}, v{U+2}, v{U+3}")
A(f"v_add_f32 v{U}, v{U}, v{U+2}")
bf16r(U, U)
A(f"v_add_f32 v{U}, v{U}, v{V_SM+2}")
bf16r(U, U)
A(f"v_mul_f32 v{U+1}, v{U}, v{U}")
A(f"v_fma_f32 v{U+1}, v{U+1}, s{S_T1}, v{TT}")
A(f"v_mul_f32 v{U+1}, v{U+1}, v{U}")
A(f"v_exp_f32 v{U+1}, v{U+1}")
nop(1)
A(f"v_add_f32 v{U+1}, 1.0, v{U+1}")
A(f"v_rcp_f32 v{U+1}, v{U+1}")
nop(1)
A(f"v_mul_f32 v{U}, v{U}, v{U+1}")
A(f"v_cvt_pk_bf16_f32 v{U}, v{U}, v{U}")
A(f"ds_write_b16 v{A2}, v{U}")
BO = 32
for ct in range(8):
    A(f"ds_read_b128 v[{BO+4*ct}:{BO+4*ct+3}], v{BA+ct}")
YA = 24
for ct in range(8):
    A(f"s_waitcnt lgkmcnt({7-ct})")
    mfma(YA, V_W2 + 4 * ct, BO + 4 * ct, None if ct == 0 else YA)
nop(8)
tag(YA, V_TG)
A(f"buffer_store_dwordx4 v[{YA}:{YA+3}], v{YAD}, {WS}, s{S_Y} offen sc1")
stamp(9)
L("L_exit")
stamp_flush()
L("L_end")
A("s_endpgm")

out.append(f""".section .rodata,"a"
.p2align 6
.amdhsa_kernel {NAME}_kernel
  .amdhsa_next_free_vgpr 168
  .amdhsa_next_free_sgpr 102
  .amdhsa_accum_offset 168
  .amdhsa_group_segment_fixed_size 0
  .amdhsa_kernarg_size 104
  .amdhsa_user_sgpr_count 2
  .amdhsa_user_sgpr_kernarg_segment_ptr 1
  .amdhsa_system_sgpr_workgroup_id_x 1
.end_amdhsa_kernel""")

order = ["head", "qc", "ldr", "gv", "att", "qm2"]
print("\n".join(l for b in order for l in BLK[b]))
```

```python
import sys, struct, math

NAME = "sequential_preLN__sliding_block_cached__dense_activation_gelu__decode"

CFG = dict(nt=1, timeout=1 << 18, stamps=0, dual=1, tsleep0=10, tsleep=3, tsleepa=40, qsleep=0, mwin=0, touch=1, bmask=15, fsl=0, g1sl=0, g2sl=0, pf=29, pfw=32, touch2=1)
for a in sys.argv[1:]:
    if "=" in a:
        k, v = a.split("=")
        CFG[k] = int(v)
NT = " nt" if CFG["nt"] else ""

WS_Q = 0x00000
RECP = 1152
WS_PNA = 0x10000
WS_PNB = 0x50000
WS_XQA = 0x90000
WS_XQB = 0x80000
WS_AP = 0xA8000
WS_Y = 0xB0000
YP = 4096 + 128
WS_TS = 0xF0000
WS_SIZE = 0x200000

L_QL = 0
L_XN = 0
L_SC = 2048
L_QR = 2048
L_HN = 4096
L_RED = 6144
L_STS = 8192
L_QS = 9216
L_H1 = 9216
L_ZERO = 9728
L_MX = 10240
L_LS = 10368
L_FLAG = 10496
L_TAG = 10512
L_FL2 = 10544
L_DUM = 10560
BIG = 11264
L_K = BIG
L_V = BIG + 65536
L_WQ = BIG
L_WO = BIG + 32768
L_WX = BIG + 32768
L_W2 = BIG + 65536
L_PS = BIG + 98304
PNP = 1040
LDS_BYTES = BIG + 131072

LOG2E = 1.4426950408889634
SCALE = 128 ** -0.5


def f2u(f):
    return struct.unpack("<I", struct.pack("<f", f))[0]


out = []


def A(s):
    out.append("    " + s)


def L(s):
    out.append(s + ":")


def C(s):
    out.append("    ; " + s)


def nop(n):
    while n > 0:
        k = min(n, 16)
        A(f"s_nop {k-1}")
        n -= k


_lbl = [0]


def newlbl(p="L"):
    _lbl[0] += 1
    return f"{p}_{_lbl[0]}"


P_X, P_K, P_V, P_WQ, P_WO, P_BX, P_W1, P_B1, P_W2, P_B2, P_OUT, P_DBG, P_WS = [36 + 2 * i for i in range(13)]
S_WAVE, S_X, S_A, S_B, S_SPL = 3, 4, 5, 6, 7
SRD_WS, SRD_A, SRD_B, SRD_C = 8, 12, 16, 20
S_T0, S_T1, S_T2, S_T3, S_T4, S_T5 = 24, 25, 26, 27, 28, 29
S_TO, S_ROLE, S_SUB, S_NT, S_PNA, S_PNB = 30, 31, 32, 33, 34, 35
S_Q = 36
S_TG = 100
WS = f"s[{SRD_WS}:{SRD_WS+3}]"
SA = f"s[{SRD_A}:{SRD_A+3}]"
SB = f"s[{SRD_B}:{SRD_B+3}]"
SC_ = f"s[{SRD_C}:{SRD_C+3}]"
V_ST = 1
V_MSK = 5


def srd(d, p, size):
    A(f"s_mov_b32 s{d}, s{p}")
    A(f"s_mov_b32 s{d+1}, s{p+1}")
    A(f"s_mov_b32 s{d+2}, {size:#x}")
    A(f"s_mov_b32 s{d+3}, 0x00020000")


def stamp(slot):
    if CFG["stamps"]:
        A("s_memrealtime s[0:1]")
        A("s_waitcnt lgkmcnt(0)")
        A(f"v_writelane_b32 v{V_ST}, s0, {slot}")


def stamp_flush():
    if not CFG["stamps"]:
        return
    if CFG["stamps"] == 2:
        A("s_mov_b64 exec, -1")
        A(f"v_mov_b32 v2, {L_TAG}")
        A("ds_read_b32 v3, v2")
        A("s_waitcnt lgkmcnt(0)")
        A(f"v_sub_u32 v3, v{V_ST}, v3")
        A("v_max_i32 v3, 0, v3")
        A("v_lshlrev_b32 v2, 2, v0")
        A("v_add_co_u32 v166, vcc, v166, v2")
        A("v_addc_co_u32 v167, vcc, 0, v167, vcc")
        A(f"v_cmp_ne_u32 vcc, 0, v{V_ST}")
        A("s_bitcmp1_b32 vcc_lo, 11")
        A("s_cbranch_scc0 L_end")
        A("s_and_b64 exec, vcc, 0x1fff")
        A("s_cbranch_execz L_end")
        A("global_atomic_umax v[166:167], v3, off offset:8")
        return
    A("s_mov_b64 exec, -1")
    A("s_lshl_b32 s0, s2, 10")
    A(f"s_lshl_b32 s1, s{S_WAVE}, 6")
    A("s_add_u32 s0, s0, s1")
    A(f"s_add_u32 s0, s0, {WS_TS}")
    A("v_lshlrev_b32 v2, 2, v0")
    A("s_mov_b64 exec, 0xffff")
    A(f"buffer_store_dword v{V_ST}, v2, {WS}, s0 offen")


def dpp_steps(op, regs, ctrls):
    for c in ctrls:
        pad = max(0, 2 - (len(regs) - 1))
        if pad:
            nop(pad)
        for r in regs:
            A(f"{op}_dpp v{r}, v{r}, v{r} {c} row_mask:0xf bank_mask:0xf")


ROW_ALL = ["quad_perm:[1,0,3,2]", "quad_perm:[2,3,0,1]", "row_half_mirror", "row_mirror"]
ROW_HI = ["row_ror:4", "row_ror:8"]


def swap_steps(op, regs, tmps, which=(16, 32)):
    for wd in which:
        sw = f"v_permlane{wd}_swap_b32"
        for r, t in zip(regs, tmps):
            A(f"v_mov_b32 v{t}, v{r}")
        pad = max(0, 2 - (len(regs) - 1))
        if pad:
            nop(pad)
        for r, t in zip(regs, tmps):
            A(f"{sw} v{r}, v{t}")
        for r, t in zip(regs, tmps):
            A(f"{op} v{r}, v{r}, v{t}")


def allreduce(op, regs, tmps):
    nop(2)
    dpp_steps(op, regs, ROW_ALL)
    swap_steps(op, regs, tmps)


def lds_wait(flag_off, vt, va, sleep=0):
    l, e = newlbl("Lw"), newlbl("Lwe")
    A(f"v_mov_b32 v{va}, {flag_off}")
    A(f"s_mov_b32 s{S_TO}, {CFG['timeout']}")
    L(l)
    if sleep:
        A(f"s_sleep {sleep}")
    A(f"ds_read_b32 v{vt}, v{va}")
    A(f"s_sub_u32 s{S_TO}, s{S_TO}, 1")
    A(f"s_cbranch_scc1 {e}")
    A("s_waitcnt lgkmcnt(0)")
    A(f"v_readfirstlane_b32 s{S_T0}, v{vt}")
    A(f"s_cmp_eq_u32 s{S_T0}, 0")
    A(f"s_cbranch_scc1 {l}")
    L(e)
    A("s_waitcnt lgkmcnt(0)")


def lds_set(flag_off, vt, va):
    A("s_waitcnt lgkmcnt(0)")
    A(f"v_mov_b32 v{va}, {flag_off}")
    A(f"v_mov_b32 v{vt}, 1")
    A(f"ds_write_b32 v{va}, v{vt}")


def lds_sync(cnt_off, n, vt, va):
    l, e = newlbl("Ls"), newlbl("Lse")
    A(f"v_mov_b32 v{va}, {cnt_off}")
    A(f"v_mov_b32 v{vt}, 1")
    A("s_mov_b64 exec, 1")
    A(f"ds_add_u32 v{va}, v{vt}")
    A("s_mov_b64 exec, -1")
    A(f"s_mov_b32 s{S_TO}, {CFG['timeout']}")
    L(l)
    A(f"ds_read_b32 v{vt}, v{va}")
    A(f"s_sub_u32 s{S_TO}, s{S_TO}, 1")
    A(f"s_cbranch_scc1 {e}")
    A("s_waitcnt lgkmcnt(0)")
    A(f"v_readfirstlane_b32 s{S_T0}, v{vt}")
    A(f"s_cmp_lt_u32 s{S_T0}, {n}")
    A(f"s_cbranch_scc1 {l}")
    L(e)
    A("s_waitcnt lgkmcnt(0)")


def tree3(op3, op2, regs, t):
    regs = list(regs)
    A(f"{op3} v{t}, v{regs[0]}, v{regs[1]}, v{regs[2]}")
    i = 3
    while i + 1 < len(regs):
        A(f"{op3} v{t}, v{t}, v{regs[i]}, v{regs[i+1]}")
        i += 2
    if i < len(regs):
        A(f"{op2} v{t}, v{t}, v{regs[i]}")


def tag(quad, tg):
    for j in range(4):
        A(f"v_add_u32 v{quad+j}, 0x200, v{quad+j}")
    for j in range(4):
        A(f"v_bfi_b32 v{quad+j}, v{V_MSK}, v{tg+j}, v{quad+j}")


def tpoll(loads, regs, t, tg, sleep=0):
    l, e = newlbl("Lt"), newlbl("Lte")
    regs = list(regs)
    A(f"s_mov_b32 s{S_TO}, {CFG['timeout']}")
    L(l)
    if sleep:
        A(f"s_sleep {sleep}")
    loads()
    A(f"s_sub_u32 s{S_TO}, s{S_TO}, 1")
    A(f"s_cbranch_scc1 {e}")
    A("s_waitcnt vmcnt(0)")
    for i, r in enumerate(regs):
        A(f"v_xor_b32 v{r}, v{r}, v{tg + (i & 3)}")
    tree3("v_or3_b32", "v_or_b32", regs, t)
    A(f"v_and_b32 v{t}, v{V_MSK}, v{t}")
    A(f"v_cmp_ne_u32 vcc, 0, v{t}")
    A("s_cmp_lg_u64 vcc, 0")
    A(f"s_cbranch_scc1 {l}")
    L(e)
    A("s_waitcnt vmcnt(0)")


def tpoll2(loads, nld, bases, nreg, t, tg, consume):
    l, eA, eB, done = newlbl("Lu"), newlbl("LuA"), newlbl("LuB"), newlbl("Lud")

    def check(base, target):
        A(f"s_waitcnt vmcnt({nld})")
        regs = list(range(base, base + nreg))
        for i, r in enumerate(regs):
            A(f"v_xor_b32 v{r}, v{r}, v{tg + (i & 3)}")
        tree3("v_or3_b32", "v_or_b32", regs, t)
        A(f"v_and_b32 v{t}, v{V_MSK}, v{t}")
        A(f"v_cmp_ne_u32 vcc, 0, v{t}")
        A("s_cmp_eq_u64 vcc, 0")
        A(f"s_cbranch_scc1 {target}")
    A(f"s_mov_b32 s{S_TO}, {CFG['timeout']}")
    loads(bases[0])
    L(l)
    loads(bases[1])
    check(bases[0], eA)
    loads(bases[0])
    check(bases[1], eB)
    A(f"s_sub_u32 s{S_TO}, s{S_TO}, 1")
    A(f"s_cbranch_scc0 {l}")
    A("s_waitcnt vmcnt(0)")
    L(eA)
    consume(bases[0])
    A(f"s_branch {done}")
    L(eB)
    consume(bases[1])
    L(done)


def bf16r(dst, src):
    A(f"v_cvt_pk_bf16_f32 v{dst}, v{src}, v{src}")
    A(f"v_lshlrev_b32 v{dst}, 16, v{dst}")


def unpack(dst, src, n):
    for i in range(n):
        A(f"v_lshlrev_b32 v{dst+2*i}, 16, v{src+i}")
        A(f"v_and_b32 v{dst+2*i+1}, 0xffff0000, v{src+i}")


def pack(dst, src, n):
    for i in range(n):
        A(f"v_cvt_pk_bf16_f32 v{dst+i}, v{src+2*i}, v{src+2*i+1}")


def layernorm(xs, nb, tmp, outp):
    s = [tmp + i for i in range(nb)]
    q = [tmp + nb + i for i in range(nb)]
    t = [tmp + 2 * nb + i for i in range(nb)]
    mb = [tmp + 3 * nb + i for i in range(nb)]
    d = [tmp + 4 * nb + 8 * i for i in range(nb)]
    for i in range(nb):
        x = xs[i]
        A(f"v_add_f32 v{s[i]}, v{x}, v{x+1}")
        A(f"v_add_f32 v{t[i]}, v{x+2}, v{x+3}")
        A(f"v_add_f32 v{q[i]}, v{x+4}, v{x+5}")
        A(f"v_add_f32 v{mb[i]}, v{x+6}, v{x+7}")
        A(f"v_add_f32 v{s[i]}, v{s[i]}, v{t[i]}")
        A(f"v_add_f32 v{q[i]}, v{q[i]}, v{mb[i]}")
        A(f"v_add_f32 v{s[i]}, v{s[i]}, v{q[i]}")
    allreduce("v_add_f32", s, t)
    for i in range(nb):
        A(f"v_mul_f32 v{s[i]}, {f2u(1.0/512):#x}, v{s[i]}")
    for i in range(nb):
        x = xs[i]
        for j in range(8):
            A(f"v_sub_f32 v{d[i]+j}, v{x+j}, v{s[i]}")
        A(f"v_mul_f32 v{q[i]}, v{d[i]}, v{d[i]}")
        for j in range(1, 8):
            A(f"v_fmac_f32 v{q[i]}, v{d[i]+j}, v{d[i]+j}")
        bf16r(mb[i], s[i])
    nop(2)
    dpp_steps("v_add_f32", q, ROW_ALL)
    for i in range(nb):
        x = xs[i]
        for j in range(8):
            A(f"v_sub_f32 v{d[i]+j}, v{x+j}, v{mb[i]}")
        pack(outp[i], d[i], 4)
        unpack(d[i], outp[i], 4)
    swap_steps("v_add_f32", q, t)
    for i in range(nb):
        A(f"v_mul_f32 v{q[i]}, {f2u(1.0/512):#x}, v{q[i]}")
        bf16r(q[i], q[i])
        A(f"v_add_f32 v{q[i]}, {f2u(1e-5):#x}, v{q[i]}")
        bf16r(q[i], q[i])
        A(f"v_sqrt_f32 v{q[i]}, v{q[i]}")
        nop(1)
        bf16r(q[i], q[i])
        A(f"v_rcp_f32 v{q[i]}, v{q[i]}")
    nop(1)
    for i in range(nb):
        for j in range(8):
            A(f"v_mul_f32 v{d[i]+j}, v{d[i]+j}, v{q[i]}")
        pack(outp[i], d[i], 4)


def mfma(d, a, b, c=None):
    cc = f"v[{c}:{c+3}]" if c is not None else "0"
    A(f"v_mfma_f32_16x16x32_bf16 v[{d}:{d+3}], v[{a}:{a+3}], v[{b}:{b+3}], {cc}")


MASK_N2 = 0x0003000300030003
MASK_N4 = 0x000f000f000f000f


def set_exec(mask):
    A(f"s_mov_b32 exec_lo, {mask & 0xffffffff:#x}")
    A(f"s_mov_b32 exec_hi, {mask >> 32:#x}")


def tag_poll(sleep0, sel, barrier=False):
    lt, lte = newlbl(), newlbl()
    A(f"s_and_b32 s{S_T1}, s{sel}, 3")
    A(f"s_lshl_b32 s{S_T1}, s{S_T1}, 6")
    A(f"s_mov_b32 s{S_TO}, {CFG['timeout']}")
    if sleep0:
        A(f"s_sleep {sleep0}")
    L(lt)
    A(f"s_load_dwordx2 s[{S_TG}:{S_TG+1}], s[{P_DBG}:{P_DBG+1}], s{S_T1} glc")
    A(f"s_sub_u32 s{S_TO}, s{S_TO}, 1")
    A(f"s_cbranch_scc1 {lte}")
    A("s_waitcnt lgkmcnt(0)")
    A(f"s_cmp_lg_u32 s{S_TG+1}, 0")
    A(f"s_cbranch_scc1 {lte}")
    A(f"s_sleep {CFG['tsleep']}")
    A(f"s_branch {lt}")
    L(lte)
    A("s_waitcnt lgkmcnt(0)")
    A(f"v_mov_b32 v100, s{S_TG}")
    A(f"v_mov_b32 v101, s{S_TG+1}")
    A("v_and_b32 v104, 0x3ff, v100")
    A("v_bfe_u32 v105, v100, 10, 10")
    A("v_bfe_u32 v106, v100, 20, 10")
    A("v_alignbit_b32 v107, v101, v100, 30")
    A("v_and_b32 v107, 0x3ff, v107")
    A(f"v_mov_b32 v102, {L_TAG}")
    if barrier:
        A("s_barrier")
    A("ds_write_b64 v102, v[100:101]")
    A("ds_write_b128 v102, v[104:107] offset:16")
    lds_set(L_FLAG, 100, 101)


XNT = ' nt' if CFG.get('xnt', 0) else ''
out.append(f"""; fused pre-LN attention(decode, sliding window) + gelu MLP, persistent kernel
; @launch grid=(256,1,1) block=(640,1,1) lds={LDS_BYTES}
.amdgcn_target "amdgcn-amd-amdhsa--gfx950"
.text
.globl {NAME}_kernel
.p2align 8
.type {NAME}_kernel,@function
{NAME}_kernel:""")

BLK = {"head": out}


def begin(name):
    global out
    BLK[name] = []
    out = BLK[name]


def post_entry():
    A("s_waitcnt lgkmcnt(0)")
    srd(SRD_WS, P_WS, WS_SIZE)
    if CFG["stamps"] == 2:
        A(f"v_mov_b32 v166, s{P_DBG}")
        A(f"v_mov_b32 v167, s{P_DBG+1}")
    stamp(0)


def att_common():
    A(f"s_sub_u32 s{S_A}, s{S_A}, 16")
    A(f"s_lshr_b32 s{S_B}, s{S_A}, 3")
    A(f"s_lshl_b32 s{S_T0}, s{S_X}, 4")
    A(f"s_add_u32 s{S_T0}, s{S_T0}, s{S_A}")
    A(f"s_mul_i32 s{S_T0}, s{S_T0}, {RECP}")
    A(f"s_add_u32 s{S_PNA}, s{S_T0}, {WS_PNA}")
    A(f"s_add_u32 s{S_PNB}, s{S_T0}, {WS_PNB}")


def gv_common():
    A(f"s_mul_i32 s{S_SUB}, s{S_X}, 7")
    A(f"s_add_u32 s{S_SUB}, s{S_SUB}, s{S_A}")
    A(f"s_sub_u32 s{S_SUB}, s{S_SUB}, 8")
    A(f"s_mov_b32 s{S_ROLE}, 2")
    A(f"s_cmp_lt_u32 s{S_A}, 8")
    A(f"s_cselect_b32 s{S_ROLE}, 1, s{S_ROLE}")
    A(f"s_cselect_b32 s{S_SUB}, s{S_A}, s{S_SUB}")
    A(f"s_cmp_eq_u32 s{S_A}, 15")
    A(f"s_cselect_b32 s{S_ROLE}, 0, s{S_ROLE}")


def zero_flags():
    for j in range(4):
        A(f"v_mov_b32 v{12+j}, 0")
    A(f"v_mov_b32 v3, {L_FLAG}")
    A("ds_write_b128 v3, v[12:15]")
    A(f"ds_write_b128 v3, v[12:15] offset:{L_FL2 - L_FLAG}")


A("s_cmp_ge_u32 s2, 256")
A("s_cbranch_scc1 L_end")
A("s_load_dwordx16 s[36:51], s[0:1], 0")
A("s_load_dwordx8 s[52:59], s[0:1], 64")
A("s_load_dwordx2 s[60:61], s[0:1], 96")
A("v_lshrrev_b32 v1, 6, v0")
A("v_and_b32 v0, 63, v0")
A(f"s_and_b32 s{S_X}, s2, 7")
A(f"v_readfirstlane_b32 s{S_WAVE}, v1")
A(f"s_lshr_b32 s{S_A}, s2, 3")
if CFG["pf"]:
    C("early workgroups: waves 0..5 pull the kernel's code into L2 (striped)")
    A(f"s_cmp_ge_u32 s{S_WAVE}, 6")
    A("s_cbranch_scc1 L_pfe")
    A(f"s_cmp_ge_u32 s{S_A}, {CFG['pfw']}")
    A("s_cbranch_scc1 L_pfe")
    A("s_getpc_b64 s[24:25]")
    L("L_pcref")
    A(f"s_lshl_b32 s26, s{S_WAVE}, 7")
    L("L_pf")
    A("s_load_dword s27, s[24:25], s26")
    A("s_add_u32 s26, s26, 768")
    A("s_cmp_lt_u32 s26, L_end-L_pcref")
    A("s_cbranch_scc1 L_pf")
    L("L_pfe")
A("v_lshlrev_b32 v2, 4, v0")
A("v_lshrrev_b32 v4, 4, v0")
A(f"v_mov_b32 v{V_MSK}, 0x3ff")
A("v_and_b32 v6, 15, v0")
A("v_lshrrev_b32 v8, 3, v0")
A("v_bfe_u32 v9, v0, 1, 2")
A("v_and_b32 v10, 1, v0")
A("v_lshlrev_b32 v11, 5, v8")
A("v_lshl_add_u32 v11, v10, 4, v11")
if CFG["stamps"]:
    A(f"v_mov_b32 v{V_ST}, 0")
C("dispatch before waiting for the kernel arguments")
A(f"s_lshr_b32 s{S_T0}, s{S_A}, 4")
A(f"s_lshl_b32 s{S_T0}, s{S_T0}, 4")
A(f"s_or_b32 s{S_T0}, s{S_T0}, s{S_WAVE}")
A(f"s_cmp_ge_u32 s{S_T0}, 24")
A("s_cbranch_scc1 L_ldr")
A(f"s_cmp_ge_u32 s{S_T0}, 16")
A("s_cbranch_scc1 L_att")
A(f"s_cmp_lg_u32 s{S_T0}, 6")
A("s_cbranch_scc1 L_GV")

V_K = 16
V_Q = 48
V_S = 64
V_SM = 72
V_PNA = 80
V_T = 84
V_TG = 124
V_G = 128

begin("att")
L("L_att")
att_common()
post_entry()
srd(SRD_C, P_OUT, 2048)
A(f"s_lshl_b32 s{S_T1}, s{S_WAVE}, 8")
A(f"s_add_u32 s{S_PNA}, s{S_PNA}, s{S_T1}")
A(f"s_add_u32 s{S_PNB}, s{S_PNB}, s{S_T1}")
A(f"v_lshlrev_b32 v{V_PNA}, 6, v6")
A(f"v_lshl_add_u32 v{V_PNA}, v4, 4, v{V_PNA}")
C("G role: even a -> gi = x*8 + a/2 (wave 0)")
A(f"s_lshl_b32 s{S_T0}, s{S_X}, 3")
A(f"s_lshr_b32 s{S_T1}, s{S_A}, 1")
A(f"s_add_u32 s{S_SUB}, s{S_T0}, s{S_T1}")
A(f"s_and_b32 s{S_ROLE}, s{S_A}, 1")
A(f"s_or_b32 s{S_ROLE}, s{S_ROLE}, s{S_WAVE}")
A(f"s_cmp_lg_u32 s{S_ROLE}, 0")
A("s_cbranch_scc1 L_nogsm")
srd(SRD_B, P_X, 2048)
A(f"v_and_b32 v{V_T}, 3, v0")
A(f"v_lshlrev_b32 v{V_T}, 3, v{V_T}")
A(f"s_lshl_b32 s{S_T0}, s{S_SUB}, 5")
A(f"buffer_load_dwordx2 v[{V_SM}:{V_SM+1}], v{V_T}, {SB}, s{S_T0} offen{XNT}")
if CFG["touch2"]:
    A(f"buffer_load_dwordx2 v[{V_SM+4}:{V_SM+5}], v{V_T}, {SC_}, s{S_T0} offen")
srd(SRD_B, P_B2, 1024)
A(f"s_and_b32 s{S_T0}, s{S_T0}, 1023")
A(f"buffer_load_dwordx2 v[{V_SM+2}:{V_SM+3}], v{V_T}, {SB}, s{S_T0} offen{XNT}")
L("L_nogsm")
A("s_barrier")
C("pre-touch this wave's q lines so that they are resident at the memory side")
A(f"s_lshl_b32 s{S_T1}, s{S_X}, 12")
A(f"s_lshl_b32 s{S_T2}, s{S_B}, 11")
A(f"s_add_u32 s{S_T1}, s{S_T1}, s{S_T2}")
A(f"s_lshl_b32 s{S_T2}, s{S_WAVE}, 8")
A(f"s_add_u32 s{S_T1}, s{S_T1}, s{S_T2}")
A(f"s_add_u32 s{S_T2}, s{SRD_WS}, s{S_T1}")
A(f"s_addc_u32 s{S_T3}, s{SRD_WS+1}, 0")
if CFG["touch"]:
    for i in range(4):
        A(f"s_load_dword s{64+i}, s[{S_T2}:{S_T3}], {WS_Q + 64*i} glc")
C("K fragment addresses: K + w*8192 + m*256 + ((4k+g)^m)*16")
KA = V_T + 36
A(f"s_lshl_b32 s{S_T0}, s{S_WAVE}, 13")
A(f"s_add_u32 s{S_T0}, s{S_T0}, {L_K}")
for kp in range(4):
    A(f"v_add_u32 v{KA+kp}, {4*kp}, v4")
    A(f"v_xor_b32 v{KA+kp}, v{KA+kp}, v6")
    A(f"v_lshlrev_b32 v{KA+kp}, 4, v{KA+kp}")
    A(f"v_lshl_add_u32 v{KA+kp}, v6, 8, v{KA+kp}")
    A(f"v_add_u32 v{KA+kp}, s{S_T0}, v{KA+kp}")
A(f"s_cmp_lg_u32 s{S_WAVE}, 7")
A("s_cbranch_scc1 L_ntp")
tag_poll(CFG["tsleepa"], S_A)
L("L_ntp")
lds_wait(L_FLAG, V_T + 2, V_T + 3)
A(f"v_mov_b32 v{V_T}, 0")
A(f"ds_read_b64 v[{V_T+2}:{V_T+3}], v{V_T} offset:{L_TAG}")
A(f"ds_read_b128 v[{V_TG}:{V_TG+3}], v{V_T} offset:{L_TAG + 16}")
A("s_waitcnt lgkmcnt(0)")
A(f"v_readfirstlane_b32 s{S_TG}, v{V_T+2}")
A(f"v_readfirstlane_b32 s{S_TG+1}, v{V_T+3}")
stamp(1)
S2 = V_T + 4
PK = V_T + 12
MM = V_T + 16
TT = V_T + 20
EX = V_T + 24
QA = V_T + 1
A(f"s_lshl_b32 s{S_T0}, s{S_WAVE}, 7")
A(f"v_lshl_add_u32 v{QA}, v0, 2, s{S_T0}")
A(f"v_and_b32 v{V_T+2}, 3, v0")
A(f"v_lshlrev_b32 v{V_T+3}, 8, v{V_T+2}")
A(f"v_lshl_add_u32 v{V_T+3}, v4, 4, v{V_T+3}")
A(f"s_lshl_b32 s{S_T0}, s{S_WAVE}, 2")
A(f"v_lshl_add_u32 v{TT+2}, v0, 5, s{S_T0}")
A(f"v_lshlrev_b32 v{TT+3}, 5, v{V_T+2}")
C("---- scalar gather of q: this wave's 256 bytes (16 granules {d0,d1,T0,T1})")
lq, lqe = newlbl("Lq"), newlbl("Lqe")
stamp(12)
A(f"s_mov_b32 s{S_TO}, {CFG['timeout']}")
L(lq)
for i in range(4):
    A(f"s_load_dwordx16 s[{S_Q+16*i}:{S_Q+16*i+15}], s[{S_T2}:{S_T3}], {WS_Q + 64*i} glc")
A(f"s_sub_u32 s{S_TO}, s{S_TO}, 1")
A(f"s_cbranch_scc1 {lqe}")
A("s_waitcnt lgkmcnt(0)")
A(f"s_and_b64 s[{S_T4}:{S_T5}], s[{S_Q+2}:{S_Q+3}], s[{S_Q+6}:{S_Q+7}]")
A(f"s_or_b64 s[{S_T0}:{S_T1}], s[{S_Q+2}:{S_Q+3}], s[{S_Q+6}:{S_Q+7}]")
for gq in range(2, 16):
    A(f"s_and_b64 s[{S_T4}:{S_T5}], s[{S_T4}:{S_T5}], s[{S_Q+4*gq+2}:{S_Q+4*gq+3}]")
    A(f"s_or_b64 s[{S_T0}:{S_T1}], s[{S_T0}:{S_T1}], s[{S_Q+4*gq+2}:{S_Q+4*gq+3}]")
A(f"s_xor_b64 s[{S_T4}:{S_T5}], s[{S_T4}:{S_T5}], s[{S_TG}:{S_TG+1}]")
A(f"s_xor_b64 s[{S_T0}:{S_T1}], s[{S_T0}:{S_T1}], s[{S_TG}:{S_TG+1}]")
A(f"s_or_b64 s[{S_T4}:{S_T5}], s[{S_T4}:{S_T5}], s[{S_T0}:{S_T1}]")
A(f"s_cbranch_scc1 {lq}")
L(lqe)
A("s_waitcnt lgkmcnt(0)")
stamp(8)
if CFG["stamps"] == 1:
    A(f"s_sub_u32 s0, {CFG['timeout']}, s{S_TO}")
    A(f"v_writelane_b32 v{V_ST}, s0, 9")
for gq in range(16):
    A(f"v_writelane_b32 v{V_T}, s{S_Q+4*gq}, {2*gq}")
    A(f"v_writelane_b32 v{V_T}, s{S_Q+4*gq+1}, {2*gq+1}")
A("s_mov_b32 exec_hi, 0")
A(f"ds_write_b32 v{QA}, v{V_T} offset:{L_QL}")
A("s_mov_b32 exec_hi, -1")
C("K fragments as soon as K landed")
lds_wait(L_FLAG + 4, V_T, TT, sleep=1)
for kp in range(4):
    for tt in range(2):
        r = V_K + (tt * 4 + kp) * 4
        A(f"ds_read_b128 v[{r}:{r+3}], v{KA+kp} offset:{tt*4096}")
C("poll the q operand itself (LDS sentinel)")
l1, l1e = newlbl("Lqo"), newlbl("Lqoe")
A(f"s_mov_b32 s{S_TO}, {CFG['timeout']}")
L(l1)
for kp in range(4):
    A(f"ds_read_b128 v[{V_Q+4*kp}:{V_Q+4*kp+3}], v{V_T+3} offset:{L_QL + kp*64}")
A(f"s_sub_u32 s{S_TO}, s{S_TO}, 1")
A(f"s_cbranch_scc1 {l1e}")
A("s_waitcnt lgkmcnt(0)")
tree3("v_max3_u32", "v_max_u32", range(V_Q, V_Q + 16), TT)
A(f"v_cmp_eq_u32 vcc, -1, v{TT}")
A("s_cmp_lg_u64 vcc, 0")
A(f"s_cbranch_scc1 {l1}")
L(l1e)
A("s_waitcnt lgkmcnt(0)")
for kp in range(4):
    for tt in range(2):
        mfma(V_S + 4 * tt, V_K + (tt * 4 + kp) * 4, V_Q + 4 * kp, None if kp == 0 else V_S + 4 * tt)
stamp(2)
A(f"s_mov_b32 s{S_T0}, {f2u(SCALE):#x}")
A(f"s_mov_b32 s{S_T1}, {f2u(LOG2E):#x}")
nop(6)
pack(PK, V_S, 4)
unpack(S2, PK, 4)
for j in range(8):
    A(f"v_mul_f32 v{S2+j}, s{S_T0}, v{S2+j}")
pack(PK, S2, 4)
unpack(S2, PK, 4)
A(f"v_max3_f32 v{MM}, v{S2}, v{S2+1}, v{S2+2}")
A(f"v_max3_f32 v{MM}, v{MM}, v{S2+3}, v{S2+4}")
A(f"v_max3_f32 v{MM}, v{MM}, v{S2+5}, v{S2+6}")
A(f"v_max_f32 v{MM}, v{MM}, v{S2+7}")
swap_steps("v_max_f32", [MM], [TT])
A("s_mov_b64 exec, 15")
A(f"ds_write_b32 v{TT+2}, v{MM} offset:{L_MX}")
A("s_mov_b64 exec, -1")
for j in range(8):
    A(f"v_mul_f32 v{S2+j}, s{S_T1}, v{S2+j}")
l2, l2e = newlbl("Lmx"), newlbl("Lmxe")
A(f"s_mov_b32 s{S_TO}, {CFG['timeout']}")
L(l2)
A(f"ds_read_b128 v[{EX}:{EX+3}], v{TT+3} offset:{L_MX}")
A(f"ds_read_b128 v[{EX+4}:{EX+7}], v{TT+3} offset:{L_MX + 16}")
A(f"s_sub_u32 s{S_TO}, s{S_TO}, 1")
A(f"s_cbranch_scc1 {l2e}")
A("s_waitcnt lgkmcnt(0)")
tree3("v_max3_u32", "v_max_u32", range(EX, EX + 8), TT)
tree3("v_max3_f32", "v_max_f32", range(EX, EX + 8), MM)
A(f"v_cmp_eq_u32 vcc, -1, v{TT}")
A("s_cmp_lg_u64 vcc, 0")
A(f"s_cbranch_scc1 {l2}")
L(l2e)
A("s_waitcnt lgkmcnt(0)")
A(f"v_mul_f32 v{MM}, s{S_T1}, v{MM}")
for j in range(8):
    A(f"v_sub_f32 v{EX+j}, v{S2+j}, v{MM}")
for j in range(8):
    A(f"v_exp_f32 v{EX+j}, v{EX+j}")
A(f"s_lshl_b32 s{S_T0}, s{S_WAVE}, 10")
A(f"v_add_u32 v{TT}, s{S_T0}, v2")
pack(PK, EX, 4)
A(f"ds_write_b128 v{TT}, v[{PK}:{PK+3}] offset:{L_SC}")
A(f"v_add_f32 v{MM+1}, v{EX}, v{EX+1}")
A(f"v_add_f32 v{TT}, v{EX+2}, v{EX+3}")
A(f"v_add_f32 v{TT+1}, v{EX+4}, v{EX+5}")
A(f"v_add_f32 v{EX}, v{EX+6}, v{EX+7}")
A(f"v_add_f32 v{MM+1}, v{MM+1}, v{TT}")
A(f"v_add_f32 v{EX}, v{EX}, v{TT+1}")
A(f"v_add_f32 v{MM+1}, v{MM+1}, v{EX}")
swap_steps("v_add_f32", [MM + 1], [TT])
A("s_mov_b64 exec, 15")
A(f"ds_write_b32 v{TT+2}, v{MM+1} offset:{L_LS}")
A("s_mov_b64 exec, -1")
stamp(3)
VA0, VA1, VB0, VB1 = V_T + 32, V_T + 33, V_T + 34, V_T + 35


def vw2_addr():
    A(f"v_lshlrev_b32 v{VA0}, 10, v4")
    A(f"v_lshl_add_u32 v{VA0}, v6, 3, v{VA0}")
    A(f"v_and_b32 v{VA1}, 1, v4")
    A(f"v_lshl_add_u32 v{VA0}, v{VA1}, 7, v{VA0}")
    A(f"v_xor_b32 v{VA1}, 128, v{VA0}")


vw2_addr()
A(f"s_lshl_b32 s{S_T0}, s{S_WAVE}, 8")
A(f"s_add_u32 s{S_T0}, s{S_T0}, {L_V}")
A(f"v_add_u32 v{VB0}, s{S_T0}, v{VA0}")
A(f"v_add_u32 v{VB1}, s{S_T0}, v{VA1}")
A("s_waitcnt lgkmcnt(0)")
A("s_barrier")
stamp(5)
A(f"s_cmp_gt_u32 s{S_WAVE}, 4")
A("s_cbranch_scc1 L_exit")
A(f"s_cmp_lt_u32 s{S_WAVE}, 4")
A("s_cbranch_scc1 L_pv")
C("---- wave 4: publish stats {m,l,T0,T1} per head (lanes 0..3)")
A(f"ds_read_b128 v[{EX}:{EX+3}], v{TT+3} offset:{L_LS}")
A(f"ds_read_b128 v[{EX+4}:{EX+7}], v{TT+3} offset:{L_LS + 16}")
A(f"v_mov_b32 v{MM+2}, s{S_TG}")
A(f"v_mov_b32 v{MM+3}, s{S_TG+1}")
A("s_waitcnt lgkmcnt(0)")
for j in range(4):
    A(f"v_add_f32 v{EX+j}, v{EX+j}, v{EX+4+j}")
A(f"v_add_f32 v{EX}, v{EX}, v{EX+1}")
A(f"v_add_f32 v{EX+2}, v{EX+2}, v{EX+3}")
A(f"v_add_f32 v{MM+1}, v{EX}, v{EX+2}")
A("s_mov_b64 exec, 15")
if CFG["dual"]:
    A(f"buffer_store_dwordx4 v[{MM}:{MM+3}], v2, {WS}, s{S_PNA} offen")
A(f"buffer_store_dwordx4 v[{MM}:{MM+3}], v2, {WS}, s{S_PNB} offen sc1")
A("s_branch L_exit")
L("L_pv")
C("---- PV (waves 0..3, 32 dims each, 8 k-steps)")
PB = V_G
VF = V_K


def pv_reads(t):
    A(f"ds_read_b128 v[{PB+4*t}:{PB+4*t+3}], v2 offset:{L_SC + t*1024}")
    for c2 in range(2):
        for h in range(2):
            r = VF + ((t % 6) * 2 + c2) * 4 + 2 * h
            A(f"ds_read_b64_tr_b16 v[{r}:{r+1}], v{VB0 + c2} offset:{t*8192 + h*4096}")


for t in range(3):
    pv_reads(t)
for t in range(8):
    A(f"s_waitcnt lgkmcnt({min(2, 7 - t)*5})")
    for c2 in range(2):
        mfma(V_S + 4 * c2, VF + ((t % 6) * 2 + c2) * 4, PB + 4 * t, None if t == 0 else V_S + 4 * c2)
    if t + 3 < 8:
        pv_reads(t + 3)
nop(7)
pack(PK, V_S, 4)
set_exec(MASK_N4)
if CFG["dual"]:
    A(f"buffer_store_dwordx4 v[{PK}:{PK+3}], v{V_PNA}, {WS}, s{S_PNA} offen")
A(f"buffer_store_dwordx4 v[{PK}:{PK+3}], v{V_PNA}, {WS}, s{S_PNB} offen sc1")
A("s_mov_b64 exec, -1")
stamp(6)
A(f"s_cmp_lg_u32 s{S_ROLE}, 0")
A("s_cbranch_scc1 L_exit")

C("==== G: final reduce of 16 outputs (16gi..16gi+15)")
A(f"s_lshl_b32 s{S_T2}, s{S_SUB}, 6")
A(f"s_add_u32 s{S_T3}, s{S_T2}, {WS_AP}")
A(f"s_add_u32 s{S_T2}, s{S_T2}, {WS_Y}")
A(f"v_lshrrev_b32 v{TT+2}, 2, v0")
A(f"v_and_b32 v{TT+3}, 3, v0")
A(f"v_lshlrev_b32 v{TT}, 12, v{TT+2}")
A(f"v_lshl_add_u32 v{TT}, v{TT+3}, 4, v{TT}")
A(f"s_movk_i32 s{S_T0}, {YP}")
A(f"v_mul_lo_u32 v{TT+2}, v{TT+2}, s{S_T0}")
A(f"v_lshl_add_u32 v{TT+2}, v{TT+3}, 4, v{TT+2}")
for i in range(1, 4):
    A(f"s_add_u32 s{40+i}, s{S_T2}, {16*i*YP}")
GA = V_G
A("s_mov_b32 exec_hi, 0")


def g1_loads():
    A(f"buffer_load_dwordx4 v[{GA}:{GA+3}], v{TT}, {WS}, s{S_T3} offen sc1")


tpoll(g1_loads, range(GA, GA + 4), V_T, V_TG, CFG['g1sl'])
A("s_mov_b64 exec, -1")
stamp(7)
nop(1)
dpp_steps("v_add_f32", [GA + j for j in range(4)], ROW_HI)
swap_steps("v_add_f32", [GA + j for j in range(4)], [GA + 4 + j for j in range(4)], which=(16,))
GH = V_G + 8
GP = V_G + 16
GB = V_G + 20
pack(GP, GA, 2)
unpack(GA, GP, 2)
unpack(GH, V_SM, 2)
for j in range(4):
    A(f"v_add_f32 v{GH+j}, v{GH+j}, v{GA+j}")
pack(GP, GH, 2)
unpack(GH, GP, 2)
unpack(GB, V_SM + 2, 2)
GY = V_K


def g2_loads():
    for j in range(4):
        A(f"v_mov_b32 v{GY+12+j}, v{V_TG+j}")
    A(f"buffer_load_dwordx4 v[{GY}:{GY+3}], v{TT+2}, {WS}, s{S_T2} offen sc1")
    A(f"buffer_load_dwordx4 v[{GY+4}:{GY+7}], v{TT+2}, {WS}, s41 offen sc1")
    A(f"buffer_load_dwordx4 v[{GY+8}:{GY+11}], v{TT+2}, {WS}, s42 offen sc1")
    A("s_mov_b32 exec_hi, 0")
    A(f"buffer_load_dwordx4 v[{GY+12}:{GY+15}], v{TT+2}, {WS}, s43 offen sc1")
    A("s_mov_b32 exec_hi, -1")


tpoll(g2_loads, range(GY, GY + 16), V_T, V_TG, CFG['g2sl'])
stamp(10)
for j in range(4):
    A(f"v_add_f32 v{GY+j}, v{GY+j}, v{GY+4+j}")
    A(f"v_add_f32 v{GY+8+j}, v{GY+8+j}, v{GY+12+j}")
for j in range(4):
    A(f"v_add_f32 v{GY+j}, v{GY+j}, v{GY+8+j}")
dpp_steps("v_add_f32", [GY + j for j in range(4)], ROW_HI)
swap_steps("v_add_f32", [GY + j for j in range(4)], [GY + 4 + j for j in range(4)])
pack(GP, GY, 2)
unpack(GY, GP, 2)
for j in range(4):
    A(f"v_add_f32 v{GY+j}, v{GY+j}, v{GB+j}")
pack(GP, GY, 2)
unpack(GY, GP, 2)
for j in range(4):
    A(f"v_add_f32 v{GY+j}, v{GY+j}, v{GH+j}")
pack(GP, GY, 2)
A(f"s_lshl_b32 s{S_T2}, s{S_SUB}, 5")
A("v_lshlrev_b32 v3, 3, v0")
A("s_mov_b64 exec, 15")
A(f"buffer_store_dwordx2 v[{GP}:{GP+1}], v3, {SC_}, s{S_T2} offen")
stamp(11)
A("s_branch L_exit")

begin("ldr")
L("L_ldr")
att_common()
C("kv byte offset: ((b*8+x)*8192 + 6144 + 256 s)*256")
A(f"s_lshl_b32 s{S_T0}, s{S_B}, 3")
A(f"s_add_u32 s{S_T0}, s{S_T0}, s{S_X}")
A(f"s_lshl_b32 s{S_T0}, s{S_T0}, 5")
A(f"s_and_b32 s{S_T1}, s{S_A}, 7")
A(f"s_add_u32 s{S_T0}, s{S_T0}, s{S_T1}")
A(f"s_add_u32 s{S_T0}, s{S_T0}, 24")
A(f"s_lshl_b32 s{S_T3}, s{S_T0}, 16")
A(f"s_mov_b32 s{S_T2}, 0")
A(f"s_cmp_eq_u32 s{S_WAVE}, 9")
A("s_cbranch_scc1 L_ldv")
C("K DMA lane offsets: r4=l>>4, p=l&15: r4*256 + ((p ^ (4i+r4))*16)")
for i in range(4):
    A(f"v_add_u32 v{12+i}, {4*i}, v4")
    A(f"v_xor_b32 v{12+i}, v{12+i}, v6")
    A(f"v_lshlrev_b32 v{12+i}, 4, v{12+i}")
    A(f"v_lshl_add_u32 v{12+i}, v4, 8, v{12+i}")
A(f"s_mov_b32 s{S_T1}, {L_K}")
post_entry()
srd(SRD_A, P_K, 0x2000000)
L("L_ldk1")
A(f"s_mov_b32 m0, s{S_T1}")
A(f"s_add_u32 s{S_T1}, s{S_T1}, 4096")
for i in range(4):
    A(f"buffer_load_dwordx4 v{12+i}, {SA}, s{S_T3} offen offset:{i*1024}{NT} lds")
A(f"s_add_u32 s{S_T3}, s{S_T3}, 4096")
A(f"s_add_u32 s{S_T2}, s{S_T2}, 1")
A(f"s_cmp_eq_u32 s{S_T2}, 6")
A("s_cbranch_scc0 L_ldk2")
A("s_barrier")
L("L_ldk2")
A(f"s_cmp_lt_u32 s{S_T2}, 16")
A("s_cbranch_scc1 L_ldk1")
lds_set(L_FL2, 16, 17)
stamp(1)
A("s_waitcnt vmcnt(0)")
stamp(4)
lds_set(L_FLAG + 4, 16, 17)
A("s_waitcnt lgkmcnt(0)")
A("s_branch L_exit")
L("L_ldv")
zero_flags()
for j in range(4):
    A(f"v_mov_b32 v{16+j}, -1")
A(f"ds_write_b128 v2, v[16:19] offset:{L_QL}")
A("s_mov_b64 exec, 0xff")
A(f"ds_write_b128 v2, v[16:19] offset:{L_MX}")
A("s_mov_b64 exec, -1")
A("v_lshl_add_u32 v12, v9, 8, v11")
A("v_xor_b32 v13, 32, v12")
post_entry()
srd(SRD_B, P_V, 0x2000000)
A("s_barrier")
A(f"buffer_store_dwordx4 v[16:19], v2, {WS}, s{S_PNA} offen sc1")
A(f"buffer_store_dwordx4 v[16:19], v2, {WS}, s{S_PNB} offen sc1")
lds_wait(L_FL2, 20, 21)
A(f"s_mov_b32 s{S_T1}, {L_V}")
L("L_ldv1")
A(f"s_mov_b32 m0, s{S_T1}")
A(f"s_add_u32 s{S_T1}, s{S_T1}, 4096")
for be in range(4):
    A(f"buffer_load_dwordx4 v{12 + (be & 1)}, {SB}, s{S_T3} offen offset:{be*1024}{NT} lds")
A(f"s_add_u32 s{S_T3}, s{S_T3}, 4096")
A(f"s_add_u32 s{S_T2}, s{S_T2}, 1")
A(f"s_cmp_lt_u32 s{S_T2}, 16")
A("s_cbranch_scc1 L_ldv1")
stamp(1)
A("s_waitcnt vmcnt(0)")
stamp(4)
A("s_barrier")
A("s_branch L_exit")

begin("gv")
L("L_GV")
gv_common()
A(f"s_cmp_lg_u32 s{S_WAVE}, 9")
A("s_cbranch_scc1 L_gvz")
zero_flags()
L("L_gvz")
post_entry()
A(f"s_cmp_ge_u32 s{S_WAVE}, 8")
A("s_cbranch_scc1 L_gld")
A(f"s_cmp_lg_u32 s{S_WAVE}, 7")
A("s_cbranch_scc1 L_gv2")
A("s_cmp_lg_u32 s2, 0")
A("s_cbranch_scc1 L_gv0")
C("workgroup 0 publishes the launch tag (4 replicas)")
srd(SRD_C, P_DBG, 256)
A("s_memrealtime s[24:25]")
A("s_waitcnt lgkmcnt(0)")
A("s_or_b32 s25, s25, 0x80000000")
A("v_mov_b32 v14, s24")
A("v_mov_b32 v15, s25")
A("v_lshlrev_b32 v12, 6, v0")
A("s_mov_b64 exec, 15")
A(f"buffer_store_dwordx2 v[14:15], v12, {SC_}, 0 offen sc1")
A("s_mov_b64 exec, -1")
L("L_gv0")
tag_poll(CFG["tsleep0"], S_A, barrier=True)
stamp(5)
A("s_branch L_qm2")
L("L_gv2")
A("s_barrier")
A("s_branch L_qm2")

C("---- GEMV loaders (waves 8,9)")
L("L_gld")
A(f"s_and_b32 s{S_T5}, s{S_WAVE}, 1")
C("WX style lane offsets: ct=l>>5, p=(l>>1)&15 (row), half")
A("v_bfe_u32 v3, v0, 1, 4")
A("v_lshrrev_b32 v12, 5, v0")
A("v_lshlrev_b32 v12, 5, v12")
A("v_lshl_add_u32 v12, v10, 4, v12")
A("s_barrier")
A(f"s_cmp_eq_u32 s{S_ROLE}, 0")
A("s_cbranch_scc1 L_exit")
A(f"s_cmp_eq_u32 s{S_ROLE}, 2")
A("s_cbranch_scc1 L_gld2")
C("wo tile: 512 rows x 128 B; loader i: rows 256i.. (32 instrs of 8 rows)")
srd(SRD_C, P_WO, 0x400000)
A("v_bfe_u32 v3, v0, 1, 3")
A("v_lshlrev_b32 v3, 10, v3")
A("v_lshl_add_u32 v3, v4, 5, v3")
A("v_lshl_add_u32 v3, v10, 4, v3")
A(f"s_lshl_b32 s{S_T3}, s{S_X}, 19")
A(f"s_lshl_b32 s{S_T1}, s{S_T5}, 18")
A(f"s_add_u32 s{S_T3}, s{S_T3}, s{S_T1}")
A(f"s_lshl_b32 s{S_T1}, s{S_SUB}, 7")
A(f"s_add_u32 s{S_T3}, s{S_T3}, s{S_T1}")
A(f"s_lshl_b32 s{S_T4}, s{S_T5}, 15")
A(f"s_add_u32 s{S_T4}, s{S_T4}, {L_WO}")
if CFG["touch2"]:
    for i in range(4):
        A(f"s_add_u32 s{S_T1}, s{S_T3}, {i*65536}")
        A(f"s_load_dword s{64+i}, s[{P_WO}:{P_WO+1}], s{S_T1}")
lds_wait(L_FLAG + 8, 16, 17, sleep=2)
A(f"s_mov_b32 s{S_T2}, 0")
L("L_gld1")
for i in range(4):
    A(f"s_mov_b32 m0, s{S_T4}")
    A(f"s_add_u32 s{S_T4}, s{S_T4}, 1024")
    A(f"buffer_load_dwordx4 v3, {SC_}, s{S_T3} offen{NT} lds")
    A(f"s_add_u32 s{S_T3}, s{S_T3}, 8192")
A(f"s_add_u32 s{S_T2}, s{S_T2}, 1")
A(f"s_cmp_lt_u32 s{S_T2}, 8")
A("s_cbranch_scc1 L_gld1")
A("s_branch L_gld5")
L("L_gld2")
A(f"s_cmp_eq_u32 s{S_T5}, 1")
A("s_cbranch_scc1 L_gld3")
srd(SRD_C, P_W1, 512 * 3584)
A(f"s_lshl_b32 s{S_T3}, s{S_SUB}, 6")
A(f"s_movk_i32 s{S_T1}, 3584")
A(f"v_mul_lo_u32 v13, v3, s{S_T1}")
A("v_add_u32 v13, v13, v12")
if CFG["touch2"]:
    for i in range(14):
        A(f"s_add_u32 s{S_T1}, s{S_T3}, {i*131072}")
        A(f"s_load_dword s{64+i}, s[{P_W1}:{P_W1+1}], s{S_T1}")
lds_wait(L_FLAG + 8, 16, 17, sleep=2)
A(f"s_mov_b32 s{S_T1}, {L_WX}")
A(f"s_mov_b32 s{S_T2}, 0")
L("L_gld4")
for i in range(4):
    A(f"s_mov_b32 m0, s{S_T1}")
    A(f"s_add_u32 s{S_T1}, s{S_T1}, 1024")
    A(f"buffer_load_dwordx4 v13, {SC_}, s{S_T3} offen{NT} lds")
    A(f"s_add_u32 s{S_T3}, s{S_T3}, {16*3584}")
if CFG["mwin"]:
    A(f"s_waitcnt vmcnt({CFG['mwin']})")
A(f"s_add_u32 s{S_T2}, s{S_T2}, 1")
A(f"s_cmp_lt_u32 s{S_T2}, 8")
A("s_cbranch_scc1 L_gld4")
A("s_branch L_gld5")
L("L_gld3")
srd(SRD_C, P_W2, 1792 * 1024)
A("v_lshl_add_u32 v14, v9, 10, v11")
A("v_xor_b32 v15, 32, v14")
A(f"s_lshl_b32 s{S_T3}, s{S_SUB}, 15")
if CFG["touch2"]:
    A(f"s_load_dword s64, s[{P_W2}:{P_W2+1}], s{S_T3}")
    A(f"s_load_dword s65, s[{P_B1}:{P_B1+1}], 0")
lds_wait(L_FLAG + 8, 16, 17, sleep=2)
A(f"s_mov_b32 s{S_T1}, {L_W2}")
A(f"s_mov_b32 s{S_T2}, 0")
L("L_gld6")
for be in range(8):
    A(f"s_mov_b32 m0, s{S_T1}")
    A(f"s_add_u32 s{S_T1}, s{S_T1}, 1024")
    A(f"s_add_u32 s{S_T4}, s{S_T3}, {be*4096}")
    A(f"buffer_load_dwordx4 v{14 + (be & 1)}, {SC_}, s{S_T4} offen{NT} lds")
    if CFG["mwin"] and be % 4 == 3:
        A(f"s_waitcnt vmcnt({CFG['mwin']})")
A(f"s_add_u32 s{S_T3}, s{S_T3}, 256")
A(f"s_add_u32 s{S_T2}, s{S_T2}, 1")
A(f"s_cmp_lt_u32 s{S_T2}, 4")
A("s_cbranch_scc1 L_gld6")
L("L_gld5")
A("s_waitcnt vmcnt(0)")
stamp(4)
A("s_barrier")
A("s_branch L_exit")

begin("qc")
C("---- q projection: wave 6 loads and computes everything")
post_entry()
srd(SRD_A, P_X, 2048)
A(f"buffer_load_dwordx4 v[16:19], v2, {SA}, 0 offen")
A(f"buffer_load_dwordx4 v[20:23], v2, {SA}, 0 offen offset:1024")
if CFG["touch"]:
    A(f"s_lshl_b32 s{S_T1}, s{S_X}, 4")
    A(f"s_add_u32 s{S_T1}, s{S_T1}, s{S_A}")
    A(f"s_lshl_b32 s{S_T1}, s{S_T1}, 9")
    A(f"s_add_u32 s{S_T1}, s{S_T1}, {WS_XQA}")
    A("s_mov_b32 exec_hi, 0")
    A(f"buffer_load_dwordx4 v[72:75], v2, {WS}, s{S_T1} offen sc1")
    A("s_mov_b32 exec_hi, -1")
srd(SRD_B, P_WQ, 0x400000)
A("v_bfe_u32 v13, v0, 1, 3")
A("v_lshlrev_b32 v13, 13, v13")
A("v_lshl_add_u32 v13, v4, 5, v13")
A("v_lshl_add_u32 v13, v10, 4, v13")
A(f"s_and_b32 s{S_B}, s{S_A}, 1")
A(f"s_lshl_b32 s{S_T0}, s{S_B}, 21")
A(f"s_lshl_b32 s{S_T1}, s{S_X}, 10")
A(f"s_add_u32 s{S_T0}, s{S_T0}, s{S_T1}")
A(f"s_lshr_b32 s{S_T1}, s{S_A}, 1")
A(f"s_lshl_b32 s{S_T1}, s{S_T1}, 7")
A(f"s_add_u32 s{S_T0}, s{S_T0}, s{S_T1}")
A(f"s_mov_b32 s{S_T1}, {L_WQ}")
L("L_qc1")
for i in range(4):
    A(f"s_mov_b32 m0, s{S_T1}")
    A(f"s_add_u32 s{S_T1}, s{S_T1}, 1024")
    A(f"buffer_load_dwordx4 v13, {SB}, s{S_T0} offen{NT} lds")
    A(f"s_add_u32 s{S_T0}, s{S_T0}, 0x10000")
A(f"s_cmp_lt_u32 s{S_T1}, {L_WQ + 32768}")
A("s_cbranch_scc1 L_qc1")
gv_common()
A("v_lshrrev_b32 v12, 2, v0")
A("v_lshlrev_b32 v12, 6, v12")
A("v_lshl_add_u32 v12, v10, 5, v12")
A("v_bfe_u32 v13, v0, 1, 1")
A("v_lshl_add_u32 v12, v13, 3, v12")
A("v_lshlrev_b32 v13, 10, v10")
A("v_lshl_add_u32 v13, v4, 4, v13")
A(f"s_lshl_b32 s{S_T1}, s{S_B}, 9")
A(f"v_add_u32 v13, s{S_T1}, v13")
A("v_lshrrev_b32 v14, 5, v0")
A("v_lshlrev_b32 v14, 10, v14")
A("v_and_b32 v15, 31, v0")
A("v_lshl_add_u32 v14, v15, 3, v14")
C("exchange lane map: n=l&15<8: b=n&1, half2=(n>>1)&1, cs=(n>>2)&1 ; XQ off = cs*256 + b*128 + g*32 + half2*16")
A("v_bfe_u32 v70, v0, 2, 1")
A("v_lshlrev_b32 v69, 6, v70")
A("v_lshl_add_u32 v69, v4, 4, v69")
A("v_lshl_add_u32 v69, v10, 11, v69")
A("v_lshlrev_b32 v70, 8, v70")
A("v_lshl_add_u32 v70, v10, 7, v70")
A("v_lshl_add_u32 v70, v4, 5, v70")
A("v_bfe_u32 v15, v0, 1, 1")
A("v_lshl_add_u32 v70, v15, 4, v70")
A(f"s_lshl_b32 s{S_T5}, s{S_X}, 12")
A(f"s_lshl_b32 s{S_T1}, s{S_A}, 7")
A(f"s_add_u32 s{S_T5}, s{S_T5}, s{S_T1}")
A(f"s_lshl_b32 s{S_T1}, s{S_X}, 4")
A(f"s_add_u32 s{S_T1}, s{S_T1}, s{S_A}")
A(f"s_lshl_b32 s62, s{S_T1}, 9")
A(f"s_xor_b32 s63, s62, 512")
A(f"s_add_u32 s64, s62, {WS_XQB}")
A(f"s_add_u32 s62, s62, {WS_XQA}")
A(f"s_add_u32 s65, s63, {WS_XQB}")
A(f"s_add_u32 s63, s63, {WS_XQA}")
A("s_mov_b32 s66, 0xcccccccc")
A("s_mov_b32 s67, 0xcccccccc")
A("s_mov_b32 s68, 0xf0f0f0f0")
A("s_mov_b32 s69, 0xf0f0f0f0")
A(f"s_waitcnt vmcnt({32 + CFG['touch']})")
unpack(24, 16, 4)
unpack(32, 20, 4)
layernorm([24, 32], 2, 44, [16, 20])
A(f"ds_write_b64 v12, v[16:17] offset:{L_XN}")
A(f"ds_write_b64 v12, v[18:19] offset:{L_XN + 16}")
A(f"ds_write_b64 v12, v[20:21] offset:{L_XN + 1024}")
A(f"ds_write_b64 v12, v[22:23] offset:{L_XN + 1024 + 16}")
A("s_waitcnt lgkmcnt(0)")
XA = 96
for kp in range(8):
    A(f"ds_read_b128 v[{XA+4*kp}:{XA+4*kp+3}], v13 offset:{L_XN + kp*64}")
stamp(1)
A("s_barrier")
lds_wait(L_FLAG, 16, 17)
A("v_mov_b32 v16, 0")
A(f"ds_read_b64 v[58:59], v16 offset:{L_TAG}")
A(f"ds_read_b64 v[62:63], v16 offset:{L_TAG}")
WF = 24
QD = 144
for kp in range(8):
    A(f"s_waitcnt vmcnt({28 - 4*kp})")
    if kp == 7:
        stamp(2)
    for ct in range(4):
        for h in range(2):
            r = WF + ((kp & 1) * 4 + ct) * 4 + 2 * h
            A(f"ds_read_b64_tr_b16 v[{r}:{r+1}], v14 offset:{L_WQ + kp*4096 + h*2048 + ct*256}")
    for ct in range(4):
        A(f"s_waitcnt lgkmcnt({6 - 2*ct})")
        mfma(QD + 4 * ct, WF + ((kp & 1) * 4 + ct) * 4, XA + 4 * kp, None if kp == 0 else QD + 4 * ct)
C("select: lo half cts (0,1) -> v[24:25], hi half cts (2,3) -> v[26:27]")
nop(5)
for hf in range(2):
    a, b = QD + 8 * hf, QD + 8 * hf + 4
    for j in range(2):
        A(f"v_cndmask_b32 v{28+j}, v{a+j}, v{a+2+j}, s[66:67]")
        A(f"v_cndmask_b32 v{30+j}, v{b+j}, v{b+2+j}, s[66:67]")
    for j in range(2):
        A(f"v_cndmask_b32 v{24+2*hf+j}, v{28+j}, v{30+j}, s[68:69]")
A(f"s_cmp_eq_u32 s{S_B}, 0")
A(f"s_cselect_b64 vcc, -1, 0")
set_exec(0x00ff00ff00ff00ff)
A("v_cndmask_b32 v56, v24, v26, vcc")
A("v_cndmask_b32 v57, v25, v27, vcc")
A("v_cndmask_b32 v60, v26, v24, vcc")
A("v_cndmask_b32 v61, v27, v25, vcc")
A(f"buffer_store_dwordx4 v[56:59], v70, {WS}, s{63 if CFG['dual'] else 65} offen{'' if CFG['dual'] else ' sc1'}")
stamp(6)
lx, lxe, lxs = newlbl("Lx"), newlbl("Lxe"), newlbl("Lxs")
A(f"s_mov_b32 s{S_TO}, {CFG['timeout']}")
L(lx)
if CFG["dual"]:
    A(f"s_cmp_lg_u32 s{S_TO}, {CFG['timeout'] - 4}")
    A(f"s_cbranch_scc1 {lxs}")
    C("partner not seen through L2 yet: also send the coherent copy")
    A(f"buffer_store_dwordx4 v[56:59], v70, {WS}, s65 offen sc1")
    L(lxs)
A(f"s_and_b32 s{S_T0}, s{S_TO}, 7")
A(f"s_cmp_eq_u32 s{S_T0}, 1")
A(f"s_cselect_b32 s{S_T1}, s64, s{62 if CFG['dual'] else 64}")
A(f"buffer_load_dwordx4 v[24:27], v70, {WS}, s{S_T1} offen sc1")
A(f"s_sub_u32 s{S_TO}, s{S_TO}, 1")
A(f"s_cbranch_scc1 {lxe}")
A("s_waitcnt vmcnt(0)")
A("v_cmp_ne_u64 vcc, v[26:27], v[58:59]")
A("s_cmp_lg_u64 vcc, 0")
A(f"s_cbranch_scc1 {lx}")
L(lxe)
A("s_waitcnt vmcnt(0)")
A("v_pk_add_f32 v[60:61], v[60:61], v[24:25]")
A("v_cvt_pk_bf16_f32 v60, v60, v61")
nop(2)
A("v_mov_b32_dpp v61, v60 quad_perm:[2,3,0,1] row_mask:0xf bank_mask:0xf")
set_exec(0x0033003300330033)
A(f"buffer_store_dwordx4 v[60:63], v69, {WS}, s{S_T5} offen sc1")
if CFG["dual"]:
    C("always leave a coherent copy for the partner")
    set_exec(0x00ff00ff00ff00ff)
    A(f"buffer_store_dwordx4 v[56:59], v70, {WS}, s65 offen sc1")
A("s_mov_b64 exec, -1")
lds_set(L_FLAG + 8, 16, 17)
stamp(3)
A("s_branch L_qm2")
begin("qm2")
L("L_qm2")
A(f"s_cmp_eq_u32 s{S_ROLE}, 0")
A("s_cbranch_scc1 L_exit")
lds_wait(L_FLAG, 16, 17)
A(f"v_mov_b32 v{V_T}, 0")
A(f"ds_read_b64 v[{TT+2}:{TT+3}], v{V_T} offset:{L_TAG}")
A(f"ds_read_b128 v[{V_TG}:{V_TG+3}], v{V_T} offset:{L_TAG + 16}")
A(f"s_cmp_eq_u32 s{S_ROLE}, 2")
A("s_cbranch_scc1 L_F")

C("==== E: wo projection, 8 waves: head=w&3, col half=w>>2; wave gathers records 2w,2w+1")
V_WX = 16
A(f"s_lshl_b32 s{S_T1}, s{S_X}, 4")
A(f"s_lshl_b32 s{S_T2}, s{S_WAVE}, 1")
A(f"s_add_u32 s{S_T1}, s{S_T1}, s{S_T2}")
A(f"s_mul_i32 s{S_T1}, s{S_T1}, {RECP}")
A(f"s_add_u32 s{S_PNA}, s{S_T1}, {WS_PNA if CFG['dual'] else WS_PNB}")
A(f"s_add_u32 s{S_PNB}, s{S_T1}, {WS_PNB}")
EA0, EA1, EA2, EA3, EA4, EA5 = V_T + 36, V_T + 37, V_T + 38, V_T + 39, V_T + 2, V_T + 3
C("stats gather addr: lane<8: (l>>2)*RECP + (l&3)*16 (+1024)")
A(f"v_lshrrev_b32 v{EA0}, 2, v0")
A(f"s_movk_i32 s{S_T2}, {RECP}")
A(f"v_mul_lo_u32 v{EA0}, v{EA0}, s{S_T2}")
A(f"v_and_b32 v{EA1}, 3, v0")
A(f"v_lshl_add_u32 v{EA0}, v{EA1}, 4, v{EA0}")
A(f"s_mul_i32 s{S_T2}, s{S_WAVE}, {2*PNP}")
A(f"s_add_u32 s{S_T2}, s{S_T2}, {L_PS}")
A(f"v_add_u32 v{EA1}, s{S_T2}, v2")
A(f"s_lshl_b32 s{S_T2}, s{S_WAVE}, 7")
A(f"v_add_u32 v{EA2}, s{S_T2}, v2")
A(f"s_and_b32 s{S_T4}, s{S_WAVE}, 3")
A(f"s_lshr_b32 s{S_T5}, s{S_WAVE}, 2")
A(f"s_movk_i32 s{S_T2}, {PNP}")
A(f"v_mul_lo_u32 v{EA3}, v6, s{S_T2}")
A(f"v_lshl_add_u32 v{EA3}, v4, 4, v{EA3}")
A(f"s_lshl_b32 s{S_T2}, s{S_T4}, 6")
A(f"s_add_u32 s{S_T2}, s{S_T2}, {L_PS}")
A(f"v_add_u32 v{EA3}, s{S_T2}, v{EA3}")
A(f"v_lshlrev_b32 v{EA4}, 6, v6")
A(f"s_lshl_b32 s{S_T2}, s{S_T4}, 4")
A(f"v_add_u32 v{EA4}, s{S_T2}, v{EA4}")
A(f"s_lshl_b32 s{S_T2}, s{S_T4}, 9")
A(f"s_lshl_b32 s{S_T3}, s{S_T5}, 8")
A(f"s_add_u32 s{S_T2}, s{S_T2}, s{S_T3}")
A(f"v_lshl_add_u32 v{EA5}, v0, 2, s{S_T2}")
C("weights tr-read addr: WO + hd*16384 + ch*512 + (l>>5)*1024 + (l&31)*8")
A(f"v_lshrrev_b32 v{TT}, 5, v0")
A(f"v_lshlrev_b32 v{TT}, 10, v{TT}")
A(f"v_and_b32 v{TT+1}, 31, v0")
A(f"v_lshl_add_u32 v{TT}, v{TT+1}, 3, v{TT}")
A(f"s_lshl_b32 s{S_T2}, s{S_T4}, 14")
A(f"s_lshl_b32 s{S_T3}, s{S_T5}, 9")
A(f"s_add_u32 s{S_T2}, s{S_T2}, s{S_T3}")
A(f"s_add_u32 s{S_T2}, s{S_T2}, {L_WO}")
A(f"v_add_u32 v{TT}, s{S_T2}, v{TT}")
A(f"v_mul_u32_u24 v{V_T+32}, 80, v4")
C("final-stage addresses (wave 0, lanes<32): RED read / AP write")
A(f"v_bfe_u32 v{V_T+33}, v0, 3, 1")
A(f"v_lshlrev_b32 v{V_T+33}, 8, v{V_T+33}")
A(f"v_lshl_add_u32 v{V_T+33}, v4, 7, v{V_T+33}")
A(f"v_and_b32 v{V_T+34}, 7, v0")
A(f"v_lshl_add_u32 v{V_T+33}, v{V_T+34}, 4, v{V_T+33}")
A(f"v_lshlrev_b32 v{V_T+34}, 11, v4")
A(f"v_lshl_add_u32 v{V_T+34}, v6, 4, v{V_T+34}")
A(f"s_lshl_b32 s{S_NT}, s{S_X}, 12")
A(f"s_lshl_b32 s{S_T1}, s{S_SUB}, 8")
A(f"s_add_u32 s{S_NT}, s{S_NT}, s{S_T1}")
A(f"s_add_u32 s{S_NT}, s{S_NT}, {WS_AP}")
A("s_waitcnt vmcnt(0) lgkmcnt(0)")
A("s_barrier")
stamp(4)
for kp in range(4):
    for c in range(2):
        for h in range(2):
            r = V_WX + (kp * 2 + c) * 4 + 2 * h
            A(f"ds_read_b64_tr_b16 v[{r}:{r+1}], v{TT} offset:{kp*4096 + h*2048 + c*256}")
SG = V_G + 8
le, lee = newlbl("Le"), newlbl("Lee")
A(f"s_mov_b32 s{S_TO}, {CFG['timeout']}")
L(le)
A(f"s_and_b32 s{S_T0}, s{S_TO}, {CFG['bmask']}")
A(f"s_cmp_eq_u32 s{S_T0}, 1")
A(f"s_cselect_b32 s{S_T1}, s{S_PNB}, s{S_PNA}")
A(f"v_mov_b32 v{SG+2}, v{TT+2}")
A(f"v_mov_b32 v{SG+3}, v{TT+3}")
A("s_mov_b64 exec, 0xff")
A(f"buffer_load_dwordx4 v[{SG}:{SG+3}], v{EA0}, {WS}, s{S_T1} offen offset:1024 sc1")
A("s_mov_b64 exec, -1")
for i in range(2):
    r = V_G + i * 4
    A(f"buffer_load_dwordx4 v[{r}:{r+3}], v2, {WS}, s{S_T1} offen offset:{i*RECP} sc1")
A(f"s_sub_u32 s{S_TO}, s{S_TO}, 1")
A(f"s_cbranch_scc1 {lee}")
A("s_waitcnt vmcnt(0)")
tree3("v_max3_u32", "v_max_u32", range(V_G, V_G + 8), TT)
A(f"v_cmp_eq_u32 vcc, -1, v{TT}")
A(f"v_cmp_ne_u64 s[{S_T2}:{S_T3}], v[{SG+2}:{SG+3}], v[{TT+2}:{TT+3}]")
A(f"s_or_b64 vcc, vcc, s[{S_T2}:{S_T3}]")
A(f"s_cbranch_scc1 {le}")
L(lee)
A("s_waitcnt vmcnt(0)")
stamp(7)
for i in range(2):
    r = V_G + i * 4
    A(f"ds_write_b128 v{EA1}, v[{r}:{r+3}] offset:{i*PNP}")
A("s_mov_b64 exec, 0xff")
A(f"ds_write_b128 v{EA2}, v[{SG}:{SG+3}] offset:{L_STS}")
A("s_mov_b64 exec, -1")
A("s_waitcnt lgkmcnt(0)")
A("s_barrier")
SM0 = V_T + 4
MG = V_T + 8
FW = V_T + 24
A(f"ds_read_b64 v[{SM0}:{SM0+1}], v{EA4} offset:{L_STS}")
for kp in range(4):
    r = V_G + kp * 4
    A(f"ds_read_b128 v[{r}:{r+3}], v{EA3} offset:{kp*256}")
EA = V_S
A("s_waitcnt lgkmcnt(4)")
A(f"v_mov_b32 v{MG}, v{SM0}")
R8 = ROW_ALL[:3]
fill = []
for c in R8:
    fill.append(["s_nop 0", f"v_max_f32_dpp v{MG}, v{MG}, v{MG} {c} row_mask:0xf bank_mask:0xf"])
fill.append([f"v_sub_f32 v{SM0}, v{SM0}, v{MG}", f"v_exp_f32 v{SM0}, v{SM0}", "s_nop 0", f"v_mul_f32 v{MG}, v{SM0}, v{SM0+1}"])
for c in R8:
    fill.append(["s_nop 0", f"v_add_f32_dpp v{MG}, v{MG}, v{MG} {c} row_mask:0xf bank_mask:0xf"])
fill.append([f"v_rcp_f32 v{MG}, v{MG}", "s_nop 0", f"v_mul_f32 v{SM0}, v{SM0}, v{MG}"])
fi = 0
for kp in range(4):
    A(f"s_waitcnt lgkmcnt({3-kp})")
    for c in range(2):
        d = EA + c * 4
        mfma(d, V_G + kp * 4, V_WX + (kp * 2 + c) * 4, None if kp == 0 else d)
        for ins in fill[fi]:
            A(ins)
        fi += 1
assert fi == len(fill)
for r in range(4):
    A(f"ds_bpermute_b32 v{FW+r}, v{V_T+32}, v{SM0} offset:{4*r}")
A("s_waitcnt lgkmcnt(0)")
for c in range(2):
    d = EA + 4 * c
    A(f"v_mul_f32 v{d}, v{d}, v{FW}")
    A(f"v_mul_f32 v{d+2}, v{d+2}, v{FW+2}")
    A(f"v_fmac_f32 v{d}, v{d+1}, v{FW+1}")
    A(f"v_fmac_f32 v{d+2}, v{d+3}, v{FW+3}")
for c in range(2):
    d = EA + 4 * c
    A(f"v_add_f32 v{d}, v{d}, v{d+2}")
nop(2)
A(f"v_permlane16_swap_b32 v{EA}, v{EA+4}")
A(f"v_add_f32 v{EA}, v{EA}, v{EA+4}")
A(f"ds_write_b32 v{EA5}, v{EA} offset:{L_RED}")
A("s_waitcnt lgkmcnt(0)")
A("s_barrier")
A(f"s_cmp_lg_u32 s{S_WAVE}, 0")
A("s_cbranch_scc1 L_exit")
A("s_mov_b32 exec_hi, 0")
for i in range(4):
    A(f"ds_read_b128 v[{V_G+4*i}:{V_G+4*i+3}], v{V_T+33} offset:{L_RED + i*512}")
A("s_waitcnt lgkmcnt(0)")
for j in (0, 2):
    A(f"v_pk_add_f32 v[{V_G+j}:{V_G+j+1}], v[{V_G+j}:{V_G+j+1}], v[{V_G+4+j}:{V_G+5+j}]")
    A(f"v_pk_add_f32 v[{V_G+8+j}:{V_G+9+j}], v[{V_G+8+j}:{V_G+9+j}], v[{V_G+12+j}:{V_G+13+j}]")
for j in (0, 2):
    A(f"v_pk_add_f32 v[{V_G+j}:{V_G+j+1}], v[{V_G+j}:{V_G+j+1}], v[{V_G+8+j}:{V_G+9+j}]")
tag(V_G, V_TG)
A(f"buffer_store_dwordx4 v[{V_G}:{V_G+3}], v{V_T+34}, {WS}, s{S_NT} offen sc1")
stamp(8)
A("s_branch L_exit")

L("L_F")
C("==== F: MLP. 8 waves gather (b=w>>2, 128-col quarter q=w&3); waves 0..3 also do w1/gelu/w2")
V_W2 = 128
FG = 48
HX = 64
lds_wait(L_FLAG + 8, 16, 17, sleep=4)
C("x[b][128q + 4(l&31)..] ; b1[mi*32 + (l&31)]")
srd(SRD_A, P_X, 2048)
A("v_and_b32 v12, 31, v0")
A("v_lshlrev_b32 v13, 3, v12")
A(f"s_lshl_b32 s{S_T0}, s{S_WAVE}, 8")
A(f"buffer_load_dwordx2 v[{V_SM}:{V_SM+1}], v13, {SA}, s{S_T0} offen")
srd(SRD_C, P_B1, 3584)
A("v_lshlrev_b32 v13, 1, v12")
A(f"s_lshl_b32 s{S_T0}, s{S_SUB}, 6")
A(f"buffer_load_ushort v{V_SM+2}, v13, {SC_}, s{S_T0} offen")
C("gather addr: (l>>5)*4096 + (l&31)*16 ; soffset = AP + w*512 + i*8192")
GAD, HA, STW, STR = V_T, V_T + 1, V_T + 2, V_T + 3
A(f"v_lshrrev_b32 v{GAD}, 5, v0")
A(f"v_lshlrev_b32 v{GAD}, 12, v{GAD}")
A(f"v_lshl_add_u32 v{GAD}, v12, 4, v{GAD}")
A(f"s_lshl_b32 s{S_T0}, s{S_WAVE}, 9")
A(f"s_add_u32 s{S_T0}, s{S_T0}, {WS_AP}")
SX = 62
for i in range(4):
    A(f"s_add_u32 s{SX+i}, s{S_T0}, {i*8192}")
C("hn write addr (cols 4j.., j=l&31): w*256 + (j>>3)*64 + (j&3)*16 + ((j>>2)&1)*8")
A(f"v_lshrrev_b32 v{HA}, 3, v12")
A(f"v_lshlrev_b32 v{HA}, 6, v{HA}")
A("v_and_b32 v13, 3, v0")
A(f"v_lshl_add_u32 v{HA}, v13, 4, v{HA}")
A("v_bfe_u32 v13, v0, 2, 1")
A(f"v_lshl_add_u32 v{HA}, v13, 3, v{HA}")
A(f"s_lshl_b32 s{S_T0}, s{S_WAVE}, 8")
A(f"v_add_u32 v{HA}, s{S_T0}, v{HA}")
C("LN stats exchange: STS + w*8 ; read STS + b*32 (sentinel initialised)")
A(f"s_lshl_b32 s{S_T0}, s{S_WAVE}, 3")
A(f"v_mov_b32 v{STW}, s{S_T0}")
A(f"s_lshr_b32 s{S_T0}, s{S_WAVE}, 2")
A(f"s_lshl_b32 s{S_T0}, s{S_T0}, 5")
A(f"v_mov_b32 v{STR}, s{S_T0}")
A("v_mov_b32 v14, -1")
A("v_mov_b32 v15, -1")
A(f"ds_write_b64 v{STW}, v[14:15] offset:{L_STS}")
C("compute-wave addresses")
vw2_addr()
A(f"s_lshl_b32 s{S_T0}, s{S_WAVE}, 13")
A(f"s_add_u32 s{S_T1}, s{S_T0}, {L_W2}")
A(f"v_add_u32 v{VB0}, s{S_T1}, v{VA0}")
A(f"v_add_u32 v{VB1}, s{S_T1}, v{VA1}")
A(f"s_add_u32 s{S_T1}, s{S_T0}, {L_WX}")
A(f"v_lshl_add_u32 v{TT}, v0, 3, s{S_T1}")
A0, A1, A2, YAD = V_T + 36, V_T + 37, V_T + 38, V_T + 39
A(f"v_lshlrev_b32 v{A0}, 10, v10")
A(f"v_lshl_add_u32 v{A0}, v4, 4, v{A0}")
A(f"s_lshl_b32 s{S_T0}, s{S_WAVE}, 8")
A(f"v_add_u32 v{A0}, s{S_T0}, v{A0}")
A(f"v_lshlrev_b32 v{A1}, 7, v6")
A(f"v_lshl_add_u32 v{A1}, v4, 4, v{A1}")
A(f"v_add_u32 v{A1}, s{S_T0}, v{A1}")
C("h1 write addr: lane (b=l>>5, c=l&31): H1 + w*128 + b*64 + ((c>>2)&3)*16 + (c>>4)*8 + (c&3)*2")
A(f"v_lshrrev_b32 v{A2}, 5, v0")
A(f"v_lshlrev_b32 v{A2}, 6, v{A2}")
A("v_bfe_u32 v13, v0, 2, 2")
A(f"v_lshl_add_u32 v{A2}, v13, 4, v{A2}")
A("v_bfe_u32 v13, v0, 4, 1")
A(f"v_lshl_add_u32 v{A2}, v13, 3, v{A2}")
A("v_and_b32 v13, 3, v0")
A(f"v_lshl_add_u32 v{A2}, v13, 1, v{A2}")
A(f"s_lshl_b32 s{S_T1}, s{S_WAVE}, 7")
A(f"s_add_u32 s{S_T1}, s{S_T1}, {L_H1}")
A(f"v_add_u32 v{A2}, s{S_T1}, v{A2}")
C("B_ct operand addresses: (n>>1)==ct ? H1 + w*128 + (n&1)*64 + g*16 : ZERO")
BA = V_T + 24
A("v_lshlrev_b32 v13, 6, v10")
A("v_lshl_add_u32 v13, v4, 4, v13")
A(f"v_add_u32 v13, s{S_T1}, v13")
A(f"v_mov_b32 v14, {L_ZERO}")
A("v_bfe_u32 v15, v0, 1, 3")
for ct in range(8):
    A(f"v_cmp_eq_u32 vcc, {ct}, v15")
    A("s_nop 1")
    A(f"v_cndmask_b32 v{BA+ct}, v14, v13, vcc")
for j in range(4):
    A(f"v_mov_b32 v{16+j}, 0")
A(f"ds_write_b128 v14, v[16:19]")
C("Y store addr: (n&1)*2048 + (n>>1)*64 + g*16 ; soff = Y + mi*YP + w*512")
A(f"v_lshlrev_b32 v{YAD}, 11, v10")
A(f"v_lshl_add_u32 v{YAD}, v15, 6, v{YAD}")
A(f"v_lshl_add_u32 v{YAD}, v4, 4, v{YAD}")
S_Y = 70
A(f"s_mul_i32 s{S_Y}, s{S_SUB}, {YP}")
A(f"s_lshl_b32 s{S_T1}, s{S_WAVE}, 9")
A(f"s_add_u32 s{S_Y}, s{S_Y}, s{S_T1}")
A(f"s_add_u32 s{S_Y}, s{S_Y}, {WS_Y}")
A("v_lshlrev_b32 v3, 2, v0")
A("s_waitcnt vmcnt(0) lgkmcnt(0)")
unpack(HX, V_SM, 2)
A(f"v_lshlrev_b32 v{V_SM+2}, 16, v{V_SM+2}")
A("s_barrier")
stamp(4)
A(f"s_cmp_ge_u32 s{S_WAVE}, 4")
A("s_cbranch_scc1 L_F1")
for kp in range(4):
    for ct in range(2):
        for h in range(2):
            r = V_WX + (kp * 2 + ct) * 4 + 2 * h
            A(f"ds_read_b64_tr_b16 v[{r}:{r+1}], v{TT} offset:{kp*2048 + h*1024 + ct*512}")
A("s_waitcnt lgkmcnt(0)")
for ct in range(8):
    for h in range(2):
        r = V_W2 + ct * 4 + 2 * h
        A(f"ds_read_b64_tr_b16 v[{r}:{r+1}], v{VB0 + (ct & 1)} offset:{(ct >> 1)*256 + h*4096}")
L("L_F1")


def f_loads():
    for i in range(4):
        r = FG + i * 4
        A(f"buffer_load_dwordx4 v[{r}:{r+3}], v{GAD}, {WS}, s{SX+i} offen sc1")


tpoll(f_loads, range(FG, FG + 16), TT, V_TG, CFG['fsl'])
stamp(7)
for j in (0, 2):
    A(f"v_pk_add_f32 v[{FG+j}:{FG+j+1}], v[{FG+j}:{FG+j+1}], v[{FG+4+j}:{FG+5+j}]")
    A(f"v_pk_add_f32 v[{FG+8+j}:{FG+9+j}], v[{FG+8+j}:{FG+9+j}], v[{FG+12+j}:{FG+13+j}]")
for j in (0, 2):
    A(f"v_pk_add_f32 v[{FG+j}:{FG+j+1}], v[{FG+j}:{FG+j+1}], v[{FG+8+j}:{FG+9+j}]")
swap_steps("v_add_f32", [FG + j for j in range(4)], [FG + 4 + j for j in range(4)], which=(32,))
HP = FG + 8
pack(HP, FG, 2)
unpack(FG, HP, 2)
for j in range(4):
    A(f"v_add_f32 v{HX+j}, v{HX+j}, v{FG+j}")
pack(HP, HX, 2)
unpack(HX, HP, 2)
C("local stats around pivot c = h[first]")
A("s_nop 0")
A(f"v_readfirstlane_b32 s{S_T2}, v{HX}")
A("s_nop 1")
for j in range(4):
    A(f"v_subrev_f32 v{FG+j}, s{S_T2}, v{HX+j}")
SS, SQ = FG + 10, FG + 11
A(f"v_add_f32 v{SS}, v{FG}, v{FG+1}")
A(f"v_mul_f32 v{SQ}, v{FG}, v{FG}")
A(f"v_add_f32 v{FG+4}, v{FG+2}, v{FG+3}")
A(f"v_fmac_f32 v{SQ}, v{FG+1}, v{FG+1}")
A(f"v_add_f32 v{SS}, v{SS}, v{FG+4}")
A(f"v_fmac_f32 v{SQ}, v{FG+2}, v{FG+2}")
A(f"v_fmac_f32 v{SQ}, v{FG+3}, v{FG+3}")
nop(1)
dpp_steps("v_add_f32", [SS, SQ], ROW_ALL)
swap_steps("v_add_f32", [SS, SQ], [FG + 4, FG + 5], which=(16,))
C("mean_w = c + s/128 ; M2_w = ss - s*s/128")
A(f"v_mul_f32 v{FG+4}, {f2u(1.0/128):#x}, v{SS}")
A(f"v_fma_f32 v{SQ}, -v{FG+4}, v{SS}, v{SQ}")
A(f"v_add_f32 v{SS}, s{S_T2}, v{FG+4}")
A("s_mov_b64 exec, 1")
A(f"ds_write_b64 v{STW}, v[{SS}:{SQ}] offset:{L_STS}")
A("s_mov_b64 exec, -1")
l3, l3e = newlbl("Lst"), newlbl("Lste")
A(f"s_mov_b32 s{S_TO}, {CFG['timeout']}")
L(l3)
A(f"ds_read_b128 v[{FG}:{FG+3}], v{STR} offset:{L_STS}")
A(f"ds_read_b128 v[{FG+4}:{FG+7}], v{STR} offset:{L_STS + 16}")
A(f"s_sub_u32 s{S_TO}, s{S_TO}, 1")
A(f"s_cbranch_scc1 {l3e}")
A("s_waitcnt lgkmcnt(0)")
tree3("v_max3_u32", "v_max_u32", range(FG, FG + 8), TT)
A(f"v_cmp_eq_u32 vcc, -1, v{TT}")
A("s_cmp_lg_u64 vcc, 0")
A(f"s_cbranch_scc1 {l3}")
L(l3e)
A("s_waitcnt lgkmcnt(0)")
MEAN, VAR, TM = FG + 8, FG + 9, FG + 10
A(f"v_add_f32 v{MEAN}, v{FG}, v{FG+2}")
A(f"v_add_f32 v{TM}, v{FG+4}, v{FG+6}")
A(f"v_add_f32 v{VAR}, v{FG+1}, v{FG+3}")
A(f"v_add_f32 v{MEAN}, v{MEAN}, v{TM}")
A(f"v_add_f32 v{TM}, v{FG+5}, v{FG+7}")
A(f"v_mul_f32 v{MEAN}, 0.25, v{MEAN}" if False else f"v_mul_f32 v{MEAN}, {f2u(0.25):#x}, v{MEAN}")
A(f"v_add_f32 v{VAR}, v{VAR}, v{TM}")
for j in range(4):
    A(f"v_sub_f32 v{FG+2*j}, v{FG+2*j}, v{MEAN}")
A(f"v_mul_f32 v{TM}, v{FG}, v{FG}")
for j in range(1, 4):
    A(f"v_fmac_f32 v{TM}, v{FG+2*j}, v{FG+2*j}")
A(f"v_mul_f32 v{VAR}, {f2u(1.0/512):#x}, v{VAR}")
A(f"v_fmac_f32 v{VAR}, {f2u(0.25):#x}, v{TM}")
bf16r(MEAN, MEAN)
bf16r(VAR, VAR)
for j in range(4):
    A(f"v_sub_f32 v{FG+j}, v{HX+j}, v{MEAN}")
A(f"v_add_f32 v{VAR}, {f2u(1e-5):#x}, v{VAR}")
pack(HP + 4, FG, 2)
bf16r(VAR, VAR)
unpack(FG, HP + 4, 2)
A(f"v_sqrt_f32 v{VAR}, v{VAR}")
nop(1)
bf16r(VAR, VAR)
A(f"v_rcp_f32 v{VAR}, v{VAR}")
nop(1)
for j in range(4):
    A(f"v_mul_f32 v{FG+j}, v{FG+j}, v{VAR}")
pack(HP + 4, FG, 2)
A("s_mov_b32 exec_hi, 0")
A(f"ds_write_b64 v{HA}, v[{HP+4}:{HP+5}] offset:{L_HN}")
A("s_mov_b32 exec_hi, -1")
c0 = math.sqrt(2.0 / math.pi)
k0 = -2.0 * c0 * LOG2E
k1 = k0 * 0.044715
A(f"s_mov_b32 s{S_T1}, {f2u(k1):#x}")
A(f"v_mov_b32 v{TT}, {f2u(k0):#x}")
A("s_waitcnt lgkmcnt(0)")
A("s_barrier")
stamp(8)
A(f"s_cmp_ge_u32 s{S_WAVE}, 4")
A("s_cbranch_scc1 L_exit")
for kp in range(4):
    A(f"ds_read_b128 v[{V_Q+4*kp}:{V_Q+4*kp+3}], v{A0} offset:{L_HN + kp*64}")
for kp in range(4):
    A(f"s_waitcnt lgkmcnt({3-kp})")
    for ct in range(2):
        mfma(V_S + 4 * ct, V_WX + (kp * 2 + ct) * 4, V_Q + 4 * kp, None if kp == 0 else V_S + 4 * ct)
nop(6)
set_exec(MASK_N2)
A(f"ds_write_b128 v{A1}, v[{V_S}:{V_S+3}] offset:{L_RED}")
A(f"ds_write_b128 v{A1}, v[{V_S+4}:{V_S+7}] offset:{L_RED + 64}")
A("s_mov_b64 exec, -1")
A("s_waitcnt lgkmcnt(0)")
A("s_barrier")
U = 16
for wp in range(4):
    A(f"ds_read_b32 v{U+wp}, v3 offset:{L_RED + wp*256}")
A("s_waitcnt lgkmcnt(0)")
A(f"v_add_f32 v{U}, v{U}, v{U+1}")
A(f"v_add_f32 v{U+2}, v{U+2}, v{U+3}")
A(f"v_add_f32 v{U}, v{U}, v{U+2}")
bf16r(U, U)
A(f"v_add_f32 v{U}, v{U}, v{V_SM+2}")
bf16r(U, U)
A(f"v_mul_f32 v{U+1}, v{U}, v{U}")
A(f"v_fma_f32 v{U+1}, v{U+1}, s{S_T1}, v{TT}")
A(f"v_mul_f32 v{U+1}, v{U+1}, v{U}")
A(f"v_exp_f32 v{U+1}, v{U+1}")
nop(1)
A(f"v_add_f32 v{U+1}, 1.0, v{U+1}")
A(f"v_rcp_f32 v{U+1}, v{U+1}")
nop(1)
A(f"v_mul_f32 v{U}, v{U}, v{U+1}")
A(f"v_cvt_pk_bf16_f32 v{U}, v{U}, v{U}")
A(f"ds_write_b16 v{A2}, v{U}")
BO = 32
for ct in range(8):
    A(f"ds_read_b128 v[{BO+4*ct}:{BO+4*ct+3}], v{BA+ct}")
YA = 24
for ct in range(8):
    A(f"s_waitcnt lgkmcnt({7-ct})")
    mfma(YA, V_W2 + 4 * ct, BO + 4 * ct, None if ct == 0 else YA)
nop(8)
tag(YA, V_TG)
A(f"buffer_store_dwordx4 v[{YA}:{YA+3}], v{YAD}, {WS}, s{S_Y} offen sc1")
stamp(9)
L("L_exit")
stamp_flush()
L("L_end")
A("s_endpgm")

out.append(f""".section .rodata,"a"
.p2align 6
.amdhsa_kernel {NAME}_kernel
  .amdhsa_next_free_vgpr 168
  .amdhsa_next_free_sgpr 102
  .amdhsa_accum_offset 168
  .amdhsa_group_segment_fixed_size 0
  .amdhsa_kernarg_size 104
  .amdhsa_user_sgpr_count 2
  .amdhsa_user_sgpr_kernarg_segment_ptr 1
  .amdhsa_system_sgpr_workgroup_id_x 1
.end_amdhsa_kernel""")

order = ["head", "qc", "ldr", "gv", "att", "qm2"]
print("\n".join(l for b in order for l in BLK[b]))
```

```python
import sys, struct, math

NAME = "sequential_preLN__sliding_block_cached__dense_activation_gelu__decode"

CFG = dict(nt=1, timeout=1 << 18, stamps=0, dual=1, tsleep0=10, tsleep=3, tsleepa=24, qsleep=0, mwin=4, touch=1, bmask=15, fsl=0, g1sl=0, g2sl=0, pf=29, pfw=16, touch2=1, kb0=6, kthm=0, kthn=8, dry=1, dry2=1, dry3=1, korder=0)
for a in sys.argv[1:]:
    if "=" in a:
        k, v = a.split("=")
        CFG[k] = int(v)
NT = " nt" if CFG["nt"] else ""

WS_Q = 0x00000
RECP = 1152
WS_PNA = 0x10000
WS_PNB = 0x50000
WS_XQA = 0x90000
WS_XQB = 0x80000
WS_AP = 0xA8000
WS_Y = 0xB0000
YP = 4096 + 128
WS_TS = 0xF0000
WS_SIZE = 0x200000

L_QL = 0
L_XN = 0
L_SC = 2048
L_QR = 2048
L_HN = 4096
L_RED = 6144
L_STS = 8192
L_QS = 9216
L_H1 = 9216
L_ZERO = 9728
L_MX = 10240
L_LS = 10368
L_FLAG = 10496
L_TAG = 10512
L_FL2 = 10544
L_DUM = 10560
BIG = 11264
L_K = BIG
L_V = BIG + 65536
L_WQ = BIG
L_WO = BIG + 32768
L_WX = BIG + 32768
L_W2 = BIG + 65536
L_PS = BIG + 98304
PNP = 1040
LDS_BYTES = BIG + 131072

LOG2E = 1.4426950408889634
SCALE = 128 ** -0.5


def f2u(f):
    return struct.unpack("<I", struct.pack("<f", f))[0]


out = []


def A(s):
    out.append("    " + s)


def L(s):
    out.append(s + ":")


def C(s):
    out.append("    ; " + s)


def nop(n):
    while n > 0:
        k = min(n, 16)
        A(f"s_nop {k-1}")
        n -= k


_lbl = [0]


def newlbl(p="L"):
    _lbl[0] += 1
    return f"{p}_{_lbl[0]}"


P_X, P_K, P_V, P_WQ, P_WO, P_BX, P_W1, P_B1, P_W2, P_B2, P_OUT, P_DBG, P_WS = [36 + 2 * i for i in range(13)]
S_WAVE, S_X, S_A, S_B, S_SPL = 3, 4, 5, 6, 7
SRD_WS, SRD_A, SRD_B, SRD_C = 8, 12, 16, 20
S_T0, S_T1, S_T2, S_T3, S_T4, S_T5 = 24, 25, 26, 27, 28, 29
S_TO, S_ROLE, S_SUB, S_NT, S_PNA, S_PNB = 30, 31, 32, 33, 34, 35
S_Q = 36
S_TG = 100
WS = f"s[{SRD_WS}:{SRD_WS+3}]"
SA = f"s[{SRD_A}:{SRD_A+3}]"
SB = f"s[{SRD_B}:{SRD_B+3}]"
SC_ = f"s[{SRD_C}:{SRD_C+3}]"
V_ST = 1
S_DRY = 7
CFG_ORDER = ["head", "qc", "ldr", "gv", "att", "qm2"]
V_MSK = 5


def srd(d, p, size):
    A(f"s_mov_b32 s{d}, s{p}")
    A(f"s_mov_b32 s{d+1}, s{p+1}")
    A(f"s_mov_b32 s{d+2}, {size:#x}")
    A(f"s_mov_b32 s{d+3}, 0x00020000")


def stamp(slot):
    if CFG["stamps"]:
        A("s_memrealtime s[0:1]")
        A("s_waitcnt lgkmcnt(0)")
        A(f"v_writelane_b32 v{V_ST}, s0, {slot}")


def stamp_flush():
    if not CFG["stamps"]:
        return
    if CFG["stamps"] == 2:
        A("s_mov_b64 exec, -1")
        A(f"v_mov_b32 v2, {L_TAG}")
        A("ds_read_b32 v3, v2")
        A("s_waitcnt lgkmcnt(0)")
        A(f"v_sub_u32 v3, v{V_ST}, v3")
        A("v_max_i32 v3, 0, v3")
        A("v_lshlrev_b32 v2, 2, v0")
        A("v_add_co_u32 v166, vcc, v166, v2")
        A("v_addc_co_u32 v167, vcc, 0, v167, vcc")
        A(f"v_cmp_ne_u32 vcc, 0, v{V_ST}")
        A("s_bitcmp1_b32 vcc_lo, 11")
        A("s_cbranch_scc0 L_end")
        A("s_and_b64 exec, vcc, 0x1fff")
        A("s_cbranch_execz L_end")
        A("global_atomic_umax v[166:167], v3, off offset:8")
        return
    A("s_mov_b64 exec, -1")
    A("s_lshl_b32 s0, s2, 10")
    A(f"s_lshl_b32 s1, s{S_WAVE}, 6")
    A("s_add_u32 s0, s0, s1")
    A(f"s_add_u32 s0, s0, {WS_TS}")
    A("v_lshlrev_b32 v2, 2, v0")
    A("s_mov_b64 exec, 0xffff")
    A(f"buffer_store_dword v{V_ST}, v2, {WS}, s0 offen")


def dpp_steps(op, regs, ctrls):
    for c in ctrls:
        pad = max(0, 2 - (len(regs) - 1))
        if pad:
            nop(pad)
        for r in regs:
            A(f"{op}_dpp v{r}, v{r}, v{r} {c} row_mask:0xf bank_mask:0xf")


ROW_ALL = ["quad_perm:[1,0,3,2]", "quad_perm:[2,3,0,1]", "row_half_mirror", "row_mirror"]
ROW_HI = ["row_ror:4", "row_ror:8"]


def swap_steps(op, regs, tmps, which=(16, 32)):
    for wd in which:
        sw = f"v_permlane{wd}_swap_b32"
        for r, t in zip(regs, tmps):
            A(f"v_mov_b32 v{t}, v{r}")
        pad = max(0, 2 - (len(regs) - 1))
        if pad:
            nop(pad)
        for r, t in zip(regs, tmps):
            A(f"{sw} v{r}, v{t}")
        for r, t in zip(regs, tmps):
            A(f"{op} v{r}, v{r}, v{t}")


def allreduce(op, regs, tmps):
    nop(2)
    dpp_steps(op, regs, ROW_ALL)
    swap_steps(op, regs, tmps)


def lds_wait(flag_off, vt, va, sleep=0):
    l, e = newlbl("Lw"), newlbl("Lwe")
    A(f"v_mov_b32 v{va}, {flag_off}")
    A(f"s_mov_b32 s{S_TO}, {CFG['timeout']}")
    L(l)
    if sleep:
        A(f"s_sleep {sleep}")
    A(f"ds_read_b32 v{vt}, v{va}")
    A(f"s_sub_u32 s{S_TO}, s{S_TO}, 1")
    A(f"s_cbranch_scc1 {e}")
    A("s_waitcnt lgkmcnt(0)")
    A(f"v_readfirstlane_b32 s{S_T0}, v{vt}")
    A(f"s_cmp_eq_u32 s{S_T0}, 0")
    A(f"s_cbranch_scc1 {l}")
    L(e)
    A("s_waitcnt lgkmcnt(0)")


def lds_set(flag_off, vt, va):
    A("s_waitcnt lgkmcnt(0)")
    A(f"v_mov_b32 v{va}, {flag_off}")
    A(f"v_mov_b32 v{vt}, 1")
    A(f"ds_write_b32 v{va}, v{vt}")


def lds_sync(cnt_off, n, vt, va):
    l, e = newlbl("Ls"), newlbl("Lse")
    A(f"v_mov_b32 v{va}, {cnt_off}")
    A(f"v_mov_b32 v{vt}, 1")
    A("s_mov_b64 exec, 1")
    A(f"ds_add_u32 v{va}, v{vt}")
    A("s_mov_b64 exec, -1")
    A(f"s_mov_b32 s{S_TO}, {CFG['timeout']}")
    L(l)
    A(f"ds_read_b32 v{vt}, v{va}")
    A(f"s_sub_u32 s{S_TO}, s{S_TO}, 1")
    A(f"s_cbranch_scc1 {e}")
    A("s_waitcnt lgkmcnt(0)")
    A(f"v_readfirstlane_b32 s{S_T0}, v{vt}")
    A(f"s_cmp_lt_u32 s{S_T0}, {n}")
    A(f"s_cbranch_scc1 {l}")
    L(e)
    A("s_waitcnt lgkmcnt(0)")


def tree3(op3, op2, regs, t):
    regs = list(regs)
    A(f"{op3} v{t}, v{regs[0]}, v{regs[1]}, v{regs[2]}")
    i = 3
    while i + 1 < len(regs):
        A(f"{op3} v{t}, v{t}, v{regs[i]}, v{regs[i+1]}")
        i += 2
    if i < len(regs):
        A(f"{op2} v{t}, v{t}, v{regs[i]}")


def tag(quad, tg):
    for j in range(4):
        A(f"v_add_u32 v{quad+j}, 0x200, v{quad+j}")
    for j in range(4):
        A(f"v_bfi_b32 v{quad+j}, v{V_MSK}, v{tg+j}, v{quad+j}")


def tpoll(loads, regs, t, tg, sleep=0):
    l, e = newlbl("Lt"), newlbl("Lte")
    regs = list(regs)
    A(f"s_mov_b32 s{S_TO}, {CFG['timeout']}")
    L(l)
    if sleep:
        A(f"s_sleep {sleep}")
    loads()
    A(f"s_sub_u32 s{S_TO}, s{S_TO}, 1")
    A(f"s_cbranch_scc1 {e}")
    A("s_waitcnt vmcnt(0)")
    for i, r in enumerate(regs):
        A(f"v_xor_b32 v{r}, v{r}, v{tg + (i & 3)}")
    tree3("v_or3_b32", "v_or_b32", regs, t)
    A(f"v_and_b32 v{t}, v{V_MSK}, v{t}")
    A(f"v_cmp_ne_u32 vcc, 0, v{t}")
    A("s_cmp_lg_u64 vcc, 0")
    A(f"s_cbranch_scc1 {l}")
    L(e)
    A("s_waitcnt vmcnt(0)")


def tpoll2(loads, nld, bases, nreg, t, tg, consume):
    l, eA, eB, done = newlbl("Lu"), newlbl("LuA"), newlbl("LuB"), newlbl("Lud")

    def check(base, target):
        A(f"s_waitcnt vmcnt({nld})")
        regs = list(range(base, base + nreg))
        for i, r in enumerate(regs):
            A(f"v_xor_b32 v{r}, v{r}, v{tg + (i & 3)}")
        tree3("v_or3_b32", "v_or_b32", regs, t)
        A(f"v_and_b32 v{t}, v{V_MSK}, v{t}")
        A(f"v_cmp_ne_u32 vcc, 0, v{t}")
        A("s_cmp_eq_u64 vcc, 0")
        A(f"s_cbranch_scc1 {target}")
    A(f"s_mov_b32 s{S_TO}, {CFG['timeout']}")
    loads(bases[0])
    L(l)
    loads(bases[1])
    check(bases[0], eA)
    loads(bases[0])
    check(bases[1], eB)
    A(f"s_sub_u32 s{S_TO}, s{S_TO}, 1")
    A(f"s_cbranch_scc0 {l}")
    A("s_waitcnt vmcnt(0)")
    L(eA)
    consume(bases[0])
    A(f"s_branch {done}")
    L(eB)
    consume(bases[1])
    L(done)


def bf16r(dst, src):
    A(f"v_cvt_pk_bf16_f32 v{dst}, v{src}, v{src}")
    A(f"v_lshlrev_b32 v{dst}, 16, v{dst}")


def unpack(dst, src, n):
    for i in range(n):
        A(f"v_lshlrev_b32 v{dst+2*i}, 16, v{src+i}")
        A(f"v_and_b32 v{dst+2*i+1}, 0xffff0000, v{src+i}")


def pack(dst, src, n):
    for i in range(n):
        A(f"v_cvt_pk_bf16_f32 v{dst+i}, v{src+2*i}, v{src+2*i+1}")


def layernorm(xs, nb, tmp, outp):
    s = [tmp + i for i in range(nb)]
    q = [tmp + nb + i for i in range(nb)]
    t = [tmp + 2 * nb + i for i in range(nb)]
    mb = [tmp + 3 * nb + i for i in range(nb)]
    d = [tmp + 4 * nb + 8 * i for i in range(nb)]
    for i in range(nb):
        x = xs[i]
        A(f"v_add_f32 v{s[i]}, v{x}, v{x+1}")
        A(f"v_add_f32 v{t[i]}, v{x+2}, v{x+3}")
        A(f"v_add_f32 v{q[i]}, v{x+4}, v{x+5}")
        A(f"v_add_f32 v{mb[i]}, v{x+6}, v{x+7}")
        A(f"v_add_f32 v{s[i]}, v{s[i]}, v{t[i]}")
        A(f"v_add_f32 v{q[i]}, v{q[i]}, v{mb[i]}")
        A(f"v_add_f32 v{s[i]}, v{s[i]}, v{q[i]}")
    allreduce("v_add_f32", s, t)
    for i in range(nb):
        A(f"v_mul_f32 v{s[i]}, {f2u(1.0/512):#x}, v{s[i]}")
    for i in range(nb):
        x = xs[i]
        for j in range(8):
            A(f"v_sub_f32 v{d[i]+j}, v{x+j}, v{s[i]}")
        A(f"v_mul_f32 v{q[i]}, v{d[i]}, v{d[i]}")
        for j in range(1, 8):
            A(f"v_fmac_f32 v{q[i]}, v{d[i]+j}, v{d[i]+j}")
        bf16r(mb[i], s[i])
    nop(2)
    dpp_steps("v_add_f32", q, ROW_ALL)
    for i in range(nb):
        x = xs[i]
        for j in range(8):
            A(f"v_sub_f32 v{d[i]+j}, v{x+j}, v{mb[i]}")
        pack(outp[i], d[i], 4)
        unpack(d[i], outp[i], 4)
    swap_steps("v_add_f32", q, t)
    for i in range(nb):
        A(f"v_mul_f32 v{q[i]}, {f2u(1.0/512):#x}, v{q[i]}")
        bf16r(q[i], q[i])
        A(f"v_add_f32 v{q[i]}, {f2u(1e-5):#x}, v{q[i]}")
        bf16r(q[i], q[i])
        A(f"v_sqrt_f32 v{q[i]}, v{q[i]}")
        nop(1)
        bf16r(q[i], q[i])
        A(f"v_rcp_f32 v{q[i]}, v{q[i]}")
    nop(1)
    for i in range(nb):
        for j in range(8):
            A(f"v_mul_f32 v{d[i]+j}, v{d[i]+j}, v{q[i]}")
        pack(outp[i], d[i], 4)


def mfma(d, a, b, c=None):
    cc = f"v[{c}:{c+3}]" if c is not None else "0"
    A(f"v_mfma_f32_16x16x32_bf16 v[{d}:{d+3}], v[{a}:{a+3}], v[{b}:{b+3}], {cc}")


MASK_N2 = 0x0003000300030003
MASK_N4 = 0x000f000f000f000f


def set_exec(mask):
    A(f"s_mov_b32 exec_lo, {mask & 0xffffffff:#x}")
    A(f"s_mov_b32 exec_hi, {mask >> 32:#x}")


def tag_poll(sleep0, sel, barrier=False):
    lt, lte = newlbl(), newlbl()
    A(f"s_and_b32 s{S_T1}, s{sel}, 3")
    A(f"s_lshl_b32 s{S_T1}, s{S_T1}, 6")
    A(f"s_mov_b32 s{S_TO}, {CFG['timeout']}")
    if sleep0:
        A(f"s_sleep {sleep0}")
    L(lt)
    A(f"s_load_dwordx2 s[{S_TG}:{S_TG+1}], s[{P_DBG}:{P_DBG+1}], s{S_T1} glc")
    A(f"s_sub_u32 s{S_TO}, s{S_TO}, 1")
    A(f"s_cbranch_scc1 {lte}")
    A("s_waitcnt lgkmcnt(0)")
    A(f"s_cmp_lg_u32 s{S_TG+1}, 0")
    A(f"s_cbranch_scc1 {lte}")
    A(f"s_sleep {CFG['tsleep']}")
    A(f"s_branch {lt}")
    L(lte)
    A("s_waitcnt lgkmcnt(0)")
    A(f"v_mov_b32 v100, s{S_TG}")
    A(f"v_mov_b32 v101, s{S_TG+1}")
    A("v_and_b32 v104, 0x3ff, v100")
    A("v_bfe_u32 v105, v100, 10, 10")
    A("v_bfe_u32 v106, v100, 20, 10")
    A("v_alignbit_b32 v107, v101, v100, 30")
    A("v_and_b32 v107, 0x3ff, v107")
    A(f"v_mov_b32 v102, {L_TAG}")
    if barrier == 1:
        A("s_barrier")
    A("ds_write_b64 v102, v[100:101]")
    A("ds_write_b128 v102, v[104:107] offset:16")
    if barrier == 2:
        A("s_waitcnt lgkmcnt(0)")
    else:
        lds_set(L_FLAG, 100, 101)


XNT = ' nt' if CFG.get('xnt', 0) else ''
out.append(f"""; fused pre-LN attention(decode, sliding window) + gelu MLP, persistent kernel
; @launch grid=(256,1,1) block=(640,1,1) lds={LDS_BYTES}
.amdgcn_target "amdgcn-amd-amdhsa--gfx950"
.text
.globl {NAME}_kernel
.p2align 8
.type {NAME}_kernel,@function
{NAME}_kernel:""")

BLK = {"head": out}


def begin(name):
    global out
    BLK[name] = []
    out = BLK[name]


def post_entry():
    A("s_waitcnt lgkmcnt(0)")
    srd(SRD_WS, P_WS, WS_SIZE)
    if CFG["stamps"] == 2:
        A(f"v_mov_b32 v166, s{P_DBG}")
        A(f"v_mov_b32 v167, s{P_DBG+1}")
    stamp(0)


def att_common():
    A(f"s_sub_u32 s{S_A}, s{S_A}, 16")
    A(f"s_lshr_b32 s{S_B}, s{S_A}, 3")
    A(f"s_lshl_b32 s{S_T0}, s{S_X}, 4")
    A(f"s_add_u32 s{S_T0}, s{S_T0}, s{S_A}")
    A(f"s_mul_i32 s{S_T0}, s{S_T0}, {RECP}")
    A(f"s_add_u32 s{S_PNA}, s{S_T0}, {WS_PNA}")
    A(f"s_add_u32 s{S_PNB}, s{S_T0}, {WS_PNB}")


def gv_common():
    A(f"s_mul_i32 s{S_SUB}, s{S_X}, 7")
    A(f"s_add_u32 s{S_SUB}, s{S_SUB}, s{S_A}")
    A(f"s_sub_u32 s{S_SUB}, s{S_SUB}, 8")
    A(f"s_mov_b32 s{S_ROLE}, 2")
    A(f"s_cmp_lt_u32 s{S_A}, 8")
    A(f"s_cselect_b32 s{S_ROLE}, 1, s{S_ROLE}")
    A(f"s_cselect_b32 s{S_SUB}, s{S_A}, s{S_SUB}")
    A(f"s_cmp_eq_u32 s{S_A}, 15")
    A(f"s_cselect_b32 s{S_ROLE}, 0, s{S_ROLE}")


def zero_flags():
    for j in range(4):
        A(f"v_mov_b32 v{12+j}, 0")
    A(f"v_mov_b32 v3, {L_FLAG}")
    A("ds_write_b128 v3, v[12:15]")
    A(f"ds_write_b128 v3, v[12:15] offset:{L_FL2 - L_FLAG}")


A("s_cmp_ge_u32 s2, 256")
A("s_cbranch_scc1 L_end")
A("s_load_dwordx16 s[36:51], s[0:1], 0")
A("s_load_dwordx8 s[52:59], s[0:1], 64")
A("s_load_dwordx2 s[60:61], s[0:1], 96")
A("v_lshrrev_b32 v1, 6, v0")
A("v_and_b32 v0, 63, v0")
A(f"s_and_b32 s{S_X}, s2, 7")
A(f"v_readfirstlane_b32 s{S_WAVE}, v1")
A(f"s_lshr_b32 s{S_A}, s2, 3")
if CFG["pf"]:
    C("early workgroups: waves 0..5 pull the kernel's code into L2 (striped)")
    A(f"s_cmp_ge_u32 s{S_WAVE}, 5")
    A("s_cbranch_scc1 L_pfe")
    A(f"s_cmp_ge_u32 s{S_A}, {CFG['pfw']}")
    A("s_cbranch_scc1 L_pfe")
    A("s_getpc_b64 s[24:25]")
    L("L_pcref")
    A(f"s_lshl_b32 s26, s{S_WAVE}, 7")
    L("L_pf")
    A("s_load_dword s27, s[24:25], s26")
    A("s_add_u32 s26, s26, 640")
    A("s_cmp_lt_u32 s26, L_end-L_pcref")
    A("s_cbranch_scc1 L_pf")
    L("L_pfe")
A("v_lshlrev_b32 v2, 4, v0")
A("v_lshrrev_b32 v4, 4, v0")
A(f"v_mov_b32 v{V_MSK}, 0x3ff")
A("v_and_b32 v6, 15, v0")
A("v_lshrrev_b32 v8, 3, v0")
A("v_bfe_u32 v9, v0, 1, 2")
A("v_and_b32 v10, 1, v0")
A("v_lshlrev_b32 v11, 5, v8")
A("v_lshl_add_u32 v11, v10, 4, v11")
if CFG["stamps"]:
    A(f"v_mov_b32 v{V_ST}, 0")
C("dispatch before waiting for the kernel arguments")
A(f"s_lshr_b32 s{S_T0}, s{S_A}, 4")
A(f"s_lshl_b32 s{S_T0}, s{S_T0}, 4")
A(f"s_or_b32 s{S_T0}, s{S_T0}, s{S_WAVE}")
A(f"s_cmp_ge_u32 s{S_T0}, 24")
A("s_cbranch_scc1 L_ldr")
A(f"s_cmp_ge_u32 s{S_T0}, 16")
A("s_cbranch_scc1 L_att")
if CFG["dry"]:
    A(f"s_cmp_lg_u32 s{S_T0}, 5")
    A("s_cbranch_scc1 L_nd")
    C("wave 5 walks the q wave's register/LDS code with EXEC=0 to warm the instruction cache")
    A("s_mov_b64 exec, 0")
    A("s_branch L_dry")
    L("L_nd")
A(f"s_cmp_lg_u32 s{S_T0}, 6")
A("s_cbranch_scc1 L_GV")

V_K = 16
V_Q = 48
V_S = 64
V_SM = 72
V_PNA = 80
V_T = 84
V_TG = 124
V_G = 128

begin("att")
L("L_att")
att_common()
post_entry()
srd(SRD_C, P_OUT, 2048)
srd(SRD_A, P_DBG, 256)
A(f"s_lshl_b32 s{S_T1}, s{S_WAVE}, 8")
A(f"s_add_u32 s{S_PNA}, s{S_PNA}, s{S_T1}")
A(f"s_add_u32 s{S_PNB}, s{S_PNB}, s{S_T1}")
A(f"v_lshlrev_b32 v{V_PNA}, 6, v6")
A(f"v_lshl_add_u32 v{V_PNA}, v4, 4, v{V_PNA}")
C("G role: even a -> gi = x*8 + a/2 (wave 0)")
A(f"s_lshl_b32 s{S_T0}, s{S_X}, 3")
A(f"s_lshr_b32 s{S_T1}, s{S_A}, 1")
A(f"s_add_u32 s{S_SUB}, s{S_T0}, s{S_T1}")
A(f"s_and_b32 s{S_ROLE}, s{S_A}, 1")
A(f"s_or_b32 s{S_ROLE}, s{S_ROLE}, s{S_WAVE}")
A(f"s_cmp_lg_u32 s{S_ROLE}, 0")
A("s_cbranch_scc1 L_nogsm")
srd(SRD_B, P_X, 2048)
A(f"v_and_b32 v{V_T}, 3, v0")
A(f"v_lshlrev_b32 v{V_T}, 3, v{V_T}")
A(f"s_lshl_b32 s{S_T0}, s{S_SUB}, 5")
A(f"buffer_load_dwordx2 v[{V_SM}:{V_SM+1}], v{V_T}, {SB}, s{S_T0} offen{XNT}")
if CFG["touch2"]:
    A(f"buffer_load_dwordx2 v[{V_SM+4}:{V_SM+5}], v{V_T}, {SC_}, s{S_T0} offen")
srd(SRD_B, P_B2, 1024)
A(f"s_and_b32 s{S_T0}, s{S_T0}, 1023")
A(f"buffer_load_dwordx2 v[{V_SM+2}:{V_SM+3}], v{V_T}, {SB}, s{S_T0} offen{XNT}")
L("L_nogsm")
C("pre-touch this wave's q lines so that they are resident at the memory side")
A(f"s_lshl_b32 s{S_T1}, s{S_X}, 12")
A(f"s_lshl_b32 s{S_T2}, s{S_B}, 11")
A(f"s_add_u32 s{S_T1}, s{S_T1}, s{S_T2}")
A(f"s_lshl_b32 s{S_T2}, s{S_WAVE}, 8")
A(f"s_add_u32 s{S_T1}, s{S_T1}, s{S_T2}")
A(f"s_add_u32 s{S_T2}, s{SRD_WS}, s{S_T1}")
A(f"s_addc_u32 s{S_T3}, s{SRD_WS+1}, 0")
if CFG["touch"]:
    for i in range(4):
        A(f"s_load_dword s{64+i}, s[{S_T2}:{S_T3}], {WS_Q + 64*i} glc")
C("K fragment addresses: K + w*8192 + m*256 + ((4k+g)^m)*16")
KA = V_T + 36
A(f"s_lshl_b32 s{S_T0}, s{S_WAVE}, 13")
A(f"s_add_u32 s{S_T0}, s{S_T0}, {L_K}")
for kp in range(4):
    A(f"v_add_u32 v{KA+kp}, {4*kp}, v4")
    A(f"v_xor_b32 v{KA+kp}, v{KA+kp}, v6")
    A(f"v_lshlrev_b32 v{KA+kp}, 4, v{KA+kp}")
    A(f"v_lshl_add_u32 v{KA+kp}, v6, 8, v{KA+kp}")
    A(f"v_add_u32 v{KA+kp}, s{S_T0}, v{KA+kp}")
A(f"s_cmp_lg_u32 s{S_WAVE}, 7")
A("s_cbranch_scc1 L_ntp")
tag_poll(CFG["tsleepa"], S_A, barrier=2)
L("L_ntp")
A("s_barrier")
A(f"v_mov_b32 v{V_T}, 0")
A(f"ds_read_b64 v[{V_T+2}:{V_T+3}], v{V_T} offset:{L_TAG}")
A(f"ds_read_b128 v[{V_TG}:{V_TG+3}], v{V_T} offset:{L_TAG + 16}")
A("s_waitcnt lgkmcnt(0)")
A(f"v_readfirstlane_b32 s{S_TG}, v{V_T+2}")
A(f"v_readfirstlane_b32 s{S_TG+1}, v{V_T+3}")
stamp(1)
S2 = V_T + 4
PK = V_T + 12
MM = V_T + 16
TT = V_T + 20
EX = V_T + 24
QA = V_T + 1
A(f"s_lshl_b32 s{S_T0}, s{S_WAVE}, 7")
A(f"v_lshl_add_u32 v{QA}, v0, 2, s{S_T0}")
A(f"v_and_b32 v{V_T+2}, 3, v0")
A(f"v_lshlrev_b32 v{V_T+3}, 8, v{V_T+2}")
A(f"v_lshl_add_u32 v{V_T+3}, v4, 4, v{V_T+3}")
A(f"s_lshl_b32 s{S_T0}, s{S_WAVE}, 2")
A(f"v_lshl_add_u32 v{TT+2}, v0, 5, s{S_T0}")
A(f"v_lshlrev_b32 v{TT+3}, 5, v{V_T+2}")
C("---- scalar gather of q: this wave's 256 bytes (16 granules {d0,d1,T0,T1})")
lq, lqe = newlbl("Lq"), newlbl("Lqe")
stamp(12)
A(f"s_mov_b32 s{S_TO}, {CFG['timeout']}")
L(lq)
for i in range(4):
    A(f"s_load_dwordx16 s[{S_Q+16*i}:{S_Q+16*i+15}], s[{S_T2}:{S_T3}], {WS_Q + 64*i} glc")
A(f"s_sub_u32 s{S_TO}, s{S_TO}, 1")
A(f"s_cbranch_scc1 {lqe}")
A("s_waitcnt lgkmcnt(0)")
A(f"s_and_b64 s[{S_T4}:{S_T5}], s[{S_Q+2}:{S_Q+3}], s[{S_Q+6}:{S_Q+7}]")
A(f"s_or_b64 s[{S_T0}:{S_T1}], s[{S_Q+2}:{S_Q+3}], s[{S_Q+6}:{S_Q+7}]")
for gq in range(2, 16):
    A(f"s_and_b64 s[{S_T4}:{S_T5}], s[{S_T4}:{S_T5}], s[{S_Q+4*gq+2}:{S_Q+4*gq+3}]")
    A(f"s_or_b64 s[{S_T0}:{S_T1}], s[{S_T0}:{S_T1}], s[{S_Q+4*gq+2}:{S_Q+4*gq+3}]")
A(f"s_xor_b64 s[{S_T4}:{S_T5}], s[{S_T4}:{S_T5}], s[{S_TG}:{S_TG+1}]")
A(f"s_xor_b64 s[{S_T0}:{S_T1}], s[{S_T0}:{S_T1}], s[{S_TG}:{S_TG+1}]")
A(f"s_or_b64 s[{S_T4}:{S_T5}], s[{S_T4}:{S_T5}], s[{S_T0}:{S_T1}]")
A(f"s_cbranch_scc1 {lq}")
L(lqe)
A("s_waitcnt lgkmcnt(0)")
stamp(8)
if CFG["stamps"] == 1:
    A(f"s_sub_u32 s0, {CFG['timeout']}, s{S_TO}")
    A(f"v_writelane_b32 v{V_ST}, s0, 9")
for gq in range(16):
    A(f"v_writelane_b32 v{V_T}, s{S_Q+4*gq}, {2*gq}")
    A(f"v_writelane_b32 v{V_T}, s{S_Q+4*gq+1}, {2*gq+1}")
A("s_mov_b32 exec_hi, 0")
A(f"ds_write_b32 v{QA}, v{V_T} offset:{L_QL}")
A("s_mov_b32 exec_hi, -1")
C("K fragments as soon as K landed")
C("ND{")
lds_wait(L_FLAG + 4, V_T, TT, sleep=1)
C("}ND")
for kp in range(4):
    for tt in range(2):
        r = V_K + (tt * 4 + kp) * 4
        A(f"ds_read_b128 v[{r}:{r+3}], v{KA+kp} offset:{tt*4096}")
C("poll the q operand itself (LDS sentinel)")
l1, l1e = newlbl("Lqo"), newlbl("Lqoe")
A(f"s_mov_b32 s{S_TO}, {CFG['timeout']}")
L(l1)
for kp in range(4):
    A(f"ds_read_b128 v[{V_Q+4*kp}:{V_Q+4*kp+3}], v{V_T+3} offset:{L_QL + kp*64}")
A(f"s_sub_u32 s{S_TO}, s{S_TO}, 1")
A(f"s_cbranch_scc1 {l1e}")
A("s_waitcnt lgkmcnt(0)")
tree3("v_max3_u32", "v_max_u32", range(V_Q, V_Q + 16), TT)
A(f"v_cmp_eq_u32 vcc, -1, v{TT}")
A("s_cmp_lg_u64 vcc, 0")
A(f"s_cbranch_scc1 {l1}")
L(l1e)
A("s_waitcnt lgkmcnt(0)")
for kp in range(4):
    for tt in range(2):
        mfma(V_S + 4 * tt, V_K + (tt * 4 + kp) * 4, V_Q + 4 * kp, None if kp == 0 else V_S + 4 * tt)
stamp(2)
A(f"s_mov_b32 s{S_T0}, {f2u(SCALE):#x}")
A(f"s_mov_b32 s{S_T1}, {f2u(LOG2E):#x}")
nop(6)
pack(PK, V_S, 4)
unpack(S2, PK, 4)
for j in range(8):
    A(f"v_mul_f32 v{S2+j}, s{S_T0}, v{S2+j}")
pack(PK, S2, 4)
unpack(S2, PK, 4)
A(f"v_max3_f32 v{MM}, v{S2}, v{S2+1}, v{S2+2}")
A(f"v_max3_f32 v{MM}, v{MM}, v{S2+3}, v{S2+4}")
A(f"v_max3_f32 v{MM}, v{MM}, v{S2+5}, v{S2+6}")
A(f"v_max_f32 v{MM}, v{MM}, v{S2+7}")
swap_steps("v_max_f32", [MM], [TT])
A("s_mov_b64 exec, 15")
A(f"ds_write_b32 v{TT+2}, v{MM} offset:{L_MX}")
A("s_mov_b64 exec, -1")
for j in range(8):
    A(f"v_mul_f32 v{S2+j}, s{S_T1}, v{S2+j}")
l2, l2e = newlbl("Lmx"), newlbl("Lmxe")
A(f"s_mov_b32 s{S_TO}, {CFG['timeout']}")
L(l2)
A(f"ds_read_b128 v[{EX}:{EX+3}], v{TT+3} offset:{L_MX}")
A(f"ds_read_b128 v[{EX+4}:{EX+7}], v{TT+3} offset:{L_MX + 16}")
A(f"s_sub_u32 s{S_TO}, s{S_TO}, 1")
A(f"s_cbranch_scc1 {l2e}")
A("s_waitcnt lgkmcnt(0)")
tree3("v_max3_u32", "v_max_u32", range(EX, EX + 8), TT)
tree3("v_max3_f32", "v_max_f32", range(EX, EX + 8), MM)
A(f"v_cmp_eq_u32 vcc, -1, v{TT}")
A("s_cmp_lg_u64 vcc, 0")
A(f"s_cbranch_scc1 {l2}")
L(l2e)
A("s_waitcnt lgkmcnt(0)")
A(f"v_mul_f32 v{MM}, s{S_T1}, v{MM}")
for j in range(8):
    A(f"v_sub_f32 v{EX+j}, v{S2+j}, v{MM}")
for j in range(8):
    A(f"v_exp_f32 v{EX+j}, v{EX+j}")
A(f"s_lshl_b32 s{S_T0}, s{S_WAVE}, 10")
A(f"v_add_u32 v{TT}, s{S_T0}, v2")
pack(PK, EX, 4)
A(f"ds_write_b128 v{TT}, v[{PK}:{PK+3}] offset:{L_SC}")
A(f"v_add_f32 v{MM+1}, v{EX}, v{EX+1}")
A(f"v_add_f32 v{TT}, v{EX+2}, v{EX+3}")
A(f"v_add_f32 v{TT+1}, v{EX+4}, v{EX+5}")
A(f"v_add_f32 v{EX}, v{EX+6}, v{EX+7}")
A(f"v_add_f32 v{MM+1}, v{MM+1}, v{TT}")
A(f"v_add_f32 v{EX}, v{EX}, v{TT+1}")
A(f"v_add_f32 v{MM+1}, v{MM+1}, v{EX}")
swap_steps("v_add_f32", [MM + 1], [TT])
A("s_mov_b64 exec, 15")
A(f"ds_write_b32 v{TT+2}, v{MM+1} offset:{L_LS}")
A("s_mov_b64 exec, -1")
stamp(3)
VA0, VA1, VB0, VB1 = V_T + 32, V_T + 33, V_T + 34, V_T + 35


def vw2_addr():
    A(f"v_lshlrev_b32 v{VA0}, 10, v4")
    A(f"v_lshl_add_u32 v{VA0}, v6, 3, v{VA0}")
    A(f"v_and_b32 v{VA1}, 1, v4")
    A(f"v_lshl_add_u32 v{VA0}, v{VA1}, 7, v{VA0}")
    A(f"v_xor_b32 v{VA1}, 128, v{VA0}")


vw2_addr()
A(f"s_lshl_b32 s{S_T0}, s{S_WAVE}, 8")
A(f"s_add_u32 s{S_T0}, s{S_T0}, {L_V}")
A(f"v_add_u32 v{VB0}, s{S_T0}, v{VA0}")
A(f"v_add_u32 v{VB1}, s{S_T0}, v{VA1}")
A("s_waitcnt lgkmcnt(0)")
A("s_barrier")
stamp(5)
A(f"s_cmp_gt_u32 s{S_WAVE}, 4")
A("s_cbranch_scc1 L_exit")
A(f"s_cmp_lt_u32 s{S_WAVE}, 4")
A("s_cbranch_scc1 L_pv")
C("---- wave 4: publish stats {m,l,T0,T1} per head (lanes 0..3)")
A(f"ds_read_b128 v[{EX}:{EX+3}], v{TT+3} offset:{L_LS}")
A(f"ds_read_b128 v[{EX+4}:{EX+7}], v{TT+3} offset:{L_LS + 16}")
A(f"v_mov_b32 v{MM+2}, s{S_TG}")
A(f"v_mov_b32 v{MM+3}, s{S_TG+1}")
A("s_waitcnt lgkmcnt(0)")
for j in range(4):
    A(f"v_add_f32 v{EX+j}, v{EX+j}, v{EX+4+j}")
A(f"v_add_f32 v{EX}, v{EX}, v{EX+1}")
A(f"v_add_f32 v{EX+2}, v{EX+2}, v{EX+3}")
A(f"v_add_f32 v{MM+1}, v{EX}, v{EX+2}")
A("s_mov_b64 exec, 15")
if CFG["dual"]:
    A(f"buffer_store_dwordx4 v[{MM}:{MM+3}], v2, {WS}, s{S_PNA} offen")
A(f"buffer_store_dwordx4 v[{MM}:{MM+3}], v2, {WS}, s{S_PNB} offen sc1")
A("s_branch L_exit")
L("L_pv")
C("---- PV (waves 0..3, 32 dims each, 8 k-steps)")
PB = V_G
VF = V_K


def pv_reads(t):
    A(f"ds_read_b128 v[{PB+4*t}:{PB+4*t+3}], v2 offset:{L_SC + t*1024}")
    for c2 in range(2):
        for h in range(2):
            r = VF + ((t % 6) * 2 + c2) * 4 + 2 * h
            A(f"ds_read_b64_tr_b16 v[{r}:{r+1}], v{VB0 + c2} offset:{t*8192 + h*4096}")


for t in range(3):
    pv_reads(t)
for t in range(8):
    A(f"s_waitcnt lgkmcnt({min(2, 7 - t)*5})")
    for c2 in range(2):
        mfma(V_S + 4 * c2, VF + ((t % 6) * 2 + c2) * 4, PB + 4 * t, None if t == 0 else V_S + 4 * c2)
    if t + 3 < 8:
        pv_reads(t + 3)
nop(7)
pack(PK, V_S, 4)
set_exec(MASK_N4)
if CFG["dual"]:
    A(f"buffer_store_dwordx4 v[{PK}:{PK+3}], v{V_PNA}, {WS}, s{S_PNA} offen")
A(f"buffer_store_dwordx4 v[{PK}:{PK+3}], v{V_PNA}, {WS}, s{S_PNB} offen sc1")
A("s_mov_b64 exec, -1")
stamp(6)
A(f"s_cmp_lg_u32 s{S_ROLE}, 0")
A("s_cbranch_scc1 L_exit")

C("==== G: final reduce of 16 outputs (16gi..16gi+15)")
A(f"s_lshl_b32 s{S_T2}, s{S_SUB}, 6")
A(f"s_add_u32 s{S_T3}, s{S_T2}, {WS_AP}")
A(f"s_add_u32 s{S_T2}, s{S_T2}, {WS_Y}")
A(f"v_lshrrev_b32 v{TT+2}, 2, v0")
A(f"v_and_b32 v{TT+3}, 3, v0")
A(f"v_lshlrev_b32 v{TT}, 12, v{TT+2}")
A(f"v_lshl_add_u32 v{TT}, v{TT+3}, 4, v{TT}")
A(f"s_movk_i32 s{S_T0}, {YP}")
A(f"v_mul_lo_u32 v{TT+2}, v{TT+2}, s{S_T0}")
A(f"v_lshl_add_u32 v{TT+2}, v{TT+3}, 4, v{TT+2}")
for i in range(1, 4):
    A(f"s_add_u32 s{40+i}, s{S_T2}, {16*i*YP}")
GA = V_G
if CFG["dry2"]:
    C("walk the rest of this path once with EXEC=0 (instruction cache warm-up)")
    A("s_mov_b64 exec, 0")
L("L_kret")
C("DRY{")
A("s_mov_b32 exec_hi, 0")


def g1_loads():
    A(f"buffer_load_dwordx4 v[{GA}:{GA+3}], v{TT}, {WS}, s{S_T3} offen sc1")


tpoll(g1_loads, range(GA, GA + 4), V_T, V_TG, CFG['g1sl'])
A("s_mov_b64 exec, -1")
stamp(7)
A(f"s_cmp_lg_u32 s{S_SUB}, 0")
A("s_cbranch_scc1 L_gnz")
C("every workgroup has consumed the launch tag by now: leave d_debug clean")
A(f"v_mov_b32 v{V_T}, 0")
A(f"v_mov_b32 v{V_T+1}, 0")
A(f"v_lshlrev_b32 v{V_T+2}, 6, v0")
A("s_mov_b64 exec, 15")
A(f"buffer_store_dwordx2 v[{V_T}:{V_T+1}], v{V_T+2}, {SA}, 0 offen sc1")
A("s_mov_b64 exec, -1")
L("L_gnz")
nop(1)
dpp_steps("v_add_f32", [GA + j for j in range(4)], ROW_HI)
swap_steps("v_add_f32", [GA + j for j in range(4)], [GA + 4 + j for j in range(4)], which=(16,))
GH = V_G + 8
GP = V_G + 16
GB = V_G + 20
pack(GP, GA, 2)
unpack(GA, GP, 2)
unpack(GH, V_SM, 2)
for j in range(4):
    A(f"v_add_f32 v{GH+j}, v{GH+j}, v{GA+j}")
pack(GP, GH, 2)
unpack(GH, GP, 2)
unpack(GB, V_SM + 2, 2)
GY = V_K


def g2_loads():
    for j in range(4):
        A(f"v_mov_b32 v{GY+12+j}, v{V_TG+j}")
    A(f"buffer_load_dwordx4 v[{GY}:{GY+3}], v{TT+2}, {WS}, s{S_T2} offen sc1")
    A(f"buffer_load_dwordx4 v[{GY+4}:{GY+7}], v{TT+2}, {WS}, s41 offen sc1")
    A(f"buffer_load_dwordx4 v[{GY+8}:{GY+11}], v{TT+2}, {WS}, s42 offen sc1")
    A("s_mov_b32 exec_hi, 0")
    A(f"buffer_load_dwordx4 v[{GY+12}:{GY+15}], v{TT+2}, {WS}, s43 offen sc1")
    A("s_mov_b32 exec_hi, -1")


tpoll(g2_loads, range(GY, GY + 16), V_T, V_TG, CFG['g2sl'])
stamp(10)
for j in range(4):
    A(f"v_add_f32 v{GY+j}, v{GY+j}, v{GY+4+j}")
    A(f"v_add_f32 v{GY+8+j}, v{GY+8+j}, v{GY+12+j}")
for j in range(4):
    A(f"v_add_f32 v{GY+j}, v{GY+j}, v{GY+8+j}")
dpp_steps("v_add_f32", [GY + j for j in range(4)], ROW_HI)
swap_steps("v_add_f32", [GY + j for j in range(4)], [GY + 4 + j for j in range(4)])
pack(GP, GY, 2)
unpack(GY, GP, 2)
for j in range(4):
    A(f"v_add_f32 v{GY+j}, v{GY+j}, v{GB+j}")
pack(GP, GY, 2)
unpack(GY, GP, 2)
for j in range(4):
    A(f"v_add_f32 v{GY+j}, v{GY+j}, v{GH+j}")
pack(GP, GY, 2)
A(f"s_lshl_b32 s{S_T4}, s{S_SUB}, 5")
A("v_lshlrev_b32 v3, 3, v0")
A("s_mov_b64 exec, 15")
A(f"buffer_store_dwordx2 v[{GP}:{GP+1}], v3, {SC_}, s{S_T4} offen")
stamp(11)
A("s_branch L_exit")

C("}DRY")
begin("ldr")
L("L_ldr")
att_common()
C("kv byte offset: ((b*8+x)*8192 + 6144 + 256 s)*256")
A(f"s_lshl_b32 s{S_T0}, s{S_B}, 3")
A(f"s_add_u32 s{S_T0}, s{S_T0}, s{S_X}")
A(f"s_lshl_b32 s{S_T0}, s{S_T0}, 5")
A(f"s_and_b32 s{S_T1}, s{S_A}, 7")
A(f"s_add_u32 s{S_T0}, s{S_T0}, s{S_T1}")
A(f"s_add_u32 s{S_T0}, s{S_T0}, 24")
A(f"s_lshl_b32 s{S_T3}, s{S_T0}, 16")
A(f"s_mov_b32 s{S_T2}, 0")
A(f"s_cmp_eq_u32 s{S_WAVE}, 9")
A("s_cbranch_scc1 L_ldv")
C("K DMA lane offsets: r4=l>>4, p=l&15: r4*256 + ((p ^ (4i+r4))*16)")
for i in range(4):
    A(f"v_add_u32 v{12+i}, {4*i}, v4")
    A(f"v_xor_b32 v{12+i}, v{12+i}, v6")
    A(f"v_lshlrev_b32 v{12+i}, 4, v{12+i}")
    A(f"v_lshl_add_u32 v{12+i}, v4, 8, v{12+i}")
A(f"s_mov_b32 s{S_T1}, {L_K}")
post_entry()
srd(SRD_A, P_K, 0x2000000)
L("L_ldk1")
A(f"s_mov_b32 m0, s{S_T1}")
A(f"s_add_u32 s{S_T1}, s{S_T1}, 4096")
for i in range(4):
    A(f"buffer_load_dwordx4 v{12+i}, {SA}, s{S_T3} offen offset:{i*1024}{NT} lds")
A(f"s_add_u32 s{S_T3}, s{S_T3}, 4096")
A(f"s_add_u32 s{S_T2}, s{S_T2}, 1")
A(f"s_cmp_lt_u32 s{S_T2}, 16")
A("s_cbranch_scc1 L_ldk1")
stamp(1)
A("s_barrier")
A("s_waitcnt vmcnt(0)")
stamp(4)
lds_set(L_FLAG + 4, 16, 17)
A("s_waitcnt lgkmcnt(0)")
A("s_branch L_exit")
L("L_ldv")
zero_flags()
for j in range(4):
    A(f"v_mov_b32 v{16+j}, -1")
A(f"ds_write_b128 v2, v[16:19] offset:{L_QL}")
A("s_mov_b64 exec, 0xff")
A(f"ds_write_b128 v2, v[16:19] offset:{L_MX}")
A("s_mov_b64 exec, -1")
A("v_lshl_add_u32 v12, v9, 8, v11")
A("v_xor_b32 v13, 32, v12")
post_entry()
srd(SRD_B, P_V, 0x2000000)
A("s_barrier")
A(f"buffer_store_dwordx4 v[16:19], v2, {WS}, s{S_PNA} offen sc1")
A(f"buffer_store_dwordx4 v[16:19], v2, {WS}, s{S_PNB} offen sc1")
A(f"s_mov_b32 s{S_T1}, {L_V}")
L("L_ldv1")
A(f"s_mov_b32 m0, s{S_T1}")
A(f"s_add_u32 s{S_T1}, s{S_T1}, 4096")
for be in range(4):
    A(f"buffer_load_dwordx4 v{12 + (be & 1)}, {SB}, s{S_T3} offen offset:{be*1024}{NT} lds")
A(f"s_add_u32 s{S_T3}, s{S_T3}, 4096")
A(f"s_add_u32 s{S_T2}, s{S_T2}, 1")
A(f"s_cmp_lt_u32 s{S_T2}, 16")
A("s_cbranch_scc1 L_ldv1")
stamp(1)
A("s_waitcnt vmcnt(0)")
stamp(4)
A("s_barrier")
A("s_branch L_exit")

begin("gv")
L("L_dry2")
A("s_mov_b64 exec, -1")
L("L_GV")
gv_common()
post_entry()
A(f"s_cmp_ge_u32 s{S_WAVE}, 8")
A("s_cbranch_scc1 L_gld")
A(f"s_cmp_lg_u32 s{S_WAVE}, 7")
A("s_cbranch_scc1 L_gv2")
A("s_cmp_lg_u32 s2, 0")
A("s_cbranch_scc1 L_gv0")
C("workgroup 0 publishes the launch tag (4 replicas)")
srd(SRD_C, P_DBG, 256)
A("s_memrealtime s[24:25]")
A("s_waitcnt lgkmcnt(0)")
A("s_or_b32 s25, s25, 0x80000000")
A("v_mov_b32 v14, s24")
A("v_mov_b32 v15, s25")
A("v_lshlrev_b32 v12, 6, v0")
A("s_mov_b64 exec, 15")
A(f"buffer_store_dwordx2 v[14:15], v12, {SC_}, 0 offen sc1")
A("s_mov_b64 exec, -1")
L("L_gv0")
tag_poll(CFG["tsleep0"], S_A, barrier=2)
stamp(5)
L("L_gv2")
A("s_barrier")
A("s_branch L_qm1")

C("---- GEMV loaders (waves 8,9)")
L("L_gld")
A(f"s_and_b32 s{S_T5}, s{S_WAVE}, 1")
C("WX style lane offsets: ct=l>>5, p=(l>>1)&15 (row), half")
A("v_bfe_u32 v3, v0, 1, 4")
A("v_lshrrev_b32 v12, 5, v0")
A("v_lshlrev_b32 v12, 5, v12")
A("v_lshl_add_u32 v12, v10, 4, v12")
A("s_barrier")
A(f"s_cmp_eq_u32 s{S_ROLE}, 0")
A("s_cbranch_scc1 L_exit")
A(f"s_cmp_eq_u32 s{S_ROLE}, 2")
A("s_cbranch_scc1 L_gld2")
C("wo tile: 512 rows x 128 B; loader i: rows 256i.. (32 instrs of 8 rows)")
srd(SRD_C, P_WO, 0x400000)
A("v_bfe_u32 v3, v0, 1, 3")
A("v_lshlrev_b32 v3, 10, v3")
A("v_lshl_add_u32 v3, v4, 5, v3")
A("v_lshl_add_u32 v3, v10, 4, v3")
A(f"s_lshl_b32 s{S_T3}, s{S_X}, 19")
A(f"s_lshl_b32 s{S_T1}, s{S_T5}, 18")
A(f"s_add_u32 s{S_T3}, s{S_T3}, s{S_T1}")
A(f"s_lshl_b32 s{S_T1}, s{S_SUB}, 7")
A(f"s_add_u32 s{S_T3}, s{S_T3}, s{S_T1}")
A(f"s_lshl_b32 s{S_T4}, s{S_T5}, 15")
A(f"s_add_u32 s{S_T4}, s{S_T4}, {L_WO}")
if CFG["touch2"]:
    for i in range(4):
        A(f"s_add_u32 s{S_T1}, s{S_T3}, {i*65536}")
        A(f"s_load_dword s{64+i}, s[{P_WO}:{P_WO+1}], s{S_T1}")
A("s_barrier")
A(f"s_mov_b32 s{S_T2}, 0")
L("L_gld1")
for i in range(4):
    A(f"s_mov_b32 m0, s{S_T4}")
    A(f"s_add_u32 s{S_T4}, s{S_T4}, 1024")
    A(f"buffer_load_dwordx4 v3, {SC_}, s{S_T3} offen{NT} lds")
    A(f"s_add_u32 s{S_T3}, s{S_T3}, 8192")
A(f"s_add_u32 s{S_T2}, s{S_T2}, 1")
A(f"s_cmp_lt_u32 s{S_T2}, 8")
A("s_cbranch_scc1 L_gld1")
A("s_branch L_gld5")
L("L_gld2")
A(f"s_cmp_eq_u32 s{S_T5}, 1")
A("s_cbranch_scc1 L_gld3")
srd(SRD_C, P_W1, 512 * 3584)
A(f"s_lshl_b32 s{S_T3}, s{S_SUB}, 6")
A(f"s_movk_i32 s{S_T1}, 3584")
A(f"v_mul_lo_u32 v13, v3, s{S_T1}")
A("v_add_u32 v13, v13, v12")
if CFG["touch2"]:
    for i in range(14):
        A(f"s_add_u32 s{S_T1}, s{S_T3}, {i*131072}")
        A(f"s_load_dword s{64+i}, s[{P_W1}:{P_W1+1}], s{S_T1}")
A("s_barrier")
A(f"s_mov_b32 s{S_T1}, {L_WX}")
A(f"s_mov_b32 s{S_T2}, 0")
L("L_gld4")
for i in range(4):
    A(f"s_mov_b32 m0, s{S_T1}")
    A(f"s_add_u32 s{S_T1}, s{S_T1}, 1024")
    A(f"buffer_load_dwordx4 v13, {SC_}, s{S_T3} offen{NT} lds")
    A(f"s_add_u32 s{S_T3}, s{S_T3}, {16*3584}")
if CFG["mwin"]:
    A(f"s_waitcnt vmcnt({CFG['mwin']})")
A(f"s_add_u32 s{S_T2}, s{S_T2}, 1")
A(f"s_cmp_lt_u32 s{S_T2}, 8")
A("s_cbranch_scc1 L_gld4")
A("s_branch L_gld5")
L("L_gld3")
srd(SRD_C, P_W2, 1792 * 1024)
A("v_lshl_add_u32 v14, v9, 10, v11")
A("v_xor_b32 v15, 32, v14")
A(f"s_lshl_b32 s{S_T3}, s{S_SUB}, 15")
if CFG["touch2"]:
    A(f"s_load_dword s64, s[{P_W2}:{P_W2+1}], s{S_T3}")
    A(f"s_load_dword s65, s[{P_B1}:{P_B1+1}], 0")
A("s_barrier")
A(f"s_mov_b32 s{S_T1}, {L_W2}")
A(f"s_mov_b32 s{S_T2}, 0")
L("L_gld6")
for be in range(8):
    A(f"s_mov_b32 m0, s{S_T1}")
    A(f"s_add_u32 s{S_T1}, s{S_T1}, 1024")
    A(f"s_add_u32 s{S_T4}, s{S_T3}, {be*4096}")
    A(f"buffer_load_dwordx4 v{14 + (be & 1)}, {SC_}, s{S_T4} offen{NT} lds")
    if CFG["mwin"] and be % 4 == 3:
        A(f"s_waitcnt vmcnt({CFG['mwin']})")
A(f"s_add_u32 s{S_T3}, s{S_T3}, 256")
A(f"s_add_u32 s{S_T2}, s{S_T2}, 1")
A(f"s_cmp_lt_u32 s{S_T2}, 4")
A("s_cbranch_scc1 L_gld6")
L("L_gld5")
A("s_waitcnt vmcnt(0)")
stamp(4)
A("s_barrier")
A("s_branch L_exit")

begin("qc")
C("---- q projection: wave 6 loads and computes everything")
post_entry()
srd(SRD_A, P_X, 2048)
A(f"buffer_load_dwordx4 v[16:19], v2, {SA}, 0 offen")
A(f"buffer_load_dwordx4 v[20:23], v2, {SA}, 0 offen offset:1024")
if CFG["touch"]:
    A(f"s_lshl_b32 s{S_T1}, s{S_X}, 4")
    A(f"s_add_u32 s{S_T1}, s{S_T1}, s{S_A}")
    A(f"s_lshl_b32 s{S_T1}, s{S_T1}, 9")
    A(f"s_add_u32 s{S_T1}, s{S_T1}, {WS_XQA}")
    A("s_mov_b32 exec_hi, 0")
    A(f"buffer_load_dwordx4 v[72:75], v2, {WS}, s{S_T1} offen sc1")
    A("s_mov_b32 exec_hi, -1")
srd(SRD_B, P_WQ, 0x400000)
A("v_bfe_u32 v13, v0, 1, 3")
A("v_lshlrev_b32 v13, 13, v13")
A("v_lshl_add_u32 v13, v4, 5, v13")
A("v_lshl_add_u32 v13, v10, 4, v13")
A(f"s_and_b32 s{S_B}, s{S_A}, 1")
A(f"s_lshl_b32 s{S_T0}, s{S_B}, 21")
A(f"s_lshl_b32 s{S_T1}, s{S_X}, 10")
A(f"s_add_u32 s{S_T0}, s{S_T0}, s{S_T1}")
A(f"s_lshr_b32 s{S_T1}, s{S_A}, 1")
A(f"s_lshl_b32 s{S_T1}, s{S_T1}, 7")
A(f"s_add_u32 s{S_T0}, s{S_T0}, s{S_T1}")
A(f"s_mov_b32 s{S_T1}, {L_WQ}")
L("L_qc1")
for i in range(4):
    A(f"s_mov_b32 m0, s{S_T1}")
    A(f"s_add_u32 s{S_T1}, s{S_T1}, 1024")
    A(f"buffer_load_dwordx4 v13, {SB}, s{S_T0} offen{NT} lds")
    A(f"s_add_u32 s{S_T0}, s{S_T0}, 0x10000")
A(f"s_cmp_lt_u32 s{S_T1}, {L_WQ + 32768}")
A("s_cbranch_scc1 L_qc1")
stamp(10)
L("L_dry")
gv_common()
A("v_lshrrev_b32 v12, 2, v0")
A("v_lshlrev_b32 v12, 6, v12")
A("v_lshl_add_u32 v12, v10, 5, v12")
A("v_bfe_u32 v13, v0, 1, 1")
A("v_lshl_add_u32 v12, v13, 3, v12")
A("v_lshlrev_b32 v13, 10, v10")
A("v_lshl_add_u32 v13, v4, 4, v13")
A(f"s_lshl_b32 s{S_T1}, s{S_B}, 9")
A(f"v_add_u32 v13, s{S_T1}, v13")
A("v_lshrrev_b32 v14, 5, v0")
A("v_lshlrev_b32 v14, 10, v14")
A("v_and_b32 v15, 31, v0")
A("v_lshl_add_u32 v14, v15, 3, v14")
C("exchange lane map: n=l&15<8: b=n&1, half2=(n>>1)&1, cs=(n>>2)&1 ; XQ off = cs*256 + b*128 + g*32 + half2*16")
A("v_bfe_u32 v70, v0, 2, 1")
A("v_lshlrev_b32 v69, 6, v70")
A("v_lshl_add_u32 v69, v4, 4, v69")
A("v_lshl_add_u32 v69, v10, 11, v69")
A("v_lshlrev_b32 v70, 8, v70")
A("v_lshl_add_u32 v70, v10, 7, v70")
A("v_lshl_add_u32 v70, v4, 5, v70")
A("v_bfe_u32 v15, v0, 1, 1")
A("v_lshl_add_u32 v70, v15, 4, v70")
A(f"s_lshl_b32 s{S_T5}, s{S_X}, 12")
A(f"s_lshl_b32 s{S_T1}, s{S_A}, 7")
A(f"s_add_u32 s{S_T5}, s{S_T5}, s{S_T1}")
A(f"s_lshl_b32 s{S_T1}, s{S_X}, 4")
A(f"s_add_u32 s{S_T1}, s{S_T1}, s{S_A}")
A(f"s_lshl_b32 s62, s{S_T1}, 9")
A(f"s_xor_b32 s63, s62, 512")
A(f"s_add_u32 s64, s62, {WS_XQB}")
A(f"s_add_u32 s62, s62, {WS_XQA}")
A(f"s_add_u32 s65, s63, {WS_XQB}")
A(f"s_add_u32 s63, s63, {WS_XQA}")
A("s_mov_b32 s66, 0xcccccccc")
A("s_mov_b32 s67, 0xcccccccc")
A("s_mov_b32 s68, 0xf0f0f0f0")
A("s_mov_b32 s69, 0xf0f0f0f0")
stamp(11)
A(f"s_waitcnt vmcnt({32 + CFG['touch']})")
stamp(12)
unpack(24, 16, 4)
unpack(32, 20, 4)
layernorm([24, 32], 2, 44, [16, 20])
A(f"ds_write_b64 v12, v[16:17] offset:{L_XN}")
A(f"ds_write_b64 v12, v[18:19] offset:{L_XN + 16}")
A(f"ds_write_b64 v12, v[20:21] offset:{L_XN + 1024}")
A(f"ds_write_b64 v12, v[22:23] offset:{L_XN + 1024 + 16}")
A("s_waitcnt lgkmcnt(0)")
XA = 96
for kp in range(8):
    A(f"ds_read_b128 v[{XA+4*kp}:{XA+4*kp+3}], v13 offset:{L_XN + kp*64}")
stamp(1)
A("v_mov_b32 v16, 0")
WF = 24
QD = 144
for kp in range(8):
    A(f"s_waitcnt vmcnt({28 - 4*kp})")
    if kp == 7:
        stamp(2)
        A("s_cbranch_execz L_dry1")
        A("s_barrier")
        L("L_dry1")
        A(f"ds_read_b64 v[58:59], v16 offset:{L_TAG}")
        A(f"ds_read_b64 v[62:63], v16 offset:{L_TAG}")
    for ct in range(4):
        for h in range(2):
            r = WF + ((kp & 1) * 4 + ct) * 4 + 2 * h
            A(f"ds_read_b64_tr_b16 v[{r}:{r+1}], v14 offset:{L_WQ + kp*4096 + h*2048 + ct*256}")
    for ct in range(4):
        A(f"s_waitcnt lgkmcnt({6 - 2*ct})")
        mfma(QD + 4 * ct, WF + ((kp & 1) * 4 + ct) * 4, XA + 4 * kp, None if kp == 0 else QD + 4 * ct)
C("select: lo half cts (0,1) -> v[24:25], hi half cts (2,3) -> v[26:27]")
nop(5)
for hf in range(2):
    a, b = QD + 8 * hf, QD + 8 * hf + 4
    for j in range(2):
        A(f"v_cndmask_b32 v{28+j}, v{a+j}, v{a+2+j}, s[66:67]")
        A(f"v_cndmask_b32 v{30+j}, v{b+j}, v{b+2+j}, s[66:67]")
    for j in range(2):
        A(f"v_cndmask_b32 v{24+2*hf+j}, v{28+j}, v{30+j}, s[68:69]")
A("s_cbranch_execz L_dry2")
A(f"s_cmp_eq_u32 s{S_B}, 0")
A(f"s_cselect_b64 vcc, -1, 0")
set_exec(0x00ff00ff00ff00ff)
A("v_cndmask_b32 v56, v24, v26, vcc")
A("v_cndmask_b32 v57, v25, v27, vcc")
A("v_cndmask_b32 v60, v26, v24, vcc")
A("v_cndmask_b32 v61, v27, v25, vcc")
A(f"buffer_store_dwordx4 v[56:59], v70, {WS}, s{63 if CFG['dual'] else 65} offen{'' if CFG['dual'] else ' sc1'}")
stamp(6)
lx, lxe, lxs = newlbl("Lx"), newlbl("Lxe"), newlbl("Lxs")
A(f"s_mov_b32 s{S_TO}, {CFG['timeout']}")
L(lx)
if CFG["dual"]:
    A(f"s_cmp_lg_u32 s{S_TO}, {CFG['timeout'] - 4}")
    A(f"s_cbranch_scc1 {lxs}")
    C("partner not seen through L2 yet: also send the coherent copy")
    A(f"buffer_store_dwordx4 v[56:59], v70, {WS}, s65 offen sc1")
    L(lxs)
A(f"s_and_b32 s{S_T0}, s{S_TO}, 7")
A(f"s_cmp_eq_u32 s{S_T0}, 1")
A(f"s_cselect_b32 s{S_T1}, s64, s{62 if CFG['dual'] else 64}")
A(f"buffer_load_dwordx4 v[24:27], v70, {WS}, s{S_T1} offen sc1")
A(f"s_sub_u32 s{S_TO}, s{S_TO}, 1")
A(f"s_cbranch_scc1 {lxe}")
A("s_waitcnt vmcnt(0)")
A("v_cmp_ne_u64 vcc, v[26:27], v[58:59]")
A("s_cmp_lg_u64 vcc, 0")
A(f"s_cbranch_scc1 {lx}")
L(lxe)
A("s_waitcnt vmcnt(0)")
A("v_pk_add_f32 v[60:61], v[60:61], v[24:25]")
A("v_cvt_pk_bf16_f32 v60, v60, v61")
nop(2)
A("v_mov_b32_dpp v61, v60 quad_perm:[2,3,0,1] row_mask:0xf bank_mask:0xf")
set_exec(0x0033003300330033)
A(f"buffer_store_dwordx4 v[60:63], v69, {WS}, s{S_T5} offen sc1")
if CFG["dual"]:
    C("always leave a coherent copy for the partner")
    set_exec(0x00ff00ff00ff00ff)
    A(f"buffer_store_dwordx4 v[56:59], v70, {WS}, s65 offen sc1")
A("s_mov_b64 exec, -1")
stamp(3)
A("s_branch L_qm1")
begin("qm2")
L("L_qm1")
A(f"s_cmp_eq_u32 s{S_ROLE}, 0")
A("s_cbranch_scc1 L_exit")
A("s_barrier")
A(f"v_mov_b32 v{V_T}, 0")
A(f"ds_read_b64 v[{TT+2}:{TT+3}], v{V_T} offset:{L_TAG}")
A(f"ds_read_b128 v[{V_TG}:{V_TG+3}], v{V_T} offset:{L_TAG + 16}")
A(f"s_cmp_eq_u32 s{S_ROLE}, 2")
A("s_cbranch_scc1 L_F")

C("==== E: wo projection, 8 waves: head=w&3, col half=w>>2; wave gathers records 2w,2w+1")
V_WX = 16
A(f"s_lshl_b32 s{S_T1}, s{S_X}, 4")
A(f"s_lshl_b32 s{S_T2}, s{S_WAVE}, 1")
A(f"s_add_u32 s{S_T1}, s{S_T1}, s{S_T2}")
A(f"s_mul_i32 s{S_T1}, s{S_T1}, {RECP}")
A(f"s_add_u32 s{S_PNA}, s{S_T1}, {WS_PNA if CFG['dual'] else WS_PNB}")
A(f"s_add_u32 s{S_PNB}, s{S_T1}, {WS_PNB}")
EA0, EA1, EA2, EA3, EA4, EA5 = V_T + 36, V_T + 37, V_T + 38, V_T + 39, V_T + 2, V_T + 3
C("stats gather addr: lane<8: (l>>2)*RECP + (l&3)*16 (+1024)")
A(f"v_lshrrev_b32 v{EA0}, 2, v0")
A(f"s_movk_i32 s{S_T2}, {RECP}")
A(f"v_mul_lo_u32 v{EA0}, v{EA0}, s{S_T2}")
A(f"v_and_b32 v{EA1}, 3, v0")
A(f"v_lshl_add_u32 v{EA0}, v{EA1}, 4, v{EA0}")
A(f"s_mul_i32 s{S_T2}, s{S_WAVE}, {2*PNP}")
A(f"s_add_u32 s{S_T2}, s{S_T2}, {L_PS}")
A(f"v_add_u32 v{EA1}, s{S_T2}, v2")
A(f"s_lshl_b32 s{S_T2}, s{S_WAVE}, 7")
A(f"v_add_u32 v{EA2}, s{S_T2}, v2")
A(f"s_and_b32 s{S_T4}, s{S_WAVE}, 3")
A(f"s_lshr_b32 s{S_T5}, s{S_WAVE}, 2")
A(f"s_movk_i32 s{S_T2}, {PNP}")
A(f"v_mul_lo_u32 v{EA3}, v6, s{S_T2}")
A(f"v_lshl_add_u32 v{EA3}, v4, 4, v{EA3}")
A(f"s_lshl_b32 s{S_T2}, s{S_T4}, 6")
A(f"s_add_u32 s{S_T2}, s{S_T2}, {L_PS}")
A(f"v_add_u32 v{EA3}, s{S_T2}, v{EA3}")
A(f"v_lshlrev_b32 v{EA4}, 6, v6")
A(f"s_lshl_b32 s{S_T2}, s{S_T4}, 4")
A(f"v_add_u32 v{EA4}, s{S_T2}, v{EA4}")
A(f"s_lshl_b32 s{S_T2}, s{S_T4}, 9")
A(f"s_lshl_b32 s{S_T3}, s{S_T5}, 8")
A(f"s_add_u32 s{S_T2}, s{S_T2}, s{S_T3}")
A(f"v_lshl_add_u32 v{EA5}, v0, 2, s{S_T2}")
C("weights tr-read addr: WO + hd*16384 + ch*512 + (l>>5)*1024 + (l&31)*8")
A(f"v_lshrrev_b32 v{TT}, 5, v0")
A(f"v_lshlrev_b32 v{TT}, 10, v{TT}")
A(f"v_and_b32 v{TT+1}, 31, v0")
A(f"v_lshl_add_u32 v{TT}, v{TT+1}, 3, v{TT}")
A(f"s_lshl_b32 s{S_T2}, s{S_T4}, 14")
A(f"s_lshl_b32 s{S_T3}, s{S_T5}, 9")
A(f"s_add_u32 s{S_T2}, s{S_T2}, s{S_T3}")
A(f"s_add_u32 s{S_T2}, s{S_T2}, {L_WO}")
A(f"v_add_u32 v{TT}, s{S_T2}, v{TT}")
A(f"v_mul_u32_u24 v{V_T+32}, 80, v4")
C("final-stage addresses (wave 0, lanes<32): RED read / AP write")
A(f"v_bfe_u32 v{V_T+33}, v0, 3, 1")
A(f"v_lshlrev_b32 v{V_T+33}, 8, v{V_T+33}")
A(f"v_lshl_add_u32 v{V_T+33}, v4, 7, v{V_T+33}")
A(f"v_and_b32 v{V_T+34}, 7, v0")
A(f"v_lshl_add_u32 v{V_T+33}, v{V_T+34}, 4, v{V_T+33}")
A(f"v_lshlrev_b32 v{V_T+34}, 11, v4")
A(f"v_lshl_add_u32 v{V_T+34}, v6, 4, v{V_T+34}")
A(f"s_lshl_b32 s{S_NT}, s{S_X}, 12")
A(f"s_lshl_b32 s{S_T1}, s{S_SUB}, 8")
A(f"s_add_u32 s{S_NT}, s{S_NT}, s{S_T1}")
A(f"s_add_u32 s{S_NT}, s{S_NT}, {WS_AP}")
if CFG["dry3"]:
    A("s_waitcnt lgkmcnt(0)")
    A("s_mov_b64 exec, 0")
    A("s_branch L_edry")
L("L_eret")
A("s_waitcnt vmcnt(0) lgkmcnt(0)")
A("s_barrier")
stamp(4)
L("L_edry")
C("DRY{")
for kp in range(4):
    for c in range(2):
        for h in range(2):
            r = V_WX + (kp * 2 + c) * 4 + 2 * h
            A(f"ds_read_b64_tr_b16 v[{r}:{r+1}], v{TT} offset:{kp*4096 + h*2048 + c*256}")
SG = V_G + 8
le, lee = newlbl("Le"), newlbl("Lee")
A(f"s_mov_b32 s{S_TO}, {CFG['timeout']}")
L(le)
A(f"s_and_b32 s{S_T0}, s{S_TO}, {CFG['bmask']}")
A(f"s_cmp_eq_u32 s{S_T0}, 1")
A(f"s_cselect_b32 s{S_T1}, s{S_PNB}, s{S_PNA}")
A(f"v_mov_b32 v{SG+2}, v{TT+2}")
A(f"v_mov_b32 v{SG+3}, v{TT+3}")
A("s_mov_b64 exec, 0xff")
A(f"buffer_load_dwordx4 v[{SG}:{SG+3}], v{EA0}, {WS}, s{S_T1} offen offset:1024 sc1")
A("s_mov_b64 exec, -1")
for i in range(2):
    r = V_G + i * 4
    A(f"buffer_load_dwordx4 v[{r}:{r+3}], v2, {WS}, s{S_T1} offen offset:{i*RECP} sc1")
A(f"s_sub_u32 s{S_TO}, s{S_TO}, 1")
A(f"s_cbranch_scc1 {lee}")
A("s_waitcnt vmcnt(0)")
tree3("v_max3_u32", "v_max_u32", range(V_G, V_G + 8), TT)
A(f"v_cmp_eq_u32 vcc, -1, v{TT}")
A(f"v_cmp_ne_u64 s[{S_T2}:{S_T3}], v[{SG+2}:{SG+3}], v[{TT+2}:{TT+3}]")
A(f"s_or_b64 vcc, vcc, s[{S_T2}:{S_T3}]")
A(f"s_cbranch_scc1 {le}")
L(lee)
A("s_waitcnt vmcnt(0)")
stamp(7)
for i in range(2):
    r = V_G + i * 4
    A(f"ds_write_b128 v{EA1}, v[{r}:{r+3}] offset:{i*PNP}")
A("s_mov_b64 exec, 0xff")
A(f"ds_write_b128 v{EA2}, v[{SG}:{SG+3}] offset:{L_STS}")
A("s_mov_b64 exec, -1")
A("s_waitcnt lgkmcnt(0)")
A("s_barrier")
SM0 = V_T + 4
MG = V_T + 8
FW = V_T + 24
A(f"ds_read_b64 v[{SM0}:{SM0+1}], v{EA4} offset:{L_STS}")
for kp in range(4):
    r = V_G + kp * 4
    A(f"ds_read_b128 v[{r}:{r+3}], v{EA3} offset:{kp*256}")
EA = V_S
A("s_waitcnt lgkmcnt(4)")
A(f"v_mov_b32 v{MG}, v{SM0}")
R8 = ROW_ALL[:3]
fill = []
for c in R8:
    fill.append(["s_nop 0", f"v_max_f32_dpp v{MG}, v{MG}, v{MG} {c} row_mask:0xf bank_mask:0xf"])
fill.append([f"v_sub_f32 v{SM0}, v{SM0}, v{MG}", f"v_exp_f32 v{SM0}, v{SM0}", "s_nop 0", f"v_mul_f32 v{MG}, v{SM0}, v{SM0+1}"])
for c in R8:
    fill.append(["s_nop 0", f"v_add_f32_dpp v{MG}, v{MG}, v{MG} {c} row_mask:0xf bank_mask:0xf"])
fill.append([f"v_rcp_f32 v{MG}, v{MG}", "s_nop 0", f"v_mul_f32 v{SM0}, v{SM0}, v{MG}"])
fi = 0
for kp in range(4):
    A(f"s_waitcnt lgkmcnt({3-kp})")
    for c in range(2):
        d = EA + c * 4
        mfma(d, V_G + kp * 4, V_WX + (kp * 2 + c) * 4, None if kp == 0 else d)
        for ins in fill[fi]:
            A(ins)
        fi += 1
assert fi == len(fill)
for r in range(4):
    A(f"ds_bpermute_b32 v{FW+r}, v{V_T+32}, v{SM0} offset:{4*r}")
A("s_waitcnt lgkmcnt(0)")
for c in range(2):
    d = EA + 4 * c
    A(f"v_mul_f32 v{d}, v{d}, v{FW}")
    A(f"v_mul_f32 v{d+2}, v{d+2}, v{FW+2}")
    A(f"v_fmac_f32 v{d}, v{d+1}, v{FW+1}")
    A(f"v_fmac_f32 v{d+2}, v{d+3}, v{FW+3}")
for c in range(2):
    d = EA + 4 * c
    A(f"v_add_f32 v{d}, v{d}, v{d+2}")
nop(2)
A(f"v_permlane16_swap_b32 v{EA}, v{EA+4}")
A(f"v_add_f32 v{EA}, v{EA}, v{EA+4}")
A(f"ds_write_b32 v{EA5}, v{EA} offset:{L_RED}")
A("s_waitcnt lgkmcnt(0)")
A("s_barrier")
A(f"s_cmp_lg_u32 s{S_WAVE}, 0")
A("s_cbranch_scc1 L_exit")
A("s_mov_b32 exec_hi, 0")
for i in range(4):
    A(f"ds_read_b128 v[{V_G+4*i}:{V_G+4*i+3}], v{V_T+33} offset:{L_RED + i*512}")
A("s_waitcnt lgkmcnt(0)")
for j in (0, 2):
    A(f"v_pk_add_f32 v[{V_G+j}:{V_G+j+1}], v[{V_G+j}:{V_G+j+1}], v[{V_G+4+j}:{V_G+5+j}]")
    A(f"v_pk_add_f32 v[{V_G+8+j}:{V_G+9+j}], v[{V_G+8+j}:{V_G+9+j}], v[{V_G+12+j}:{V_G+13+j}]")
for j in (0, 2):
    A(f"v_pk_add_f32 v[{V_G+j}:{V_G+j+1}], v[{V_G+j}:{V_G+j+1}], v[{V_G+8+j}:{V_G+9+j}]")
tag(V_G, V_TG)
A(f"buffer_store_dwordx4 v[{V_G}:{V_G+3}], v{V_T+34}, {WS}, s{S_NT} offen sc1")
stamp(8)
A("s_branch L_exit")

C("}DRY")
L("L_F")
C("==== F: MLP. 8 waves gather (b=w>>2, 128-col quarter q=w&3); waves 0..3 also do w1/gelu/w2")
V_W2 = 128
FG = 48
HX = 64
C("x[b][128q + 4(l&31)..] ; b1[mi*32 + (l&31)]")
srd(SRD_A, P_X, 2048)
A("v_and_b32 v12, 31, v0")
A("v_lshlrev_b32 v13, 3, v12")
A(f"s_lshl_b32 s{S_T0}, s{S_WAVE}, 8")
A(f"buffer_load_dwordx2 v[{V_SM}:{V_SM+1}], v13, {SA}, s{S_T0} offen")
srd(SRD_C, P_B1, 3584)
A("v_lshlrev_b32 v13, 1, v12")
A(f"s_lshl_b32 s{S_T0}, s{S_SUB}, 6")
A(f"buffer_load_ushort v{V_SM+2}, v13, {SC_}, s{S_T0} offen")
C("gather addr: (l>>5)*4096 + (l&31)*16 ; soffset = AP + w*512 + i*8192")
GAD, HA, STW, STR = V_T, V_T + 1, V_T + 2, V_T + 3
A(f"v_lshrrev_b32 v{GAD}, 5, v0")
A(f"v_lshlrev_b32 v{GAD}, 12, v{GAD}")
A(f"v_lshl_add_u32 v{GAD}, v12, 4, v{GAD}")
A(f"s_lshl_b32 s{S_T0}, s{S_WAVE}, 9")
A(f"s_add_u32 s{S_T0}, s{S_T0}, {WS_AP}")
SX = 62
for i in range(4):
    A(f"s_add_u32 s{SX+i}, s{S_T0}, {i*8192}")
C("hn write addr (cols 4j.., j=l&31): w*256 + (j>>3)*64 + (j&3)*16 + ((j>>2)&1)*8")
A(f"v_lshrrev_b32 v{HA}, 3, v12")
A(f"v_lshlrev_b32 v{HA}, 6, v{HA}")
A("v_and_b32 v13, 3, v0")
A(f"v_lshl_add_u32 v{HA}, v13, 4, v{HA}")
A("v_bfe_u32 v13, v0, 2, 1")
A(f"v_lshl_add_u32 v{HA}, v13, 3, v{HA}")
A(f"s_lshl_b32 s{S_T0}, s{S_WAVE}, 8")
A(f"v_add_u32 v{HA}, s{S_T0}, v{HA}")
C("LN stats exchange: STS + w*8 ; read STS + b*32 (sentinel initialised)")
A(f"s_lshl_b32 s{S_T0}, s{S_WAVE}, 3")
A(f"v_mov_b32 v{STW}, s{S_T0}")
A(f"s_lshr_b32 s{S_T0}, s{S_WAVE}, 2")
A(f"s_lshl_b32 s{S_T0}, s{S_T0}, 5")
A(f"v_mov_b32 v{STR}, s{S_T0}")
A("v_mov_b32 v14, -1")
A("v_mov_b32 v15, -1")
A(f"ds_write_b64 v{STW}, v[14:15] offset:{L_STS}")
C("compute-wave addresses")
vw2_addr()
A(f"s_lshl_b32 s{S_T0}, s{S_WAVE}, 13")
A(f"s_add_u32 s{S_T1}, s{S_T0}, {L_W2}")
A(f"v_add_u32 v{VB0}, s{S_T1}, v{VA0}")
A(f"v_add_u32 v{VB1}, s{S_T1}, v{VA1}")
A(f"s_add_u32 s{S_T1}, s{S_T0}, {L_WX}")
A(f"v_lshl_add_u32 v{TT}, v0, 3, s{S_T1}")
A0, A1, A2, YAD = V_T + 36, V_T + 37, V_T + 38, V_T + 39
A(f"v_lshlrev_b32 v{A0}, 10, v10")
A(f"v_lshl_add_u32 v{A0}, v4, 4, v{A0}")
A(f"s_lshl_b32 s{S_T0}, s{S_WAVE}, 8")
A(f"v_add_u32 v{A0}, s{S_T0}, v{A0}")
A(f"v_lshlrev_b32 v{A1}, 7, v6")
A(f"v_lshl_add_u32 v{A1}, v4, 4, v{A1}")
A(f"v_add_u32 v{A1}, s{S_T0}, v{A1}")
C("h1 write addr: lane (b=l>>5, c=l&31): H1 + w*128 + b*64 + ((c>>2)&3)*16 + (c>>4)*8 + (c&3)*2")
A(f"v_lshrrev_b32 v{A2}, 5, v0")
A(f"v_lshlrev_b32 v{A2}, 6, v{A2}")
A("v_bfe_u32 v13, v0, 2, 2")
A(f"v_lshl_add_u32 v{A2}, v13, 4, v{A2}")
A("v_bfe_u32 v13, v0, 4, 1")
A(f"v_lshl_add_u32 v{A2}, v13, 3, v{A2}")
A("v_and_b32 v13, 3, v0")
A(f"v_lshl_add_u32 v{A2}, v13, 1, v{A2}")
A(f"s_lshl_b32 s{S_T1}, s{S_WAVE}, 7")
A(f"s_add_u32 s{S_T1}, s{S_T1}, {L_H1}")
A(f"v_add_u32 v{A2}, s{S_T1}, v{A2}")
C("B_ct operand addresses: (n>>1)==ct ? H1 + w*128 + (n&1)*64 + g*16 : ZERO")
BA = V_T + 24
A("v_lshlrev_b32 v13, 6, v10")
A("v_lshl_add_u32 v13, v4, 4, v13")
A(f"v_add_u32 v13, s{S_T1}, v13")
A(f"v_mov_b32 v14, {L_ZERO}")
A("v_bfe_u32 v15, v0, 1, 3")
for ct in range(8):
    A(f"v_cmp_eq_u32 vcc, {ct}, v15")
    A("s_nop 1")
    A(f"v_cndmask_b32 v{BA+ct}, v14, v13, vcc")
for j in range(4):
    A(f"v_mov_b32 v{16+j}, 0")
A(f"ds_write_b128 v14, v[16:19]")
C("Y store addr: (n&1)*2048 + (n>>1)*64 + g*16 ; soff = Y + mi*YP + w*512")
A(f"v_lshlrev_b32 v{YAD}, 11, v10")
A(f"v_lshl_add_u32 v{YAD}, v15, 6, v{YAD}")
A(f"v_lshl_add_u32 v{YAD}, v4, 4, v{YAD}")
S_Y = 70
A(f"s_mul_i32 s{S_Y}, s{S_SUB}, {YP}")
A(f"s_lshl_b32 s{S_T1}, s{S_WAVE}, 9")
A(f"s_add_u32 s{S_Y}, s{S_Y}, s{S_T1}")
A(f"s_add_u32 s{S_Y}, s{S_Y}, {WS_Y}")
A("v_lshlrev_b32 v3, 2, v0")
if CFG["dry3"]:
    A("s_waitcnt lgkmcnt(0)")
    A("s_mov_b64 exec, 0")
    A("s_branch L_fdry")
L("L_fret")
A("s_waitcnt vmcnt(0) lgkmcnt(0)")
unpack(HX, V_SM, 2)
A(f"v_lshlrev_b32 v{V_SM+2}, 16, v{V_SM+2}")
A("s_barrier")
stamp(4)
L("L_fdry")
C("DRY{")
A(f"s_cmp_ge_u32 s{S_WAVE}, 4")
A("s_cbranch_scc1 L_F1")
for kp in range(4):
    for ct in range(2):
        for h in range(2):
            r = V_WX + (kp * 2 + ct) * 4 + 2 * h
            A(f"ds_read_b64_tr_b16 v[{r}:{r+1}], v{TT} offset:{kp*2048 + h*1024 + ct*512}")
A("s_waitcnt lgkmcnt(0)")
for ct in range(8):
    for h in range(2):
        r = V_W2 + ct * 4 + 2 * h
        A(f"ds_read_b64_tr_b16 v[{r}:{r+1}], v{VB0 + (ct & 1)} offset:{(ct >> 1)*256 + h*4096}")
L("L_F1")


def f_loads():
    for i in range(4):
        r = FG + i * 4
        A(f"buffer_load_dwordx4 v[{r}:{r+3}], v{GAD}, {WS}, s{SX+i} offen sc1")


tpoll(f_loads, range(FG, FG + 16), TT, V_TG, CFG['fsl'])
stamp(7)
for j in (0, 2):
    A(f"v_pk_add_f32 v[{FG+j}:{FG+j+1}], v[{FG+j}:{FG+j+1}], v[{FG+4+j}:{FG+5+j}]")
    A(f"v_pk_add_f32 v[{FG+8+j}:{FG+9+j}], v[{FG+8+j}:{FG+9+j}], v[{FG+12+j}:{FG+13+j}]")
for j in (0, 2):
    A(f"v_pk_add_f32 v[{FG+j}:{FG+j+1}], v[{FG+j}:{FG+j+1}], v[{FG+8+j}:{FG+9+j}]")
swap_steps("v_add_f32", [FG + j for j in range(4)], [FG + 4 + j for j in range(4)], which=(32,))
HP = FG + 8
pack(HP, FG, 2)
unpack(FG, HP, 2)
for j in range(4):
    A(f"v_add_f32 v{HX+j}, v{HX+j}, v{FG+j}")
pack(HP, HX, 2)
unpack(HX, HP, 2)
C("local stats around pivot c = h[first]")
A("s_nop 0")
A(f"v_readfirstlane_b32 s{S_T2}, v{HX}")
A("s_nop 1")
for j in range(4):
    A(f"v_subrev_f32 v{FG+j}, s{S_T2}, v{HX+j}")
SS, SQ = FG + 10, FG + 11
A(f"v_add_f32 v{SS}, v{FG}, v{FG+1}")
A(f"v_mul_f32 v{SQ}, v{FG}, v{FG}")
A(f"v_add_f32 v{FG+4}, v{FG+2}, v{FG+3}")
A(f"v_fmac_f32 v{SQ}, v{FG+1}, v{FG+1}")
A(f"v_add_f32 v{SS}, v{SS}, v{FG+4}")
A(f"v_fmac_f32 v{SQ}, v{FG+2}, v{FG+2}")
A(f"v_fmac_f32 v{SQ}, v{FG+3}, v{FG+3}")
nop(1)
dpp_steps("v_add_f32", [SS, SQ], ROW_ALL)
swap_steps("v_add_f32", [SS, SQ], [FG + 4, FG + 5], which=(16,))
C("mean_w = c + s/128 ; M2_w = ss - s*s/128")
A(f"v_mul_f32 v{FG+4}, {f2u(1.0/128):#x}, v{SS}")
A(f"v_fma_f32 v{SQ}, -v{FG+4}, v{SS}, v{SQ}")
A(f"v_add_f32 v{SS}, s{S_T2}, v{FG+4}")
A("s_mov_b64 exec, 1")
A(f"ds_write_b64 v{STW}, v[{SS}:{SQ}] offset:{L_STS}")
A("s_mov_b64 exec, -1")
l3, l3e = newlbl("Lst"), newlbl("Lste")
A(f"s_mov_b32 s{S_TO}, {CFG['timeout']}")
L(l3)
A(f"ds_read_b128 v[{FG}:{FG+3}], v{STR} offset:{L_STS}")
A(f"ds_read_b128 v[{FG+4}:{FG+7}], v{STR} offset:{L_STS + 16}")
A(f"s_sub_u32 s{S_TO}, s{S_TO}, 1")
A(f"s_cbranch_scc1 {l3e}")
A("s_waitcnt lgkmcnt(0)")
tree3("v_max3_u32", "v_max_u32", range(FG, FG + 8), TT)
A(f"v_cmp_eq_u32 vcc, -1, v{TT}")
A("s_cmp_lg_u64 vcc, 0")
A(f"s_cbranch_scc1 {l3}")
L(l3e)
A("s_waitcnt lgkmcnt(0)")
MEAN, VAR, TM = FG + 8, FG + 9, FG + 10
A(f"v_add_f32 v{MEAN}, v{FG}, v{FG+2}")
A(f"v_add_f32 v{TM}, v{FG+4}, v{FG+6}")
A(f"v_add_f32 v{VAR}, v{FG+1}, v{FG+3}")
A(f"v_add_f32 v{MEAN}, v{MEAN}, v{TM}")
A(f"v_add_f32 v{TM}, v{FG+5}, v{FG+7}")
A(f"v_mul_f32 v{MEAN}, 0.25, v{MEAN}" if False else f"v_mul_f32 v{MEAN}, {f2u(0.25):#x}, v{MEAN}")
A(f"v_add_f32 v{VAR}, v{VAR}, v{TM}")
for j in range(4):
    A(f"v_sub_f32 v{FG+2*j}, v{FG+2*j}, v{MEAN}")
A(f"v_mul_f32 v{TM}, v{FG}, v{FG}")
for j in range(1, 4):
    A(f"v_fmac_f32 v{TM}, v{FG+2*j}, v{FG+2*j}")
A(f"v_mul_f32 v{VAR}, {f2u(1.0/512):#x}, v{VAR}")
A(f"v_fmac_f32 v{VAR}, {f2u(0.25):#x}, v{TM}")
bf16r(MEAN, MEAN)
bf16r(VAR, VAR)
for j in range(4):
    A(f"v_sub_f32 v{FG+j}, v{HX+j}, v{MEAN}")
A(f"v_add_f32 v{VAR}, {f2u(1e-5):#x}, v{VAR}")
pack(HP + 4, FG, 2)
bf16r(VAR, VAR)
unpack(FG, HP + 4, 2)
A(f"v_sqrt_f32 v{VAR}, v{VAR}")
nop(1)
bf16r(VAR, VAR)
A(f"v_rcp_f32 v{VAR}, v{VAR}")
nop(1)
for j in range(4):
    A(f"v_mul_f32 v{FG+j}, v{FG+j}, v{VAR}")
pack(HP + 4, FG, 2)
A("s_mov_b32 exec_hi, 0")
A(f"ds_write_b64 v{HA}, v[{HP+4}:{HP+5}] offset:{L_HN}")
A("s_mov_b32 exec_hi, -1")
c0 = math.sqrt(2.0 / math.pi)
k0 = -2.0 * c0 * LOG2E
k1 = k0 * 0.044715
A(f"s_mov_b32 s{S_T1}, {f2u(k1):#x}")
A(f"v_mov_b32 v{TT}, {f2u(k0):#x}")
A("s_waitcnt lgkmcnt(0)")
A("s_barrier")
stamp(8)
A(f"s_cmp_ge_u32 s{S_WAVE}, 4")
A("s_cbranch_scc1 L_exit")
for kp in range(4):
    A(f"ds_read_b128 v[{V_Q+4*kp}:{V_Q+4*kp+3}], v{A0} offset:{L_HN + kp*64}")
for kp in range(4):
    A(f"s_waitcnt lgkmcnt({3-kp})")
    for ct in range(2):
        mfma(V_S + 4 * ct, V_WX + (kp * 2 + ct) * 4, V_Q + 4 * kp, None if kp == 0 else V_S + 4 * ct)
nop(6)
set_exec(MASK_N2)
A(f"ds_write_b128 v{A1}, v[{V_S}:{V_S+3}] offset:{L_RED}")
A(f"ds_write_b128 v{A1}, v[{V_S+4}:{V_S+7}] offset:{L_RED + 64}")
A("s_mov_b64 exec, -1")
A("s_waitcnt lgkmcnt(0)")
A("s_barrier")
U = 16
for wp in range(4):
    A(f"ds_read_b32 v{U+wp}, v3 offset:{L_RED + wp*256}")
A("s_waitcnt lgkmcnt(0)")
A(f"v_add_f32 v{U}, v{U}, v{U+1}")
A(f"v_add_f32 v{U+2}, v{U+2}, v{U+3}")
A(f"v_add_f32 v{U}, v{U}, v{U+2}")
bf16r(U, U)
A(f"v_add_f32 v{U}, v{U}, v{V_SM+2}")
bf16r(U, U)
A(f"v_mul_f32 v{U+1}, v{U}, v{U}")
A(f"v_fma_f32 v{U+1}, v{U+1}, s{S_T1}, v{TT}")
A(f"v_mul_f32 v{U+1}, v{U+1}, v{U}")
A(f"v_exp_f32 v{U+1}, v{U+1}")
nop(1)
A(f"v_add_f32 v{U+1}, 1.0, v{U+1}")
A(f"v_rcp_f32 v{U+1}, v{U+1}")
nop(1)
A(f"v_mul_f32 v{U}, v{U}, v{U+1}")
A(f"v_cvt_pk_bf16_f32 v{U}, v{U}, v{U}")
A(f"ds_write_b16 v{A2}, v{U}")
BO = 32
for ct in range(8):
    A(f"ds_read_b128 v[{BO+4*ct}:{BO+4*ct+3}], v{BA+ct}")
YA = 24
for ct in range(8):
    A(f"s_waitcnt lgkmcnt({7-ct})")
    mfma(YA, V_W2 + 4 * ct, BO + 4 * ct, None if ct == 0 else YA)
nop(8)
tag(YA, V_TG)
A(f"buffer_store_dwordx4 v[{YA}:{YA+3}], v{YAD}, {WS}, s{S_Y} offen sc1")
stamp(9)
A("s_branch L_exit")
C("}DRY")
if CFG["dry2"]:
    for r, ret in ((1, "L_kret"), (2, "L_eret"), (3, "L_fret")):
        L(f"L_exit_{r}")
        A("s_cbranch_execnz L_exit")
        A("s_mov_b64 exec, -1")
        A(f"s_branch {ret}")
L("L_exit")
stamp_flush()
L("L_end")
A("s_endpgm")

out.append(f""".section .rodata,"a"
.p2align 6
.amdhsa_kernel {NAME}_kernel
  .amdhsa_next_free_vgpr 168
  .amdhsa_next_free_sgpr 102
  .amdhsa_accum_offset 168
  .amdhsa_group_segment_fixed_size 0
  .amdhsa_kernarg_size 104
  .amdhsa_user_sgpr_count 2
  .amdhsa_user_sgpr_kernarg_segment_ptr 1
  .amdhsa_system_sgpr_workgroup_id_x 1
.end_amdhsa_kernel""")

order = CFG_ORDER
lines = [l for b in order for l in BLK[b]]


def dry_pass(lines):
    res, indry, k = [], False, 0
    i = 0

    def is_mem(t):
        return t.startswith(("buffer_", "global_", "s_load", "s_atomic", "s_barrier"))

    def exec_write(t):
        return t.startswith(("s_mov_b64 exec", "s_mov_b32 exec", "s_and_b64 exec"))

    def restores(t):
        return t in ("s_mov_b64 exec, -1", "s_mov_b32 exec_hi, -1")
    open_span, masked, nd = None, False, False
    for l in lines:
        t = l.strip()
        if t == "; DRY{":
            indry = True
            i += 1
            continue
        if t == "; }DRY":
            assert open_span is None or True
            if open_span:
                res.append(open_span + ":")
                open_span = None
            masked = False
            indry = False
            continue
        if not (indry and CFG["dry2"]):
            if t not in ("; ND{", "; }ND"):
                res.append(l)
            continue
        if t == "; ND{":
            nd = True
            if not open_span:
                k += 1
                open_span = f"L_sk{k}"
                res.append(f"    s_cbranch_execz {open_span}")
            continue
        if t == "; }ND":
            nd = False
            continue
        unsafe = nd or masked or is_mem(t) or exec_write(t)
        if masked and t == "s_branch L_exit":
            unsafe = False
            masked = False
        if t.endswith(" L_exit"):
            l = l + f"_{i}"
        if unsafe:
            if not open_span:
                k += 1
                open_span = f"L_sk{k}"
                res.append(f"    s_cbranch_execz {open_span}")
            res.append(l)
            if exec_write(t):
                masked = not restores(t)
        else:
            if open_span:
                res.append(open_span + ":")
                open_span = None
            res.append(l)
    return res


print("\n".join(dry_pass(lines)))
```

```python
import sys, struct, math

NAME = "sequential_preLN__sliding_block_cached__dense_activation_gelu__decode"

CFG = dict(nt=1, timeout=1 << 18, stamps=0, dual=1, tsleep0=10, tsleep=3, tsleepa=24, qsleep=0, mwin=4, touch=1, bmask=15, fsl=0, g1sl=0, g2sl=0, pf=29, pfw=16, touch2=1, kb0=6, kthm=0, kthn=8, dry=1, dry2=1, dry3=1, korder=0)
for a in sys.argv[1:]:
    if "=" in a:
        k, v = a.split("=")
        CFG[k] = int(v)
NT = " nt" if CFG["nt"] else ""

WS_Q = 0x00000
RECP = 1152
WS_PNA = 0x10000
WS_PNB = 0x50000
WS_XQA = 0x90000
WS_XQB = 0x80000
WS_AP = 0xA8000
WS_Y = 0xB0000
YP = 4096 + 128
WS_TS = 0xF0000
WS_SIZE = 0x200000

L_QL = 0
L_XN = 0
L_SC = 2048
L_QR = 2048
L_HN = 4096
L_RED = 6144
L_STS = 8192
L_QS = 9216
L_H1 = 9216
L_ZERO = 9728
L_MX = 10240
L_LS = 10368
L_FLAG = 10496
L_TAG = 10512
L_FL2 = 10544
L_DUM = 10560
BIG = 11264
L_K = BIG
L_V = BIG + 65536
L_WQ = BIG
L_WO = BIG + 32768
L_WX = BIG + 32768
L_W2 = BIG + 65536
L_PS = BIG + 98304
PNP = 1040
LDS_BYTES = BIG + 131072

LOG2E = 1.4426950408889634
SCALE = 128 ** -0.5


def f2u(f):
    return struct.unpack("<I", struct.pack("<f", f))[0]


out = []


def A(s):
    out.append("    " + s)


def L(s):
    out.append(s + ":")


def C(s):
    out.append("    ; " + s)


def nop(n):
    while n > 0:
        k = min(n, 16)
        A(f"s_nop {k-1}")
        n -= k


_lbl = [0]


def newlbl(p="L"):
    _lbl[0] += 1
    return f"{p}_{_lbl[0]}"


P_X, P_K, P_V, P_WQ, P_WO, P_BX, P_W1, P_B1, P_W2, P_B2, P_OUT, P_DBG, P_WS = [36 + 2 * i for i in range(13)]
S_WAVE, S_X, S_A, S_B, S_SPL = 3, 4, 5, 6, 7
SRD_WS, SRD_A, SRD_B, SRD_C = 8, 12, 16, 20
S_T0, S_T1, S_T2, S_T3, S_T4, S_T5 = 24, 25, 26, 27, 28, 29
S_TO, S_ROLE, S_SUB, S_NT, S_PNA, S_PNB = 30, 31, 32, 33, 34, 35
S_Q = 36
S_TG = 100
WS = f"s[{SRD_WS}:{SRD_WS+3}]"
SA = f"s[{SRD_A}:{SRD_A+3}]"
SB = f"s[{SRD_B}:{SRD_B+3}]"
SC_ = f"s[{SRD_C}:{SRD_C+3}]"
V_ST = 1
S_DRY = 7
CFG_ORDER = ["head", "qc", "ldr", "gv", "att", "qm2"]
V_MSK = 5


def srd(d, p, size):
    A(f"s_mov_b32 s{d}, s{p}")
    A(f"s_mov_b32 s{d+1}, s{p+1}")
    A(f"s_mov_b32 s{d+2}, {size:#x}")
    A(f"s_mov_b32 s{d+3}, 0x00020000")


def stamp(slot):
    if CFG["stamps"]:
        A("s_memrealtime s[0:1]")
        A("s_waitcnt lgkmcnt(0)")
        A(f"v_writelane_b32 v{V_ST}, s0, {slot}")


def stamp_flush():
    if not CFG["stamps"]:
        return
    if CFG["stamps"] == 2:
        A("s_mov_b64 exec, -1")
        A(f"v_mov_b32 v2, {L_TAG}")
        A("ds_read_b32 v3, v2")
        A("s_waitcnt lgkmcnt(0)")
        A(f"v_sub_u32 v3, v{V_ST}, v3")
        A("v_max_i32 v3, 0, v3")
        A("v_lshlrev_b32 v2, 2, v0")
        A("v_add_co_u32 v166, vcc, v166, v2")
        A("v_addc_co_u32 v167, vcc, 0, v167, vcc")
        A(f"v_cmp_ne_u32 vcc, 0, v{V_ST}")
        A("s_bitcmp1_b32 vcc_lo, 11")
        A("s_cbranch_scc0 L_end")
        A("s_and_b64 exec, vcc, 0x1fff")
        A("s_cbranch_execz L_end")
        A("global_atomic_umax v[166:167], v3, off offset:8")
        return
    A("s_mov_b64 exec, -1")
    A("s_lshl_b32 s0, s2, 10")
    A(f"s_lshl_b32 s1, s{S_WAVE}, 6")
    A("s_add_u32 s0, s0, s1")
    A(f"s_add_u32 s0, s0, {WS_TS}")
    A("v_lshlrev_b32 v2, 2, v0")
    A("s_mov_b64 exec, 0xffff")
    A(f"buffer_store_dword v{V_ST}, v2, {WS}, s0 offen")


def dpp_steps(op, regs, ctrls):
    for c in ctrls:
        pad = max(0, 2 - (len(regs) - 1))
        if pad:
            nop(pad)
        for r in regs:
            A(f"{op}_dpp v{r}, v{r}, v{r} {c} row_mask:0xf bank_mask:0xf")


ROW_ALL = ["quad_perm:[1,0,3,2]", "quad_perm:[2,3,0,1]", "row_half_mirror", "row_mirror"]
ROW_HI = ["row_ror:4", "row_ror:8"]


def swap_steps(op, regs, tmps, which=(16, 32)):
    for wd in which:
        sw = f"v_permlane{wd}_swap_b32"
        for r, t in zip(regs, tmps):
            A(f"v_mov_b32 v{t}, v{r}")
        pad = max(0, 2 - (len(regs) - 1))
        if pad:
            nop(pad)
        for r, t in zip(regs, tmps):
            A(f"{sw} v{r}, v{t}")
        for r, t in zip(regs, tmps):
            A(f"{op} v{r}, v{r}, v{t}")


def allreduce(op, regs, tmps):
    nop(2)
    dpp_steps(op, regs, ROW_ALL)
    swap_steps(op, regs, tmps)


def lds_wait(flag_off, vt, va, sleep=0):
    l, e = newlbl("Lw"), newlbl("Lwe")
    A(f"v_mov_b32 v{va}, {flag_off}")
    A(f"s_mov_b32 s{S_TO}, {CFG['timeout']}")
    L(l)
    if sleep:
        A(f"s_sleep {sleep}")
    A(f"ds_read_b32 v{vt}, v{va}")
    A(f"s_sub_u32 s{S_TO}, s{S_TO}, 1")
    A(f"s_cbranch_scc1 {e}")
    A("s_waitcnt lgkmcnt(0)")
    A(f"v_readfirstlane_b32 s{S_T0}, v{vt}")
    A(f"s_cmp_eq_u32 s{S_T0}, 0")
    A(f"s_cbranch_scc1 {l}")
    L(e)
    A("s_waitcnt lgkmcnt(0)")


def lds_set(flag_off, vt, va):
    A("s_waitcnt lgkmcnt(0)")
    A(f"v_mov_b32 v{va}, {flag_off}")
    A(f"v_mov_b32 v{vt}, 1")
    A(f"ds_write_b32 v{va}, v{vt}")


def lds_sync(cnt_off, n, vt, va):
    l, e = newlbl("Ls"), newlbl("Lse")
    A(f"v_mov_b32 v{va}, {cnt_off}")
    A(f"v_mov_b32 v{vt}, 1")
    A("s_mov_b64 exec, 1")
    A(f"ds_add_u32 v{va}, v{vt}")
    A("s_mov_b64 exec, -1")
    A(f"s_mov_b32 s{S_TO}, {CFG['timeout']}")
    L(l)
    A(f"ds_read_b32 v{vt}, v{va}")
    A(f"s_sub_u32 s{S_TO}, s{S_TO}, 1")
    A(f"s_cbranch_scc1 {e}")
    A("s_waitcnt lgkmcnt(0)")
    A(f"v_readfirstlane_b32 s{S_T0}, v{vt}")
    A(f"s_cmp_lt_u32 s{S_T0}, {n}")
    A(f"s_cbranch_scc1 {l}")
    L(e)
    A("s_waitcnt lgkmcnt(0)")


def tree3(op3, op2, regs, t):
    regs = list(regs)
    A(f"{op3} v{t}, v{regs[0]}, v{regs[1]}, v{regs[2]}")
    i = 3
    while i + 1 < len(regs):
        A(f"{op3} v{t}, v{t}, v{regs[i]}, v{regs[i+1]}")
        i += 2
    if i < len(regs):
        A(f"{op2} v{t}, v{t}, v{regs[i]}")


def tag(quad, tg):
    for j in range(4):
        A(f"v_add_u32 v{quad+j}, 0x200, v{quad+j}")
    for j in range(4):
        A(f"v_bfi_b32 v{quad+j}, v{V_MSK}, v{tg+j}, v{quad+j}")


def tpoll(loads, regs, t, tg, sleep=0):
    l, e = newlbl("Lt"), newlbl("Lte")
    regs = list(regs)
    A(f"s_mov_b32 s{S_TO}, {CFG['timeout']}")
    L(l)
    if sleep:
        A(f"s_sleep {sleep}")
    loads()
    A(f"s_sub_u32 s{S_TO}, s{S_TO}, 1")
    A(f"s_cbranch_scc1 {e}")
    A("s_waitcnt vmcnt(0)")
    for i, r in enumerate(regs):
        A(f"v_xor_b32 v{r}, v{r}, v{tg + (i & 3)}")
    tree3("v_or3_b32", "v_or_b32", regs, t)
    A(f"v_and_b32 v{t}, v{V_MSK}, v{t}")
    A(f"v_cmp_ne_u32 vcc, 0, v{t}")
    A("s_cmp_lg_u64 vcc, 0")
    A(f"s_cbranch_scc1 {l}")
    L(e)
    A("s_waitcnt vmcnt(0)")


def tpoll2(loads, nld, bases, nreg, t, tg, consume):
    l, eA, eB, done = newlbl("Lu"), newlbl("LuA"), newlbl("LuB"), newlbl("Lud")

    def check(base, target):
        A(f"s_waitcnt vmcnt({nld})")
        regs = list(range(base, base + nreg))
        for i, r in enumerate(regs):
            A(f"v_xor_b32 v{r}, v{r}, v{tg + (i & 3)}")
        tree3("v_or3_b32", "v_or_b32", regs, t)
        A(f"v_and_b32 v{t}, v{V_MSK}, v{t}")
        A(f"v_cmp_ne_u32 vcc, 0, v{t}")
        A("s_cmp_eq_u64 vcc, 0")
        A(f"s_cbranch_scc1 {target}")
    A(f"s_mov_b32 s{S_TO}, {CFG['timeout']}")
    loads(bases[0])
    L(l)
    loads(bases[1])
    check(bases[0], eA)
    loads(bases[0])
    check(bases[1], eB)
    A(f"s_sub_u32 s{S_TO}, s{S_TO}, 1")
    A(f"s_cbranch_scc0 {l}")
    A("s_waitcnt vmcnt(0)")
    L(eA)
    consume(bases[0])
    A(f"s_branch {done}")
    L(eB)
    consume(bases[1])
    L(done)


def bf16r(dst, src):
    A(f"v_cvt_pk_bf16_f32 v{dst}, v{src}, v{src}")
    A(f"v_lshlrev_b32 v{dst}, 16, v{dst}")


def unpack(dst, src, n):
    for i in range(n):
        A(f"v_lshlrev_b32 v{dst+2*i}, 16, v{src+i}")
        A(f"v_and_b32 v{dst+2*i+1}, 0xffff0000, v{src+i}")


def pack(dst, src, n):
    for i in range(n):
        A(f"v_cvt_pk_bf16_f32 v{dst+i}, v{src+2*i}, v{src+2*i+1}")


def layernorm(xs, nb, tmp, outp):
    s = [tmp + i for i in range(nb)]
    q = [tmp + nb + i for i in range(nb)]
    t = [tmp + 2 * nb + i for i in range(nb)]
    mb = [tmp + 3 * nb + i for i in range(nb)]
    d = [tmp + 4 * nb + 8 * i for i in range(nb)]
    for i in range(nb):
        x = xs[i]
        A(f"v_add_f32 v{s[i]}, v{x}, v{x+1}")
        A(f"v_add_f32 v{t[i]}, v{x+2}, v{x+3}")
        A(f"v_add_f32 v{q[i]}, v{x+4}, v{x+5}")
        A(f"v_add_f32 v{mb[i]}, v{x+6}, v{x+7}")
        A(f"v_add_f32 v{s[i]}, v{s[i]}, v{t[i]}")
        A(f"v_add_f32 v{q[i]}, v{q[i]}, v{mb[i]}")
        A(f"v_add_f32 v{s[i]}, v{s[i]}, v{q[i]}")
    allreduce("v_add_f32", s, t)
    for i in range(nb):
        A(f"v_mul_f32 v{s[i]}, {f2u(1.0/512):#x}, v{s[i]}")
    for i in range(nb):
        x = xs[i]
        for j in range(8):
            A(f"v_sub_f32 v{d[i]+j}, v{x+j}, v{s[i]}")
        A(f"v_mul_f32 v{q[i]}, v{d[i]}, v{d[i]}")
        for j in range(1, 8):
            A(f"v_fmac_f32 v{q[i]}, v{d[i]+j}, v{d[i]+j}")
        bf16r(mb[i], s[i])
    nop(2)
    dpp_steps("v_add_f32", q, ROW_ALL)
    for i in range(nb):
        x = xs[i]
        for j in range(8):
            A(f"v_sub_f32 v{d[i]+j}, v{x+j}, v{mb[i]}")
        pack(outp[i], d[i], 4)
        unpack(d[i], outp[i], 4)
    swap_steps("v_add_f32", q, t)
    for i in range(nb):
        A(f"v_mul_f32 v{q[i]}, {f2u(1.0/512):#x}, v{q[i]}")
        bf16r(q[i], q[i])
        A(f"v_add_f32 v{q[i]}, {f2u(1e-5):#x}, v{q[i]}")
        bf16r(q[i], q[i])
        A(f"v_sqrt_f32 v{q[i]}, v{q[i]}")
        nop(1)
        bf16r(q[i], q[i])
        A(f"v_rcp_f32 v{q[i]}, v{q[i]}")
    nop(1)
    for i in range(nb):
        for j in range(8):
            A(f"v_mul_f32 v{d[i]+j}, v{d[i]+j}, v{q[i]}")
        pack(outp[i], d[i], 4)


def mfma(d, a, b, c=None):
    cc = f"v[{c}:{c+3}]" if c is not None else "0"
    A(f"v_mfma_f32_16x16x32_bf16 v[{d}:{d+3}], v[{a}:{a+3}], v[{b}:{b+3}], {cc}")


MASK_N2 = 0x0003000300030003
MASK_N4 = 0x000f000f000f000f


def set_exec(mask):
    A(f"s_mov_b32 exec_lo, {mask & 0xffffffff:#x}")
    A(f"s_mov_b32 exec_hi, {mask >> 32:#x}")


def tag_poll(sleep0, sel, barrier=False):
    lt, lte = newlbl(), newlbl()
    A(f"s_and_b32 s{S_T1}, s{sel}, 3")
    A(f"s_lshl_b32 s{S_T1}, s{S_T1}, 6")
    A(f"s_mov_b32 s{S_TO}, {CFG['timeout']}")
    if sleep0:
        A(f"s_sleep {sleep0}")
    L(lt)
    A(f"s_load_dwordx2 s[{S_TG}:{S_TG+1}], s[{P_DBG}:{P_DBG+1}], s{S_T1} glc")
    A(f"s_sub_u32 s{S_TO}, s{S_TO}, 1")
    A(f"s_cbranch_scc1 {lte}")
    A("s_waitcnt lgkmcnt(0)")
    A(f"s_cmp_lg_u32 s{S_TG+1}, 0")
    A(f"s_cbranch_scc1 {lte}")
    A(f"s_sleep {CFG['tsleep']}")
    A(f"s_branch {lt}")
    L(lte)
    A("s_waitcnt lgkmcnt(0)")
    A(f"v_mov_b32 v100, s{S_TG}")
    A(f"v_mov_b32 v101, s{S_TG+1}")
    A("v_and_b32 v104, 0x3ff, v100")
    A("v_bfe_u32 v105, v100, 10, 10")
    A("v_bfe_u32 v106, v100, 20, 10")
    A("v_alignbit_b32 v107, v101, v100, 30")
    A("v_and_b32 v107, 0x3ff, v107")
    A(f"v_mov_b32 v102, {L_TAG}")
    if barrier == 1:
        A("s_barrier")
    A("ds_write_b64 v102, v[100:101]")
    A("ds_write_b128 v102, v[104:107] offset:16")
    if barrier == 2:
        A("s_waitcnt lgkmcnt(0)")
    else:
        lds_set(L_FLAG, 100, 101)


XNT = ' nt' if CFG.get('xnt', 0) else ''
out.append(f"""; fused pre-LN attention(decode, sliding window) + gelu MLP, persistent kernel
; @launch grid=(256,1,1) block=(640,1,1) lds={LDS_BYTES}
.amdgcn_target "amdgcn-amd-amdhsa--gfx950"
.text
.globl {NAME}_kernel
.p2align 8
.type {NAME}_kernel,@function
{NAME}_kernel:""")

BLK = {"head": out}


def begin(name):
    global out
    BLK[name] = []
    out = BLK[name]


def post_entry():
    A("s_waitcnt lgkmcnt(0)")
    srd(SRD_WS, P_WS, WS_SIZE)
    if CFG["stamps"] == 2:
        A(f"v_mov_b32 v166, s{P_DBG}")
        A(f"v_mov_b32 v167, s{P_DBG+1}")
    stamp(0)


def att_common():
    A(f"s_sub_u32 s{S_A}, s{S_A}, 16")
    A(f"s_lshr_b32 s{S_B}, s{S_A}, 3")
    A(f"s_lshl_b32 s{S_T0}, s{S_X}, 4")
    A(f"s_add_u32 s{S_T0}, s{S_T0}, s{S_A}")
    A(f"s_mul_i32 s{S_T0}, s{S_T0}, {RECP}")
    A(f"s_add_u32 s{S_PNA}, s{S_T0}, {WS_PNA}")
    A(f"s_add_u32 s{S_PNB}, s{S_T0}, {WS_PNB}")


def gv_common():
    A(f"s_mul_i32 s{S_SUB}, s{S_X}, 7")
    A(f"s_add_u32 s{S_SUB}, s{S_SUB}, s{S_A}")
    A(f"s_sub_u32 s{S_SUB}, s{S_SUB}, 8")
    A(f"s_mov_b32 s{S_ROLE}, 2")
    A(f"s_cmp_lt_u32 s{S_A}, 8")
    A(f"s_cselect_b32 s{S_ROLE}, 1, s{S_ROLE}")
    A(f"s_cselect_b32 s{S_SUB}, s{S_A}, s{S_SUB}")
    A(f"s_cmp_eq_u32 s{S_A}, 15")
    A(f"s_cselect_b32 s{S_ROLE}, 0, s{S_ROLE}")


def zero_flags():
    for j in range(4):
        A(f"v_mov_b32 v{12+j}, 0")
    A(f"v_mov_b32 v3, {L_FLAG}")
    A("ds_write_b128 v3, v[12:15]")
    A(f"ds_write_b128 v3, v[12:15] offset:{L_FL2 - L_FLAG}")


A("s_cmp_ge_u32 s2, 256")
A("s_cbranch_scc1 L_end")
A("s_load_dwordx16 s[36:51], s[0:1], 0")
A("s_load_dwordx8 s[52:59], s[0:1], 64")
A("s_load_dwordx2 s[60:61], s[0:1], 96")
A("v_lshrrev_b32 v1, 6, v0")
A("v_and_b32 v0, 63, v0")
A(f"s_and_b32 s{S_X}, s2, 7")
A(f"v_readfirstlane_b32 s{S_WAVE}, v1")
A(f"s_lshr_b32 s{S_A}, s2, 3")
if CFG["pf"]:
    C("early workgroups: waves 0..5 pull the kernel's code into L2 (striped)")
    A(f"s_cmp_ge_u32 s{S_WAVE}, 5")
    A("s_cbranch_scc1 L_pfe")
    A(f"s_cmp_ge_u32 s{S_A}, {CFG['pfw']}")
    A("s_cbranch_scc1 L_pfe")
    A("s_getpc_b64 s[24:25]")
    L("L_pcref")
    A(f"s_lshl_b32 s26, s{S_WAVE}, 7")
    L("L_pf")
    A("s_load_dword s27, s[24:25], s26")
    A("s_add_u32 s26, s26, 640")
    A("s_cmp_lt_u32 s26, L_end-L_pcref")
    A("s_cbranch_scc1 L_pf")
    L("L_pfe")
A("v_lshlrev_b32 v2, 4, v0")
A("v_lshrrev_b32 v4, 4, v0")
A(f"v_mov_b32 v{V_MSK}, 0x3ff")
A("v_and_b32 v6, 15, v0")
A("v_lshrrev_b32 v8, 3, v0")
A("v_bfe_u32 v9, v0, 1, 2")
A("v_and_b32 v10, 1, v0")
A("v_lshlrev_b32 v11, 5, v8")
A("v_lshl_add_u32 v11, v10, 4, v11")
if CFG["stamps"]:
    A(f"v_mov_b32 v{V_ST}, 0")
C("dispatch before waiting for the kernel arguments")
A(f"s_lshr_b32 s{S_T0}, s{S_A}, 4")
A(f"s_lshl_b32 s{S_T0}, s{S_T0}, 4")
A(f"s_or_b32 s{S_T0}, s{S_T0}, s{S_WAVE}")
A(f"s_cmp_ge_u32 s{S_T0}, 24")
A("s_cbranch_scc1 L_ldr")
A(f"s_cmp_ge_u32 s{S_T0}, 16")
A("s_cbranch_scc1 L_att")
if CFG["dry"]:
    A(f"s_cmp_lg_u32 s{S_T0}, 5")
    A("s_cbranch_scc1 L_nd")
    C("wave 5 walks the q wave's register/LDS code with EXEC=0 to warm the instruction cache")
    A("s_mov_b64 exec, 0")
    A("s_branch L_dry")
    L("L_nd")
A(f"s_cmp_lg_u32 s{S_T0}, 6")
A("s_cbranch_scc1 L_GV")

V_K = 16
V_Q = 48
V_S = 64
V_SM = 72
V_PNA = 80
V_T = 84
V_TG = 124
V_G = 128

begin("att")
L("L_att")
att_common()
post_entry()
srd(SRD_C, P_OUT, 2048)
srd(SRD_A, P_DBG, 256)
A(f"s_lshl_b32 s{S_T1}, s{S_WAVE}, 8")
A(f"s_add_u32 s{S_PNA}, s{S_PNA}, s{S_T1}")
A(f"s_add_u32 s{S_PNB}, s{S_PNB}, s{S_T1}")
A(f"v_lshlrev_b32 v{V_PNA}, 6, v6")
A(f"v_lshl_add_u32 v{V_PNA}, v4, 4, v{V_PNA}")
C("G role: even a -> gi = x*8 + a/2 (wave 0)")
A(f"s_lshl_b32 s{S_T0}, s{S_X}, 3")
A(f"s_lshr_b32 s{S_T1}, s{S_A}, 1")
A(f"s_add_u32 s{S_SUB}, s{S_T0}, s{S_T1}")
A(f"s_and_b32 s{S_ROLE}, s{S_A}, 1")
A(f"s_or_b32 s{S_ROLE}, s{S_ROLE}, s{S_WAVE}")
A(f"s_cmp_lg_u32 s{S_ROLE}, 0")
A("s_cbranch_scc1 L_nogsm")
srd(SRD_B, P_X, 2048)
A(f"v_and_b32 v{V_T}, 3, v0")
A(f"v_lshlrev_b32 v{V_T}, 3, v{V_T}")
A(f"s_lshl_b32 s{S_T0}, s{S_SUB}, 5")
A(f"buffer_load_dwordx2 v[{V_SM}:{V_SM+1}], v{V_T}, {SB}, s{S_T0} offen{XNT}")
if CFG["touch2"]:
    A(f"buffer_load_dwordx2 v[{V_SM+4}:{V_SM+5}], v{V_T}, {SC_}, s{S_T0} offen")
srd(SRD_B, P_B2, 1024)
A(f"s_and_b32 s{S_T0}, s{S_T0}, 1023")
A(f"buffer_load_dwordx2 v[{V_SM+2}:{V_SM+3}], v{V_T}, {SB}, s{S_T0} offen{XNT}")
L("L_nogsm")
C("pre-touch this wave's q lines so that they are resident at the memory side")
A(f"s_lshl_b32 s{S_T1}, s{S_X}, 12")
A(f"s_lshl_b32 s{S_T2}, s{S_B}, 11")
A(f"s_add_u32 s{S_T1}, s{S_T1}, s{S_T2}")
A(f"s_lshl_b32 s{S_T2}, s{S_WAVE}, 8")
A(f"s_add_u32 s{S_T1}, s{S_T1}, s{S_T2}")
A(f"s_add_u32 s{S_T2}, s{SRD_WS}, s{S_T1}")
A(f"s_addc_u32 s{S_T3}, s{SRD_WS+1}, 0")
if CFG["touch"]:
    for i in range(4):
        A(f"s_load_dword s{64+i}, s[{S_T2}:{S_T3}], {WS_Q + 64*i} glc")
C("K fragment addresses: K + w*8192 + m*256 + ((4k+g)^m)*16")
KA = V_T + 36
A(f"s_lshl_b32 s{S_T0}, s{S_WAVE}, 13")
A(f"s_add_u32 s{S_T0}, s{S_T0}, {L_K}")
for kp in range(4):
    A(f"v_add_u32 v{KA+kp}, {4*kp}, v4")
    A(f"v_xor_b32 v{KA+kp}, v{KA+kp}, v6")
    A(f"v_lshlrev_b32 v{KA+kp}, 4, v{KA+kp}")
    A(f"v_lshl_add_u32 v{KA+kp}, v6, 8, v{KA+kp}")
    A(f"v_add_u32 v{KA+kp}, s{S_T0}, v{KA+kp}")
A(f"s_cmp_lg_u32 s{S_WAVE}, 7")
A("s_cbranch_scc1 L_ntp")
tag_poll(CFG["tsleepa"], S_A, barrier=2)
L("L_ntp")
A("s_barrier")
A(f"v_mov_b32 v{V_T}, 0")
A(f"ds_read_b64 v[{V_T+2}:{V_T+3}], v{V_T} offset:{L_TAG}")
A(f"ds_read_b128 v[{V_TG}:{V_TG+3}], v{V_T} offset:{L_TAG + 16}")
A("s_waitcnt lgkmcnt(0)")
A(f"v_readfirstlane_b32 s{S_TG}, v{V_T+2}")
A(f"v_readfirstlane_b32 s{S_TG+1}, v{V_T+3}")
stamp(1)
S2 = V_T + 4
PK = V_T + 12
MM = V_T + 16
TT = V_T + 20
EX = V_T + 24
QA = V_T + 1
A(f"s_lshl_b32 s{S_T0}, s{S_WAVE}, 7")
A(f"v_lshl_add_u32 v{QA}, v0, 2, s{S_T0}")
A(f"v_and_b32 v{V_T+2}, 3, v0")
A(f"v_lshlrev_b32 v{V_T+3}, 8, v{V_T+2}")
A(f"v_lshl_add_u32 v{V_T+3}, v4, 4, v{V_T+3}")
A(f"s_lshl_b32 s{S_T0}, s{S_WAVE}, 2")
A(f"v_lshl_add_u32 v{TT+2}, v0, 5, s{S_T0}")
A(f"v_lshlrev_b32 v{TT+3}, 5, v{V_T+2}")
C("---- scalar gather of q: this wave's 256 bytes (16 granules {d0,d1,T0,T1})")
lq, lqe = newlbl("Lq"), newlbl("Lqe")
stamp(12)
A(f"s_mov_b32 s{S_TO}, {CFG['timeout']}")
L(lq)
for i in range(4):
    A(f"s_load_dwordx16 s[{S_Q+16*i}:{S_Q+16*i+15}], s[{S_T2}:{S_T3}], {WS_Q + 64*i} glc")
A(f"s_sub_u32 s{S_TO}, s{S_TO}, 1")
A(f"s_cbranch_scc1 {lqe}")
A("s_waitcnt lgkmcnt(0)")
A(f"s_and_b64 s[{S_T4}:{S_T5}], s[{S_Q+2}:{S_Q+3}], s[{S_Q+6}:{S_Q+7}]")
A(f"s_or_b64 s[{S_T0}:{S_T1}], s[{S_Q+2}:{S_Q+3}], s[{S_Q+6}:{S_Q+7}]")
for gq in range(2, 16):
    A(f"s_and_b64 s[{S_T4}:{S_T5}], s[{S_T4}:{S_T5}], s[{S_Q+4*gq+2}:{S_Q+4*gq+3}]")
    A(f"s_or_b64 s[{S_T0}:{S_T1}], s[{S_T0}:{S_T1}], s[{S_Q+4*gq+2}:{S_Q+4*gq+3}]")
A(f"s_xor_b64 s[{S_T4}:{S_T5}], s[{S_T4}:{S_T5}], s[{S_TG}:{S_TG+1}]")
A(f"s_xor_b64 s[{S_T0}:{S_T1}], s[{S_T0}:{S_T1}], s[{S_TG}:{S_TG+1}]")
A(f"s_or_b64 s[{S_T4}:{S_T5}], s[{S_T4}:{S_T5}], s[{S_T0}:{S_T1}]")
A(f"s_cbranch_scc1 {lq}")
L(lqe)
A("s_waitcnt lgkmcnt(0)")
stamp(8)
if CFG["stamps"] == 1:
    A(f"s_sub_u32 s0, {CFG['timeout']}, s{S_TO}")
    A(f"v_writelane_b32 v{V_ST}, s0, 9")
for gq in range(16):
    A(f"v_writelane_b32 v{V_T}, s{S_Q+4*gq}, {2*gq}")
    A(f"v_writelane_b32 v{V_T}, s{S_Q+4*gq+1}, {2*gq+1}")
A("s_mov_b32 exec_hi, 0")
A(f"ds_write_b32 v{QA}, v{V_T} offset:{L_QL}")
A("s_mov_b32 exec_hi, -1")
C("K fragments as soon as K landed")
C("ND{")
lds_wait(L_FLAG + 4, V_T, TT, sleep=1)
C("}ND")
for kp in range(4):
    for tt in range(2):
        r = V_K + (tt * 4 + kp) * 4
        A(f"ds_read_b128 v[{r}:{r+3}], v{KA+kp} offset:{tt*4096}")
C("poll the q operand itself (LDS sentinel)")
l1, l1e = newlbl("Lqo"), newlbl("Lqoe")
A(f"s_mov_b32 s{S_TO}, {CFG['timeout']}")
L(l1)
for kp in range(4):
    A(f"ds_read_b128 v[{V_Q+4*kp}:{V_Q+4*kp+3}], v{V_T+3} offset:{L_QL + kp*64}")
A(f"s_sub_u32 s{S_TO}, s{S_TO}, 1")
A(f"s_cbranch_scc1 {l1e}")
A("s_waitcnt lgkmcnt(0)")
tree3("v_max3_u32", "v_max_u32", range(V_Q, V_Q + 16), TT)
A(f"v_cmp_eq_u32 vcc, -1, v{TT}")
A("s_cmp_lg_u64 vcc, 0")
A(f"s_cbranch_scc1 {l1}")
L(l1e)
A("s_waitcnt lgkmcnt(0)")
for kp in range(4):
    for tt in range(2):
        mfma(V_S + 4 * tt, V_K + (tt * 4 + kp) * 4, V_Q + 4 * kp, None if kp == 0 else V_S + 4 * tt)
stamp(2)
A(f"s_mov_b32 s{S_T0}, {f2u(SCALE):#x}")
A(f"s_mov_b32 s{S_T1}, {f2u(LOG2E):#x}")
nop(6)
pack(PK, V_S, 4)
unpack(S2, PK, 4)
for j in range(8):
    A(f"v_mul_f32 v{S2+j}, s{S_T0}, v{S2+j}")
pack(PK, S2, 4)
unpack(S2, PK, 4)
A(f"v_max3_f32 v{MM}, v{S2}, v{S2+1}, v{S2+2}")
A(f"v_max3_f32 v{MM}, v{MM}, v{S2+3}, v{S2+4}")
A(f"v_max3_f32 v{MM}, v{MM}, v{S2+5}, v{S2+6}")
A(f"v_max_f32 v{MM}, v{MM}, v{S2+7}")
swap_steps("v_max_f32", [MM], [TT])
A("s_mov_b64 exec, 15")
A(f"ds_write_b32 v{TT+2}, v{MM} offset:{L_MX}")
A("s_mov_b64 exec, -1")
for j in range(8):
    A(f"v_mul_f32 v{S2+j}, s{S_T1}, v{S2+j}")
l2, l2e = newlbl("Lmx"), newlbl("Lmxe")
A(f"s_mov_b32 s{S_TO}, {CFG['timeout']}")
L(l2)
A(f"ds_read_b128 v[{EX}:{EX+3}], v{TT+3} offset:{L_MX}")
A(f"ds_read_b128 v[{EX+4}:{EX+7}], v{TT+3} offset:{L_MX + 16}")
A(f"s_sub_u32 s{S_TO}, s{S_TO}, 1")
A(f"s_cbranch_scc1 {l2e}")
A("s_waitcnt lgkmcnt(0)")
tree3("v_max3_u32", "v_max_u32", range(EX, EX + 8), TT)
tree3("v_max3_f32", "v_max_f32", range(EX, EX + 8), MM)
A(f"v_cmp_eq_u32 vcc, -1, v{TT}")
A("s_cmp_lg_u64 vcc, 0")
A(f"s_cbranch_scc1 {l2}")
L(l2e)
A("s_waitcnt lgkmcnt(0)")
A(f"v_mul_f32 v{MM}, s{S_T1}, v{MM}")
for j in range(8):
    A(f"v_sub_f32 v{EX+j}, v{S2+j}, v{MM}")
for j in range(8):
    A(f"v_exp_f32 v{EX+j}, v{EX+j}")
A(f"s_lshl_b32 s{S_T0}, s{S_WAVE}, 10")
A(f"v_add_u32 v{TT}, s{S_T0}, v2")
pack(PK, EX, 4)
A(f"ds_write_b128 v{TT}, v[{PK}:{PK+3}] offset:{L_SC}")
A(f"v_add_f32 v{MM+1}, v{EX}, v{EX+1}")
A(f"v_add_f32 v{TT}, v{EX+2}, v{EX+3}")
A(f"v_add_f32 v{TT+1}, v{EX+4}, v{EX+5}")
A(f"v_add_f32 v{EX}, v{EX+6}, v{EX+7}")
A(f"v_add_f32 v{MM+1}, v{MM+1}, v{TT}")
A(f"v_add_f32 v{EX}, v{EX}, v{TT+1}")
A(f"v_add_f32 v{MM+1}, v{MM+1}, v{EX}")
swap_steps("v_add_f32", [MM + 1], [TT])
A("s_mov_b64 exec, 15")
A(f"ds_write_b32 v{TT+2}, v{MM+1} offset:{L_LS}")
A("s_mov_b64 exec, -1")
stamp(3)
VA0, VA1, VB0, VB1 = V_T + 32, V_T + 33, V_T + 34, V_T + 35


def vw2_addr():
    A(f"v_lshlrev_b32 v{VA0}, 10, v4")
    A(f"v_lshl_add_u32 v{VA0}, v6, 3, v{VA0}")
    A(f"v_and_b32 v{VA1}, 1, v4")
    A(f"v_lshl_add_u32 v{VA0}, v{VA1}, 7, v{VA0}")
    A(f"v_xor_b32 v{VA1}, 128, v{VA0}")


vw2_addr()
A(f"s_lshl_b32 s{S_T0}, s{S_WAVE}, 8")
A(f"s_add_u32 s{S_T0}, s{S_T0}, {L_V}")
A(f"v_add_u32 v{VB0}, s{S_T0}, v{VA0}")
A(f"v_add_u32 v{VB1}, s{S_T0}, v{VA1}")
A("s_waitcnt lgkmcnt(0)")
A("s_barrier")
stamp(5)
A(f"s_cmp_gt_u32 s{S_WAVE}, 4")
A("s_cbranch_scc1 L_exit")
A(f"s_cmp_lt_u32 s{S_WAVE}, 4")
A("s_cbranch_scc1 L_pv")
C("---- wave 4: publish stats {m,l,T0,T1} per head (lanes 0..3)")
A(f"ds_read_b128 v[{EX}:{EX+3}], v{TT+3} offset:{L_LS}")
A(f"ds_read_b128 v[{EX+4}:{EX+7}], v{TT+3} offset:{L_LS + 16}")
A(f"v_mov_b32 v{MM+2}, s{S_TG}")
A(f"v_mov_b32 v{MM+3}, s{S_TG+1}")
A("s_waitcnt lgkmcnt(0)")
for j in range(4):
    A(f"v_add_f32 v{EX+j}, v{EX+j}, v{EX+4+j}")
A(f"v_add_f32 v{EX}, v{EX}, v{EX+1}")
A(f"v_add_f32 v{EX+2}, v{EX+2}, v{EX+3}")
A(f"v_add_f32 v{MM+1}, v{EX}, v{EX+2}")
A("s_mov_b64 exec, 15")
if CFG["dual"]:
    A(f"buffer_store_dwordx4 v[{MM}:{MM+3}], v2, {WS}, s{S_PNA} offen")
A(f"buffer_store_dwordx4 v[{MM}:{MM+3}], v2, {WS}, s{S_PNB} offen sc1")
A("s_branch L_exit")
L("L_pv")
C("---- PV (waves 0..3, 32 dims each, 8 k-steps)")
PB = V_G
VF = V_K


def pv_reads(t):
    A(f"ds_read_b128 v[{PB+4*t}:{PB+4*t+3}], v2 offset:{L_SC + t*1024}")
    for c2 in range(2):
        for h in range(2):
            r = VF + ((t % 6) * 2 + c2) * 4 + 2 * h
            A(f"ds_read_b64_tr_b16 v[{r}:{r+1}], v{VB0 + c2} offset:{t*8192 + h*4096}")


for t in range(3):
    pv_reads(t)
for t in range(8):
    A(f"s_waitcnt lgkmcnt({min(2, 7 - t)*5})")
    for c2 in range(2):
        mfma(V_S + 4 * c2, VF + ((t % 6) * 2 + c2) * 4, PB + 4 * t, None if t == 0 else V_S + 4 * c2)
    if t + 3 < 8:
        pv_reads(t + 3)
nop(7)
pack(PK, V_S, 4)
set_exec(MASK_N4)
if CFG["dual"]:
    A(f"buffer_store_dwordx4 v[{PK}:{PK+3}], v{V_PNA}, {WS}, s{S_PNA} offen")
A(f"buffer_store_dwordx4 v[{PK}:{PK+3}], v{V_PNA}, {WS}, s{S_PNB} offen sc1")
A("s_mov_b64 exec, -1")
stamp(6)
A(f"s_cmp_lg_u32 s{S_ROLE}, 0")
A("s_cbranch_scc1 L_exit")

C("==== G: final reduce of 16 outputs (16gi..16gi+15)")
A(f"s_lshl_b32 s{S_T2}, s{S_SUB}, 6")
A(f"s_add_u32 s{S_T3}, s{S_T2}, {WS_AP}")
A(f"s_add_u32 s{S_T2}, s{S_T2}, {WS_Y}")
A(f"v_lshrrev_b32 v{TT+2}, 2, v0")
A(f"v_and_b32 v{TT+3}, 3, v0")
A(f"v_lshlrev_b32 v{TT}, 12, v{TT+2}")
A(f"v_lshl_add_u32 v{TT}, v{TT+3}, 4, v{TT}")
A(f"s_movk_i32 s{S_T0}, {YP}")
A(f"v_mul_lo_u32 v{TT+2}, v{TT+2}, s{S_T0}")
A(f"v_lshl_add_u32 v{TT+2}, v{TT+3}, 4, v{TT+2}")
for i in range(1, 4):
    A(f"s_add_u32 s{40+i}, s{S_T2}, {16*i*YP}")
GA = V_G
if CFG["dry2"]:
    C("walk the rest of this path once with EXEC=0 (instruction cache warm-up)")
    A("s_mov_b64 exec, 0")
L("L_kret")
C("DRY{")
A("s_mov_b32 exec_hi, 0")


def g1_loads():
    A(f"buffer_load_dwordx4 v[{GA}:{GA+3}], v{TT}, {WS}, s{S_T3} offen sc1")


tpoll(g1_loads, range(GA, GA + 4), V_T, V_TG, CFG['g1sl'])
A("s_mov_b64 exec, -1")
stamp(7)
A(f"s_cmp_lg_u32 s{S_SUB}, 0")
A("s_cbranch_scc1 L_gnz")
C("every workgroup has consumed the launch tag by now: leave d_debug clean")
A(f"v_mov_b32 v{V_T}, 0")
A(f"v_mov_b32 v{V_T+1}, 0")
A(f"v_lshlrev_b32 v{V_T+2}, 6, v0")
A("s_mov_b64 exec, 15")
A(f"buffer_store_dwordx2 v[{V_T}:{V_T+1}], v{V_T+2}, {SA}, 0 offen sc1")
A("s_mov_b64 exec, -1")
L("L_gnz")
nop(1)
dpp_steps("v_add_f32", [GA + j for j in range(4)], ROW_HI)
swap_steps("v_add_f32", [GA + j for j in range(4)], [GA + 4 + j for j in range(4)], which=(16,))
GH = V_G + 8
GP = V_G + 16
GB = V_G + 20
pack(GP, GA, 2)
unpack(GA, GP, 2)
unpack(GH, V_SM, 2)
for j in range(4):
    A(f"v_add_f32 v{GH+j}, v{GH+j}, v{GA+j}")
pack(GP, GH, 2)
unpack(GH, GP, 2)
unpack(GB, V_SM + 2, 2)
GY = V_K


def g2_loads():
    for j in range(4):
        A(f"v_mov_b32 v{GY+12+j}, v{V_TG+j}")
    A(f"buffer_load_dwordx4 v[{GY}:{GY+3}], v{TT+2}, {WS}, s{S_T2} offen sc1")
    A(f"buffer_load_dwordx4 v[{GY+4}:{GY+7}], v{TT+2}, {WS}, s41 offen sc1")
    A(f"buffer_load_dwordx4 v[{GY+8}:{GY+11}], v{TT+2}, {WS}, s42 offen sc1")
    A("s_mov_b32 exec_hi, 0")
    A(f"buffer_load_dwordx4 v[{GY+12}:{GY+15}], v{TT+2}, {WS}, s43 offen sc1")
    A("s_mov_b32 exec_hi, -1")


tpoll(g2_loads, range(GY, GY + 16), V_T, V_TG, CFG['g2sl'])
stamp(10)
for j in range(4):
    A(f"v_add_f32 v{GY+j}, v{GY+j}, v{GY+4+j}")
    A(f"v_add_f32 v{GY+8+j}, v{GY+8+j}, v{GY+12+j}")
for j in range(4):
    A(f"v_add_f32 v{GY+j}, v{GY+j}, v{GY+8+j}")
dpp_steps("v_add_f32", [GY + j for j in range(4)], ROW_HI)
swap_steps("v_add_f32", [GY + j for j in range(4)], [GY + 4 + j for j in range(4)])
pack(GP, GY, 2)
unpack(GY, GP, 2)
for j in range(4):
    A(f"v_add_f32 v{GY+j}, v{GY+j}, v{GB+j}")
pack(GP, GY, 2)
unpack(GY, GP, 2)
for j in range(4):
    A(f"v_add_f32 v{GY+j}, v{GY+j}, v{GH+j}")
pack(GP, GY, 2)
if CFG.get("padto", 0):
    C("ND{")
    L("L_pad")
    A("s_memrealtime s[0:1]")
    A("s_waitcnt lgkmcnt(0)")
    A(f"s_sub_u32 s0, s0, s{S_TG}")
    A(f"s_cmp_lt_u32 s0, {CFG['padto']}")
    A("s_cbranch_scc1 L_pad")
    C("}ND")
A(f"s_lshl_b32 s{S_T4}, s{S_SUB}, 5")
A("v_lshlrev_b32 v3, 3, v0")
A("s_mov_b64 exec, 15")
A(f"buffer_store_dwordx2 v[{GP}:{GP+1}], v3, {SC_}, s{S_T4} offen")
stamp(11)
A("s_branch L_exit")

C("}DRY")
begin("ldr")
L("L_ldr")
att_common()
C("kv byte offset: ((b*8+x)*8192 + 6144 + 256 s)*256")
A(f"s_lshl_b32 s{S_T0}, s{S_B}, 3")
A(f"s_add_u32 s{S_T0}, s{S_T0}, s{S_X}")
A(f"s_lshl_b32 s{S_T0}, s{S_T0}, 5")
A(f"s_and_b32 s{S_T1}, s{S_A}, 7")
A(f"s_add_u32 s{S_T0}, s{S_T0}, s{S_T1}")
A(f"s_add_u32 s{S_T0}, s{S_T0}, 24")
A(f"s_lshl_b32 s{S_T3}, s{S_T0}, 16")
A(f"s_mov_b32 s{S_T2}, 0")
A(f"s_cmp_eq_u32 s{S_WAVE}, 9")
A("s_cbranch_scc1 L_ldv")
C("K DMA lane offsets: r4=l>>4, p=l&15: r4*256 + ((p ^ (4i+r4))*16)")
for i in range(4):
    A(f"v_add_u32 v{12+i}, {4*i}, v4")
    A(f"v_xor_b32 v{12+i}, v{12+i}, v6")
    A(f"v_lshlrev_b32 v{12+i}, 4, v{12+i}")
    A(f"v_lshl_add_u32 v{12+i}, v4, 8, v{12+i}")
A(f"s_mov_b32 s{S_T1}, {L_K}")
post_entry()
srd(SRD_A, P_K, 0x2000000)
L("L_ldk1")
A(f"s_mov_b32 m0, s{S_T1}")
A(f"s_add_u32 s{S_T1}, s{S_T1}, 4096")
for i in range(4):
    A(f"buffer_load_dwordx4 v{12+i}, {SA}, s{S_T3} offen offset:{i*1024}{NT} lds")
A(f"s_add_u32 s{S_T3}, s{S_T3}, 4096")
A(f"s_add_u32 s{S_T2}, s{S_T2}, 1")
A(f"s_cmp_lt_u32 s{S_T2}, 16")
A("s_cbranch_scc1 L_ldk1")
stamp(1)
A("s_barrier")
A("s_waitcnt vmcnt(0)")
stamp(4)
lds_set(L_FLAG + 4, 16, 17)
A("s_waitcnt lgkmcnt(0)")
A("s_branch L_exit")
L("L_ldv")
zero_flags()
for j in range(4):
    A(f"v_mov_b32 v{16+j}, -1")
A(f"ds_write_b128 v2, v[16:19] offset:{L_QL}")
A("s_mov_b64 exec, 0xff")
A(f"ds_write_b128 v2, v[16:19] offset:{L_MX}")
A("s_mov_b64 exec, -1")
A("v_lshl_add_u32 v12, v9, 8, v11")
A("v_xor_b32 v13, 32, v12")
post_entry()
srd(SRD_B, P_V, 0x2000000)
A("s_barrier")
A(f"buffer_store_dwordx4 v[16:19], v2, {WS}, s{S_PNA} offen sc1")
A(f"buffer_store_dwordx4 v[16:19], v2, {WS}, s{S_PNB} offen sc1")
A(f"s_mov_b32 s{S_T1}, {L_V}")
L("L_ldv1")
A(f"s_mov_b32 m0, s{S_T1}")
A(f"s_add_u32 s{S_T1}, s{S_T1}, 4096")
for be in range(4):
    A(f"buffer_load_dwordx4 v{12 + (be & 1)}, {SB}, s{S_T3} offen offset:{be*1024}{NT} lds")
A(f"s_add_u32 s{S_T3}, s{S_T3}, 4096")
A(f"s_add_u32 s{S_T2}, s{S_T2}, 1")
A(f"s_cmp_lt_u32 s{S_T2}, 16")
A("s_cbranch_scc1 L_ldv1")
stamp(1)
A("s_waitcnt vmcnt(0)")
stamp(4)
A("s_barrier")
A("s_branch L_exit")

begin("gv")
L("L_dry2")
A("s_mov_b64 exec, -1")
L("L_GV")
gv_common()
post_entry()
A(f"s_cmp_ge_u32 s{S_WAVE}, 8")
A("s_cbranch_scc1 L_gld")
A(f"s_cmp_lg_u32 s{S_WAVE}, 7")
A("s_cbranch_scc1 L_gv2")
A("s_cmp_lg_u32 s2, 0")
A("s_cbranch_scc1 L_gv0")
C("workgroup 0 publishes the launch tag (4 replicas)")
srd(SRD_C, P_DBG, 256)
A("s_memrealtime s[24:25]")
A("s_waitcnt lgkmcnt(0)")
A("s_or_b32 s25, s25, 0x80000000")
A("v_mov_b32 v14, s24")
A("v_mov_b32 v15, s25")
A("v_lshlrev_b32 v12, 6, v0")
A("s_mov_b64 exec, 15")
A(f"buffer_store_dwordx2 v[14:15], v12, {SC_}, 0 offen sc1")
A("s_mov_b64 exec, -1")
L("L_gv0")
tag_poll(CFG["tsleep0"], S_A, barrier=2)
stamp(5)
L("L_gv2")
A("s_barrier")
A("s_branch L_qm1")

C("---- GEMV loaders (waves 8,9)")
L("L_gld")
A(f"s_and_b32 s{S_T5}, s{S_WAVE}, 1")
C("WX style lane offsets: ct=l>>5, p=(l>>1)&15 (row), half")
A("v_bfe_u32 v3, v0, 1, 4")
A("v_lshrrev_b32 v12, 5, v0")
A("v_lshlrev_b32 v12, 5, v12")
A("v_lshl_add_u32 v12, v10, 4, v12")
A("s_barrier")
A(f"s_cmp_eq_u32 s{S_ROLE}, 0")
A("s_cbranch_scc1 L_exit")
A(f"s_cmp_eq_u32 s{S_ROLE}, 2")
A("s_cbranch_scc1 L_gld2")
C("wo tile: 512 rows x 128 B; loader i: rows 256i.. (32 instrs of 8 rows)")
srd(SRD_C, P_WO, 0x400000)
A("v_bfe_u32 v3, v0, 1, 3")
A("v_lshlrev_b32 v3, 10, v3")
A("v_lshl_add_u32 v3, v4, 5, v3")
A("v_lshl_add_u32 v3, v10, 4, v3")
A(f"s_lshl_b32 s{S_T3}, s{S_X}, 19")
A(f"s_lshl_b32 s{S_T1}, s{S_T5}, 18")
A(f"s_add_u32 s{S_T3}, s{S_T3}, s{S_T1}")
A(f"s_lshl_b32 s{S_T1}, s{S_SUB}, 7")
A(f"s_add_u32 s{S_T3}, s{S_T3}, s{S_T1}")
A(f"s_lshl_b32 s{S_T4}, s{S_T5}, 15")
A(f"s_add_u32 s{S_T4}, s{S_T4}, {L_WO}")
if CFG["touch2"]:
    for i in range(4):
        A(f"s_add_u32 s{S_T1}, s{S_T3}, {i*65536}")
        A(f"s_load_dword s{64+i}, s[{P_WO}:{P_WO+1}], s{S_T1}")
A("s_barrier")
A(f"s_mov_b32 s{S_T2}, 0")
L("L_gld1")
for i in range(4):
    A(f"s_mov_b32 m0, s{S_T4}")
    A(f"s_add_u32 s{S_T4}, s{S_T4}, 1024")
    A(f"buffer_load_dwordx4 v3, {SC_}, s{S_T3} offen{NT} lds")
    A(f"s_add_u32 s{S_T3}, s{S_T3}, 8192")
A(f"s_add_u32 s{S_T2}, s{S_T2}, 1")
A(f"s_cmp_lt_u32 s{S_T2}, 8")
A("s_cbranch_scc1 L_gld1")
A("s_branch L_gld5")
L("L_gld2")
A(f"s_cmp_eq_u32 s{S_T5}, 1")
A("s_cbranch_scc1 L_gld3")
srd(SRD_C, P_W1, 512 * 3584)
A(f"s_lshl_b32 s{S_T3}, s{S_SUB}, 6")
A(f"s_movk_i32 s{S_T1}, 3584")
A(f"v_mul_lo_u32 v13, v3, s{S_T1}")
A("v_add_u32 v13, v13, v12")
if CFG["touch2"]:
    for i in range(14):
        A(f"s_add_u32 s{S_T1}, s{S_T3}, {i*131072}")
        A(f"s_load_dword s{64+i}, s[{P_W1}:{P_W1+1}], s{S_T1}")
A("s_barrier")
A(f"s_mov_b32 s{S_T1}, {L_WX}")
A(f"s_mov_b32 s{S_T2}, 0")
L("L_gld4")
for i in range(4):
    A(f"s_mov_b32 m0, s{S_T1}")
    A(f"s_add_u32 s{S_T1}, s{S_T1}, 1024")
    A(f"buffer_load_dwordx4 v13, {SC_}, s{S_T3} offen{NT} lds")
    A(f"s_add_u32 s{S_T3}, s{S_T3}, {16*3584}")
if CFG["mwin"]:
    A(f"s_waitcnt vmcnt({CFG['mwin']})")
A(f"s_add_u32 s{S_T2}, s{S_T2}, 1")
A(f"s_cmp_lt_u32 s{S_T2}, 8")
A("s_cbranch_scc1 L_gld4")
A("s_branch L_gld5")
L("L_gld3")
srd(SRD_C, P_W2, 1792 * 1024)
A("v_lshl_add_u32 v14, v9, 10, v11")
A("v_xor_b32 v15, 32, v14")
A(f"s_lshl_b32 s{S_T3}, s{S_SUB}, 15")
if CFG["touch2"]:
    A(f"s_load_dword s64, s[{P_W2}:{P_W2+1}], s{S_T3}")
    A(f"s_load_dword s65, s[{P_B1}:{P_B1+1}], 0")
A("s_barrier")
A(f"s_mov_b32 s{S_T1}, {L_W2}")
A(f"s_mov_b32 s{S_T2}, 0")
L("L_gld6")
for be in range(8):
    A(f"s_mov_b32 m0, s{S_T1}")
    A(f"s_add_u32 s{S_T1}, s{S_T1}, 1024")
    A(f"s_add_u32 s{S_T4}, s{S_T3}, {be*4096}")
    A(f"buffer_load_dwordx4 v{14 + (be & 1)}, {SC_}, s{S_T4} offen{NT} lds")
    if CFG["mwin"] and be % 4 == 3:
        A(f"s_waitcnt vmcnt({CFG['mwin']})")
A(f"s_add_u32 s{S_T3}, s{S_T3}, 256")
A(f"s_add_u32 s{S_T2}, s{S_T2}, 1")
A(f"s_cmp_lt_u32 s{S_T2}, 4")
A("s_cbranch_scc1 L_gld6")
L("L_gld5")
A("s_waitcnt vmcnt(0)")
stamp(4)
A("s_barrier")
A("s_branch L_exit")

begin("qc")
C("---- q projection: wave 6 loads and computes everything")
post_entry()
srd(SRD_A, P_X, 2048)
A(f"buffer_load_dwordx4 v[16:19], v2, {SA}, 0 offen")
A(f"buffer_load_dwordx4 v[20:23], v2, {SA}, 0 offen offset:1024")
if CFG["touch"]:
    A(f"s_lshl_b32 s{S_T1}, s{S_X}, 4")
    A(f"s_add_u32 s{S_T1}, s{S_T1}, s{S_A}")
    A(f"s_lshl_b32 s{S_T1}, s{S_T1}, 9")
    A(f"s_add_u32 s{S_T1}, s{S_T1}, {WS_XQA}")
    A("s_mov_b32 exec_hi, 0")
    A(f"buffer_load_dwordx4 v[72:75], v2, {WS}, s{S_T1} offen sc1")
    A("s_mov_b32 exec_hi, -1")
srd(SRD_B, P_WQ, 0x400000)
A("v_bfe_u32 v13, v0, 1, 3")
A("v_lshlrev_b32 v13, 13, v13")
A("v_lshl_add_u32 v13, v4, 5, v13")
A("v_lshl_add_u32 v13, v10, 4, v13")
A(f"s_and_b32 s{S_B}, s{S_A}, 1")
A(f"s_lshl_b32 s{S_T0}, s{S_B}, 21")
A(f"s_lshl_b32 s{S_T1}, s{S_X}, 10")
A(f"s_add_u32 s{S_T0}, s{S_T0}, s{S_T1}")
A(f"s_lshr_b32 s{S_T1}, s{S_A}, 1")
A(f"s_lshl_b32 s{S_T1}, s{S_T1}, 7")
A(f"s_add_u32 s{S_T0}, s{S_T0}, s{S_T1}")
A(f"s_mov_b32 s{S_T1}, {L_WQ}")
L("L_qc1")
for i in range(4):
    A(f"s_mov_b32 m0, s{S_T1}")
    A(f"s_add_u32 s{S_T1}, s{S_T1}, 1024")
    A(f"buffer_load_dwordx4 v13, {SB}, s{S_T0} offen{NT} lds")
    A(f"s_add_u32 s{S_T0}, s{S_T0}, 0x10000")
A(f"s_cmp_lt_u32 s{S_T1}, {L_WQ + 32768}")
A("s_cbranch_scc1 L_qc1")
stamp(10)
L("L_dry")
gv_common()
A("v_lshrrev_b32 v12, 2, v0")
A("v_lshlrev_b32 v12, 6, v12")
A("v_lshl_add_u32 v12, v10, 5, v12")
A("v_bfe_u32 v13, v0, 1, 1")
A("v_lshl_add_u32 v12, v13, 3, v12")
A("v_lshlrev_b32 v13, 10, v10")
A("v_lshl_add_u32 v13, v4, 4, v13")
A(f"s_lshl_b32 s{S_T1}, s{S_B}, 9")
A(f"v_add_u32 v13, s{S_T1}, v13")
A("v_lshrrev_b32 v14, 5, v0")
A("v_lshlrev_b32 v14, 10, v14")
A("v_and_b32 v15, 31, v0")
A("v_lshl_add_u32 v14, v15, 3, v14")
C("exchange lane map: n=l&15<8: b=n&1, half2=(n>>1)&1, cs=(n>>2)&1 ; XQ off = cs*256 + b*128 + g*32 + half2*16")
A("v_bfe_u32 v70, v0, 2, 1")
A("v_lshlrev_b32 v69, 6, v70")
A("v_lshl_add_u32 v69, v4, 4, v69")
A("v_lshl_add_u32 v69, v10, 11, v69")
A("v_lshlrev_b32 v70, 8, v70")
A("v_lshl_add_u32 v70, v10, 7, v70")
A("v_lshl_add_u32 v70, v4, 5, v70")
A("v_bfe_u32 v15, v0, 1, 1")
A("v_lshl_add_u32 v70, v15, 4, v70")
A(f"s_lshl_b32 s{S_T5}, s{S_X}, 12")
A(f"s_lshl_b32 s{S_T1}, s{S_A}, 7")
A(f"s_add_u32 s{S_T5}, s{S_T5}, s{S_T1}")
A(f"s_lshl_b32 s{S_T1}, s{S_X}, 4")
A(f"s_add_u32 s{S_T1}, s{S_T1}, s{S_A}")
A(f"s_lshl_b32 s62, s{S_T1}, 9")
A(f"s_xor_b32 s63, s62, 512")
A(f"s_add_u32 s64, s62, {WS_XQB}")
A(f"s_add_u32 s62, s62, {WS_XQA}")
A(f"s_add_u32 s65, s63, {WS_XQB}")
A(f"s_add_u32 s63, s63, {WS_XQA}")
A("s_mov_b32 s66, 0xcccccccc")
A("s_mov_b32 s67, 0xcccccccc")
A("s_mov_b32 s68, 0xf0f0f0f0")
A("s_mov_b32 s69, 0xf0f0f0f0")
stamp(11)
A(f"s_waitcnt vmcnt({32 + CFG['touch']})")
stamp(12)
unpack(24, 16, 4)
unpack(32, 20, 4)
layernorm([24, 32], 2, 44, [16, 20])
A(f"ds_write_b64 v12, v[16:17] offset:{L_XN}")
A(f"ds_write_b64 v12, v[18:19] offset:{L_XN + 16}")
A(f"ds_write_b64 v12, v[20:21] offset:{L_XN + 1024}")
A(f"ds_write_b64 v12, v[22:23] offset:{L_XN + 1024 + 16}")
A("s_waitcnt lgkmcnt(0)")
XA = 96
for kp in range(8):
    A(f"ds_read_b128 v[{XA+4*kp}:{XA+4*kp+3}], v13 offset:{L_XN + kp*64}")
stamp(1)
A("v_mov_b32 v16, 0")
WF = 24
QD = 144
for kp in range(8):
    A(f"s_waitcnt vmcnt({28 - 4*kp})")
    if kp == 7:
        stamp(2)
        A("s_cbranch_execz L_dry1")
        A("s_barrier")
        L("L_dry1")
        A(f"ds_read_b64 v[58:59], v16 offset:{L_TAG}")
        A(f"ds_read_b64 v[62:63], v16 offset:{L_TAG}")
    for ct in range(4):
        for h in range(2):
            r = WF + ((kp & 1) * 4 + ct) * 4 + 2 * h
            A(f"ds_read_b64_tr_b16 v[{r}:{r+1}], v14 offset:{L_WQ + kp*4096 + h*2048 + ct*256}")
    for ct in range(4):
        A(f"s_waitcnt lgkmcnt({6 - 2*ct})")
        mfma(QD + 4 * ct, WF + ((kp & 1) * 4 + ct) * 4, XA + 4 * kp, None if kp == 0 else QD + 4 * ct)
C("select: lo half cts (0,1) -> v[24:25], hi half cts (2,3) -> v[26:27]")
nop(5)
for hf in range(2):
    a, b = QD + 8 * hf, QD + 8 * hf + 4
    for j in range(2):
        A(f"v_cndmask_b32 v{28+j}, v{a+j}, v{a+2+j}, s[66:67]")
        A(f"v_cndmask_b32 v{30+j}, v{b+j}, v{b+2+j}, s[66:67]")
    for j in range(2):
        A(f"v_cndmask_b32 v{24+2*hf+j}, v{28+j}, v{30+j}, s[68:69]")
A("s_cbranch_execz L_dry2")
A(f"s_cmp_eq_u32 s{S_B}, 0")
A(f"s_cselect_b64 vcc, -1, 0")
set_exec(0x00ff00ff00ff00ff)
A("v_cndmask_b32 v56, v24, v26, vcc")
A("v_cndmask_b32 v57, v25, v27, vcc")
A("v_cndmask_b32 v60, v26, v24, vcc")
A("v_cndmask_b32 v61, v27, v25, vcc")
A(f"buffer_store_dwordx4 v[56:59], v70, {WS}, s{63 if CFG['dual'] else 65} offen{'' if CFG['dual'] else ' sc1'}")
stamp(6)
lx, lxe, lxs = newlbl("Lx"), newlbl("Lxe"), newlbl("Lxs")
A(f"s_mov_b32 s{S_TO}, {CFG['timeout']}")
L(lx)
if CFG["dual"]:
    A(f"s_cmp_lg_u32 s{S_TO}, {CFG['timeout'] - 4}")
    A(f"s_cbranch_scc1 {lxs}")
    C("partner not seen through L2 yet: also send the coherent copy")
    A(f"buffer_store_dwordx4 v[56:59], v70, {WS}, s65 offen sc1")
    L(lxs)
A(f"s_and_b32 s{S_T0}, s{S_TO}, 7")
A(f"s_cmp_eq_u32 s{S_T0}, 1")
A(f"s_cselect_b32 s{S_T1}, s64, s{62 if CFG['dual'] else 64}")
A(f"buffer_load_dwordx4 v[24:27], v70, {WS}, s{S_T1} offen sc1")
A(f"s_sub_u32 s{S_TO}, s{S_TO}, 1")
A(f"s_cbranch_scc1 {lxe}")
A("s_waitcnt vmcnt(0)")
A("v_cmp_ne_u64 vcc, v[26:27], v[58:59]")
A("s_cmp_lg_u64 vcc, 0")
A(f"s_cbranch_scc1 {lx}")
L(lxe)
A("s_waitcnt vmcnt(0)")
A("v_pk_add_f32 v[60:61], v[60:61], v[24:25]")
A("v_cvt_pk_bf16_f32 v60, v60, v61")
nop(2)
A("v_mov_b32_dpp v61, v60 quad_perm:[2,3,0,1] row_mask:0xf bank_mask:0xf")
set_exec(0x0033003300330033)
A(f"buffer_store_dwordx4 v[60:63], v69, {WS}, s{S_T5} offen sc1")
if CFG["dual"]:
    C("always leave a coherent copy for the partner")
    set_exec(0x00ff00ff00ff00ff)
    A(f"buffer_store_dwordx4 v[56:59], v70, {WS}, s65 offen sc1")
A("s_mov_b64 exec, -1")
stamp(3)
A("s_branch L_qm1")
begin("qm2")
L("L_qm1")
A(f"s_cmp_eq_u32 s{S_ROLE}, 0")
A("s_cbranch_scc1 L_exit")
A("s_barrier")
A(f"v_mov_b32 v{V_T}, 0")
A(f"ds_read_b64 v[{TT+2}:{TT+3}], v{V_T} offset:{L_TAG}")
A(f"ds_read_b128 v[{V_TG}:{V_TG+3}], v{V_T} offset:{L_TAG + 16}")
A(f"s_cmp_eq_u32 s{S_ROLE}, 2")
A("s_cbranch_scc1 L_F")

C("==== E: wo projection, 8 waves: head=w&3, col half=w>>2; wave gathers records 2w,2w+1")
V_WX = 16
A(f"s_lshl_b32 s{S_T1}, s{S_X}, 4")
A(f"s_lshl_b32 s{S_T2}, s{S_WAVE}, 1")
A(f"s_add_u32 s{S_T1}, s{S_T1}, s{S_T2}")
A(f"s_mul_i32 s{S_T1}, s{S_T1}, {RECP}")
A(f"s_add_u32 s{S_PNA}, s{S_T1}, {WS_PNA if CFG['dual'] else WS_PNB}")
A(f"s_add_u32 s{S_PNB}, s{S_T1}, {WS_PNB}")
EA0, EA1, EA2, EA3, EA4, EA5 = V_T + 36, V_T + 37, V_T + 38, V_T + 39, V_T + 2, V_T + 3
C("stats gather addr: lane<8: (l>>2)*RECP + (l&3)*16 (+1024)")
A(f"v_lshrrev_b32 v{EA0}, 2, v0")
A(f"s_movk_i32 s{S_T2}, {RECP}")
A(f"v_mul_lo_u32 v{EA0}, v{EA0}, s{S_T2}")
A(f"v_and_b32 v{EA1}, 3, v0")
A(f"v_lshl_add_u32 v{EA0}, v{EA1}, 4, v{EA0}")
A(f"s_mul_i32 s{S_T2}, s{S_WAVE}, {2*PNP}")
A(f"s_add_u32 s{S_T2}, s{S_T2}, {L_PS}")
A(f"v_add_u32 v{EA1}, s{S_T2}, v2")
A(f"s_lshl_b32 s{S_T2}, s{S_WAVE}, 7")
A(f"v_add_u32 v{EA2}, s{S_T2}, v2")
A(f"s_and_b32 s{S_T4}, s{S_WAVE}, 3")
A(f"s_lshr_b32 s{S_T5}, s{S_WAVE}, 2")
A(f"s_movk_i32 s{S_T2}, {PNP}")
A(f"v_mul_lo_u32 v{EA3}, v6, s{S_T2}")
A(f"v_lshl_add_u32 v{EA3}, v4, 4, v{EA3}")
A(f"s_lshl_b32 s{S_T2}, s{S_T4}, 6")
A(f"s_add_u32 s{S_T2}, s{S_T2}, {L_PS}")
A(f"v_add_u32 v{EA3}, s{S_T2}, v{EA3}")
A(f"v_lshlrev_b32 v{EA4}, 6, v6")
A(f"s_lshl_b32 s{S_T2}, s{S_T4}, 4")
A(f"v_add_u32 v{EA4}, s{S_T2}, v{EA4}")
A(f"s_lshl_b32 s{S_T2}, s{S_T4}, 9")
A(f"s_lshl_b32 s{S_T3}, s{S_T5}, 8")
A(f"s_add_u32 s{S_T2}, s{S_T2}, s{S_T3}")
A(f"v_lshl_add_u32 v{EA5}, v0, 2, s{S_T2}")
C("weights tr-read addr: WO + hd*16384 + ch*512 + (l>>5)*1024 + (l&31)*8")
A(f"v_lshrrev_b32 v{TT}, 5, v0")
A(f"v_lshlrev_b32 v{TT}, 10, v{TT}")
A(f"v_and_b32 v{TT+1}, 31, v0")
A(f"v_lshl_add_u32 v{TT}, v{TT+1}, 3, v{TT}")
A(f"s_lshl_b32 s{S_T2}, s{S_T4}, 14")
A(f"s_lshl_b32 s{S_T3}, s{S_T5}, 9")
A(f"s_add_u32 s{S_T2}, s{S_T2}, s{S_T3}")
A(f"s_add_u32 s{S_T2}, s{S_T2}, {L_WO}")
A(f"v_add_u32 v{TT}, s{S_T2}, v{TT}")
A(f"v_mul_u32_u24 v{V_T+32}, 80, v4")
C("final-stage addresses (wave 0, lanes<32): RED read / AP write")
A(f"v_bfe_u32 v{V_T+33}, v0, 3, 1")
A(f"v_lshlrev_b32 v{V_T+33}, 8, v{V_T+33}")
A(f"v_lshl_add_u32 v{V_T+33}, v4, 7, v{V_T+33}")
A(f"v_and_b32 v{V_T+34}, 7, v0")
A(f"v_lshl_add_u32 v{V_T+33}, v{V_T+34}, 4, v{V_T+33}")
A(f"v_lshlrev_b32 v{V_T+34}, 11, v4")
A(f"v_lshl_add_u32 v{V_T+34}, v6, 4, v{V_T+34}")
A(f"s_lshl_b32 s{S_NT}, s{S_X}, 12")
A(f"s_lshl_b32 s{S_T1}, s{S_SUB}, 8")
A(f"s_add_u32 s{S_NT}, s{S_NT}, s{S_T1}")
A(f"s_add_u32 s{S_NT}, s{S_NT}, {WS_AP}")
if CFG["dry3"]:
    A("s_waitcnt lgkmcnt(0)")
    A("s_mov_b64 exec, 0")
    A("s_branch L_edry")
L("L_eret")
A("s_waitcnt vmcnt(0) lgkmcnt(0)")
A("s_barrier")
stamp(4)
L("L_edry")
C("DRY{")
for kp in range(4):
    for c in range(2):
        for h in range(2):
            r = V_WX + (kp * 2 + c) * 4 + 2 * h
            A(f"ds_read_b64_tr_b16 v[{r}:{r+1}], v{TT} offset:{kp*4096 + h*2048 + c*256}")
SG = V_G + 8
le, lee = newlbl("Le"), newlbl("Lee")
A(f"s_mov_b32 s{S_TO}, {CFG['timeout']}")
L(le)
A(f"s_and_b32 s{S_T0}, s{S_TO}, {CFG['bmask']}")
A(f"s_cmp_eq_u32 s{S_T0}, 1")
A(f"s_cselect_b32 s{S_T1}, s{S_PNB}, s{S_PNA}")
A(f"v_mov_b32 v{SG+2}, v{TT+2}")
A(f"v_mov_b32 v{SG+3}, v{TT+3}")
A("s_mov_b64 exec, 0xff")
A(f"buffer_load_dwordx4 v[{SG}:{SG+3}], v{EA0}, {WS}, s{S_T1} offen offset:1024 sc1")
A("s_mov_b64 exec, -1")
for i in range(2):
    r = V_G + i * 4
    A(f"buffer_load_dwordx4 v[{r}:{r+3}], v2, {WS}, s{S_T1} offen offset:{i*RECP} sc1")
A(f"s_sub_u32 s{S_TO}, s{S_TO}, 1")
A(f"s_cbranch_scc1 {lee}")
A("s_waitcnt vmcnt(0)")
tree3("v_max3_u32", "v_max_u32", range(V_G, V_G + 8), TT)
A(f"v_cmp_eq_u32 vcc, -1, v{TT}")
A(f"v_cmp_ne_u64 s[{S_T2}:{S_T3}], v[{SG+2}:{SG+3}], v[{TT+2}:{TT+3}]")
A(f"s_or_b64 vcc, vcc, s[{S_T2}:{S_T3}]")
A(f"s_cbranch_scc1 {le}")
L(lee)
A("s_waitcnt vmcnt(0)")
stamp(7)
for i in range(2):
    r = V_G + i * 4
    A(f"ds_write_b128 v{EA1}, v[{r}:{r+3}] offset:{i*PNP}")
A("s_mov_b64 exec, 0xff")
A(f"ds_write_b128 v{EA2}, v[{SG}:{SG+3}] offset:{L_STS}")
A("s_mov_b64 exec, -1")
A("s_waitcnt lgkmcnt(0)")
A("s_barrier")
SM0 = V_T + 4
MG = V_T + 8
FW = V_T + 24
A(f"ds_read_b64 v[{SM0}:{SM0+1}], v{EA4} offset:{L_STS}")
for kp in range(4):
    r = V_G + kp * 4
    A(f"ds_read_b128 v[{r}:{r+3}], v{EA3} offset:{kp*256}")
EA = V_S
A("s_waitcnt lgkmcnt(4)")
A(f"v_mov_b32 v{MG}, v{SM0}")
R8 = ROW_ALL[:3]
fill = []
for c in R8:
    fill.append(["s_nop 0", f"v_max_f32_dpp v{MG}, v{MG}, v{MG} {c} row_mask:0xf bank_mask:0xf"])
fill.append([f"v_sub_f32 v{SM0}, v{SM0}, v{MG}", f"v_exp_f32 v{SM0}, v{SM0}", "s_nop 0", f"v_mul_f32 v{MG}, v{SM0}, v{SM0+1}"])
for c in R8:
    fill.append(["s_nop 0", f"v_add_f32_dpp v{MG}, v{MG}, v{MG} {c} row_mask:0xf bank_mask:0xf"])
fill.append([f"v_rcp_f32 v{MG}, v{MG}", "s_nop 0", f"v_mul_f32 v{SM0}, v{SM0}, v{MG}"])
fi = 0
for kp in range(4):
    A(f"s_waitcnt lgkmcnt({3-kp})")
    for c in range(2):
        d = EA + c * 4
        mfma(d, V_G + kp * 4, V_WX + (kp * 2 + c) * 4, None if kp == 0 else d)
        for ins in fill[fi]:
            A(ins)
        fi += 1
assert fi == len(fill)
for r in range(4):
    A(f"ds_bpermute_b32 v{FW+r}, v{V_T+32}, v{SM0} offset:{4*r}")
A("s_waitcnt lgkmcnt(0)")
for c in range(2):
    d = EA + 4 * c
    A(f"v_mul_f32 v{d}, v{d}, v{FW}")
    A(f"v_mul_f32 v{d+2}, v{d+2}, v{FW+2}")
    A(f"v_fmac_f32 v{d}, v{d+1}, v{FW+1}")
    A(f"v_fmac_f32 v{d+2}, v{d+3}, v{FW+3}")
for c in range(2):
    d = EA + 4 * c
    A(f"v_add_f32 v{d}, v{d}, v{d+2}")
nop(2)
A(f"v_permlane16_swap_b32 v{EA}, v{EA+4}")
A(f"v_add_f32 v{EA}, v{EA}, v{EA+4}")
A(f"ds_write_b32 v{EA5}, v{EA} offset:{L_RED}")
A("s_waitcnt lgkmcnt(0)")
A("s_barrier")
A(f"s_cmp_lg_u32 s{S_WAVE}, 0")
A("s_cbranch_scc1 L_exit")
A("s_mov_b32 exec_hi, 0")
for i in range(4):
    A(f"ds_read_b128 v[{V_G+4*i}:{V_G+4*i+3}], v{V_T+33} offset:{L_RED + i*512}")
A("s_waitcnt lgkmcnt(0)")
for j in (0, 2):
    A(f"v_pk_add_f32 v[{V_G+j}:{V_G+j+1}], v[{V_G+j}:{V_G+j+1}], v[{V_G+4+j}:{V_G+5+j}]")
    A(f"v_pk_add_f32 v[{V_G+8+j}:{V_G+9+j}], v[{V_G+8+j}:{V_G+9+j}], v[{V_G+12+j}:{V_G+13+j}]")
for j in (0, 2):
    A(f"v_pk_add_f32 v[{V_G+j}:{V_G+j+1}], v[{V_G+j}:{V_G+j+1}], v[{V_G+8+j}:{V_G+9+j}]")
tag(V_G, V_TG)
A(f"buffer_store_dwordx4 v[{V_G}:{V_G+3}], v{V_T+34}, {WS}, s{S_NT} offen sc1")
stamp(8)
A("s_branch L_exit")

C("}DRY")
L("L_F")
C("==== F: MLP. 8 waves gather (b=w>>2, 128-col quarter q=w&3); waves 0..3 also do w1/gelu/w2")
V_W2 = 128
FG = 48
HX = 64
C("x[b][128q + 4(l&31)..] ; b1[mi*32 + (l&31)]")
srd(SRD_A, P_X, 2048)
A("v_and_b32 v12, 31, v0")
A("v_lshlrev_b32 v13, 3, v12")
A(f"s_lshl_b32 s{S_T0}, s{S_WAVE}, 8")
A(f"buffer_load_dwordx2 v[{V_SM}:{V_SM+1}], v13, {SA}, s{S_T0} offen")
srd(SRD_C, P_B1, 3584)
A("v_lshlrev_b32 v13, 1, v12")
A(f"s_lshl_b32 s{S_T0}, s{S_SUB}, 6")
A(f"buffer_load_ushort v{V_SM+2}, v13, {SC_}, s{S_T0} offen")
C("gather addr: (l>>5)*4096 + (l&31)*16 ; soffset = AP + w*512 + i*8192")
GAD, HA, STW, STR = V_T, V_T + 1, V_T + 2, V_T + 3
A(f"v_lshrrev_b32 v{GAD}, 5, v0")
A(f"v_lshlrev_b32 v{GAD}, 12, v{GAD}")
A(f"v_lshl_add_u32 v{GAD}, v12, 4, v{GAD}")
A(f"s_lshl_b32 s{S_T0}, s{S_WAVE}, 9")
A(f"s_add_u32 s{S_T0}, s{S_T0}, {WS_AP}")
SX = 62
for i in range(4):
    A(f"s_add_u32 s{SX+i}, s{S_T0}, {i*8192}")
C("hn write addr (cols 4j.., j=l&31): w*256 + (j>>3)*64 + (j&3)*16 + ((j>>2)&1)*8")
A(f"v_lshrrev_b32 v{HA}, 3, v12")
A(f"v_lshlrev_b32 v{HA}, 6, v{HA}")
A("v_and_b32 v13, 3, v0")
A(f"v_lshl_add_u32 v{HA}, v13, 4, v{HA}")
A("v_bfe_u32 v13, v0, 2, 1")
A(f"v_lshl_add_u32 v{HA}, v13, 3, v{HA}")
A(f"s_lshl_b32 s{S_T0}, s{S_WAVE}, 8")
A(f"v_add_u32 v{HA}, s{S_T0}, v{HA}")
C("LN stats exchange: STS + w*8 ; read STS + b*32 (sentinel initialised)")
A(f"s_lshl_b32 s{S_T0}, s{S_WAVE}, 3")
A(f"v_mov_b32 v{STW}, s{S_T0}")
A(f"s_lshr_b32 s{S_T0}, s{S_WAVE}, 2")
A(f"s_lshl_b32 s{S_T0}, s{S_T0}, 5")
A(f"v_mov_b32 v{STR}, s{S_T0}")
A("v_mov_b32 v14, -1")
A("v_mov_b32 v15, -1")
A(f"ds_write_b64 v{STW}, v[14:15] offset:{L_STS}")
C("compute-wave addresses")
vw2_addr()
A(f"s_lshl_b32 s{S_T0}, s{S_WAVE}, 13")
A(f"s_add_u32 s{S_T1}, s{S_T0}, {L_W2}")
A(f"v_add_u32 v{VB0}, s{S_T1}, v{VA0}")
A(f"v_add_u32 v{VB1}, s{S_T1}, v{VA1}")
A(f"s_add_u32 s{S_T1}, s{S_T0}, {L_WX}")
A(f"v_lshl_add_u32 v{TT}, v0, 3, s{S_T1}")
A0, A1, A2, YAD = V_T + 36, V_T + 37, V_T + 38, V_T + 39
A(f"v_lshlrev_b32 v{A0}, 10, v10")
A(f"v_lshl_add_u32 v{A0}, v4, 4, v{A0}")
A(f"s_lshl_b32 s{S_T0}, s{S_WAVE}, 8")
A(f"v_add_u32 v{A0}, s{S_T0}, v{A0}")
A(f"v_lshlrev_b32 v{A1}, 7, v6")
A(f"v_lshl_add_u32 v{A1}, v4, 4, v{A1}")
A(f"v_add_u32 v{A1}, s{S_T0}, v{A1}")
C("h1 write addr: lane (b=l>>5, c=l&31): H1 + w*128 + b*64 + ((c>>2)&3)*16 + (c>>4)*8 + (c&3)*2")
A(f"v_lshrrev_b32 v{A2}, 5, v0")
A(f"v_lshlrev_b32 v{A2}, 6, v{A2}")
A("v_bfe_u32 v13, v0, 2, 2")
A(f"v_lshl_add_u32 v{A2}, v13, 4, v{A2}")
A("v_bfe_u32 v13, v0, 4, 1")
A(f"v_lshl_add_u32 v{A2}, v13, 3, v{A2}")
A("v_and_b32 v13, 3, v0")
A(f"v_lshl_add_u32 v{A2}, v13, 1, v{A2}")
A(f"s_lshl_b32 s{S_T1}, s{S_WAVE}, 7")
A(f"s_add_u32 s{S_T1}, s{S_T1}, {L_H1}")
A(f"v_add_u32 v{A2}, s{S_T1}, v{A2}")
C("B_ct operand addresses: (n>>1)==ct ? H1 + w*128 + (n&1)*64 + g*16 : ZERO")
BA = V_T + 24
A("v_lshlrev_b32 v13, 6, v10")
A("v_lshl_add_u32 v13, v4, 4, v13")
A(f"v_add_u32 v13, s{S_T1}, v13")
A(f"v_mov_b32 v14, {L_ZERO}")
A("v_bfe_u32 v15, v0, 1, 3")
for ct in range(8):
    A(f"v_cmp_eq_u32 vcc, {ct}, v15")
    A("s_nop 1")
    A(f"v_cndmask_b32 v{BA+ct}, v14, v13, vcc")
for j in range(4):
    A(f"v_mov_b32 v{16+j}, 0")
A(f"ds_write_b128 v14, v[16:19]")
C("Y store addr: (n&1)*2048 + (n>>1)*64 + g*16 ; soff = Y + mi*YP + w*512")
A(f"v_lshlrev_b32 v{YAD}, 11, v10")
A(f"v_lshl_add_u32 v{YAD}, v15, 6, v{YAD}")
A(f"v_lshl_add_u32 v{YAD}, v4, 4, v{YAD}")
S_Y = 70
A(f"s_mul_i32 s{S_Y}, s{S_SUB}, {YP}")
A(f"s_lshl_b32 s{S_T1}, s{S_WAVE}, 9")
A(f"s_add_u32 s{S_Y}, s{S_Y}, s{S_T1}")
A(f"s_add_u32 s{S_Y}, s{S_Y}, {WS_Y}")
A("v_lshlrev_b32 v3, 2, v0")
if CFG["dry3"]:
    A("s_waitcnt lgkmcnt(0)")
    A("s_mov_b64 exec, 0")
    A("s_branch L_fdry")
L("L_fret")
A("s_waitcnt vmcnt(0) lgkmcnt(0)")
unpack(HX, V_SM, 2)
A(f"v_lshlrev_b32 v{V_SM+2}, 16, v{V_SM+2}")
A("s_barrier")
stamp(4)
L("L_fdry")
C("DRY{")
A(f"s_cmp_ge_u32 s{S_WAVE}, 4")
A("s_cbranch_scc1 L_F1")
for kp in range(4):
    for ct in range(2):
        for h in range(2):
            r = V_WX + (kp * 2 + ct) * 4 + 2 * h
            A(f"ds_read_b64_tr_b16 v[{r}:{r+1}], v{TT} offset:{kp*2048 + h*1024 + ct*512}")
A("s_waitcnt lgkmcnt(0)")
for ct in range(8):
    for h in range(2):
        r = V_W2 + ct * 4 + 2 * h
        A(f"ds_read_b64_tr_b16 v[{r}:{r+1}], v{VB0 + (ct & 1)} offset:{(ct >> 1)*256 + h*4096}")
L("L_F1")


def f_loads():
    for i in range(4):
        r = FG + i * 4
        A(f"buffer_load_dwordx4 v[{r}:{r+3}], v{GAD}, {WS}, s{SX+i} offen sc1")


tpoll(f_loads, range(FG, FG + 16), TT, V_TG, CFG['fsl'])
stamp(7)
for j in (0, 2):
    A(f"v_pk_add_f32 v[{FG+j}:{FG+j+1}], v[{FG+j}:{FG+j+1}], v[{FG+4+j}:{FG+5+j}]")
    A(f"v_pk_add_f32 v[{FG+8+j}:{FG+9+j}], v[{FG+8+j}:{FG+9+j}], v[{FG+12+j}:{FG+13+j}]")
for j in (0, 2):
    A(f"v_pk_add_f32 v[{FG+j}:{FG+j+1}], v[{FG+j}:{FG+j+1}], v[{FG+8+j}:{FG+9+j}]")
swap_steps("v_add_f32", [FG + j for j in range(4)], [FG + 4 + j for j in range(4)], which=(32,))
HP = FG + 8
pack(HP, FG, 2)
unpack(FG, HP, 2)
for j in range(4):
    A(f"v_add_f32 v{HX+j}, v{HX+j}, v{FG+j}")
pack(HP, HX, 2)
unpack(HX, HP, 2)
C("local stats around pivot c = h[first]")
A("s_nop 0")
A(f"v_readfirstlane_b32 s{S_T2}, v{HX}")
A("s_nop 1")
for j in range(4):
    A(f"v_subrev_f32 v{FG+j}, s{S_T2}, v{HX+j}")
SS, SQ = FG + 10, FG + 11
A(f"v_add_f32 v{SS}, v{FG}, v{FG+1}")
A(f"v_mul_f32 v{SQ}, v{FG}, v{FG}")
A(f"v_add_f32 v{FG+4}, v{FG+2}, v{FG+3}")
A(f"v_fmac_f32 v{SQ}, v{FG+1}, v{FG+1}")
A(f"v_add_f32 v{SS}, v{SS}, v{FG+4}")
A(f"v_fmac_f32 v{SQ}, v{FG+2}, v{FG+2}")
A(f"v_fmac_f32 v{SQ}, v{FG+3}, v{FG+3}")
nop(1)
dpp_steps("v_add_f32", [SS, SQ], ROW_ALL)
swap_steps("v_add_f32", [SS, SQ], [FG + 4, FG + 5], which=(16,))
C("mean_w = c + s/128 ; M2_w = ss - s*s/128")
A(f"v_mul_f32 v{FG+4}, {f2u(1.0/128):#x}, v{SS}")
A(f"v_fma_f32 v{SQ}, -v{FG+4}, v{SS}, v{SQ}")
A(f"v_add_f32 v{SS}, s{S_T2}, v{FG+4}")
A("s_mov_b64 exec, 1")
A(f"ds_write_b64 v{STW}, v[{SS}:{SQ}] offset:{L_STS}")
A("s_mov_b64 exec, -1")
l3, l3e = newlbl("Lst"), newlbl("Lste")
A(f"s_mov_b32 s{S_TO}, {CFG['timeout']}")
L(l3)
A(f"ds_read_b128 v[{FG}:{FG+3}], v{STR} offset:{L_STS}")
A(f"ds_read_b128 v[{FG+4}:{FG+7}], v{STR} offset:{L_STS + 16}")
A(f"s_sub_u32 s{S_TO}, s{S_TO}, 1")
A(f"s_cbranch_scc1 {l3e}")
A("s_waitcnt lgkmcnt(0)")
tree3("v_max3_u32", "v_max_u32", range(FG, FG + 8), TT)
A(f"v_cmp_eq_u32 vcc, -1, v{TT}")
A("s_cmp_lg_u64 vcc, 0")
A(f"s_cbranch_scc1 {l3}")
L(l3e)
A("s_waitcnt lgkmcnt(0)")
MEAN, VAR, TM = FG + 8, FG + 9, FG + 10
A(f"v_add_f32 v{MEAN}, v{FG}, v{FG+2}")
A(f"v_add_f32 v{TM}, v{FG+4}, v{FG+6}")
A(f"v_add_f32 v{VAR}, v{FG+1}, v{FG+3}")
A(f"v_add_f32 v{MEAN}, v{MEAN}, v{TM}")
A(f"v_add_f32 v{TM}, v{FG+5}, v{FG+7}")
A(f"v_mul_f32 v{MEAN}, 0.25, v{MEAN}" if False else f"v_mul_f32 v{MEAN}, {f2u(0.25):#x}, v{MEAN}")
A(f"v_add_f32 v{VAR}, v{VAR}, v{TM}")
for j in range(4):
    A(f"v_sub_f32 v{FG+2*j}, v{FG+2*j}, v{MEAN}")
A(f"v_mul_f32 v{TM}, v{FG}, v{FG}")
for j in range(1, 4):
    A(f"v_fmac_f32 v{TM}, v{FG+2*j}, v{FG+2*j}")
A(f"v_mul_f32 v{VAR}, {f2u(1.0/512):#x}, v{VAR}")
A(f"v_fmac_f32 v{VAR}, {f2u(0.25):#x}, v{TM}")
bf16r(MEAN, MEAN)
bf16r(VAR, VAR)
for j in range(4):
    A(f"v_sub_f32 v{FG+j}, v{HX+j}, v{MEAN}")
A(f"v_add_f32 v{VAR}, {f2u(1e-5):#x}, v{VAR}")
pack(HP + 4, FG, 2)
bf16r(VAR, VAR)
unpack(FG, HP + 4, 2)
A(f"v_sqrt_f32 v{VAR}, v{VAR}")
nop(1)
bf16r(VAR, VAR)
A(f"v_rcp_f32 v{VAR}, v{VAR}")
nop(1)
for j in range(4):
    A(f"v_mul_f32 v{FG+j}, v{FG+j}, v{VAR}")
pack(HP + 4, FG, 2)
A("s_mov_b32 exec_hi, 0")
A(f"ds_write_b64 v{HA}, v[{HP+4}:{HP+5}] offset:{L_HN}")
A("s_mov_b32 exec_hi, -1")
c0 = math.sqrt(2.0 / math.pi)
k0 = -2.0 * c0 * LOG2E
k1 = k0 * 0.044715
A(f"s_mov_b32 s{S_T1}, {f2u(k1):#x}")
A(f"v_mov_b32 v{TT}, {f2u(k0):#x}")
A("s_waitcnt lgkmcnt(0)")
A("s_barrier")
stamp(8)
A(f"s_cmp_ge_u32 s{S_WAVE}, 4")
A("s_cbranch_scc1 L_exit")
for kp in range(4):
    A(f"ds_read_b128 v[{V_Q+4*kp}:{V_Q+4*kp+3}], v{A0} offset:{L_HN + kp*64}")
for kp in range(4):
    A(f"s_waitcnt lgkmcnt({3-kp})")
    for ct in range(2):
        mfma(V_S + 4 * ct, V_WX + (kp * 2 + ct) * 4, V_Q + 4 * kp, None if kp == 0 else V_S + 4 * ct)
nop(6)
set_exec(MASK_N2)
A(f"ds_write_b128 v{A1}, v[{V_S}:{V_S+3}] offset:{L_RED}")
A(f"ds_write_b128 v{A1}, v[{V_S+4}:{V_S+7}] offset:{L_RED + 64}")
A("s_mov_b64 exec, -1")
A("s_waitcnt lgkmcnt(0)")
A("s_barrier")
U = 16
for wp in range(4):
    A(f"ds_read_b32 v{U+wp}, v3 offset:{L_RED + wp*256}")
A("s_waitcnt lgkmcnt(0)")
A(f"v_add_f32 v{U}, v{U}, v{U+1}")
A(f"v_add_f32 v{U+2}, v{U+2}, v{U+3}")
A(f"v_add_f32 v{U}, v{U}, v{U+2}")
bf16r(U, U)
A(f"v_add_f32 v{U}, v{U}, v{V_SM+2}")
bf16r(U, U)
A(f"v_mul_f32 v{U+1}, v{U}, v{U}")
A(f"v_fma_f32 v{U+1}, v{U+1}, s{S_T1}, v{TT}")
A(f"v_mul_f32 v{U+1}, v{U+1}, v{U}")
A(f"v_exp_f32 v{U+1}, v{U+1}")
nop(1)
A(f"v_add_f32 v{U+1}, 1.0, v{U+1}")
A(f"v_rcp_f32 v{U+1}, v{U+1}")
nop(1)
A(f"v_mul_f32 v{U}, v{U}, v{U+1}")
A(f"v_cvt_pk_bf16_f32 v{U}, v{U}, v{U}")
A(f"ds_write_b16 v{A2}, v{U}")
BO = 32
for ct in range(8):
    A(f"ds_read_b128 v[{BO+4*ct}:{BO+4*ct+3}], v{BA+ct}")
YA = 24
for ct in range(8):
    A(f"s_waitcnt lgkmcnt({7-ct})")
    mfma(YA, V_W2 + 4 * ct, BO + 4 * ct, None if ct == 0 else YA)
nop(8)
tag(YA, V_TG)
A(f"buffer_store_dwordx4 v[{YA}:{YA+3}], v{YAD}, {WS}, s{S_Y} offen sc1")
stamp(9)
A("s_branch L_exit")
C("}DRY")
if CFG["dry2"]:
    for r, ret in ((1, "L_kret"), (2, "L_eret"), (3, "L_fret")):
        L(f"L_exit_{r}")
        A("s_cbranch_execnz L_exit")
        A("s_mov_b64 exec, -1")
        A(f"s_branch {ret}")
L("L_exit")
stamp_flush()
L("L_end")
A("s_endpgm")

out.append(f""".section .rodata,"a"
.p2align 6
.amdhsa_kernel {NAME}_kernel
  .amdhsa_next_free_vgpr 168
  .amdhsa_next_free_sgpr 102
  .amdhsa_accum_offset 168
  .amdhsa_group_segment_fixed_size 0
  .amdhsa_kernarg_size 104
  .amdhsa_user_sgpr_count 2
  .amdhsa_user_sgpr_kernarg_segment_ptr 1
  .amdhsa_system_sgpr_workgroup_id_x 1
.end_amdhsa_kernel""")

order = CFG_ORDER
lines = [l for b in order for l in BLK[b]]


def dry_pass(lines):
    res, indry, k = [], False, 0
    i = 0

    def is_mem(t):
        return t.startswith(("buffer_", "global_", "s_load", "s_atomic", "s_barrier"))

    def exec_write(t):
        return t.startswith(("s_mov_b64 exec", "s_mov_b32 exec", "s_and_b64 exec"))

    def restores(t):
        return t in ("s_mov_b64 exec, -1", "s_mov_b32 exec_hi, -1")
    open_span, masked, nd = None, False, False
    for l in lines:
        t = l.strip()
        if t == "; DRY{":
            indry = True
            i += 1
            continue
        if t == "; }DRY":
            assert open_span is None or True
            if open_span:
                res.append(open_span + ":")
                open_span = None
            masked = False
            indry = False
            continue
        if not (indry and CFG["dry2"]):
            if t not in ("; ND{", "; }ND"):
                res.append(l)
            continue
        if t == "; ND{":
            nd = True
            if not open_span:
                k += 1
                open_span = f"L_sk{k}"
                res.append(f"    s_cbranch_execz {open_span}")
            continue
        if t == "; }ND":
            nd = False
            continue
        unsafe = nd or masked or is_mem(t) or exec_write(t)
        if masked and t == "s_branch L_exit":
            unsafe = False
            masked = False
        if t.endswith(" L_exit"):
            l = l + f"_{i}"
        if unsafe:
            if not open_span:
                k += 1
                open_span = f"L_sk{k}"
                res.append(f"    s_cbranch_execz {open_span}")
            res.append(l)
            if exec_write(t):
                masked = not restores(t)
        else:
            if open_span:
                res.append(open_span + ":")
                open_span = None
            res.append(l)
    return res


print("\n".join(dry_pass(lines)))
```

```python
import sys, struct, math

NAME = "sequential_preLN__sliding_block_cached__dense_activation_gelu__decode"

CFG = dict(nt=1, timeout=1 << 18, stamps=0, dual=1, tsleep0=10, tsleep=3, tsleepa=24, qsleep=0, mwin=4, touch=1, bmask=15, fsl=0, g1sl=0, g2sl=0, pf=29, pfw=16, touch2=1, kb0=6, kthm=0, kthn=8, dry=1, dry2=1, dry3=1, korder=0, ktouch=1, tl2=6)
for a in sys.argv[1:]:
    if "=" in a:
        k, v = a.split("=")
        CFG[k] = int(v)
NT = " nt" if CFG["nt"] else ""

WS_Q = 0x00000
RECP = 1152
WS_PNA = 0x10000
WS_PNB = 0x50000
WS_XQA = 0x90000
WS_XQB = 0x80000
WS_AP = 0xA8000
WS_Y = 0xB0000
YP = 4096 + 128
WS_TS = 0xF0000
WS_SIZE = 0x200000

L_QL = 0
L_XN = 0
L_SC = 2048
L_QR = 2048
L_HN = 4096
L_RED = 6144
L_STS = 8192
L_QS = 9216
L_H1 = 9216
L_ZERO = 9728
L_MX = 10240
L_LS = 10368
L_FLAG = 10496
L_TAG = 10512
L_FL2 = 10544
L_DUM = 10560
BIG = 11264
L_K = BIG
L_V = BIG + 65536
L_WQ = BIG
L_WO = BIG + 32768
L_WX = BIG + 32768
L_W2 = BIG + 65536
L_PS = BIG + 98304
PNP = 1040
LDS_BYTES = BIG + 131072

LOG2E = 1.4426950408889634
SCALE = 128 ** -0.5


def f2u(f):
    return struct.unpack("<I", struct.pack("<f", f))[0]


out = []


def A(s):
    out.append("    " + s)


def L(s):
    out.append(s + ":")


def C(s):
    out.append("    ; " + s)


def nop(n):
    while n > 0:
        k = min(n, 16)
        A(f"s_nop {k-1}")
        n -= k


_lbl = [0]


def newlbl(p="L"):
    _lbl[0] += 1
    return f"{p}_{_lbl[0]}"


P_X, P_K, P_V, P_WQ, P_WO, P_BX, P_W1, P_B1, P_W2, P_B2, P_OUT, P_DBG, P_WS = [36 + 2 * i for i in range(13)]
S_WAVE, S_X, S_A, S_B, S_SPL = 3, 4, 5, 6, 7
SRD_WS, SRD_A, SRD_B, SRD_C = 8, 12, 16, 20
S_T0, S_T1, S_T2, S_T3, S_T4, S_T5 = 24, 25, 26, 27, 28, 29
S_TO, S_ROLE, S_SUB, S_NT, S_PNA, S_PNB = 30, 31, 32, 33, 34, 35
S_Q = 36
S_TG = 100
WS = f"s[{SRD_WS}:{SRD_WS+3}]"
SA = f"s[{SRD_A}:{SRD_A+3}]"
SB = f"s[{SRD_B}:{SRD_B+3}]"
SC_ = f"s[{SRD_C}:{SRD_C+3}]"
V_ST = 1
S_DRY = 7
CFG_ORDER = ["head", "qc", "ldr", "gv", "att", "qm2"]
V_MSK = 5


def srd(d, p, size):
    A(f"s_mov_b32 s{d}, s{p}")
    A(f"s_mov_b32 s{d+1}, s{p+1}")
    A(f"s_mov_b32 s{d+2}, {size:#x}")
    A(f"s_mov_b32 s{d+3}, 0x00020000")


def stamp(slot):
    if CFG["stamps"]:
        A("s_memrealtime s[0:1]")
        A("s_waitcnt lgkmcnt(0)")
        A(f"v_writelane_b32 v{V_ST}, s0, {slot}")


def stamp_flush():
    if not CFG["stamps"]:
        return
    if CFG["stamps"] == 2:
        A("s_mov_b64 exec, -1")
        A(f"v_mov_b32 v2, {L_TAG}")
        A("ds_read_b32 v3, v2")
        A("s_waitcnt lgkmcnt(0)")
        A(f"v_sub_u32 v3, v{V_ST}, v3")
        A("v_max_i32 v3, 0, v3")
        A("v_lshlrev_b32 v2, 2, v0")
        A("v_add_co_u32 v166, vcc, v166, v2")
        A("v_addc_co_u32 v167, vcc, 0, v167, vcc")
        A(f"v_cmp_ne_u32 vcc, 0, v{V_ST}")
        A("s_bitcmp1_b32 vcc_lo, 11")
        A("s_cbranch_scc0 L_end")
        A("s_and_b64 exec, vcc, 0x1fff")
        A("s_cbranch_execz L_end")
        A("global_atomic_umax v[166:167], v3, off offset:8")
        return
    A("s_mov_b64 exec, -1")
    A("s_lshl_b32 s0, s2, 10")
    A(f"s_lshl_b32 s1, s{S_WAVE}, 6")
    A("s_add_u32 s0, s0, s1")
    A(f"s_add_u32 s0, s0, {WS_TS}")
    A("v_lshlrev_b32 v2, 2, v0")
    A("s_mov_b64 exec, 0xffff")
    A(f"buffer_store_dword v{V_ST}, v2, {WS}, s0 offen")


def dpp_steps(op, regs, ctrls):
    for c in ctrls:
        pad = max(0, 2 - (len(regs) - 1))
        if pad:
            nop(pad)
        for r in regs:
            A(f"{op}_dpp v{r}, v{r}, v{r} {c} row_mask:0xf bank_mask:0xf")


ROW_ALL = ["quad_perm:[1,0,3,2]", "quad_perm:[2,3,0,1]", "row_half_mirror", "row_mirror"]
ROW_HI = ["row_ror:4", "row_ror:8"]


def swap_steps(op, regs, tmps, which=(16, 32)):
    for wd in which:
        sw = f"v_permlane{wd}_swap_b32"
        for r, t in zip(regs, tmps):
            A(f"v_mov_b32 v{t}, v{r}")
        pad = max(0, 2 - (len(regs) - 1))
        if pad:
            nop(pad)
        for r, t in zip(regs, tmps):
            A(f"{sw} v{r}, v{t}")
        for r, t in zip(regs, tmps):
            A(f"{op} v{r}, v{r}, v{t}")


def allreduce(op, regs, tmps):
    nop(2)
    dpp_steps(op, regs, ROW_ALL)
    swap_steps(op, regs, tmps)


def lds_wait(flag_off, vt, va, sleep=0):
    l, e = newlbl("Lw"), newlbl("Lwe")
    A(f"v_mov_b32 v{va}, {flag_off}")
    A(f"s_mov_b32 s{S_TO}, {CFG['timeout']}")
    L(l)
    if sleep:
        A(f"s_sleep {sleep}")
    A(f"ds_read_b32 v{vt}, v{va}")
    A(f"s_sub_u32 s{S_TO}, s{S_TO}, 1")
    A(f"s_cbranch_scc1 {e}")
    A("s_waitcnt lgkmcnt(0)")
    A(f"v_readfirstlane_b32 s{S_T0}, v{vt}")
    A(f"s_cmp_eq_u32 s{S_T0}, 0")
    A(f"s_cbranch_scc1 {l}")
    L(e)
    A("s_waitcnt lgkmcnt(0)")


def lds_set(flag_off, vt, va):
    A("s_waitcnt lgkmcnt(0)")
    A(f"v_mov_b32 v{va}, {flag_off}")
    A(f"v_mov_b32 v{vt}, 1")
    A(f"ds_write_b32 v{va}, v{vt}")


def lds_sync(cnt_off, n, vt, va):
    l, e = newlbl("Ls"), newlbl("Lse")
    A(f"v_mov_b32 v{va}, {cnt_off}")
    A(f"v_mov_b32 v{vt}, 1")
    A("s_mov_b64 exec, 1")
    A(f"ds_add_u32 v{va}, v{vt}")
    A("s_mov_b64 exec, -1")
    A(f"s_mov_b32 s{S_TO}, {CFG['timeout']}")
    L(l)
    A(f"ds_read_b32 v{vt}, v{va}")
    A(f"s_sub_u32 s{S_TO}, s{S_TO}, 1")
    A(f"s_cbranch_scc1 {e}")
    A("s_waitcnt lgkmcnt(0)")
    A(f"v_readfirstlane_b32 s{S_T0}, v{vt}")
    A(f"s_cmp_lt_u32 s{S_T0}, {n}")
    A(f"s_cbranch_scc1 {l}")
    L(e)
    A("s_waitcnt lgkmcnt(0)")


def tree3(op3, op2, regs, t):
    regs = list(regs)
    A(f"{op3} v{t}, v{regs[0]}, v{regs[1]}, v{regs[2]}")
    i = 3
    while i + 1 < len(regs):
        A(f"{op3} v{t}, v{t}, v{regs[i]}, v{regs[i+1]}")
        i += 2
    if i < len(regs):
        A(f"{op2} v{t}, v{t}, v{regs[i]}")


def tag(quad, tg):
    for j in range(4):
        A(f"v_add_u32 v{quad+j}, 0x200, v{quad+j}")
    for j in range(4):
        A(f"v_bfi_b32 v{quad+j}, v{V_MSK}, v{tg+j}, v{quad+j}")


def tpoll(loads, regs, t, tg, sleep=0):
    l, e = newlbl("Lt"), newlbl("Lte")
    regs = list(regs)
    A(f"s_mov_b32 s{S_TO}, {CFG['timeout']}")
    L(l)
    if sleep:
        A(f"s_sleep {sleep}")
    loads()
    A(f"s_sub_u32 s{S_TO}, s{S_TO}, 1")
    A(f"s_cbranch_scc1 {e}")
    A("s_waitcnt vmcnt(0)")
    for i, r in enumerate(regs):
        A(f"v_xor_b32 v{r}, v{r}, v{tg + (i & 3)}")
    tree3("v_or3_b32", "v_or_b32", regs, t)
    A(f"v_and_b32 v{t}, v{V_MSK}, v{t}")
    A(f"v_cmp_ne_u32 vcc, 0, v{t}")
    A("s_cmp_lg_u64 vcc, 0")
    A(f"s_cbranch_scc1 {l}")
    L(e)
    A("s_waitcnt vmcnt(0)")


def tpoll2(loads, nld, bases, nreg, t, tg, consume):
    l, eA, eB, done = newlbl("Lu"), newlbl("LuA"), newlbl("LuB"), newlbl("Lud")

    def check(base, target):
        A(f"s_waitcnt vmcnt({nld})")
        regs = list(range(base, base + nreg))
        for i, r in enumerate(regs):
            A(f"v_xor_b32 v{r}, v{r}, v{tg + (i & 3)}")
        tree3("v_or3_b32", "v_or_b32", regs, t)
        A(f"v_and_b32 v{t}, v{V_MSK}, v{t}")
        A(f"v_cmp_ne_u32 vcc, 0, v{t}")
        A("s_cmp_eq_u64 vcc, 0")
        A(f"s_cbranch_scc1 {target}")
    A(f"s_mov_b32 s{S_TO}, {CFG['timeout']}")
    loads(bases[0])
    L(l)
    loads(bases[1])
    check(bases[0], eA)
    loads(bases[0])
    check(bases[1], eB)
    A(f"s_sub_u32 s{S_TO}, s{S_TO}, 1")
    A(f"s_cbranch_scc0 {l}")
    A("s_waitcnt vmcnt(0)")
    L(eA)
    consume(bases[0])
    A(f"s_branch {done}")
    L(eB)
    consume(bases[1])
    L(done)


def bf16r(dst, src):
    A(f"v_cvt_pk_bf16_f32 v{dst}, v{src}, v{src}")
    A(f"v_lshlrev_b32 v{dst}, 16, v{dst}")


def unpack(dst, src, n):
    for i in range(n):
        A(f"v_lshlrev_b32 v{dst+2*i}, 16, v{src+i}")
        A(f"v_and_b32 v{dst+2*i+1}, 0xffff0000, v{src+i}")


def pack(dst, src, n):
    for i in range(n):
        A(f"v_cvt_pk_bf16_f32 v{dst+i}, v{src+2*i}, v{src+2*i+1}")


def layernorm(xs, nb, tmp, outp):
    s = [tmp + i for i in range(nb)]
    q = [tmp + nb + i for i in range(nb)]
    t = [tmp + 2 * nb + i for i in range(nb)]
    mb = [tmp + 3 * nb + i for i in range(nb)]
    d = [tmp + 4 * nb + 8 * i for i in range(nb)]
    for i in range(nb):
        x = xs[i]
        A(f"v_add_f32 v{s[i]}, v{x}, v{x+1}")
        A(f"v_add_f32 v{t[i]}, v{x+2}, v{x+3}")
        A(f"v_add_f32 v{q[i]}, v{x+4}, v{x+5}")
        A(f"v_add_f32 v{mb[i]}, v{x+6}, v{x+7}")
        A(f"v_add_f32 v{s[i]}, v{s[i]}, v{t[i]}")
        A(f"v_add_f32 v{q[i]}, v{q[i]}, v{mb[i]}")
        A(f"v_add_f32 v{s[i]}, v{s[i]}, v{q[i]}")
    allreduce("v_add_f32", s, t)
    for i in range(nb):
        A(f"v_mul_f32 v{s[i]}, {f2u(1.0/512):#x}, v{s[i]}")
    for i in range(nb):
        x = xs[i]
        for j in range(8):
            A(f"v_sub_f32 v{d[i]+j}, v{x+j}, v{s[i]}")
        A(f"v_mul_f32 v{q[i]}, v{d[i]}, v{d[i]}")
        for j in range(1, 8):
            A(f"v_fmac_f32 v{q[i]}, v{d[i]+j}, v{d[i]+j}")
        bf16r(mb[i], s[i])
    nop(2)
    dpp_steps("v_add_f32", q, ROW_ALL)
    for i in range(nb):
        x = xs[i]
        for j in range(8):
            A(f"v_sub_f32 v{d[i]+j}, v{x+j}, v{mb[i]}")
        pack(outp[i], d[i], 4)
        unpack(d[i], outp[i], 4)
    swap_steps("v_add_f32", q, t)
    for i in range(nb):
        A(f"v_mul_f32 v{q[i]}, {f2u(1.0/512):#x}, v{q[i]}")
        bf16r(q[i], q[i])
        A(f"v_add_f32 v{q[i]}, {f2u(1e-5):#x}, v{q[i]}")
        bf16r(q[i], q[i])
        A(f"v_sqrt_f32 v{q[i]}, v{q[i]}")
        nop(1)
        bf16r(q[i], q[i])
        A(f"v_rcp_f32 v{q[i]}, v{q[i]}")
    nop(1)
    for i in range(nb):
        for j in range(8):
            A(f"v_mul_f32 v{d[i]+j}, v{d[i]+j}, v{q[i]}")
        pack(outp[i], d[i], 4)


def mfma(d, a, b, c=None):
    cc = f"v[{c}:{c+3}]" if c is not None else "0"
    A(f"v_mfma_f32_16x16x32_bf16 v[{d}:{d+3}], v[{a}:{a+3}], v[{b}:{b+3}], {cc}")


MASK_N2 = 0x0003000300030003
MASK_N4 = 0x000f000f000f000f


def set_exec(mask):
    A(f"s_mov_b32 exec_lo, {mask & 0xffffffff:#x}")
    A(f"s_mov_b32 exec_hi, {mask >> 32:#x}")


def tag_poll(sleep0, sel, barrier=False):
    lt, lte = newlbl(), newlbl()
    A(f"s_and_b32 s{S_T1}, s{sel}, 3")
    A(f"s_lshl_b32 s{S_T1}, s{S_T1}, 6")
    A(f"s_mov_b32 s{S_TO}, {CFG['timeout']}")
    if sleep0:
        A(f"s_sleep {sleep0}")
    if CFG["tl2"]:
        C("first attempts through the caches, one replica line each (a line is never re-read that way)")
        for r in range(4):
            A(f"s_load_dwordx2 s[{S_TG}:{S_TG+1}], s[{P_DBG}:{P_DBG+1}], {64*r}")
            A("s_waitcnt lgkmcnt(0)")
            A(f"s_cmp_lg_u32 s{S_TG+1}, 0")
            A(f"s_cbranch_scc1 {lte}")
            A(f"s_sleep {CFG['tl2']}")
    L(lt)
    A(f"s_load_dwordx2 s[{S_TG}:{S_TG+1}], s[{P_DBG}:{P_DBG+1}], s{S_T1} glc")
    A(f"s_sub_u32 s{S_TO}, s{S_TO}, 1")
    A(f"s_cbranch_scc1 {lte}")
    A("s_waitcnt lgkmcnt(0)")
    A(f"s_cmp_lg_u32 s{S_TG+1}, 0")
    A(f"s_cbranch_scc1 {lte}")
    A(f"s_sleep {CFG['tsleep']}")
    A(f"s_branch {lt}")
    L(lte)
    A("s_waitcnt lgkmcnt(0)")
    A(f"v_mov_b32 v100, s{S_TG}")
    A(f"v_mov_b32 v101, s{S_TG+1}")
    A("v_and_b32 v104, 0x3ff, v100")
    A("v_bfe_u32 v105, v100, 10, 10")
    A("v_bfe_u32 v106, v100, 20, 10")
    A("v_alignbit_b32 v107, v101, v100, 30")
    A("v_and_b32 v107, 0x3ff, v107")
    A(f"v_mov_b32 v102, {L_TAG}")
    if barrier == 1:
        A("s_barrier")
    A("ds_write_b64 v102, v[100:101]")
    A("ds_write_b128 v102, v[104:107] offset:16")
    if barrier == 2:
        A("s_waitcnt lgkmcnt(0)")
    else:
        lds_set(L_FLAG, 100, 101)


XNT = ' nt' if CFG.get('xnt', 0) else ''
out.append(f"""; fused pre-LN attention(decode, sliding window) + gelu MLP, persistent kernel
; @launch grid=(256,1,1) block=(640,1,1) lds={LDS_BYTES}
.amdgcn_target "amdgcn-amd-amdhsa--gfx950"
.text
.globl {NAME}_kernel
.p2align 8
.type {NAME}_kernel,@function
{NAME}_kernel:""")

BLK = {"head": out}


def begin(name):
    global out
    BLK[name] = []
    out = BLK[name]


def post_entry():
    A("s_waitcnt lgkmcnt(0)")
    srd(SRD_WS, P_WS, WS_SIZE)
    if CFG["stamps"] == 2:
        A(f"v_mov_b32 v166, s{P_DBG}")
        A(f"v_mov_b32 v167, s{P_DBG+1}")
    stamp(0)


def att_common():
    A(f"s_sub_u32 s{S_A}, s{S_A}, 16")
    A(f"s_lshr_b32 s{S_B}, s{S_A}, 3")
    A(f"s_lshl_b32 s{S_T0}, s{S_X}, 4")
    A(f"s_add_u32 s{S_T0}, s{S_T0}, s{S_A}")
    A(f"s_mul_i32 s{S_T0}, s{S_T0}, {RECP}")
    A(f"s_add_u32 s{S_PNA}, s{S_T0}, {WS_PNA}")
    A(f"s_add_u32 s{S_PNB}, s{S_T0}, {WS_PNB}")


def gv_common():
    A(f"s_mul_i32 s{S_SUB}, s{S_X}, 7")
    A(f"s_add_u32 s{S_SUB}, s{S_SUB}, s{S_A}")
    A(f"s_sub_u32 s{S_SUB}, s{S_SUB}, 8")
    A(f"s_mov_b32 s{S_ROLE}, 2")
    A(f"s_cmp_lt_u32 s{S_A}, 8")
    A(f"s_cselect_b32 s{S_ROLE}, 1, s{S_ROLE}")
    A(f"s_cselect_b32 s{S_SUB}, s{S_A}, s{S_SUB}")
    A(f"s_cmp_eq_u32 s{S_A}, 15")
    A(f"s_cselect_b32 s{S_ROLE}, 0, s{S_ROLE}")


def zero_flags():
    for j in range(4):
        A(f"v_mov_b32 v{12+j}, 0")
    A(f"v_mov_b32 v3, {L_FLAG}")
    A("ds_write_b128 v3, v[12:15]")
    A(f"ds_write_b128 v3, v[12:15] offset:{L_FL2 - L_FLAG}")


A("s_cmp_ge_u32 s2, 256")
A("s_cbranch_scc1 L_end")
A("s_load_dwordx16 s[36:51], s[0:1], 0")
A("s_load_dwordx8 s[52:59], s[0:1], 64")
A("s_load_dwordx2 s[60:61], s[0:1], 96")
A("v_lshrrev_b32 v1, 6, v0")
A("v_and_b32 v0, 63, v0")
A(f"s_and_b32 s{S_X}, s2, 7")
A(f"v_readfirstlane_b32 s{S_WAVE}, v1")
A(f"s_lshr_b32 s{S_A}, s2, 3")
if CFG["pf"]:
    C("early workgroups: waves 0..5 pull the kernel's code into L2 (striped)")
    A(f"s_cmp_ge_u32 s{S_WAVE}, 5")
    A("s_cbranch_scc1 L_pfe")
    A(f"s_cmp_ge_u32 s{S_A}, {CFG['pfw']}")
    A("s_cbranch_scc1 L_pfe")
    A("s_getpc_b64 s[24:25]")
    L("L_pcref")
    A(f"s_lshl_b32 s26, s{S_WAVE}, 7")
    L("L_pf")
    A("s_load_dword s27, s[24:25], s26")
    A("s_add_u32 s26, s26, 640")
    A("s_cmp_lt_u32 s26, L_end-L_pcref")
    A("s_cbranch_scc1 L_pf")
    L("L_pfe")
A("v_lshlrev_b32 v2, 4, v0")
A("v_lshrrev_b32 v4, 4, v0")
A(f"v_mov_b32 v{V_MSK}, 0x3ff")
A("v_and_b32 v6, 15, v0")
A("v_lshrrev_b32 v8, 3, v0")
A("v_bfe_u32 v9, v0, 1, 2")
A("v_and_b32 v10, 1, v0")
A("v_lshlrev_b32 v11, 5, v8")
A("v_lshl_add_u32 v11, v10, 4, v11")
if CFG["stamps"]:
    A(f"v_mov_b32 v{V_ST}, 0")
C("dispatch before waiting for the kernel arguments")
A(f"s_lshr_b32 s{S_T0}, s{S_A}, 4")
A(f"s_lshl_b32 s{S_T0}, s{S_T0}, 4")
A(f"s_or_b32 s{S_T0}, s{S_T0}, s{S_WAVE}")
A(f"s_cmp_ge_u32 s{S_T0}, 24")
A("s_cbranch_scc1 L_ldr")
A(f"s_cmp_ge_u32 s{S_T0}, 16")
A("s_cbranch_scc1 L_att")
if CFG["dry"]:
    A(f"s_cmp_lg_u32 s{S_T0}, 5")
    A("s_cbranch_scc1 L_nd")
    C("wave 5 walks the q wave's register/LDS code with EXEC=0 to warm the instruction cache")
    A("s_mov_b64 exec, 0")
    A("s_branch L_dry")
    L("L_nd")
A(f"s_cmp_lg_u32 s{S_T0}, 6")
A("s_cbranch_scc1 L_GV")

V_K = 16
V_Q = 48
V_S = 64
V_SM = 72
V_PNA = 80
V_T = 84
V_TG = 124
V_G = 128

begin("att")
L("L_att")
att_common()
post_entry()
srd(SRD_C, P_OUT, 2048)
srd(SRD_A, P_DBG, 256)
A(f"s_lshl_b32 s{S_T1}, s{S_WAVE}, 8")
A(f"s_add_u32 s{S_PNA}, s{S_PNA}, s{S_T1}")
A(f"s_add_u32 s{S_PNB}, s{S_PNB}, s{S_T1}")
A(f"v_lshlrev_b32 v{V_PNA}, 6, v6")
A(f"v_lshl_add_u32 v{V_PNA}, v4, 4, v{V_PNA}")
C("G role: even a -> gi = x*8 + a/2 (wave 0)")
A(f"s_lshl_b32 s{S_T0}, s{S_X}, 3")
A(f"s_lshr_b32 s{S_T1}, s{S_A}, 1")
A(f"s_add_u32 s{S_SUB}, s{S_T0}, s{S_T1}")
A(f"s_and_b32 s{S_ROLE}, s{S_A}, 1")
A(f"s_or_b32 s{S_ROLE}, s{S_ROLE}, s{S_WAVE}")
A(f"s_cmp_lg_u32 s{S_ROLE}, 0")
A("s_cbranch_scc1 L_nogsm")
srd(SRD_B, P_X, 2048)
A(f"v_and_b32 v{V_T}, 3, v0")
A(f"v_lshlrev_b32 v{V_T}, 3, v{V_T}")
A(f"s_lshl_b32 s{S_T0}, s{S_SUB}, 5")
A(f"buffer_load_dwordx2 v[{V_SM}:{V_SM+1}], v{V_T}, {SB}, s{S_T0} offen{XNT}")
if CFG["touch2"]:
    A(f"buffer_load_dwordx2 v[{V_SM+4}:{V_SM+5}], v{V_T}, {SC_}, s{S_T0} offen")
srd(SRD_B, P_B2, 1024)
A(f"s_and_b32 s{S_T0}, s{S_T0}, 1023")
A(f"buffer_load_dwordx2 v[{V_SM+2}:{V_SM+3}], v{V_T}, {SB}, s{S_T0} offen{XNT}")
L("L_nogsm")
C("pre-touch this wave's q lines so that they are resident at the memory side")
A(f"s_lshl_b32 s{S_T1}, s{S_X}, 12")
A(f"s_lshl_b32 s{S_T2}, s{S_B}, 11")
A(f"s_add_u32 s{S_T1}, s{S_T1}, s{S_T2}")
A(f"s_lshl_b32 s{S_T2}, s{S_WAVE}, 8")
A(f"s_add_u32 s{S_T1}, s{S_T1}, s{S_T2}")
A(f"s_add_u32 s{S_T2}, s{SRD_WS}, s{S_T1}")
A(f"s_addc_u32 s{S_T3}, s{SRD_WS+1}, 0")
if CFG["touch"]:
    for i in range(4):
        A(f"s_load_dword s{64+i}, s[{S_T2}:{S_T3}], {WS_Q + 64*i} glc")
C("K fragment addresses: K + w*8192 + m*256 + ((4k+g)^m)*16")
KA = V_T + 36
A(f"s_lshl_b32 s{S_T0}, s{S_WAVE}, 13")
A(f"s_add_u32 s{S_T0}, s{S_T0}, {L_K}")
for kp in range(4):
    A(f"v_add_u32 v{KA+kp}, {4*kp}, v4")
    A(f"v_xor_b32 v{KA+kp}, v{KA+kp}, v6")
    A(f"v_lshlrev_b32 v{KA+kp}, 4, v{KA+kp}")
    A(f"v_lshl_add_u32 v{KA+kp}, v6, 8, v{KA+kp}")
    A(f"v_add_u32 v{KA+kp}, s{S_T0}, v{KA+kp}")
A(f"s_cmp_lg_u32 s{S_WAVE}, 7")
A("s_cbranch_scc1 L_ntp")
tag_poll(CFG["tsleepa"], S_A, barrier=2)
L("L_ntp")
A("s_barrier")
A(f"v_mov_b32 v{V_T}, 0")
A(f"ds_read_b64 v[{V_T+2}:{V_T+3}], v{V_T} offset:{L_TAG}")
A(f"ds_read_b128 v[{V_TG}:{V_TG+3}], v{V_T} offset:{L_TAG + 16}")
A("s_waitcnt lgkmcnt(0)")
A(f"v_readfirstlane_b32 s{S_TG}, v{V_T+2}")
A(f"v_readfirstlane_b32 s{S_TG+1}, v{V_T+3}")
stamp(1)
S2 = V_T + 4
PK = V_T + 12
MM = V_T + 16
TT = V_T + 20
EX = V_T + 24
QA = V_T + 1
A(f"s_lshl_b32 s{S_T0}, s{S_WAVE}, 7")
A(f"v_lshl_add_u32 v{QA}, v0, 2, s{S_T0}")
A(f"v_and_b32 v{V_T+2}, 3, v0")
A(f"v_lshlrev_b32 v{V_T+3}, 8, v{V_T+2}")
A(f"v_lshl_add_u32 v{V_T+3}, v4, 4, v{V_T+3}")
A(f"s_lshl_b32 s{S_T0}, s{S_WAVE}, 2")
A(f"v_lshl_add_u32 v{TT+2}, v0, 5, s{S_T0}")
A(f"v_lshlrev_b32 v{TT+3}, 5, v{V_T+2}")
C("---- scalar gather of q: this wave's 256 bytes (16 granules {d0,d1,T0,T1})")
lq, lqe, lqk = newlbl("Lq"), newlbl("Lqe"), newlbl("Lqk")
stamp(12)


def k_frags():
    for kp in range(4):
        for tt in range(2):
            r = V_K + (tt * 4 + kp) * 4
            A(f"ds_read_b128 v[{r}:{r+3}], v{KA+kp} offset:{tt*4096}")


A(f"v_mov_b32 v{TT}, {L_FLAG + 4}")
A(f"s_mov_b32 s{S_NT}, 0")
A(f"s_mov_b32 s{S_TO}, {CFG['timeout']}")
L(lq)
for i in range(4):
    A(f"s_load_dwordx16 s[{S_Q+16*i}:{S_Q+16*i+15}], s[{S_T2}:{S_T3}], {WS_Q + 64*i} glc")
A(f"ds_read_b32 v{TT+1}, v{TT}")
A(f"s_sub_u32 s{S_TO}, s{S_TO}, 1")
A(f"s_cbranch_scc1 {lqe}")
A("s_waitcnt lgkmcnt(0)")
A(f"v_readfirstlane_b32 s{S_T0}, v{TT+1}")
A(f"s_andn2_b32 s{S_T0}, s{S_T0}, s{S_NT}")
A(f"s_cbranch_scc0 {lqk}")
A(f"s_mov_b32 s{S_NT}, 1")
k_frags()
L(lqk)
A(f"s_and_b64 s[{S_T4}:{S_T5}], s[{S_Q+2}:{S_Q+3}], s[{S_Q+6}:{S_Q+7}]")
A(f"s_or_b64 s[{S_T0}:{S_T1}], s[{S_Q+2}:{S_Q+3}], s[{S_Q+6}:{S_Q+7}]")
for gq in range(2, 16):
    A(f"s_and_b64 s[{S_T4}:{S_T5}], s[{S_T4}:{S_T5}], s[{S_Q+4*gq+2}:{S_Q+4*gq+3}]")
    A(f"s_or_b64 s[{S_T0}:{S_T1}], s[{S_T0}:{S_T1}], s[{S_Q+4*gq+2}:{S_Q+4*gq+3}]")
A(f"s_xor_b64 s[{S_T4}:{S_T5}], s[{S_T4}:{S_T5}], s[{S_TG}:{S_TG+1}]")
A(f"s_xor_b64 s[{S_T0}:{S_T1}], s[{S_T0}:{S_T1}], s[{S_TG}:{S_TG+1}]")
A(f"s_or_b64 s[{S_T4}:{S_T5}], s[{S_T4}:{S_T5}], s[{S_T0}:{S_T1}]")
A(f"s_cbranch_scc1 {lq}")
L(lqe)
A("s_waitcnt lgkmcnt(0)")
stamp(8)
if CFG["stamps"] == 1:
    A(f"s_sub_u32 s0, {CFG['timeout']}, s{S_TO}")
    A(f"v_writelane_b32 v{V_ST}, s0, 9")
for gq in range(16):
    A(f"v_writelane_b32 v{V_T}, s{S_Q+4*gq}, {2*gq}")
    A(f"v_writelane_b32 v{V_T}, s{S_Q+4*gq+1}, {2*gq+1}")
A("s_mov_b32 exec_hi, 0")
A(f"ds_write_b32 v{QA}, v{V_T} offset:{L_QL}")
A("s_mov_b32 exec_hi, -1")
A(f"s_cmp_lg_u32 s{S_NT}, 0")
A("s_cbranch_scc1 L_kok")
lds_wait(L_FLAG + 4, V_T, TT, sleep=1)
k_frags()
L("L_kok")
C("poll the q operand itself (LDS sentinel)")
l1, l1e = newlbl("Lqo"), newlbl("Lqoe")
A(f"s_mov_b32 s{S_TO}, {CFG['timeout']}")
L(l1)
for kp in range(4):
    A(f"ds_read_b128 v[{V_Q+4*kp}:{V_Q+4*kp+3}], v{V_T+3} offset:{L_QL + kp*64}")
A(f"s_sub_u32 s{S_TO}, s{S_TO}, 1")
A(f"s_cbranch_scc1 {l1e}")
A("s_waitcnt lgkmcnt(0)")
tree3("v_max3_u32", "v_max_u32", range(V_Q, V_Q + 16), TT)
A(f"v_cmp_eq_u32 vcc, -1, v{TT}")
A("s_cmp_lg_u64 vcc, 0")
A(f"s_cbranch_scc1 {l1}")
L(l1e)
A("s_waitcnt lgkmcnt(0)")
for kp in range(4):
    for tt in range(2):
        mfma(V_S + 4 * tt, V_K + (tt * 4 + kp) * 4, V_Q + 4 * kp, None if kp == 0 else V_S + 4 * tt)
stamp(2)
A(f"v_mov_b32 v{EX}, {f2u(SCALE):#x}")
A(f"v_mov_b32 v{EX+1}, {f2u(SCALE):#x}")
A(f"s_mov_b32 s{S_T1}, {f2u(LOG2E):#x}")
nop(5)
pack(PK, V_S, 4)
unpack(S2, PK, 4)
for j in range(0, 8, 2):
    A(f"v_pk_mul_f32 v[{S2+j}:{S2+j+1}], v[{S2+j}:{S2+j+1}], v[{EX}:{EX+1}]")
pack(PK, S2, 4)
unpack(S2, PK, 4)
A(f"v_max3_f32 v{MM}, v{S2}, v{S2+1}, v{S2+2}")
A(f"v_max3_f32 v{MM}, v{MM}, v{S2+3}, v{S2+4}")
A(f"v_max3_f32 v{MM}, v{MM}, v{S2+5}, v{S2+6}")
A(f"v_max_f32 v{MM}, v{MM}, v{S2+7}")
swap_steps("v_max_f32", [MM], [TT])
A("s_mov_b64 exec, 15")
A(f"ds_write_b32 v{TT+2}, v{MM} offset:{L_MX}")
A("s_mov_b64 exec, -1")
for j in range(8):
    A(f"v_mul_f32 v{S2+j}, s{S_T1}, v{S2+j}")
l2, l2e = newlbl("Lmx"), newlbl("Lmxe")
A(f"s_mov_b32 s{S_TO}, {CFG['timeout']}")
L(l2)
A(f"ds_read_b128 v[{EX}:{EX+3}], v{TT+3} offset:{L_MX}")
A(f"ds_read_b128 v[{EX+4}:{EX+7}], v{TT+3} offset:{L_MX + 16}")
A(f"s_sub_u32 s{S_TO}, s{S_TO}, 1")
A(f"s_cbranch_scc1 {l2e}")
A("s_waitcnt lgkmcnt(0)")
tree3("v_max3_u32", "v_max_u32", range(EX, EX + 8), TT)
tree3("v_max3_f32", "v_max_f32", range(EX, EX + 8), MM)
A(f"v_cmp_eq_u32 vcc, -1, v{TT}")
A("s_cmp_lg_u64 vcc, 0")
A(f"s_cbranch_scc1 {l2}")
L(l2e)
A("s_waitcnt lgkmcnt(0)")
A(f"v_mul_f32 v{MM}, s{S_T1}, v{MM}")
for j in range(8):
    A(f"v_sub_f32 v{EX+j}, v{S2+j}, v{MM}")
for j in range(8):
    A(f"v_exp_f32 v{EX+j}, v{EX+j}")
A(f"s_lshl_b32 s{S_T0}, s{S_WAVE}, 10")
A(f"v_add_u32 v{TT}, s{S_T0}, v2")
pack(PK, EX, 4)
A(f"ds_write_b128 v{TT}, v[{PK}:{PK+3}] offset:{L_SC}")
A(f"v_add_f32 v{MM+1}, v{EX}, v{EX+1}")
A(f"v_add_f32 v{TT}, v{EX+2}, v{EX+3}")
A(f"v_add_f32 v{TT+1}, v{EX+4}, v{EX+5}")
A(f"v_add_f32 v{EX}, v{EX+6}, v{EX+7}")
A(f"v_add_f32 v{MM+1}, v{MM+1}, v{TT}")
A(f"v_add_f32 v{EX}, v{EX}, v{TT+1}")
A(f"v_add_f32 v{MM+1}, v{MM+1}, v{EX}")
swap_steps("v_add_f32", [MM + 1], [TT])
A("s_mov_b64 exec, 15")
A(f"ds_write_b32 v{TT+2}, v{MM+1} offset:{L_LS}")
A("s_mov_b64 exec, -1")
stamp(3)
VA0, VA1, VB0, VB1 = V_T + 32, V_T + 33, V_T + 34, V_T + 35


def vw2_addr():
    A(f"v_lshlrev_b32 v{VA0}, 10, v4")
    A(f"v_lshl_add_u32 v{VA0}, v6, 3, v{VA0}")
    A(f"v_and_b32 v{VA1}, 1, v4")
    A(f"v_lshl_add_u32 v{VA0}, v{VA1}, 7, v{VA0}")
    A(f"v_xor_b32 v{VA1}, 128, v{VA0}")


vw2_addr()
A(f"s_lshl_b32 s{S_T0}, s{S_WAVE}, 8")
A(f"s_add_u32 s{S_T0}, s{S_T0}, {L_V}")
A(f"v_add_u32 v{VB0}, s{S_T0}, v{VA0}")
A(f"v_add_u32 v{VB1}, s{S_T0}, v{VA1}")
A(f"s_cmp_gt_u32 s{S_WAVE}, 4")
A("s_cbranch_scc1 L_exit")
A(f"v_mov_b32 v{V_T+1}, {L_FLAG + 8}")
A(f"s_mov_b32 s{S_NT}, 0")


def wait_progress(n):
    l, ok = newlbl("Lvp"), newlbl("Lvo")
    A(f"s_cmp_ge_u32 s{S_NT}, {n}")
    A(f"s_cbranch_scc1 {ok}")
    A(f"s_mov_b32 s{S_TO}, {CFG['timeout']}")
    L(l)
    A(f"ds_read_b32 v{V_T}, v{V_T+1}")
    A(f"s_sub_u32 s{S_TO}, s{S_TO}, 1")
    A(f"s_cbranch_scc1 {ok}")
    A("s_waitcnt lgkmcnt(0)")
    A(f"v_readfirstlane_b32 s{S_NT}, v{V_T}")
    A(f"s_cmp_lt_u32 s{S_NT}, {n}")
    A(f"s_cbranch_scc1 {l}")
    L(ok)


A(f"s_cmp_lt_u32 s{S_WAVE}, 4")
A("s_cbranch_scc1 L_pv")
C("---- wave 4: publish stats {m,l,T0,T1} per head (lanes 0..3) once all l are in and the PN clears completed")
wait_progress(1)
A(f"v_mov_b32 v{MM+2}, s{S_TG}")
A(f"v_mov_b32 v{MM+3}, s{S_TG+1}")
l4, l4e = newlbl("Lls"), newlbl("Llse")
A(f"s_mov_b32 s{S_TO}, {CFG['timeout']}")
L(l4)
A(f"ds_read_b128 v[{EX}:{EX+3}], v{TT+3} offset:{L_LS}")
A(f"ds_read_b128 v[{EX+4}:{EX+7}], v{TT+3} offset:{L_LS + 16}")
A(f"s_sub_u32 s{S_TO}, s{S_TO}, 1")
A(f"s_cbranch_scc1 {l4e}")
A("s_waitcnt lgkmcnt(0)")
tree3("v_max3_u32", "v_max_u32", range(EX, EX + 8), TT)
A(f"v_cmp_eq_u32 vcc, -1, v{TT}")
A("s_cmp_lg_u64 vcc, 0")
A(f"s_cbranch_scc1 {l4}")
L(l4e)
A("s_waitcnt lgkmcnt(0)")
for j in range(4):
    A(f"v_add_f32 v{EX+j}, v{EX+j}, v{EX+4+j}")
A(f"v_add_f32 v{EX}, v{EX}, v{EX+1}")
A(f"v_add_f32 v{EX+2}, v{EX+2}, v{EX+3}")
A(f"v_add_f32 v{MM+1}, v{EX}, v{EX+2}")
A("s_mov_b64 exec, 15")
if CFG["dual"]:
    A(f"buffer_store_dwordx4 v[{MM}:{MM+3}], v2, {WS}, s{S_PNA} offen")
A(f"buffer_store_dwordx4 v[{MM}:{MM+3}], v2, {WS}, s{S_PNB} offen sc1")
A("s_branch L_exit")
L("L_pv")
C("---- PV (waves 0..3, 32 dims each): tiles are consumed as they land")
PB = V_G
VF = V_K
l5, l5e = newlbl("Lpp"), newlbl("Lppe")
A(f"s_mov_b32 s{S_TO}, {CFG['timeout']}")
L(l5)
for t in range(8):
    A(f"ds_read_b128 v[{PB+4*t}:{PB+4*t+3}], v2 offset:{L_SC + t*1024}")
A(f"ds_read_b32 v{V_T}, v{V_T+1}")
A(f"s_sub_u32 s{S_TO}, s{S_TO}, 1")
A(f"s_cbranch_scc1 {l5e}")
A("s_waitcnt lgkmcnt(0)")
tree3("v_max3_u32", "v_max_u32", [PB + 4 * t + j for t in range(8) for j in (0, 3)], TT)
A(f"v_readfirstlane_b32 s{S_NT}, v{V_T}")
A(f"v_cmp_eq_u32 vcc, -1, v{TT}")
A("s_cmp_lg_u64 vcc, 0")
A(f"s_cbranch_scc1 {l5}")
L(l5e)
A("s_waitcnt lgkmcnt(0)")
stamp(5)


def v_reads(t):
    for c2 in range(2):
        for h in range(2):
            r = VF + ((t % 6) * 2 + c2) * 4 + 2 * h
            A(f"ds_read_b64_tr_b16 v[{r}:{r+1}], v{VB0 + c2} offset:{t*8192 + h*4096}")


def v_mfma(t):
    for c2 in range(2):
        mfma(V_S + 4 * c2, VF + ((t % 6) * 2 + c2) * 4, PB + 4 * t, None if t == 0 else V_S + 4 * c2)


A(f"s_cmp_ge_u32 s{S_NT}, 8")
A("s_cbranch_scc1 L_pvf")
for t in range(8):
    wait_progress(t + 1)
    v_reads(t)
    if t >= 1:
        A("s_waitcnt lgkmcnt(4)")
        v_mfma(t - 1)
A("s_waitcnt lgkmcnt(0)")
v_mfma(7)
A("s_branch L_pve")
L("L_pvf")
for t in range(3):
    v_reads(t)
for t in range(8):
    A(f"s_waitcnt lgkmcnt({min(2, 7 - t)*4})")
    v_mfma(t)
    if t + 3 < 8:
        v_reads(t + 3)
L("L_pve")
nop(7)
pack(PK, V_S, 4)
set_exec(MASK_N4)
if CFG["dual"]:
    A(f"buffer_store_dwordx4 v[{PK}:{PK+3}], v{V_PNA}, {WS}, s{S_PNA} offen")
A(f"buffer_store_dwordx4 v[{PK}:{PK+3}], v{V_PNA}, {WS}, s{S_PNB} offen sc1")
A("s_mov_b64 exec, -1")
stamp(6)
A(f"s_cmp_lg_u32 s{S_ROLE}, 0")
A("s_cbranch_scc1 L_exit")

C("==== G: final reduce of 16 outputs (16gi..16gi+15)")
A(f"s_lshl_b32 s{S_T2}, s{S_SUB}, 6")
A(f"s_add_u32 s{S_T3}, s{S_T2}, {WS_AP}")
A(f"s_add_u32 s{S_T2}, s{S_T2}, {WS_Y}")
A(f"v_lshrrev_b32 v{TT+2}, 2, v0")
A(f"v_and_b32 v{TT+3}, 3, v0")
A(f"v_lshlrev_b32 v{TT}, 12, v{TT+2}")
A(f"v_lshl_add_u32 v{TT}, v{TT+3}, 4, v{TT}")
A(f"s_movk_i32 s{S_T0}, {YP}")
A(f"v_mul_lo_u32 v{TT+2}, v{TT+2}, s{S_T0}")
A(f"v_lshl_add_u32 v{TT+2}, v{TT+3}, 4, v{TT+2}")
for i in range(1, 4):
    A(f"s_add_u32 s{40+i}, s{S_T2}, {16*i*YP}")
GA = V_G
if CFG["dry2"]:
    C("walk the rest of this path once with EXEC=0 (instruction cache warm-up)")
    A("s_mov_b64 exec, 0")
L("L_kret")
C("DRY{")
A("s_mov_b32 exec_hi, 0")


def g1_loads():
    A(f"buffer_load_dwordx4 v[{GA}:{GA+3}], v{TT}, {WS}, s{S_T3} offen sc1")


tpoll(g1_loads, range(GA, GA + 4), V_T, V_TG, CFG['g1sl'])
A("s_mov_b64 exec, -1")
stamp(7)
A(f"s_cmp_lg_u32 s{S_SUB}, 0")
A("s_cbranch_scc1 L_gnz")
C("every workgroup has consumed the launch tag by now: leave d_debug clean")
A(f"v_mov_b32 v{V_T}, 0")
A(f"v_mov_b32 v{V_T+1}, 0")
A(f"v_lshlrev_b32 v{V_T+2}, 6, v0")
A("s_mov_b64 exec, 15")
A(f"buffer_store_dwordx2 v[{V_T}:{V_T+1}], v{V_T+2}, {SA}, 0 offen sc1")
A("s_mov_b64 exec, -1")
L("L_gnz")
nop(1)
dpp_steps("v_add_f32", [GA + j for j in range(4)], ROW_HI)
swap_steps("v_add_f32", [GA + j for j in range(4)], [GA + 4 + j for j in range(4)], which=(16,))
GH = V_G + 8
GP = V_G + 16
GB = V_G + 20
pack(GP, GA, 2)
unpack(GA, GP, 2)
unpack(GH, V_SM, 2)
for j in range(4):
    A(f"v_add_f32 v{GH+j}, v{GH+j}, v{GA+j}")
pack(GP, GH, 2)
unpack(GH, GP, 2)
unpack(GB, V_SM + 2, 2)
GY = V_K


def g2_loads():
    for j in range(4):
        A(f"v_mov_b32 v{GY+12+j}, v{V_TG+j}")
    A(f"buffer_load_dwordx4 v[{GY}:{GY+3}], v{TT+2}, {WS}, s{S_T2} offen sc1")
    A(f"buffer_load_dwordx4 v[{GY+4}:{GY+7}], v{TT+2}, {WS}, s41 offen sc1")
    A(f"buffer_load_dwordx4 v[{GY+8}:{GY+11}], v{TT+2}, {WS}, s42 offen sc1")
    A("s_mov_b32 exec_hi, 0")
    A(f"buffer_load_dwordx4 v[{GY+12}:{GY+15}], v{TT+2}, {WS}, s43 offen sc1")
    A("s_mov_b32 exec_hi, -1")


tpoll(g2_loads, range(GY, GY + 16), V_T, V_TG, CFG['g2sl'])
stamp(10)
for j in range(4):
    A(f"v_add_f32 v{GY+j}, v{GY+j}, v{GY+4+j}")
    A(f"v_add_f32 v{GY+8+j}, v{GY+8+j}, v{GY+12+j}")
for j in range(4):
    A(f"v_add_f32 v{GY+j}, v{GY+j}, v{GY+8+j}")
dpp_steps("v_add_f32", [GY + j for j in range(4)], ROW_HI)
swap_steps("v_add_f32", [GY + j for j in range(4)], [GY + 4 + j for j in range(4)])
pack(GP, GY, 2)
unpack(GY, GP, 2)
for j in range(4):
    A(f"v_add_f32 v{GY+j}, v{GY+j}, v{GB+j}")
pack(GP, GY, 2)
unpack(GY, GP, 2)
for j in range(4):
    A(f"v_add_f32 v{GY+j}, v{GY+j}, v{GH+j}")
pack(GP, GY, 2)
if CFG.get("padto", 0):
    C("ND{")
    L("L_pad")
    A("s_memrealtime s[0:1]")
    A("s_waitcnt lgkmcnt(0)")
    A(f"s_sub_u32 s0, s0, s{S_TG}")
    A(f"s_cmp_lt_u32 s0, {CFG['padto']}")
    A("s_cbranch_scc1 L_pad")
    C("}ND")
A(f"s_lshl_b32 s{S_T4}, s{S_SUB}, 5")
A("v_lshlrev_b32 v3, 3, v0")
A("s_mov_b64 exec, 15")
A(f"buffer_store_dwordx2 v[{GP}:{GP+1}], v3, {SC_}, s{S_T4} offen")
stamp(11)
A("s_branch L_exit")

C("}DRY")
begin("ldr")
L("L_ldr")
att_common()
C("kv byte offset: ((b*8+x)*8192 + 6144 + 256 s)*256")
A(f"s_lshl_b32 s{S_T0}, s{S_B}, 3")
A(f"s_add_u32 s{S_T0}, s{S_T0}, s{S_X}")
A(f"s_lshl_b32 s{S_T0}, s{S_T0}, 5")
A(f"s_and_b32 s{S_T1}, s{S_A}, 7")
A(f"s_add_u32 s{S_T0}, s{S_T0}, s{S_T1}")
A(f"s_add_u32 s{S_T0}, s{S_T0}, 24")
A(f"s_lshl_b32 s{S_T3}, s{S_T0}, 16")
A(f"s_mov_b32 s{S_T2}, 0")
A(f"s_cmp_eq_u32 s{S_WAVE}, 9")
A("s_cbranch_scc1 L_ldv")
C("K DMA lane offsets: r4=l>>4, p=l&15: r4*256 + ((p ^ (4i+r4))*16)")
for i in range(4):
    A(f"v_add_u32 v{12+i}, {4*i}, v4")
    A(f"v_xor_b32 v{12+i}, v{12+i}, v6")
    A(f"v_lshlrev_b32 v{12+i}, 4, v{12+i}")
    A(f"v_lshl_add_u32 v{12+i}, v4, 8, v{12+i}")
A(f"s_mov_b32 s{S_T1}, {L_K}")
post_entry()
srd(SRD_A, P_K, 0x2000000)
if CFG.get("ksleep", 0):
    A(f"s_sleep {CFG['ksleep']}")
if CFG["ktouch"]:
    C("resolve the K/V translations first; the q-projection loads get a head start meanwhile")
    A(f"s_load_dword s64, s[{P_K}:{P_K+1}], s{S_T3}")
    A(f"s_load_dword s65, s[{P_V}:{P_V+1}], s{S_T3}")
    A("s_waitcnt lgkmcnt(0)")
L("L_ldk1")
A(f"s_mov_b32 m0, s{S_T1}")
A(f"s_add_u32 s{S_T1}, s{S_T1}, 4096")
for i in range(4):
    A(f"buffer_load_dwordx4 v{12+i}, {SA}, s{S_T3} offen offset:{i*1024}{NT} lds")
A(f"s_add_u32 s{S_T3}, s{S_T3}, 4096")
A(f"s_add_u32 s{S_T2}, s{S_T2}, 1")
A(f"s_cmp_lt_u32 s{S_T2}, 16")
A("s_cbranch_scc1 L_ldk1")
stamp(1)
A("s_barrier")
A("s_waitcnt vmcnt(0)")
stamp(4)
lds_set(L_FLAG + 4, 16, 17)
A("s_waitcnt lgkmcnt(0)")
A("s_branch L_exit")
L("L_ldv")
zero_flags()
for j in range(4):
    A(f"v_mov_b32 v{16+j}, -1")
A(f"ds_write_b128 v2, v[16:19] offset:{L_QL}")
for t in range(8):
    A(f"ds_write_b128 v2, v[16:19] offset:{L_SC + t*1024}")
A("s_mov_b64 exec, 0xffff")
A(f"ds_write_b128 v2, v[16:19] offset:{L_MX}")
A("s_mov_b64 exec, -1")
A("v_lshl_add_u32 v12, v9, 8, v11")
A("v_xor_b32 v13, 32, v12")
post_entry()
srd(SRD_B, P_V, 0x2000000)
A("s_barrier")
A(f"buffer_store_dwordx4 v[16:19], v2, {WS}, s{S_PNA} offen sc1")
A(f"buffer_store_dwordx4 v[16:19], v2, {WS}, s{S_PNB} offen sc1")
A(f"s_mov_b32 s{S_T1}, {L_V}")
L("L_ldv1")
A(f"s_mov_b32 m0, s{S_T1}")
A(f"s_add_u32 s{S_T1}, s{S_T1}, 4096")
for be in range(4):
    A(f"buffer_load_dwordx4 v{12 + (be & 1)}, {SB}, s{S_T3} offen offset:{be*1024}{NT} lds")
A(f"s_add_u32 s{S_T3}, s{S_T3}, 4096")
A(f"s_add_u32 s{S_T2}, s{S_T2}, 1")
A(f"s_cmp_lt_u32 s{S_T2}, 16")
A("s_cbranch_scc1 L_ldv1")
stamp(1)
A(f"v_mov_b32 v20, {L_FLAG + 8}")
for t in range(8):
    A(f"v_mov_b32 v21, {t+1}")
    A(f"s_waitcnt vmcnt({56 - 8*t})")
    A("ds_write_b32 v20, v21")
stamp(4)
A("s_waitcnt lgkmcnt(0)")
A("s_branch L_exit")

begin("gv")
L("L_dry2")
A("s_mov_b64 exec, -1")
L("L_GV")
gv_common()
post_entry()
A(f"s_cmp_ge_u32 s{S_WAVE}, 8")
A("s_cbranch_scc1 L_gld")
A(f"s_cmp_lg_u32 s{S_WAVE}, 7")
A("s_cbranch_scc1 L_gv2")
A("s_cmp_lg_u32 s2, 0")
A("s_cbranch_scc1 L_gv0")
C("workgroup 0 publishes the launch tag (4 replicas)")
srd(SRD_C, P_DBG, 256)
A("s_memrealtime s[24:25]")
A("s_waitcnt lgkmcnt(0)")
A("s_or_b32 s25, s25, 0x80000000")
A("v_mov_b32 v14, s24")
A("v_mov_b32 v15, s25")
A("v_lshlrev_b32 v12, 6, v0")
A("s_mov_b64 exec, 15")
A(f"buffer_store_dwordx2 v[14:15], v12, {SC_}, 0 offen sc1")
A("s_mov_b64 exec, -1")
L("L_gv0")
tag_poll(CFG["tsleep0"], S_A, barrier=2)
stamp(5)
A(f"s_mov_b32 s{S_TO}, {CFG['timeout']}")
L("L_echo")
A("ds_write_b64 v102, v[100:101]")
A("ds_read_b32 v103, v102 offset:8")
A(f"s_sub_u32 s{S_TO}, s{S_TO}, 1")
A("s_cbranch_scc1 L_gv2")
A("s_waitcnt lgkmcnt(0)")
A(f"v_readfirstlane_b32 s{S_T0}, v103")
A("s_sleep 2")
A(f"s_cmp_lg_u32 s{S_T0}, s{S_TG}")
A("s_cbranch_scc1 L_echo")
L("L_gv2")
A("s_branch L_qm1")

C("---- GEMV loaders (waves 8,9)")
L("L_gld")
A(f"s_and_b32 s{S_T5}, s{S_WAVE}, 1")
C("WX style lane offsets: ct=l>>5, p=(l>>1)&15 (row), half")
A("v_bfe_u32 v3, v0, 1, 4")
A("v_lshrrev_b32 v12, 5, v0")
A("v_lshlrev_b32 v12, 5, v12")
A("v_lshl_add_u32 v12, v10, 4, v12")
A(f"s_cmp_eq_u32 s{S_ROLE}, 0")
A("s_cbranch_scc1 L_exit")
A(f"s_cmp_eq_u32 s{S_ROLE}, 2")
A("s_cbranch_scc1 L_gld2")
C("wo tile: 512 rows x 128 B; loader i: rows 256i.. (32 instrs of 8 rows)")
srd(SRD_C, P_WO, 0x400000)
A("v_bfe_u32 v3, v0, 1, 3")
A("v_lshlrev_b32 v3, 10, v3")
A("v_lshl_add_u32 v3, v4, 5, v3")
A("v_lshl_add_u32 v3, v10, 4, v3")
A(f"s_lshl_b32 s{S_T3}, s{S_X}, 19")
A(f"s_lshl_b32 s{S_T1}, s{S_T5}, 18")
A(f"s_add_u32 s{S_T3}, s{S_T3}, s{S_T1}")
A(f"s_lshl_b32 s{S_T1}, s{S_SUB}, 7")
A(f"s_add_u32 s{S_T3}, s{S_T3}, s{S_T1}")
A(f"s_lshl_b32 s{S_T4}, s{S_T5}, 15")
A(f"s_add_u32 s{S_T4}, s{S_T4}, {L_WO}")
if CFG["touch2"]:
    for i in range(4):
        A(f"s_add_u32 s{S_T1}, s{S_T3}, {i*65536}")
        A(f"s_load_dword s{64+i}, s[{P_WO}:{P_WO+1}], s{S_T1}")
A("s_barrier")
A(f"s_mov_b32 s{S_T2}, 0")
L("L_gld1")
for i in range(4):
    A(f"s_mov_b32 m0, s{S_T4}")
    A(f"s_add_u32 s{S_T4}, s{S_T4}, 1024")
    A(f"buffer_load_dwordx4 v3, {SC_}, s{S_T3} offen{NT} lds")
    A(f"s_add_u32 s{S_T3}, s{S_T3}, 8192")
A(f"s_add_u32 s{S_T2}, s{S_T2}, 1")
A(f"s_cmp_lt_u32 s{S_T2}, 8")
A("s_cbranch_scc1 L_gld1")
A("s_branch L_gld5")
L("L_gld2")
A(f"s_cmp_eq_u32 s{S_T5}, 1")
A("s_cbranch_scc1 L_gld3")
srd(SRD_C, P_W1, 512 * 3584)
A(f"s_lshl_b32 s{S_T3}, s{S_SUB}, 6")
A(f"s_movk_i32 s{S_T1}, 3584")
A(f"v_mul_lo_u32 v13, v3, s{S_T1}")
A("v_add_u32 v13, v13, v12")
if CFG["touch2"]:
    for i in range(14):
        A(f"s_add_u32 s{S_T1}, s{S_T3}, {i*131072}")
        A(f"s_load_dword s{64+i}, s[{P_W1}:{P_W1+1}], s{S_T1}")
A("s_barrier")
A(f"s_mov_b32 s{S_T1}, {L_WX}")
A(f"s_mov_b32 s{S_T2}, 0")
L("L_gld4")
for i in range(4):
    A(f"s_mov_b32 m0, s{S_T1}")
    A(f"s_add_u32 s{S_T1}, s{S_T1}, 1024")
    A(f"buffer_load_dwordx4 v13, {SC_}, s{S_T3} offen{NT} lds")
    A(f"s_add_u32 s{S_T3}, s{S_T3}, {16*3584}")
if CFG["mwin"]:
    A(f"s_waitcnt vmcnt({CFG['mwin']})")
A(f"s_add_u32 s{S_T2}, s{S_T2}, 1")
A(f"s_cmp_lt_u32 s{S_T2}, 8")
A("s_cbranch_scc1 L_gld4")
A("s_branch L_gld5")
L("L_gld3")
srd(SRD_C, P_W2, 1792 * 1024)
A("v_lshl_add_u32 v14, v9, 10, v11")
A("v_xor_b32 v15, 32, v14")
A(f"s_lshl_b32 s{S_T3}, s{S_SUB}, 15")
if CFG["touch2"]:
    A(f"s_load_dword s64, s[{P_W2}:{P_W2+1}], s{S_T3}")
    A(f"s_load_dword s65, s[{P_B1}:{P_B1+1}], 0")
A("s_barrier")
A(f"s_mov_b32 s{S_T1}, {L_W2}")
A(f"s_mov_b32 s{S_T2}, 0")
L("L_gld6")
for be in range(8):
    A(f"s_mov_b32 m0, s{S_T1}")
    A(f"s_add_u32 s{S_T1}, s{S_T1}, 1024")
    A(f"s_add_u32 s{S_T4}, s{S_T3}, {be*4096}")
    A(f"buffer_load_dwordx4 v{14 + (be & 1)}, {SC_}, s{S_T4} offen{NT} lds")
    if CFG["mwin"] and be % 4 == 3:
        A(f"s_waitcnt vmcnt({CFG['mwin']})")
A(f"s_add_u32 s{S_T3}, s{S_T3}, 256")
A(f"s_add_u32 s{S_T2}, s{S_T2}, 1")
A(f"s_cmp_lt_u32 s{S_T2}, 4")
A("s_cbranch_scc1 L_gld6")
L("L_gld5")
A("s_waitcnt vmcnt(0)")
stamp(4)
A("s_barrier")
A("s_branch L_exit")

begin("qc")
C("---- q projection: wave 6 loads and computes everything")
A("v_mov_b32 v16, 0")
A("v_mov_b32 v17, 0")
A(f"ds_write_b64 v16, v[16:17] offset:{L_TAG}")
post_entry()
srd(SRD_A, P_X, 2048)
A(f"buffer_load_dwordx4 v[16:19], v2, {SA}, 0 offen")
A(f"buffer_load_dwordx4 v[20:23], v2, {SA}, 0 offen offset:1024")
if CFG["touch"]:
    A(f"s_lshl_b32 s{S_T1}, s{S_X}, 4")
    A(f"s_add_u32 s{S_T1}, s{S_T1}, s{S_A}")
    A(f"s_lshl_b32 s{S_T1}, s{S_T1}, 9")
    A(f"s_add_u32 s{S_T1}, s{S_T1}, {WS_XQA}")
    A("s_mov_b32 exec_hi, 0")
    A(f"buffer_load_dwordx4 v[72:75], v2, {WS}, s{S_T1} offen sc1")
    A("s_mov_b32 exec_hi, -1")
srd(SRD_B, P_WQ, 0x400000)
A("v_bfe_u32 v13, v0, 1, 3")
A("v_lshlrev_b32 v13, 13, v13")
A("v_lshl_add_u32 v13, v4, 5, v13")
A("v_lshl_add_u32 v13, v10, 4, v13")
A(f"s_and_b32 s{S_B}, s{S_A}, 1")
A(f"s_lshl_b32 s{S_T0}, s{S_B}, 21")
A(f"s_lshl_b32 s{S_T1}, s{S_X}, 10")
A(f"s_add_u32 s{S_T0}, s{S_T0}, s{S_T1}")
A(f"s_lshr_b32 s{S_T1}, s{S_A}, 1")
A(f"s_lshl_b32 s{S_T1}, s{S_T1}, 7")
A(f"s_add_u32 s{S_T0}, s{S_T0}, s{S_T1}")
A(f"s_mov_b32 s{S_T1}, {L_WQ}")
L("L_qc1")
for i in range(4):
    A(f"s_mov_b32 m0, s{S_T1}")
    A(f"s_add_u32 s{S_T1}, s{S_T1}, 1024")
    A(f"buffer_load_dwordx4 v13, {SB}, s{S_T0} offen{NT} lds")
    A(f"s_add_u32 s{S_T0}, s{S_T0}, 0x10000")
A(f"s_cmp_lt_u32 s{S_T1}, {L_WQ + 32768}")
A("s_cbranch_scc1 L_qc1")
stamp(10)
L("L_dry")
gv_common()
A("v_lshrrev_b32 v12, 2, v0")
A("v_lshlrev_b32 v12, 6, v12")
A("v_lshl_add_u32 v12, v10, 5, v12")
A("v_bfe_u32 v13, v0, 1, 1")
A("v_lshl_add_u32 v12, v13, 3, v12")
A("v_lshlrev_b32 v13, 10, v10")
A("v_lshl_add_u32 v13, v4, 4, v13")
A(f"s_lshl_b32 s{S_T1}, s{S_B}, 9")
A(f"v_add_u32 v13, s{S_T1}, v13")
A("v_lshrrev_b32 v14, 5, v0")
A("v_lshlrev_b32 v14, 10, v14")
A("v_and_b32 v15, 31, v0")
A("v_lshl_add_u32 v14, v15, 3, v14")
C("exchange lane map: n=l&15<8: b=n&1, half2=(n>>1)&1, cs=(n>>2)&1 ; XQ off = cs*256 + b*128 + g*32 + half2*16")
A("v_bfe_u32 v70, v0, 2, 1")
A("v_lshlrev_b32 v69, 6, v70")
A("v_lshl_add_u32 v69, v4, 4, v69")
A("v_lshl_add_u32 v69, v10, 11, v69")
A("v_lshlrev_b32 v70, 8, v70")
A("v_lshl_add_u32 v70, v10, 7, v70")
A("v_lshl_add_u32 v70, v4, 5, v70")
A("v_bfe_u32 v15, v0, 1, 1")
A("v_lshl_add_u32 v70, v15, 4, v70")
A(f"s_lshl_b32 s{S_T5}, s{S_X}, 12")
A(f"s_lshl_b32 s{S_T1}, s{S_A}, 7")
A(f"s_add_u32 s{S_T5}, s{S_T5}, s{S_T1}")
A(f"s_lshl_b32 s{S_T1}, s{S_X}, 4")
A(f"s_add_u32 s{S_T1}, s{S_T1}, s{S_A}")
A(f"s_lshl_b32 s62, s{S_T1}, 9")
A(f"s_xor_b32 s63, s62, 512")
A(f"s_add_u32 s64, s62, {WS_XQB}")
A(f"s_add_u32 s62, s62, {WS_XQA}")
A(f"s_add_u32 s65, s63, {WS_XQB}")
A(f"s_add_u32 s63, s63, {WS_XQA}")
A("s_mov_b32 s66, 0xcccccccc")
A("s_mov_b32 s67, 0xcccccccc")
A("s_mov_b32 s68, 0xf0f0f0f0")
A("s_mov_b32 s69, 0xf0f0f0f0")
stamp(11)
A(f"s_waitcnt vmcnt({32 + CFG['touch']})")
stamp(12)
unpack(24, 16, 4)
unpack(32, 20, 4)
layernorm([24, 32], 2, 44, [16, 20])
A(f"ds_write_b64 v12, v[16:17] offset:{L_XN}")
A(f"ds_write_b64 v12, v[18:19] offset:{L_XN + 16}")
A(f"ds_write_b64 v12, v[20:21] offset:{L_XN + 1024}")
A(f"ds_write_b64 v12, v[22:23] offset:{L_XN + 1024 + 16}")
A("s_waitcnt lgkmcnt(0)")
XA = 96
for kp in range(8):
    A(f"ds_read_b128 v[{XA+4*kp}:{XA+4*kp+3}], v13 offset:{L_XN + kp*64}")
stamp(1)
A("v_mov_b32 v16, 0")
WF = 24
QD = 144
for kp in range(8):
    if kp == 7:
        C("launch tag from wave 7 (it rewrites the slot until echoed)")
        A("s_cbranch_execz L_dry1")
        lds_wait(L_TAG + 4, 17, 18)
        L("L_dry1")
        A(f"ds_read_b64 v[58:59], v16 offset:{L_TAG}")
        A(f"ds_read_b64 v[62:63], v16 offset:{L_TAG}")
        A("s_waitcnt lgkmcnt(0)")
        A(f"ds_write_b32 v16, v58 offset:{L_TAG + 8}")
    A(f"s_waitcnt vmcnt({28 - 4*kp})")
    if kp == 7:
        stamp(2)
        pass
    for ct in range(4):
        for h in range(2):
            r = WF + ((kp & 1) * 4 + ct) * 4 + 2 * h
            A(f"ds_read_b64_tr_b16 v[{r}:{r+1}], v14 offset:{L_WQ + kp*4096 + h*2048 + ct*256}")
    for ct in range(4):
        A(f"s_waitcnt lgkmcnt({6 - 2*ct})")
        mfma(QD + 4 * ct, WF + ((kp & 1) * 4 + ct) * 4, XA + 4 * kp, None if kp == 0 else QD + 4 * ct)
C("select: lo half cts (0,1) -> v[24:25], hi half cts (2,3) -> v[26:27]")
nop(5)
for hf in range(2):
    a, b = QD + 8 * hf, QD + 8 * hf + 4
    for j in range(2):
        A(f"v_cndmask_b32 v{28+j}, v{a+j}, v{a+2+j}, s[66:67]")
        A(f"v_cndmask_b32 v{30+j}, v{b+j}, v{b+2+j}, s[66:67]")
    for j in range(2):
        A(f"v_cndmask_b32 v{24+2*hf+j}, v{28+j}, v{30+j}, s[68:69]")
A("s_cbranch_execz L_dry2")
A(f"s_cmp_eq_u32 s{S_B}, 0")
A(f"s_cselect_b64 vcc, -1, 0")
set_exec(0x00ff00ff00ff00ff)
A("v_cndmask_b32 v56, v24, v26, vcc")
A("v_cndmask_b32 v57, v25, v27, vcc")
A("v_cndmask_b32 v60, v26, v24, vcc")
A("v_cndmask_b32 v61, v27, v25, vcc")
A(f"buffer_store_dwordx4 v[56:59], v70, {WS}, s{63 if CFG['dual'] else 65} offen{'' if CFG['dual'] else ' sc1'}")
stamp(6)
lx, lxe, lxs = newlbl("Lx"), newlbl("Lxe"), newlbl("Lxs")
A(f"s_mov_b32 s{S_TO}, {CFG['timeout']}")
L(lx)
if CFG["dual"]:
    A(f"s_cmp_lg_u32 s{S_TO}, {CFG['timeout'] - 4}")
    A(f"s_cbranch_scc1 {lxs}")
    C("partner not seen through L2 yet: also send the coherent copy")
    A(f"buffer_store_dwordx4 v[56:59], v70, {WS}, s65 offen sc1")
    L(lxs)
A(f"s_and_b32 s{S_T0}, s{S_TO}, 7")
A(f"s_cmp_eq_u32 s{S_T0}, 1")
A(f"s_cselect_b32 s{S_T1}, s64, s{62 if CFG['dual'] else 64}")
A(f"buffer_load_dwordx4 v[24:27], v70, {WS}, s{S_T1} offen sc1")
A(f"s_sub_u32 s{S_TO}, s{S_TO}, 1")
A(f"s_cbranch_scc1 {lxe}")
A("s_waitcnt vmcnt(0)")
A("v_cmp_ne_u64 vcc, v[26:27], v[58:59]")
A("s_cmp_lg_u64 vcc, 0")
A(f"s_cbranch_scc1 {lx}")
L(lxe)
A("s_waitcnt vmcnt(0)")
A("v_pk_add_f32 v[60:61], v[60:61], v[24:25]")
A("v_cvt_pk_bf16_f32 v60, v60, v61")
nop(2)
A("v_mov_b32_dpp v61, v60 quad_perm:[2,3,0,1] row_mask:0xf bank_mask:0xf")
set_exec(0x0033003300330033)
A(f"buffer_store_dwordx4 v[60:63], v69, {WS}, s{S_T5} offen sc1")
if CFG["dual"]:
    C("always leave a coherent copy for the partner")
    set_exec(0x00ff00ff00ff00ff)
    A(f"buffer_store_dwordx4 v[56:59], v70, {WS}, s65 offen sc1")
A("s_mov_b64 exec, -1")
stamp(3)
A("s_branch L_qm1")
begin("qm2")
L("L_qm1")
A(f"s_cmp_eq_u32 s{S_ROLE}, 0")
A("s_cbranch_scc1 L_exit")
A("s_barrier")
A(f"v_mov_b32 v{V_T}, 0")
A(f"ds_read_b64 v[{TT+2}:{TT+3}], v{V_T} offset:{L_TAG}")
A(f"ds_read_b128 v[{V_TG}:{V_TG+3}], v{V_T} offset:{L_TAG + 16}")
A(f"s_cmp_eq_u32 s{S_ROLE}, 2")
A("s_cbranch_scc1 L_F")

C("==== E: wo projection, 8 waves: head=w&3, col half=w>>2; wave gathers records 2w,2w+1")
V_WX = 16
A(f"s_lshl_b32 s{S_T1}, s{S_X}, 4")
A(f"s_lshl_b32 s{S_T2}, s{S_WAVE}, 1")
A(f"s_add_u32 s{S_T1}, s{S_T1}, s{S_T2}")
A(f"s_mul_i32 s{S_T1}, s{S_T1}, {RECP}")
A(f"s_add_u32 s{S_PNA}, s{S_T1}, {WS_PNA if CFG['dual'] else WS_PNB}")
A(f"s_add_u32 s{S_PNB}, s{S_T1}, {WS_PNB}")
EA0, EA1, EA2, EA3, EA4, EA5 = V_T + 36, V_T + 37, V_T + 38, V_T + 39, V_T + 2, V_T + 3
C("stats gather addr: lane<8: (l>>2)*RECP + (l&3)*16 (+1024)")
A(f"v_lshrrev_b32 v{EA0}, 2, v0")
A(f"s_movk_i32 s{S_T2}, {RECP}")
A(f"v_mul_lo_u32 v{EA0}, v{EA0}, s{S_T2}")
A(f"v_and_b32 v{EA1}, 3, v0")
A(f"v_lshl_add_u32 v{EA0}, v{EA1}, 4, v{EA0}")
A(f"s_mul_i32 s{S_T2}, s{S_WAVE}, {2*PNP}")
A(f"s_add_u32 s{S_T2}, s{S_T2}, {L_PS}")
A(f"v_add_u32 v{EA1}, s{S_T2}, v2")
A(f"s_lshl_b32 s{S_T2}, s{S_WAVE}, 7")
A(f"v_add_u32 v{EA2}, s{S_T2}, v2")
A(f"s_and_b32 s{S_T4}, s{S_WAVE}, 3")
A(f"s_lshr_b32 s{S_T5}, s{S_WAVE}, 2")
A(f"s_movk_i32 s{S_T2}, {PNP}")
A(f"v_mul_lo_u32 v{EA3}, v6, s{S_T2}")
A(f"v_lshl_add_u32 v{EA3}, v4, 4, v{EA3}")
A(f"s_lshl_b32 s{S_T2}, s{S_T4}, 6")
A(f"s_add_u32 s{S_T2}, s{S_T2}, {L_PS}")
A(f"v_add_u32 v{EA3}, s{S_T2}, v{EA3}")
A(f"v_lshlrev_b32 v{EA4}, 6, v6")
A(f"s_lshl_b32 s{S_T2}, s{S_T4}, 4")
A(f"v_add_u32 v{EA4}, s{S_T2}, v{EA4}")
A(f"s_lshl_b32 s{S_T2}, s{S_T4}, 9")
A(f"s_lshl_b32 s{S_T3}, s{S_T5}, 8")
A(f"s_add_u32 s{S_T2}, s{S_T2}, s{S_T3}")
A(f"v_lshl_add_u32 v{EA5}, v0, 2, s{S_T2}")
C("weights tr-read addr: WO + hd*16384 + ch*512 + (l>>5)*1024 + (l&31)*8")
A(f"v_lshrrev_b32 v{TT}, 5, v0")
A(f"v_lshlrev_b32 v{TT}, 10, v{TT}")
A(f"v_and_b32 v{TT+1}, 31, v0")
A(f"v_lshl_add_u32 v{TT}, v{TT+1}, 3, v{TT}")
A(f"s_lshl_b32 s{S_T2}, s{S_T4}, 14")
A(f"s_lshl_b32 s{S_T3}, s{S_T5}, 9")
A(f"s_add_u32 s{S_T2}, s{S_T2}, s{S_T3}")
A(f"s_add_u32 s{S_T2}, s{S_T2}, {L_WO}")
A(f"v_add_u32 v{TT}, s{S_T2}, v{TT}")
A(f"v_mul_u32_u24 v{V_T+32}, 80, v4")
C("final-stage addresses (wave 0, lanes<32): RED read / AP write")
A(f"v_bfe_u32 v{V_T+33}, v0, 3, 1")
A(f"v_lshlrev_b32 v{V_T+33}, 8, v{V_T+33}")
A(f"v_lshl_add_u32 v{V_T+33}, v4, 7, v{V_T+33}")
A(f"v_and_b32 v{V_T+34}, 7, v0")
A(f"v_lshl_add_u32 v{V_T+33}, v{V_T+34}, 4, v{V_T+33}")
A(f"v_lshlrev_b32 v{V_T+34}, 11, v4")
A(f"v_lshl_add_u32 v{V_T+34}, v6, 4, v{V_T+34}")
A(f"s_lshl_b32 s{S_NT}, s{S_X}, 12")
A(f"s_lshl_b32 s{S_T1}, s{S_SUB}, 8")
A(f"s_add_u32 s{S_NT}, s{S_NT}, s{S_T1}")
A(f"s_add_u32 s{S_NT}, s{S_NT}, {WS_AP}")
if CFG["dry3"]:
    A("s_waitcnt lgkmcnt(0)")
    A("s_mov_b64 exec, 0")
    A("s_branch L_edry")
L("L_eret")
A("s_waitcnt vmcnt(0) lgkmcnt(0)")
A("s_barrier")
stamp(4)
L("L_edry")
C("DRY{")
for kp in range(4):
    for c in range(2):
        for h in range(2):
            r = V_WX + (kp * 2 + c) * 4 + 2 * h
            A(f"ds_read_b64_tr_b16 v[{r}:{r+1}], v{TT} offset:{kp*4096 + h*2048 + c*256}")
SG = V_G + 8
le, lee = newlbl("Le"), newlbl("Lee")
A(f"s_mov_b32 s{S_TO}, {CFG['timeout']}")
L(le)
A(f"s_and_b32 s{S_T0}, s{S_TO}, {CFG['bmask']}")
A(f"s_cmp_eq_u32 s{S_T0}, 1")
A(f"s_cselect_b32 s{S_T1}, s{S_PNB}, s{S_PNA}")
A(f"v_mov_b32 v{SG+2}, v{TT+2}")
A(f"v_mov_b32 v{SG+3}, v{TT+3}")
A("s_mov_b64 exec, 0xff")
A(f"buffer_load_dwordx4 v[{SG}:{SG+3}], v{EA0}, {WS}, s{S_T1} offen offset:1024 sc1")
A("s_mov_b64 exec, -1")
for i in range(2):
    r = V_G + i * 4
    A(f"buffer_load_dwordx4 v[{r}:{r+3}], v2, {WS}, s{S_T1} offen offset:{i*RECP} sc1")
A(f"s_sub_u32 s{S_TO}, s{S_TO}, 1")
A(f"s_cbranch_scc1 {lee}")
A("s_waitcnt vmcnt(0)")
tree3("v_max3_u32", "v_max_u32", range(V_G, V_G + 8), TT)
A(f"v_cmp_eq_u32 vcc, -1, v{TT}")
A(f"v_cmp_ne_u64 s[{S_T2}:{S_T3}], v[{SG+2}:{SG+3}], v[{TT+2}:{TT+3}]")
A(f"s_or_b64 vcc, vcc, s[{S_T2}:{S_T3}]")
A(f"s_cbranch_scc1 {le}")
L(lee)
A("s_waitcnt vmcnt(0)")
stamp(7)
for i in range(2):
    r = V_G + i * 4
    A(f"ds_write_b128 v{EA1}, v[{r}:{r+3}] offset:{i*PNP}")
A("s_mov_b64 exec, 0xff")
A(f"ds_write_b128 v{EA2}, v[{SG}:{SG+3}] offset:{L_STS}")
A("s_mov_b64 exec, -1")
A("s_waitcnt lgkmcnt(0)")
A("s_barrier")
SM0 = V_T + 4
MG = V_T + 8
FW = V_T + 24
A(f"ds_read_b64 v[{SM0}:{SM0+1}], v{EA4} offset:{L_STS}")
for kp in range(4):
    r = V_G + kp * 4
    A(f"ds_read_b128 v[{r}:{r+3}], v{EA3} offset:{kp*256}")
EA = V_S
A("s_waitcnt lgkmcnt(4)")
A(f"v_mov_b32 v{MG}, v{SM0}")
R8 = ROW_ALL[:3]
fill = []
for c in R8:
    fill.append(["s_nop 0", f"v_max_f32_dpp v{MG}, v{MG}, v{MG} {c} row_mask:0xf bank_mask:0xf"])
fill.append([f"v_sub_f32 v{SM0}, v{SM0}, v{MG}", f"v_exp_f32 v{SM0}, v{SM0}", "s_nop 0", f"v_mul_f32 v{MG}, v{SM0}, v{SM0+1}"])
for c in R8:
    fill.append(["s_nop 0", f"v_add_f32_dpp v{MG}, v{MG}, v{MG} {c} row_mask:0xf bank_mask:0xf"])
fill.append([f"v_rcp_f32 v{MG}, v{MG}", "s_nop 0", f"v_mul_f32 v{SM0}, v{SM0}, v{MG}"])
fi = 0
for kp in range(4):
    A(f"s_waitcnt lgkmcnt({3-kp})")
    for c in range(2):
        d = EA + c * 4
        mfma(d, V_G + kp * 4, V_WX + (kp * 2 + c) * 4, None if kp == 0 else d)
        for ins in fill[fi]:
            A(ins)
        fi += 1
assert fi == len(fill)
for r in range(4):
    A(f"ds_bpermute_b32 v{FW+r}, v{V_T+32}, v{SM0} offset:{4*r}")
A("s_waitcnt lgkmcnt(0)")
for c in range(2):
    d = EA + 4 * c
    A(f"v_mul_f32 v{d}, v{d}, v{FW}")
    A(f"v_mul_f32 v{d+2}, v{d+2}, v{FW+2}")
    A(f"v_fmac_f32 v{d}, v{d+1}, v{FW+1}")
    A(f"v_fmac_f32 v{d+2}, v{d+3}, v{FW+3}")
for c in range(2):
    d = EA + 4 * c
    A(f"v_add_f32 v{d}, v{d}, v{d+2}")
nop(2)
A(f"v_permlane16_swap_b32 v{EA}, v{EA+4}")
A(f"v_add_f32 v{EA}, v{EA}, v{EA+4}")
A(f"ds_write_b32 v{EA5}, v{EA} offset:{L_RED}")
A("s_waitcnt lgkmcnt(0)")
A("s_barrier")
A(f"s_cmp_lg_u32 s{S_WAVE}, 0")
A("s_cbranch_scc1 L_exit")
A("s_mov_b32 exec_hi, 0")
for i in range(4):
    A(f"ds_read_b128 v[{V_G+4*i}:{V_G+4*i+3}], v{V_T+33} offset:{L_RED + i*512}")
A("s_waitcnt lgkmcnt(0)")
for j in (0, 2):
    A(f"v_pk_add_f32 v[{V_G+j}:{V_G+j+1}], v[{V_G+j}:{V_G+j+1}], v[{V_G+4+j}:{V_G+5+j}]")
    A(f"v_pk_add_f32 v[{V_G+8+j}:{V_G+9+j}], v[{V_G+8+j}:{V_G+9+j}], v[{V_G+12+j}:{V_G+13+j}]")
for j in (0, 2):
    A(f"v_pk_add_f32 v[{V_G+j}:{V_G+j+1}], v[{V_G+j}:{V_G+j+1}], v[{V_G+8+j}:{V_G+9+j}]")
tag(V_G, V_TG)
A(f"buffer_store_dwordx4 v[{V_G}:{V_G+3}], v{V_T+34}, {WS}, s{S_NT} offen sc1")
stamp(8)
A("s_branch L_exit")

C("}DRY")
L("L_F")
C("==== F: MLP. 8 waves gather (b=w>>2, 128-col quarter q=w&3); waves 0..3 also do w1/gelu/w2")
V_W2 = 128
FG = 48
HX = 64
C("x[b][128q + 4(l&31)..] ; b1[mi*32 + (l&31)]")
srd(SRD_A, P_X, 2048)
A("v_and_b32 v12, 31, v0")
A("v_lshlrev_b32 v13, 3, v12")
A(f"s_lshl_b32 s{S_T0}, s{S_WAVE}, 8")
A(f"buffer_load_dwordx2 v[{V_SM}:{V_SM+1}], v13, {SA}, s{S_T0} offen")
srd(SRD_C, P_B1, 3584)
A("v_lshlrev_b32 v13, 1, v12")
A(f"s_lshl_b32 s{S_T0}, s{S_SUB}, 6")
A(f"buffer_load_ushort v{V_SM+2}, v13, {SC_}, s{S_T0} offen")
C("gather addr: (l>>5)*4096 + (l&31)*16 ; soffset = AP + w*512 + i*8192")
GAD, HA, STW, STR = V_T, V_T + 1, V_T + 2, V_T + 3
A(f"v_lshrrev_b32 v{GAD}, 5, v0")
A(f"v_lshlrev_b32 v{GAD}, 12, v{GAD}")
A(f"v_lshl_add_u32 v{GAD}, v12, 4, v{GAD}")
A(f"s_lshl_b32 s{S_T0}, s{S_WAVE}, 9")
A(f"s_add_u32 s{S_T0}, s{S_T0}, {WS_AP}")
SX = 62
for i in range(4):
    A(f"s_add_u32 s{SX+i}, s{S_T0}, {i*8192}")
C("hn write addr (cols 4j.., j=l&31): w*256 + (j>>3)*64 + (j&3)*16 + ((j>>2)&1)*8")
A(f"v_lshrrev_b32 v{HA}, 3, v12")
A(f"v_lshlrev_b32 v{HA}, 6, v{HA}")
A("v_and_b32 v13, 3, v0")
A(f"v_lshl_add_u32 v{HA}, v13, 4, v{HA}")
A("v_bfe_u32 v13, v0, 2, 1")
A(f"v_lshl_add_u32 v{HA}, v13, 3, v{HA}")
A(f"s_lshl_b32 s{S_T0}, s{S_WAVE}, 8")
A(f"v_add_u32 v{HA}, s{S_T0}, v{HA}")
C("LN stats exchange: STS + w*8 ; read STS + b*32 (sentinel initialised)")
A(f"s_lshl_b32 s{S_T0}, s{S_WAVE}, 3")
A(f"v_mov_b32 v{STW}, s{S_T0}")
A(f"s_lshr_b32 s{S_T0}, s{S_WAVE}, 2")
A(f"s_lshl_b32 s{S_T0}, s{S_T0}, 5")
A(f"v_mov_b32 v{STR}, s{S_T0}")
A("v_mov_b32 v14, -1")
A("v_mov_b32 v15, -1")
A(f"ds_write_b64 v{STW}, v[14:15] offset:{L_STS}")
C("compute-wave addresses")
vw2_addr()
A(f"s_lshl_b32 s{S_T0}, s{S_WAVE}, 13")
A(f"s_add_u32 s{S_T1}, s{S_T0}, {L_W2}")
A(f"v_add_u32 v{VB0}, s{S_T1}, v{VA0}")
A(f"v_add_u32 v{VB1}, s{S_T1}, v{VA1}")
A(f"s_add_u32 s{S_T1}, s{S_T0}, {L_WX}")
A(f"v_lshl_add_u32 v{TT}, v0, 3, s{S_T1}")
A0, A1, A2, YAD = V_T + 36, V_T + 37, V_T + 38, V_T + 39
A(f"v_lshlrev_b32 v{A0}, 10, v10")
A(f"v_lshl_add_u32 v{A0}, v4, 4, v{A0}")
A(f"s_lshl_b32 s{S_T0}, s{S_WAVE}, 8")
A(f"v_add_u32 v{A0}, s{S_T0}, v{A0}")
A(f"v_lshlrev_b32 v{A1}, 7, v6")
A(f"v_lshl_add_u32 v{A1}, v4, 4, v{A1}")
A(f"v_add_u32 v{A1}, s{S_T0}, v{A1}")
C("h1 write addr: lane (b=l>>5, c=l&31): H1 + w*128 + b*64 + ((c>>2)&3)*16 + (c>>4)*8 + (c&3)*2")
A(f"v_lshrrev_b32 v{A2}, 5, v0")
A(f"v_lshlrev_b32 v{A2}, 6, v{A2}")
A("v_bfe_u32 v13, v0, 2, 2")
A(f"v_lshl_add_u32 v{A2}, v13, 4, v{A2}")
A("v_bfe_u32 v13, v0, 4, 1")
A(f"v_lshl_add_u32 v{A2}, v13, 3, v{A2}")
A("v_and_b32 v13, 3, v0")
A(f"v_lshl_add_u32 v{A2}, v13, 1, v{A2}")
A(f"s_lshl_b32 s{S_T1}, s{S_WAVE}, 7")
A(f"s_add_u32 s{S_T1}, s{S_T1}, {L_H1}")
A(f"v_add_u32 v{A2}, s{S_T1}, v{A2}")
C("B_ct operand addresses: (n>>1)==ct ? H1 + w*128 + (n&1)*64 + g*16 : ZERO")
BA = V_T + 24
A("v_lshlrev_b32 v13, 6, v10")
A("v_lshl_add_u32 v13, v4, 4, v13")
A(f"v_add_u32 v13, s{S_T1}, v13")
A(f"v_mov_b32 v14, {L_ZERO}")
A("v_bfe_u32 v15, v0, 1, 3")
for ct in range(8):
    A(f"v_cmp_eq_u32 vcc, {ct}, v15")
    A("s_nop 1")
    A(f"v_cndmask_b32 v{BA+ct}, v14, v13, vcc")
for j in range(4):
    A(f"v_mov_b32 v{16+j}, 0")
A(f"ds_write_b128 v14, v[16:19]")
C("Y store addr: (n&1)*2048 + (n>>1)*64 + g*16 ; soff = Y + mi*YP + w*512")
A(f"v_lshlrev_b32 v{YAD}, 11, v10")
A(f"v_lshl_add_u32 v{YAD}, v15, 6, v{YAD}")
A(f"v_lshl_add_u32 v{YAD}, v4, 4, v{YAD}")
S_Y = 70
A(f"s_mul_i32 s{S_Y}, s{S_SUB}, {YP}")
A(f"s_lshl_b32 s{S_T1}, s{S_WAVE}, 9")
A(f"s_add_u32 s{S_Y}, s{S_Y}, s{S_T1}")
A(f"s_add_u32 s{S_Y}, s{S_Y}, {WS_Y}")
A("v_lshlrev_b32 v3, 2, v0")
if CFG["dry3"]:
    A("s_waitcnt lgkmcnt(0)")
    A("s_mov_b64 exec, 0")
    A("s_branch L_fdry")
L("L_fret")
A("s_waitcnt vmcnt(0) lgkmcnt(0)")
unpack(HX, V_SM, 2)
A(f"v_lshlrev_b32 v{V_SM+2}, 16, v{V_SM+2}")
A("s_barrier")
stamp(4)
L("L_fdry")
C("DRY{")
A(f"s_cmp_ge_u32 s{S_WAVE}, 4")
A("s_cbranch_scc1 L_F1")
for kp in range(4):
    for ct in range(2):
        for h in range(2):
            r = V_WX + (kp * 2 + ct) * 4 + 2 * h
            A(f"ds_read_b64_tr_b16 v[{r}:{r+1}], v{TT} offset:{kp*2048 + h*1024 + ct*512}")
A("s_waitcnt lgkmcnt(0)")
for ct in range(8):
    for h in range(2):
        r = V_W2 + ct * 4 + 2 * h
        A(f"ds_read_b64_tr_b16 v[{r}:{r+1}], v{VB0 + (ct & 1)} offset:{(ct >> 1)*256 + h*4096}")
L("L_F1")


def f_loads():
    for i in range(4):
        r = FG + i * 4
        A(f"buffer_load_dwordx4 v[{r}:{r+3}], v{GAD}, {WS}, s{SX+i} offen sc1")


tpoll(f_loads, range(FG, FG + 16), TT, V_TG, CFG['fsl'])
stamp(7)
for j in (0, 2):
    A(f"v_pk_add_f32 v[{FG+j}:{FG+j+1}], v[{FG+j}:{FG+j+1}], v[{FG+4+j}:{FG+5+j}]")
    A(f"v_pk_add_f32 v[{FG+8+j}:{FG+9+j}], v[{FG+8+j}:{FG+9+j}], v[{FG+12+j}:{FG+13+j}]")
for j in (0, 2):
    A(f"v_pk_add_f32 v[{FG+j}:{FG+j+1}], v[{FG+j}:{FG+j+1}], v[{FG+8+j}:{FG+9+j}]")
swap_steps("v_add_f32", [FG + j for j in range(4)], [FG + 4 + j for j in range(4)], which=(32,))
HP = FG + 8
pack(HP, FG, 2)
unpack(FG, HP, 2)
for j in range(4):
    A(f"v_add_f32 v{HX+j}, v{HX+j}, v{FG+j}")
pack(HP, HX, 2)
unpack(HX, HP, 2)
C("local stats around pivot c = h[first]")
A("s_nop 0")
A(f"v_readfirstlane_b32 s{S_T2}, v{HX}")
A("s_nop 1")
for j in range(4):
    A(f"v_subrev_f32 v{FG+j}, s{S_T2}, v{HX+j}")
SS, SQ = FG + 10, FG + 11
A(f"v_add_f32 v{SS}, v{FG}, v{FG+1}")
A(f"v_mul_f32 v{SQ}, v{FG}, v{FG}")
A(f"v_add_f32 v{FG+4}, v{FG+2}, v{FG+3}")
A(f"v_fmac_f32 v{SQ}, v{FG+1}, v{FG+1}")
A(f"v_add_f32 v{SS}, v{SS}, v{FG+4}")
A(f"v_fmac_f32 v{SQ}, v{FG+2}, v{FG+2}")
A(f"v_fmac_f32 v{SQ}, v{FG+3}, v{FG+3}")
nop(1)
dpp_steps("v_add_f32", [SS, SQ], ROW_ALL)
swap_steps("v_add_f32", [SS, SQ], [FG + 4, FG + 5], which=(16,))
C("mean_w = c + s/128 ; M2_w = ss - s*s/128")
A(f"v_mul_f32 v{FG+4}, {f2u(1.0/128):#x}, v{SS}")
A(f"v_fma_f32 v{SQ}, -v{FG+4}, v{SS}, v{SQ}")
A(f"v_add_f32 v{SS}, s{S_T2}, v{FG+4}")
A("s_mov_b64 exec, 1")
A(f"ds_write_b64 v{STW}, v[{SS}:{SQ}] offset:{L_STS}")
A("s_mov_b64 exec, -1")
l3, l3e = newlbl("Lst"), newlbl("Lste")
A(f"s_mov_b32 s{S_TO}, {CFG['timeout']}")
L(l3)
A(f"ds_read_b128 v[{FG}:{FG+3}], v{STR} offset:{L_STS}")
A(f"ds_read_b128 v[{FG+4}:{FG+7}], v{STR} offset:{L_STS + 16}")
A(f"s_sub_u32 s{S_TO}, s{S_TO}, 1")
A(f"s_cbranch_scc1 {l3e}")
A("s_waitcnt lgkmcnt(0)")
tree3("v_max3_u32", "v_max_u32", range(FG, FG + 8), TT)
A(f"v_cmp_eq_u32 vcc, -1, v{TT}")
A("s_cmp_lg_u64 vcc, 0")
A(f"s_cbranch_scc1 {l3}")
L(l3e)
A("s_waitcnt lgkmcnt(0)")
MEAN, VAR, TM = FG + 8, FG + 9, FG + 10
A(f"v_add_f32 v{MEAN}, v{FG}, v{FG+2}")
A(f"v_add_f32 v{TM}, v{FG+4}, v{FG+6}")
A(f"v_add_f32 v{VAR}, v{FG+1}, v{FG+3}")
A(f"v_add_f32 v{MEAN}, v{MEAN}, v{TM}")
A(f"v_add_f32 v{TM}, v{FG+5}, v{FG+7}")
A(f"v_mul_f32 v{MEAN}, 0.25, v{MEAN}" if False else f"v_mul_f32 v{MEAN}, {f2u(0.25):#x}, v{MEAN}")
A(f"v_add_f32 v{VAR}, v{VAR}, v{TM}")
for j in range(4):
    A(f"v_sub_f32 v{FG+2*j}, v{FG+2*j}, v{MEAN}")
A(f"v_mul_f32 v{TM}, v{FG}, v{FG}")
for j in range(1, 4):
    A(f"v_fmac_f32 v{TM}, v{FG+2*j}, v{FG+2*j}")
A(f"v_mul_f32 v{VAR}, {f2u(1.0/512):#x}, v{VAR}")
A(f"v_fmac_f32 v{VAR}, {f2u(0.25):#x}, v{TM}")
bf16r(MEAN, MEAN)
bf16r(VAR, VAR)
for j in range(4):
    A(f"v_sub_f32 v{FG+j}, v{HX+j}, v{MEAN}")
A(f"v_add_f32 v{VAR}, {f2u(1e-5):#x}, v{VAR}")
pack(HP + 4, FG, 2)
bf16r(VAR, VAR)
unpack(FG, HP + 4, 2)
A(f"v_sqrt_f32 v{VAR}, v{VAR}")
nop(1)
bf16r(VAR, VAR)
A(f"v_rcp_f32 v{VAR}, v{VAR}")
nop(1)
for j in range(4):
    A(f"v_mul_f32 v{FG+j}, v{FG+j}, v{VAR}")
pack(HP + 4, FG, 2)
A("s_mov_b32 exec_hi, 0")
A(f"ds_write_b64 v{HA}, v[{HP+4}:{HP+5}] offset:{L_HN}")
A("s_mov_b32 exec_hi, -1")
c0 = math.sqrt(2.0 / math.pi)
k0 = -2.0 * c0 * LOG2E
k1 = k0 * 0.044715
A(f"s_mov_b32 s{S_T1}, {f2u(k1):#x}")
A(f"v_mov_b32 v{TT}, {f2u(k0):#x}")
A("s_waitcnt lgkmcnt(0)")
A("s_barrier")
stamp(8)
A(f"s_cmp_ge_u32 s{S_WAVE}, 4")
A("s_cbranch_scc1 L_exit")
for kp in range(4):
    A(f"ds_read_b128 v[{V_Q+4*kp}:{V_Q+4*kp+3}], v{A0} offset:{L_HN + kp*64}")
for kp in range(4):
    A(f"s_waitcnt lgkmcnt({3-kp})")
    for ct in range(2):
        mfma(V_S + 4 * ct, V_WX + (kp * 2 + ct) * 4, V_Q + 4 * kp, None if kp == 0 else V_S + 4 * ct)
nop(6)
set_exec(MASK_N2)
A(f"ds_write_b128 v{A1}, v[{V_S}:{V_S+3}] offset:{L_RED}")
A(f"ds_write_b128 v{A1}, v[{V_S+4}:{V_S+7}] offset:{L_RED + 64}")
A("s_mov_b64 exec, -1")
A("s_waitcnt lgkmcnt(0)")
A("s_barrier")
U = 16
for wp in range(4):
    A(f"ds_read_b32 v{U+wp}, v3 offset:{L_RED + wp*256}")
A("s_waitcnt lgkmcnt(0)")
A(f"v_add_f32 v{U}, v{U}, v{U+1}")
A(f"v_add_f32 v{U+2}, v{U+2}, v{U+3}")
A(f"v_add_f32 v{U}, v{U}, v{U+2}")
bf16r(U, U)
A(f"v_add_f32 v{U}, v{U}, v{V_SM+2}")
bf16r(U, U)
A(f"v_mul_f32 v{U+1}, v{U}, v{U}")
A(f"v_fma_f32 v{U+1}, v{U+1}, s{S_T1}, v{TT}")
A(f"v_mul_f32 v{U+1}, v{U+1}, v{U}")
A(f"v_exp_f32 v{U+1}, v{U+1}")
nop(1)
A(f"v_add_f32 v{U+1}, 1.0, v{U+1}")
A(f"v_rcp_f32 v{U+1}, v{U+1}")
nop(1)
A(f"v_mul_f32 v{U}, v{U}, v{U+1}")
A(f"v_cvt_pk_bf16_f32 v{U}, v{U}, v{U}")
A(f"ds_write_b16 v{A2}, v{U}")
BO = 32
for ct in range(8):
    A(f"ds_read_b128 v[{BO+4*ct}:{BO+4*ct+3}], v{BA+ct}")
YA = 24
for ct in range(8):
    A(f"s_waitcnt lgkmcnt({7-ct})")
    mfma(YA, V_W2 + 4 * ct, BO + 4 * ct, None if ct == 0 else YA)
nop(8)
tag(YA, V_TG)
A(f"buffer_store_dwordx4 v[{YA}:{YA+3}], v{YAD}, {WS}, s{S_Y} offen sc1")
stamp(9)
A("s_branch L_exit")
C("}DRY")
if CFG["dry2"]:
    for r, ret in ((1, "L_kret"), (2, "L_eret"), (3, "L_fret")):
        L(f"L_exit_{r}")
        A("s_cbranch_execnz L_exit")
        A("s_mov_b64 exec, -1")
        A(f"s_branch {ret}")
L("L_exit")
stamp_flush()
L("L_end")
A("s_endpgm")

out.append(f""".section .rodata,"a"
.p2align 6
.amdhsa_kernel {NAME}_kernel
  .amdhsa_next_free_vgpr 168
  .amdhsa_next_free_sgpr 102
  .amdhsa_accum_offset 168
  .amdhsa_group_segment_fixed_size 0
  .amdhsa_kernarg_size 104
  .amdhsa_user_sgpr_count 2
  .amdhsa_user_sgpr_kernarg_segment_ptr 1
  .amdhsa_system_sgpr_workgroup_id_x 1
.end_amdhsa_kernel""")

order = CFG_ORDER
lines = [l for b in order for l in BLK[b]]


def dry_pass(lines):
    res, indry, k = [], False, 0
    i = 0

    def is_mem(t):
        return t.startswith(("buffer_", "global_", "s_load", "s_atomic", "s_barrier"))

    def exec_write(t):
        return t.startswith(("s_mov_b64 exec", "s_mov_b32 exec", "s_and_b64 exec"))

    def restores(t):
        return t in ("s_mov_b64 exec, -1", "s_mov_b32 exec_hi, -1")
    open_span, masked, nd = None, False, False
    for l in lines:
        t = l.strip()
        if t == "; DRY{":
            indry = True
            i += 1
            continue
        if t == "; }DRY":
            assert open_span is None or True
            if open_span:
                res.append(open_span + ":")
                open_span = None
            masked = False
            indry = False
            continue
        if not (indry and CFG["dry2"]):
            if t not in ("; ND{", "; }ND"):
                res.append(l)
            continue
        if t == "; ND{":
            nd = True
            if not open_span:
                k += 1
                open_span = f"L_sk{k}"
                res.append(f"    s_cbranch_execz {open_span}")
            continue
        if t == "; }ND":
            nd = False
            continue
        unsafe = nd or masked or is_mem(t) or exec_write(t)
        if masked and t == "s_branch L_exit":
            unsafe = False
            masked = False
        if t.endswith(" L_exit"):
            l = l + f"_{i}"
        if unsafe:
            if not open_span:
                k += 1
                open_span = f"L_sk{k}"
                res.append(f"    s_cbranch_execz {open_span}")
            res.append(l)
            if exec_write(t):
                masked = not restores(t)
        else:
            if open_span:
                res.append(open_span + ":")
                open_span = None
            res.append(l)
    return res


print("\n".join(dry_pass(lines)))
```

```python
import sys, struct, math

NAME = "sequential_preLN__sliding_block_cached__dense_activation_gelu__decode"

CFG = dict(nt=1, timeout=1 << 18, stamps=0, dual=1, tsleep0=10, tsleep=3, tsleepa=24, qsleep=0, mwin=4, touch=1, bmask=15, fsl=0, g1sl=0, g2sl=0, pf=29, pfw=16, touch2=1, kb0=6, kthm=0, kthn=8, dry=1, dry2=1, dry3=1, korder=0, ktouch=1, tl2=6)
for a in sys.argv[1:]:
    if "=" in a:
        k, v = a.split("=")
        CFG[k] = int(v)
NT = " nt" if CFG["nt"] else ""

WS_Q = 0x00000
RECP = 1152
WS_PNA = 0x10000
WS_PNB = 0x50000
WS_XQA = 0x90000
WS_XQB = 0x80000
WS_AP = 0xA8000
WS_Y = 0xB0000
YP = 4096 + 128
WS_TS = 0xF0000
WS_SIZE = 0x200000

L_QL = 0
L_XN = 0
L_SC = 2048
L_QR = 2048
L_HN = 4096
L_RED = 6144
L_STS = 8192
L_QS = 9216
L_H1 = 9216
L_ZERO = 9728
L_MX = 10240
L_LS = 10368
L_FLAG = 10496
L_TAG = 10512
L_FL2 = 10544
L_DUM = 10560
BIG = 11264
L_K = BIG
L_V = BIG + 65536
L_WQ = BIG
L_WO = BIG + 32768
L_WX = BIG + 32768
L_W2 = BIG + 65536
L_PS = BIG + 98304
PNP = 1040
LDS_BYTES = BIG + 131072

LOG2E = 1.4426950408889634
SCALE = 128 ** -0.5


def f2u(f):
    return struct.unpack("<I", struct.pack("<f", f))[0]


out = []


def A(s):
    out.append("    " + s)


def L(s):
    out.append(s + ":")


def C(s):
    out.append("    ; " + s)


def nop(n):
    while n > 0:
        k = min(n, 16)
        A(f"s_nop {k-1}")
        n -= k


_lbl = [0]


def newlbl(p="L"):
    _lbl[0] += 1
    return f"{p}_{_lbl[0]}"


P_X, P_K, P_V, P_WQ, P_WO, P_BX, P_W1, P_B1, P_W2, P_B2, P_OUT, P_DBG, P_WS = [36 + 2 * i for i in range(13)]
S_WAVE, S_X, S_A, S_B, S_SPL = 3, 4, 5, 6, 7
SRD_WS, SRD_A, SRD_B, SRD_C = 8, 12, 16, 20
S_T0, S_T1, S_T2, S_T3, S_T4, S_T5 = 24, 25, 26, 27, 28, 29
S_TO, S_ROLE, S_SUB, S_NT, S_PNA, S_PNB = 30, 31, 32, 33, 34, 35
S_Q = 36
S_TG = 100
WS = f"s[{SRD_WS}:{SRD_WS+3}]"
SA = f"s[{SRD_A}:{SRD_A+3}]"
SB = f"s[{SRD_B}:{SRD_B+3}]"
SC_ = f"s[{SRD_C}:{SRD_C+3}]"
V_ST = 1
S_DRY = 7
CFG_ORDER = ["head", "qc", "ldr", "gv", "att", "qm2"]
V_MSK = 5


def srd(d, p, size):
    A(f"s_mov_b32 s{d}, s{p}")
    A(f"s_mov_b32 s{d+1}, s{p+1}")
    A(f"s_mov_b32 s{d+2}, {size:#x}")
    A(f"s_mov_b32 s{d+3}, 0x00020000")


def stamp(slot):
    if CFG.get("probe", -1) == slot:
        A("s_memrealtime s[0:1]")
        A("s_waitcnt lgkmcnt(0)")
        A("s_mov_b32 s7, s0")
    if CFG["stamps"]:
        A("s_memrealtime s[0:1]")
        A("s_waitcnt lgkmcnt(0)")
        A(f"v_writelane_b32 v{V_ST}, s0, {slot}")


def stamp_flush():
    if not CFG["stamps"]:
        return
    if CFG["stamps"] == 2:
        A("s_mov_b64 exec, -1")
        A(f"v_mov_b32 v2, {L_TAG}")
        A("ds_read_b32 v3, v2")
        A("s_waitcnt lgkmcnt(0)")
        A(f"v_sub_u32 v3, v{V_ST}, v3")
        A("v_max_i32 v3, 0, v3")
        A("v_lshlrev_b32 v2, 2, v0")
        A("v_add_co_u32 v166, vcc, v166, v2")
        A("v_addc_co_u32 v167, vcc, 0, v167, vcc")
        A(f"v_cmp_ne_u32 vcc, 0, v{V_ST}")
        A("s_bitcmp1_b32 vcc_lo, 11")
        A("s_cbranch_scc0 L_end")
        A("s_and_b64 exec, vcc, 0x1fff")
        A("s_cbranch_execz L_end")
        A("global_atomic_umax v[166:167], v3, off offset:8")
        return
    A("s_mov_b64 exec, -1")
    A("s_lshl_b32 s0, s2, 10")
    A(f"s_lshl_b32 s1, s{S_WAVE}, 6")
    A("s_add_u32 s0, s0, s1")
    A(f"s_add_u32 s0, s0, {WS_TS}")
    A("v_lshlrev_b32 v2, 2, v0")
    A("s_mov_b64 exec, 0xffff")
    A(f"buffer_store_dword v{V_ST}, v2, {WS}, s0 offen")


def dpp_steps(op, regs, ctrls):
    for c in ctrls:
        pad = max(0, 2 - (len(regs) - 1))
        if pad:
            nop(pad)
        for r in regs:
            A(f"{op}_dpp v{r}, v{r}, v{r} {c} row_mask:0xf bank_mask:0xf")


ROW_ALL = ["quad_perm:[1,0,3,2]", "quad_perm:[2,3,0,1]", "row_half_mirror", "row_mirror"]
ROW_HI = ["row_ror:4", "row_ror:8"]


def swap_steps(op, regs, tmps, which=(16, 32)):
    for wd in which:
        sw = f"v_permlane{wd}_swap_b32"
        for r, t in zip(regs, tmps):
            A(f"v_mov_b32 v{t}, v{r}")
        pad = max(0, 2 - (len(regs) - 1))
        if pad:
            nop(pad)
        for r, t in zip(regs, tmps):
            A(f"{sw} v{r}, v{t}")
        for r, t in zip(regs, tmps):
            A(f"{op} v{r}, v{r}, v{t}")


def allreduce(op, regs, tmps):
    nop(2)
    dpp_steps(op, regs, ROW_ALL)
    swap_steps(op, regs, tmps)


def lds_wait(flag_off, vt, va, sleep=0):
    l, e = newlbl("Lw"), newlbl("Lwe")
    A(f"v_mov_b32 v{va}, {flag_off}")
    A(f"s_mov_b32 s{S_TO}, {CFG['timeout']}")
    L(l)
    if sleep:
        A(f"s_sleep {sleep}")
    A(f"ds_read_b32 v{vt}, v{va}")
    A(f"s_sub_u32 s{S_TO}, s{S_TO}, 1")
    A(f"s_cbranch_scc1 {e}")
    A("s_waitcnt lgkmcnt(0)")
    A(f"v_readfirstlane_b32 s{S_T0}, v{vt}")
    A(f"s_cmp_eq_u32 s{S_T0}, 0")
    A(f"s_cbranch_scc1 {l}")
    L(e)
    A("s_waitcnt lgkmcnt(0)")


def lds_set(flag_off, vt, va):
    A("s_waitcnt lgkmcnt(0)")
    A(f"v_mov_b32 v{va}, {flag_off}")
    A(f"v_mov_b32 v{vt}, 1")
    A(f"ds_write_b32 v{va}, v{vt}")


def lds_sync(cnt_off, n, vt, va):
    l, e = newlbl("Ls"), newlbl("Lse")
    A(f"v_mov_b32 v{va}, {cnt_off}")
    A(f"v_mov_b32 v{vt}, 1")
    A("s_mov_b64 exec, 1")
    A(f"ds_add_u32 v{va}, v{vt}")
    A("s_mov_b64 exec, -1")
    A(f"s_mov_b32 s{S_TO}, {CFG['timeout']}")
    L(l)
    A(f"ds_read_b32 v{vt}, v{va}")
    A(f"s_sub_u32 s{S_TO}, s{S_TO}, 1")
    A(f"s_cbranch_scc1 {e}")
    A("s_waitcnt lgkmcnt(0)")
    A(f"v_readfirstlane_b32 s{S_T0}, v{vt}")
    A(f"s_cmp_lt_u32 s{S_T0}, {n}")
    A(f"s_cbranch_scc1 {l}")
    L(e)
    A("s_waitcnt lgkmcnt(0)")


def tree3(op3, op2, regs, t):
    regs = list(regs)
    A(f"{op3} v{t}, v{regs[0]}, v{regs[1]}, v{regs[2]}")
    i = 3
    while i + 1 < len(regs):
        A(f"{op3} v{t}, v{t}, v{regs[i]}, v{regs[i+1]}")
        i += 2
    if i < len(regs):
        A(f"{op2} v{t}, v{t}, v{regs[i]}")


def tag(quad, tg):
    for j in range(4):
        A(f"v_add_u32 v{quad+j}, 0x200, v{quad+j}")
    for j in range(4):
        A(f"v_bfi_b32 v{quad+j}, v{V_MSK}, v{tg+j}, v{quad+j}")


def tpoll(loads, regs, t, tg, sleep=0):
    l, e = newlbl("Lt"), newlbl("Lte")
    regs = list(regs)
    A(f"s_mov_b32 s{S_TO}, {CFG['timeout']}")
    L(l)
    if sleep:
        A(f"s_sleep {sleep}")
    loads()
    A(f"s_sub_u32 s{S_TO}, s{S_TO}, 1")
    A(f"s_cbranch_scc1 {e}")
    A("s_waitcnt vmcnt(0)")
    for i, r in enumerate(regs):
        A(f"v_xor_b32 v{r}, v{r}, v{tg + (i & 3)}")
    tree3("v_or3_b32", "v_or_b32", regs, t)
    A(f"v_and_b32 v{t}, v{V_MSK}, v{t}")
    A(f"v_cmp_ne_u32 vcc, 0, v{t}")
    A("s_cmp_lg_u64 vcc, 0")
    A(f"s_cbranch_scc1 {l}")
    L(e)
    A("s_waitcnt vmcnt(0)")


def tpoll2(loads, nld, bases, nreg, t, tg, consume):
    l, eA, eB, done = newlbl("Lu"), newlbl("LuA"), newlbl("LuB"), newlbl("Lud")

    def check(base, target):
        A(f"s_waitcnt vmcnt({nld})")
        regs = list(range(base, base + nreg))
        for i, r in enumerate(regs):
            A(f"v_xor_b32 v{r}, v{r}, v{tg + (i & 3)}")
        tree3("v_or3_b32", "v_or_b32", regs, t)
        A(f"v_and_b32 v{t}, v{V_MSK}, v{t}")
        A(f"v_cmp_ne_u32 vcc, 0, v{t}")
        A("s_cmp_eq_u64 vcc, 0")
        A(f"s_cbranch_scc1 {target}")
    A(f"s_mov_b32 s{S_TO}, {CFG['timeout']}")
    loads(bases[0])
    L(l)
    loads(bases[1])
    check(bases[0], eA)
    loads(bases[0])
    check(bases[1], eB)
    A(f"s_sub_u32 s{S_TO}, s{S_TO}, 1")
    A(f"s_cbranch_scc0 {l}")
    A("s_waitcnt vmcnt(0)")
    L(eA)
    consume(bases[0])
    A(f"s_branch {done}")
    L(eB)
    consume(bases[1])
    L(done)


def bf16r(dst, src):
    A(f"v_cvt_pk_bf16_f32 v{dst}, v{src}, v{src}")
    A(f"v_lshlrev_b32 v{dst}, 16, v{dst}")


def unpack(dst, src, n):
    for i in range(n):
        A(f"v_lshlrev_b32 v{dst+2*i}, 16, v{src+i}")
        A(f"v_and_b32 v{dst+2*i+1}, 0xffff0000, v{src+i}")


def pack(dst, src, n):
    for i in range(n):
        A(f"v_cvt_pk_bf16_f32 v{dst+i}, v{src+2*i}, v{src+2*i+1}")


def layernorm(xs, nb, tmp, outp):
    s = [tmp + i for i in range(nb)]
    q = [tmp + nb + i for i in range(nb)]
    t = [tmp + 2 * nb + i for i in range(nb)]
    mb = [tmp + 3 * nb + i for i in range(nb)]
    d = [tmp + 4 * nb + 8 * i for i in range(nb)]
    for i in range(nb):
        x = xs[i]
        A(f"v_add_f32 v{s[i]}, v{x}, v{x+1}")
        A(f"v_add_f32 v{t[i]}, v{x+2}, v{x+3}")
        A(f"v_add_f32 v{q[i]}, v{x+4}, v{x+5}")
        A(f"v_add_f32 v{mb[i]}, v{x+6}, v{x+7}")
        A(f"v_add_f32 v{s[i]}, v{s[i]}, v{t[i]}")
        A(f"v_add_f32 v{q[i]}, v{q[i]}, v{mb[i]}")
        A(f"v_add_f32 v{s[i]}, v{s[i]}, v{q[i]}")
    allreduce("v_add_f32", s, t)
    for i in range(nb):
        A(f"v_mul_f32 v{s[i]}, {f2u(1.0/512):#x}, v{s[i]}")
    for i in range(nb):
        x = xs[i]
        for j in range(8):
            A(f"v_sub_f32 v{d[i]+j}, v{x+j}, v{s[i]}")
        A(f"v_mul_f32 v{q[i]}, v{d[i]}, v{d[i]}")
        for j in range(1, 8):
            A(f"v_fmac_f32 v{q[i]}, v{d[i]+j}, v{d[i]+j}")
        bf16r(mb[i], s[i])
    nop(2)
    dpp_steps("v_add_f32", q, ROW_ALL)
    for i in range(nb):
        x = xs[i]
        for j in range(8):
            A(f"v_sub_f32 v{d[i]+j}, v{x+j}, v{mb[i]}")
        pack(outp[i], d[i], 4)
        unpack(d[i], outp[i], 4)
    swap_steps("v_add_f32", q, t)
    for i in range(nb):
        A(f"v_mul_f32 v{q[i]}, {f2u(1.0/512):#x}, v{q[i]}")
        bf16r(q[i], q[i])
        A(f"v_add_f32 v{q[i]}, {f2u(1e-5):#x}, v{q[i]}")
        bf16r(q[i], q[i])
        A(f"v_sqrt_f32 v{q[i]}, v{q[i]}")
        nop(1)
        bf16r(q[i], q[i])
        A(f"v_rcp_f32 v{q[i]}, v{q[i]}")
    nop(1)
    for i in range(nb):
        for j in range(8):
            A(f"v_mul_f32 v{d[i]+j}, v{d[i]+j}, v{q[i]}")
        pack(outp[i], d[i], 4)


def mfma(d, a, b, c=None):
    cc = f"v[{c}:{c+3}]" if c is not None else "0"
    A(f"v_mfma_f32_16x16x32_bf16 v[{d}:{d+3}], v[{a}:{a+3}], v[{b}:{b+3}], {cc}")


MASK_N2 = 0x0003000300030003
MASK_N4 = 0x000f000f000f000f


def set_exec(mask):
    A(f"s_mov_b32 exec_lo, {mask & 0xffffffff:#x}")
    A(f"s_mov_b32 exec_hi, {mask >> 32:#x}")


def tag_poll(sleep0, sel, barrier=False):
    lt, lte = newlbl(), newlbl()
    A(f"s_and_b32 s{S_T1}, s{sel}, 3")
    A(f"s_lshl_b32 s{S_T1}, s{S_T1}, 6")
    A(f"s_mov_b32 s{S_TO}, {CFG['timeout']}")
    if sleep0:
        A(f"s_sleep {sleep0}")
    if CFG["tl2"]:
        C("first attempts through the caches, one replica line each (a line is never re-read that way)")
        for r in range(4):
            A(f"s_load_dwordx2 s[{S_TG}:{S_TG+1}], s[{P_DBG}:{P_DBG+1}], {64*r}")
            A("s_waitcnt lgkmcnt(0)")
            A(f"s_cmp_lg_u32 s{S_TG+1}, 0")
            A(f"s_cbranch_scc1 {lte}")
            A(f"s_sleep {CFG['tl2']}")
    L(lt)
    A(f"s_load_dwordx2 s[{S_TG}:{S_TG+1}], s[{P_DBG}:{P_DBG+1}], s{S_T1} glc")
    A(f"s_sub_u32 s{S_TO}, s{S_TO}, 1")
    A(f"s_cbranch_scc1 {lte}")
    A("s_waitcnt lgkmcnt(0)")
    A(f"s_cmp_lg_u32 s{S_TG+1}, 0")
    A(f"s_cbranch_scc1 {lte}")
    A(f"s_sleep {CFG['tsleep']}")
    A(f"s_branch {lt}")
    L(lte)
    A("s_waitcnt lgkmcnt(0)")
    A(f"v_mov_b32 v100, s{S_TG}")
    A(f"v_mov_b32 v101, s{S_TG+1}")
    A("v_and_b32 v104, 0x3ff, v100")
    A("v_bfe_u32 v105, v100, 10, 10")
    A("v_bfe_u32 v106, v100, 20, 10")
    A("v_alignbit_b32 v107, v101, v100, 30")
    A("v_and_b32 v107, 0x3ff, v107")
    A(f"v_mov_b32 v102, {L_TAG}")
    if barrier == 1:
        A("s_barrier")
    A("ds_write_b64 v102, v[100:101]")
    A("ds_write_b128 v102, v[104:107] offset:16")
    if barrier == 2:
        A("s_waitcnt lgkmcnt(0)")
    else:
        lds_set(L_FLAG, 100, 101)


XNT = ' nt' if CFG.get('xnt', 0) else ''
out.append(f"""; fused pre-LN attention(decode, sliding window) + gelu MLP, persistent kernel
; @launch grid=(256,1,1) block=(640,1,1) lds={LDS_BYTES}
.amdgcn_target "amdgcn-amd-amdhsa--gfx950"
.text
.globl {NAME}_kernel
.p2align 8
.type {NAME}_kernel,@function
{NAME}_kernel:""")

BLK = {"head": out}


def begin(name):
    global out
    BLK[name] = []
    out = BLK[name]


def post_entry():
    A("s_waitcnt lgkmcnt(0)")
    srd(SRD_WS, P_WS, WS_SIZE)
    if CFG["stamps"] == 2:
        A(f"v_mov_b32 v166, s{P_DBG}")
        A(f"v_mov_b32 v167, s{P_DBG+1}")
    stamp(0)


def att_common():
    A(f"s_sub_u32 s{S_A}, s{S_A}, 16")
    A(f"s_lshr_b32 s{S_B}, s{S_A}, 3")
    A(f"s_lshl_b32 s{S_T0}, s{S_X}, 4")
    A(f"s_add_u32 s{S_T0}, s{S_T0}, s{S_A}")
    A(f"s_mul_i32 s{S_T0}, s{S_T0}, {RECP}")
    A(f"s_add_u32 s{S_PNA}, s{S_T0}, {WS_PNA}")
    A(f"s_add_u32 s{S_PNB}, s{S_T0}, {WS_PNB}")


def gv_common():
    A(f"s_mul_i32 s{S_SUB}, s{S_X}, 7")
    A(f"s_add_u32 s{S_SUB}, s{S_SUB}, s{S_A}")
    A(f"s_sub_u32 s{S_SUB}, s{S_SUB}, 8")
    A(f"s_mov_b32 s{S_ROLE}, 2")
    A(f"s_cmp_lt_u32 s{S_A}, 8")
    A(f"s_cselect_b32 s{S_ROLE}, 1, s{S_ROLE}")
    A(f"s_cselect_b32 s{S_SUB}, s{S_A}, s{S_SUB}")
    A(f"s_cmp_eq_u32 s{S_A}, 15")
    A(f"s_cselect_b32 s{S_ROLE}, 0, s{S_ROLE}")


def zero_flags():
    for j in range(4):
        A(f"v_mov_b32 v{12+j}, 0")
    A(f"v_mov_b32 v3, {L_FLAG}")
    A("ds_write_b128 v3, v[12:15]")
    A(f"ds_write_b128 v3, v[12:15] offset:{L_FL2 - L_FLAG}")


A("s_cmp_ge_u32 s2, 256")
A("s_cbranch_scc1 L_end")
A("s_load_dwordx16 s[36:51], s[0:1], 0")
A("s_load_dwordx8 s[52:59], s[0:1], 64")
A("s_load_dwordx2 s[60:61], s[0:1], 96")
A("v_lshrrev_b32 v1, 6, v0")
A("v_and_b32 v0, 63, v0")
A(f"s_and_b32 s{S_X}, s2, 7")
A(f"v_readfirstlane_b32 s{S_WAVE}, v1")
A(f"s_lshr_b32 s{S_A}, s2, 3")
if CFG["pf"]:
    C("early workgroups: waves 0..5 pull the kernel's code into L2 (striped)")
    A(f"s_cmp_ge_u32 s{S_WAVE}, 5")
    A("s_cbranch_scc1 L_pfe")
    A(f"s_cmp_ge_u32 s{S_A}, {CFG['pfw']}")
    A("s_cbranch_scc1 L_pfe")
    A("s_getpc_b64 s[24:25]")
    L("L_pcref")
    A(f"s_lshl_b32 s26, s{S_WAVE}, 7")
    L("L_pf")
    A("s_load_dword s27, s[24:25], s26")
    A("s_add_u32 s26, s26, 640")
    A("s_cmp_lt_u32 s26, L_end-L_pcref")
    A("s_cbranch_scc1 L_pf")
    L("L_pfe")
A("v_lshlrev_b32 v2, 4, v0")
A("v_lshrrev_b32 v4, 4, v0")
A(f"v_mov_b32 v{V_MSK}, 0x3ff")
A("v_and_b32 v6, 15, v0")
A("v_lshrrev_b32 v8, 3, v0")
A("v_bfe_u32 v9, v0, 1, 2")
A("v_and_b32 v10, 1, v0")
A("v_lshlrev_b32 v11, 5, v8")
A("v_lshl_add_u32 v11, v10, 4, v11")
if CFG["stamps"]:
    A(f"v_mov_b32 v{V_ST}, 0")
C("dispatch before waiting for the kernel arguments")
A(f"s_lshr_b32 s{S_T0}, s{S_A}, 4")
A(f"s_lshl_b32 s{S_T0}, s{S_T0}, 4")
A(f"s_or_b32 s{S_T0}, s{S_T0}, s{S_WAVE}")
A(f"s_cmp_ge_u32 s{S_T0}, 24")
A("s_cbranch_scc1 L_ldr")
A(f"s_cmp_ge_u32 s{S_T0}, 16")
A("s_cbranch_scc1 L_att")
if CFG["dry"]:
    A(f"s_cmp_lg_u32 s{S_T0}, 5")
    A("s_cbranch_scc1 L_nd")
    C("wave 5 walks the q wave's register/LDS code with EXEC=0 to warm the instruction cache")
    A("s_mov_b64 exec, 0")
    A("s_branch L_dry")
    L("L_nd")
A(f"s_cmp_lg_u32 s{S_T0}, 6")
A("s_cbranch_scc1 L_GV")

V_K = 16
V_Q = 48
V_S = 64
V_SM = 72
V_PNA = 80
V_T = 84
V_TG = 124
V_G = 128

begin("att")
L("L_att")
att_common()
post_entry()
srd(SRD_C, P_OUT, 2048)
srd(SRD_A, P_DBG, 256)
A(f"s_lshl_b32 s{S_T1}, s{S_WAVE}, 8")
A(f"s_add_u32 s{S_PNA}, s{S_PNA}, s{S_T1}")
A(f"s_add_u32 s{S_PNB}, s{S_PNB}, s{S_T1}")
A(f"v_lshlrev_b32 v{V_PNA}, 6, v6")
A(f"v_lshl_add_u32 v{V_PNA}, v4, 4, v{V_PNA}")
C("G role: even a -> gi = x*8 + a/2 (wave 0)")
A(f"s_lshl_b32 s{S_T0}, s{S_X}, 3")
A(f"s_lshr_b32 s{S_T1}, s{S_A}, 1")
A(f"s_add_u32 s{S_SUB}, s{S_T0}, s{S_T1}")
A(f"s_and_b32 s{S_ROLE}, s{S_A}, 1")
A(f"s_or_b32 s{S_ROLE}, s{S_ROLE}, s{S_WAVE}")
A(f"s_cmp_lg_u32 s{S_ROLE}, 0")
A("s_cbranch_scc1 L_nogsm")
srd(SRD_B, P_X, 2048)
A(f"v_and_b32 v{V_T}, 3, v0")
A(f"v_lshlrev_b32 v{V_T}, 3, v{V_T}")
A(f"s_lshl_b32 s{S_T0}, s{S_SUB}, 5")
A(f"buffer_load_dwordx2 v[{V_SM}:{V_SM+1}], v{V_T}, {SB}, s{S_T0} offen{XNT}")
if CFG["touch2"]:
    A(f"buffer_load_dwordx2 v[{V_SM+4}:{V_SM+5}], v{V_T}, {SC_}, s{S_T0} offen")
srd(SRD_B, P_B2, 1024)
A(f"s_and_b32 s{S_T0}, s{S_T0}, 1023")
A(f"buffer_load_dwordx2 v[{V_SM+2}:{V_SM+3}], v{V_T}, {SB}, s{S_T0} offen{XNT}")
L("L_nogsm")
C("pre-touch this wave's q lines so that they are resident at the memory side")
A(f"s_lshl_b32 s{S_T1}, s{S_X}, 12")
A(f"s_lshl_b32 s{S_T2}, s{S_B}, 11")
A(f"s_add_u32 s{S_T1}, s{S_T1}, s{S_T2}")
A(f"s_lshl_b32 s{S_T2}, s{S_WAVE}, 8")
A(f"s_add_u32 s{S_T1}, s{S_T1}, s{S_T2}")
A(f"s_add_u32 s{S_T2}, s{SRD_WS}, s{S_T1}")
A(f"s_addc_u32 s{S_T3}, s{SRD_WS+1}, 0")
if CFG["touch"]:
    for i in range(4):
        A(f"s_load_dword s{64+i}, s[{S_T2}:{S_T3}], {WS_Q + 64*i} glc")
C("K fragment addresses: K + w*8192 + m*256 + ((4k+g)^m)*16")
KA = V_T + 36
A(f"s_lshl_b32 s{S_T0}, s{S_WAVE}, 13")
A(f"s_add_u32 s{S_T0}, s{S_T0}, {L_K}")
for kp in range(4):
    A(f"v_add_u32 v{KA+kp}, {4*kp}, v4")
    A(f"v_xor_b32 v{KA+kp}, v{KA+kp}, v6")
    A(f"v_lshlrev_b32 v{KA+kp}, 4, v{KA+kp}")
    A(f"v_lshl_add_u32 v{KA+kp}, v6, 8, v{KA+kp}")
    A(f"v_add_u32 v{KA+kp}, s{S_T0}, v{KA+kp}")
A(f"s_cmp_lg_u32 s{S_WAVE}, 7")
A("s_cbranch_scc1 L_ntp")
tag_poll(CFG["tsleepa"], S_A, barrier=2)
L("L_ntp")
A("s_barrier")
A(f"v_mov_b32 v{V_T}, 0")
A(f"ds_read_b64 v[{V_T+2}:{V_T+3}], v{V_T} offset:{L_TAG}")
A(f"ds_read_b128 v[{V_TG}:{V_TG+3}], v{V_T} offset:{L_TAG + 16}")
A("s_waitcnt lgkmcnt(0)")
A(f"v_readfirstlane_b32 s{S_TG}, v{V_T+2}")
A(f"v_readfirstlane_b32 s{S_TG+1}, v{V_T+3}")
stamp(1)
S2 = V_T + 4
PK = V_T + 12
MM = V_T + 16
TT = V_T + 20
EX = V_T + 24
QA = V_T + 1
A(f"s_lshl_b32 s{S_T0}, s{S_WAVE}, 7")
A(f"v_lshl_add_u32 v{QA}, v0, 2, s{S_T0}")
A(f"v_and_b32 v{V_T+2}, 3, v0")
A(f"v_lshlrev_b32 v{V_T+3}, 8, v{V_T+2}")
A(f"v_lshl_add_u32 v{V_T+3}, v4, 4, v{V_T+3}")
A(f"s_lshl_b32 s{S_T0}, s{S_WAVE}, 2")
A(f"v_lshl_add_u32 v{TT+2}, v0, 5, s{S_T0}")
A(f"v_lshlrev_b32 v{TT+3}, 5, v{V_T+2}")
C("---- scalar gather of q: this wave's 256 bytes (16 granules {d0,d1,T0,T1})")
lq, lqe, lqk = newlbl("Lq"), newlbl("Lqe"), newlbl("Lqk")
stamp(12)


def k_frags():
    for kp in range(4):
        for tt in range(2):
            r = V_K + (tt * 4 + kp) * 4
            A(f"ds_read_b128 v[{r}:{r+3}], v{KA+kp} offset:{tt*4096}")


A(f"v_mov_b32 v{TT}, {L_FLAG + 4}")
A(f"s_mov_b32 s{S_NT}, 0")
A(f"s_mov_b32 s{S_TO}, {CFG['timeout']}")
L(lq)
for i in range(4):
    A(f"s_load_dwordx16 s[{S_Q+16*i}:{S_Q+16*i+15}], s[{S_T2}:{S_T3}], {WS_Q + 64*i} glc")
A(f"ds_read_b32 v{TT+1}, v{TT}")
A(f"s_sub_u32 s{S_TO}, s{S_TO}, 1")
A(f"s_cbranch_scc1 {lqe}")
A("s_waitcnt lgkmcnt(0)")
A(f"v_readfirstlane_b32 s{S_T0}, v{TT+1}")
A(f"s_andn2_b32 s{S_T0}, s{S_T0}, s{S_NT}")
A(f"s_cbranch_scc0 {lqk}")
A(f"s_mov_b32 s{S_NT}, 1")
k_frags()
L(lqk)
A(f"s_and_b64 s[{S_T4}:{S_T5}], s[{S_Q+2}:{S_Q+3}], s[{S_Q+6}:{S_Q+7}]")
A(f"s_or_b64 s[{S_T0}:{S_T1}], s[{S_Q+2}:{S_Q+3}], s[{S_Q+6}:{S_Q+7}]")
for gq in range(2, 16):
    A(f"s_and_b64 s[{S_T4}:{S_T5}], s[{S_T4}:{S_T5}], s[{S_Q+4*gq+2}:{S_Q+4*gq+3}]")
    A(f"s_or_b64 s[{S_T0}:{S_T1}], s[{S_T0}:{S_T1}], s[{S_Q+4*gq+2}:{S_Q+4*gq+3}]")
A(f"s_xor_b64 s[{S_T4}:{S_T5}], s[{S_T4}:{S_T5}], s[{S_TG}:{S_TG+1}]")
A(f"s_xor_b64 s[{S_T0}:{S_T1}], s[{S_T0}:{S_T1}], s[{S_TG}:{S_TG+1}]")
A(f"s_or_b64 s[{S_T4}:{S_T5}], s[{S_T4}:{S_T5}], s[{S_T0}:{S_T1}]")
A(f"s_cbranch_scc1 {lq}")
L(lqe)
A("s_waitcnt lgkmcnt(0)")
stamp(8)
if CFG["stamps"] == 1:
    A(f"s_sub_u32 s0, {CFG['timeout']}, s{S_TO}")
    A(f"v_writelane_b32 v{V_ST}, s0, 9")
for gq in range(16):
    A(f"v_writelane_b32 v{V_T}, s{S_Q+4*gq}, {2*gq}")
    A(f"v_writelane_b32 v{V_T}, s{S_Q+4*gq+1}, {2*gq+1}")
A("s_mov_b32 exec_hi, 0")
A(f"ds_write_b32 v{QA}, v{V_T} offset:{L_QL}")
A("s_mov_b32 exec_hi, -1")
A(f"s_cmp_lg_u32 s{S_NT}, 0")
A("s_cbranch_scc1 L_kok")
lds_wait(L_FLAG + 4, V_T, TT, sleep=1)
k_frags()
L("L_kok")
C("poll the q operand itself (LDS sentinel)")
l1, l1e = newlbl("Lqo"), newlbl("Lqoe")
A(f"s_mov_b32 s{S_TO}, {CFG['timeout']}")
L(l1)
for kp in range(4):
    A(f"ds_read_b128 v[{V_Q+4*kp}:{V_Q+4*kp+3}], v{V_T+3} offset:{L_QL + kp*64}")
A(f"s_sub_u32 s{S_TO}, s{S_TO}, 1")
A(f"s_cbranch_scc1 {l1e}")
A("s_waitcnt lgkmcnt(0)")
tree3("v_max3_u32", "v_max_u32", range(V_Q, V_Q + 16), TT)
A(f"v_cmp_eq_u32 vcc, -1, v{TT}")
A("s_cmp_lg_u64 vcc, 0")
A(f"s_cbranch_scc1 {l1}")
L(l1e)
A("s_waitcnt lgkmcnt(0)")
for kp in range(4):
    for tt in range(2):
        mfma(V_S + 4 * tt, V_K + (tt * 4 + kp) * 4, V_Q + 4 * kp, None if kp == 0 else V_S + 4 * tt)
stamp(2)
A(f"v_mov_b32 v{EX}, {f2u(SCALE):#x}")
A(f"v_mov_b32 v{EX+1}, {f2u(SCALE):#x}")
A(f"s_mov_b32 s{S_T1}, {f2u(LOG2E):#x}")
nop(5)
pack(PK, V_S, 4)
unpack(S2, PK, 4)
for j in range(0, 8, 2):
    A(f"v_pk_mul_f32 v[{S2+j}:{S2+j+1}], v[{S2+j}:{S2+j+1}], v[{EX}:{EX+1}]")
pack(PK, S2, 4)
unpack(S2, PK, 4)
A(f"v_max3_f32 v{MM}, v{S2}, v{S2+1}, v{S2+2}")
A(f"v_max3_f32 v{MM}, v{MM}, v{S2+3}, v{S2+4}")
A(f"v_max3_f32 v{MM}, v{MM}, v{S2+5}, v{S2+6}")
A(f"v_max_f32 v{MM}, v{MM}, v{S2+7}")
swap_steps("v_max_f32", [MM], [TT])
A("s_mov_b64 exec, 15")
A(f"ds_write_b32 v{TT+2}, v{MM} offset:{L_MX}")
A("s_mov_b64 exec, -1")
for j in range(8):
    A(f"v_mul_f32 v{S2+j}, s{S_T1}, v{S2+j}")
l2, l2e = newlbl("Lmx"), newlbl("Lmxe")
A(f"s_mov_b32 s{S_TO}, {CFG['timeout']}")
L(l2)
A(f"ds_read_b128 v[{EX}:{EX+3}], v{TT+3} offset:{L_MX}")
A(f"ds_read_b128 v[{EX+4}:{EX+7}], v{TT+3} offset:{L_MX + 16}")
A(f"s_sub_u32 s{S_TO}, s{S_TO}, 1")
A(f"s_cbranch_scc1 {l2e}")
A("s_waitcnt lgkmcnt(0)")
tree3("v_max3_u32", "v_max_u32", range(EX, EX + 8), TT)
tree3("v_max3_f32", "v_max_f32", range(EX, EX + 8), MM)
A(f"v_cmp_eq_u32 vcc, -1, v{TT}")
A("s_cmp_lg_u64 vcc, 0")
A(f"s_cbranch_scc1 {l2}")
L(l2e)
A("s_waitcnt lgkmcnt(0)")
A(f"v_mul_f32 v{MM}, s{S_T1}, v{MM}")
for j in range(8):
    A(f"v_sub_f32 v{EX+j}, v{S2+j}, v{MM}")
for j in range(8):
    A(f"v_exp_f32 v{EX+j}, v{EX+j}")
A(f"s_lshl_b32 s{S_T0}, s{S_WAVE}, 10")
A(f"v_add_u32 v{TT}, s{S_T0}, v2")
pack(PK, EX, 4)
A(f"ds_write_b128 v{TT}, v[{PK}:{PK+3}] offset:{L_SC}")
A(f"v_add_f32 v{MM+1}, v{EX}, v{EX+1}")
A(f"v_add_f32 v{TT}, v{EX+2}, v{EX+3}")
A(f"v_add_f32 v{TT+1}, v{EX+4}, v{EX+5}")
A(f"v_add_f32 v{EX}, v{EX+6}, v{EX+7}")
A(f"v_add_f32 v{MM+1}, v{MM+1}, v{TT}")
A(f"v_add_f32 v{EX}, v{EX}, v{TT+1}")
A(f"v_add_f32 v{MM+1}, v{MM+1}, v{EX}")
swap_steps("v_add_f32", [MM + 1], [TT])
A("s_mov_b64 exec, 15")
A(f"ds_write_b32 v{TT+2}, v{MM+1} offset:{L_LS}")
A("s_mov_b64 exec, -1")
stamp(3)
VA0, VA1, VB0, VB1 = V_T + 32, V_T + 33, V_T + 34, V_T + 35


def vw2_addr():
    A(f"v_lshlrev_b32 v{VA0}, 10, v4")
    A(f"v_lshl_add_u32 v{VA0}, v6, 3, v{VA0}")
    A(f"v_and_b32 v{VA1}, 1, v4")
    A(f"v_lshl_add_u32 v{VA0}, v{VA1}, 7, v{VA0}")
    A(f"v_xor_b32 v{VA1}, 128, v{VA0}")


vw2_addr()
A(f"s_lshl_b32 s{S_T0}, s{S_WAVE}, 8")
A(f"s_add_u32 s{S_T0}, s{S_T0}, {L_V}")
A(f"v_add_u32 v{VB0}, s{S_T0}, v{VA0}")
A(f"v_add_u32 v{VB1}, s{S_T0}, v{VA1}")
A(f"s_cmp_gt_u32 s{S_WAVE}, 4")
A("s_cbranch_scc1 L_exit")
A(f"v_mov_b32 v{V_T+1}, {L_FLAG + 8}")
A(f"s_mov_b32 s{S_NT}, 0")


def wait_progress(n):
    l, ok = newlbl("Lvp"), newlbl("Lvo")
    A(f"s_cmp_ge_u32 s{S_NT}, {n}")
    A(f"s_cbranch_scc1 {ok}")
    A(f"s_mov_b32 s{S_TO}, {CFG['timeout']}")
    L(l)
    A(f"ds_read_b32 v{V_T}, v{V_T+1}")
    A(f"s_sub_u32 s{S_TO}, s{S_TO}, 1")
    A(f"s_cbranch_scc1 {ok}")
    A("s_waitcnt lgkmcnt(0)")
    A(f"v_readfirstlane_b32 s{S_NT}, v{V_T}")
    A(f"s_cmp_lt_u32 s{S_NT}, {n}")
    A(f"s_cbranch_scc1 {l}")
    L(ok)


A(f"s_cmp_lt_u32 s{S_WAVE}, 4")
A("s_cbranch_scc1 L_pv")
C("---- wave 4: publish stats {m,l,T0,T1} per head (lanes 0..3) once all l are in and the PN clears completed")
wait_progress(1)
A(f"v_mov_b32 v{MM+2}, s{S_TG}")
A(f"v_mov_b32 v{MM+3}, s{S_TG+1}")
l4, l4e = newlbl("Lls"), newlbl("Llse")
A(f"s_mov_b32 s{S_TO}, {CFG['timeout']}")
L(l4)
A(f"ds_read_b128 v[{EX}:{EX+3}], v{TT+3} offset:{L_LS}")
A(f"ds_read_b128 v[{EX+4}:{EX+7}], v{TT+3} offset:{L_LS + 16}")
A(f"s_sub_u32 s{S_TO}, s{S_TO}, 1")
A(f"s_cbranch_scc1 {l4e}")
A("s_waitcnt lgkmcnt(0)")
tree3("v_max3_u32", "v_max_u32", range(EX, EX + 8), TT)
A(f"v_cmp_eq_u32 vcc, -1, v{TT}")
A("s_cmp_lg_u64 vcc, 0")
A(f"s_cbranch_scc1 {l4}")
L(l4e)
A("s_waitcnt lgkmcnt(0)")
for j in range(4):
    A(f"v_add_f32 v{EX+j}, v{EX+j}, v{EX+4+j}")
A(f"v_add_f32 v{EX}, v{EX}, v{EX+1}")
A(f"v_add_f32 v{EX+2}, v{EX+2}, v{EX+3}")
A(f"v_add_f32 v{MM+1}, v{EX}, v{EX+2}")
A("s_mov_b64 exec, 15")
if CFG["dual"]:
    A(f"buffer_store_dwordx4 v[{MM}:{MM+3}], v2, {WS}, s{S_PNA} offen")
A(f"buffer_store_dwordx4 v[{MM}:{MM+3}], v2, {WS}, s{S_PNB} offen sc1")
A("s_branch L_exit")
L("L_pv")
C("---- PV (waves 0..3, 32 dims each): tiles are consumed as they land")
PB = V_G
VF = V_K
l5, l5e = newlbl("Lpp"), newlbl("Lppe")
A(f"s_mov_b32 s{S_TO}, {CFG['timeout']}")
L(l5)
for t in range(8):
    A(f"ds_read_b128 v[{PB+4*t}:{PB+4*t+3}], v2 offset:{L_SC + t*1024}")
A(f"ds_read_b32 v{V_T}, v{V_T+1}")
A(f"s_sub_u32 s{S_TO}, s{S_TO}, 1")
A(f"s_cbranch_scc1 {l5e}")
A("s_waitcnt lgkmcnt(0)")
tree3("v_max3_u32", "v_max_u32", [PB + 4 * t + j for t in range(8) for j in (0, 3)], TT)
A(f"v_readfirstlane_b32 s{S_NT}, v{V_T}")
A(f"v_cmp_eq_u32 vcc, -1, v{TT}")
A("s_cmp_lg_u64 vcc, 0")
A(f"s_cbranch_scc1 {l5}")
L(l5e)
A("s_waitcnt lgkmcnt(0)")
stamp(5)


def v_reads(t):
    for c2 in range(2):
        for h in range(2):
            r = VF + ((t % 6) * 2 + c2) * 4 + 2 * h
            A(f"ds_read_b64_tr_b16 v[{r}:{r+1}], v{VB0 + c2} offset:{t*8192 + h*4096}")


def v_mfma(t):
    for c2 in range(2):
        mfma(V_S + 4 * c2, VF + ((t % 6) * 2 + c2) * 4, PB + 4 * t, None if t == 0 else V_S + 4 * c2)


A(f"s_cmp_ge_u32 s{S_NT}, 8")
A("s_cbranch_scc1 L_pvf")
for t in range(8):
    wait_progress(t + 1)
    v_reads(t)
    if t >= 1:
        A("s_waitcnt lgkmcnt(4)")
        v_mfma(t - 1)
A("s_waitcnt lgkmcnt(0)")
v_mfma(7)
A("s_branch L_pve")
L("L_pvf")
for t in range(3):
    v_reads(t)
for t in range(8):
    A(f"s_waitcnt lgkmcnt({min(2, 7 - t)*4})")
    v_mfma(t)
    if t + 3 < 8:
        v_reads(t + 3)
L("L_pve")
nop(7)
pack(PK, V_S, 4)
set_exec(MASK_N4)
if CFG["dual"]:
    A(f"buffer_store_dwordx4 v[{PK}:{PK+3}], v{V_PNA}, {WS}, s{S_PNA} offen")
A(f"buffer_store_dwordx4 v[{PK}:{PK+3}], v{V_PNA}, {WS}, s{S_PNB} offen sc1")
A("s_mov_b64 exec, -1")
stamp(6)
A(f"s_cmp_lg_u32 s{S_ROLE}, 0")
A("s_cbranch_scc1 L_exit")

C("==== G: final reduce of 16 outputs (16gi..16gi+15)")
A(f"s_lshl_b32 s{S_T2}, s{S_SUB}, 6")
A(f"s_add_u32 s{S_T3}, s{S_T2}, {WS_AP}")
A(f"s_add_u32 s{S_T2}, s{S_T2}, {WS_Y}")
A(f"v_lshrrev_b32 v{TT+2}, 2, v0")
A(f"v_and_b32 v{TT+3}, 3, v0")
A(f"v_lshlrev_b32 v{TT}, 12, v{TT+2}")
A(f"v_lshl_add_u32 v{TT}, v{TT+3}, 4, v{TT}")
A(f"s_movk_i32 s{S_T0}, {YP}")
A(f"v_mul_lo_u32 v{TT+2}, v{TT+2}, s{S_T0}")
A(f"v_lshl_add_u32 v{TT+2}, v{TT+3}, 4, v{TT+2}")
for i in range(1, 4):
    A(f"s_add_u32 s{40+i}, s{S_T2}, {16*i*YP}")
GA = V_G
if CFG["dry2"]:
    C("walk the rest of this path once with EXEC=0 (instruction cache warm-up)")
    A("s_mov_b64 exec, 0")
L("L_kret")
C("DRY{")
A("s_mov_b32 exec_hi, 0")


def g1_loads():
    A(f"buffer_load_dwordx4 v[{GA}:{GA+3}], v{TT}, {WS}, s{S_T3} offen sc1")


tpoll(g1_loads, range(GA, GA + 4), V_T, V_TG, CFG['g1sl'])
A("s_mov_b64 exec, -1")
stamp(7)
A(f"s_cmp_lg_u32 s{S_SUB}, 0")
A("s_cbranch_scc1 L_gnz")
C("every workgroup has consumed the launch tag by now: leave d_debug clean")
A(f"v_mov_b32 v{V_T}, 0")
A(f"v_mov_b32 v{V_T+1}, 0")
A(f"v_lshlrev_b32 v{V_T+2}, 6, v0")
A("s_mov_b64 exec, 15")
A(f"buffer_store_dwordx2 v[{V_T}:{V_T+1}], v{V_T+2}, {SA}, 0 offen sc1")
A("s_mov_b64 exec, -1")
L("L_gnz")
nop(1)
dpp_steps("v_add_f32", [GA + j for j in range(4)], ROW_HI)
swap_steps("v_add_f32", [GA + j for j in range(4)], [GA + 4 + j for j in range(4)], which=(16,))
GH = V_G + 8
GP = V_G + 16
GB = V_G + 20
pack(GP, GA, 2)
unpack(GA, GP, 2)
unpack(GH, V_SM, 2)
for j in range(4):
    A(f"v_add_f32 v{GH+j}, v{GH+j}, v{GA+j}")
pack(GP, GH, 2)
unpack(GH, GP, 2)
unpack(GB, V_SM + 2, 2)
GY = V_K


def g2_loads():
    for j in range(4):
        A(f"v_mov_b32 v{GY+12+j}, v{V_TG+j}")
    A(f"buffer_load_dwordx4 v[{GY}:{GY+3}], v{TT+2}, {WS}, s{S_T2} offen sc1")
    A(f"buffer_load_dwordx4 v[{GY+4}:{GY+7}], v{TT+2}, {WS}, s41 offen sc1")
    A(f"buffer_load_dwordx4 v[{GY+8}:{GY+11}], v{TT+2}, {WS}, s42 offen sc1")
    A("s_mov_b32 exec_hi, 0")
    A(f"buffer_load_dwordx4 v[{GY+12}:{GY+15}], v{TT+2}, {WS}, s43 offen sc1")
    A("s_mov_b32 exec_hi, -1")


tpoll(g2_loads, range(GY, GY + 16), V_T, V_TG, CFG['g2sl'])
stamp(10)
for j in range(4):
    A(f"v_add_f32 v{GY+j}, v{GY+j}, v{GY+4+j}")
    A(f"v_add_f32 v{GY+8+j}, v{GY+8+j}, v{GY+12+j}")
for j in range(4):
    A(f"v_add_f32 v{GY+j}, v{GY+j}, v{GY+8+j}")
dpp_steps("v_add_f32", [GY + j for j in range(4)], ROW_HI)
swap_steps("v_add_f32", [GY + j for j in range(4)], [GY + 4 + j for j in range(4)])
pack(GP, GY, 2)
unpack(GY, GP, 2)
for j in range(4):
    A(f"v_add_f32 v{GY+j}, v{GY+j}, v{GB+j}")
pack(GP, GY, 2)
unpack(GY, GP, 2)
for j in range(4):
    A(f"v_add_f32 v{GY+j}, v{GY+j}, v{GH+j}")
pack(GP, GY, 2)
if CFG.get("padto", 0):
    C("ND{")
    A(f"s_mov_b32 s{S_T5}, {CFG['padto']}")
    if CFG.get("probe", -1) >= 0:
        A(f"s_sub_u32 s0, s7, s{S_TG}")
        A("s_max_i32 s0, s0, 0")
        A("s_mul_i32 s0, s0, 3")
        A(f"s_add_u32 s{S_T5}, s{S_T5}, s0")
    L("L_pad")
    A("s_memrealtime s[0:1]")
    A("s_waitcnt lgkmcnt(0)")
    A(f"s_sub_u32 s0, s0, s{S_TG}")
    A(f"s_cmp_lt_u32 s0, s{S_T5}")
    A("s_cbranch_scc1 L_pad")
    C("}ND")
A(f"s_lshl_b32 s{S_T4}, s{S_SUB}, 5")
A("v_lshlrev_b32 v3, 3, v0")
A("s_mov_b64 exec, 15")
A(f"buffer_store_dwordx2 v[{GP}:{GP+1}], v3, {SC_}, s{S_T4} offen")
stamp(11)
A("s_branch L_exit")

C("}DRY")
begin("ldr")
L("L_ldr")
att_common()
C("kv byte offset: ((b*8+x)*8192 + 6144 + 256 s)*256")
A(f"s_lshl_b32 s{S_T0}, s{S_B}, 3")
A(f"s_add_u32 s{S_T0}, s{S_T0}, s{S_X}")
A(f"s_lshl_b32 s{S_T0}, s{S_T0}, 5")
A(f"s_and_b32 s{S_T1}, s{S_A}, 7")
A(f"s_add_u32 s{S_T0}, s{S_T0}, s{S_T1}")
A(f"s_add_u32 s{S_T0}, s{S_T0}, 24")
A(f"s_lshl_b32 s{S_T3}, s{S_T0}, 16")
A(f"s_mov_b32 s{S_T2}, 0")
A(f"s_cmp_eq_u32 s{S_WAVE}, 9")
A("s_cbranch_scc1 L_ldv")
C("K DMA lane offsets: r4=l>>4, p=l&15: r4*256 + ((p ^ (4i+r4))*16)")
for i in range(4):
    A(f"v_add_u32 v{12+i}, {4*i}, v4")
    A(f"v_xor_b32 v{12+i}, v{12+i}, v6")
    A(f"v_lshlrev_b32 v{12+i}, 4, v{12+i}")
    A(f"v_lshl_add_u32 v{12+i}, v4, 8, v{12+i}")
A(f"s_mov_b32 s{S_T1}, {L_K}")
post_entry()
srd(SRD_A, P_K, 0x2000000)
if CFG.get("ksleep", 0):
    A(f"s_sleep {CFG['ksleep']}")
if CFG["ktouch"]:
    C("resolve the K/V translations first; the q-projection loads get a head start meanwhile")
    A(f"s_load_dword s64, s[{P_K}:{P_K+1}], s{S_T3}")
    A(f"s_load_dword s65, s[{P_V}:{P_V+1}], s{S_T3}")
    A("s_waitcnt lgkmcnt(0)")
L("L_ldk1")
A(f"s_mov_b32 m0, s{S_T1}")
A(f"s_add_u32 s{S_T1}, s{S_T1}, 4096")
for i in range(4):
    A(f"buffer_load_dwordx4 v{12+i}, {SA}, s{S_T3} offen offset:{i*1024}{NT} lds")
A(f"s_add_u32 s{S_T3}, s{S_T3}, 4096")
A(f"s_add_u32 s{S_T2}, s{S_T2}, 1")
A(f"s_cmp_lt_u32 s{S_T2}, 16")
A("s_cbranch_scc1 L_ldk1")
stamp(1)
A("s_barrier")
A("s_waitcnt vmcnt(0)")
stamp(4)
lds_set(L_FLAG + 4, 16, 17)
A("s_waitcnt lgkmcnt(0)")
A("s_branch L_exit")
L("L_ldv")
zero_flags()
for j in range(4):
    A(f"v_mov_b32 v{16+j}, -1")
A(f"ds_write_b128 v2, v[16:19] offset:{L_QL}")
for t in range(8):
    A(f"ds_write_b128 v2, v[16:19] offset:{L_SC + t*1024}")
A("s_mov_b64 exec, 0xffff")
A(f"ds_write_b128 v2, v[16:19] offset:{L_MX}")
A("s_mov_b64 exec, -1")
A("v_lshl_add_u32 v12, v9, 8, v11")
A("v_xor_b32 v13, 32, v12")
post_entry()
srd(SRD_B, P_V, 0x2000000)
A("s_barrier")
A(f"buffer_store_dwordx4 v[16:19], v2, {WS}, s{S_PNA} offen sc1")
A(f"buffer_store_dwordx4 v[16:19], v2, {WS}, s{S_PNB} offen sc1")
A(f"s_mov_b32 s{S_T1}, {L_V}")
L("L_ldv1")
A(f"s_mov_b32 m0, s{S_T1}")
A(f"s_add_u32 s{S_T1}, s{S_T1}, 4096")
for be in range(4):
    A(f"buffer_load_dwordx4 v{12 + (be & 1)}, {SB}, s{S_T3} offen offset:{be*1024}{NT} lds")
A(f"s_add_u32 s{S_T3}, s{S_T3}, 4096")
A(f"s_add_u32 s{S_T2}, s{S_T2}, 1")
A(f"s_cmp_lt_u32 s{S_T2}, 16")
A("s_cbranch_scc1 L_ldv1")
stamp(1)
A(f"v_mov_b32 v20, {L_FLAG + 8}")
for t in range(8):
    A(f"v_mov_b32 v21, {t+1}")
    A(f"s_waitcnt vmcnt({56 - 8*t})")
    A("ds_write_b32 v20, v21")
stamp(4)
A("s_waitcnt lgkmcnt(0)")
A("s_branch L_exit")

begin("gv")
L("L_dry2")
A("s_mov_b64 exec, -1")
L("L_GV")
gv_common()
post_entry()
A(f"s_cmp_ge_u32 s{S_WAVE}, 8")
A("s_cbranch_scc1 L_gld")
A(f"s_cmp_lg_u32 s{S_WAVE}, 7")
A("s_cbranch_scc1 L_gv2")
A("s_cmp_lg_u32 s2, 0")
A("s_cbranch_scc1 L_gv0")
C("workgroup 0 publishes the launch tag (4 replicas)")
srd(SRD_C, P_DBG, 256)
A("s_memrealtime s[24:25]")
A("s_waitcnt lgkmcnt(0)")
A("s_or_b32 s25, s25, 0x80000000")
A("v_mov_b32 v14, s24")
A("v_mov_b32 v15, s25")
A("v_lshlrev_b32 v12, 6, v0")
A("s_mov_b64 exec, 15")
A(f"buffer_store_dwordx2 v[14:15], v12, {SC_}, 0 offen sc1")
A("s_mov_b64 exec, -1")
L("L_gv0")
tag_poll(CFG["tsleep0"], S_A, barrier=2)
stamp(5)
A(f"s_mov_b32 s{S_TO}, {CFG['timeout']}")
L("L_echo")
A("ds_write_b64 v102, v[100:101]")
A("ds_read_b32 v103, v102 offset:8")
A(f"s_sub_u32 s{S_TO}, s{S_TO}, 1")
A("s_cbranch_scc1 L_gv2")
A("s_waitcnt lgkmcnt(0)")
A(f"v_readfirstlane_b32 s{S_T0}, v103")
A("s_sleep 2")
A(f"s_cmp_lg_u32 s{S_T0}, s{S_TG}")
A("s_cbranch_scc1 L_echo")
L("L_gv2")
A("s_branch L_qm1")

C("---- GEMV loaders (waves 8,9)")
L("L_gld")
A(f"s_and_b32 s{S_T5}, s{S_WAVE}, 1")
C("WX style lane offsets: ct=l>>5, p=(l>>1)&15 (row), half")
A("v_bfe_u32 v3, v0, 1, 4")
A("v_lshrrev_b32 v12, 5, v0")
A("v_lshlrev_b32 v12, 5, v12")
A("v_lshl_add_u32 v12, v10, 4, v12")
A(f"s_cmp_eq_u32 s{S_ROLE}, 0")
A("s_cbranch_scc1 L_exit")
A(f"s_cmp_eq_u32 s{S_ROLE}, 2")
A("s_cbranch_scc1 L_gld2")
C("wo tile: 512 rows x 128 B; loader i: rows 256i.. (32 instrs of 8 rows)")
srd(SRD_C, P_WO, 0x400000)
A("v_bfe_u32 v3, v0, 1, 3")
A("v_lshlrev_b32 v3, 10, v3")
A("v_lshl_add_u32 v3, v4, 5, v3")
A("v_lshl_add_u32 v3, v10, 4, v3")
A(f"s_lshl_b32 s{S_T3}, s{S_X}, 19")
A(f"s_lshl_b32 s{S_T1}, s{S_T5}, 18")
A(f"s_add_u32 s{S_T3}, s{S_T3}, s{S_T1}")
A(f"s_lshl_b32 s{S_T1}, s{S_SUB}, 7")
A(f"s_add_u32 s{S_T3}, s{S_T3}, s{S_T1}")
A(f"s_lshl_b32 s{S_T4}, s{S_T5}, 15")
A(f"s_add_u32 s{S_T4}, s{S_T4}, {L_WO}")
if CFG["touch2"]:
    for i in range(4):
        A(f"s_add_u32 s{S_T1}, s{S_T3}, {i*65536}")
        A(f"s_load_dword s{64+i}, s[{P_WO}:{P_WO+1}], s{S_T1}")
A("s_barrier")
A(f"s_mov_b32 s{S_T2}, 0")
L("L_gld1")
for i in range(4):
    A(f"s_mov_b32 m0, s{S_T4}")
    A(f"s_add_u32 s{S_T4}, s{S_T4}, 1024")
    A(f"buffer_load_dwordx4 v3, {SC_}, s{S_T3} offen{NT} lds")
    A(f"s_add_u32 s{S_T3}, s{S_T3}, 8192")
A(f"s_add_u32 s{S_T2}, s{S_T2}, 1")
A(f"s_cmp_lt_u32 s{S_T2}, 8")
A("s_cbranch_scc1 L_gld1")
A("s_branch L_gld5")
L("L_gld2")
A(f"s_cmp_eq_u32 s{S_T5}, 1")
A("s_cbranch_scc1 L_gld3")
srd(SRD_C, P_W1, 512 * 3584)
A(f"s_lshl_b32 s{S_T3}, s{S_SUB}, 6")
A(f"s_movk_i32 s{S_T1}, 3584")
A(f"v_mul_lo_u32 v13, v3, s{S_T1}")
A("v_add_u32 v13, v13, v12")
if CFG["touch2"]:
    for i in range(14):
        A(f"s_add_u32 s{S_T1}, s{S_T3}, {i*131072}")
        A(f"s_load_dword s{64+i}, s[{P_W1}:{P_W1+1}], s{S_T1}")
A("s_barrier")
A(f"s_mov_b32 s{S_T1}, {L_WX}")
A(f"s_mov_b32 s{S_T2}, 0")
L("L_gld4")
for i in range(4):
    A(f"s_mov_b32 m0, s{S_T1}")
    A(f"s_add_u32 s{S_T1}, s{S_T1}, 1024")
    A(f"buffer_load_dwordx4 v13, {SC_}, s{S_T3} offen{NT} lds")
    A(f"s_add_u32 s{S_T3}, s{S_T3}, {16*3584}")
if CFG["mwin"]:
    A(f"s_waitcnt vmcnt({CFG['mwin']})")
A(f"s_add_u32 s{S_T2}, s{S_T2}, 1")
A(f"s_cmp_lt_u32 s{S_T2}, 8")
A("s_cbranch_scc1 L_gld4")
A("s_branch L_gld5")
L("L_gld3")
srd(SRD_C, P_W2, 1792 * 1024)
A("v_lshl_add_u32 v14, v9, 10, v11")
A("v_xor_b32 v15, 32, v14")
A(f"s_lshl_b32 s{S_T3}, s{S_SUB}, 15")
if CFG["touch2"]:
    A(f"s_load_dword s64, s[{P_W2}:{P_W2+1}], s{S_T3}")
    A(f"s_load_dword s65, s[{P_B1}:{P_B1+1}], 0")
A("s_barrier")
A(f"s_mov_b32 s{S_T1}, {L_W2}")
A(f"s_mov_b32 s{S_T2}, 0")
L("L_gld6")
for be in range(8):
    A(f"s_mov_b32 m0, s{S_T1}")
    A(f"s_add_u32 s{S_T1}, s{S_T1}, 1024")
    A(f"s_add_u32 s{S_T4}, s{S_T3}, {be*4096}")
    A(f"buffer_load_dwordx4 v{14 + (be & 1)}, {SC_}, s{S_T4} offen{NT} lds")
    if CFG["mwin"] and be % 4 == 3:
        A(f"s_waitcnt vmcnt({CFG['mwin']})")
A(f"s_add_u32 s{S_T3}, s{S_T3}, 256")
A(f"s_add_u32 s{S_T2}, s{S_T2}, 1")
A(f"s_cmp_lt_u32 s{S_T2}, 4")
A("s_cbranch_scc1 L_gld6")
L("L_gld5")
A("s_waitcnt vmcnt(0)")
stamp(4)
A("s_barrier")
A("s_branch L_exit")

begin("qc")
C("---- q projection: wave 6 loads and computes everything")
A("v_mov_b32 v16, 0")
A("v_mov_b32 v17, 0")
A(f"ds_write_b64 v16, v[16:17] offset:{L_TAG}")
post_entry()
srd(SRD_A, P_X, 2048)
A(f"buffer_load_dwordx4 v[16:19], v2, {SA}, 0 offen")
A(f"buffer_load_dwordx4 v[20:23], v2, {SA}, 0 offen offset:1024")
if CFG["touch"]:
    A(f"s_lshl_b32 s{S_T1}, s{S_X}, 4")
    A(f"s_add_u32 s{S_T1}, s{S_T1}, s{S_A}")
    A(f"s_lshl_b32 s{S_T1}, s{S_T1}, 9")
    A(f"s_add_u32 s{S_T1}, s{S_T1}, {WS_XQA}")
    A("s_mov_b32 exec_hi, 0")
    A(f"buffer_load_dwordx4 v[72:75], v2, {WS}, s{S_T1} offen sc1")
    A("s_mov_b32 exec_hi, -1")
srd(SRD_B, P_WQ, 0x400000)
A("v_bfe_u32 v13, v0, 1, 3")
A("v_lshlrev_b32 v13, 13, v13")
A("v_lshl_add_u32 v13, v4, 5, v13")
A("v_lshl_add_u32 v13, v10, 4, v13")
A(f"s_and_b32 s{S_B}, s{S_A}, 1")
A(f"s_lshl_b32 s{S_T0}, s{S_B}, 21")
A(f"s_lshl_b32 s{S_T1}, s{S_X}, 10")
A(f"s_add_u32 s{S_T0}, s{S_T0}, s{S_T1}")
A(f"s_lshr_b32 s{S_T1}, s{S_A}, 1")
A(f"s_lshl_b32 s{S_T1}, s{S_T1}, 7")
A(f"s_add_u32 s{S_T0}, s{S_T0}, s{S_T1}")
A(f"s_mov_b32 s{S_T1}, {L_WQ}")
L("L_qc1")
for i in range(4):
    A(f"s_mov_b32 m0, s{S_T1}")
    A(f"s_add_u32 s{S_T1}, s{S_T1}, 1024")
    A(f"buffer_load_dwordx4 v13, {SB}, s{S_T0} offen{NT} lds")
    A(f"s_add_u32 s{S_T0}, s{S_T0}, 0x10000")
A(f"s_cmp_lt_u32 s{S_T1}, {L_WQ + 32768}")
A("s_cbranch_scc1 L_qc1")
stamp(10)
L("L_dry")
gv_common()
A("v_lshrrev_b32 v12, 2, v0")
A("v_lshlrev_b32 v12, 6, v12")
A("v_lshl_add_u32 v12, v10, 5, v12")
A("v_bfe_u32 v13, v0, 1, 1")
A("v_lshl_add_u32 v12, v13, 3, v12")
A("v_lshlrev_b32 v13, 10, v10")
A("v_lshl_add_u32 v13, v4, 4, v13")
A(f"s_lshl_b32 s{S_T1}, s{S_B}, 9")
A(f"v_add_u32 v13, s{S_T1}, v13")
A("v_lshrrev_b32 v14, 5, v0")
A("v_lshlrev_b32 v14, 10, v14")
A("v_and_b32 v15, 31, v0")
A("v_lshl_add_u32 v14, v15, 3, v14")
C("exchange lane map: n=l&15<8: b=n&1, half2=(n>>1)&1, cs=(n>>2)&1 ; XQ off = cs*256 + b*128 + g*32 + half2*16")
A("v_bfe_u32 v70, v0, 2, 1")
A("v_lshlrev_b32 v69, 6, v70")
A("v_lshl_add_u32 v69, v4, 4, v69")
A("v_lshl_add_u32 v69, v10, 11, v69")
A("v_lshlrev_b32 v70, 8, v70")
A("v_lshl_add_u32 v70, v10, 7, v70")
A("v_lshl_add_u32 v70, v4, 5, v70")
A("v_bfe_u32 v15, v0, 1, 1")
A("v_lshl_add_u32 v70, v15, 4, v70")
A(f"s_lshl_b32 s{S_T5}, s{S_X}, 12")
A(f"s_lshl_b32 s{S_T1}, s{S_A}, 7")
A(f"s_add_u32 s{S_T5}, s{S_T5}, s{S_T1}")
A(f"s_lshl_b32 s{S_T1}, s{S_X}, 4")
A(f"s_add_u32 s{S_T1}, s{S_T1}, s{S_A}")
A(f"s_lshl_b32 s62, s{S_T1}, 9")
A(f"s_xor_b32 s63, s62, 512")
A(f"s_add_u32 s64, s62, {WS_XQB}")
A(f"s_add_u32 s62, s62, {WS_XQA}")
A(f"s_add_u32 s65, s63, {WS_XQB}")
A(f"s_add_u32 s63, s63, {WS_XQA}")
A("s_mov_b32 s66, 0xcccccccc")
A("s_mov_b32 s67, 0xcccccccc")
A("s_mov_b32 s68, 0xf0f0f0f0")
A("s_mov_b32 s69, 0xf0f0f0f0")
stamp(11)
A(f"s_waitcnt vmcnt({32 + CFG['touch']})")
stamp(12)
unpack(24, 16, 4)
unpack(32, 20, 4)
layernorm([24, 32], 2, 44, [16, 20])
A(f"ds_write_b64 v12, v[16:17] offset:{L_XN}")
A(f"ds_write_b64 v12, v[18:19] offset:{L_XN + 16}")
A(f"ds_write_b64 v12, v[20:21] offset:{L_XN + 1024}")
A(f"ds_write_b64 v12, v[22:23] offset:{L_XN + 1024 + 16}")
A("s_waitcnt lgkmcnt(0)")
XA = 96
for kp in range(8):
    A(f"ds_read_b128 v[{XA+4*kp}:{XA+4*kp+3}], v13 offset:{L_XN + kp*64}")
stamp(1)
A("v_mov_b32 v16, 0")
WF = 24
QD = 144
for kp in range(8):
    if kp == 7:
        C("launch tag from wave 7 (it rewrites the slot until echoed)")
        A("s_cbranch_execz L_dry1")
        lds_wait(L_TAG + 4, 17, 18)
        L("L_dry1")
        A(f"ds_read_b64 v[58:59], v16 offset:{L_TAG}")
        A(f"ds_read_b64 v[62:63], v16 offset:{L_TAG}")
        A("s_waitcnt lgkmcnt(0)")
        A(f"ds_write_b32 v16, v58 offset:{L_TAG + 8}")
    A(f"s_waitcnt vmcnt({28 - 4*kp})")
    if kp == 7:
        stamp(2)
        pass
    for ct in range(4):
        for h in range(2):
            r = WF + ((kp & 1) * 4 + ct) * 4 + 2 * h
            A(f"ds_read_b64_tr_b16 v[{r}:{r+1}], v14 offset:{L_WQ + kp*4096 + h*2048 + ct*256}")
    for ct in range(4):
        A(f"s_waitcnt lgkmcnt({6 - 2*ct})")
        mfma(QD + 4 * ct, WF + ((kp & 1) * 4 + ct) * 4, XA + 4 * kp, None if kp == 0 else QD + 4 * ct)
C("select: lo half cts (0,1) -> v[24:25], hi half cts (2,3) -> v[26:27]")
nop(5)
for hf in range(2):
    a, b = QD + 8 * hf, QD + 8 * hf + 4
    for j in range(2):
        A(f"v_cndmask_b32 v{28+j}, v{a+j}, v{a+2+j}, s[66:67]")
        A(f"v_cndmask_b32 v{30+j}, v{b+j}, v{b+2+j}, s[66:67]")
    for j in range(2):
        A(f"v_cndmask_b32 v{24+2*hf+j}, v{28+j}, v{30+j}, s[68:69]")
A("s_cbranch_execz L_dry2")
A(f"s_cmp_eq_u32 s{S_B}, 0")
A(f"s_cselect_b64 vcc, -1, 0")
set_exec(0x00ff00ff00ff00ff)
A("v_cndmask_b32 v56, v24, v26, vcc")
A("v_cndmask_b32 v57, v25, v27, vcc")
A("v_cndmask_b32 v60, v26, v24, vcc")
A("v_cndmask_b32 v61, v27, v25, vcc")
A(f"buffer_store_dwordx4 v[56:59], v70, {WS}, s{63 if CFG['dual'] else 65} offen{'' if CFG['dual'] else ' sc1'}")
stamp(6)
lx, lxe, lxs = newlbl("Lx"), newlbl("Lxe"), newlbl("Lxs")
A(f"s_mov_b32 s{S_TO}, {CFG['timeout']}")
L(lx)
if CFG["dual"]:
    A(f"s_cmp_lg_u32 s{S_TO}, {CFG['timeout'] - 4}")
    A(f"s_cbranch_scc1 {lxs}")
    C("partner not seen through L2 yet: also send the coherent copy")
    A(f"buffer_store_dwordx4 v[56:59], v70, {WS}, s65 offen sc1")
    L(lxs)
A(f"s_and_b32 s{S_T0}, s{S_TO}, 7")
A(f"s_cmp_eq_u32 s{S_T0}, 1")
A(f"s_cselect_b32 s{S_T1}, s64, s{62 if CFG['dual'] else 64}")
A(f"buffer_load_dwordx4 v[24:27], v70, {WS}, s{S_T1} offen sc1")
A(f"s_sub_u32 s{S_TO}, s{S_TO}, 1")
A(f"s_cbranch_scc1 {lxe}")
A("s_waitcnt vmcnt(0)")
A("v_cmp_ne_u64 vcc, v[26:27], v[58:59]")
A("s_cmp_lg_u64 vcc, 0")
A(f"s_cbranch_scc1 {lx}")
L(lxe)
A("s_waitcnt vmcnt(0)")
A("v_pk_add_f32 v[60:61], v[60:61], v[24:25]")
A("v_cvt_pk_bf16_f32 v60, v60, v61")
nop(2)
A("v_mov_b32_dpp v61, v60 quad_perm:[2,3,0,1] row_mask:0xf bank_mask:0xf")
set_exec(0x0033003300330033)
A(f"buffer_store_dwordx4 v[60:63], v69, {WS}, s{S_T5} offen sc1")
if CFG["dual"]:
    C("always leave a coherent copy for the partner")
    set_exec(0x00ff00ff00ff00ff)
    A(f"buffer_store_dwordx4 v[56:59], v70, {WS}, s65 offen sc1")
A("s_mov_b64 exec, -1")
stamp(3)
A("s_branch L_qm1")
begin("qm2")
L("L_qm1")
A(f"s_cmp_eq_u32 s{S_ROLE}, 0")
A("s_cbranch_scc1 L_exit")
A("s_barrier")
A(f"v_mov_b32 v{V_T}, 0")
A(f"ds_read_b64 v[{TT+2}:{TT+3}], v{V_T} offset:{L_TAG}")
A(f"ds_read_b128 v[{V_TG}:{V_TG+3}], v{V_T} offset:{L_TAG + 16}")
A(f"s_cmp_eq_u32 s{S_ROLE}, 2")
A("s_cbranch_scc1 L_F")

C("==== E: wo projection, 8 waves: head=w&3, col half=w>>2; wave gathers records 2w,2w+1")
V_WX = 16
A(f"s_lshl_b32 s{S_T1}, s{S_X}, 4")
A(f"s_lshl_b32 s{S_T2}, s{S_WAVE}, 1")
A(f"s_add_u32 s{S_T1}, s{S_T1}, s{S_T2}")
A(f"s_mul_i32 s{S_T1}, s{S_T1}, {RECP}")
A(f"s_add_u32 s{S_PNA}, s{S_T1}, {WS_PNA if CFG['dual'] else WS_PNB}")
A(f"s_add_u32 s{S_PNB}, s{S_T1}, {WS_PNB}")
EA0, EA1, EA2, EA3, EA4, EA5 = V_T + 36, V_T + 37, V_T + 38, V_T + 39, V_T + 2, V_T + 3
C("stats gather addr: lane<8: (l>>2)*RECP + (l&3)*16 (+1024)")
A(f"v_lshrrev_b32 v{EA0}, 2, v0")
A(f"s_movk_i32 s{S_T2}, {RECP}")
A(f"v_mul_lo_u32 v{EA0}, v{EA0}, s{S_T2}")
A(f"v_and_b32 v{EA1}, 3, v0")
A(f"v_lshl_add_u32 v{EA0}, v{EA1}, 4, v{EA0}")
A(f"s_mul_i32 s{S_T2}, s{S_WAVE}, {2*PNP}")
A(f"s_add_u32 s{S_T2}, s{S_T2}, {L_PS}")
A(f"v_add_u32 v{EA1}, s{S_T2}, v2")
A(f"s_lshl_b32 s{S_T2}, s{S_WAVE}, 7")
A(f"v_add_u32 v{EA2}, s{S_T2}, v2")
A(f"s_and_b32 s{S_T4}, s{S_WAVE}, 3")
A(f"s_lshr_b32 s{S_T5}, s{S_WAVE}, 2")
A(f"s_movk_i32 s{S_T2}, {PNP}")
A(f"v_mul_lo_u32 v{EA3}, v6, s{S_T2}")
A(f"v_lshl_add_u32 v{EA3}, v4, 4, v{EA3}")
A(f"s_lshl_b32 s{S_T2}, s{S_T4}, 6")
A(f"s_add_u32 s{S_T2}, s{S_T2}, {L_PS}")
A(f"v_add_u32 v{EA3}, s{S_T2}, v{EA3}")
A(f"v_lshlrev_b32 v{EA4}, 6, v6")
A(f"s_lshl_b32 s{S_T2}, s{S_T4}, 4")
A(f"v_add_u32 v{EA4}, s{S_T2}, v{EA4}")
A(f"s_lshl_b32 s{S_T2}, s{S_T4}, 9")
A(f"s_lshl_b32 s{S_T3}, s{S_T5}, 8")
A(f"s_add_u32 s{S_T2}, s{S_T2}, s{S_T3}")
A(f"v_lshl_add_u32 v{EA5}, v0, 2, s{S_T2}")
C("weights tr-read addr: WO + hd*16384 + ch*512 + (l>>5)*1024 + (l&31)*8")
A(f"v_lshrrev_b32 v{TT}, 5, v0")
A(f"v_lshlrev_b32 v{TT}, 10, v{TT}")
A(f"v_and_b32 v{TT+1}, 31, v0")
A(f"v_lshl_add_u32 v{TT}, v{TT+1}, 3, v{TT}")
A(f"s_lshl_b32 s{S_T2}, s{S_T4}, 14")
A(f"s_lshl_b32 s{S_T3}, s{S_T5}, 9")
A(f"s_add_u32 s{S_T2}, s{S_T2}, s{S_T3}")
A(f"s_add_u32 s{S_T2}, s{S_T2}, {L_WO}")
A(f"v_add_u32 v{TT}, s{S_T2}, v{TT}")
A(f"v_mul_u32_u24 v{V_T+32}, 80, v4")
C("final-stage addresses (wave 0, lanes<32): RED read / AP write")
A(f"v_bfe_u32 v{V_T+33}, v0, 3, 1")
A(f"v_lshlrev_b32 v{V_T+33}, 8, v{V_T+33}")
A(f"v_lshl_add_u32 v{V_T+33}, v4, 7, v{V_T+33}")
A(f"v_and_b32 v{V_T+34}, 7, v0")
A(f"v_lshl_add_u32 v{V_T+33}, v{V_T+34}, 4, v{V_T+33}")
A(f"v_lshlrev_b32 v{V_T+34}, 11, v4")
A(f"v_lshl_add_u32 v{V_T+34}, v6, 4, v{V_T+34}")
A(f"s_lshl_b32 s{S_NT}, s{S_X}, 12")
A(f"s_lshl_b32 s{S_T1}, s{S_SUB}, 8")
A(f"s_add_u32 s{S_NT}, s{S_NT}, s{S_T1}")
A(f"s_add_u32 s{S_NT}, s{S_NT}, {WS_AP}")
if CFG["dry3"]:
    A("s_waitcnt lgkmcnt(0)")
    A("s_mov_b64 exec, 0")
    A("s_branch L_edry")
L("L_eret")
A("s_waitcnt vmcnt(0) lgkmcnt(0)")
A("s_barrier")
stamp(4)
L("L_edry")
C("DRY{")
for kp in range(4):
    for c in range(2):
        for h in range(2):
            r = V_WX + (kp * 2 + c) * 4 + 2 * h
            A(f"ds_read_b64_tr_b16 v[{r}:{r+1}], v{TT} offset:{kp*4096 + h*2048 + c*256}")
SG = V_G + 8
le, lee = newlbl("Le"), newlbl("Lee")
A(f"s_mov_b32 s{S_TO}, {CFG['timeout']}")
L(le)
A(f"s_and_b32 s{S_T0}, s{S_TO}, {CFG['bmask']}")
A(f"s_cmp_eq_u32 s{S_T0}, 1")
A(f"s_cselect_b32 s{S_T1}, s{S_PNB}, s{S_PNA}")
A(f"v_mov_b32 v{SG+2}, v{TT+2}")
A(f"v_mov_b32 v{SG+3}, v{TT+3}")
A("s_mov_b64 exec, 0xff")
A(f"buffer_load_dwordx4 v[{SG}:{SG+3}], v{EA0}, {WS}, s{S_T1} offen offset:1024 sc1")
A("s_mov_b64 exec, -1")
for i in range(2):
    r = V_G + i * 4
    A(f"buffer_load_dwordx4 v[{r}:{r+3}], v2, {WS}, s{S_T1} offen offset:{i*RECP} sc1")
A(f"s_sub_u32 s{S_TO}, s{S_TO}, 1")
A(f"s_cbranch_scc1 {lee}")
A("s_waitcnt vmcnt(0)")
tree3("v_max3_u32", "v_max_u32", range(V_G, V_G + 8), TT)
A(f"v_cmp_eq_u32 vcc, -1, v{TT}")
A(f"v_cmp_ne_u64 s[{S_T2}:{S_T3}], v[{SG+2}:{SG+3}], v[{TT+2}:{TT+3}]")
A(f"s_or_b64 vcc, vcc, s[{S_T2}:{S_T3}]")
A(f"s_cbranch_scc1 {le}")
L(lee)
A("s_waitcnt vmcnt(0)")
stamp(7)
for i in range(2):
    r = V_G + i * 4
    A(f"ds_write_b128 v{EA1}, v[{r}:{r+3}] offset:{i*PNP}")
A("s_mov_b64 exec, 0xff")
A(f"ds_write_b128 v{EA2}, v[{SG}:{SG+3}] offset:{L_STS}")
A("s_mov_b64 exec, -1")
A("s_waitcnt lgkmcnt(0)")
A("s_barrier")
SM0 = V_T + 4
MG = V_T + 8
FW = V_T + 24
A(f"ds_read_b64 v[{SM0}:{SM0+1}], v{EA4} offset:{L_STS}")
for kp in range(4):
    r = V_G + kp * 4
    A(f"ds_read_b128 v[{r}:{r+3}], v{EA3} offset:{kp*256}")
EA = V_S
A("s_waitcnt lgkmcnt(4)")
A(f"v_mov_b32 v{MG}, v{SM0}")
R8 = ROW_ALL[:3]
fill = []
for c in R8:
    fill.append(["s_nop 0", f"v_max_f32_dpp v{MG}, v{MG}, v{MG} {c} row_mask:0xf bank_mask:0xf"])
fill.append([f"v_sub_f32 v{SM0}, v{SM0}, v{MG}", f"v_exp_f32 v{SM0}, v{SM0}", "s_nop 0", f"v_mul_f32 v{MG}, v{SM0}, v{SM0+1}"])
for c in R8:
    fill.append(["s_nop 0", f"v_add_f32_dpp v{MG}, v{MG}, v{MG} {c} row_mask:0xf bank_mask:0xf"])
fill.append([f"v_rcp_f32 v{MG}, v{MG}", "s_nop 0", f"v_mul_f32 v{SM0}, v{SM0}, v{MG}"])
fi = 0
for kp in range(4):
    A(f"s_waitcnt lgkmcnt({3-kp})")
    for c in range(2):
        d = EA + c * 4
        mfma(d, V_G + kp * 4, V_WX + (kp * 2 + c) * 4, None if kp == 0 else d)
        for ins in fill[fi]:
            A(ins)
        fi += 1
assert fi == len(fill)
for r in range(4):
    A(f"ds_bpermute_b32 v{FW+r}, v{V_T+32}, v{SM0} offset:{4*r}")
A("s_waitcnt lgkmcnt(0)")
for c in range(2):
    d = EA + 4 * c
    A(f"v_mul_f32 v{d}, v{d}, v{FW}")
    A(f"v_mul_f32 v{d+2}, v{d+2}, v{FW+2}")
    A(f"v_fmac_f32 v{d}, v{d+1}, v{FW+1}")
    A(f"v_fmac_f32 v{d+2}, v{d+3}, v{FW+3}")
for c in range(2):
    d = EA + 4 * c
    A(f"v_add_f32 v{d}, v{d}, v{d+2}")
nop(2)
A(f"v_permlane16_swap_b32 v{EA}, v{EA+4}")
A(f"v_add_f32 v{EA}, v{EA}, v{EA+4}")
A(f"ds_write_b32 v{EA5}, v{EA} offset:{L_RED}")
A("s_waitcnt lgkmcnt(0)")
A("s_barrier")
A(f"s_cmp_lg_u32 s{S_WAVE}, 0")
A("s_cbranch_scc1 L_exit")
A("s_mov_b32 exec_hi, 0")
for i in range(4):
    A(f"ds_read_b128 v[{V_G+4*i}:{V_G+4*i+3}], v{V_T+33} offset:{L_RED + i*512}")
A("s_waitcnt lgkmcnt(0)")
for j in (0, 2):
    A(f"v_pk_add_f32 v[{V_G+j}:{V_G+j+1}], v[{V_G+j}:{V_G+j+1}], v[{V_G+4+j}:{V_G+5+j}]")
    A(f"v_pk_add_f32 v[{V_G+8+j}:{V_G+9+j}], v[{V_G+8+j}:{V_G+9+j}], v[{V_G+12+j}:{V_G+13+j}]")
for j in (0, 2):
    A(f"v_pk_add_f32 v[{V_G+j}:{V_G+j+1}], v[{V_G+j}:{V_G+j+1}], v[{V_G+8+j}:{V_G+9+j}]")
tag(V_G, V_TG)
A(f"buffer_store_dwordx4 v[{V_G}:{V_G+3}], v{V_T+34}, {WS}, s{S_NT} offen sc1")
stamp(8)
A("s_branch L_exit")

C("}DRY")
L("L_F")
C("==== F: MLP. 8 waves gather (b=w>>2, 128-col quarter q=w&3); waves 0..3 also do w1/gelu/w2")
V_W2 = 128
FG = 48
HX = 64
C("x[b][128q + 4(l&31)..] ; b1[mi*32 + (l&31)]")
srd(SRD_A, P_X, 2048)
A("v_and_b32 v12, 31, v0")
A("v_lshlrev_b32 v13, 3, v12")
A(f"s_lshl_b32 s{S_T0}, s{S_WAVE}, 8")
A(f"buffer_load_dwordx2 v[{V_SM}:{V_SM+1}], v13, {SA}, s{S_T0} offen")
srd(SRD_C, P_B1, 3584)
A("v_lshlrev_b32 v13, 1, v12")
A(f"s_lshl_b32 s{S_T0}, s{S_SUB}, 6")
A(f"buffer_load_ushort v{V_SM+2}, v13, {SC_}, s{S_T0} offen")
C("gather addr: (l>>5)*4096 + (l&31)*16 ; soffset = AP + w*512 + i*8192")
GAD, HA, STW, STR = V_T, V_T + 1, V_T + 2, V_T + 3
A(f"v_lshrrev_b32 v{GAD}, 5, v0")
A(f"v_lshlrev_b32 v{GAD}, 12, v{GAD}")
A(f"v_lshl_add_u32 v{GAD}, v12, 4, v{GAD}")
A(f"s_lshl_b32 s{S_T0}, s{S_WAVE}, 9")
A(f"s_add_u32 s{S_T0}, s{S_T0}, {WS_AP}")
SX = 62
for i in range(4):
    A(f"s_add_u32 s{SX+i}, s{S_T0}, {i*8192}")
C("hn write addr (cols 4j.., j=l&31): w*256 + (j>>3)*64 + (j&3)*16 + ((j>>2)&1)*8")
A(f"v_lshrrev_b32 v{HA}, 3, v12")
A(f"v_lshlrev_b32 v{HA}, 6, v{HA}")
A("v_and_b32 v13, 3, v0")
A(f"v_lshl_add_u32 v{HA}, v13, 4, v{HA}")
A("v_bfe_u32 v13, v0, 2, 1")
A(f"v_lshl_add_u32 v{HA}, v13, 3, v{HA}")
A(f"s_lshl_b32 s{S_T0}, s{S_WAVE}, 8")
A(f"v_add_u32 v{HA}, s{S_T0}, v{HA}")
C("LN stats exchange: STS + w*8 ; read STS + b*32 (sentinel initialised)")
A(f"s_lshl_b32 s{S_T0}, s{S_WAVE}, 3")
A(f"v_mov_b32 v{STW}, s{S_T0}")
A(f"s_lshr_b32 s{S_T0}, s{S_WAVE}, 2")
A(f"s_lshl_b32 s{S_T0}, s{S_T0}, 5")
A(f"v_mov_b32 v{STR}, s{S_T0}")
A("v_mov_b32 v14, -1")
A("v_mov_b32 v15, -1")
A(f"ds_write_b64 v{STW}, v[14:15] offset:{L_STS}")
C("compute-wave addresses")
vw2_addr()
A(f"s_lshl_b32 s{S_T0}, s{S_WAVE}, 13")
A(f"s_add_u32 s{S_T1}, s{S_T0}, {L_W2}")
A(f"v_add_u32 v{VB0}, s{S_T1}, v{VA0}")
A(f"v_add_u32 v{VB1}, s{S_T1}, v{VA1}")
A(f"s_add_u32 s{S_T1}, s{S_T0}, {L_WX}")
A(f"v_lshl_add_u32 v{TT}, v0, 3, s{S_T1}")
A0, A1, A2, YAD = V_T + 36, V_T + 37, V_T + 38, V_T + 39
A(f"v_lshlrev_b32 v{A0}, 10, v10")
A(f"v_lshl_add_u32 v{A0}, v4, 4, v{A0}")
A(f"s_lshl_b32 s{S_T0}, s{S_WAVE}, 8")
A(f"v_add_u32 v{A0}, s{S_T0}, v{A0}")
A(f"v_lshlrev_b32 v{A1}, 7, v6")
A(f"v_lshl_add_u32 v{A1}, v4, 4, v{A1}")
A(f"v_add_u32 v{A1}, s{S_T0}, v{A1}")
C("h1 write addr: lane (b=l>>5, c=l&31): H1 + w*128 + b*64 + ((c>>2)&3)*16 + (c>>4)*8 + (c&3)*2")
A(f"v_lshrrev_b32 v{A2}, 5, v0")
A(f"v_lshlrev_b32 v{A2}, 6, v{A2}")
A("v_bfe_u32 v13, v0, 2, 2")
A(f"v_lshl_add_u32 v{A2}, v13, 4, v{A2}")
A("v_bfe_u32 v13, v0, 4, 1")
A(f"v_lshl_add_u32 v{A2}, v13, 3, v{A2}")
A("v_and_b32 v13, 3, v0")
A(f"v_lshl_add_u32 v{A2}, v13, 1, v{A2}")
A(f"s_lshl_b32 s{S_T1}, s{S_WAVE}, 7")
A(f"s_add_u32 s{S_T1}, s{S_T1}, {L_H1}")
A(f"v_add_u32 v{A2}, s{S_T1}, v{A2}")
C("B_ct operand addresses: (n>>1)==ct ? H1 + w*128 + (n&1)*64 + g*16 : ZERO")
BA = V_T + 24
A("v_lshlrev_b32 v13, 6, v10")
A("v_lshl_add_u32 v13, v4, 4, v13")
A(f"v_add_u32 v13, s{S_T1}, v13")
A(f"v_mov_b32 v14, {L_ZERO}")
A("v_bfe_u32 v15, v0, 1, 3")
for ct in range(8):
    A(f"v_cmp_eq_u32 vcc, {ct}, v15")
    A("s_nop 1")
    A(f"v_cndmask_b32 v{BA+ct}, v14, v13, vcc")
for j in range(4):
    A(f"v_mov_b32 v{16+j}, 0")
A(f"ds_write_b128 v14, v[16:19]")
C("Y store addr: (n&1)*2048 + (n>>1)*64 + g*16 ; soff = Y + mi*YP + w*512")
A(f"v_lshlrev_b32 v{YAD}, 11, v10")
A(f"v_lshl_add_u32 v{YAD}, v15, 6, v{YAD}")
A(f"v_lshl_add_u32 v{YAD}, v4, 4, v{YAD}")
S_Y = 70
A(f"s_mul_i32 s{S_Y}, s{S_SUB}, {YP}")
A(f"s_lshl_b32 s{S_T1}, s{S_WAVE}, 9")
A(f"s_add_u32 s{S_Y}, s{S_Y}, s{S_T1}")
A(f"s_add_u32 s{S_Y}, s{S_Y}, {WS_Y}")
A("v_lshlrev_b32 v3, 2, v0")
if CFG["dry3"]:
    A("s_waitcnt lgkmcnt(0)")
    A("s_mov_b64 exec, 0")
    A("s_branch L_fdry")
L("L_fret")
A("s_waitcnt vmcnt(0) lgkmcnt(0)")
unpack(HX, V_SM, 2)
A(f"v_lshlrev_b32 v{V_SM+2}, 16, v{V_SM+2}")
A("s_barrier")
stamp(4)
L("L_fdry")
C("DRY{")
A(f"s_cmp_ge_u32 s{S_WAVE}, 4")
A("s_cbranch_scc1 L_F1")
for kp in range(4):
    for ct in range(2):
        for h in range(2):
            r = V_WX + (kp * 2 + ct) * 4 + 2 * h
            A(f"ds_read_b64_tr_b16 v[{r}:{r+1}], v{TT} offset:{kp*2048 + h*1024 + ct*512}")
A("s_waitcnt lgkmcnt(0)")
for ct in range(8):
    for h in range(2):
        r = V_W2 + ct * 4 + 2 * h
        A(f"ds_read_b64_tr_b16 v[{r}:{r+1}], v{VB0 + (ct & 1)} offset:{(ct >> 1)*256 + h*4096}")
L("L_F1")


def f_loads():
    for i in range(4):
        r = FG + i * 4
        A(f"buffer_load_dwordx4 v[{r}:{r+3}], v{GAD}, {WS}, s{SX+i} offen sc1")


tpoll(f_loads, range(FG, FG + 16), TT, V_TG, CFG['fsl'])
stamp(7)
for j in (0, 2):
    A(f"v_pk_add_f32 v[{FG+j}:{FG+j+1}], v[{FG+j}:{FG+j+1}], v[{FG+4+j}:{FG+5+j}]")
    A(f"v_pk_add_f32 v[{FG+8+j}:{FG+9+j}], v[{FG+8+j}:{FG+9+j}], v[{FG+12+j}:{FG+13+j}]")
for j in (0, 2):
    A(f"v_pk_add_f32 v[{FG+j}:{FG+j+1}], v[{FG+j}:{FG+j+1}], v[{FG+8+j}:{FG+9+j}]")
swap_steps("v_add_f32", [FG + j for j in range(4)], [FG + 4 + j for j in range(4)], which=(32,))
HP = FG + 8
pack(HP, FG, 2)
unpack(FG, HP, 2)
for j in range(4):
    A(f"v_add_f32 v{HX+j}, v{HX+j}, v{FG+j}")
pack(HP, HX, 2)
unpack(HX, HP, 2)
C("local stats around pivot c = h[first]")
A("s_nop 0")
A(f"v_readfirstlane_b32 s{S_T2}, v{HX}")
A("s_nop 1")
for j in range(4):
    A(f"v_subrev_f32 v{FG+j}, s{S_T2}, v{HX+j}")
SS, SQ = FG + 10, FG + 11
A(f"v_add_f32 v{SS}, v{FG}, v{FG+1}")
A(f"v_mul_f32 v{SQ}, v{FG}, v{FG}")
A(f"v_add_f32 v{FG+4}, v{FG+2}, v{FG+3}")
A(f"v_fmac_f32 v{SQ}, v{FG+1}, v{FG+1}")
A(f"v_add_f32 v{SS}, v{SS}, v{FG+4}")
A(f"v_fmac_f32 v{SQ}, v{FG+2}, v{FG+2}")
A(f"v_fmac_f32 v{SQ}, v{FG+3}, v{FG+3}")
nop(1)
dpp_steps("v_add_f32", [SS, SQ], ROW_ALL)
swap_steps("v_add_f32", [SS, SQ], [FG + 4, FG + 5], which=(16,))
C("mean_w = c + s/128 ; M2_w = ss - s*s/128")
A(f"v_mul_f32 v{FG+4}, {f2u(1.0/128):#x}, v{SS}")
A(f"v_fma_f32 v{SQ}, -v{FG+4}, v{SS}, v{SQ}")
A(f"v_add_f32 v{SS}, s{S_T2}, v{FG+4}")
A("s_mov_b64 exec, 1")
A(f"ds_write_b64 v{STW}, v[{SS}:{SQ}] offset:{L_STS}")
A("s_mov_b64 exec, -1")
l3, l3e = newlbl("Lst"), newlbl("Lste")
A(f"s_mov_b32 s{S_TO}, {CFG['timeout']}")
L(l3)
A(f"ds_read_b128 v[{FG}:{FG+3}], v{STR} offset:{L_STS}")
A(f"ds_read_b128 v[{FG+4}:{FG+7}], v{STR} offset:{L_STS + 16}")
A(f"s_sub_u32 s{S_TO}, s{S_TO}, 1")
A(f"s_cbranch_scc1 {l3e}")
A("s_waitcnt lgkmcnt(0)")
tree3("v_max3_u32", "v_max_u32", range(FG, FG + 8), TT)
A(f"v_cmp_eq_u32 vcc, -1, v{TT}")
A("s_cmp_lg_u64 vcc, 0")
A(f"s_cbranch_scc1 {l3}")
L(l3e)
A("s_waitcnt lgkmcnt(0)")
MEAN, VAR, TM = FG + 8, FG + 9, FG + 10
A(f"v_add_f32 v{MEAN}, v{FG}, v{FG+2}")
A(f"v_add_f32 v{TM}, v{FG+4}, v{FG+6}")
A(f"v_add_f32 v{VAR}, v{FG+1}, v{FG+3}")
A(f"v_add_f32 v{MEAN}, v{MEAN}, v{TM}")
A(f"v_add_f32 v{TM}, v{FG+5}, v{FG+7}")
A(f"v_mul_f32 v{MEAN}, 0.25, v{MEAN}" if False else f"v_mul_f32 v{MEAN}, {f2u(0.25):#x}, v{MEAN}")
A(f"v_add_f32 v{VAR}, v{VAR}, v{TM}")
for j in range(4):
    A(f"v_sub_f32 v{FG+2*j}, v{FG+2*j}, v{MEAN}")
A(f"v_mul_f32 v{TM}, v{FG}, v{FG}")
for j in range(1, 4):
    A(f"v_fmac_f32 v{TM}, v{FG+2*j}, v{FG+2*j}")
A(f"v_mul_f32 v{VAR}, {f2u(1.0/512):#x}, v{VAR}")
A(f"v_fmac_f32 v{VAR}, {f2u(0.25):#x}, v{TM}")
bf16r(MEAN, MEAN)
bf16r(VAR, VAR)
for j in range(4):
    A(f"v_sub_f32 v{FG+j}, v{HX+j}, v{MEAN}")
A(f"v_add_f32 v{VAR}, {f2u(1e-5):#x}, v{VAR}")
pack(HP + 4, FG, 2)
bf16r(VAR, VAR)
unpack(FG, HP + 4, 2)
A(f"v_sqrt_f32 v{VAR}, v{VAR}")
nop(1)
bf16r(VAR, VAR)
A(f"v_rcp_f32 v{VAR}, v{VAR}")
nop(1)
for j in range(4):
    A(f"v_mul_f32 v{FG+j}, v{FG+j}, v{VAR}")
pack(HP + 4, FG, 2)
A("s_mov_b32 exec_hi, 0")
A(f"ds_write_b64 v{HA}, v[{HP+4}:{HP+5}] offset:{L_HN}")
A("s_mov_b32 exec_hi, -1")
c0 = math.sqrt(2.0 / math.pi)
k0 = -2.0 * c0 * LOG2E
k1 = k0 * 0.044715
A(f"s_mov_b32 s{S_T1}, {f2u(k1):#x}")
A(f"v_mov_b32 v{TT}, {f2u(k0):#x}")
A("s_waitcnt lgkmcnt(0)")
A("s_barrier")
stamp(8)
A(f"s_cmp_ge_u32 s{S_WAVE}, 4")
A("s_cbranch_scc1 L_exit")
for kp in range(4):
    A(f"ds_read_b128 v[{V_Q+4*kp}:{V_Q+4*kp+3}], v{A0} offset:{L_HN + kp*64}")
for kp in range(4):
    A(f"s_waitcnt lgkmcnt({3-kp})")
    for ct in range(2):
        mfma(V_S + 4 * ct, V_WX + (kp * 2 + ct) * 4, V_Q + 4 * kp, None if kp == 0 else V_S + 4 * ct)
nop(6)
set_exec(MASK_N2)
A(f"ds_write_b128 v{A1}, v[{V_S}:{V_S+3}] offset:{L_RED}")
A(f"ds_write_b128 v{A1}, v[{V_S+4}:{V_S+7}] offset:{L_RED + 64}")
A("s_mov_b64 exec, -1")
A("s_waitcnt lgkmcnt(0)")
A("s_barrier")
U = 16
for wp in range(4):
    A(f"ds_read_b32 v{U+wp}, v3 offset:{L_RED + wp*256}")
A("s_waitcnt lgkmcnt(0)")
A(f"v_add_f32 v{U}, v{U}, v{U+1}")
A(f"v_add_f32 v{U+2}, v{U+2}, v{U+3}")
A(f"v_add_f32 v{U}, v{U}, v{U+2}")
bf16r(U, U)
A(f"v_add_f32 v{U}, v{U}, v{V_SM+2}")
bf16r(U, U)
A(f"v_mul_f32 v{U+1}, v{U}, v{U}")
A(f"v_fma_f32 v{U+1}, v{U+1}, s{S_T1}, v{TT}")
A(f"v_mul_f32 v{U+1}, v{U+1}, v{U}")
A(f"v_exp_f32 v{U+1}, v{U+1}")
nop(1)
A(f"v_add_f32 v{U+1}, 1.0, v{U+1}")
A(f"v_rcp_f32 v{U+1}, v{U+1}")
nop(1)
A(f"v_mul_f32 v{U}, v{U}, v{U+1}")
A(f"v_cvt_pk_bf16_f32 v{U}, v{U}, v{U}")
A(f"ds_write_b16 v{A2}, v{U}")
BO = 32
for ct in range(8):
    A(f"ds_read_b128 v[{BO+4*ct}:{BO+4*ct+3}], v{BA+ct}")
YA = 24
for ct in range(8):
    A(f"s_waitcnt lgkmcnt({7-ct})")
    mfma(YA, V_W2 + 4 * ct, BO + 4 * ct, None if ct == 0 else YA)
nop(8)
tag(YA, V_TG)
A(f"buffer_store_dwordx4 v[{YA}:{YA+3}], v{YAD}, {WS}, s{S_Y} offen sc1")
stamp(9)
A("s_branch L_exit")
C("}DRY")
if CFG["dry2"]:
    for r, ret in ((1, "L_kret"), (2, "L_eret"), (3, "L_fret")):
        L(f"L_exit_{r}")
        A("s_cbranch_execnz L_exit")
        A("s_mov_b64 exec, -1")
        A(f"s_branch {ret}")
L("L_exit")
stamp_flush()
L("L_end")
A("s_endpgm")

out.append(f""".section .rodata,"a"
.p2align 6
.amdhsa_kernel {NAME}_kernel
  .amdhsa_next_free_vgpr 168
  .amdhsa_next_free_sgpr 102
  .amdhsa_accum_offset 168
  .amdhsa_group_segment_fixed_size 0
  .amdhsa_kernarg_size 104
  .amdhsa_user_sgpr_count 2
  .amdhsa_user_sgpr_kernarg_segment_ptr 1
  .amdhsa_system_sgpr_workgroup_id_x 1
.end_amdhsa_kernel""")

order = CFG_ORDER
lines = [l for b in order for l in BLK[b]]


def dry_pass(lines):
    res, indry, k = [], False, 0
    i = 0

    def is_mem(t):
        return t.startswith(("buffer_", "global_", "s_load", "s_atomic", "s_barrier"))

    def exec_write(t):
        return t.startswith(("s_mov_b64 exec", "s_mov_b32 exec", "s_and_b64 exec"))

    def restores(t):
        return t in ("s_mov_b64 exec, -1", "s_mov_b32 exec_hi, -1")
    open_span, masked, nd = None, False, False
    for l in lines:
        t = l.strip()
        if t == "; DRY{":
            indry = True
            i += 1
            continue
        if t == "; }DRY":
            assert open_span is None or True
            if open_span:
                res.append(open_span + ":")
                open_span = None
            masked = False
            indry = False
            continue
        if not (indry and CFG["dry2"]):
            if t not in ("; ND{", "; }ND"):
                res.append(l)
            continue
        if t == "; ND{":
            nd = True
            if not open_span:
                k += 1
                open_span = f"L_sk{k}"
                res.append(f"    s_cbranch_execz {open_span}")
            continue
        if t == "; }ND":
            nd = False
            continue
        unsafe = nd or masked or is_mem(t) or exec_write(t)
        if masked and t == "s_branch L_exit":
            unsafe = False
            masked = False
        if t.endswith(" L_exit"):
            l = l + f"_{i}"
        if unsafe:
            if not open_span:
                k += 1
                open_span = f"L_sk{k}"
                res.append(f"    s_cbranch_execz {open_span}")
            res.append(l)
            if exec_write(t):
                masked = not restores(t)
        else:
            if open_span:
                res.append(open_span + ":")
                open_span = None
            res.append(l)
    return res


print("\n".join(dry_pass(lines)))
```

```python
import sys, struct, math

NAME = "sequential_preLN__sliding_block_cached__dense_activation_gelu__decode"

CFG = dict(nt=1, timeout=1 << 18, stamps=0, dual=1, tsleep0=10, tsleep=3, tsleepa=24, qsleep=0, mwin=4, touch=1, bmask=15, fsl=0, g1sl=0, g2sl=0, pf=0, pfw=16, touch2=1, kb0=6, kthm=0, kthn=8, dry=1, dry2=1, dry3=1, korder=0, ktouch=0, tl2=6, qrep=8, qsl=0)
for a in sys.argv[1:]:
    if "=" in a:
        k, v = a.split("=")
        CFG[k] = int(v)
NT = " nt" if CFG["nt"] else ""

WS_Q = 0x00000
RECP = 1152
WS_PNA = 0x10000
WS_PNB = 0x50000
WS_XQA = 0x90000
WS_XQB = 0x80000
WS_AP = 0xA8000
WS_Y = 0xB0000
YP = 4096 + 128
WS_TS = 0xF0000
WS_QR = 0x140000
WS_SIZE = 0x200000

L_QL = 0
L_XN = 0
L_SC = 2048
L_QR = 2048
L_HN = 4096
L_RED = 6144
L_STS = 8192
L_QS = 9216
L_H1 = 9216
L_ZERO = 9728
L_MX = 10240
L_LS = 10368
L_FLAG = 10496
L_TAG = 10512
L_FL2 = 10544
L_DUM = 10560
BIG = 11264
L_K = BIG
L_V = BIG + 65536
L_WQ = BIG
L_WO = BIG + 32768
L_WX = BIG + 32768
L_W2 = BIG + 65536
L_PS = BIG + 98304
PNP = 1040
LDS_BYTES = BIG + 131072

LOG2E = 1.4426950408889634
SCALE = 128 ** -0.5


def f2u(f):
    return struct.unpack("<I", struct.pack("<f", f))[0]


out = []


def A(s):
    out.append("    " + s)


def L(s):
    out.append(s + ":")


def C(s):
    out.append("    ; " + s)


def nop(n):
    while n > 0:
        k = min(n, 16)
        A(f"s_nop {k-1}")
        n -= k


_lbl = [0]


def newlbl(p="L"):
    _lbl[0] += 1
    return f"{p}_{_lbl[0]}"


P_X, P_K, P_V, P_WQ, P_WO, P_BX, P_W1, P_B1, P_W2, P_B2, P_OUT, P_DBG, P_WS = [36 + 2 * i for i in range(13)]
S_WAVE, S_X, S_A, S_B, S_SPL = 3, 4, 5, 6, 7
SRD_WS, SRD_A, SRD_B, SRD_C = 8, 12, 16, 20
S_T0, S_T1, S_T2, S_T3, S_T4, S_T5 = 24, 25, 26, 27, 28, 29
S_TO, S_ROLE, S_SUB, S_NT, S_PNA, S_PNB = 30, 31, 32, 33, 34, 35
S_Q = 36
S_TG = 100
WS = f"s[{SRD_WS}:{SRD_WS+3}]"
SA = f"s[{SRD_A}:{SRD_A+3}]"
SB = f"s[{SRD_B}:{SRD_B+3}]"
SC_ = f"s[{SRD_C}:{SRD_C+3}]"
V_ST = 1
S_DRY = 7
CFG_ORDER = ["head", "qc", "ldr", "gv", "att", "qm2"]
V_MSK = 5


def srd(d, p, size):
    A(f"s_mov_b32 s{d}, s{p}")
    A(f"s_mov_b32 s{d+1}, s{p+1}")
    A(f"s_mov_b32 s{d+2}, {size:#x}")
    A(f"s_mov_b32 s{d+3}, 0x00020000")


def stamp(slot):
    if CFG.get("probe", -1) == slot:
        A("s_memrealtime s[0:1]")
        A("s_waitcnt lgkmcnt(0)")
        A("s_mov_b32 s7, s0")
    if CFG["stamps"]:
        A("s_memrealtime s[0:1]")
        A("s_waitcnt lgkmcnt(0)")
        A(f"v_writelane_b32 v{V_ST}, s0, {slot}")


def stamp_flush():
    if not CFG["stamps"]:
        return
    if CFG["stamps"] == 2:
        A("s_mov_b64 exec, -1")
        A(f"v_mov_b32 v2, {L_TAG}")
        A("ds_read_b32 v3, v2")
        A("s_waitcnt lgkmcnt(0)")
        A(f"v_sub_u32 v3, v{V_ST}, v3")
        A("v_max_i32 v3, 0, v3")
        A("v_lshlrev_b32 v2, 2, v0")
        A("v_add_co_u32 v166, vcc, v166, v2")
        A("v_addc_co_u32 v167, vcc, 0, v167, vcc")
        A(f"v_cmp_ne_u32 vcc, 0, v{V_ST}")
        A("s_bitcmp1_b32 vcc_lo, 11")
        A("s_cbranch_scc0 L_end")
        A("s_and_b64 exec, vcc, 0x1fff")
        A("s_cbranch_execz L_end")
        A("global_atomic_umax v[166:167], v3, off offset:8")
        return
    A("s_mov_b64 exec, -1")
    A("s_lshl_b32 s0, s2, 10")
    A(f"s_lshl_b32 s1, s{S_WAVE}, 6")
    A("s_add_u32 s0, s0, s1")
    A(f"s_add_u32 s0, s0, {WS_TS}")
    A("v_lshlrev_b32 v2, 2, v0")
    A("s_mov_b64 exec, 0xffff")
    A(f"buffer_store_dword v{V_ST}, v2, {WS}, s0 offen")


def dpp_steps(op, regs, ctrls):
    for c in ctrls:
        pad = max(0, 2 - (len(regs) - 1))
        if pad:
            nop(pad)
        for r in regs:
            A(f"{op}_dpp v{r}, v{r}, v{r} {c} row_mask:0xf bank_mask:0xf")


ROW_ALL = ["quad_perm:[1,0,3,2]", "quad_perm:[2,3,0,1]", "row_half_mirror", "row_mirror"]
ROW_HI = ["row_ror:4", "row_ror:8"]


def swap_steps(op, regs, tmps, which=(16, 32)):
    for wd in which:
        sw = f"v_permlane{wd}_swap_b32"
        for r, t in zip(regs, tmps):
            A(f"v_mov_b32 v{t}, v{r}")
        pad = max(0, 2 - (len(regs) - 1))
        if pad:
            nop(pad)
        for r, t in zip(regs, tmps):
            A(f"{sw} v{r}, v{t}")
        for r, t in zip(regs, tmps):
            A(f"{op} v{r}, v{r}, v{t}")


def allreduce(op, regs, tmps):
    nop(2)
    dpp_steps(op, regs, ROW_ALL)
    swap_steps(op, regs, tmps)


def lds_wait(flag_off, vt, va, sleep=0):
    l, e = newlbl("Lw"), newlbl("Lwe")
    A(f"v_mov_b32 v{va}, {flag_off}")
    A(f"s_mov_b32 s{S_TO}, {CFG['timeout']}")
    L(l)
    if sleep:
        A(f"s_sleep {sleep}")
    A(f"ds_read_b32 v{vt}, v{va}")
    A(f"s_sub_u32 s{S_TO}, s{S_TO}, 1")
    A(f"s_cbranch_scc1 {e}")
    A("s_waitcnt lgkmcnt(0)")
    A(f"v_readfirstlane_b32 s{S_T0}, v{vt}")
    A(f"s_cmp_eq_u32 s{S_T0}, 0")
    A(f"s_cbranch_scc1 {l}")
    L(e)
    A("s_waitcnt lgkmcnt(0)")


def lds_set(flag_off, vt, va):
    A("s_waitcnt lgkmcnt(0)")
    A(f"v_mov_b32 v{va}, {flag_off}")
    A(f"v_mov_b32 v{vt}, 1")
    A(f"ds_write_b32 v{va}, v{vt}")


def lds_sync(cnt_off, n, vt, va):
    l, e = newlbl("Ls"), newlbl("Lse")
    A(f"v_mov_b32 v{va}, {cnt_off}")
    A(f"v_mov_b32 v{vt}, 1")
    A("s_mov_b64 exec, 1")
    A(f"ds_add_u32 v{va}, v{vt}")
    A("s_mov_b64 exec, -1")
    A(f"s_mov_b32 s{S_TO}, {CFG['timeout']}")
    L(l)
    A(f"ds_read_b32 v{vt}, v{va}")
    A(f"s_sub_u32 s{S_TO}, s{S_TO}, 1")
    A(f"s_cbranch_scc1 {e}")
    A("s_waitcnt lgkmcnt(0)")
    A(f"v_readfirstlane_b32 s{S_T0}, v{vt}")
    A(f"s_cmp_lt_u32 s{S_T0}, {n}")
    A(f"s_cbranch_scc1 {l}")
    L(e)
    A("s_waitcnt lgkmcnt(0)")


def tree3(op3, op2, regs, t):
    regs = list(regs)
    A(f"{op3} v{t}, v{regs[0]}, v{regs[1]}, v{regs[2]}")
    i = 3
    while i + 1 < len(regs):
        A(f"{op3} v{t}, v{t}, v{regs[i]}, v{regs[i+1]}")
        i += 2
    if i < len(regs):
        A(f"{op2} v{t}, v{t}, v{regs[i]}")


def tag(quad, tg):
    for j in range(4):
        A(f"v_add_u32 v{quad+j}, 0x200, v{quad+j}")
    for j in range(4):
        A(f"v_bfi_b32 v{quad+j}, v{V_MSK}, v{tg+j}, v{quad+j}")


def tpoll(loads, regs, t, tg, sleep=0):
    l, e = newlbl("Lt"), newlbl("Lte")
    regs = list(regs)
    A(f"s_mov_b32 s{S_TO}, {CFG['timeout']}")
    L(l)
    if sleep:
        A(f"s_sleep {sleep}")
    loads()
    A(f"s_sub_u32 s{S_TO}, s{S_TO}, 1")
    A(f"s_cbranch_scc1 {e}")
    A("s_waitcnt vmcnt(0)")
    for i, r in enumerate(regs):
        A(f"v_xor_b32 v{r}, v{r}, v{tg + (i & 3)}")
    tree3("v_or3_b32", "v_or_b32", regs, t)
    A(f"v_and_b32 v{t}, v{V_MSK}, v{t}")
    A(f"v_cmp_ne_u32 vcc, 0, v{t}")
    A("s_cmp_lg_u64 vcc, 0")
    A(f"s_cbranch_scc1 {l}")
    L(e)
    A("s_waitcnt vmcnt(0)")


def tpoll2(loads, nld, bases, nreg, t, tg, consume):
    l, eA, eB, done = newlbl("Lu"), newlbl("LuA"), newlbl("LuB"), newlbl("Lud")

    def check(base, target):
        A(f"s_waitcnt vmcnt({nld})")
        regs = list(range(base, base + nreg))
        for i, r in enumerate(regs):
            A(f"v_xor_b32 v{r}, v{r}, v{tg + (i & 3)}")
        tree3("v_or3_b32", "v_or_b32", regs, t)
        A(f"v_and_b32 v{t}, v{V_MSK}, v{t}")
        A(f"v_cmp_ne_u32 vcc, 0, v{t}")
        A("s_cmp_eq_u64 vcc, 0")
        A(f"s_cbranch_scc1 {target}")
    A(f"s_mov_b32 s{S_TO}, {CFG['timeout']}")
    loads(bases[0])
    L(l)
    loads(bases[1])
    check(bases[0], eA)
    loads(bases[0])
    check(bases[1], eB)
    A(f"s_sub_u32 s{S_TO}, s{S_TO}, 1")
    A(f"s_cbranch_scc0 {l}")
    A("s_waitcnt vmcnt(0)")
    L(eA)
    consume(bases[0])
    A(f"s_branch {done}")
    L(eB)
    consume(bases[1])
    L(done)


def bf16r(dst, src):
    A(f"v_cvt_pk_bf16_f32 v{dst}, v{src}, v{src}")
    A(f"v_lshlrev_b32 v{dst}, 16, v{dst}")


def unpack(dst, src, n):
    for i in range(n):
        A(f"v_lshlrev_b32 v{dst+2*i}, 16, v{src+i}")
        A(f"v_and_b32 v{dst+2*i+1}, 0xffff0000, v{src+i}")


def pack(dst, src, n):
    for i in range(n):
        A(f"v_cvt_pk_bf16_f32 v{dst+i}, v{src+2*i}, v{src+2*i+1}")


def layernorm(xs, nb, tmp, outp):
    s = [tmp + i for i in range(nb)]
    q = [tmp + nb + i for i in range(nb)]
    t = [tmp + 2 * nb + i for i in range(nb)]
    mb = [tmp + 3 * nb + i for i in range(nb)]
    d = [tmp + 4 * nb + 8 * i for i in range(nb)]
    for i in range(nb):
        x = xs[i]
        A(f"v_add_f32 v{s[i]}, v{x}, v{x+1}")
        A(f"v_add_f32 v{t[i]}, v{x+2}, v{x+3}")
        A(f"v_add_f32 v{q[i]}, v{x+4}, v{x+5}")
        A(f"v_add_f32 v{mb[i]}, v{x+6}, v{x+7}")
        A(f"v_add_f32 v{s[i]}, v{s[i]}, v{t[i]}")
        A(f"v_add_f32 v{q[i]}, v{q[i]}, v{mb[i]}")
        A(f"v_add_f32 v{s[i]}, v{s[i]}, v{q[i]}")
    allreduce("v_add_f32", s, t)
    for i in range(nb):
        A(f"v_mul_f32 v{s[i]}, {f2u(1.0/512):#x}, v{s[i]}")
    for i in range(nb):
        x = xs[i]
        for j in range(8):
            A(f"v_sub_f32 v{d[i]+j}, v{x+j}, v{s[i]}")
        A(f"v_mul_f32 v{q[i]}, v{d[i]}, v{d[i]}")
        for j in range(1, 8):
            A(f"v_fmac_f32 v{q[i]}, v{d[i]+j}, v{d[i]+j}")
        bf16r(mb[i], s[i])
    nop(2)
    dpp_steps("v_add_f32", q, ROW_ALL)
    for i in range(nb):
        x = xs[i]
        for j in range(8):
            A(f"v_sub_f32 v{d[i]+j}, v{x+j}, v{mb[i]}")
        pack(outp[i], d[i], 4)
        unpack(d[i], outp[i], 4)
    swap_steps("v_add_f32", q, t)
    for i in range(nb):
        A(f"v_mul_f32 v{q[i]}, {f2u(1.0/512):#x}, v{q[i]}")
        bf16r(q[i], q[i])
        A(f"v_add_f32 v{q[i]}, {f2u(1e-5):#x}, v{q[i]}")
        bf16r(q[i], q[i])
        A(f"v_sqrt_f32 v{q[i]}, v{q[i]}")
        nop(1)
        bf16r(q[i], q[i])
        A(f"v_rcp_f32 v{q[i]}, v{q[i]}")
    nop(1)
    for i in range(nb):
        for j in range(8):
            A(f"v_mul_f32 v{d[i]+j}, v{d[i]+j}, v{q[i]}")
        pack(outp[i], d[i], 4)


def mfma(d, a, b, c=None):
    cc = f"v[{c}:{c+3}]" if c is not None else "0"
    A(f"v_mfma_f32_16x16x32_bf16 v[{d}:{d+3}], v[{a}:{a+3}], v[{b}:{b+3}], {cc}")


MASK_N2 = 0x0003000300030003
MASK_N4 = 0x000f000f000f000f


def set_exec(mask):
    A(f"s_mov_b32 exec_lo, {mask & 0xffffffff:#x}")
    A(f"s_mov_b32 exec_hi, {mask >> 32:#x}")


def tag_poll(sleep0, sel, barrier=False):
    lt, lte = newlbl(), newlbl()
    A(f"s_and_b32 s{S_T1}, s{sel}, 3")
    A(f"s_lshl_b32 s{S_T1}, s{S_T1}, 6")
    A(f"s_mov_b32 s{S_TO}, {CFG['timeout']}")
    if sleep0:
        A(f"s_sleep {sleep0}")
    if CFG["tl2"]:
        C("first attempts through the caches, one replica line each (a line is never re-read that way)")
        for r in range(4):
            A(f"s_load_dwordx2 s[{S_TG}:{S_TG+1}], s[{P_DBG}:{P_DBG+1}], {64*r}")
            A("s_waitcnt lgkmcnt(0)")
            A(f"s_cmp_lg_u32 s{S_TG+1}, 0")
            A(f"s_cbranch_scc1 {lte}")
            A(f"s_sleep {CFG['tl2']}")
    L(lt)
    A(f"s_load_dwordx2 s[{S_TG}:{S_TG+1}], s[{P_DBG}:{P_DBG+1}], s{S_T1} glc")
    A(f"s_sub_u32 s{S_TO}, s{S_TO}, 1")
    A(f"s_cbranch_scc1 {lte}")
    A("s_waitcnt lgkmcnt(0)")
    A(f"s_cmp_lg_u32 s{S_TG+1}, 0")
    A(f"s_cbranch_scc1 {lte}")
    A(f"s_sleep {CFG['tsleep']}")
    A(f"s_branch {lt}")
    L(lte)
    A("s_waitcnt lgkmcnt(0)")
    A(f"v_mov_b32 v100, s{S_TG}")
    A(f"v_mov_b32 v101, s{S_TG+1}")
    A("v_and_b32 v104, 0x3ff, v100")
    A("v_bfe_u32 v105, v100, 10, 10")
    A("v_bfe_u32 v106, v100, 20, 10")
    A("v_alignbit_b32 v107, v101, v100, 30")
    A("v_and_b32 v107, 0x3ff, v107")
    A(f"v_mov_b32 v102, {L_TAG}")
    if barrier == 1:
        A("s_barrier")
    A("ds_write_b64 v102, v[100:101]")
    A("ds_write_b128 v102, v[104:107] offset:16")
    if barrier == 2:
        A("s_waitcnt lgkmcnt(0)")
    else:
        lds_set(L_FLAG, 100, 101)


XNT = ' nt' if CFG.get('xnt', 0) else ''
out.append(f"""; fused pre-LN attention(decode, sliding window) + gelu MLP, persistent kernel
; @launch grid=(256,1,1) block=(640,1,1) lds={LDS_BYTES}
.amdgcn_target "amdgcn-amd-amdhsa--gfx950"
.text
.globl {NAME}_kernel
.p2align 8
.type {NAME}_kernel,@function
{NAME}_kernel:""")

BLK = {"head": out}


def begin(name):
    global out
    BLK[name] = []
    out = BLK[name]


def post_entry():
    A("s_waitcnt lgkmcnt(0)")
    srd(SRD_WS, P_WS, WS_SIZE)
    if CFG["stamps"] == 2:
        A(f"v_mov_b32 v166, s{P_DBG}")
        A(f"v_mov_b32 v167, s{P_DBG+1}")
    stamp(0)


def att_common():
    A(f"s_sub_u32 s{S_A}, s{S_A}, 16")
    A(f"s_lshr_b32 s{S_B}, s{S_A}, 3")
    A(f"s_lshl_b32 s{S_T0}, s{S_X}, 4")
    A(f"s_add_u32 s{S_T0}, s{S_T0}, s{S_A}")
    A(f"s_mul_i32 s{S_T0}, s{S_T0}, {RECP}")
    A(f"s_add_u32 s{S_PNA}, s{S_T0}, {WS_PNA}")
    A(f"s_add_u32 s{S_PNB}, s{S_T0}, {WS_PNB}")


def gv_common():
    A(f"s_mul_i32 s{S_SUB}, s{S_X}, 7")
    A(f"s_add_u32 s{S_SUB}, s{S_SUB}, s{S_A}")
    A(f"s_sub_u32 s{S_SUB}, s{S_SUB}, 8")
    A(f"s_mov_b32 s{S_ROLE}, 2")
    A(f"s_cmp_lt_u32 s{S_A}, 8")
    A(f"s_cselect_b32 s{S_ROLE}, 1, s{S_ROLE}")
    A(f"s_cselect_b32 s{S_SUB}, s{S_A}, s{S_SUB}")
    A(f"s_cmp_eq_u32 s{S_A}, 15")
    A(f"s_cselect_b32 s{S_ROLE}, 0, s{S_ROLE}")


def zero_flags():
    for j in range(4):
        A(f"v_mov_b32 v{12+j}, 0")
    A(f"v_mov_b32 v3, {L_FLAG}")
    A("ds_write_b128 v3, v[12:15]")
    A(f"ds_write_b128 v3, v[12:15] offset:{L_FL2 - L_FLAG}")


if CFG.get("probe", -1) == 15:
    A("s_memrealtime s[6:7]")
    A("s_waitcnt lgkmcnt(0)")
    A("s_mov_b32 s7, s6")
A("s_cmp_ge_u32 s2, 256")
A("s_cbranch_scc1 L_end")
A("s_load_dwordx16 s[36:51], s[0:1], 0")
A("s_load_dwordx8 s[52:59], s[0:1], 64")
A("s_load_dwordx2 s[60:61], s[0:1], 96")
A("v_lshrrev_b32 v1, 6, v0")
A("v_and_b32 v0, 63, v0")
A(f"s_and_b32 s{S_X}, s2, 7")
A(f"v_readfirstlane_b32 s{S_WAVE}, v1")
A(f"s_lshr_b32 s{S_A}, s2, 3")
if CFG["pf"]:
    C("early workgroups: waves 0..5 pull the kernel's code into L2 (striped)")
    A(f"s_cmp_ge_u32 s{S_WAVE}, 5")
    A("s_cbranch_scc1 L_pfe")
    A(f"s_cmp_ge_u32 s{S_A}, {CFG['pfw']}")
    A("s_cbranch_scc1 L_pfe")
    A("s_getpc_b64 s[24:25]")
    L("L_pcref")
    A(f"s_lshl_b32 s26, s{S_WAVE}, 7")
    L("L_pf")
    A("s_load_dword s27, s[24:25], s26")
    A("s_add_u32 s26, s26, 640")
    A("s_cmp_lt_u32 s26, L_end-L_pcref")
    A("s_cbranch_scc1 L_pf")
    L("L_pfe")
A("v_lshlrev_b32 v2, 4, v0")
A("v_lshrrev_b32 v4, 4, v0")
A(f"v_mov_b32 v{V_MSK}, 0x3ff")
A("v_and_b32 v6, 15, v0")
A("v_lshrrev_b32 v8, 3, v0")
A("v_bfe_u32 v9, v0, 1, 2")
A("v_and_b32 v10, 1, v0")
A("v_lshlrev_b32 v11, 5, v8")
A("v_lshl_add_u32 v11, v10, 4, v11")
if CFG["stamps"]:
    A(f"v_mov_b32 v{V_ST}, 0")
C("dispatch before waiting for the kernel arguments")
A(f"s_lshr_b32 s{S_T0}, s{S_A}, 4")
A(f"s_lshl_b32 s{S_T0}, s{S_T0}, 4")
A(f"s_or_b32 s{S_T0}, s{S_T0}, s{S_WAVE}")
A(f"s_cmp_ge_u32 s{S_T0}, 24")
A("s_cbranch_scc1 L_ldr")
A(f"s_cmp_ge_u32 s{S_T0}, 16")
A("s_cbranch_scc1 L_att")
if CFG["dry"]:
    A(f"s_cmp_lg_u32 s{S_T0}, 5")
    A("s_cbranch_scc1 L_nd")
    C("wave 5 walks the q wave's register/LDS code with EXEC=0 to warm the instruction cache")
    A("s_mov_b64 exec, 0")
    A("s_branch L_dry")
    L("L_nd")
A(f"s_cmp_lg_u32 s{S_T0}, 6")
A("s_cbranch_scc1 L_GV")

V_K = 16
V_Q = 48
V_S = 64
V_SM = 72
V_PNA = 80
V_T = 84
V_TG = 124
V_G = 128

begin("att")
L("L_att")
att_common()
post_entry()
srd(SRD_C, P_OUT, 2048)
srd(SRD_A, P_DBG, 256)
A(f"s_lshl_b32 s{S_T1}, s{S_WAVE}, 8")
A(f"s_add_u32 s{S_PNA}, s{S_PNA}, s{S_T1}")
A(f"s_add_u32 s{S_PNB}, s{S_PNB}, s{S_T1}")
A(f"v_lshlrev_b32 v{V_PNA}, 6, v6")
A(f"v_lshl_add_u32 v{V_PNA}, v4, 4, v{V_PNA}")
C("G role: even a -> gi = x*8 + a/2 (wave 0)")
A(f"s_lshl_b32 s{S_T0}, s{S_X}, 3")
A(f"s_lshr_b32 s{S_T1}, s{S_A}, 1")
A(f"s_add_u32 s{S_SUB}, s{S_T0}, s{S_T1}")
A(f"s_and_b32 s{S_ROLE}, s{S_A}, 1")
A(f"s_or_b32 s{S_ROLE}, s{S_ROLE}, s{S_WAVE}")
A(f"s_cmp_lg_u32 s{S_ROLE}, 0")
A("s_cbranch_scc1 L_nogsm")
srd(SRD_B, P_X, 2048)
A(f"v_and_b32 v{V_T}, 3, v0")
A(f"v_lshlrev_b32 v{V_T}, 3, v{V_T}")
A(f"s_lshl_b32 s{S_T0}, s{S_SUB}, 5")
A(f"buffer_load_dwordx2 v[{V_SM}:{V_SM+1}], v{V_T}, {SB}, s{S_T0} offen{XNT}")
if CFG["touch2"]:
    A(f"buffer_load_dwordx2 v[{V_SM+4}:{V_SM+5}], v{V_T}, {SC_}, s{S_T0} offen")
srd(SRD_B, P_B2, 1024)
A(f"s_and_b32 s{S_T0}, s{S_T0}, 1023")
A(f"buffer_load_dwordx2 v[{V_SM+2}:{V_SM+3}], v{V_T}, {SB}, s{S_T0} offen{XNT}")
L("L_nogsm")
C("pre-touch this wave's q lines so that they are resident at the memory side")
A(f"s_lshl_b32 s{S_T1}, s{S_X}, 12")
A(f"s_lshl_b32 s{S_T2}, s{S_B}, 11")
A(f"s_add_u32 s{S_T1}, s{S_T1}, s{S_T2}")
A(f"s_lshl_b32 s{S_T2}, s{S_WAVE}, 8")
A(f"s_add_u32 s{S_T1}, s{S_T1}, s{S_T2}")
A(f"s_add_u32 s{S_T2}, s{SRD_WS}, s{S_T1}")
A(f"s_addc_u32 s{S_T3}, s{SRD_WS+1}, 0")
if CFG["touch"]:
    for i in range(4):
        A(f"s_load_dword s{64+i}, s[{S_T2}:{S_T3}], {WS_Q + 64*i} glc")
C("K fragment addresses: K + w*8192 + m*256 + ((4k+g)^m)*16")
KA = V_T + 36
A(f"s_lshl_b32 s{S_T0}, s{S_WAVE}, 13")
A(f"s_add_u32 s{S_T0}, s{S_T0}, {L_K}")
for kp in range(4):
    A(f"v_add_u32 v{KA+kp}, {4*kp}, v4")
    A(f"v_xor_b32 v{KA+kp}, v{KA+kp}, v6")
    A(f"v_lshlrev_b32 v{KA+kp}, 4, v{KA+kp}")
    A(f"v_lshl_add_u32 v{KA+kp}, v6, 8, v{KA+kp}")
    A(f"v_add_u32 v{KA+kp}, s{S_T0}, v{KA+kp}")
A(f"s_cmp_lg_u32 s{S_WAVE}, 7")
A("s_cbranch_scc1 L_ntp")
tag_poll(CFG["tsleepa"], S_A, barrier=2)
L("L_ntp")
A("s_barrier")
A(f"v_mov_b32 v{V_T}, 0")
A(f"ds_read_b64 v[{V_T+2}:{V_T+3}], v{V_T} offset:{L_TAG}")
A(f"ds_read_b128 v[{V_TG}:{V_TG+3}], v{V_T} offset:{L_TAG + 16}")
A("s_waitcnt lgkmcnt(0)")
A(f"v_readfirstlane_b32 s{S_TG}, v{V_T+2}")
A(f"v_readfirstlane_b32 s{S_TG+1}, v{V_T+3}")
stamp(1)
S2 = V_T + 4
PK = V_T + 12
MM = V_T + 16
TT = V_T + 20
EX = V_T + 24
QA = V_T + 1
A(f"s_lshl_b32 s{S_T0}, s{S_WAVE}, 7")
A(f"v_lshl_add_u32 v{QA}, v0, 2, s{S_T0}")
A(f"v_and_b32 v{V_T+2}, 3, v0")
A(f"v_lshlrev_b32 v{V_T+3}, 8, v{V_T+2}")
A(f"v_lshl_add_u32 v{V_T+3}, v4, 4, v{V_T+3}")
A(f"s_lshl_b32 s{S_T0}, s{S_WAVE}, 2")
A(f"v_lshl_add_u32 v{TT+2}, v0, 5, s{S_T0}")
A(f"v_lshlrev_b32 v{TT+3}, 5, v{V_T+2}")
C("---- scalar gather of q: this wave's 256 bytes (16 granules {d0,d1,T0,T1})")
lq, lqe, lqk = newlbl("Lq"), newlbl("Lqe"), newlbl("Lqk")
stamp(12)


def k_frags():
    for kp in range(4):
        for tt in range(2):
            r = V_K + (tt * 4 + kp) * 4
            A(f"ds_read_b128 v[{r}:{r+3}], v{KA+kp} offset:{tt*4096}")


A(f"v_mov_b32 v{TT}, {L_FLAG + 4}")
A(f"s_mov_b32 s{S_NT}, 0")
A(f"s_mov_b32 s{S_TO}, {CFG['timeout']}")
L(lq)
for i in range(4):
    A(f"s_load_dwordx16 s[{S_Q+16*i}:{S_Q+16*i+15}], s[{S_T2}:{S_T3}], {WS_Q + 64*i} glc")
A(f"ds_read_b32 v{TT+1}, v{TT}")
A(f"s_sub_u32 s{S_TO}, s{S_TO}, 1")
A(f"s_cbranch_scc1 {lqe}")
A("s_waitcnt lgkmcnt(0)")
A(f"v_readfirstlane_b32 s{S_T0}, v{TT+1}")
A(f"s_andn2_b32 s{S_T0}, s{S_T0}, s{S_NT}")
A(f"s_cbranch_scc0 {lqk}")
A(f"s_mov_b32 s{S_NT}, 1")
k_frags()
L(lqk)
A(f"s_and_b64 s[{S_T4}:{S_T5}], s[{S_Q+2}:{S_Q+3}], s[{S_Q+6}:{S_Q+7}]")
A(f"s_or_b64 s[{S_T0}:{S_T1}], s[{S_Q+2}:{S_Q+3}], s[{S_Q+6}:{S_Q+7}]")
for gq in range(2, 16):
    A(f"s_and_b64 s[{S_T4}:{S_T5}], s[{S_T4}:{S_T5}], s[{S_Q+4*gq+2}:{S_Q+4*gq+3}]")
    A(f"s_or_b64 s[{S_T0}:{S_T1}], s[{S_T0}:{S_T1}], s[{S_Q+4*gq+2}:{S_Q+4*gq+3}]")
A(f"s_xor_b64 s[{S_T4}:{S_T5}], s[{S_T4}:{S_T5}], s[{S_TG}:{S_TG+1}]")
A(f"s_xor_b64 s[{S_T0}:{S_T1}], s[{S_T0}:{S_T1}], s[{S_TG}:{S_TG+1}]")
A(f"s_or_b64 s[{S_T4}:{S_T5}], s[{S_T4}:{S_T5}], s[{S_T0}:{S_T1}]")
A(f"s_cbranch_scc1 {lq}")
L(lqe)
A("s_waitcnt lgkmcnt(0)")
stamp(8)
if CFG["stamps"] == 1:
    A(f"s_sub_u32 s0, {CFG['timeout']}, s{S_TO}")
    A(f"v_writelane_b32 v{V_ST}, s0, 9")
for gq in range(16):
    A(f"v_writelane_b32 v{V_T}, s{S_Q+4*gq}, {2*gq}")
    A(f"v_writelane_b32 v{V_T}, s{S_Q+4*gq+1}, {2*gq+1}")
A("s_mov_b32 exec_hi, 0")
A(f"ds_write_b32 v{QA}, v{V_T} offset:{L_QL}")
A("s_mov_b32 exec_hi, -1")
A(f"s_cmp_lg_u32 s{S_NT}, 0")
A("s_cbranch_scc1 L_kok")
lds_wait(L_FLAG + 4, V_T, TT, sleep=1)
k_frags()
L("L_kok")
C("poll the q operand itself (LDS sentinel)")
l1, l1e = newlbl("Lqo"), newlbl("Lqoe")
A(f"s_mov_b32 s{S_TO}, {CFG['timeout']}")
L(l1)
for kp in range(4):
    A(f"ds_read_b128 v[{V_Q+4*kp}:{V_Q+4*kp+3}], v{V_T+3} offset:{L_QL + kp*64}")
A(f"s_sub_u32 s{S_TO}, s{S_TO}, 1")
A(f"s_cbranch_scc1 {l1e}")
A("s_waitcnt lgkmcnt(0)")
tree3("v_max3_u32", "v_max_u32", range(V_Q, V_Q + 16), TT)
A(f"v_cmp_eq_u32 vcc, -1, v{TT}")
A("s_cmp_lg_u64 vcc, 0")
A(f"s_cbranch_scc1 {l1}")
L(l1e)
A("s_waitcnt lgkmcnt(0)")
for kp in range(4):
    for tt in range(2):
        mfma(V_S + 4 * tt, V_K + (tt * 4 + kp) * 4, V_Q + 4 * kp, None if kp == 0 else V_S + 4 * tt)
stamp(2)
A(f"v_mov_b32 v{EX}, {f2u(SCALE):#x}")
A(f"v_mov_b32 v{EX+1}, {f2u(SCALE):#x}")
A(f"s_mov_b32 s{S_T1}, {f2u(LOG2E):#x}")
nop(5)
pack(PK, V_S, 4)
unpack(S2, PK, 4)
for j in range(0, 8, 2):
    A(f"v_pk_mul_f32 v[{S2+j}:{S2+j+1}], v[{S2+j}:{S2+j+1}], v[{EX}:{EX+1}]")
pack(PK, S2, 4)
unpack(S2, PK, 4)
A(f"v_max3_f32 v{MM}, v{S2}, v{S2+1}, v{S2+2}")
A(f"v_max3_f32 v{MM}, v{MM}, v{S2+3}, v{S2+4}")
A(f"v_max3_f32 v{MM}, v{MM}, v{S2+5}, v{S2+6}")
A(f"v_max_f32 v{MM}, v{MM}, v{S2+7}")
swap_steps("v_max_f32", [MM], [TT])
A("s_mov_b64 exec, 15")
A(f"ds_write_b32 v{TT+2}, v{MM} offset:{L_MX}")
A("s_mov_b64 exec, -1")
for j in range(8):
    A(f"v_mul_f32 v{S2+j}, s{S_T1}, v{S2+j}")
l2, l2e = newlbl("Lmx"), newlbl("Lmxe")
A(f"s_mov_b32 s{S_TO}, {CFG['timeout']}")
L(l2)
A(f"ds_read_b128 v[{EX}:{EX+3}], v{TT+3} offset:{L_MX}")
A(f"ds_read_b128 v[{EX+4}:{EX+7}], v{TT+3} offset:{L_MX + 16}")
A(f"s_sub_u32 s{S_TO}, s{S_TO}, 1")
A(f"s_cbranch_scc1 {l2e}")
A("s_waitcnt lgkmcnt(0)")
tree3("v_max3_u32", "v_max_u32", range(EX, EX + 8), TT)
tree3("v_max3_f32", "v_max_f32", range(EX, EX + 8), MM)
A(f"v_cmp_eq_u32 vcc, -1, v{TT}")
A("s_cmp_lg_u64 vcc, 0")
A(f"s_cbranch_scc1 {l2}")
L(l2e)
A("s_waitcnt lgkmcnt(0)")
A(f"v_mul_f32 v{MM}, s{S_T1}, v{MM}")
for j in range(8):
    A(f"v_sub_f32 v{EX+j}, v{S2+j}, v{MM}")
for j in range(8):
    A(f"v_exp_f32 v{EX+j}, v{EX+j}")
A(f"s_lshl_b32 s{S_T0}, s{S_WAVE}, 10")
A(f"v_add_u32 v{TT}, s{S_T0}, v2")
pack(PK, EX, 4)
A(f"ds_write_b128 v{TT}, v[{PK}:{PK+3}] offset:{L_SC}")
A(f"v_add_f32 v{MM+1}, v{EX}, v{EX+1}")
A(f"v_add_f32 v{TT}, v{EX+2}, v{EX+3}")
A(f"v_add_f32 v{TT+1}, v{EX+4}, v{EX+5}")
A(f"v_add_f32 v{EX}, v{EX+6}, v{EX+7}")
A(f"v_add_f32 v{MM+1}, v{MM+1}, v{TT}")
A(f"v_add_f32 v{EX}, v{EX}, v{TT+1}")
A(f"v_add_f32 v{MM+1}, v{MM+1}, v{EX}")
swap_steps("v_add_f32", [MM + 1], [TT])
A("s_mov_b64 exec, 15")
A(f"ds_write_b32 v{TT+2}, v{MM+1} offset:{L_LS}")
A("s_mov_b64 exec, -1")
stamp(3)
VA0, VA1, VB0, VB1 = V_T + 32, V_T + 33, V_T + 34, V_T + 35


def vw2_addr():
    A(f"v_lshlrev_b32 v{VA0}, 10, v4")
    A(f"v_lshl_add_u32 v{VA0}, v6, 3, v{VA0}")
    A(f"v_and_b32 v{VA1}, 1, v4")
    A(f"v_lshl_add_u32 v{VA0}, v{VA1}, 7, v{VA0}")
    A(f"v_xor_b32 v{VA1}, 128, v{VA0}")


vw2_addr()
A(f"s_lshl_b32 s{S_T0}, s{S_WAVE}, 8")
A(f"s_add_u32 s{S_T0}, s{S_T0}, {L_V}")
A(f"v_add_u32 v{VB0}, s{S_T0}, v{VA0}")
A(f"v_add_u32 v{VB1}, s{S_T0}, v{VA1}")
A(f"s_cmp_gt_u32 s{S_WAVE}, 4")
A("s_cbranch_scc1 L_exit")
A(f"v_mov_b32 v{V_T+1}, {L_FLAG + 8}")
A(f"s_mov_b32 s{S_NT}, 0")


def wait_progress(n):
    l, ok = newlbl("Lvp"), newlbl("Lvo")
    A(f"s_cmp_ge_u32 s{S_NT}, {n}")
    A(f"s_cbranch_scc1 {ok}")
    A(f"s_mov_b32 s{S_TO}, {CFG['timeout']}")
    L(l)
    A(f"ds_read_b32 v{V_T}, v{V_T+1}")
    A(f"s_sub_u32 s{S_TO}, s{S_TO}, 1")
    A(f"s_cbranch_scc1 {ok}")
    A("s_waitcnt lgkmcnt(0)")
    A(f"v_readfirstlane_b32 s{S_NT}, v{V_T}")
    A(f"s_cmp_lt_u32 s{S_NT}, {n}")
    A(f"s_cbranch_scc1 {l}")
    L(ok)


A(f"s_cmp_lt_u32 s{S_WAVE}, 4")
A("s_cbranch_scc1 L_pv")
C("---- wave 4: publish stats {m,l,T0,T1} per head (lanes 0..3) once all l are in and the PN clears completed")
wait_progress(1)
A(f"v_mov_b32 v{MM+2}, s{S_TG}")
A(f"v_mov_b32 v{MM+3}, s{S_TG+1}")
l4, l4e = newlbl("Lls"), newlbl("Llse")
A(f"s_mov_b32 s{S_TO}, {CFG['timeout']}")
L(l4)
A(f"ds_read_b128 v[{EX}:{EX+3}], v{TT+3} offset:{L_LS}")
A(f"ds_read_b128 v[{EX+4}:{EX+7}], v{TT+3} offset:{L_LS + 16}")
A(f"s_sub_u32 s{S_TO}, s{S_TO}, 1")
A(f"s_cbranch_scc1 {l4e}")
A("s_waitcnt lgkmcnt(0)")
tree3("v_max3_u32", "v_max_u32", range(EX, EX + 8), TT)
A(f"v_cmp_eq_u32 vcc, -1, v{TT}")
A("s_cmp_lg_u64 vcc, 0")
A(f"s_cbranch_scc1 {l4}")
L(l4e)
A("s_waitcnt lgkmcnt(0)")
for j in range(4):
    A(f"v_add_f32 v{EX+j}, v{EX+j}, v{EX+4+j}")
A(f"v_add_f32 v{EX}, v{EX}, v{EX+1}")
A(f"v_add_f32 v{EX+2}, v{EX+2}, v{EX+3}")
A(f"v_add_f32 v{MM+1}, v{EX}, v{EX+2}")
A("s_mov_b64 exec, 15")
if CFG["dual"]:
    A(f"buffer_store_dwordx4 v[{MM}:{MM+3}], v2, {WS}, s{S_PNA} offen")
A(f"buffer_store_dwordx4 v[{MM}:{MM+3}], v2, {WS}, s{S_PNB} offen sc1")
A("s_branch L_exit")
L("L_pv")
C("---- PV (waves 0..3, 32 dims each): tiles are consumed as they land")
PB = V_G
VF = V_K
l5, l5e = newlbl("Lpp"), newlbl("Lppe")
A(f"s_mov_b32 s{S_TO}, {CFG['timeout']}")
L(l5)
for t in range(8):
    A(f"ds_read_b128 v[{PB+4*t}:{PB+4*t+3}], v2 offset:{L_SC + t*1024}")
A(f"ds_read_b32 v{V_T}, v{V_T+1}")
A(f"s_sub_u32 s{S_TO}, s{S_TO}, 1")
A(f"s_cbranch_scc1 {l5e}")
A("s_waitcnt lgkmcnt(0)")
tree3("v_max3_u32", "v_max_u32", [PB + 4 * t + j for t in range(8) for j in (0, 3)], TT)
A(f"v_readfirstlane_b32 s{S_NT}, v{V_T}")
A(f"v_cmp_eq_u32 vcc, -1, v{TT}")
A("s_cmp_lg_u64 vcc, 0")
A(f"s_cbranch_scc1 {l5}")
L(l5e)
A("s_waitcnt lgkmcnt(0)")
stamp(5)


def v_reads(t):
    for c2 in range(2):
        for h in range(2):
            r = VF + ((t % 6) * 2 + c2) * 4 + 2 * h
            A(f"ds_read_b64_tr_b16 v[{r}:{r+1}], v{VB0 + c2} offset:{t*8192 + h*4096}")


def v_mfma(t):
    for c2 in range(2):
        mfma(V_S + 4 * c2, VF + ((t % 6) * 2 + c2) * 4, PB + 4 * t, None if t == 0 else V_S + 4 * c2)


A(f"s_cmp_ge_u32 s{S_NT}, 8")
A("s_cbranch_scc1 L_pvf")
for t in range(8):
    wait_progress(t + 1)
    v_reads(t)
    if t >= 1:
        A("s_waitcnt lgkmcnt(4)")
        v_mfma(t - 1)
A("s_waitcnt lgkmcnt(0)")
v_mfma(7)
A("s_branch L_pve")
L("L_pvf")
for t in range(3):
    v_reads(t)
for t in range(8):
    A(f"s_waitcnt lgkmcnt({min(2, 7 - t)*4})")
    v_mfma(t)
    if t + 3 < 8:
        v_reads(t + 3)
L("L_pve")
nop(7)
pack(PK, V_S, 4)
set_exec(MASK_N4)
if CFG["dual"]:
    A(f"buffer_store_dwordx4 v[{PK}:{PK+3}], v{V_PNA}, {WS}, s{S_PNA} offen")
A(f"buffer_store_dwordx4 v[{PK}:{PK+3}], v{V_PNA}, {WS}, s{S_PNB} offen sc1")
A("s_mov_b64 exec, -1")
stamp(6)
A(f"s_cmp_lg_u32 s{S_ROLE}, 0")
A("s_cbranch_scc1 L_exit")

C("==== G: final reduce of 16 outputs (16gi..16gi+15)")
A(f"s_lshl_b32 s{S_T2}, s{S_SUB}, 6")
A(f"s_add_u32 s{S_T3}, s{S_T2}, {WS_AP}")
A(f"s_add_u32 s{S_T2}, s{S_T2}, {WS_Y}")
A(f"v_lshrrev_b32 v{TT+2}, 2, v0")
A(f"v_and_b32 v{TT+3}, 3, v0")
A(f"v_lshlrev_b32 v{TT}, 12, v{TT+2}")
A(f"v_lshl_add_u32 v{TT}, v{TT+3}, 4, v{TT}")
A(f"s_movk_i32 s{S_T0}, {YP}")
A(f"v_mul_lo_u32 v{TT+2}, v{TT+2}, s{S_T0}")
A(f"v_lshl_add_u32 v{TT+2}, v{TT+3}, 4, v{TT+2}")
for i in range(1, 4):
    A(f"s_add_u32 s{40+i}, s{S_T2}, {16*i*YP}")
GA = V_G
if CFG["dry2"]:
    C("walk the rest of this path once with EXEC=0 (instruction cache warm-up)")
    A("s_mov_b64 exec, 0")
L("L_kret")
C("DRY{")
A("s_mov_b32 exec_hi, 0")


def g1_loads():
    A(f"buffer_load_dwordx4 v[{GA}:{GA+3}], v{TT}, {WS}, s{S_T3} offen sc1")


tpoll(g1_loads, range(GA, GA + 4), V_T, V_TG, CFG['g1sl'])
A("s_mov_b64 exec, -1")
stamp(7)
A(f"s_cmp_lg_u32 s{S_SUB}, 0")
A("s_cbranch_scc1 L_gnz")
C("every workgroup has consumed the launch tag by now: leave d_debug clean")
A(f"v_mov_b32 v{V_T}, 0")
A(f"v_mov_b32 v{V_T+1}, 0")
A(f"v_lshlrev_b32 v{V_T+2}, 6, v0")
A("s_mov_b64 exec, 15")
A(f"buffer_store_dwordx2 v[{V_T}:{V_T+1}], v{V_T+2}, {SA}, 0 offen sc1")
A("s_mov_b64 exec, -1")
L("L_gnz")
nop(1)
dpp_steps("v_add_f32", [GA + j for j in range(4)], ROW_HI)
swap_steps("v_add_f32", [GA + j for j in range(4)], [GA + 4 + j for j in range(4)], which=(16,))
GH = V_G + 8
GP = V_G + 16
GB = V_G + 20
pack(GP, GA, 2)
unpack(GA, GP, 2)
unpack(GH, V_SM, 2)
for j in range(4):
    A(f"v_add_f32 v{GH+j}, v{GH+j}, v{GA+j}")
pack(GP, GH, 2)
unpack(GH, GP, 2)
unpack(GB, V_SM + 2, 2)
GY = V_K


def g2_loads():
    for j in range(4):
        A(f"v_mov_b32 v{GY+12+j}, v{V_TG+j}")
    A(f"buffer_load_dwordx4 v[{GY}:{GY+3}], v{TT+2}, {WS}, s{S_T2} offen sc1")
    A(f"buffer_load_dwordx4 v[{GY+4}:{GY+7}], v{TT+2}, {WS}, s41 offen sc1")
    A(f"buffer_load_dwordx4 v[{GY+8}:{GY+11}], v{TT+2}, {WS}, s42 offen sc1")
    A("s_mov_b32 exec_hi, 0")
    A(f"buffer_load_dwordx4 v[{GY+12}:{GY+15}], v{TT+2}, {WS}, s43 offen sc1")
    A("s_mov_b32 exec_hi, -1")


tpoll(g2_loads, range(GY, GY + 16), V_T, V_TG, CFG['g2sl'])
stamp(10)
for j in range(4):
    A(f"v_add_f32 v{GY+j}, v{GY+j}, v{GY+4+j}")
    A(f"v_add_f32 v{GY+8+j}, v{GY+8+j}, v{GY+12+j}")
for j in range(4):
    A(f"v_add_f32 v{GY+j}, v{GY+j}, v{GY+8+j}")
dpp_steps("v_add_f32", [GY + j for j in range(4)], ROW_HI)
swap_steps("v_add_f32", [GY + j for j in range(4)], [GY + 4 + j for j in range(4)])
pack(GP, GY, 2)
unpack(GY, GP, 2)
for j in range(4):
    A(f"v_add_f32 v{GY+j}, v{GY+j}, v{GB+j}")
pack(GP, GY, 2)
unpack(GY, GP, 2)
for j in range(4):
    A(f"v_add_f32 v{GY+j}, v{GY+j}, v{GH+j}")
pack(GP, GY, 2)
if CFG.get("padto", 0):
    C("ND{")
    A(f"s_mov_b32 s{S_T5}, {CFG['padto']}")
    if CFG.get("probe", -1) >= 0:
        A(f"s_sub_u32 s0, s7, s{S_TG}" if not CFG.get("neg", 0) else f"s_sub_u32 s0, s{S_TG}, s7")
        A("s_max_i32 s0, s0, 0")
        A("s_mul_i32 s0, s0, 3")
        A(f"s_add_u32 s{S_T5}, s{S_T5}, s0")
    L("L_pad")
    A("s_memrealtime s[0:1]")
    A("s_waitcnt lgkmcnt(0)")
    A(f"s_sub_u32 s0, s0, s{S_TG}")
    A(f"s_cmp_lt_u32 s0, s{S_T5}")
    A("s_cbranch_scc1 L_pad")
    C("}ND")
A(f"s_lshl_b32 s{S_T4}, s{S_SUB}, 5")
A("v_lshlrev_b32 v3, 3, v0")
A("s_mov_b64 exec, 15")
A(f"buffer_store_dwordx2 v[{GP}:{GP+1}], v3, {SC_}, s{S_T4} offen")
stamp(11)
A("s_branch L_exit")

C("}DRY")
begin("ldr")
L("L_ldr")
att_common()
C("kv byte offset: ((b*8+x)*8192 + 6144 + 256 s)*256")
A(f"s_lshl_b32 s{S_T0}, s{S_B}, 3")
A(f"s_add_u32 s{S_T0}, s{S_T0}, s{S_X}")
A(f"s_lshl_b32 s{S_T0}, s{S_T0}, 5")
A(f"s_and_b32 s{S_T1}, s{S_A}, 7")
A(f"s_add_u32 s{S_T0}, s{S_T0}, s{S_T1}")
A(f"s_add_u32 s{S_T0}, s{S_T0}, 24")
A(f"s_lshl_b32 s{S_T3}, s{S_T0}, 16")
A(f"s_mov_b32 s{S_T2}, 0")
A(f"s_cmp_eq_u32 s{S_WAVE}, 9")
A("s_cbranch_scc1 L_ldv")
C("K DMA lane offsets: r4=l>>4, p=l&15: r4*256 + ((p ^ (4i+r4))*16)")
for i in range(4):
    A(f"v_add_u32 v{12+i}, {4*i}, v4")
    A(f"v_xor_b32 v{12+i}, v{12+i}, v6")
    A(f"v_lshlrev_b32 v{12+i}, 4, v{12+i}")
    A(f"v_lshl_add_u32 v{12+i}, v4, 8, v{12+i}")
A(f"s_mov_b32 s{S_T1}, {L_K}")
post_entry()
srd(SRD_A, P_K, 0x2000000)
if CFG.get("ksleep", 0):
    A(f"s_sleep {CFG['ksleep']}")
if CFG["ktouch"]:
    C("resolve the K/V translations first; the q-projection loads get a head start meanwhile")
    A(f"s_load_dword s64, s[{P_K}:{P_K+1}], s{S_T3}")
    A(f"s_load_dword s65, s[{P_V}:{P_V+1}], s{S_T3}")
    A("s_waitcnt lgkmcnt(0)")
L("L_ldk1")
A(f"s_mov_b32 m0, s{S_T1}")
A(f"s_add_u32 s{S_T1}, s{S_T1}, 4096")
for i in range(4):
    A(f"buffer_load_dwordx4 v{12+i}, {SA}, s{S_T3} offen offset:{i*1024}{NT} lds")
A(f"s_add_u32 s{S_T3}, s{S_T3}, 4096")
A(f"s_add_u32 s{S_T2}, s{S_T2}, 1")
A(f"s_cmp_lt_u32 s{S_T2}, 16")
A("s_cbranch_scc1 L_ldk1")
stamp(1)
A("s_barrier")
A("s_waitcnt vmcnt(0)")
stamp(4)
lds_set(L_FLAG + 4, 16, 17)
A("s_waitcnt lgkmcnt(0)")
A("s_branch L_exit")
L("L_ldv")
zero_flags()
for j in range(4):
    A(f"v_mov_b32 v{16+j}, -1")
A(f"ds_write_b128 v2, v[16:19] offset:{L_QL}")
for t in range(8):
    A(f"ds_write_b128 v2, v[16:19] offset:{L_SC + t*1024}")
A("s_mov_b64 exec, 0xffff")
A(f"ds_write_b128 v2, v[16:19] offset:{L_MX}")
A("s_mov_b64 exec, -1")
A("v_lshl_add_u32 v12, v9, 8, v11")
A("v_xor_b32 v13, 32, v12")
post_entry()
srd(SRD_B, P_V, 0x2000000)
A("s_barrier")
A(f"buffer_store_dwordx4 v[16:19], v2, {WS}, s{S_PNA} offen sc1")
A(f"buffer_store_dwordx4 v[16:19], v2, {WS}, s{S_PNB} offen sc1")
A(f"s_mov_b32 s{S_T1}, {L_V}")
L("L_ldv1")
A(f"s_mov_b32 m0, s{S_T1}")
A(f"s_add_u32 s{S_T1}, s{S_T1}, 4096")
for be in range(4):
    A(f"buffer_load_dwordx4 v{12 + (be & 1)}, {SB}, s{S_T3} offen offset:{be*1024}{NT} lds")
A(f"s_add_u32 s{S_T3}, s{S_T3}, 4096")
A(f"s_add_u32 s{S_T2}, s{S_T2}, 1")
A(f"s_cmp_lt_u32 s{S_T2}, 16")
A("s_cbranch_scc1 L_ldv1")
stamp(1)
A(f"v_mov_b32 v20, {L_FLAG + 8}")
for t in range(8):
    A(f"v_mov_b32 v21, {t+1}")
    A(f"s_waitcnt vmcnt({56 - 8*t})")
    A("ds_write_b32 v20, v21")
stamp(4)
A("s_waitcnt lgkmcnt(0)")
A("s_branch L_exit")

begin("gv")
L("L_dry2")
A("s_mov_b64 exec, -1")
L("L_GV")
gv_common()
post_entry()
A(f"s_cmp_ge_u32 s{S_WAVE}, 8")
A("s_cbranch_scc1 L_gld")
A(f"s_cmp_lg_u32 s{S_WAVE}, 7")
A("s_cbranch_scc1 L_gv2")
A("s_cmp_lg_u32 s2, 0")
A("s_cbranch_scc1 L_gv0")
C("workgroup 0 publishes the launch tag (4 replicas)")
srd(SRD_C, P_DBG, 256)
A("s_memrealtime s[24:25]")
A("s_waitcnt lgkmcnt(0)")
A("s_or_b32 s25, s25, 0x80000000")
A("v_mov_b32 v14, s24")
A("v_mov_b32 v15, s25")
A("v_lshlrev_b32 v12, 6, v0")
A("s_mov_b64 exec, 15")
A(f"buffer_store_dwordx2 v[14:15], v12, {SC_}, 0 offen sc1")
A("s_mov_b64 exec, -1")
L("L_gv0")
tag_poll(CFG["tsleep0"], S_A, barrier=2)
stamp(5)
A(f"s_mov_b32 s{S_TO}, {CFG['timeout']}")
L("L_echo")
A("ds_write_b64 v102, v[100:101]")
A("ds_read_b32 v103, v102 offset:8")
A(f"s_sub_u32 s{S_TO}, s{S_TO}, 1")
A("s_cbranch_scc1 L_gv2")
A("s_waitcnt lgkmcnt(0)")
A(f"v_readfirstlane_b32 s{S_T0}, v103")
A("s_sleep 2")
A(f"s_cmp_lg_u32 s{S_T0}, s{S_TG}")
A("s_cbranch_scc1 L_echo")
L("L_gv2")
A("s_branch L_qm1")

C("---- GEMV loaders (waves 8,9)")
L("L_gld")
A(f"s_and_b32 s{S_T5}, s{S_WAVE}, 1")
C("WX style lane offsets: ct=l>>5, p=(l>>1)&15 (row), half")
A("v_bfe_u32 v3, v0, 1, 4")
A("v_lshrrev_b32 v12, 5, v0")
A("v_lshlrev_b32 v12, 5, v12")
A("v_lshl_add_u32 v12, v10, 4, v12")
A(f"s_cmp_eq_u32 s{S_ROLE}, 0")
A("s_cbranch_scc1 L_exit")
A(f"s_cmp_eq_u32 s{S_ROLE}, 2")
A("s_cbranch_scc1 L_gld2")
C("wo tile: 512 rows x 128 B; loader i: rows 256i.. (32 instrs of 8 rows)")
srd(SRD_C, P_WO, 0x400000)
A("v_bfe_u32 v3, v0, 1, 3")
A("v_lshlrev_b32 v3, 10, v3")
A("v_lshl_add_u32 v3, v4, 5, v3")
A("v_lshl_add_u32 v3, v10, 4, v3")
A(f"s_lshl_b32 s{S_T3}, s{S_X}, 19")
A(f"s_lshl_b32 s{S_T1}, s{S_T5}, 18")
A(f"s_add_u32 s{S_T3}, s{S_T3}, s{S_T1}")
A(f"s_lshl_b32 s{S_T1}, s{S_SUB}, 7")
A(f"s_add_u32 s{S_T3}, s{S_T3}, s{S_T1}")
A(f"s_lshl_b32 s{S_T4}, s{S_T5}, 15")
A(f"s_add_u32 s{S_T4}, s{S_T4}, {L_WO}")
if CFG["touch2"]:
    for i in range(4):
        A(f"s_add_u32 s{S_T1}, s{S_T3}, {i*65536}")
        A(f"s_load_dword s{64+i}, s[{P_WO}:{P_WO+1}], s{S_T1}")
A("s_barrier")
A(f"s_mov_b32 s{S_T2}, 0")
L("L_gld1")
for i in range(4):
    A(f"s_mov_b32 m0, s{S_T4}")
    A(f"s_add_u32 s{S_T4}, s{S_T4}, 1024")
    A(f"buffer_load_dwordx4 v3, {SC_}, s{S_T3} offen{NT} lds")
    A(f"s_add_u32 s{S_T3}, s{S_T3}, 8192")
A(f"s_add_u32 s{S_T2}, s{S_T2}, 1")
A(f"s_cmp_lt_u32 s{S_T2}, 8")
A("s_cbranch_scc1 L_gld1")
A("s_branch L_gld5")
L("L_gld2")
A(f"s_cmp_eq_u32 s{S_T5}, 1")
A("s_cbranch_scc1 L_gld3")
srd(SRD_C, P_W1, 512 * 3584)
A(f"s_lshl_b32 s{S_T3}, s{S_SUB}, 6")
A(f"s_movk_i32 s{S_T1}, 3584")
A(f"v_mul_lo_u32 v13, v3, s{S_T1}")
A("v_add_u32 v13, v13, v12")
if CFG["touch2"]:
    for i in range(14):
        A(f"s_add_u32 s{S_T1}, s{S_T3}, {i*131072}")
        A(f"s_load_dword s{64+i}, s[{P_W1}:{P_W1+1}], s{S_T1}")
A("s_barrier")
A(f"s_mov_b32 s{S_T1}, {L_WX}")
A(f"s_mov_b32 s{S_T2}, 0")
L("L_gld4")
for i in range(4):
    A(f"s_mov_b32 m0, s{S_T1}")
    A(f"s_add_u32 s{S_T1}, s{S_T1}, 1024")
    A(f"buffer_load_dwordx4 v13, {SC_}, s{S_T3} offen{NT} lds")
    A(f"s_add_u32 s{S_T3}, s{S_T3}, {16*3584}")
if CFG["mwin"]:
    A(f"s_waitcnt vmcnt({CFG['mwin']})")
A(f"s_add_u32 s{S_T2}, s{S_T2}, 1")
A(f"s_cmp_lt_u32 s{S_T2}, 8")
A("s_cbranch_scc1 L_gld4")
A("s_branch L_gld5")
L("L_gld3")
srd(SRD_C, P_W2, 1792 * 1024)
A("v_lshl_add_u32 v14, v9, 10, v11")
A("v_xor_b32 v15, 32, v14")
A(f"s_lshl_b32 s{S_T3}, s{S_SUB}, 15")
if CFG["touch2"]:
    A(f"s_load_dword s64, s[{P_W2}:{P_W2+1}], s{S_T3}")
    A(f"s_load_dword s65, s[{P_B1}:{P_B1+1}], 0")
A("s_barrier")
A(f"s_mov_b32 s{S_T1}, {L_W2}")
A(f"s_mov_b32 s{S_T2}, 0")
L("L_gld6")
for be in range(8):
    A(f"s_mov_b32 m0, s{S_T1}")
    A(f"s_add_u32 s{S_T1}, s{S_T1}, 1024")
    A(f"s_add_u32 s{S_T4}, s{S_T3}, {be*4096}")
    A(f"buffer_load_dwordx4 v{14 + (be & 1)}, {SC_}, s{S_T4} offen{NT} lds")
    if CFG["mwin"] and be % 4 == 3:
        A(f"s_waitcnt vmcnt({CFG['mwin']})")
A(f"s_add_u32 s{S_T3}, s{S_T3}, 256")
A(f"s_add_u32 s{S_T2}, s{S_T2}, 1")
A(f"s_cmp_lt_u32 s{S_T2}, 4")
A("s_cbranch_scc1 L_gld6")
L("L_gld5")
A("s_waitcnt vmcnt(0)")
stamp(4)
A("s_barrier")
A("s_branch L_exit")

begin("qc")
C("---- q projection: wave 6 loads and computes everything")
A("v_mov_b32 v16, 0")
A("v_mov_b32 v17, 0")
A(f"ds_write_b64 v16, v[16:17] offset:{L_TAG}")
post_entry()
srd(SRD_A, P_X, 2048)
A(f"buffer_load_dwordx4 v[16:19], v2, {SA}, 0 offen")
A(f"buffer_load_dwordx4 v[20:23], v2, {SA}, 0 offen offset:1024")
if CFG["touch"]:
    A(f"s_lshl_b32 s{S_T1}, s{S_X}, 4")
    A(f"s_add_u32 s{S_T1}, s{S_T1}, s{S_A}")
    A(f"s_lshl_b32 s{S_T1}, s{S_T1}, 9")
    A(f"s_add_u32 s{S_T1}, s{S_T1}, {WS_XQA}")
    A("s_mov_b32 exec_hi, 0")
    A(f"buffer_load_dwordx4 v[72:75], v2, {WS}, s{S_T1} offen sc1")
    A("s_mov_b32 exec_hi, -1")
srd(SRD_B, P_WQ, 0x400000)
A("v_bfe_u32 v13, v0, 1, 3")
A("v_lshlrev_b32 v13, 13, v13")
A("v_lshl_add_u32 v13, v4, 5, v13")
A("v_lshl_add_u32 v13, v10, 4, v13")
A(f"s_and_b32 s{S_B}, s{S_A}, 1")
A(f"s_lshl_b32 s{S_T0}, s{S_B}, 21")
A(f"s_lshl_b32 s{S_T1}, s{S_X}, 10")
A(f"s_add_u32 s{S_T0}, s{S_T0}, s{S_T1}")
A(f"s_lshr_b32 s{S_T1}, s{S_A}, 1")
A(f"s_lshl_b32 s{S_T1}, s{S_T1}, 7")
A(f"s_add_u32 s{S_T0}, s{S_T0}, s{S_T1}")
A(f"s_mov_b32 s{S_T1}, {L_WQ}")
L("L_qc1")
for i in range(4):
    A(f"s_mov_b32 m0, s{S_T1}")
    A(f"s_add_u32 s{S_T1}, s{S_T1}, 1024")
    A(f"buffer_load_dwordx4 v13, {SB}, s{S_T0} offen{NT} lds")
    A(f"s_add_u32 s{S_T0}, s{S_T0}, 0x10000")
A(f"s_cmp_lt_u32 s{S_T1}, {L_WQ + 32768}")
A("s_cbranch_scc1 L_qc1")
stamp(10)
L("L_dry")
gv_common()
A("v_lshrrev_b32 v12, 2, v0")
A("v_lshlrev_b32 v12, 6, v12")
A("v_lshl_add_u32 v12, v10, 5, v12")
A("v_bfe_u32 v13, v0, 1, 1")
A("v_lshl_add_u32 v12, v13, 3, v12")
A("v_lshlrev_b32 v13, 10, v10")
A("v_lshl_add_u32 v13, v4, 4, v13")
A(f"s_lshl_b32 s{S_T1}, s{S_B}, 9")
A(f"v_add_u32 v13, s{S_T1}, v13")
A("v_lshrrev_b32 v14, 5, v0")
A("v_lshlrev_b32 v14, 10, v14")
A("v_and_b32 v15, 31, v0")
A("v_lshl_add_u32 v14, v15, 3, v14")
C("exchange lane map: n=l&15<8: b=n&1, half2=(n>>1)&1, cs=(n>>2)&1 ; XQ off = cs*256 + b*128 + g*32 + half2*16")
A("v_bfe_u32 v70, v0, 2, 1")
A("v_lshlrev_b32 v69, 6, v70")
A("v_lshl_add_u32 v69, v4, 4, v69")
A("v_lshl_add_u32 v69, v10, 11, v69")
A("v_lshlrev_b32 v70, 8, v70")
A("v_lshl_add_u32 v70, v10, 7, v70")
A("v_lshl_add_u32 v70, v4, 5, v70")
A("v_bfe_u32 v15, v0, 1, 1")
A("v_lshl_add_u32 v70, v15, 4, v70")
A(f"s_lshl_b32 s{S_T5}, s{S_X}, 12")
A(f"s_lshl_b32 s{S_T1}, s{S_A}, 7")
A(f"s_add_u32 s{S_T5}, s{S_T5}, s{S_T1}")
A(f"s_lshl_b32 s{S_T1}, s{S_X}, 4")
A(f"s_add_u32 s{S_T1}, s{S_T1}, s{S_A}")
A(f"s_lshl_b32 s62, s{S_T1}, 9")
A(f"s_xor_b32 s63, s62, 512")
A(f"s_add_u32 s64, s62, {WS_XQB}")
A(f"s_add_u32 s62, s62, {WS_XQA}")
A(f"s_add_u32 s65, s63, {WS_XQB}")
A(f"s_add_u32 s63, s63, {WS_XQA}")
A("s_mov_b32 s66, 0xcccccccc")
A("s_mov_b32 s67, 0xcccccccc")
A("s_mov_b32 s68, 0xf0f0f0f0")
A("s_mov_b32 s69, 0xf0f0f0f0")
stamp(11)
A(f"s_waitcnt vmcnt({32 + CFG['touch']})")
stamp(12)
unpack(24, 16, 4)
unpack(32, 20, 4)
layernorm([24, 32], 2, 44, [16, 20])
A(f"ds_write_b64 v12, v[16:17] offset:{L_XN}")
A(f"ds_write_b64 v12, v[18:19] offset:{L_XN + 16}")
A(f"ds_write_b64 v12, v[20:21] offset:{L_XN + 1024}")
A(f"ds_write_b64 v12, v[22:23] offset:{L_XN + 1024 + 16}")
A("s_waitcnt lgkmcnt(0)")
XA = 96
for kp in range(8):
    A(f"ds_read_b128 v[{XA+4*kp}:{XA+4*kp+3}], v13 offset:{L_XN + kp*64}")
stamp(1)
A("v_mov_b32 v16, 0")
WF = 24
QD = 144
for kp in range(8):
    if kp == 7:
        C("launch tag from wave 7 (it rewrites the slot until echoed)")
        A("s_cbranch_execz L_dry1")
        lds_wait(L_TAG + 4, 17, 18)
        L("L_dry1")
        A(f"ds_read_b64 v[58:59], v16 offset:{L_TAG}")
        A(f"ds_read_b64 v[62:63], v16 offset:{L_TAG}")
        A("s_waitcnt lgkmcnt(0)")
        A(f"ds_write_b32 v16, v58 offset:{L_TAG + 8}")
    A(f"s_waitcnt vmcnt({28 - 4*kp})")
    if kp == 7:
        stamp(2)
        pass
    for ct in range(4):
        for h in range(2):
            r = WF + ((kp & 1) * 4 + ct) * 4 + 2 * h
            A(f"ds_read_b64_tr_b16 v[{r}:{r+1}], v14 offset:{L_WQ + kp*4096 + h*2048 + ct*256}")
    for ct in range(4):
        A(f"s_waitcnt lgkmcnt({6 - 2*ct})")
        mfma(QD + 4 * ct, WF + ((kp & 1) * 4 + ct) * 4, XA + 4 * kp, None if kp == 0 else QD + 4 * ct)
C("select: lo half cts (0,1) -> v[24:25], hi half cts (2,3) -> v[26:27]")
nop(5)
for hf in range(2):
    a, b = QD + 8 * hf, QD + 8 * hf + 4
    for j in range(2):
        A(f"v_cndmask_b32 v{28+j}, v{a+j}, v{a+2+j}, s[66:67]")
        A(f"v_cndmask_b32 v{30+j}, v{b+j}, v{b+2+j}, s[66:67]")
    for j in range(2):
        A(f"v_cndmask_b32 v{24+2*hf+j}, v{28+j}, v{30+j}, s[68:69]")
A("s_cbranch_execz L_dry2")
A(f"s_cmp_eq_u32 s{S_B}, 0")
A(f"s_cselect_b64 vcc, -1, 0")
set_exec(0x00ff00ff00ff00ff)
A("v_cndmask_b32 v56, v24, v26, vcc")
A("v_cndmask_b32 v57, v25, v27, vcc")
A("v_cndmask_b32 v60, v26, v24, vcc")
A("v_cndmask_b32 v61, v27, v25, vcc")
A(f"buffer_store_dwordx4 v[56:59], v70, {WS}, s{63 if CFG['dual'] else 65} offen{'' if CFG['dual'] else ' sc1'}")
stamp(6)
lx, lxe, lxs = newlbl("Lx"), newlbl("Lxe"), newlbl("Lxs")
A(f"s_mov_b32 s{S_TO}, {CFG['timeout']}")
L(lx)
if CFG["dual"]:
    A(f"s_cmp_lg_u32 s{S_TO}, {CFG['timeout'] - 4}")
    A(f"s_cbranch_scc1 {lxs}")
    C("partner not seen through L2 yet: also send the coherent copy")
    A(f"buffer_store_dwordx4 v[56:59], v70, {WS}, s65 offen sc1")
    L(lxs)
A(f"s_and_b32 s{S_T0}, s{S_TO}, 7")
A(f"s_cmp_eq_u32 s{S_T0}, 1")
A(f"s_cselect_b32 s{S_T1}, s64, s{62 if CFG['dual'] else 64}")
A(f"buffer_load_dwordx4 v[24:27], v70, {WS}, s{S_T1} offen sc1")
A(f"s_sub_u32 s{S_TO}, s{S_TO}, 1")
A(f"s_cbranch_scc1 {lxe}")
A("s_waitcnt vmcnt(0)")
A("v_cmp_ne_u64 vcc, v[26:27], v[58:59]")
A("s_cmp_lg_u64 vcc, 0")
A(f"s_cbranch_scc1 {lx}")
L(lxe)
A("s_waitcnt vmcnt(0)")
A("v_pk_add_f32 v[60:61], v[60:61], v[24:25]")
A("v_cvt_pk_bf16_f32 v60, v60, v61")
nop(2)
A("v_mov_b32_dpp v61, v60 quad_perm:[2,3,0,1] row_mask:0xf bank_mask:0xf")
set_exec(0x0033003300330033)
A(f"buffer_store_dwordx4 v[60:63], v69, {WS}, s{S_T5} offen sc1")
if CFG["dual"]:
    C("always leave a coherent copy for the partner")
    set_exec(0x00ff00ff00ff00ff)
    A(f"buffer_store_dwordx4 v[56:59], v70, {WS}, s65 offen sc1")
A("s_mov_b64 exec, -1")
stamp(3)
A("s_branch L_qm1")
begin("qm2")
L("L_qm1")
A(f"s_cmp_eq_u32 s{S_ROLE}, 0")
A("s_cbranch_scc1 L_exit")
A("s_barrier")
A(f"v_mov_b32 v{V_T}, 0")
A(f"ds_read_b64 v[{TT+2}:{TT+3}], v{V_T} offset:{L_TAG}")
A(f"ds_read_b128 v[{V_TG}:{V_TG+3}], v{V_T} offset:{L_TAG + 16}")
A(f"s_cmp_eq_u32 s{S_ROLE}, 2")
A("s_cbranch_scc1 L_F")

C("==== E: wo projection, 8 waves: head=w&3, col half=w>>2; wave gathers records 2w,2w+1")
V_WX = 16
A(f"s_lshl_b32 s{S_T1}, s{S_X}, 4")
A(f"s_lshl_b32 s{S_T2}, s{S_WAVE}, 1")
A(f"s_add_u32 s{S_T1}, s{S_T1}, s{S_T2}")
A(f"s_mul_i32 s{S_T1}, s{S_T1}, {RECP}")
A(f"s_add_u32 s{S_PNA}, s{S_T1}, {WS_PNA if CFG['dual'] else WS_PNB}")
A(f"s_add_u32 s{S_PNB}, s{S_T1}, {WS_PNB}")
EA0, EA1, EA2, EA3, EA4, EA5 = V_T + 36, V_T + 37, V_T + 38, V_T + 39, V_T + 2, V_T + 3
C("stats gather addr: lane<8: (l>>2)*RECP + (l&3)*16 (+1024)")
A(f"v_lshrrev_b32 v{EA0}, 2, v0")
A(f"s_movk_i32 s{S_T2}, {RECP}")
A(f"v_mul_lo_u32 v{EA0}, v{EA0}, s{S_T2}")
A(f"v_and_b32 v{EA1}, 3, v0")
A(f"v_lshl_add_u32 v{EA0}, v{EA1}, 4, v{EA0}")
A(f"s_mul_i32 s{S_T2}, s{S_WAVE}, {2*PNP}")
A(f"s_add_u32 s{S_T2}, s{S_T2}, {L_PS}")
A(f"v_add_u32 v{EA1}, s{S_T2}, v2")
A(f"s_lshl_b32 s{S_T2}, s{S_WAVE}, 7")
A(f"v_add_u32 v{EA2}, s{S_T2}, v2")
A(f"s_and_b32 s{S_T4}, s{S_WAVE}, 3")
A(f"s_lshr_b32 s{S_T5}, s{S_WAVE}, 2")
A(f"s_movk_i32 s{S_T2}, {PNP}")
A(f"v_mul_lo_u32 v{EA3}, v6, s{S_T2}")
A(f"v_lshl_add_u32 v{EA3}, v4, 4, v{EA3}")
A(f"s_lshl_b32 s{S_T2}, s{S_T4}, 6")
A(f"s_add_u32 s{S_T2}, s{S_T2}, {L_PS}")
A(f"v_add_u32 v{EA3}, s{S_T2}, v{EA3}")
A(f"v_lshlrev_b32 v{EA4}, 6, v6")
A(f"s_lshl_b32 s{S_T2}, s{S_T4}, 4")
A(f"v_add_u32 v{EA4}, s{S_T2}, v{EA4}")
A(f"s_lshl_b32 s{S_T2}, s{S_T4}, 9")
A(f"s_lshl_b32 s{S_T3}, s{S_T5}, 8")
A(f"s_add_u32 s{S_T2}, s{S_T2}, s{S_T3}")
A(f"v_lshl_add_u32 v{EA5}, v0, 2, s{S_T2}")
C("weights tr-read addr: WO + hd*16384 + ch*512 + (l>>5)*1024 + (l&31)*8")
A(f"v_lshrrev_b32 v{TT}, 5, v0")
A(f"v_lshlrev_b32 v{TT}, 10, v{TT}")
A(f"v_and_b32 v{TT+1}, 31, v0")
A(f"v_lshl_add_u32 v{TT}, v{TT+1}, 3, v{TT}")
A(f"s_lshl_b32 s{S_T2}, s{S_T4}, 14")
A(f"s_lshl_b32 s{S_T3}, s{S_T5}, 9")
A(f"s_add_u32 s{S_T2}, s{S_T2}, s{S_T3}")
A(f"s_add_u32 s{S_T2}, s{S_T2}, {L_WO}")
A(f"v_add_u32 v{TT}, s{S_T2}, v{TT}")
A(f"v_mul_u32_u24 v{V_T+32}, 80, v4")
C("final-stage addresses (wave 0, lanes<32): RED read / AP write")
A(f"v_bfe_u32 v{V_T+33}, v0, 3, 1")
A(f"v_lshlrev_b32 v{V_T+33}, 8, v{V_T+33}")
A(f"v_lshl_add_u32 v{V_T+33}, v4, 7, v{V_T+33}")
A(f"v_and_b32 v{V_T+34}, 7, v0")
A(f"v_lshl_add_u32 v{V_T+33}, v{V_T+34}, 4, v{V_T+33}")
A(f"v_lshlrev_b32 v{V_T+34}, 11, v4")
A(f"v_lshl_add_u32 v{V_T+34}, v6, 4, v{V_T+34}")
A(f"s_lshl_b32 s{S_NT}, s{S_X}, 12")
A(f"s_lshl_b32 s{S_T1}, s{S_SUB}, 8")
A(f"s_add_u32 s{S_NT}, s{S_NT}, s{S_T1}")
A(f"s_add_u32 s{S_NT}, s{S_NT}, {WS_AP}")
if CFG["dry3"]:
    A("s_waitcnt lgkmcnt(0)")
    A("s_mov_b64 exec, 0")
    A("s_branch L_edry")
L("L_eret")
A("s_waitcnt vmcnt(0) lgkmcnt(0)")
A("s_barrier")
stamp(4)
L("L_edry")
C("DRY{")
for kp in range(4):
    for c in range(2):
        for h in range(2):
            r = V_WX + (kp * 2 + c) * 4 + 2 * h
            A(f"ds_read_b64_tr_b16 v[{r}:{r+1}], v{TT} offset:{kp*4096 + h*2048 + c*256}")
SG = V_G + 8
le, lee = newlbl("Le"), newlbl("Lee")
A(f"s_mov_b32 s{S_TO}, {CFG['timeout']}")
L(le)
A(f"s_and_b32 s{S_T0}, s{S_TO}, {CFG['bmask']}")
A(f"s_cmp_eq_u32 s{S_T0}, 1")
A(f"s_cselect_b32 s{S_T1}, s{S_PNB}, s{S_PNA}")
A(f"v_mov_b32 v{SG+2}, v{TT+2}")
A(f"v_mov_b32 v{SG+3}, v{TT+3}")
A("s_mov_b64 exec, 0xff")
A(f"buffer_load_dwordx4 v[{SG}:{SG+3}], v{EA0}, {WS}, s{S_T1} offen offset:1024 sc1")
A("s_mov_b64 exec, -1")
for i in range(2):
    r = V_G + i * 4
    A(f"buffer_load_dwordx4 v[{r}:{r+3}], v2, {WS}, s{S_T1} offen offset:{i*RECP} sc1")
A(f"s_sub_u32 s{S_TO}, s{S_TO}, 1")
A(f"s_cbranch_scc1 {lee}")
A("s_waitcnt vmcnt(0)")
tree3("v_max3_u32", "v_max_u32", range(V_G, V_G + 8), TT)
A(f"v_cmp_eq_u32 vcc, -1, v{TT}")
A(f"v_cmp_ne_u64 s[{S_T2}:{S_T3}], v[{SG+2}:{SG+3}], v[{TT+2}:{TT+3}]")
A(f"s_or_b64 vcc, vcc, s[{S_T2}:{S_T3}]")
A(f"s_cbranch_scc1 {le}")
L(lee)
A("s_waitcnt vmcnt(0)")
stamp(7)
for i in range(2):
    r = V_G + i * 4
    A(f"ds_write_b128 v{EA1}, v[{r}:{r+3}] offset:{i*PNP}")
A("s_mov_b64 exec, 0xff")
A(f"ds_write_b128 v{EA2}, v[{SG}:{SG+3}] offset:{L_STS}")
A("s_mov_b64 exec, -1")
A("s_waitcnt lgkmcnt(0)")
A("s_barrier")
SM0 = V_T + 4
MG = V_T + 8
FW = V_T + 24
A(f"ds_read_b64 v[{SM0}:{SM0+1}], v{EA4} offset:{L_STS}")
for kp in range(4):
    r = V_G + kp * 4
    A(f"ds_read_b128 v[{r}:{r+3}], v{EA3} offset:{kp*256}")
EA = V_S
A("s_waitcnt lgkmcnt(4)")
A(f"v_mov_b32 v{MG}, v{SM0}")
R8 = ROW_ALL[:3]
fill = []
for c in R8:
    fill.append(["s_nop 0", f"v_max_f32_dpp v{MG}, v{MG}, v{MG} {c} row_mask:0xf bank_mask:0xf"])
fill.append([f"v_sub_f32 v{SM0}, v{SM0}, v{MG}", f"v_exp_f32 v{SM0}, v{SM0}", "s_nop 0", f"v_mul_f32 v{MG}, v{SM0}, v{SM0+1}"])
for c in R8:
    fill.append(["s_nop 0", f"v_add_f32_dpp v{MG}, v{MG}, v{MG} {c} row_mask:0xf bank_mask:0xf"])
fill.append([f"v_rcp_f32 v{MG}, v{MG}", "s_nop 0", f"v_mul_f32 v{SM0}, v{SM0}, v{MG}"])
fi = 0
for kp in range(4):
    A(f"s_waitcnt lgkmcnt({3-kp})")
    for c in range(2):
        d = EA + c * 4
        mfma(d, V_G + kp * 4, V_WX + (kp * 2 + c) * 4, None if kp == 0 else d)
        for ins in fill[fi]:
            A(ins)
        fi += 1
assert fi == len(fill)
for r in range(4):
    A(f"ds_bpermute_b32 v{FW+r}, v{V_T+32}, v{SM0} offset:{4*r}")
A("s_waitcnt lgkmcnt(0)")
for c in range(2):
    d = EA + 4 * c
    A(f"v_mul_f32 v{d}, v{d}, v{FW}")
    A(f"v_mul_f32 v{d+2}, v{d+2}, v{FW+2}")
    A(f"v_fmac_f32 v{d}, v{d+1}, v{FW+1}")
    A(f"v_fmac_f32 v{d+2}, v{d+3}, v{FW+3}")
for c in range(2):
    d = EA + 4 * c
    A(f"v_add_f32 v{d}, v{d}, v{d+2}")
nop(2)
A(f"v_permlane16_swap_b32 v{EA}, v{EA+4}")
A(f"v_add_f32 v{EA}, v{EA}, v{EA+4}")
A(f"ds_write_b32 v{EA5}, v{EA} offset:{L_RED}")
A("s_waitcnt lgkmcnt(0)")
A("s_barrier")
A(f"s_cmp_lg_u32 s{S_WAVE}, 0")
A("s_cbranch_scc1 L_exit")
A("s_mov_b32 exec_hi, 0")
for i in range(4):
    A(f"ds_read_b128 v[{V_G+4*i}:{V_G+4*i+3}], v{V_T+33} offset:{L_RED + i*512}")
A("s_waitcnt lgkmcnt(0)")
for j in (0, 2):
    A(f"v_pk_add_f32 v[{V_G+j}:{V_G+j+1}], v[{V_G+j}:{V_G+j+1}], v[{V_G+4+j}:{V_G+5+j}]")
    A(f"v_pk_add_f32 v[{V_G+8+j}:{V_G+9+j}], v[{V_G+8+j}:{V_G+9+j}], v[{V_G+12+j}:{V_G+13+j}]")
for j in (0, 2):
    A(f"v_pk_add_f32 v[{V_G+j}:{V_G+j+1}], v[{V_G+j}:{V_G+j+1}], v[{V_G+8+j}:{V_G+9+j}]")
tag(V_G, V_TG)
A(f"buffer_store_dwordx4 v[{V_G}:{V_G+3}], v{V_T+34}, {WS}, s{S_NT} offen sc1")
stamp(8)
A("s_branch L_exit")

C("}DRY")
L("L_F")
C("==== F: MLP. 8 waves gather (b=w>>2, 128-col quarter q=w&3); waves 0..3 also do w1/gelu/w2")
V_W2 = 128
FG = 48
HX = 64
C("x[b][128q + 4(l&31)..] ; b1[mi*32 + (l&31)]")
srd(SRD_A, P_X, 2048)
A("v_and_b32 v12, 31, v0")
A("v_lshlrev_b32 v13, 3, v12")
A(f"s_lshl_b32 s{S_T0}, s{S_WAVE}, 8")
A(f"buffer_load_dwordx2 v[{V_SM}:{V_SM+1}], v13, {SA}, s{S_T0} offen")
srd(SRD_C, P_B1, 3584)
A("v_lshlrev_b32 v13, 1, v12")
A(f"s_lshl_b32 s{S_T0}, s{S_SUB}, 6")
A(f"buffer_load_ushort v{V_SM+2}, v13, {SC_}, s{S_T0} offen")
C("gather addr: (l>>5)*4096 + (l&31)*16 ; soffset = AP + w*512 + i*8192")
GAD, HA, STW, STR = V_T, V_T + 1, V_T + 2, V_T + 3
A(f"v_lshrrev_b32 v{GAD}, 5, v0")
A(f"v_lshlrev_b32 v{GAD}, 12, v{GAD}")
A(f"v_lshl_add_u32 v{GAD}, v12, 4, v{GAD}")
A(f"s_lshl_b32 s{S_T0}, s{S_WAVE}, 9")
A(f"s_add_u32 s{S_T0}, s{S_T0}, {WS_AP}")
SX = 62
for i in range(4):
    A(f"s_add_u32 s{SX+i}, s{S_T0}, {i*8192}")
C("hn write addr (cols 4j.., j=l&31): w*256 + (j>>3)*64 + (j&3)*16 + ((j>>2)&1)*8")
A(f"v_lshrrev_b32 v{HA}, 3, v12")
A(f"v_lshlrev_b32 v{HA}, 6, v{HA}")
A("v_and_b32 v13, 3, v0")
A(f"v_lshl_add_u32 v{HA}, v13, 4, v{HA}")
A("v_bfe_u32 v13, v0, 2, 1")
A(f"v_lshl_add_u32 v{HA}, v13, 3, v{HA}")
A(f"s_lshl_b32 s{S_T0}, s{S_WAVE}, 8")
A(f"v_add_u32 v{HA}, s{S_T0}, v{HA}")
C("LN stats exchange: STS + w*8 ; read STS + b*32 (sentinel initialised)")
A(f"s_lshl_b32 s{S_T0}, s{S_WAVE}, 3")
A(f"v_mov_b32 v{STW}, s{S_T0}")
A(f"s_lshr_b32 s{S_T0}, s{S_WAVE}, 2")
A(f"s_lshl_b32 s{S_T0}, s{S_T0}, 5")
A(f"v_mov_b32 v{STR}, s{S_T0}")
A("v_mov_b32 v14, -1")
A("v_mov_b32 v15, -1")
A(f"ds_write_b64 v{STW}, v[14:15] offset:{L_STS}")
C("compute-wave addresses")
vw2_addr()
A(f"s_lshl_b32 s{S_T0}, s{S_WAVE}, 13")
A(f"s_add_u32 s{S_T1}, s{S_T0}, {L_W2}")
A(f"v_add_u32 v{VB0}, s{S_T1}, v{VA0}")
A(f"v_add_u32 v{VB1}, s{S_T1}, v{VA1}")
A(f"s_add_u32 s{S_T1}, s{S_T0}, {L_WX}")
A(f"v_lshl_add_u32 v{TT}, v0, 3, s{S_T1}")
A0, A1, A2, YAD = V_T + 36, V_T + 37, V_T + 38, V_T + 39
A(f"v_lshlrev_b32 v{A0}, 10, v10")
A(f"v_lshl_add_u32 v{A0}, v4, 4, v{A0}")
A(f"s_lshl_b32 s{S_T0}, s{S_WAVE}, 8")
A(f"v_add_u32 v{A0}, s{S_T0}, v{A0}")
A(f"v_lshlrev_b32 v{A1}, 7, v6")
A(f"v_lshl_add_u32 v{A1}, v4, 4, v{A1}")
A(f"v_add_u32 v{A1}, s{S_T0}, v{A1}")
C("h1 write addr: lane (b=l>>5, c=l&31): H1 + w*128 + b*64 + ((c>>2)&3)*16 + (c>>4)*8 + (c&3)*2")
A(f"v_lshrrev_b32 v{A2}, 5, v0")
A(f"v_lshlrev_b32 v{A2}, 6, v{A2}")
A("v_bfe_u32 v13, v0, 2, 2")
A(f"v_lshl_add_u32 v{A2}, v13, 4, v{A2}")
A("v_bfe_u32 v13, v0, 4, 1")
A(f"v_lshl_add_u32 v{A2}, v13, 3, v{A2}")
A("v_and_b32 v13, 3, v0")
A(f"v_lshl_add_u32 v{A2}, v13, 1, v{A2}")
A(f"s_lshl_b32 s{S_T1}, s{S_WAVE}, 7")
A(f"s_add_u32 s{S_T1}, s{S_T1}, {L_H1}")
A(f"v_add_u32 v{A2}, s{S_T1}, v{A2}")
C("B_ct operand addresses: (n>>1)==ct ? H1 + w*128 + (n&1)*64 + g*16 : ZERO")
BA = V_T + 24
A("v_lshlrev_b32 v13, 6, v10")
A("v_lshl_add_u32 v13, v4, 4, v13")
A(f"v_add_u32 v13, s{S_T1}, v13")
A(f"v_mov_b32 v14, {L_ZERO}")
A("v_bfe_u32 v15, v0, 1, 3")
for ct in range(8):
    A(f"v_cmp_eq_u32 vcc, {ct}, v15")
    A("s_nop 1")
    A(f"v_cndmask_b32 v{BA+ct}, v14, v13, vcc")
for j in range(4):
    A(f"v_mov_b32 v{16+j}, 0")
A(f"ds_write_b128 v14, v[16:19]")
C("Y store addr: (n&1)*2048 + (n>>1)*64 + g*16 ; soff = Y + mi*YP + w*512")
A(f"v_lshlrev_b32 v{YAD}, 11, v10")
A(f"v_lshl_add_u32 v{YAD}, v15, 6, v{YAD}")
A(f"v_lshl_add_u32 v{YAD}, v4, 4, v{YAD}")
S_Y = 70
A(f"s_mul_i32 s{S_Y}, s{S_SUB}, {YP}")
A(f"s_lshl_b32 s{S_T1}, s{S_WAVE}, 9")
A(f"s_add_u32 s{S_Y}, s{S_Y}, s{S_T1}")
A(f"s_add_u32 s{S_Y}, s{S_Y}, {WS_Y}")
A("v_lshlrev_b32 v3, 2, v0")
if CFG["dry3"]:
    A("s_waitcnt lgkmcnt(0)")
    A("s_mov_b64 exec, 0")
    A("s_branch L_fdry")
L("L_fret")
A("s_waitcnt vmcnt(0) lgkmcnt(0)")
unpack(HX, V_SM, 2)
A(f"v_lshlrev_b32 v{V_SM+2}, 16, v{V_SM+2}")
A("s_barrier")
stamp(4)
L("L_fdry")
C("DRY{")
A(f"s_cmp_ge_u32 s{S_WAVE}, 4")
A("s_cbranch_scc1 L_F1")
for kp in range(4):
    for ct in range(2):
        for h in range(2):
            r = V_WX + (kp * 2 + ct) * 4 + 2 * h
            A(f"ds_read_b64_tr_b16 v[{r}:{r+1}], v{TT} offset:{kp*2048 + h*1024 + ct*512}")
A("s_waitcnt lgkmcnt(0)")
for ct in range(8):
    for h in range(2):
        r = V_W2 + ct * 4 + 2 * h
        A(f"ds_read_b64_tr_b16 v[{r}:{r+1}], v{VB0 + (ct & 1)} offset:{(ct >> 1)*256 + h*4096}")
L("L_F1")


def f_loads():
    for i in range(4):
        r = FG + i * 4
        A(f"buffer_load_dwordx4 v[{r}:{r+3}], v{GAD}, {WS}, s{SX+i} offen sc1")


tpoll(f_loads, range(FG, FG + 16), TT, V_TG, CFG['fsl'])
stamp(7)
for j in (0, 2):
    A(f"v_pk_add_f32 v[{FG+j}:{FG+j+1}], v[{FG+j}:{FG+j+1}], v[{FG+4+j}:{FG+5+j}]")
    A(f"v_pk_add_f32 v[{FG+8+j}:{FG+9+j}], v[{FG+8+j}:{FG+9+j}], v[{FG+12+j}:{FG+13+j}]")
for j in (0, 2):
    A(f"v_pk_add_f32 v[{FG+j}:{FG+j+1}], v[{FG+j}:{FG+j+1}], v[{FG+8+j}:{FG+9+j}]")
swap_steps("v_add_f32", [FG + j for j in range(4)], [FG + 4 + j for j in range(4)], which=(32,))
HP = FG + 8
pack(HP, FG, 2)
unpack(FG, HP, 2)
for j in range(4):
    A(f"v_add_f32 v{HX+j}, v{HX+j}, v{FG+j}")
pack(HP, HX, 2)
unpack(HX, HP, 2)
C("local stats around pivot c = h[first]")
A("s_nop 0")
A(f"v_readfirstlane_b32 s{S_T2}, v{HX}")
A("s_nop 1")
for j in range(4):
    A(f"v_subrev_f32 v{FG+j}, s{S_T2}, v{HX+j}")
SS, SQ = FG + 10, FG + 11
A(f"v_add_f32 v{SS}, v{FG}, v{FG+1}")
A(f"v_mul_f32 v{SQ}, v{FG}, v{FG}")
A(f"v_add_f32 v{FG+4}, v{FG+2}, v{FG+3}")
A(f"v_fmac_f32 v{SQ}, v{FG+1}, v{FG+1}")
A(f"v_add_f32 v{SS}, v{SS}, v{FG+4}")
A(f"v_fmac_f32 v{SQ}, v{FG+2}, v{FG+2}")
A(f"v_fmac_f32 v{SQ}, v{FG+3}, v{FG+3}")
nop(1)
dpp_steps("v_add_f32", [SS, SQ], ROW_ALL)
swap_steps("v_add_f32", [SS, SQ], [FG + 4, FG + 5], which=(16,))
C("mean_w = c + s/128 ; M2_w = ss - s*s/128")
A(f"v_mul_f32 v{FG+4}, {f2u(1.0/128):#x}, v{SS}")
A(f"v_fma_f32 v{SQ}, -v{FG+4}, v{SS}, v{SQ}")
A(f"v_add_f32 v{SS}, s{S_T2}, v{FG+4}")
A("s_mov_b64 exec, 1")
A(f"ds_write_b64 v{STW}, v[{SS}:{SQ}] offset:{L_STS}")
A("s_mov_b64 exec, -1")
l3, l3e = newlbl("Lst"), newlbl("Lste")
A(f"s_mov_b32 s{S_TO}, {CFG['timeout']}")
L(l3)
A(f"ds_read_b128 v[{FG}:{FG+3}], v{STR} offset:{L_STS}")
A(f"ds_read_b128 v[{FG+4}:{FG+7}], v{STR} offset:{L_STS + 16}")
A(f"s_sub_u32 s{S_TO}, s{S_TO}, 1")
A(f"s_cbranch_scc1 {l3e}")
A("s_waitcnt lgkmcnt(0)")
tree3("v_max3_u32", "v_max_u32", range(FG, FG + 8), TT)
A(f"v_cmp_eq_u32 vcc, -1, v{TT}")
A("s_cmp_lg_u64 vcc, 0")
A(f"s_cbranch_scc1 {l3}")
L(l3e)
A("s_waitcnt lgkmcnt(0)")
MEAN, VAR, TM = FG + 8, FG + 9, FG + 10
A(f"v_add_f32 v{MEAN}, v{FG}, v{FG+2}")
A(f"v_add_f32 v{TM}, v{FG+4}, v{FG+6}")
A(f"v_add_f32 v{VAR}, v{FG+1}, v{FG+3}")
A(f"v_add_f32 v{MEAN}, v{MEAN}, v{TM}")
A(f"v_add_f32 v{TM}, v{FG+5}, v{FG+7}")
A(f"v_mul_f32 v{MEAN}, 0.25, v{MEAN}" if False else f"v_mul_f32 v{MEAN}, {f2u(0.25):#x}, v{MEAN}")
A(f"v_add_f32 v{VAR}, v{VAR}, v{TM}")
for j in range(4):
    A(f"v_sub_f32 v{FG+2*j}, v{FG+2*j}, v{MEAN}")
A(f"v_mul_f32 v{TM}, v{FG}, v{FG}")
for j in range(1, 4):
    A(f"v_fmac_f32 v{TM}, v{FG+2*j}, v{FG+2*j}")
A(f"v_mul_f32 v{VAR}, {f2u(1.0/512):#x}, v{VAR}")
A(f"v_fmac_f32 v{VAR}, {f2u(0.25):#x}, v{TM}")
bf16r(MEAN, MEAN)
bf16r(VAR, VAR)
for j in range(4):
    A(f"v_sub_f32 v{FG+j}, v{HX+j}, v{MEAN}")
A(f"v_add_f32 v{VAR}, {f2u(1e-5):#x}, v{VAR}")
pack(HP + 4, FG, 2)
bf16r(VAR, VAR)
unpack(FG, HP + 4, 2)
A(f"v_sqrt_f32 v{VAR}, v{VAR}")
nop(1)
bf16r(VAR, VAR)
A(f"v_rcp_f32 v{VAR}, v{VAR}")
nop(1)
for j in range(4):
    A(f"v_mul_f32 v{FG+j}, v{FG+j}, v{VAR}")
pack(HP + 4, FG, 2)
A("s_mov_b32 exec_hi, 0")
A(f"ds_write_b64 v{HA}, v[{HP+4}:{HP+5}] offset:{L_HN}")
A("s_mov_b32 exec_hi, -1")
c0 = math.sqrt(2.0 / math.pi)
k0 = -2.0 * c0 * LOG2E
k1 = k0 * 0.044715
A(f"s_mov_b32 s{S_T1}, {f2u(k1):#x}")
A(f"v_mov_b32 v{TT}, {f2u(k0):#x}")
A("s_waitcnt lgkmcnt(0)")
A("s_barrier")
stamp(8)
A(f"s_cmp_ge_u32 s{S_WAVE}, 4")
A("s_cbranch_scc1 L_exit")
for kp in range(4):
    A(f"ds_read_b128 v[{V_Q+4*kp}:{V_Q+4*kp+3}], v{A0} offset:{L_HN + kp*64}")
for kp in range(4):
    A(f"s_waitcnt lgkmcnt({3-kp})")
    for ct in range(2):
        mfma(V_S + 4 * ct, V_WX + (kp * 2 + ct) * 4, V_Q + 4 * kp, None if kp == 0 else V_S + 4 * ct)
nop(6)
set_exec(MASK_N2)
A(f"ds_write_b128 v{A1}, v[{V_S}:{V_S+3}] offset:{L_RED}")
A(f"ds_write_b128 v{A1}, v[{V_S+4}:{V_S+7}] offset:{L_RED + 64}")
A("s_mov_b64 exec, -1")
A("s_waitcnt lgkmcnt(0)")
A("s_barrier")
U = 16
for wp in range(4):
    A(f"ds_read_b32 v{U+wp}, v3 offset:{L_RED + wp*256}")
A("s_waitcnt lgkmcnt(0)")
A(f"v_add_f32 v{U}, v{U}, v{U+1}")
A(f"v_add_f32 v{U+2}, v{U+2}, v{U+3}")
A(f"v_add_f32 v{U}, v{U}, v{U+2}")
bf16r(U, U)
A(f"v_add_f32 v{U}, v{U}, v{V_SM+2}")
bf16r(U, U)
A(f"v_mul_f32 v{U+1}, v{U}, v{U}")
A(f"v_fma_f32 v{U+1}, v{U+1}, s{S_T1}, v{TT}")
A(f"v_mul_f32 v{U+1}, v{U+1}, v{U}")
A(f"v_exp_f32 v{U+1}, v{U+1}")
nop(1)
A(f"v_add_f32 v{U+1}, 1.0, v{U+1}")
A(f"v_rcp_f32 v{U+1}, v{U+1}")
nop(1)
A(f"v_mul_f32 v{U}, v{U}, v{U+1}")
A(f"v_cvt_pk_bf16_f32 v{U}, v{U}, v{U}")
A(f"ds_write_b16 v{A2}, v{U}")
BO = 32
for ct in range(8):
    A(f"ds_read_b128 v[{BO+4*ct}:{BO+4*ct+3}], v{BA+ct}")
YA = 24
for ct in range(8):
    A(f"s_waitcnt lgkmcnt({7-ct})")
    mfma(YA, V_W2 + 4 * ct, BO + 4 * ct, None if ct == 0 else YA)
nop(8)
tag(YA, V_TG)
A(f"buffer_store_dwordx4 v[{YA}:{YA+3}], v{YAD}, {WS}, s{S_Y} offen sc1")
stamp(9)
A("s_branch L_exit")
C("}DRY")
if CFG["dry2"]:
    for r, ret in ((1, "L_kret"), (2, "L_eret"), (3, "L_fret")):
        L(f"L_exit_{r}")
        A("s_cbranch_execnz L_exit")
        A("s_mov_b64 exec, -1")
        A(f"s_branch {ret}")
L("L_exit")
stamp_flush()
L("L_end")
A("s_endpgm")

out.append(f""".section .rodata,"a"
.p2align 6
.amdhsa_kernel {NAME}_kernel
  .amdhsa_next_free_vgpr 168
  .amdhsa_next_free_sgpr 102
  .amdhsa_accum_offset 168
  .amdhsa_group_segment_fixed_size 0
  .amdhsa_kernarg_size 104
  .amdhsa_user_sgpr_count 2
  .amdhsa_user_sgpr_kernarg_segment_ptr 1
  .amdhsa_system_sgpr_workgroup_id_x 1
.end_amdhsa_kernel""")

order = CFG_ORDER
lines = [l for b in order for l in BLK[b]]


def dry_pass(lines):
    res, indry, k = [], False, 0
    i = 0

    def is_mem(t):
        return t.startswith(("buffer_", "global_", "s_load", "s_atomic", "s_barrier"))

    def exec_write(t):
        return t.startswith(("s_mov_b64 exec", "s_mov_b32 exec", "s_and_b64 exec"))

    def restores(t):
        return t in ("s_mov_b64 exec, -1", "s_mov_b32 exec_hi, -1")
    open_span, masked, nd = None, False, False
    for l in lines:
        t = l.strip()
        if t == "; DRY{":
            indry = True
            i += 1
            continue
        if t == "; }DRY":
            assert open_span is None or True
            if open_span:
                res.append(open_span + ":")
                open_span = None
            masked = False
            indry = False
            continue
        if not (indry and CFG["dry2"]):
            if t not in ("; ND{", "; }ND"):
                res.append(l)
            continue
        if t == "; ND{":
            nd = True
            if not open_span:
                k += 1
                open_span = f"L_sk{k}"
                res.append(f"    s_cbranch_execz {open_span}")
            continue
        if t == "; }ND":
            nd = False
            continue
        unsafe = nd or masked or is_mem(t) or exec_write(t)
        if masked and t == "s_branch L_exit":
            unsafe = False
            masked = False
        if t.endswith(" L_exit"):
            l = l + f"_{i}"
        if unsafe:
            if not open_span:
                k += 1
                open_span = f"L_sk{k}"
                res.append(f"    s_cbranch_execz {open_span}")
            res.append(l)
            if exec_write(t):
                masked = not restores(t)
        else:
            if open_span:
                res.append(open_span + ":")
                open_span = None
            res.append(l)
    return res


print("\n".join(dry_pass(lines)))
```

```python
import sys, struct, math

NAME = "sequential_preLN__sliding_block_cached__dense_activation_gelu__decode"

CFG = dict(nt=1, timeout=1 << 18, stamps=0, dual=1, tsleep0=10, tsleep=3, tsleepa=24, qsleep=0, mwin=4, touch=1, bmask=15, fsl=0, g1sl=0, g2sl=0, pf=0, pfw=16, touch2=1, kb0=6, kthm=0, kthn=8, dry=1, dry2=1, dry3=1, korder=0, ktouch=0, tl2=6, qrep=8, qsl=0)
for a in sys.argv[1:]:
    if "=" in a:
        k, v = a.split("=")
        CFG[k] = int(v)
NT = " nt" if CFG["nt"] else ""

WS_Q = 0x00000
RECP = 1152
WS_PNA = 0x10000
WS_PNB = 0x50000
WS_XQA = 0x90000
WS_XQB = 0x80000
WS_AP = 0xA8000
WS_Y = 0xB0000
YP = 4096 + 128
WS_TS = 0xF0000
WS_QR = 0x140000
WS_SIZE = 0x200000

L_QL = 0
L_XN = 0
L_SC = 2048
L_QR = 2048
L_HN = 4096
L_RED = 6144
L_STS = 8192
L_QS = 9216
L_H1 = 9216
L_ZERO = 9728
L_MX = 10240
L_LS = 10368
L_FLAG = 10496
L_TAG = 10512
L_FL2 = 10544
L_DUM = 10560
BIG = 11264
L_K = BIG
L_V = BIG + 65536
L_WQ = BIG
L_WO = BIG + 32768
L_WX = BIG + 32768
L_W2 = BIG + 65536
L_PS = BIG + 98304
PNP = 1040
LDS_BYTES = BIG + 131072

LOG2E = 1.4426950408889634
SCALE = 128 ** -0.5


def f2u(f):
    return struct.unpack("<I", struct.pack("<f", f))[0]


out = []


def A(s):
    out.append("    " + s)


def L(s):
    out.append(s + ":")


def C(s):
    out.append("    ; " + s)


def nop(n):
    while n > 0:
        k = min(n, 16)
        A(f"s_nop {k-1}")
        n -= k


_lbl = [0]


def newlbl(p="L"):
    _lbl[0] += 1
    return f"{p}_{_lbl[0]}"


P_X, P_K, P_V, P_WQ, P_WO, P_BX, P_W1, P_B1, P_W2, P_B2, P_OUT, P_DBG, P_WS = [36 + 2 * i for i in range(13)]
S_WAVE, S_X, S_A, S_B, S_SPL = 3, 4, 5, 6, 7
SRD_WS, SRD_A, SRD_B, SRD_C = 8, 12, 16, 20
S_T0, S_T1, S_T2, S_T3, S_T4, S_T5 = 24, 25, 26, 27, 28, 29
S_TO, S_ROLE, S_SUB, S_NT, S_PNA, S_PNB = 30, 31, 32, 33, 34, 35
S_Q = 36
S_TG = 100
WS = f"s[{SRD_WS}:{SRD_WS+3}]"
SA = f"s[{SRD_A}:{SRD_A+3}]"
SB = f"s[{SRD_B}:{SRD_B+3}]"
SC_ = f"s[{SRD_C}:{SRD_C+3}]"
V_ST = 1
S_DRY = 7
CFG_ORDER = ["head", "qc", "ldr", "gv", "att", "qm2"]
V_MSK = 5


def srd(d, p, size):
    A(f"s_mov_b32 s{d}, s{p}")
    A(f"s_mov_b32 s{d+1}, s{p+1}")
    A(f"s_mov_b32 s{d+2}, {size:#x}")
    A(f"s_mov_b32 s{d+3}, 0x00020000")


def stamp(slot):
    if CFG.get("probe", -1) == slot:
        A("s_memrealtime s[0:1]")
        A("s_waitcnt lgkmcnt(0)")
        A("s_mov_b32 s7, s0")
    if CFG["stamps"]:
        A("s_memrealtime s[0:1]")
        A("s_waitcnt lgkmcnt(0)")
        A(f"v_writelane_b32 v{V_ST}, s0, {slot}")


def stamp_flush():
    if not CFG["stamps"]:
        return
    if CFG["stamps"] == 2:
        A("s_mov_b64 exec, -1")
        A(f"v_mov_b32 v2, {L_TAG}")
        A("ds_read_b32 v3, v2")
        A("s_waitcnt lgkmcnt(0)")
        A(f"v_sub_u32 v3, v{V_ST}, v3")
        A("v_max_i32 v3, 0, v3")
        A("v_lshlrev_b32 v2, 2, v0")
        A("v_add_co_u32 v166, vcc, v166, v2")
        A("v_addc_co_u32 v167, vcc, 0, v167, vcc")
        A(f"v_cmp_ne_u32 vcc, 0, v{V_ST}")
        A("s_bitcmp1_b32 vcc_lo, 11")
        A("s_cbranch_scc0 L_end")
        A("s_and_b64 exec, vcc, 0x1fff")
        A("s_cbranch_execz L_end")
        A("global_atomic_umax v[166:167], v3, off offset:8")
        return
    A("s_mov_b64 exec, -1")
    A("s_lshl_b32 s0, s2, 10")
    A(f"s_lshl_b32 s1, s{S_WAVE}, 6")
    A("s_add_u32 s0, s0, s1")
    A(f"s_add_u32 s0, s0, {WS_TS}")
    A("v_lshlrev_b32 v2, 2, v0")
    A("s_mov_b64 exec, 0xffff")
    A(f"buffer_store_dword v{V_ST}, v2, {WS}, s0 offen")


def dpp_steps(op, regs, ctrls):
    for c in ctrls:
        pad = max(0, 2 - (len(regs) - 1))
        if pad:
            nop(pad)
        for r in regs:
            A(f"{op}_dpp v{r}, v{r}, v{r} {c} row_mask:0xf bank_mask:0xf")


ROW_ALL = ["quad_perm:[1,0,3,2]", "quad_perm:[2,3,0,1]", "row_half_mirror", "row_mirror"]
ROW_HI = ["row_ror:4", "row_ror:8"]


def swap_steps(op, regs, tmps, which=(16, 32)):
    for wd in which:
        sw = f"v_permlane{wd}_swap_b32"
        for r, t in zip(regs, tmps):
            A(f"v_mov_b32 v{t}, v{r}")
        pad = max(0, 2 - (len(regs) - 1))
        if pad:
            nop(pad)
        for r, t in zip(regs, tmps):
            A(f"{sw} v{r}, v{t}")
        for r, t in zip(regs, tmps):
            A(f"{op} v{r}, v{r}, v{t}")


def allreduce(op, regs, tmps):
    nop(2)
    dpp_steps(op, regs, ROW_ALL)
    swap_steps(op, regs, tmps)


def lds_wait(flag_off, vt, va, sleep=0):
    l, e = newlbl("Lw"), newlbl("Lwe")
    A(f"v_mov_b32 v{va}, {flag_off}")
    A(f"s_mov_b32 s{S_TO}, {CFG['timeout']}")
    L(l)
    if sleep:
        A(f"s_sleep {sleep}")
    A(f"ds_read_b32 v{vt}, v{va}")
    A(f"s_sub_u32 s{S_TO}, s{S_TO}, 1")
    A(f"s_cbranch_scc1 {e}")
    A("s_waitcnt lgkmcnt(0)")
    A(f"v_readfirstlane_b32 s{S_T0}, v{vt}")
    A(f"s_cmp_eq_u32 s{S_T0}, 0")
    A(f"s_cbranch_scc1 {l}")
    L(e)
    A("s_waitcnt lgkmcnt(0)")


def lds_set(flag_off, vt, va):
    A("s_waitcnt lgkmcnt(0)")
    A(f"v_mov_b32 v{va}, {flag_off}")
    A(f"v_mov_b32 v{vt}, 1")
    A(f"ds_write_b32 v{va}, v{vt}")


def lds_sync(cnt_off, n, vt, va):
    l, e = newlbl("Ls"), newlbl("Lse")
    A(f"v_mov_b32 v{va}, {cnt_off}")
    A(f"v_mov_b32 v{vt}, 1")
    A("s_mov_b64 exec, 1")
    A(f"ds_add_u32 v{va}, v{vt}")
    A("s_mov_b64 exec, -1")
    A(f"s_mov_b32 s{S_TO}, {CFG['timeout']}")
    L(l)
    A(f"ds_read_b32 v{vt}, v{va}")
    A(f"s_sub_u32 s{S_TO}, s{S_TO}, 1")
    A(f"s_cbranch_scc1 {e}")
    A("s_waitcnt lgkmcnt(0)")
    A(f"v_readfirstlane_b32 s{S_T0}, v{vt}")
    A(f"s_cmp_lt_u32 s{S_T0}, {n}")
    A(f"s_cbranch_scc1 {l}")
    L(e)
    A("s_waitcnt lgkmcnt(0)")


def tree3(op3, op2, regs, t):
    regs = list(regs)
    A(f"{op3} v{t}, v{regs[0]}, v{regs[1]}, v{regs[2]}")
    i = 3
    while i + 1 < len(regs):
        A(f"{op3} v{t}, v{t}, v{regs[i]}, v{regs[i+1]}")
        i += 2
    if i < len(regs):
        A(f"{op2} v{t}, v{t}, v{regs[i]}")


def tag(quad, tg):
    for j in range(4):
        A(f"v_add_u32 v{quad+j}, 0x200, v{quad+j}")
    for j in range(4):
        A(f"v_bfi_b32 v{quad+j}, v{V_MSK}, v{tg+j}, v{quad+j}")


def tpoll(loads, regs, t, tg, sleep=0):
    l, e = newlbl("Lt"), newlbl("Lte")
    regs = list(regs)
    A(f"s_mov_b32 s{S_TO}, {CFG['timeout']}")
    L(l)
    if sleep:
        A(f"s_sleep {sleep}")
    loads()
    A(f"s_sub_u32 s{S_TO}, s{S_TO}, 1")
    A(f"s_cbranch_scc1 {e}")
    A("s_waitcnt vmcnt(0)")
    for i, r in enumerate(regs):
        A(f"v_xor_b32 v{r}, v{r}, v{tg + (i & 3)}")
    tree3("v_or3_b32", "v_or_b32", regs, t)
    A(f"v_and_b32 v{t}, v{V_MSK}, v{t}")
    A(f"v_cmp_ne_u32 vcc, 0, v{t}")
    A("s_cmp_lg_u64 vcc, 0")
    A(f"s_cbranch_scc1 {l}")
    L(e)
    A("s_waitcnt vmcnt(0)")


def tpoll2(loads, nld, bases, nreg, t, tg, consume):
    l, eA, eB, done = newlbl("Lu"), newlbl("LuA"), newlbl("LuB"), newlbl("Lud")

    def check(base, target):
        A(f"s_waitcnt vmcnt({nld})")
        regs = list(range(base, base + nreg))
        for i, r in enumerate(regs):
            A(f"v_xor_b32 v{r}, v{r}, v{tg + (i & 3)}")
        tree3("v_or3_b32", "v_or_b32", regs, t)
        A(f"v_and_b32 v{t}, v{V_MSK}, v{t}")
        A(f"v_cmp_ne_u32 vcc, 0, v{t}")
        A("s_cmp_eq_u64 vcc, 0")
        A(f"s_cbranch_scc1 {target}")
    A(f"s_mov_b32 s{S_TO}, {CFG['timeout']}")
    loads(bases[0])
    L(l)
    loads(bases[1])
    check(bases[0], eA)
    loads(bases[0])
    check(bases[1], eB)
    A(f"s_sub_u32 s{S_TO}, s{S_TO}, 1")
    A(f"s_cbranch_scc0 {l}")
    A("s_waitcnt vmcnt(0)")
    L(eA)
    consume(bases[0])
    A(f"s_branch {done}")
    L(eB)
    consume(bases[1])
    L(done)


def bf16r(dst, src):
    A(f"v_cvt_pk_bf16_f32 v{dst}, v{src}, v{src}")
    A(f"v_lshlrev_b32 v{dst}, 16, v{dst}")


def unpack(dst, src, n):
    for i in range(n):
        A(f"v_lshlrev_b32 v{dst+2*i}, 16, v{src+i}")
        A(f"v_and_b32 v{dst+2*i+1}, 0xffff0000, v{src+i}")


def pack(dst, src, n):
    for i in range(n):
        A(f"v_cvt_pk_bf16_f32 v{dst+i}, v{src+2*i}, v{src+2*i+1}")


def layernorm(xs, nb, tmp, outp):
    s = [tmp + i for i in range(nb)]
    q = [tmp + nb + i for i in range(nb)]
    t = [tmp + 2 * nb + i for i in range(nb)]
    mb = [tmp + 3 * nb + i for i in range(nb)]
    d = [tmp + 4 * nb + 8 * i for i in range(nb)]
    for i in range(nb):
        x = xs[i]
        A(f"v_add_f32 v{s[i]}, v{x}, v{x+1}")
        A(f"v_add_f32 v{t[i]}, v{x+2}, v{x+3}")
        A(f"v_add_f32 v{q[i]}, v{x+4}, v{x+5}")
        A(f"v_add_f32 v{mb[i]}, v{x+6}, v{x+7}")
        A(f"v_add_f32 v{s[i]}, v{s[i]}, v{t[i]}")
        A(f"v_add_f32 v{q[i]}, v{q[i]}, v{mb[i]}")
        A(f"v_add_f32 v{s[i]}, v{s[i]}, v{q[i]}")
    allreduce("v_add_f32", s, t)
    for i in range(nb):
        A(f"v_mul_f32 v{s[i]}, {f2u(1.0/512):#x}, v{s[i]}")
    for i in range(nb):
        x = xs[i]
        for j in range(8):
            A(f"v_sub_f32 v{d[i]+j}, v{x+j}, v{s[i]}")
        A(f"v_mul_f32 v{q[i]}, v{d[i]}, v{d[i]}")
        for j in range(1, 8):
            A(f"v_fmac_f32 v{q[i]}, v{d[i]+j}, v{d[i]+j}")
        bf16r(mb[i], s[i])
    nop(2)
    dpp_steps("v_add_f32", q, ROW_ALL)
    for i in range(nb):
        x = xs[i]
        for j in range(8):
            A(f"v_sub_f32 v{d[i]+j}, v{x+j}, v{mb[i]}")
        pack(outp[i], d[i], 4)
        unpack(d[i], outp[i], 4)
    swap_steps("v_add_f32", q, t)
    for i in range(nb):
        A(f"v_mul_f32 v{q[i]}, {f2u(1.0/512):#x}, v{q[i]}")
        bf16r(q[i], q[i])
        A(f"v_add_f32 v{q[i]}, {f2u(1e-5):#x}, v{q[i]}")
        bf16r(q[i], q[i])
        A(f"v_sqrt_f32 v{q[i]}, v{q[i]}")
        nop(1)
        bf16r(q[i], q[i])
        A(f"v_rcp_f32 v{q[i]}, v{q[i]}")
    nop(1)
    for i in range(nb):
        for j in range(8):
            A(f"v_mul_f32 v{d[i]+j}, v{d[i]+j}, v{q[i]}")
        pack(outp[i], d[i], 4)


def mfma(d, a, b, c=None):
    cc = f"v[{c}:{c+3}]" if c is not None else "0"
    A(f"v_mfma_f32_16x16x32_bf16 v[{d}:{d+3}], v[{a}:{a+3}], v[{b}:{b+3}], {cc}")


MASK_N2 = 0x0003000300030003
MASK_N4 = 0x000f000f000f000f


def set_exec(mask):
    A(f"s_mov_b32 exec_lo, {mask & 0xffffffff:#x}")
    A(f"s_mov_b32 exec_hi, {mask >> 32:#x}")


def tag_poll(sleep0, sel, barrier=False):
    lt, lte = newlbl(), newlbl()
    A(f"s_and_b32 s{S_T1}, s{sel}, 3")
    A(f"s_lshl_b32 s{S_T1}, s{S_T1}, 6")
    A(f"s_mov_b32 s{S_TO}, {CFG['timeout']}")
    if sleep0:
        A(f"s_sleep {sleep0}")
    if CFG["tl2"]:
        C("first attempts through the caches, one replica line each (a line is never re-read that way)")
        for r in range(4):
            A(f"s_load_dwordx2 s[{S_TG}:{S_TG+1}], s[{P_DBG}:{P_DBG+1}], {64*r}")
            A("s_waitcnt lgkmcnt(0)")
            A(f"s_cmp_lg_u32 s{S_TG+1}, 0")
            A(f"s_cbranch_scc1 {lte}")
            A(f"s_sleep {CFG['tl2']}")
    L(lt)
    A(f"s_load_dwordx2 s[{S_TG}:{S_TG+1}], s[{P_DBG}:{P_DBG+1}], s{S_T1} glc")
    A(f"s_sub_u32 s{S_TO}, s{S_TO}, 1")
    A(f"s_cbranch_scc1 {lte}")
    A("s_waitcnt lgkmcnt(0)")
    A(f"s_cmp_lg_u32 s{S_TG+1}, 0")
    A(f"s_cbranch_scc1 {lte}")
    A(f"s_sleep {CFG['tsleep']}")
    A(f"s_branch {lt}")
    L(lte)
    A("s_waitcnt lgkmcnt(0)")
    A(f"v_mov_b32 v100, s{S_TG}")
    A(f"v_mov_b32 v101, s{S_TG+1}")
    A("v_and_b32 v104, 0x3ff, v100")
    A("v_bfe_u32 v105, v100, 10, 10")
    A("v_bfe_u32 v106, v100, 20, 10")
    A("v_alignbit_b32 v107, v101, v100, 30")
    A("v_and_b32 v107, 0x3ff, v107")
    A(f"v_mov_b32 v102, {L_TAG}")
    if barrier == 1:
        A("s_barrier")
    A("ds_write_b64 v102, v[100:101]")
    A("ds_write_b128 v102, v[104:107] offset:16")
    if barrier == 2:
        A("s_waitcnt lgkmcnt(0)")
    else:
        lds_set(L_FLAG, 100, 101)


XNT = ' nt' if CFG.get('xnt', 0) else ''
out.append(f"""; fused pre-LN attention(decode, sliding window) + gelu MLP, persistent kernel
; @launch grid=(256,1,1) block=(640,1,1) lds={LDS_BYTES}
.amdgcn_target "amdgcn-amd-amdhsa--gfx950"
.text
.globl {NAME}_kernel
.p2align 8
.type {NAME}_kernel,@function
{NAME}_kernel:""")

BLK = {"head": out}


def begin(name):
    global out
    BLK[name] = []
    out = BLK[name]


def post_entry():
    A("s_waitcnt lgkmcnt(0)")
    srd(SRD_WS, P_WS, WS_SIZE)
    if CFG["stamps"] == 2:
        A(f"v_mov_b32 v166, s{P_DBG}")
        A(f"v_mov_b32 v167, s{P_DBG+1}")
    stamp(0)


def att_common():
    A(f"s_sub_u32 s{S_A}, s{S_A}, 16")
    A(f"s_lshr_b32 s{S_B}, s{S_A}, 3")
    A(f"s_lshl_b32 s{S_T0}, s{S_X}, 4")
    A(f"s_add_u32 s{S_T0}, s{S_T0}, s{S_A}")
    A(f"s_mul_i32 s{S_T0}, s{S_T0}, {RECP}")
    A(f"s_add_u32 s{S_PNA}, s{S_T0}, {WS_PNA}")
    A(f"s_add_u32 s{S_PNB}, s{S_T0}, {WS_PNB}")


def gv_common():
    A(f"s_mul_i32 s{S_SUB}, s{S_X}, 7")
    A(f"s_add_u32 s{S_SUB}, s{S_SUB}, s{S_A}")
    A(f"s_sub_u32 s{S_SUB}, s{S_SUB}, 8")
    A(f"s_mov_b32 s{S_ROLE}, 2")
    A(f"s_cmp_lt_u32 s{S_A}, 8")
    A(f"s_cselect_b32 s{S_ROLE}, 1, s{S_ROLE}")
    A(f"s_cselect_b32 s{S_SUB}, s{S_A}, s{S_SUB}")
    A(f"s_cmp_eq_u32 s{S_A}, 15")
    A(f"s_cselect_b32 s{S_ROLE}, 0, s{S_ROLE}")


def zero_flags():
    for j in range(4):
        A(f"v_mov_b32 v{12+j}, 0")
    A(f"v_mov_b32 v3, {L_FLAG}")
    A("ds_write_b128 v3, v[12:15]")
    A(f"ds_write_b128 v3, v[12:15] offset:{L_FL2 - L_FLAG}")


if CFG.get("probe", -1) == 15:
    A("s_memrealtime s[6:7]")
    A("s_waitcnt lgkmcnt(0)")
    A("s_mov_b32 s7, s6")
A("s_cmp_ge_u32 s2, 256")
A("s_cbranch_scc1 L_end")
A("s_load_dwordx16 s[36:51], s[0:1], 0")
A("s_load_dwordx8 s[52:59], s[0:1], 64")
A("s_load_dwordx2 s[60:61], s[0:1], 96")
A("v_lshrrev_b32 v1, 6, v0")
A("v_and_b32 v0, 63, v0")
A(f"s_and_b32 s{S_X}, s2, 7")
A(f"v_readfirstlane_b32 s{S_WAVE}, v1")
A(f"s_lshr_b32 s{S_A}, s2, 3")
if CFG["pf"]:
    C("early workgroups: waves 0..5 pull the kernel's code into L2 (striped)")
    A(f"s_cmp_ge_u32 s{S_WAVE}, 5")
    A("s_cbranch_scc1 L_pfe")
    A(f"s_cmp_ge_u32 s{S_A}, {CFG['pfw']}")
    A("s_cbranch_scc1 L_pfe")
    A("s_getpc_b64 s[24:25]")
    L("L_pcref")
    A(f"s_lshl_b32 s26, s{S_WAVE}, 7")
    L("L_pf")
    A("s_load_dword s27, s[24:25], s26")
    A("s_add_u32 s26, s26, 640")
    A("s_cmp_lt_u32 s26, L_end-L_pcref")
    A("s_cbranch_scc1 L_pf")
    L("L_pfe")
A("v_lshlrev_b32 v2, 4, v0")
A("v_lshrrev_b32 v4, 4, v0")
A(f"v_mov_b32 v{V_MSK}, 0x3ff")
A("v_and_b32 v6, 15, v0")
A("v_lshrrev_b32 v8, 3, v0")
A("v_bfe_u32 v9, v0, 1, 2")
A("v_and_b32 v10, 1, v0")
A("v_lshlrev_b32 v11, 5, v8")
A("v_lshl_add_u32 v11, v10, 4, v11")
if CFG["stamps"]:
    A(f"v_mov_b32 v{V_ST}, 0")
C("dispatch before waiting for the kernel arguments")
A(f"s_lshr_b32 s{S_T0}, s{S_A}, 4")
A(f"s_lshl_b32 s{S_T0}, s{S_T0}, 4")
A(f"s_or_b32 s{S_T0}, s{S_T0}, s{S_WAVE}")
A(f"s_cmp_ge_u32 s{S_T0}, 24")
A("s_cbranch_scc1 L_ldr")
A(f"s_cmp_ge_u32 s{S_T0}, 16")
A("s_cbranch_scc1 L_att")
if CFG["dry"]:
    A(f"s_cmp_lg_u32 s{S_T0}, 5")
    A("s_cbranch_scc1 L_nd")
    C("wave 5 walks the q wave's register/LDS code with EXEC=0 to warm the instruction cache")
    A("s_mov_b64 exec, 0")
    A("s_branch L_dry")
    L("L_nd")
A(f"s_cmp_lg_u32 s{S_T0}, 6")
A("s_cbranch_scc1 L_GV")

V_K = 16
V_Q = 48
V_S = 64
V_SM = 72
V_PNA = 80
V_T = 84
V_TG = 124
V_G = 128

begin("att")
L("L_att")
att_common()
post_entry()
srd(SRD_C, P_OUT, 2048)
srd(SRD_A, P_DBG, 256)
A(f"s_lshl_b32 s{S_T1}, s{S_WAVE}, 8")
A(f"s_add_u32 s{S_PNA}, s{S_PNA}, s{S_T1}")
A(f"s_add_u32 s{S_PNB}, s{S_PNB}, s{S_T1}")
A(f"v_lshlrev_b32 v{V_PNA}, 6, v6")
A(f"v_lshl_add_u32 v{V_PNA}, v4, 4, v{V_PNA}")
C("G role: even a -> gi = x*8 + a/2 (wave 0)")
A(f"s_lshl_b32 s{S_T0}, s{S_X}, 3")
A(f"s_lshr_b32 s{S_T1}, s{S_A}, 1")
A(f"s_add_u32 s{S_SUB}, s{S_T0}, s{S_T1}")
A(f"s_and_b32 s{S_ROLE}, s{S_A}, 1")
A(f"s_or_b32 s{S_ROLE}, s{S_ROLE}, s{S_WAVE}")
A(f"s_cmp_lg_u32 s{S_ROLE}, 0")
A("s_cbranch_scc1 L_nogsm")
srd(SRD_B, P_X, 2048)
A(f"v_and_b32 v{V_T}, 3, v0")
A(f"v_lshlrev_b32 v{V_T}, 3, v{V_T}")
A(f"s_lshl_b32 s{S_T0}, s{S_SUB}, 5")
A(f"buffer_load_dwordx2 v[{V_SM}:{V_SM+1}], v{V_T}, {SB}, s{S_T0} offen{XNT}")
if CFG["touch2"]:
    A(f"buffer_load_dwordx2 v[{V_SM+4}:{V_SM+5}], v{V_T}, {SC_}, s{S_T0} offen")
srd(SRD_B, P_B2, 1024)
A(f"s_and_b32 s{S_T0}, s{S_T0}, 1023")
A(f"buffer_load_dwordx2 v[{V_SM+2}:{V_SM+3}], v{V_T}, {SB}, s{S_T0} offen{XNT}")
L("L_nogsm")
C("pre-touch this wave's q lines so that they are resident at the memory side")
A(f"s_lshl_b32 s{S_T1}, s{S_X}, 12")
A(f"s_lshl_b32 s{S_T2}, s{S_B}, 11")
A(f"s_add_u32 s{S_T1}, s{S_T1}, s{S_T2}")
A(f"s_lshl_b32 s{S_T2}, s{S_WAVE}, 8")
A(f"s_add_u32 s{S_T1}, s{S_T1}, s{S_T2}")
A(f"s_add_u32 s{S_T2}, s{SRD_WS}, s{S_T1}")
A(f"s_addc_u32 s{S_T3}, s{SRD_WS+1}, 0")
if CFG["touch"]:
    for i in range(4):
        A(f"s_load_dword s{64+i}, s[{S_T2}:{S_T3}], {WS_Q + 64*i} glc")
C("K fragment addresses: K + w*8192 + m*256 + ((4k+g)^m)*16")
KA = V_T + 36
A(f"s_lshl_b32 s{S_T0}, s{S_WAVE}, 13")
A(f"s_add_u32 s{S_T0}, s{S_T0}, {L_K}")
for kp in range(4):
    A(f"v_add_u32 v{KA+kp}, {4*kp}, v4")
    A(f"v_xor_b32 v{KA+kp}, v{KA+kp}, v6")
    A(f"v_lshlrev_b32 v{KA+kp}, 4, v{KA+kp}")
    A(f"v_lshl_add_u32 v{KA+kp}, v6, 8, v{KA+kp}")
    A(f"v_add_u32 v{KA+kp}, s{S_T0}, v{KA+kp}")
A(f"s_cmp_lg_u32 s{S_WAVE}, 7")
A("s_cbranch_scc1 L_ntp")
tag_poll(CFG["tsleepa"], S_A, barrier=2)
L("L_ntp")
A("s_barrier")
A(f"v_mov_b32 v{V_T}, 0")
A(f"ds_read_b64 v[{V_T+2}:{V_T+3}], v{V_T} offset:{L_TAG}")
A(f"ds_read_b128 v[{V_TG}:{V_TG+3}], v{V_T} offset:{L_TAG + 16}")
A("s_waitcnt lgkmcnt(0)")
A(f"v_readfirstlane_b32 s{S_TG}, v{V_T+2}")
A(f"v_readfirstlane_b32 s{S_TG+1}, v{V_T+3}")
stamp(1)
S2 = V_T + 4
PK = V_T + 12
MM = V_T + 16
TT = V_T + 20
EX = V_T + 24
QA = V_T + 1
A(f"s_lshl_b32 s{S_T0}, s{S_WAVE}, 7")
A(f"v_lshl_add_u32 v{QA}, v0, 2, s{S_T0}")
A(f"v_and_b32 v{V_T+2}, 3, v0")
A(f"v_lshlrev_b32 v{V_T+3}, 8, v{V_T+2}")
A(f"v_lshl_add_u32 v{V_T+3}, v4, 4, v{V_T+3}")
A(f"s_lshl_b32 s{S_T0}, s{S_WAVE}, 2")
A(f"v_lshl_add_u32 v{TT+2}, v0, 5, s{S_T0}")
A(f"v_lshlrev_b32 v{TT+3}, 5, v{V_T+2}")
C("---- scalar gather of q: this wave's 256 bytes (16 granules {d0,d1,T0,T1})")
lq, lqe, lqk = newlbl("Lq"), newlbl("Lqe"), newlbl("Lqk")
stamp(12)


def k_frags():
    for kp in range(4):
        for tt in range(2):
            r = V_K + (tt * 4 + kp) * 4
            A(f"ds_read_b128 v[{r}:{r+3}], v{KA+kp} offset:{tt*4096}")


A(f"v_mov_b32 v{TT}, {L_FLAG + 4}")
A(f"s_mov_b32 s{S_NT}, 0")
A(f"s_mov_b32 s{S_TO}, {CFG['timeout']}")
if CFG["qrep"]:
    A(f"s_mov_b32 s7, {WS_QR}")
L(lq)
if CFG["qrep"]:
    A(f"s_cmp_ge_u32 s7, {WS_QR + CFG['qrep']*32768}")
    A(f"s_cbranch_scc1 {lq}_g")
    C("attempt through the caches: a replica is read only once")
    A(f"s_add_u32 s{S_T4}, s{S_T2}, s7")
    A(f"s_addc_u32 s{S_T5}, s{S_T3}, 0")
    A("s_add_u32 s7, s7, 32768")
    for i in range(4):
        A(f"s_load_dwordx16 s[{S_Q+16*i}:{S_Q+16*i+15}], s[{S_T4}:{S_T5}], {64*i}")
    if CFG["qsl"]:
        A(f"s_sleep {CFG['qsl']}")
    A(f"s_branch {lq}_h")
    L(f"{lq}_g")
for i in range(4):
    A(f"s_load_dwordx16 s[{S_Q+16*i}:{S_Q+16*i+15}], s[{S_T2}:{S_T3}], {WS_Q + 64*i} glc")
if CFG["qrep"]:
    L(f"{lq}_h")
A(f"ds_read_b32 v{TT+1}, v{TT}")
A(f"s_sub_u32 s{S_TO}, s{S_TO}, 1")
A(f"s_cbranch_scc1 {lqe}")
A("s_waitcnt lgkmcnt(0)")
A(f"v_readfirstlane_b32 s{S_T0}, v{TT+1}")
A(f"s_andn2_b32 s{S_T0}, s{S_T0}, s{S_NT}")
A(f"s_cbranch_scc0 {lqk}")
A(f"s_mov_b32 s{S_NT}, 1")
k_frags()
L(lqk)
A(f"s_and_b64 s[{S_T4}:{S_T5}], s[{S_Q+2}:{S_Q+3}], s[{S_Q+6}:{S_Q+7}]")
A(f"s_or_b64 s[{S_T0}:{S_T1}], s[{S_Q+2}:{S_Q+3}], s[{S_Q+6}:{S_Q+7}]")
for gq in range(2, 16):
    A(f"s_and_b64 s[{S_T4}:{S_T5}], s[{S_T4}:{S_T5}], s[{S_Q+4*gq+2}:{S_Q+4*gq+3}]")
    A(f"s_or_b64 s[{S_T0}:{S_T1}], s[{S_T0}:{S_T1}], s[{S_Q+4*gq+2}:{S_Q+4*gq+3}]")
A(f"s_xor_b64 s[{S_T4}:{S_T5}], s[{S_T4}:{S_T5}], s[{S_TG}:{S_TG+1}]")
A(f"s_xor_b64 s[{S_T0}:{S_T1}], s[{S_T0}:{S_T1}], s[{S_TG}:{S_TG+1}]")
A(f"s_or_b64 s[{S_T4}:{S_T5}], s[{S_T4}:{S_T5}], s[{S_T0}:{S_T1}]")
A(f"s_cbranch_scc1 {lq}")
L(lqe)
A("s_waitcnt lgkmcnt(0)")
stamp(8)
if CFG["stamps"] == 1:
    A(f"s_sub_u32 s0, {CFG['timeout']}, s{S_TO}")
    A(f"v_writelane_b32 v{V_ST}, s0, 9")
for gq in range(16):
    A(f"v_writelane_b32 v{V_T}, s{S_Q+4*gq}, {2*gq}")
    A(f"v_writelane_b32 v{V_T}, s{S_Q+4*gq+1}, {2*gq+1}")
A("s_mov_b32 exec_hi, 0")
A(f"ds_write_b32 v{QA}, v{V_T} offset:{L_QL}")
A("s_mov_b32 exec_hi, -1")
A(f"s_cmp_lg_u32 s{S_NT}, 0")
A("s_cbranch_scc1 L_kok")
lds_wait(L_FLAG + 4, V_T, TT, sleep=1)
k_frags()
L("L_kok")
C("poll the q operand itself (LDS sentinel)")
l1, l1e = newlbl("Lqo"), newlbl("Lqoe")
A(f"s_mov_b32 s{S_TO}, {CFG['timeout']}")
L(l1)
for kp in range(4):
    A(f"ds_read_b128 v[{V_Q+4*kp}:{V_Q+4*kp+3}], v{V_T+3} offset:{L_QL + kp*64}")
A(f"s_sub_u32 s{S_TO}, s{S_TO}, 1")
A(f"s_cbranch_scc1 {l1e}")
A("s_waitcnt lgkmcnt(0)")
tree3("v_max3_u32", "v_max_u32", range(V_Q, V_Q + 16), TT)
A(f"v_cmp_eq_u32 vcc, -1, v{TT}")
A("s_cmp_lg_u64 vcc, 0")
A(f"s_cbranch_scc1 {l1}")
L(l1e)
A("s_waitcnt lgkmcnt(0)")
for kp in range(4):
    for tt in range(2):
        mfma(V_S + 4 * tt, V_K + (tt * 4 + kp) * 4, V_Q + 4 * kp, None if kp == 0 else V_S + 4 * tt)
stamp(2)
A(f"v_mov_b32 v{EX}, {f2u(SCALE):#x}")
A(f"v_mov_b32 v{EX+1}, {f2u(SCALE):#x}")
A(f"s_mov_b32 s{S_T1}, {f2u(LOG2E):#x}")
nop(5)
pack(PK, V_S, 4)
unpack(S2, PK, 4)
for j in range(0, 8, 2):
    A(f"v_pk_mul_f32 v[{S2+j}:{S2+j+1}], v[{S2+j}:{S2+j+1}], v[{EX}:{EX+1}]")
pack(PK, S2, 4)
unpack(S2, PK, 4)
A(f"v_max3_f32 v{MM}, v{S2}, v{S2+1}, v{S2+2}")
A(f"v_max3_f32 v{MM}, v{MM}, v{S2+3}, v{S2+4}")
A(f"v_max3_f32 v{MM}, v{MM}, v{S2+5}, v{S2+6}")
A(f"v_max_f32 v{MM}, v{MM}, v{S2+7}")
swap_steps("v_max_f32", [MM], [TT])
A("s_mov_b64 exec, 15")
A(f"ds_write_b32 v{TT+2}, v{MM} offset:{L_MX}")
A("s_mov_b64 exec, -1")
for j in range(8):
    A(f"v_mul_f32 v{S2+j}, s{S_T1}, v{S2+j}")
l2, l2e = newlbl("Lmx"), newlbl("Lmxe")
A(f"s_mov_b32 s{S_TO}, {CFG['timeout']}")
L(l2)
A(f"ds_read_b128 v[{EX}:{EX+3}], v{TT+3} offset:{L_MX}")
A(f"ds_read_b128 v[{EX+4}:{EX+7}], v{TT+3} offset:{L_MX + 16}")
A(f"s_sub_u32 s{S_TO}, s{S_TO}, 1")
A(f"s_cbranch_scc1 {l2e}")
A("s_waitcnt lgkmcnt(0)")
tree3("v_max3_u32", "v_max_u32", range(EX, EX + 8), TT)
tree3("v_max3_f32", "v_max_f32", range(EX, EX + 8), MM)
A(f"v_cmp_eq_u32 vcc, -1, v{TT}")
A("s_cmp_lg_u64 vcc, 0")
A(f"s_cbranch_scc1 {l2}")
L(l2e)
A("s_waitcnt lgkmcnt(0)")
A(f"v_mul_f32 v{MM}, s{S_T1}, v{MM}")
for j in range(8):
    A(f"v_sub_f32 v{EX+j}, v{S2+j}, v{MM}")
for j in range(8):
    A(f"v_exp_f32 v{EX+j}, v{EX+j}")
A(f"s_lshl_b32 s{S_T0}, s{S_WAVE}, 10")
A(f"v_add_u32 v{TT}, s{S_T0}, v2")
pack(PK, EX, 4)
A(f"ds_write_b128 v{TT}, v[{PK}:{PK+3}] offset:{L_SC}")
A(f"v_add_f32 v{MM+1}, v{EX}, v{EX+1}")
A(f"v_add_f32 v{TT}, v{EX+2}, v{EX+3}")
A(f"v_add_f32 v{TT+1}, v{EX+4}, v{EX+5}")
A(f"v_add_f32 v{EX}, v{EX+6}, v{EX+7}")
A(f"v_add_f32 v{MM+1}, v{MM+1}, v{TT}")
A(f"v_add_f32 v{EX}, v{EX}, v{TT+1}")
A(f"v_add_f32 v{MM+1}, v{MM+1}, v{EX}")
swap_steps("v_add_f32", [MM + 1], [TT])
A("s_mov_b64 exec, 15")
A(f"ds_write_b32 v{TT+2}, v{MM+1} offset:{L_LS}")
A("s_mov_b64 exec, -1")
stamp(3)
VA0, VA1, VB0, VB1 = V_T + 32, V_T + 33, V_T + 34, V_T + 35


def vw2_addr():
    A(f"v_lshlrev_b32 v{VA0}, 10, v4")
    A(f"v_lshl_add_u32 v{VA0}, v6, 3, v{VA0}")
    A(f"v_and_b32 v{VA1}, 1, v4")
    A(f"v_lshl_add_u32 v{VA0}, v{VA1}, 7, v{VA0}")
    A(f"v_xor_b32 v{VA1}, 128, v{VA0}")


vw2_addr()
A(f"s_lshl_b32 s{S_T0}, s{S_WAVE}, 8")
A(f"s_add_u32 s{S_T0}, s{S_T0}, {L_V}")
A(f"v_add_u32 v{VB0}, s{S_T0}, v{VA0}")
A(f"v_add_u32 v{VB1}, s{S_T0}, v{VA1}")
A(f"s_cmp_gt_u32 s{S_WAVE}, 4")
A("s_cbranch_scc1 L_exit")
A(f"v_mov_b32 v{V_T+1}, {L_FLAG + 8}")
A(f"s_mov_b32 s{S_NT}, 0")


def wait_progress(n):
    l, ok = newlbl("Lvp"), newlbl("Lvo")
    A(f"s_cmp_ge_u32 s{S_NT}, {n}")
    A(f"s_cbranch_scc1 {ok}")
    A(f"s_mov_b32 s{S_TO}, {CFG['timeout']}")
    L(l)
    A(f"ds_read_b32 v{V_T}, v{V_T+1}")
    A(f"s_sub_u32 s{S_TO}, s{S_TO}, 1")
    A(f"s_cbranch_scc1 {ok}")
    A("s_waitcnt lgkmcnt(0)")
    A(f"v_readfirstlane_b32 s{S_NT}, v{V_T}")
    A(f"s_cmp_lt_u32 s{S_NT}, {n}")
    A(f"s_cbranch_scc1 {l}")
    L(ok)


A(f"s_cmp_lt_u32 s{S_WAVE}, 4")
A("s_cbranch_scc1 L_pv")
C("---- wave 4: publish stats {m,l,T0,T1} per head (lanes 0..3) once all l are in and the PN clears completed")
wait_progress(1)
A(f"v_mov_b32 v{MM+2}, s{S_TG}")
A(f"v_mov_b32 v{MM+3}, s{S_TG+1}")
l4, l4e = newlbl("Lls"), newlbl("Llse")
A(f"s_mov_b32 s{S_TO}, {CFG['timeout']}")
L(l4)
A(f"ds_read_b128 v[{EX}:{EX+3}], v{TT+3} offset:{L_LS}")
A(f"ds_read_b128 v[{EX+4}:{EX+7}], v{TT+3} offset:{L_LS + 16}")
A(f"s_sub_u32 s{S_TO}, s{S_TO}, 1")
A(f"s_cbranch_scc1 {l4e}")
A("s_waitcnt lgkmcnt(0)")
tree3("v_max3_u32", "v_max_u32", range(EX, EX + 8), TT)
A(f"v_cmp_eq_u32 vcc, -1, v{TT}")
A("s_cmp_lg_u64 vcc, 0")
A(f"s_cbranch_scc1 {l4}")
L(l4e)
A("s_waitcnt lgkmcnt(0)")
for j in range(4):
    A(f"v_add_f32 v{EX+j}, v{EX+j}, v{EX+4+j}")
A(f"v_add_f32 v{EX}, v{EX}, v{EX+1}")
A(f"v_add_f32 v{EX+2}, v{EX+2}, v{EX+3}")
A(f"v_add_f32 v{MM+1}, v{EX}, v{EX+2}")
A("s_mov_b64 exec, 15")
if CFG["dual"]:
    A(f"buffer_store_dwordx4 v[{MM}:{MM+3}], v2, {WS}, s{S_PNA} offen")
A(f"buffer_store_dwordx4 v[{MM}:{MM+3}], v2, {WS}, s{S_PNB} offen sc1")
A("s_branch L_exit")
L("L_pv")
C("---- PV (waves 0..3, 32 dims each): tiles are consumed as they land")
PB = V_G
VF = V_K
l5, l5e = newlbl("Lpp"), newlbl("Lppe")
A(f"s_mov_b32 s{S_TO}, {CFG['timeout']}")
L(l5)
for t in range(8):
    A(f"ds_read_b128 v[{PB+4*t}:{PB+4*t+3}], v2 offset:{L_SC + t*1024}")
A(f"ds_read_b32 v{V_T}, v{V_T+1}")
A(f"s_sub_u32 s{S_TO}, s{S_TO}, 1")
A(f"s_cbranch_scc1 {l5e}")
A("s_waitcnt lgkmcnt(0)")
tree3("v_max3_u32", "v_max_u32", [PB + 4 * t + j for t in range(8) for j in (0, 3)], TT)
A(f"v_readfirstlane_b32 s{S_NT}, v{V_T}")
A(f"v_cmp_eq_u32 vcc, -1, v{TT}")
A("s_cmp_lg_u64 vcc, 0")
A(f"s_cbranch_scc1 {l5}")
L(l5e)
A("s_waitcnt lgkmcnt(0)")
stamp(5)


def v_reads(t):
    for c2 in range(2):
        for h in range(2):
            r = VF + ((t % 6) * 2 + c2) * 4 + 2 * h
            A(f"ds_read_b64_tr_b16 v[{r}:{r+1}], v{VB0 + c2} offset:{t*8192 + h*4096}")


def v_mfma(t):
    for c2 in range(2):
        mfma(V_S + 4 * c2, VF + ((t % 6) * 2 + c2) * 4, PB + 4 * t, None if t == 0 else V_S + 4 * c2)


A(f"s_cmp_ge_u32 s{S_NT}, 8")
A("s_cbranch_scc1 L_pvf")
for t in range(8):
    wait_progress(t + 1)
    v_reads(t)
    if t >= 1:
        A("s_waitcnt lgkmcnt(4)")
        v_mfma(t - 1)
A("s_waitcnt lgkmcnt(0)")
v_mfma(7)
A("s_branch L_pve")
L("L_pvf")
for t in range(3):
    v_reads(t)
for t in range(8):
    A(f"s_waitcnt lgkmcnt({min(2, 7 - t)*4})")
    v_mfma(t)
    if t + 3 < 8:
        v_reads(t + 3)
L("L_pve")
nop(7)
pack(PK, V_S, 4)
set_exec(MASK_N4)
if CFG["dual"]:
    A(f"buffer_store_dwordx4 v[{PK}:{PK+3}], v{V_PNA}, {WS}, s{S_PNA} offen")
A(f"buffer_store_dwordx4 v[{PK}:{PK+3}], v{V_PNA}, {WS}, s{S_PNB} offen sc1")
A("s_mov_b64 exec, -1")
stamp(6)
A(f"s_cmp_lg_u32 s{S_ROLE}, 0")
A("s_cbranch_scc1 L_exit")

C("==== G: final reduce of 16 outputs (16gi..16gi+15)")
A(f"s_lshl_b32 s{S_T2}, s{S_SUB}, 6")
A(f"s_add_u32 s{S_T3}, s{S_T2}, {WS_AP}")
A(f"s_add_u32 s{S_T2}, s{S_T2}, {WS_Y}")
A(f"v_lshrrev_b32 v{TT+2}, 2, v0")
A(f"v_and_b32 v{TT+3}, 3, v0")
A(f"v_lshlrev_b32 v{TT}, 12, v{TT+2}")
A(f"v_lshl_add_u32 v{TT}, v{TT+3}, 4, v{TT}")
A(f"s_movk_i32 s{S_T0}, {YP}")
A(f"v_mul_lo_u32 v{TT+2}, v{TT+2}, s{S_T0}")
A(f"v_lshl_add_u32 v{TT+2}, v{TT+3}, 4, v{TT+2}")
for i in range(1, 4):
    A(f"s_add_u32 s{40+i}, s{S_T2}, {16*i*YP}")
GA = V_G
if CFG["dry2"]:
    C("walk the rest of this path once with EXEC=0 (instruction cache warm-up)")
    A("s_mov_b64 exec, 0")
L("L_kret")
C("DRY{")
A("s_mov_b32 exec_hi, 0")


def g1_loads():
    A(f"buffer_load_dwordx4 v[{GA}:{GA+3}], v{TT}, {WS}, s{S_T3} offen sc1")


tpoll(g1_loads, range(GA, GA + 4), V_T, V_TG, CFG['g1sl'])
A("s_mov_b64 exec, -1")
stamp(7)
A(f"s_cmp_lg_u32 s{S_SUB}, 0")
A("s_cbranch_scc1 L_gnz")
C("every workgroup has consumed the launch tag by now: leave d_debug clean")
A(f"v_mov_b32 v{V_T}, 0")
A(f"v_mov_b32 v{V_T+1}, 0")
A(f"v_lshlrev_b32 v{V_T+2}, 6, v0")
A("s_mov_b64 exec, 15")
A(f"buffer_store_dwordx2 v[{V_T}:{V_T+1}], v{V_T+2}, {SA}, 0 offen sc1")
A("s_mov_b64 exec, -1")
L("L_gnz")
nop(1)
dpp_steps("v_add_f32", [GA + j for j in range(4)], ROW_HI)
swap_steps("v_add_f32", [GA + j for j in range(4)], [GA + 4 + j for j in range(4)], which=(16,))
GH = V_G + 8
GP = V_G + 16
GB = V_G + 20
pack(GP, GA, 2)
unpack(GA, GP, 2)
unpack(GH, V_SM, 2)
for j in range(4):
    A(f"v_add_f32 v{GH+j}, v{GH+j}, v{GA+j}")
pack(GP, GH, 2)
unpack(GH, GP, 2)
unpack(GB, V_SM + 2, 2)
GY = V_K


def g2_loads():
    for j in range(4):
        A(f"v_mov_b32 v{GY+12+j}, v{V_TG+j}")
    A(f"buffer_load_dwordx4 v[{GY}:{GY+3}], v{TT+2}, {WS}, s{S_T2} offen sc1")
    A(f"buffer_load_dwordx4 v[{GY+4}:{GY+7}], v{TT+2}, {WS}, s41 offen sc1")
    A(f"buffer_load_dwordx4 v[{GY+8}:{GY+11}], v{TT+2}, {WS}, s42 offen sc1")
    A("s_mov_b32 exec_hi, 0")
    A(f"buffer_load_dwordx4 v[{GY+12}:{GY+15}], v{TT+2}, {WS}, s43 offen sc1")
    A("s_mov_b32 exec_hi, -1")


tpoll(g2_loads, range(GY, GY + 16), V_T, V_TG, CFG['g2sl'])
stamp(10)
for j in range(4):
    A(f"v_add_f32 v{GY+j}, v{GY+j}, v{GY+4+j}")
    A(f"v_add_f32 v{GY+8+j}, v{GY+8+j}, v{GY+12+j}")
for j in range(4):
    A(f"v_add_f32 v{GY+j}, v{GY+j}, v{GY+8+j}")
dpp_steps("v_add_f32", [GY + j for j in range(4)], ROW_HI)
swap_steps("v_add_f32", [GY + j for j in range(4)], [GY + 4 + j for j in range(4)])
pack(GP, GY, 2)
unpack(GY, GP, 2)
for j in range(4):
    A(f"v_add_f32 v{GY+j}, v{GY+j}, v{GB+j}")
pack(GP, GY, 2)
unpack(GY, GP, 2)
for j in range(4):
    A(f"v_add_f32 v{GY+j}, v{GY+j}, v{GH+j}")
pack(GP, GY, 2)
if CFG.get("padto", 0):
    C("ND{")
    A(f"s_mov_b32 s{S_T5}, {CFG['padto']}")
    if CFG.get("probe", -1) >= 0:
        A(f"s_sub_u32 s0, s7, s{S_TG}" if not CFG.get("neg", 0) else f"s_sub_u32 s0, s{S_TG}, s7")
        A("s_max_i32 s0, s0, 0")
        A("s_mul_i32 s0, s0, 3")
        A(f"s_add_u32 s{S_T5}, s{S_T5}, s0")
    L("L_pad")
    A("s_memrealtime s[0:1]")
    A("s_waitcnt lgkmcnt(0)")
    A(f"s_sub_u32 s0, s0, s{S_TG}")
    A(f"s_cmp_lt_u32 s0, s{S_T5}")
    A("s_cbranch_scc1 L_pad")
    C("}ND")
A(f"s_lshl_b32 s{S_T4}, s{S_SUB}, 5")
A("v_lshlrev_b32 v3, 3, v0")
A("s_mov_b64 exec, 15")
A(f"buffer_store_dwordx2 v[{GP}:{GP+1}], v3, {SC_}, s{S_T4} offen")
stamp(11)
A("s_branch L_exit")

C("}DRY")
begin("ldr")
L("L_ldr")
att_common()
C("kv byte offset: ((b*8+x)*8192 + 6144 + 256 s)*256")
A(f"s_lshl_b32 s{S_T0}, s{S_B}, 3")
A(f"s_add_u32 s{S_T0}, s{S_T0}, s{S_X}")
A(f"s_lshl_b32 s{S_T0}, s{S_T0}, 5")
A(f"s_and_b32 s{S_T1}, s{S_A}, 7")
A(f"s_add_u32 s{S_T0}, s{S_T0}, s{S_T1}")
A(f"s_add_u32 s{S_T0}, s{S_T0}, 24")
A(f"s_lshl_b32 s{S_T3}, s{S_T0}, 16")
A(f"s_mov_b32 s{S_T2}, 0")
A(f"s_cmp_eq_u32 s{S_WAVE}, 9")
A("s_cbranch_scc1 L_ldv")
C("K DMA lane offsets: r4=l>>4, p=l&15: r4*256 + ((p ^ (4i+r4))*16)")
for i in range(4):
    A(f"v_add_u32 v{12+i}, {4*i}, v4")
    A(f"v_xor_b32 v{12+i}, v{12+i}, v6")
    A(f"v_lshlrev_b32 v{12+i}, 4, v{12+i}")
    A(f"v_lshl_add_u32 v{12+i}, v4, 8, v{12+i}")
A(f"s_mov_b32 s{S_T1}, {L_K}")
post_entry()
srd(SRD_A, P_K, 0x2000000)
if CFG.get("ksleep", 0):
    A(f"s_sleep {CFG['ksleep']}")
if CFG["ktouch"]:
    C("resolve the K/V translations first; the q-projection loads get a head start meanwhile")
    A(f"s_load_dword s64, s[{P_K}:{P_K+1}], s{S_T3}")
    A(f"s_load_dword s65, s[{P_V}:{P_V+1}], s{S_T3}")
    A("s_waitcnt lgkmcnt(0)")
L("L_ldk1")
A(f"s_mov_b32 m0, s{S_T1}")
A(f"s_add_u32 s{S_T1}, s{S_T1}, 4096")
for i in range(4):
    A(f"buffer_load_dwordx4 v{12+i}, {SA}, s{S_T3} offen offset:{i*1024}{NT} lds")
A(f"s_add_u32 s{S_T3}, s{S_T3}, 4096")
A(f"s_add_u32 s{S_T2}, s{S_T2}, 1")
A(f"s_cmp_lt_u32 s{S_T2}, 16")
A("s_cbranch_scc1 L_ldk1")
stamp(1)
A("s_barrier")
A("s_waitcnt vmcnt(0)")
stamp(4)
lds_set(L_FLAG + 4, 16, 17)
A("s_waitcnt lgkmcnt(0)")
A("s_branch L_exit")
L("L_ldv")
zero_flags()
for j in range(4):
    A(f"v_mov_b32 v{16+j}, -1")
A(f"ds_write_b128 v2, v[16:19] offset:{L_QL}")
for t in range(8):
    A(f"ds_write_b128 v2, v[16:19] offset:{L_SC + t*1024}")
A("s_mov_b64 exec, 0xffff")
A(f"ds_write_b128 v2, v[16:19] offset:{L_MX}")
A("s_mov_b64 exec, -1")
A("v_lshl_add_u32 v12, v9, 8, v11")
A("v_xor_b32 v13, 32, v12")
post_entry()
srd(SRD_B, P_V, 0x2000000)
A("s_barrier")
A(f"buffer_store_dwordx4 v[16:19], v2, {WS}, s{S_PNA} offen sc1")
A(f"buffer_store_dwordx4 v[16:19], v2, {WS}, s{S_PNB} offen sc1")
A(f"s_mov_b32 s{S_T1}, {L_V}")
L("L_ldv1")
A(f"s_mov_b32 m0, s{S_T1}")
A(f"s_add_u32 s{S_T1}, s{S_T1}, 4096")
for be in range(4):
    A(f"buffer_load_dwordx4 v{12 + (be & 1)}, {SB}, s{S_T3} offen offset:{be*1024}{NT} lds")
A(f"s_add_u32 s{S_T3}, s{S_T3}, 4096")
A(f"s_add_u32 s{S_T2}, s{S_T2}, 1")
A(f"s_cmp_lt_u32 s{S_T2}, 16")
A("s_cbranch_scc1 L_ldv1")
stamp(1)
A(f"v_mov_b32 v20, {L_FLAG + 8}")
for t in range(8):
    A(f"v_mov_b32 v21, {t+1}")
    A(f"s_waitcnt vmcnt({56 - 8*t})")
    A("ds_write_b32 v20, v21")
stamp(4)
A("s_waitcnt lgkmcnt(0)")
A("s_branch L_exit")

begin("gv")
L("L_dry2")
A("s_mov_b64 exec, -1")
L("L_GV")
gv_common()
post_entry()
A(f"s_cmp_ge_u32 s{S_WAVE}, 8")
A("s_cbranch_scc1 L_gld")
A(f"s_cmp_lg_u32 s{S_WAVE}, 7")
A("s_cbranch_scc1 L_gv2")
A("s_cmp_lg_u32 s2, 0")
A("s_cbranch_scc1 L_gv0")
C("workgroup 0 publishes the launch tag (4 replicas)")
srd(SRD_C, P_DBG, 256)
A("s_memrealtime s[24:25]")
A("s_waitcnt lgkmcnt(0)")
A("s_or_b32 s25, s25, 0x80000000")
A("v_mov_b32 v14, s24")
A("v_mov_b32 v15, s25")
A("v_lshlrev_b32 v12, 6, v0")
A("s_mov_b64 exec, 15")
A(f"buffer_store_dwordx2 v[14:15], v12, {SC_}, 0 offen sc1")
A("s_mov_b64 exec, -1")
L("L_gv0")
tag_poll(CFG["tsleep0"], S_A, barrier=2)
stamp(5)
A(f"s_mov_b32 s{S_TO}, {CFG['timeout']}")
L("L_echo")
A("ds_write_b64 v102, v[100:101]")
A("ds_read_b32 v103, v102 offset:8")
A(f"s_sub_u32 s{S_TO}, s{S_TO}, 1")
A("s_cbranch_scc1 L_gv2")
A("s_waitcnt lgkmcnt(0)")
A(f"v_readfirstlane_b32 s{S_T0}, v103")
A("s_sleep 2")
A(f"s_cmp_lg_u32 s{S_T0}, s{S_TG}")
A("s_cbranch_scc1 L_echo")
L("L_gv2")
A("s_branch L_qm1")

C("---- GEMV loaders (waves 8,9)")
L("L_gld")
A(f"s_and_b32 s{S_T5}, s{S_WAVE}, 1")
C("WX style lane offsets: ct=l>>5, p=(l>>1)&15 (row), half")
A("v_bfe_u32 v3, v0, 1, 4")
A("v_lshrrev_b32 v12, 5, v0")
A("v_lshlrev_b32 v12, 5, v12")
A("v_lshl_add_u32 v12, v10, 4, v12")
A(f"s_cmp_eq_u32 s{S_ROLE}, 0")
A("s_cbranch_scc1 L_exit")
A(f"s_cmp_eq_u32 s{S_ROLE}, 2")
A("s_cbranch_scc1 L_gld2")
C("wo tile: 512 rows x 128 B; loader i: rows 256i.. (32 instrs of 8 rows)")
srd(SRD_C, P_WO, 0x400000)
A("v_bfe_u32 v3, v0, 1, 3")
A("v_lshlrev_b32 v3, 10, v3")
A("v_lshl_add_u32 v3, v4, 5, v3")
A("v_lshl_add_u32 v3, v10, 4, v3")
A(f"s_lshl_b32 s{S_T3}, s{S_X}, 19")
A(f"s_lshl_b32 s{S_T1}, s{S_T5}, 18")
A(f"s_add_u32 s{S_T3}, s{S_T3}, s{S_T1}")
A(f"s_lshl_b32 s{S_T1}, s{S_SUB}, 7")
A(f"s_add_u32 s{S_T3}, s{S_T3}, s{S_T1}")
A(f"s_lshl_b32 s{S_T4}, s{S_T5}, 15")
A(f"s_add_u32 s{S_T4}, s{S_T4}, {L_WO}")
if CFG["touch2"]:
    for i in range(4):
        A(f"s_add_u32 s{S_T1}, s{S_T3}, {i*65536}")
        A(f"s_load_dword s{64+i}, s[{P_WO}:{P_WO+1}], s{S_T1}")
A("s_barrier")
A(f"s_mov_b32 s{S_T2}, 0")
L("L_gld1")
for i in range(4):
    A(f"s_mov_b32 m0, s{S_T4}")
    A(f"s_add_u32 s{S_T4}, s{S_T4}, 1024")
    A(f"buffer_load_dwordx4 v3, {SC_}, s{S_T3} offen{NT} lds")
    A(f"s_add_u32 s{S_T3}, s{S_T3}, 8192")
A(f"s_add_u32 s{S_T2}, s{S_T2}, 1")
A(f"s_cmp_lt_u32 s{S_T2}, 8")
A("s_cbranch_scc1 L_gld1")
A("s_branch L_gld5")
L("L_gld2")
A(f"s_cmp_eq_u32 s{S_T5}, 1")
A("s_cbranch_scc1 L_gld3")
srd(SRD_C, P_W1, 512 * 3584)
A(f"s_lshl_b32 s{S_T3}, s{S_SUB}, 6")
A(f"s_movk_i32 s{S_T1}, 3584")
A(f"v_mul_lo_u32 v13, v3, s{S_T1}")
A("v_add_u32 v13, v13, v12")
if CFG["touch2"]:
    for i in range(14):
        A(f"s_add_u32 s{S_T1}, s{S_T3}, {i*131072}")
        A(f"s_load_dword s{64+i}, s[{P_W1}:{P_W1+1}], s{S_T1}")
A("s_barrier")
A(f"s_mov_b32 s{S_T1}, {L_WX}")
A(f"s_mov_b32 s{S_T2}, 0")
L("L_gld4")
for i in range(4):
    A(f"s_mov_b32 m0, s{S_T1}")
    A(f"s_add_u32 s{S_T1}, s{S_T1}, 1024")
    A(f"buffer_load_dwordx4 v13, {SC_}, s{S_T3} offen{NT} lds")
    A(f"s_add_u32 s{S_T3}, s{S_T3}, {16*3584}")
if CFG["mwin"]:
    A(f"s_waitcnt vmcnt({CFG['mwin']})")
A(f"s_add_u32 s{S_T2}, s{S_T2}, 1")
A(f"s_cmp_lt_u32 s{S_T2}, 8")
A("s_cbranch_scc1 L_gld4")
A("s_branch L_gld5")
L("L_gld3")
srd(SRD_C, P_W2, 1792 * 1024)
A("v_lshl_add_u32 v14, v9, 10, v11")
A("v_xor_b32 v15, 32, v14")
A(f"s_lshl_b32 s{S_T3}, s{S_SUB}, 15")
if CFG["touch2"]:
    A(f"s_load_dword s64, s[{P_W2}:{P_W2+1}], s{S_T3}")
    A(f"s_load_dword s65, s[{P_B1}:{P_B1+1}], 0")
A("s_barrier")
A(f"s_mov_b32 s{S_T1}, {L_W2}")
A(f"s_mov_b32 s{S_T2}, 0")
L("L_gld6")
for be in range(8):
    A(f"s_mov_b32 m0, s{S_T1}")
    A(f"s_add_u32 s{S_T1}, s{S_T1}, 1024")
    A(f"s_add_u32 s{S_T4}, s{S_T3}, {be*4096}")
    A(f"buffer_load_dwordx4 v{14 + (be & 1)}, {SC_}, s{S_T4} offen{NT} lds")
    if CFG["mwin"] and be % 4 == 3:
        A(f"s_waitcnt vmcnt({CFG['mwin']})")
A(f"s_add_u32 s{S_T3}, s{S_T3}, 256")
A(f"s_add_u32 s{S_T2}, s{S_T2}, 1")
A(f"s_cmp_lt_u32 s{S_T2}, 4")
A("s_cbranch_scc1 L_gld6")
L("L_gld5")
A("s_waitcnt vmcnt(0)")
stamp(4)
A("s_barrier")
A("s_branch L_exit")

begin("qc")
C("---- q projection: wave 6 loads and computes everything")
A("v_mov_b32 v16, 0")
A("v_mov_b32 v17, 0")
A(f"ds_write_b64 v16, v[16:17] offset:{L_TAG}")
post_entry()
srd(SRD_A, P_X, 2048)
A(f"buffer_load_dwordx4 v[16:19], v2, {SA}, 0 offen")
A(f"buffer_load_dwordx4 v[20:23], v2, {SA}, 0 offen offset:1024")
if CFG["touch"]:
    A(f"s_lshl_b32 s{S_T1}, s{S_X}, 4")
    A(f"s_add_u32 s{S_T1}, s{S_T1}, s{S_A}")
    A(f"s_lshl_b32 s{S_T1}, s{S_T1}, 9")
    A(f"s_add_u32 s{S_T1}, s{S_T1}, {WS_XQA}")
    A("s_mov_b32 exec_hi, 0")
    A(f"buffer_load_dwordx4 v[72:75], v2, {WS}, s{S_T1} offen sc1")
    A("s_mov_b32 exec_hi, -1")
if CFG["qrep"]:
    C("pull my lines of the q replicas into L2: lane=(r,b)")
    A("v_lshrrev_b32 v76, 1, v0")
    A("v_lshlrev_b32 v76, 15, v76")
    A("v_lshl_add_u32 v76, v10, 11, v76")
    A(f"s_lshl_b32 s{S_T1}, s{S_X}, 12")
    A(f"s_lshl_b32 s{S_T2}, s{S_A}, 7")
    A(f"s_add_u32 s{S_T1}, s{S_T1}, s{S_T2}")
    A(f"s_add_u32 s{S_T1}, s{S_T1}, {WS_QR}")
    A(f"s_mov_b64 exec, {(1 << (2*CFG['qrep'])) - 1:#x}")
    A(f"buffer_load_dword v77, v76, {WS}, s{S_T1} offen")
    A("s_mov_b64 exec, -1")
srd(SRD_B, P_WQ, 0x400000)
A("v_bfe_u32 v13, v0, 1, 3")
A("v_lshlrev_b32 v13, 13, v13")
A("v_lshl_add_u32 v13, v4, 5, v13")
A("v_lshl_add_u32 v13, v10, 4, v13")
A(f"s_and_b32 s{S_B}, s{S_A}, 1")
A(f"s_lshl_b32 s{S_T0}, s{S_B}, 21")
A(f"s_lshl_b32 s{S_T1}, s{S_X}, 10")
A(f"s_add_u32 s{S_T0}, s{S_T0}, s{S_T1}")
A(f"s_lshr_b32 s{S_T1}, s{S_A}, 1")
A(f"s_lshl_b32 s{S_T1}, s{S_T1}, 7")
A(f"s_add_u32 s{S_T0}, s{S_T0}, s{S_T1}")
A(f"s_mov_b32 s{S_T1}, {L_WQ}")
L("L_qc1")
for i in range(4):
    A(f"s_mov_b32 m0, s{S_T1}")
    A(f"s_add_u32 s{S_T1}, s{S_T1}, 1024")
    A(f"buffer_load_dwordx4 v13, {SB}, s{S_T0} offen{NT} lds")
    A(f"s_add_u32 s{S_T0}, s{S_T0}, 0x10000")
A(f"s_cmp_lt_u32 s{S_T1}, {L_WQ + 32768}")
A("s_cbranch_scc1 L_qc1")
stamp(10)
L("L_dry")
gv_common()
A("v_lshrrev_b32 v12, 2, v0")
A("v_lshlrev_b32 v12, 6, v12")
A("v_lshl_add_u32 v12, v10, 5, v12")
A("v_bfe_u32 v13, v0, 1, 1")
A("v_lshl_add_u32 v12, v13, 3, v12")
A("v_lshlrev_b32 v13, 10, v10")
A("v_lshl_add_u32 v13, v4, 4, v13")
A(f"s_lshl_b32 s{S_T1}, s{S_B}, 9")
A(f"v_add_u32 v13, s{S_T1}, v13")
A("v_lshrrev_b32 v14, 5, v0")
A("v_lshlrev_b32 v14, 10, v14")
A("v_and_b32 v15, 31, v0")
A("v_lshl_add_u32 v14, v15, 3, v14")
C("exchange lane map: n=l&15<8: b=n&1, half2=(n>>1)&1, cs=(n>>2)&1 ; XQ off = cs*256 + b*128 + g*32 + half2*16")
A("v_bfe_u32 v70, v0, 2, 1")
A("v_lshlrev_b32 v69, 6, v70")
A("v_lshl_add_u32 v69, v4, 4, v69")
A("v_lshl_add_u32 v69, v10, 11, v69")
A("v_lshlrev_b32 v70, 8, v70")
A("v_lshl_add_u32 v70, v10, 7, v70")
A("v_lshl_add_u32 v70, v4, 5, v70")
A("v_bfe_u32 v15, v0, 1, 1")
A("v_lshl_add_u32 v70, v15, 4, v70")
A(f"s_lshl_b32 s{S_T5}, s{S_X}, 12")
A(f"s_lshl_b32 s{S_T1}, s{S_A}, 7")
A(f"s_add_u32 s{S_T5}, s{S_T5}, s{S_T1}")
A(f"s_lshl_b32 s{S_T1}, s{S_X}, 4")
A(f"s_add_u32 s{S_T1}, s{S_T1}, s{S_A}")
A(f"s_lshl_b32 s62, s{S_T1}, 9")
A(f"s_xor_b32 s63, s62, 512")
A(f"s_add_u32 s64, s62, {WS_XQB}")
A(f"s_add_u32 s62, s62, {WS_XQA}")
A(f"s_add_u32 s65, s63, {WS_XQB}")
A(f"s_add_u32 s63, s63, {WS_XQA}")
A("s_mov_b32 s66, 0xcccccccc")
A("s_mov_b32 s67, 0xcccccccc")
A("s_mov_b32 s68, 0xf0f0f0f0")
A("s_mov_b32 s69, 0xf0f0f0f0")
stamp(11)
A(f"s_waitcnt vmcnt({32 + CFG['touch'] + (1 if CFG['qrep'] else 0)})")
stamp(12)
unpack(24, 16, 4)
unpack(32, 20, 4)
layernorm([24, 32], 2, 44, [16, 20])
A(f"ds_write_b64 v12, v[16:17] offset:{L_XN}")
A(f"ds_write_b64 v12, v[18:19] offset:{L_XN + 16}")
A(f"ds_write_b64 v12, v[20:21] offset:{L_XN + 1024}")
A(f"ds_write_b64 v12, v[22:23] offset:{L_XN + 1024 + 16}")
A("s_waitcnt lgkmcnt(0)")
XA = 96
for kp in range(8):
    A(f"ds_read_b128 v[{XA+4*kp}:{XA+4*kp+3}], v13 offset:{L_XN + kp*64}")
stamp(1)
A("v_mov_b32 v16, 0")
WF = 24
QD = 144
for kp in range(8):
    if kp == 7:
        C("launch tag from wave 7 (it rewrites the slot until echoed)")
        A("s_cbranch_execz L_dry1")
        lds_wait(L_TAG + 4, 17, 18)
        L("L_dry1")
        A(f"ds_read_b64 v[58:59], v16 offset:{L_TAG}")
        A(f"ds_read_b64 v[62:63], v16 offset:{L_TAG}")
        A("s_waitcnt lgkmcnt(0)")
        A(f"ds_write_b32 v16, v58 offset:{L_TAG + 8}")
    A(f"s_waitcnt vmcnt({28 - 4*kp})")
    if kp == 7:
        stamp(2)
        pass
    for ct in range(4):
        for h in range(2):
            r = WF + ((kp & 1) * 4 + ct) * 4 + 2 * h
            A(f"ds_read_b64_tr_b16 v[{r}:{r+1}], v14 offset:{L_WQ + kp*4096 + h*2048 + ct*256}")
    for ct in range(4):
        A(f"s_waitcnt lgkmcnt({6 - 2*ct})")
        mfma(QD + 4 * ct, WF + ((kp & 1) * 4 + ct) * 4, XA + 4 * kp, None if kp == 0 else QD + 4 * ct)
C("select: lo half cts (0,1) -> v[24:25], hi half cts (2,3) -> v[26:27]")
nop(5)
for hf in range(2):
    a, b = QD + 8 * hf, QD + 8 * hf + 4
    for j in range(2):
        A(f"v_cndmask_b32 v{28+j}, v{a+j}, v{a+2+j}, s[66:67]")
        A(f"v_cndmask_b32 v{30+j}, v{b+j}, v{b+2+j}, s[66:67]")
    for j in range(2):
        A(f"v_cndmask_b32 v{24+2*hf+j}, v{28+j}, v{30+j}, s[68:69]")
A("s_cbranch_execz L_dry2")
A(f"s_cmp_eq_u32 s{S_B}, 0")
A(f"s_cselect_b64 vcc, -1, 0")
set_exec(0x00ff00ff00ff00ff)
A("v_cndmask_b32 v56, v24, v26, vcc")
A("v_cndmask_b32 v57, v25, v27, vcc")
A("v_cndmask_b32 v60, v26, v24, vcc")
A("v_cndmask_b32 v61, v27, v25, vcc")
A(f"buffer_store_dwordx4 v[56:59], v70, {WS}, s{63 if CFG['dual'] else 65} offen{'' if CFG['dual'] else ' sc1'}")
stamp(6)
lx, lxe, lxs = newlbl("Lx"), newlbl("Lxe"), newlbl("Lxs")
A(f"s_mov_b32 s{S_TO}, {CFG['timeout']}")
L(lx)
if CFG["dual"]:
    A(f"s_cmp_lg_u32 s{S_TO}, {CFG['timeout'] - 4}")
    A(f"s_cbranch_scc1 {lxs}")
    C("partner not seen through L2 yet: also send the coherent copy")
    A(f"buffer_store_dwordx4 v[56:59], v70, {WS}, s65 offen sc1")
    L(lxs)
A(f"s_and_b32 s{S_T0}, s{S_TO}, 7")
A(f"s_cmp_eq_u32 s{S_T0}, 1")
A(f"s_cselect_b32 s{S_T1}, s64, s{62 if CFG['dual'] else 64}")
A(f"buffer_load_dwordx4 v[24:27], v70, {WS}, s{S_T1} offen sc1")
A(f"s_sub_u32 s{S_TO}, s{S_TO}, 1")
A(f"s_cbranch_scc1 {lxe}")
A("s_waitcnt vmcnt(0)")
A("v_cmp_ne_u64 vcc, v[26:27], v[58:59]")
A("s_cmp_lg_u64 vcc, 0")
A(f"s_cbranch_scc1 {lx}")
L(lxe)
A("s_waitcnt vmcnt(0)")
A("v_pk_add_f32 v[60:61], v[60:61], v[24:25]")
A("v_cvt_pk_bf16_f32 v60, v60, v61")
nop(2)
A("v_mov_b32_dpp v61, v60 quad_perm:[2,3,0,1] row_mask:0xf bank_mask:0xf")
set_exec(0x0033003300330033)
for r in range(CFG["qrep"]):
    A(f"s_add_u32 s{S_T1}, s{S_T5}, {WS_QR + r*32768}")
    A(f"buffer_store_dwordx4 v[60:63], v69, {WS}, s{S_T1} offen")
A(f"buffer_store_dwordx4 v[60:63], v69, {WS}, s{S_T5} offen sc1")
if CFG["dual"]:
    C("always leave a coherent copy for the partner")
    set_exec(0x00ff00ff00ff00ff)
    A(f"buffer_store_dwordx4 v[56:59], v70, {WS}, s65 offen sc1")
A("s_mov_b64 exec, -1")
stamp(3)
A("s_branch L_qm1")
begin("qm2")
L("L_qm1")
A(f"s_cmp_eq_u32 s{S_ROLE}, 0")
A("s_cbranch_scc1 L_exit")
A("s_barrier")
A(f"v_mov_b32 v{V_T}, 0")
A(f"ds_read_b64 v[{TT+2}:{TT+3}], v{V_T} offset:{L_TAG}")
A(f"ds_read_b128 v[{V_TG}:{V_TG+3}], v{V_T} offset:{L_TAG + 16}")
A(f"s_cmp_eq_u32 s{S_ROLE}, 2")
A("s_cbranch_scc1 L_F")

C("==== E: wo projection, 8 waves: head=w&3, col half=w>>2; wave gathers records 2w,2w+1")
V_WX = 16
A(f"s_lshl_b32 s{S_T1}, s{S_X}, 4")
A(f"s_lshl_b32 s{S_T2}, s{S_WAVE}, 1")
A(f"s_add_u32 s{S_T1}, s{S_T1}, s{S_T2}")
A(f"s_mul_i32 s{S_T1}, s{S_T1}, {RECP}")
A(f"s_add_u32 s{S_PNA}, s{S_T1}, {WS_PNA if CFG['dual'] else WS_PNB}")
A(f"s_add_u32 s{S_PNB}, s{S_T1}, {WS_PNB}")
EA0, EA1, EA2, EA3, EA4, EA5 = V_T + 36, V_T + 37, V_T + 38, V_T + 39, V_T + 2, V_T + 3
C("stats gather addr: lane<8: (l>>2)*RECP + (l&3)*16 (+1024)")
A(f"v_lshrrev_b32 v{EA0}, 2, v0")
A(f"s_movk_i32 s{S_T2}, {RECP}")
A(f"v_mul_lo_u32 v{EA0}, v{EA0}, s{S_T2}")
A(f"v_and_b32 v{EA1}, 3, v0")
A(f"v_lshl_add_u32 v{EA0}, v{EA1}, 4, v{EA0}")
A(f"s_mul_i32 s{S_T2}, s{S_WAVE}, {2*PNP}")
A(f"s_add_u32 s{S_T2}, s{S_T2}, {L_PS}")
A(f"v_add_u32 v{EA1}, s{S_T2}, v2")
A(f"s_lshl_b32 s{S_T2}, s{S_WAVE}, 7")
A(f"v_add_u32 v{EA2}, s{S_T2}, v2")
A(f"s_and_b32 s{S_T4}, s{S_WAVE}, 3")
A(f"s_lshr_b32 s{S_T5}, s{S_WAVE}, 2")
A(f"s_movk_i32 s{S_T2}, {PNP}")
A(f"v_mul_lo_u32 v{EA3}, v6, s{S_T2}")
A(f"v_lshl_add_u32 v{EA3}, v4, 4, v{EA3}")
A(f"s_lshl_b32 s{S_T2}, s{S_T4}, 6")
A(f"s_add_u32 s{S_T2}, s{S_T2}, {L_PS}")
A(f"v_add_u32 v{EA3}, s{S_T2}, v{EA3}")
A(f"v_lshlrev_b32 v{EA4}, 6, v6")
A(f"s_lshl_b32 s{S_T2}, s{S_T4}, 4")
A(f"v_add_u32 v{EA4}, s{S_T2}, v{EA4}")
A(f"s_lshl_b32 s{S_T2}, s{S_T4}, 9")
A(f"s_lshl_b32 s{S_T3}, s{S_T5}, 8")
A(f"s_add_u32 s{S_T2}, s{S_T2}, s{S_T3}")
A(f"v_lshl_add_u32 v{EA5}, v0, 2, s{S_T2}")
C("weights tr-read addr: WO + hd*16384 + ch*512 + (l>>5)*1024 + (l&31)*8")
A(f"v_lshrrev_b32 v{TT}, 5, v0")
A(f"v_lshlrev_b32 v{TT}, 10, v{TT}")
A(f"v_and_b32 v{TT+1}, 31, v0")
A(f"v_lshl_add_u32 v{TT}, v{TT+1}, 3, v{TT}")
A(f"s_lshl_b32 s{S_T2}, s{S_T4}, 14")
A(f"s_lshl_b32 s{S_T3}, s{S_T5}, 9")
A(f"s_add_u32 s{S_T2}, s{S_T2}, s{S_T3}")
A(f"s_add_u32 s{S_T2}, s{S_T2}, {L_WO}")
A(f"v_add_u32 v{TT}, s{S_T2}, v{TT}")
A(f"v_mul_u32_u24 v{V_T+32}, 80, v4")
C("final-stage addresses (wave 0, lanes<32): RED read / AP write")
A(f"v_bfe_u32 v{V_T+33}, v0, 3, 1")
A(f"v_lshlrev_b32 v{V_T+33}, 8, v{V_T+33}")
A(f"v_lshl_add_u32 v{V_T+33}, v4, 7, v{V_T+33}")
A(f"v_and_b32 v{V_T+34}, 7, v0")
A(f"v_lshl_add_u32 v{V_T+33}, v{V_T+34}, 4, v{V_T+33}")
A(f"v_lshlrev_b32 v{V_T+34}, 11, v4")
A(f"v_lshl_add_u32 v{V_T+34}, v6, 4, v{V_T+34}")
A(f"s_lshl_b32 s{S_NT}, s{S_X}, 12")
A(f"s_lshl_b32 s{S_T1}, s{S_SUB}, 8")
A(f"s_add_u32 s{S_NT}, s{S_NT}, s{S_T1}")
A(f"s_add_u32 s{S_NT}, s{S_NT}, {WS_AP}")
if CFG["dry3"]:
    A("s_waitcnt lgkmcnt(0)")
    A("s_mov_b64 exec, 0")
    A("s_branch L_edry")
L("L_eret")
A("s_waitcnt vmcnt(0) lgkmcnt(0)")
A("s_barrier")
stamp(4)
L("L_edry")
C("DRY{")
for kp in range(4):
    for c in range(2):
        for h in range(2):
            r = V_WX + (kp * 2 + c) * 4 + 2 * h
            A(f"ds_read_b64_tr_b16 v[{r}:{r+1}], v{TT} offset:{kp*4096 + h*2048 + c*256}")
SG = V_G + 8
le, lee = newlbl("Le"), newlbl("Lee")
A(f"s_mov_b32 s{S_TO}, {CFG['timeout']}")
L(le)
A(f"s_and_b32 s{S_T0}, s{S_TO}, {CFG['bmask']}")
A(f"s_cmp_eq_u32 s{S_T0}, 1")
A(f"s_cselect_b32 s{S_T1}, s{S_PNB}, s{S_PNA}")
A(f"v_mov_b32 v{SG+2}, v{TT+2}")
A(f"v_mov_b32 v{SG+3}, v{TT+3}")
A("s_mov_b64 exec, 0xff")
A(f"buffer_load_dwordx4 v[{SG}:{SG+3}], v{EA0}, {WS}, s{S_T1} offen offset:1024 sc1")
A("s_mov_b64 exec, -1")
for i in range(2):
    r = V_G + i * 4
    A(f"buffer_load_dwordx4 v[{r}:{r+3}], v2, {WS}, s{S_T1} offen offset:{i*RECP} sc1")
A(f"s_sub_u32 s{S_TO}, s{S_TO}, 1")
A(f"s_cbranch_scc1 {lee}")
A("s_waitcnt vmcnt(0)")
tree3("v_max3_u32", "v_max_u32", range(V_G, V_G + 8), TT)
A(f"v_cmp_eq_u32 vcc, -1, v{TT}")
A(f"v_cmp_ne_u64 s[{S_T2}:{S_T3}], v[{SG+2}:{SG+3}], v[{TT+2}:{TT+3}]")
A(f"s_or_b64 vcc, vcc, s[{S_T2}:{S_T3}]")
A(f"s_cbranch_scc1 {le}")
L(lee)
A("s_waitcnt vmcnt(0)")
stamp(7)
for i in range(2):
    r = V_G + i * 4
    A(f"ds_write_b128 v{EA1}, v[{r}:{r+3}] offset:{i*PNP}")
A("s_mov_b64 exec, 0xff")
A(f"ds_write_b128 v{EA2}, v[{SG}:{SG+3}] offset:{L_STS}")
A("s_mov_b64 exec, -1")
A("s_waitcnt lgkmcnt(0)")
A("s_barrier")
SM0 = V_T + 4
MG = V_T + 8
FW = V_T + 24
A(f"ds_read_b64 v[{SM0}:{SM0+1}], v{EA4} offset:{L_STS}")
for kp in range(4):
    r = V_G + kp * 4
    A(f"ds_read_b128 v[{r}:{r+3}], v{EA3} offset:{kp*256}")
EA = V_S
A("s_waitcnt lgkmcnt(4)")
A(f"v_mov_b32 v{MG}, v{SM0}")
R8 = ROW_ALL[:3]
fill = []
for c in R8:
    fill.append(["s_nop 0", f"v_max_f32_dpp v{MG}, v{MG}, v{MG} {c} row_mask:0xf bank_mask:0xf"])
fill.append([f"v_sub_f32 v{SM0}, v{SM0}, v{MG}", f"v_exp_f32 v{SM0}, v{SM0}", "s_nop 0", f"v_mul_f32 v{MG}, v{SM0}, v{SM0+1}"])
for c in R8:
    fill.append(["s_nop 0", f"v_add_f32_dpp v{MG}, v{MG}, v{MG} {c} row_mask:0xf bank_mask:0xf"])
fill.append([f"v_rcp_f32 v{MG}, v{MG}", "s_nop 0", f"v_mul_f32 v{SM0}, v{SM0}, v{MG}"])
fi = 0
for kp in range(4):
    A(f"s_waitcnt lgkmcnt({3-kp})")
    for c in range(2):
        d = EA + c * 4
        mfma(d, V_G + kp * 4, V_WX + (kp * 2 + c) * 4, None if kp == 0 else d)
        for ins in fill[fi]:
            A(ins)
        fi += 1
assert fi == len(fill)
for r in range(4):
    A(f"ds_bpermute_b32 v{FW+r}, v{V_T+32}, v{SM0} offset:{4*r}")
A("s_waitcnt lgkmcnt(0)")
for c in range(2):
    d = EA + 4 * c
    A(f"v_mul_f32 v{d}, v{d}, v{FW}")
    A(f"v_mul_f32 v{d+2}, v{d+2}, v{FW+2}")
    A(f"v_fmac_f32 v{d}, v{d+1}, v{FW+1}")
    A(f"v_fmac_f32 v{d+2}, v{d+3}, v{FW+3}")
for c in range(2):
    d = EA + 4 * c
    A(f"v_add_f32 v{d}, v{d}, v{d+2}")
nop(2)
A(f"v_permlane16_swap_b32 v{EA}, v{EA+4}")
A(f"v_add_f32 v{EA}, v{EA}, v{EA+4}")
A(f"ds_write_b32 v{EA5}, v{EA} offset:{L_RED}")
A("s_waitcnt lgkmcnt(0)")
A("s_barrier")
A(f"s_cmp_lg_u32 s{S_WAVE}, 0")
A("s_cbranch_scc1 L_exit")
A("s_mov_b32 exec_hi, 0")
for i in range(4):
    A(f"ds_read_b128 v[{V_G+4*i}:{V_G+4*i+3}], v{V_T+33} offset:{L_RED + i*512}")
A("s_waitcnt lgkmcnt(0)")
for j in (0, 2):
    A(f"v_pk_add_f32 v[{V_G+j}:{V_G+j+1}], v[{V_G+j}:{V_G+j+1}], v[{V_G+4+j}:{V_G+5+j}]")
    A(f"v_pk_add_f32 v[{V_G+8+j}:{V_G+9+j}], v[{V_G+8+j}:{V_G+9+j}], v[{V_G+12+j}:{V_G+13+j}]")
for j in (0, 2):
    A(f"v_pk_add_f32 v[{V_G+j}:{V_G+j+1}], v[{V_G+j}:{V_G+j+1}], v[{V_G+8+j}:{V_G+9+j}]")
tag(V_G, V_TG)
A(f"buffer_store_dwordx4 v[{V_G}:{V_G+3}], v{V_T+34}, {WS}, s{S_NT} offen sc1")
stamp(8)
A("s_branch L_exit")

C("}DRY")
L("L_F")
C("==== F: MLP. 8 waves gather (b=w>>2, 128-col quarter q=w&3); waves 0..3 also do w1/gelu/w2")
V_W2 = 128
FG = 48
HX = 64
C("x[b][128q + 4(l&31)..] ; b1[mi*32 + (l&31)]")
srd(SRD_A, P_X, 2048)
A("v_and_b32 v12, 31, v0")
A("v_lshlrev_b32 v13, 3, v12")
A(f"s_lshl_b32 s{S_T0}, s{S_WAVE}, 8")
A(f"buffer_load_dwordx2 v[{V_SM}:{V_SM+1}], v13, {SA}, s{S_T0} offen")
srd(SRD_C, P_B1, 3584)
A("v_lshlrev_b32 v13, 1, v12")
A(f"s_lshl_b32 s{S_T0}, s{S_SUB}, 6")
A(f"buffer_load_ushort v{V_SM+2}, v13, {SC_}, s{S_T0} offen")
C("gather addr: (l>>5)*4096 + (l&31)*16 ; soffset = AP + w*512 + i*8192")
GAD, HA, STW, STR = V_T, V_T + 1, V_T + 2, V_T + 3
A(f"v_lshrrev_b32 v{GAD}, 5, v0")
A(f"v_lshlrev_b32 v{GAD}, 12, v{GAD}")
A(f"v_lshl_add_u32 v{GAD}, v12, 4, v{GAD}")
A(f"s_lshl_b32 s{S_T0}, s{S_WAVE}, 9")
A(f"s_add_u32 s{S_T0}, s{S_T0}, {WS_AP}")
SX = 62
for i in range(4):
    A(f"s_add_u32 s{SX+i}, s{S_T0}, {i*8192}")
C("hn write addr (cols 4j.., j=l&31): w*256 + (j>>3)*64 + (j&3)*16 + ((j>>2)&1)*8")
A(f"v_lshrrev_b32 v{HA}, 3, v12")
A(f"v_lshlrev_b32 v{HA}, 6, v{HA}")
A("v_and_b32 v13, 3, v0")
A(f"v_lshl_add_u32 v{HA}, v13, 4, v{HA}")
A("v_bfe_u32 v13, v0, 2, 1")
A(f"v_lshl_add_u32 v{HA}, v13, 3, v{HA}")
A(f"s_lshl_b32 s{S_T0}, s{S_WAVE}, 8")
A(f"v_add_u32 v{HA}, s{S_T0}, v{HA}")
C("LN stats exchange: STS + w*8 ; read STS + b*32 (sentinel initialised)")
A(f"s_lshl_b32 s{S_T0}, s{S_WAVE}, 3")
A(f"v_mov_b32 v{STW}, s{S_T0}")
A(f"s_lshr_b32 s{S_T0}, s{S_WAVE}, 2")
A(f"s_lshl_b32 s{S_T0}, s{S_T0}, 5")
A(f"v_mov_b32 v{STR}, s{S_T0}")
A("v_mov_b32 v14, -1")
A("v_mov_b32 v15, -1")
A(f"ds_write_b64 v{STW}, v[14:15] offset:{L_STS}")
C("compute-wave addresses")
vw2_addr()
A(f"s_lshl_b32 s{S_T0}, s{S_WAVE}, 13")
A(f"s_add_u32 s{S_T1}, s{S_T0}, {L_W2}")
A(f"v_add_u32 v{VB0}, s{S_T1}, v{VA0}")
A(f"v_add_u32 v{VB1}, s{S_T1}, v{VA1}")
A(f"s_add_u32 s{S_T1}, s{S_T0}, {L_WX}")
A(f"v_lshl_add_u32 v{TT}, v0, 3, s{S_T1}")
A0, A1, A2, YAD = V_T + 36, V_T + 37, V_T + 38, V_T + 39
A(f"v_lshlrev_b32 v{A0}, 10, v10")
A(f"v_lshl_add_u32 v{A0}, v4, 4, v{A0}")
A(f"s_lshl_b32 s{S_T0}, s{S_WAVE}, 8")
A(f"v_add_u32 v{A0}, s{S_T0}, v{A0}")
A(f"v_lshlrev_b32 v{A1}, 7, v6")
A(f"v_lshl_add_u32 v{A1}, v4, 4, v{A1}")
A(f"v_add_u32 v{A1}, s{S_T0}, v{A1}")
C("h1 write addr: lane (b=l>>5, c=l&31): H1 + w*128 + b*64 + ((c>>2)&3)*16 + (c>>4)*8 + (c&3)*2")
A(f"v_lshrrev_b32 v{A2}, 5, v0")
A(f"v_lshlrev_b32 v{A2}, 6, v{A2}")
A("v_bfe_u32 v13, v0, 2, 2")
A(f"v_lshl_add_u32 v{A2}, v13, 4, v{A2}")
A("v_bfe_u32 v13, v0, 4, 1")
A(f"v_lshl_add_u32 v{A2}, v13, 3, v{A2}")
A("v_and_b32 v13, 3, v0")
A(f"v_lshl_add_u32 v{A2}, v13, 1, v{A2}")
A(f"s_lshl_b32 s{S_T1}, s{S_WAVE}, 7")
A(f"s_add_u32 s{S_T1}, s{S_T1}, {L_H1}")
A(f"v_add_u32 v{A2}, s{S_T1}, v{A2}")
C("B_ct operand addresses: (n>>1)==ct ? H1 + w*128 + (n&1)*64 + g*16 : ZERO")
BA = V_T + 24
A("v_lshlrev_b32 v13, 6, v10")
A("v_lshl_add_u32 v13, v4, 4, v13")
A(f"v_add_u32 v13, s{S_T1}, v13")
A(f"v_mov_b32 v14, {L_ZERO}")
A("v_bfe_u32 v15, v0, 1, 3")
for ct in range(8):
    A(f"v_cmp_eq_u32 vcc, {ct}, v15")
    A("s_nop 1")
    A(f"v_cndmask_b32 v{BA+ct}, v14, v13, vcc")
for j in range(4):
    A(f"v_mov_b32 v{16+j}, 0")
A(f"ds_write_b128 v14, v[16:19]")
C("Y store addr: (n&1)*2048 + (n>>1)*64 + g*16 ; soff = Y + mi*YP + w*512")
A(f"v_lshlrev_b32 v{YAD}, 11, v10")
A(f"v_lshl_add_u32 v{YAD}, v15, 6, v{YAD}")
A(f"v_lshl_add_u32 v{YAD}, v4, 4, v{YAD}")
S_Y = 70
A(f"s_mul_i32 s{S_Y}, s{S_SUB}, {YP}")
A(f"s_lshl_b32 s{S_T1}, s{S_WAVE}, 9")
A(f"s_add_u32 s{S_Y}, s{S_Y}, s{S_T1}")
A(f"s_add_u32 s{S_Y}, s{S_Y}, {WS_Y}")
A("v_lshlrev_b32 v3, 2, v0")
if CFG["dry3"]:
    A("s_waitcnt lgkmcnt(0)")
    A("s_mov_b64 exec, 0")
    A("s_branch L_fdry")
L("L_fret")
A("s_waitcnt vmcnt(0) lgkmcnt(0)")
unpack(HX, V_SM, 2)
A(f"v_lshlrev_b32 v{V_SM+2}, 16, v{V_SM+2}")
A("s_barrier")
stamp(4)
L("L_fdry")
C("DRY{")
A(f"s_cmp_ge_u32 s{S_WAVE}, 4")
A("s_cbranch_scc1 L_F1")
for kp in range(4):
    for ct in range(2):
        for h in range(2):
            r = V_WX + (kp * 2 + ct) * 4 + 2 * h
            A(f"ds_read_b64_tr_b16 v[{r}:{r+1}], v{TT} offset:{kp*2048 + h*1024 + ct*512}")
A("s_waitcnt lgkmcnt(0)")
for ct in range(8):
    for h in range(2):
        r = V_W2 + ct * 4 + 2 * h
        A(f"ds_read_b64_tr_b16 v[{r}:{r+1}], v{VB0 + (ct & 1)} offset:{(ct >> 1)*256 + h*4096}")
L("L_F1")


def f_loads():
    for i in range(4):
        r = FG + i * 4
        A(f"buffer_load_dwordx4 v[{r}:{r+3}], v{GAD}, {WS}, s{SX+i} offen sc1")


tpoll(f_loads, range(FG, FG + 16), TT, V_TG, CFG['fsl'])
stamp(7)
for j in (0, 2):
    A(f"v_pk_add_f32 v[{FG+j}:{FG+j+1}], v[{FG+j}:{FG+j+1}], v[{FG+4+j}:{FG+5+j}]")
    A(f"v_pk_add_f32 v[{FG+8+j}:{FG+9+j}], v[{FG+8+j}:{FG+9+j}], v[{FG+12+j}:{FG+13+j}]")
for j in (0, 2):
    A(f"v_pk_add_f32 v[{FG+j}:{FG+j+1}], v[{FG+j}:{FG+j+1}], v[{FG+8+j}:{FG+9+j}]")
swap_steps("v_add_f32", [FG + j for j in range(4)], [FG + 4 + j for j in range(4)], which=(32,))
HP = FG + 8
pack(HP, FG, 2)
unpack(FG, HP, 2)
for j in range(4):
    A(f"v_add_f32 v{HX+j}, v{HX+j}, v{FG+j}")
pack(HP, HX, 2)
unpack(HX, HP, 2)
C("local stats around pivot c = h[first]")
A("s_nop 0")
A(f"v_readfirstlane_b32 s{S_T2}, v{HX}")
A("s_nop 1")
for j in range(4):
    A(f"v_subrev_f32 v{FG+j}, s{S_T2}, v{HX+j}")
SS, SQ = FG + 10, FG + 11
A(f"v_add_f32 v{SS}, v{FG}, v{FG+1}")
A(f"v_mul_f32 v{SQ}, v{FG}, v{FG}")
A(f"v_add_f32 v{FG+4}, v{FG+2}, v{FG+3}")
A(f"v_fmac_f32 v{SQ}, v{FG+1}, v{FG+1}")
A(f"v_add_f32 v{SS}, v{SS}, v{FG+4}")
A(f"v_fmac_f32 v{SQ}, v{FG+2}, v{FG+2}")
A(f"v_fmac_f32 v{SQ}, v{FG+3}, v{FG+3}")
nop(1)
dpp_steps("v_add_f32", [SS, SQ], ROW_ALL)
swap_steps("v_add_f32", [SS, SQ], [FG + 4, FG + 5], which=(16,))
C("mean_w = c + s/128 ; M2_w = ss - s*s/128")
A(f"v_mul_f32 v{FG+4}, {f2u(1.0/128):#x}, v{SS}")
A(f"v_fma_f32 v{SQ}, -v{FG+4}, v{SS}, v{SQ}")
A(f"v_add_f32 v{SS}, s{S_T2}, v{FG+4}")
A("s_mov_b64 exec, 1")
A(f"ds_write_b64 v{STW}, v[{SS}:{SQ}] offset:{L_STS}")
A("s_mov_b64 exec, -1")
l3, l3e = newlbl("Lst"), newlbl("Lste")
A(f"s_mov_b32 s{S_TO}, {CFG['timeout']}")
L(l3)
A(f"ds_read_b128 v[{FG}:{FG+3}], v{STR} offset:{L_STS}")
A(f"ds_read_b128 v[{FG+4}:{FG+7}], v{STR} offset:{L_STS + 16}")
A(f"s_sub_u32 s{S_TO}, s{S_TO}, 1")
A(f"s_cbranch_scc1 {l3e}")
A("s_waitcnt lgkmcnt(0)")
tree3("v_max3_u32", "v_max_u32", range(FG, FG + 8), TT)
A(f"v_cmp_eq_u32 vcc, -1, v{TT}")
A("s_cmp_lg_u64 vcc, 0")
A(f"s_cbranch_scc1 {l3}")
L(l3e)
A("s_waitcnt lgkmcnt(0)")
MEAN, VAR, TM = FG + 8, FG + 9, FG + 10
A(f"v_add_f32 v{MEAN}, v{FG}, v{FG+2}")
A(f"v_add_f32 v{TM}, v{FG+4}, v{FG+6}")
A(f"v_add_f32 v{VAR}, v{FG+1}, v{FG+3}")
A(f"v_add_f32 v{MEAN}, v{MEAN}, v{TM}")
A(f"v_add_f32 v{TM}, v{FG+5}, v{FG+7}")
A(f"v_mul_f32 v{MEAN}, 0.25, v{MEAN}" if False else f"v_mul_f32 v{MEAN}, {f2u(0.25):#x}, v{MEAN}")
A(f"v_add_f32 v{VAR}, v{VAR}, v{TM}")
for j in range(4):
    A(f"v_sub_f32 v{FG+2*j}, v{FG+2*j}, v{MEAN}")
A(f"v_mul_f32 v{TM}, v{FG}, v{FG}")
for j in range(1, 4):
    A(f"v_fmac_f32 v{TM}, v{FG+2*j}, v{FG+2*j}")
A(f"v_mul_f32 v{VAR}, {f2u(1.0/512):#x}, v{VAR}")
A(f"v_fmac_f32 v{VAR}, {f2u(0.25):#x}, v{TM}")
bf16r(MEAN, MEAN)
bf16r(VAR, VAR)
for j in range(4):
    A(f"v_sub_f32 v{FG+j}, v{HX+j}, v{MEAN}")
A(f"v_add_f32 v{VAR}, {f2u(1e-5):#x}, v{VAR}")
pack(HP + 4, FG, 2)
bf16r(VAR, VAR)
unpack(FG, HP + 4, 2)
A(f"v_sqrt_f32 v{VAR}, v{VAR}")
nop(1)
bf16r(VAR, VAR)
A(f"v_rcp_f32 v{VAR}, v{VAR}")
nop(1)
for j in range(4):
    A(f"v_mul_f32 v{FG+j}, v{FG+j}, v{VAR}")
pack(HP + 4, FG, 2)
A("s_mov_b32 exec_hi, 0")
A(f"ds_write_b64 v{HA}, v[{HP+4}:{HP+5}] offset:{L_HN}")
A("s_mov_b32 exec_hi, -1")
c0 = math.sqrt(2.0 / math.pi)
k0 = -2.0 * c0 * LOG2E
k1 = k0 * 0.044715
A(f"s_mov_b32 s{S_T1}, {f2u(k1):#x}")
A(f"v_mov_b32 v{TT}, {f2u(k0):#x}")
A("s_waitcnt lgkmcnt(0)")
A("s_barrier")
stamp(8)
A(f"s_cmp_ge_u32 s{S_WAVE}, 4")
A("s_cbranch_scc1 L_exit")
for kp in range(4):
    A(f"ds_read_b128 v[{V_Q+4*kp}:{V_Q+4*kp+3}], v{A0} offset:{L_HN + kp*64}")
for kp in range(4):
    A(f"s_waitcnt lgkmcnt({3-kp})")
    for ct in range(2):
        mfma(V_S + 4 * ct, V_WX + (kp * 2 + ct) * 4, V_Q + 4 * kp, None if kp == 0 else V_S + 4 * ct)
nop(6)
set_exec(MASK_N2)
A(f"ds_write_b128 v{A1}, v[{V_S}:{V_S+3}] offset:{L_RED}")
A(f"ds_write_b128 v{A1}, v[{V_S+4}:{V_S+7}] offset:{L_RED + 64}")
A("s_mov_b64 exec, -1")
A("s_waitcnt lgkmcnt(0)")
A("s_barrier")
U = 16
for wp in range(4):
    A(f"ds_read_b32 v{U+wp}, v3 offset:{L_RED + wp*256}")
A("s_waitcnt lgkmcnt(0)")
A(f"v_add_f32 v{U}, v{U}, v{U+1}")
A(f"v_add_f32 v{U+2}, v{U+2}, v{U+3}")
A(f"v_add_f32 v{U}, v{U}, v{U+2}")
bf16r(U, U)
A(f"v_add_f32 v{U}, v{U}, v{V_SM+2}")
bf16r(U, U)
A(f"v_mul_f32 v{U+1}, v{U}, v{U}")
A(f"v_fma_f32 v{U+1}, v{U+1}, s{S_T1}, v{TT}")
A(f"v_mul_f32 v{U+1}, v{U+1}, v{U}")
A(f"v_exp_f32 v{U+1}, v{U+1}")
nop(1)
A(f"v_add_f32 v{U+1}, 1.0, v{U+1}")
A(f"v_rcp_f32 v{U+1}, v{U+1}")
nop(1)
A(f"v_mul_f32 v{U}, v{U}, v{U+1}")
A(f"v_cvt_pk_bf16_f32 v{U}, v{U}, v{U}")
A(f"ds_write_b16 v{A2}, v{U}")
BO = 32
for ct in range(8):
    A(f"ds_read_b128 v[{BO+4*ct}:{BO+4*ct+3}], v{BA+ct}")
YA = 24
for ct in range(8):
    A(f"s_waitcnt lgkmcnt({7-ct})")
    mfma(YA, V_W2 + 4 * ct, BO + 4 * ct, None if ct == 0 else YA)
nop(8)
tag(YA, V_TG)
A(f"buffer_store_dwordx4 v[{YA}:{YA+3}], v{YAD}, {WS}, s{S_Y} offen sc1")
stamp(9)
A("s_branch L_exit")
C("}DRY")
if CFG["dry2"]:
    for r, ret in ((1, "L_kret"), (2, "L_eret"), (3, "L_fret")):
        L(f"L_exit_{r}")
        A("s_cbranch_execnz L_exit")
        A("s_mov_b64 exec, -1")
        A(f"s_branch {ret}")
L("L_exit")
stamp_flush()
L("L_end")
A("s_endpgm")

out.append(f""".section .rodata,"a"
.p2align 6
.amdhsa_kernel {NAME}_kernel
  .amdhsa_next_free_vgpr 168
  .amdhsa_next_free_sgpr 102
  .amdhsa_accum_offset 168
  .amdhsa_group_segment_fixed_size 0
  .amdhsa_kernarg_size 104
  .amdhsa_user_sgpr_count 2
  .amdhsa_user_sgpr_kernarg_segment_ptr 1
  .amdhsa_system_sgpr_workgroup_id_x 1
.end_amdhsa_kernel""")

order = CFG_ORDER
lines = [l for b in order for l in BLK[b]]


def dry_pass(lines):
    res, indry, k = [], False, 0
    i = 0

    def is_mem(t):
        return t.startswith(("buffer_", "global_", "s_load", "s_atomic", "s_barrier"))

    def exec_write(t):
        return t.startswith(("s_mov_b64 exec", "s_mov_b32 exec", "s_and_b64 exec"))

    def restores(t):
        return t in ("s_mov_b64 exec, -1", "s_mov_b32 exec_hi, -1")
    open_span, masked, nd = None, False, False
    for l in lines:
        t = l.strip()
        if t == "; DRY{":
            indry = True
            i += 1
            continue
        if t == "; }DRY":
            assert open_span is None or True
            if open_span:
                res.append(open_span + ":")
                open_span = None
            masked = False
            indry = False
            continue
        if not (indry and CFG["dry2"]):
            if t not in ("; ND{", "; }ND"):
                res.append(l)
            continue
        if t == "; ND{":
            nd = True
            if not open_span:
                k += 1
                open_span = f"L_sk{k}"
                res.append(f"    s_cbranch_execz {open_span}")
            continue
        if t == "; }ND":
            nd = False
            continue
        unsafe = nd or masked or is_mem(t) or exec_write(t)
        if masked and t == "s_branch L_exit":
            unsafe = False
            masked = False
        if t.endswith(" L_exit"):
            l = l + f"_{i}"
        if unsafe:
            if not open_span:
                k += 1
                open_span = f"L_sk{k}"
                res.append(f"    s_cbranch_execz {open_span}")
            res.append(l)
            if exec_write(t):
                masked = not restores(t)
        else:
            if open_span:
                res.append(open_span + ":")
                open_span = None
            res.append(l)
    return res


print("\n".join(dry_pass(lines)))
```

```python
import sys, struct, math

NAME = "sequential_preLN__sliding_block_cached__dense_activation_gelu__decode"

CFG = dict(nt=1, timeout=1 << 18, stamps=0, dual=1, tsleep0=10, tsleep=3, tsleepa=24, qsleep=0, mwin=4, touch=1, bmask=15, fsl=0, g1sl=0, g2sl=0, pf=0, pfw=16, touch2=1, kb0=6, kthm=0, kthn=8, dry=1, dry2=1, dry3=1, korder=0, ktouch=0, tl2=6, qrep=16, qsl=2, wpre=0)
for a in sys.argv[1:]:
    if "=" in a:
        k, v = a.split("=")
        CFG[k] = int(v)
NT = " nt" if CFG["nt"] else ""

WS_Q = 0x00000
RECP = 1152
WS_PNA = 0x10000
WS_PNB = 0x50000
WS_XQA = 0x90000
WS_XQB = 0x80000
WS_AP = 0xA8000
WS_Y = 0xB0000
YP = 4096 + 128
WS_TS = 0xF0000
WS_QR = 0x140000
WS_SIZE = 0x200000

L_QL = 0
L_XN = 0
L_SC = 2048
L_QR = 2048
L_HN = 4096
L_RED = 6144
L_STS = 8192
L_QS = 9216
L_H1 = 9216
L_ZERO = 9728
L_MX = 10240
L_LS = 10368
L_FLAG = 10496
L_TAG = 10512
L_FL2 = 10544
L_DUM = 10560
BIG = 11264
L_K = BIG
L_V = BIG + 65536
L_WQ = BIG
L_WO = BIG + 32768
L_WX = BIG + 32768
L_W2 = BIG + 65536
L_PS = BIG + 98304
PNP = 1040
LDS_BYTES = BIG + 131072

LOG2E = 1.4426950408889634
SCALE = 128 ** -0.5


def f2u(f):
    return struct.unpack("<I", struct.pack("<f", f))[0]


out = []


def A(s):
    out.append("    " + s)


def L(s):
    out.append(s + ":")


def C(s):
    out.append("    ; " + s)


def nop(n):
    while n > 0:
        k = min(n, 16)
        A(f"s_nop {k-1}")
        n -= k


_lbl = [0]


def newlbl(p="L"):
    _lbl[0] += 1
    return f"{p}_{_lbl[0]}"


P_X, P_K, P_V, P_WQ, P_WO, P_BX, P_W1, P_B1, P_W2, P_B2, P_OUT, P_DBG, P_WS = [36 + 2 * i for i in range(13)]
S_WAVE, S_X, S_A, S_B, S_SPL = 3, 4, 5, 6, 7
SRD_WS, SRD_A, SRD_B, SRD_C = 8, 12, 16, 20
S_T0, S_T1, S_T2, S_T3, S_T4, S_T5 = 24, 25, 26, 27, 28, 29
S_TO, S_ROLE, S_SUB, S_NT, S_PNA, S_PNB = 30, 31, 32, 33, 34, 35
S_Q = 36
S_TG = 100
WS = f"s[{SRD_WS}:{SRD_WS+3}]"
SA = f"s[{SRD_A}:{SRD_A+3}]"
SB = f"s[{SRD_B}:{SRD_B+3}]"
SC_ = f"s[{SRD_C}:{SRD_C+3}]"
V_ST = 1
S_DRY = 7
CFG_ORDER = ["head", "qc", "ldr", "gv", "att", "qm2"]
V_MSK = 5


def srd(d, p, size):
    A(f"s_mov_b32 s{d}, s{p}")
    A(f"s_mov_b32 s{d+1}, s{p+1}")
    A(f"s_mov_b32 s{d+2}, {size:#x}")
    A(f"s_mov_b32 s{d+3}, 0x00020000")


def stamp(slot):
    if CFG.get("probe", -1) == slot:
        A("s_memrealtime s[0:1]")
        A("s_waitcnt lgkmcnt(0)")
        A("s_mov_b32 s7, s0")
    if CFG["stamps"]:
        A("s_memrealtime s[0:1]")
        A("s_waitcnt lgkmcnt(0)")
        A(f"v_writelane_b32 v{V_ST}, s0, {slot}")


def stamp_flush():
    if not CFG["stamps"]:
        return
    if CFG["stamps"] == 2:
        A("s_mov_b64 exec, -1")
        A(f"v_mov_b32 v2, {L_TAG}")
        A("ds_read_b32 v3, v2")
        A("s_waitcnt lgkmcnt(0)")
        A(f"v_sub_u32 v3, v{V_ST}, v3")
        A("v_max_i32 v3, 0, v3")
        A("v_lshlrev_b32 v2, 2, v0")
        A("v_add_co_u32 v166, vcc, v166, v2")
        A("v_addc_co_u32 v167, vcc, 0, v167, vcc")
        A(f"v_cmp_ne_u32 vcc, 0, v{V_ST}")
        A("s_bitcmp1_b32 vcc_lo, 11")
        A("s_cbranch_scc0 L_end")
        A("s_and_b64 exec, vcc, 0x1fff")
        A("s_cbranch_execz L_end")
        A("global_atomic_umax v[166:167], v3, off offset:8")
        return
    A("s_mov_b64 exec, -1")
    A("s_lshl_b32 s0, s2, 10")
    A(f"s_lshl_b32 s1, s{S_WAVE}, 6")
    A("s_add_u32 s0, s0, s1")
    A(f"s_add_u32 s0, s0, {WS_TS}")
    A("v_lshlrev_b32 v2, 2, v0")
    A("s_mov_b64 exec, 0xffff")
    A(f"buffer_store_dword v{V_ST}, v2, {WS}, s0 offen")


def dpp_steps(op, regs, ctrls):
    for c in ctrls:
        pad = max(0, 2 - (len(regs) - 1))
        if pad:
            nop(pad)
        for r in regs:
            A(f"{op}_dpp v{r}, v{r}, v{r} {c} row_mask:0xf bank_mask:0xf")


ROW_ALL = ["quad_perm:[1,0,3,2]", "quad_perm:[2,3,0,1]", "row_half_mirror", "row_mirror"]
ROW_HI = ["row_ror:4", "row_ror:8"]


def swap_steps(op, regs, tmps, which=(16, 32)):
    for wd in which:
        sw = f"v_permlane{wd}_swap_b32"
        for r, t in zip(regs, tmps):
            A(f"v_mov_b32 v{t}, v{r}")
        pad = max(0, 2 - (len(regs) - 1))
        if pad:
            nop(pad)
        for r, t in zip(regs, tmps):
            A(f"{sw} v{r}, v{t}")
        for r, t in zip(regs, tmps):
            A(f"{op} v{r}, v{r}, v{t}")


def allreduce(op, regs, tmps):
    nop(2)
    dpp_steps(op, regs, ROW_ALL)
    swap_steps(op, regs, tmps)


def lds_wait(flag_off, vt, va, sleep=0):
    l, e = newlbl("Lw"), newlbl("Lwe")
    A(f"v_mov_b32 v{va}, {flag_off}")
    A(f"s_mov_b32 s{S_TO}, {CFG['timeout']}")
    L(l)
    if sleep:
        A(f"s_sleep {sleep}")
    A(f"ds_read_b32 v{vt}, v{va}")
    A(f"s_sub_u32 s{S_TO}, s{S_TO}, 1")
    A(f"s_cbranch_scc1 {e}")
    A("s_waitcnt lgkmcnt(0)")
    A(f"v_readfirstlane_b32 s{S_T0}, v{vt}")
    A(f"s_cmp_eq_u32 s{S_T0}, 0")
    A(f"s_cbranch_scc1 {l}")
    L(e)
    A("s_waitcnt lgkmcnt(0)")


def lds_set(flag_off, vt, va):
    A("s_waitcnt lgkmcnt(0)")
    A(f"v_mov_b32 v{va}, {flag_off}")
    A(f"v_mov_b32 v{vt}, 1")
    A(f"ds_write_b32 v{va}, v{vt}")


def lds_sync(cnt_off, n, vt, va):
    l, e = newlbl("Ls"), newlbl("Lse")
    A(f"v_mov_b32 v{va}, {cnt_off}")
    A(f"v_mov_b32 v{vt}, 1")
    A("s_mov_b64 exec, 1")
    A(f"ds_add_u32 v{va}, v{vt}")
    A("s_mov_b64 exec, -1")
    A(f"s_mov_b32 s{S_TO}, {CFG['timeout']}")
    L(l)
    A(f"ds_read_b32 v{vt}, v{va}")
    A(f"s_sub_u32 s{S_TO}, s{S_TO}, 1")
    A(f"s_cbranch_scc1 {e}")
    A("s_waitcnt lgkmcnt(0)")
    A(f"v_readfirstlane_b32 s{S_T0}, v{vt}")
    A(f"s_cmp_lt_u32 s{S_T0}, {n}")
    A(f"s_cbranch_scc1 {l}")
    L(e)
    A("s_waitcnt lgkmcnt(0)")


def tree3(op3, op2, regs, t):
    regs = list(regs)
    A(f"{op3} v{t}, v{regs[0]}, v{regs[1]}, v{regs[2]}")
    i = 3
    while i + 1 < len(regs):
        A(f"{op3} v{t}, v{t}, v{regs[i]}, v{regs[i+1]}")
        i += 2
    if i < len(regs):
        A(f"{op2} v{t}, v{t}, v{regs[i]}")


def tag(quad, tg):
    for j in range(4):
        A(f"v_add_u32 v{quad+j}, 0x200, v{quad+j}")
    for j in range(4):
        A(f"v_bfi_b32 v{quad+j}, v{V_MSK}, v{tg+j}, v{quad+j}")


def tpoll(loads, regs, t, tg, sleep=0):
    l, e = newlbl("Lt"), newlbl("Lte")
    regs = list(regs)
    A(f"s_mov_b32 s{S_TO}, {CFG['timeout']}")
    L(l)
    if sleep:
        A(f"s_sleep {sleep}")
    loads()
    A(f"s_sub_u32 s{S_TO}, s{S_TO}, 1")
    A(f"s_cbranch_scc1 {e}")
    A("s_waitcnt vmcnt(0)")
    for i, r in enumerate(regs):
        A(f"v_xor_b32 v{r}, v{r}, v{tg + (i & 3)}")
    tree3("v_or3_b32", "v_or_b32", regs, t)
    A(f"v_and_b32 v{t}, v{V_MSK}, v{t}")
    A(f"v_cmp_ne_u32 vcc, 0, v{t}")
    A("s_cmp_lg_u64 vcc, 0")
    A(f"s_cbranch_scc1 {l}")
    L(e)
    A("s_waitcnt vmcnt(0)")


def tpoll2(loads, nld, bases, nreg, t, tg, consume):
    l, eA, eB, done = newlbl("Lu"), newlbl("LuA"), newlbl("LuB"), newlbl("Lud")

    def check(base, target):
        A(f"s_waitcnt vmcnt({nld})")
        regs = list(range(base, base + nreg))
        for i, r in enumerate(regs):
            A(f"v_xor_b32 v{r}, v{r}, v{tg + (i & 3)}")
        tree3("v_or3_b32", "v_or_b32", regs, t)
        A(f"v_and_b32 v{t}, v{V_MSK}, v{t}")
        A(f"v_cmp_ne_u32 vcc, 0, v{t}")
        A("s_cmp_eq_u64 vcc, 0")
        A(f"s_cbranch_scc1 {target}")
    A(f"s_mov_b32 s{S_TO}, {CFG['timeout']}")
    loads(bases[0])
    L(l)
    loads(bases[1])
    check(bases[0], eA)
    loads(bases[0])
    check(bases[1], eB)
    A(f"s_sub_u32 s{S_TO}, s{S_TO}, 1")
    A(f"s_cbranch_scc0 {l}")
    A("s_waitcnt vmcnt(0)")
    L(eA)
    consume(bases[0])
    A(f"s_branch {done}")
    L(eB)
    consume(bases[1])
    L(done)


def bf16r(dst, src):
    A(f"v_cvt_pk_bf16_f32 v{dst}, v{src}, v{src}")
    A(f"v_lshlrev_b32 v{dst}, 16, v{dst}")


def unpack(dst, src, n):
    for i in range(n):
        A(f"v_lshlrev_b32 v{dst+2*i}, 16, v{src+i}")
        A(f"v_and_b32 v{dst+2*i+1}, 0xffff0000, v{src+i}")


def pack(dst, src, n):
    for i in range(n):
        A(f"v_cvt_pk_bf16_f32 v{dst+i}, v{src+2*i}, v{src+2*i+1}")


def layernorm(xs, nb, tmp, outp):
    s = [tmp + i for i in range(nb)]
    q = [tmp + nb + i for i in range(nb)]
    t = [tmp + 2 * nb + i for i in range(nb)]
    mb = [tmp + 3 * nb + i for i in range(nb)]
    d = [tmp + 4 * nb + 8 * i for i in range(nb)]
    for i in range(nb):
        x = xs[i]
        A(f"v_add_f32 v{s[i]}, v{x}, v{x+1}")
        A(f"v_add_f32 v{t[i]}, v{x+2}, v{x+3}")
        A(f"v_add_f32 v{q[i]}, v{x+4}, v{x+5}")
        A(f"v_add_f32 v{mb[i]}, v{x+6}, v{x+7}")
        A(f"v_add_f32 v{s[i]}, v{s[i]}, v{t[i]}")
        A(f"v_add_f32 v{q[i]}, v{q[i]}, v{mb[i]}")
        A(f"v_add_f32 v{s[i]}, v{s[i]}, v{q[i]}")
    allreduce("v_add_f32", s, t)
    for i in range(nb):
        A(f"v_mul_f32 v{s[i]}, {f2u(1.0/512):#x}, v{s[i]}")
    for i in range(nb):
        x = xs[i]
        for j in range(8):
            A(f"v_sub_f32 v{d[i]+j}, v{x+j}, v{s[i]}")
        A(f"v_mul_f32 v{q[i]}, v{d[i]}, v{d[i]}")
        for j in range(1, 8):
            A(f"v_fmac_f32 v{q[i]}, v{d[i]+j}, v{d[i]+j}")
        bf16r(mb[i], s[i])
    nop(2)
    dpp_steps("v_add_f32", q, ROW_ALL)
    for i in range(nb):
        x = xs[i]
        for j in range(8):
            A(f"v_sub_f32 v{d[i]+j}, v{x+j}, v{mb[i]}")
        pack(outp[i], d[i], 4)
        unpack(d[i], outp[i], 4)
    swap_steps("v_add_f32", q, t)
    for i in range(nb):
        A(f"v_mul_f32 v{q[i]}, {f2u(1.0/512):#x}, v{q[i]}")
        bf16r(q[i], q[i])
        A(f"v_add_f32 v{q[i]}, {f2u(1e-5):#x}, v{q[i]}")
        bf16r(q[i], q[i])
        A(f"v_sqrt_f32 v{q[i]}, v{q[i]}")
        nop(1)
        bf16r(q[i], q[i])
        A(f"v_rcp_f32 v{q[i]}, v{q[i]}")
    nop(1)
    for i in range(nb):
        for j in range(8):
            A(f"v_mul_f32 v{d[i]+j}, v{d[i]+j}, v{q[i]}")
        pack(outp[i], d[i], 4)


def mfma(d, a, b, c=None):
    cc = f"v[{c}:{c+3}]" if c is not None else "0"
    A(f"v_mfma_f32_16x16x32_bf16 v[{d}:{d+3}], v[{a}:{a+3}], v[{b}:{b+3}], {cc}")


MASK_N2 = 0x0003000300030003
MASK_N4 = 0x000f000f000f000f


def set_exec(mask):
    A(f"s_mov_b32 exec_lo, {mask & 0xffffffff:#x}")
    A(f"s_mov_b32 exec_hi, {mask >> 32:#x}")


def tag_poll(sleep0, sel, barrier=False):
    lt, lte = newlbl(), newlbl()
    A(f"s_and_b32 s{S_T1}, s{sel}, 3")
    A(f"s_lshl_b32 s{S_T1}, s{S_T1}, 6")
    A(f"s_mov_b32 s{S_TO}, {CFG['timeout']}")
    if sleep0:
        A(f"s_sleep {sleep0}")
    if CFG["tl2"]:
        C("first attempts through the caches, one replica line each (a line is never re-read that way)")
        for r in range(4):
            A(f"s_load_dwordx2 s[{S_TG}:{S_TG+1}], s[{P_DBG}:{P_DBG+1}], {64*r}")
            A("s_waitcnt lgkmcnt(0)")
            A(f"s_cmp_lg_u32 s{S_TG+1}, 0")
            A(f"s_cbranch_scc1 {lte}")
            A(f"s_sleep {CFG['tl2']}")
    L(lt)
    A(f"s_load_dwordx2 s[{S_TG}:{S_TG+1}], s[{P_DBG}:{P_DBG+1}], s{S_T1} glc")
    A(f"s_sub_u32 s{S_TO}, s{S_TO}, 1")
    A(f"s_cbranch_scc1 {lte}")
    A("s_waitcnt lgkmcnt(0)")
    A(f"s_cmp_lg_u32 s{S_TG+1}, 0")
    A(f"s_cbranch_scc1 {lte}")
    A(f"s_sleep {CFG['tsleep']}")
    A(f"s_branch {lt}")
    L(lte)
    A("s_waitcnt lgkmcnt(0)")
    A(f"v_mov_b32 v100, s{S_TG}")
    A(f"v_mov_b32 v101, s{S_TG+1}")
    A("v_and_b32 v104, 0x3ff, v100")
    A("v_bfe_u32 v105, v100, 10, 10")
    A("v_bfe_u32 v106, v100, 20, 10")
    A("v_alignbit_b32 v107, v101, v100, 30")
    A("v_and_b32 v107, 0x3ff, v107")
    A(f"v_mov_b32 v102, {L_TAG}")
    if barrier == 1:
        A("s_barrier")
    A("ds_write_b64 v102, v[100:101]")
    A("ds_write_b128 v102, v[104:107] offset:16")
    if barrier == 2:
        A("s_waitcnt lgkmcnt(0)")
    else:
        lds_set(L_FLAG, 100, 101)


XNT = ' nt' if CFG.get('xnt', 0) else ''
out.append(f"""; fused pre-LN attention(decode, sliding window) + gelu MLP, persistent kernel
; @launch grid=(256,1,1) block=(640,1,1) lds={LDS_BYTES}
.amdgcn_target "amdgcn-amd-amdhsa--gfx950"
.text
.globl {NAME}_kernel
.p2align 8
.type {NAME}_kernel,@function
{NAME}_kernel:""")

BLK = {"head": out}


def begin(name):
    global out
    BLK[name] = []
    out = BLK[name]


def post_entry():
    A("s_waitcnt lgkmcnt(0)")
    srd(SRD_WS, P_WS, WS_SIZE)
    if CFG["stamps"] == 2:
        A(f"v_mov_b32 v166, s{P_DBG}")
        A(f"v_mov_b32 v167, s{P_DBG+1}")
    stamp(0)


def att_common():
    A(f"s_sub_u32 s{S_A}, s{S_A}, 16")
    A(f"s_lshr_b32 s{S_B}, s{S_A}, 3")
    A(f"s_lshl_b32 s{S_T0}, s{S_X}, 4")
    A(f"s_add_u32 s{S_T0}, s{S_T0}, s{S_A}")
    A(f"s_mul_i32 s{S_T0}, s{S_T0}, {RECP}")
    A(f"s_add_u32 s{S_PNA}, s{S_T0}, {WS_PNA}")
    A(f"s_add_u32 s{S_PNB}, s{S_T0}, {WS_PNB}")


def gv_common():
    A(f"s_mul_i32 s{S_SUB}, s{S_X}, 7")
    A(f"s_add_u32 s{S_SUB}, s{S_SUB}, s{S_A}")
    A(f"s_sub_u32 s{S_SUB}, s{S_SUB}, 8")
    A(f"s_mov_b32 s{S_ROLE}, 2")
    A(f"s_cmp_lt_u32 s{S_A}, 8")
    A(f"s_cselect_b32 s{S_ROLE}, 1, s{S_ROLE}")
    A(f"s_cselect_b32 s{S_SUB}, s{S_A}, s{S_SUB}")
    A(f"s_cmp_eq_u32 s{S_A}, 15")
    A(f"s_cselect_b32 s{S_ROLE}, 0, s{S_ROLE}")


def zero_flags():
    for j in range(4):
        A(f"v_mov_b32 v{12+j}, 0")
    A(f"v_mov_b32 v3, {L_FLAG}")
    A("ds_write_b128 v3, v[12:15]")
    A(f"ds_write_b128 v3, v[12:15] offset:{L_FL2 - L_FLAG}")


if CFG.get("probe", -1) == 15:
    A("s_memrealtime s[6:7]")
    A("s_waitcnt lgkmcnt(0)")
    A("s_mov_b32 s7, s6")
A("s_cmp_ge_u32 s2, 256")
A("s_cbranch_scc1 L_end")
A("s_load_dwordx16 s[36:51], s[0:1], 0")
A("s_load_dwordx8 s[52:59], s[0:1], 64")
A("s_load_dwordx2 s[60:61], s[0:1], 96")
A("v_lshrrev_b32 v1, 6, v0")
A("v_and_b32 v0, 63, v0")
A(f"s_and_b32 s{S_X}, s2, 7")
A(f"v_readfirstlane_b32 s{S_WAVE}, v1")
A(f"s_lshr_b32 s{S_A}, s2, 3")
if CFG["pf"]:
    C("early workgroups: waves 0..5 pull the kernel's code into L2 (striped)")
    A(f"s_cmp_ge_u32 s{S_WAVE}, 5")
    A("s_cbranch_scc1 L_pfe")
    A(f"s_cmp_ge_u32 s{S_A}, {CFG['pfw']}")
    A("s_cbranch_scc1 L_pfe")
    A("s_getpc_b64 s[24:25]")
    L("L_pcref")
    A(f"s_lshl_b32 s26, s{S_WAVE}, 7")
    L("L_pf")
    A("s_load_dword s27, s[24:25], s26")
    A("s_add_u32 s26, s26, 640")
    A("s_cmp_lt_u32 s26, L_end-L_pcref")
    A("s_cbranch_scc1 L_pf")
    L("L_pfe")
A("v_lshlrev_b32 v2, 4, v0")
A("v_lshrrev_b32 v4, 4, v0")
A(f"v_mov_b32 v{V_MSK}, 0x3ff")
A("v_and_b32 v6, 15, v0")
A("v_lshrrev_b32 v8, 3, v0")
A("v_bfe_u32 v9, v0, 1, 2")
A("v_and_b32 v10, 1, v0")
A("v_lshlrev_b32 v11, 5, v8")
A("v_lshl_add_u32 v11, v10, 4, v11")
if CFG["stamps"]:
    A(f"v_mov_b32 v{V_ST}, 0")
C("dispatch before waiting for the kernel arguments")
A(f"s_lshr_b32 s{S_T0}, s{S_A}, 4")
A(f"s_lshl_b32 s{S_T0}, s{S_T0}, 4")
A(f"s_or_b32 s{S_T0}, s{S_T0}, s{S_WAVE}")
A(f"s_cmp_ge_u32 s{S_T0}, 24")
A("s_cbranch_scc1 L_ldr")
A(f"s_cmp_ge_u32 s{S_T0}, 16")
A("s_cbranch_scc1 L_att")
if CFG["dry"]:
    A(f"s_cmp_lg_u32 s{S_T0}, 5")
    A("s_cbranch_scc1 L_nd")
    C("wave 5 walks the q wave's register/LDS code with EXEC=0 to warm the instruction cache")
    A("s_mov_b64 exec, 0")
    A("s_branch L_dry")
    L("L_nd")
A(f"s_cmp_lg_u32 s{S_T0}, 6")
A("s_cbranch_scc1 L_GV")

V_K = 16
V_Q = 48
V_S = 64
V_SM = 72
V_PNA = 80
V_T = 84
V_TG = 124
V_G = 128

begin("att")
L("L_att")
att_common()
post_entry()
srd(SRD_C, P_OUT, 2048)
srd(SRD_A, P_DBG, 256)
A(f"s_lshl_b32 s{S_T1}, s{S_WAVE}, 8")
A(f"s_add_u32 s{S_PNA}, s{S_PNA}, s{S_T1}")
A(f"s_add_u32 s{S_PNB}, s{S_PNB}, s{S_T1}")
A(f"v_lshlrev_b32 v{V_PNA}, 6, v6")
A(f"v_lshl_add_u32 v{V_PNA}, v4, 4, v{V_PNA}")
C("G role: even a -> gi = x*8 + a/2 (wave 0)")
A(f"s_lshl_b32 s{S_T0}, s{S_X}, 3")
A(f"s_lshr_b32 s{S_T1}, s{S_A}, 1")
A(f"s_add_u32 s{S_SUB}, s{S_T0}, s{S_T1}")
A(f"s_and_b32 s{S_ROLE}, s{S_A}, 1")
A(f"s_or_b32 s{S_ROLE}, s{S_ROLE}, s{S_WAVE}")
A(f"s_cmp_lg_u32 s{S_ROLE}, 0")
A("s_cbranch_scc1 L_nogsm")
srd(SRD_B, P_X, 2048)
A(f"v_and_b32 v{V_T}, 3, v0")
A(f"v_lshlrev_b32 v{V_T}, 3, v{V_T}")
A(f"s_lshl_b32 s{S_T0}, s{S_SUB}, 5")
A(f"buffer_load_dwordx2 v[{V_SM}:{V_SM+1}], v{V_T}, {SB}, s{S_T0} offen{XNT}")
if CFG["touch2"]:
    A(f"buffer_load_dwordx2 v[{V_SM+4}:{V_SM+5}], v{V_T}, {SC_}, s{S_T0} offen")
srd(SRD_B, P_B2, 1024)
A(f"s_and_b32 s{S_T0}, s{S_T0}, 1023")
A(f"buffer_load_dwordx2 v[{V_SM+2}:{V_SM+3}], v{V_T}, {SB}, s{S_T0} offen{XNT}")
L("L_nogsm")
C("pre-touch this wave's q lines so that they are resident at the memory side")
A(f"s_lshl_b32 s{S_T1}, s{S_X}, 12")
A(f"s_lshl_b32 s{S_T2}, s{S_B}, 11")
A(f"s_add_u32 s{S_T1}, s{S_T1}, s{S_T2}")
A(f"s_lshl_b32 s{S_T2}, s{S_WAVE}, 8")
A(f"s_add_u32 s{S_T1}, s{S_T1}, s{S_T2}")
A(f"s_add_u32 s{S_T2}, s{SRD_WS}, s{S_T1}")
A(f"s_addc_u32 s{S_T3}, s{SRD_WS+1}, 0")
if CFG["touch"]:
    for i in range(4):
        A(f"s_load_dword s{64+i}, s[{S_T2}:{S_T3}], {WS_Q + 64*i} glc")
C("K fragment addresses: K + w*8192 + m*256 + ((4k+g)^m)*16")
KA = V_T + 36
A(f"s_lshl_b32 s{S_T0}, s{S_WAVE}, 13")
A(f"s_add_u32 s{S_T0}, s{S_T0}, {L_K}")
for kp in range(4):
    A(f"v_add_u32 v{KA+kp}, {4*kp}, v4")
    A(f"v_xor_b32 v{KA+kp}, v{KA+kp}, v6")
    A(f"v_lshlrev_b32 v{KA+kp}, 4, v{KA+kp}")
    A(f"v_lshl_add_u32 v{KA+kp}, v6, 8, v{KA+kp}")
    A(f"v_add_u32 v{KA+kp}, s{S_T0}, v{KA+kp}")
A(f"s_cmp_lg_u32 s{S_WAVE}, 7")
A("s_cbranch_scc1 L_ntp")
tag_poll(CFG["tsleepa"], S_A, barrier=2)
L("L_ntp")
A("s_barrier")
A(f"v_mov_b32 v{V_T}, 0")
A(f"ds_read_b64 v[{V_T+2}:{V_T+3}], v{V_T} offset:{L_TAG}")
A(f"ds_read_b128 v[{V_TG}:{V_TG+3}], v{V_T} offset:{L_TAG + 16}")
A("s_waitcnt lgkmcnt(0)")
A(f"v_readfirstlane_b32 s{S_TG}, v{V_T+2}")
A(f"v_readfirstlane_b32 s{S_TG+1}, v{V_T+3}")
stamp(1)
S2 = V_T + 4
PK = V_T + 12
MM = V_T + 16
TT = V_T + 20
EX = V_T + 24
QA = V_T + 1
A(f"s_lshl_b32 s{S_T0}, s{S_WAVE}, 7")
A(f"v_lshl_add_u32 v{QA}, v0, 2, s{S_T0}")
A(f"v_and_b32 v{V_T+2}, 3, v0")
A(f"v_lshlrev_b32 v{V_T+3}, 8, v{V_T+2}")
A(f"v_lshl_add_u32 v{V_T+3}, v4, 4, v{V_T+3}")
A(f"s_lshl_b32 s{S_T0}, s{S_WAVE}, 2")
A(f"v_lshl_add_u32 v{TT+2}, v0, 5, s{S_T0}")
A(f"v_lshlrev_b32 v{TT+3}, 5, v{V_T+2}")
C("---- scalar gather of q: this wave's 256 bytes (16 granules {d0,d1,T0,T1})")
lq, lqe, lqk = newlbl("Lq"), newlbl("Lqe"), newlbl("Lqk")
stamp(12)


def k_frags():
    for kp in range(4):
        for tt in range(2):
            r = V_K + (tt * 4 + kp) * 4
            A(f"ds_read_b128 v[{r}:{r+3}], v{KA+kp} offset:{tt*4096}")


A(f"v_mov_b32 v{TT}, {L_FLAG + 4}")
A(f"s_mov_b32 s{S_NT}, 0")
A(f"s_mov_b32 s{S_TO}, {CFG['timeout']}")
if CFG["qrep"]:
    A(f"s_mov_b32 s7, {WS_QR}")
L(lq)
if CFG["qrep"]:
    A(f"s_cmp_ge_u32 s7, {WS_QR + CFG['qrep']*32768}")
    A(f"s_cbranch_scc1 {lq}_g")
    C("attempt through the caches: a replica is read only once")
    A(f"s_add_u32 s{S_T4}, s{S_T2}, s7")
    A(f"s_addc_u32 s{S_T5}, s{S_T3}, 0")
    A("s_add_u32 s7, s7, 32768")
    for i in range(4):
        A(f"s_load_dwordx16 s[{S_Q+16*i}:{S_Q+16*i+15}], s[{S_T4}:{S_T5}], {64*i}")
    if CFG["qsl"]:
        A(f"s_sleep {CFG['qsl']}")
    A(f"s_branch {lq}_h")
    L(f"{lq}_g")
for i in range(4):
    A(f"s_load_dwordx16 s[{S_Q+16*i}:{S_Q+16*i+15}], s[{S_T2}:{S_T3}], {WS_Q + 64*i} glc")
if CFG["qrep"]:
    L(f"{lq}_h")
A(f"ds_read_b32 v{TT+1}, v{TT}")
A(f"s_sub_u32 s{S_TO}, s{S_TO}, 1")
A(f"s_cbranch_scc1 {lqe}")
A("s_waitcnt lgkmcnt(0)")
A(f"v_readfirstlane_b32 s{S_T0}, v{TT+1}")
A(f"s_andn2_b32 s{S_T0}, s{S_T0}, s{S_NT}")
A(f"s_cbranch_scc0 {lqk}")
A(f"s_mov_b32 s{S_NT}, 1")
k_frags()
L(lqk)
A(f"s_and_b64 s[{S_T4}:{S_T5}], s[{S_Q+2}:{S_Q+3}], s[{S_Q+6}:{S_Q+7}]")
A(f"s_or_b64 s[{S_T0}:{S_T1}], s[{S_Q+2}:{S_Q+3}], s[{S_Q+6}:{S_Q+7}]")
for gq in range(2, 16):
    A(f"s_and_b64 s[{S_T4}:{S_T5}], s[{S_T4}:{S_T5}], s[{S_Q+4*gq+2}:{S_Q+4*gq+3}]")
    A(f"s_or_b64 s[{S_T0}:{S_T1}], s[{S_T0}:{S_T1}], s[{S_Q+4*gq+2}:{S_Q+4*gq+3}]")
A(f"s_xor_b64 s[{S_T4}:{S_T5}], s[{S_T4}:{S_T5}], s[{S_TG}:{S_TG+1}]")
A(f"s_xor_b64 s[{S_T0}:{S_T1}], s[{S_T0}:{S_T1}], s[{S_TG}:{S_TG+1}]")
A(f"s_or_b64 s[{S_T4}:{S_T5}], s[{S_T4}:{S_T5}], s[{S_T0}:{S_T1}]")
A(f"s_cbranch_scc1 {lq}")
L(lqe)
A("s_waitcnt lgkmcnt(0)")
stamp(8)
if CFG["stamps"] == 1:
    A(f"s_sub_u32 s0, {CFG['timeout']}, s{S_TO}")
    A(f"v_writelane_b32 v{V_ST}, s0, 9")
for gq in range(16):
    A(f"v_writelane_b32 v{V_T}, s{S_Q+4*gq}, {2*gq}")
    A(f"v_writelane_b32 v{V_T}, s{S_Q+4*gq+1}, {2*gq+1}")
A("s_mov_b32 exec_hi, 0")
A(f"ds_write_b32 v{QA}, v{V_T} offset:{L_QL}")
A("s_mov_b32 exec_hi, -1")
A(f"s_cmp_lg_u32 s{S_NT}, 0")
A("s_cbranch_scc1 L_kok")
lds_wait(L_FLAG + 4, V_T, TT, sleep=1)
k_frags()
L("L_kok")
C("poll the q operand itself (LDS sentinel)")
l1, l1e = newlbl("Lqo"), newlbl("Lqoe")
A(f"s_mov_b32 s{S_TO}, {CFG['timeout']}")
L(l1)
for kp in range(4):
    A(f"ds_read_b128 v[{V_Q+4*kp}:{V_Q+4*kp+3}], v{V_T+3} offset:{L_QL + kp*64}")
A(f"s_sub_u32 s{S_TO}, s{S_TO}, 1")
A(f"s_cbranch_scc1 {l1e}")
A("s_waitcnt lgkmcnt(0)")
tree3("v_max3_u32", "v_max_u32", range(V_Q, V_Q + 16), TT)
A(f"v_cmp_eq_u32 vcc, -1, v{TT}")
A("s_cmp_lg_u64 vcc, 0")
A(f"s_cbranch_scc1 {l1}")
L(l1e)
A("s_waitcnt lgkmcnt(0)")
for kp in range(4):
    for tt in range(2):
        mfma(V_S + 4 * tt, V_K + (tt * 4 + kp) * 4, V_Q + 4 * kp, None if kp == 0 else V_S + 4 * tt)
stamp(2)
A(f"v_mov_b32 v{EX}, {f2u(SCALE):#x}")
A(f"v_mov_b32 v{EX+1}, {f2u(SCALE):#x}")
A(f"s_mov_b32 s{S_T1}, {f2u(LOG2E):#x}")
nop(5)
pack(PK, V_S, 4)
unpack(S2, PK, 4)
for j in range(0, 8, 2):
    A(f"v_pk_mul_f32 v[{S2+j}:{S2+j+1}], v[{S2+j}:{S2+j+1}], v[{EX}:{EX+1}]")
pack(PK, S2, 4)
unpack(S2, PK, 4)
A(f"v_max3_f32 v{MM}, v{S2}, v{S2+1}, v{S2+2}")
A(f"v_max3_f32 v{MM}, v{MM}, v{S2+3}, v{S2+4}")
A(f"v_max3_f32 v{MM}, v{MM}, v{S2+5}, v{S2+6}")
A(f"v_max_f32 v{MM}, v{MM}, v{S2+7}")
swap_steps("v_max_f32", [MM], [TT])
A("s_mov_b64 exec, 15")
A(f"ds_write_b32 v{TT+2}, v{MM} offset:{L_MX}")
A("s_mov_b64 exec, -1")
for j in range(8):
    A(f"v_mul_f32 v{S2+j}, s{S_T1}, v{S2+j}")
l2, l2e = newlbl("Lmx"), newlbl("Lmxe")
A(f"s_mov_b32 s{S_TO}, {CFG['timeout']}")
L(l2)
A(f"ds_read_b128 v[{EX}:{EX+3}], v{TT+3} offset:{L_MX}")
A(f"ds_read_b128 v[{EX+4}:{EX+7}], v{TT+3} offset:{L_MX + 16}")
A(f"s_sub_u32 s{S_TO}, s{S_TO}, 1")
A(f"s_cbranch_scc1 {l2e}")
A("s_waitcnt lgkmcnt(0)")
tree3("v_max3_u32", "v_max_u32", range(EX, EX + 8), TT)
tree3("v_max3_f32", "v_max_f32", range(EX, EX + 8), MM)
A(f"v_cmp_eq_u32 vcc, -1, v{TT}")
A("s_cmp_lg_u64 vcc, 0")
A(f"s_cbranch_scc1 {l2}")
L(l2e)
A("s_waitcnt lgkmcnt(0)")
A(f"v_mul_f32 v{MM}, s{S_T1}, v{MM}")
for j in range(8):
    A(f"v_sub_f32 v{EX+j}, v{S2+j}, v{MM}")
for j in range(8):
    A(f"v_exp_f32 v{EX+j}, v{EX+j}")
A(f"s_lshl_b32 s{S_T0}, s{S_WAVE}, 10")
A(f"v_add_u32 v{TT}, s{S_T0}, v2")
pack(PK, EX, 4)
A(f"ds_write_b128 v{TT}, v[{PK}:{PK+3}] offset:{L_SC}")
A(f"v_add_f32 v{MM+1}, v{EX}, v{EX+1}")
A(f"v_add_f32 v{TT}, v{EX+2}, v{EX+3}")
A(f"v_add_f32 v{TT+1}, v{EX+4}, v{EX+5}")
A(f"v_add_f32 v{EX}, v{EX+6}, v{EX+7}")
A(f"v_add_f32 v{MM+1}, v{MM+1}, v{TT}")
A(f"v_add_f32 v{EX}, v{EX}, v{TT+1}")
A(f"v_add_f32 v{MM+1}, v{MM+1}, v{EX}")
swap_steps("v_add_f32", [MM + 1], [TT])
A("s_mov_b64 exec, 15")
A(f"ds_write_b32 v{TT+2}, v{MM+1} offset:{L_LS}")
A("s_mov_b64 exec, -1")
stamp(3)
VA0, VA1, VB0, VB1 = V_T + 32, V_T + 33, V_T + 34, V_T + 35


def vw2_addr():
    A(f"v_lshlrev_b32 v{VA0}, 10, v4")
    A(f"v_lshl_add_u32 v{VA0}, v6, 3, v{VA0}")
    A(f"v_and_b32 v{VA1}, 1, v4")
    A(f"v_lshl_add_u32 v{VA0}, v{VA1}, 7, v{VA0}")
    A(f"v_xor_b32 v{VA1}, 128, v{VA0}")


vw2_addr()
A(f"s_lshl_b32 s{S_T0}, s{S_WAVE}, 8")
A(f"s_add_u32 s{S_T0}, s{S_T0}, {L_V}")
A(f"v_add_u32 v{VB0}, s{S_T0}, v{VA0}")
A(f"v_add_u32 v{VB1}, s{S_T0}, v{VA1}")
A(f"s_cmp_gt_u32 s{S_WAVE}, 4")
A("s_cbranch_scc1 L_exit")
A(f"v_mov_b32 v{V_T+1}, {L_FLAG + 8}")
A(f"s_mov_b32 s{S_NT}, 0")


def wait_progress(n):
    l, ok = newlbl("Lvp"), newlbl("Lvo")
    A(f"s_cmp_ge_u32 s{S_NT}, {n}")
    A(f"s_cbranch_scc1 {ok}")
    A(f"s_mov_b32 s{S_TO}, {CFG['timeout']}")
    L(l)
    A(f"ds_read_b32 v{V_T}, v{V_T+1}")
    A(f"s_sub_u32 s{S_TO}, s{S_TO}, 1")
    A(f"s_cbranch_scc1 {ok}")
    A("s_waitcnt lgkmcnt(0)")
    A(f"v_readfirstlane_b32 s{S_NT}, v{V_T}")
    A(f"s_cmp_lt_u32 s{S_NT}, {n}")
    A(f"s_cbranch_scc1 {l}")
    L(ok)


A(f"s_cmp_lt_u32 s{S_WAVE}, 4")
A("s_cbranch_scc1 L_pv")
C("---- wave 4: publish stats {m,l,T0,T1} per head (lanes 0..3) once all l are in and the PN clears completed")
wait_progress(1)
A(f"v_mov_b32 v{MM+2}, s{S_TG}")
A(f"v_mov_b32 v{MM+3}, s{S_TG+1}")
l4, l4e = newlbl("Lls"), newlbl("Llse")
A(f"s_mov_b32 s{S_TO}, {CFG['timeout']}")
L(l4)
A(f"ds_read_b128 v[{EX}:{EX+3}], v{TT+3} offset:{L_LS}")
A(f"ds_read_b128 v[{EX+4}:{EX+7}], v{TT+3} offset:{L_LS + 16}")
A(f"s_sub_u32 s{S_TO}, s{S_TO}, 1")
A(f"s_cbranch_scc1 {l4e}")
A("s_waitcnt lgkmcnt(0)")
tree3("v_max3_u32", "v_max_u32", range(EX, EX + 8), TT)
A(f"v_cmp_eq_u32 vcc, -1, v{TT}")
A("s_cmp_lg_u64 vcc, 0")
A(f"s_cbranch_scc1 {l4}")
L(l4e)
A("s_waitcnt lgkmcnt(0)")
for j in range(4):
    A(f"v_add_f32 v{EX+j}, v{EX+j}, v{EX+4+j}")
A(f"v_add_f32 v{EX}, v{EX}, v{EX+1}")
A(f"v_add_f32 v{EX+2}, v{EX+2}, v{EX+3}")
A(f"v_add_f32 v{MM+1}, v{EX}, v{EX+2}")
A("s_mov_b64 exec, 15")
if CFG["dual"]:
    A(f"buffer_store_dwordx4 v[{MM}:{MM+3}], v2, {WS}, s{S_PNA} offen")
A(f"buffer_store_dwordx4 v[{MM}:{MM+3}], v2, {WS}, s{S_PNB} offen sc1")
A("s_branch L_exit")
L("L_pv")
C("---- PV (waves 0..3, 32 dims each): tiles are consumed as they land")
PB = V_G
VF = V_K
l5, l5e = newlbl("Lpp"), newlbl("Lppe")
A(f"s_mov_b32 s{S_TO}, {CFG['timeout']}")
L(l5)
for t in range(8):
    A(f"ds_read_b128 v[{PB+4*t}:{PB+4*t+3}], v2 offset:{L_SC + t*1024}")
A(f"ds_read_b32 v{V_T}, v{V_T+1}")
A(f"s_sub_u32 s{S_TO}, s{S_TO}, 1")
A(f"s_cbranch_scc1 {l5e}")
A("s_waitcnt lgkmcnt(0)")
tree3("v_max3_u32", "v_max_u32", [PB + 4 * t + j for t in range(8) for j in (0, 3)], TT)
A(f"v_readfirstlane_b32 s{S_NT}, v{V_T}")
A(f"v_cmp_eq_u32 vcc, -1, v{TT}")
A("s_cmp_lg_u64 vcc, 0")
A(f"s_cbranch_scc1 {l5}")
L(l5e)
A("s_waitcnt lgkmcnt(0)")
stamp(5)


def v_reads(t):
    for c2 in range(2):
        for h in range(2):
            r = VF + ((t % 6) * 2 + c2) * 4 + 2 * h
            A(f"ds_read_b64_tr_b16 v[{r}:{r+1}], v{VB0 + c2} offset:{t*8192 + h*4096}")


def v_mfma(t):
    for c2 in range(2):
        mfma(V_S + 4 * c2, VF + ((t % 6) * 2 + c2) * 4, PB + 4 * t, None if t == 0 else V_S + 4 * c2)


A(f"s_cmp_ge_u32 s{S_NT}, 8")
A("s_cbranch_scc1 L_pvf")
for t in range(8):
    wait_progress(t + 1)
    v_reads(t)
    if t >= 1:
        A("s_waitcnt lgkmcnt(4)")
        v_mfma(t - 1)
A("s_waitcnt lgkmcnt(0)")
v_mfma(7)
A("s_branch L_pve")
L("L_pvf")
for t in range(3):
    v_reads(t)
for t in range(8):
    A(f"s_waitcnt lgkmcnt({min(2, 7 - t)*4})")
    v_mfma(t)
    if t + 3 < 8:
        v_reads(t + 3)
L("L_pve")
nop(7)
pack(PK, V_S, 4)
set_exec(MASK_N4)
if CFG["dual"]:
    A(f"buffer_store_dwordx4 v[{PK}:{PK+3}], v{V_PNA}, {WS}, s{S_PNA} offen")
A(f"buffer_store_dwordx4 v[{PK}:{PK+3}], v{V_PNA}, {WS}, s{S_PNB} offen sc1")
A("s_mov_b64 exec, -1")
stamp(6)
A(f"s_cmp_lg_u32 s{S_ROLE}, 0")
A("s_cbranch_scc1 L_exit")

C("==== G: final reduce of 16 outputs (16gi..16gi+15)")
A(f"s_lshl_b32 s{S_T2}, s{S_SUB}, 6")
A(f"s_add_u32 s{S_T3}, s{S_T2}, {WS_AP}")
A(f"s_add_u32 s{S_T2}, s{S_T2}, {WS_Y}")
A(f"v_lshrrev_b32 v{TT+2}, 2, v0")
A(f"v_and_b32 v{TT+3}, 3, v0")
A(f"v_lshlrev_b32 v{TT}, 12, v{TT+2}")
A(f"v_lshl_add_u32 v{TT}, v{TT+3}, 4, v{TT}")
A(f"s_movk_i32 s{S_T0}, {YP}")
A(f"v_mul_lo_u32 v{TT+2}, v{TT+2}, s{S_T0}")
A(f"v_lshl_add_u32 v{TT+2}, v{TT+3}, 4, v{TT+2}")
for i in range(1, 4):
    A(f"s_add_u32 s{40+i}, s{S_T2}, {16*i*YP}")
GA = V_G
if CFG["dry2"]:
    C("walk the rest of this path once with EXEC=0 (instruction cache warm-up)")
    A("s_mov_b64 exec, 0")
L("L_kret")
C("DRY{")
A("s_mov_b32 exec_hi, 0")


def g1_loads():
    A(f"buffer_load_dwordx4 v[{GA}:{GA+3}], v{TT}, {WS}, s{S_T3} offen sc1")


tpoll(g1_loads, range(GA, GA + 4), V_T, V_TG, CFG['g1sl'])
A("s_mov_b64 exec, -1")
stamp(7)
A(f"s_cmp_lg_u32 s{S_SUB}, 0")
A("s_cbranch_scc1 L_gnz")
C("every workgroup has consumed the launch tag by now: leave d_debug clean")
A(f"v_mov_b32 v{V_T}, 0")
A(f"v_mov_b32 v{V_T+1}, 0")
A(f"v_lshlrev_b32 v{V_T+2}, 6, v0")
A("s_mov_b64 exec, 15")
A(f"buffer_store_dwordx2 v[{V_T}:{V_T+1}], v{V_T+2}, {SA}, 0 offen sc1")
A("s_mov_b64 exec, -1")
L("L_gnz")
nop(1)
dpp_steps("v_add_f32", [GA + j for j in range(4)], ROW_HI)
swap_steps("v_add_f32", [GA + j for j in range(4)], [GA + 4 + j for j in range(4)], which=(16,))
GH = V_G + 8
GP = V_G + 16
GB = V_G + 20
pack(GP, GA, 2)
unpack(GA, GP, 2)
unpack(GH, V_SM, 2)
for j in range(4):
    A(f"v_add_f32 v{GH+j}, v{GH+j}, v{GA+j}")
pack(GP, GH, 2)
unpack(GH, GP, 2)
unpack(GB, V_SM + 2, 2)
GY = V_K


def g2_loads():
    for j in range(4):
        A(f"v_mov_b32 v{GY+12+j}, v{V_TG+j}")
    A(f"buffer_load_dwordx4 v[{GY}:{GY+3}], v{TT+2}, {WS}, s{S_T2} offen sc1")
    A(f"buffer_load_dwordx4 v[{GY+4}:{GY+7}], v{TT+2}, {WS}, s41 offen sc1")
    A(f"buffer_load_dwordx4 v[{GY+8}:{GY+11}], v{TT+2}, {WS}, s42 offen sc1")
    A("s_mov_b32 exec_hi, 0")
    A(f"buffer_load_dwordx4 v[{GY+12}:{GY+15}], v{TT+2}, {WS}, s43 offen sc1")
    A("s_mov_b32 exec_hi, -1")


tpoll(g2_loads, range(GY, GY + 16), V_T, V_TG, CFG['g2sl'])
stamp(10)
for j in range(4):
    A(f"v_add_f32 v{GY+j}, v{GY+j}, v{GY+4+j}")
    A(f"v_add_f32 v{GY+8+j}, v{GY+8+j}, v{GY+12+j}")
for j in range(4):
    A(f"v_add_f32 v{GY+j}, v{GY+j}, v{GY+8+j}")
dpp_steps("v_add_f32", [GY + j for j in range(4)], ROW_HI)
swap_steps("v_add_f32", [GY + j for j in range(4)], [GY + 4 + j for j in range(4)])
pack(GP, GY, 2)
unpack(GY, GP, 2)
for j in range(4):
    A(f"v_add_f32 v{GY+j}, v{GY+j}, v{GB+j}")
pack(GP, GY, 2)
unpack(GY, GP, 2)
for j in range(4):
    A(f"v_add_f32 v{GY+j}, v{GY+j}, v{GH+j}")
pack(GP, GY, 2)
if CFG.get("padto", 0):
    C("ND{")
    A(f"s_mov_b32 s{S_T5}, {CFG['padto']}")
    if CFG.get("probe", -1) >= 0:
        A(f"s_sub_u32 s0, s7, s{S_TG}" if not CFG.get("neg", 0) else f"s_sub_u32 s0, s{S_TG}, s7")
        A("s_max_i32 s0, s0, 0")
        A("s_mul_i32 s0, s0, 3")
        A(f"s_add_u32 s{S_T5}, s{S_T5}, s0")
    L("L_pad")
    A("s_memrealtime s[0:1]")
    A("s_waitcnt lgkmcnt(0)")
    A(f"s_sub_u32 s0, s0, s{S_TG}")
    A(f"s_cmp_lt_u32 s0, s{S_T5}")
    A("s_cbranch_scc1 L_pad")
    C("}ND")
A(f"s_lshl_b32 s{S_T4}, s{S_SUB}, 5")
A("v_lshlrev_b32 v3, 3, v0")
A("s_mov_b64 exec, 15")
A(f"buffer_store_dwordx2 v[{GP}:{GP+1}], v3, {SC_}, s{S_T4} offen")
stamp(11)
A("s_branch L_exit")

C("}DRY")
begin("ldr")
L("L_ldr")
att_common()
C("kv byte offset: ((b*8+x)*8192 + 6144 + 256 s)*256")
A(f"s_lshl_b32 s{S_T0}, s{S_B}, 3")
A(f"s_add_u32 s{S_T0}, s{S_T0}, s{S_X}")
A(f"s_lshl_b32 s{S_T0}, s{S_T0}, 5")
A(f"s_and_b32 s{S_T1}, s{S_A}, 7")
A(f"s_add_u32 s{S_T0}, s{S_T0}, s{S_T1}")
A(f"s_add_u32 s{S_T0}, s{S_T0}, 24")
A(f"s_lshl_b32 s{S_T3}, s{S_T0}, 16")
A(f"s_mov_b32 s{S_T2}, 0")
A(f"s_cmp_eq_u32 s{S_WAVE}, 9")
A("s_cbranch_scc1 L_ldv")
C("K DMA lane offsets: r4=l>>4, p=l&15: r4*256 + ((p ^ (4i+r4))*16)")
for i in range(4):
    A(f"v_add_u32 v{12+i}, {4*i}, v4")
    A(f"v_xor_b32 v{12+i}, v{12+i}, v6")
    A(f"v_lshlrev_b32 v{12+i}, 4, v{12+i}")
    A(f"v_lshl_add_u32 v{12+i}, v4, 8, v{12+i}")
A(f"s_mov_b32 s{S_T1}, {L_K}")
post_entry()
srd(SRD_A, P_K, 0x2000000)
if CFG.get("ksleep", 0):
    A(f"s_sleep {CFG['ksleep']}")
if CFG["ktouch"]:
    C("resolve the K/V translations first; the q-projection loads get a head start meanwhile")
    A(f"s_load_dword s64, s[{P_K}:{P_K+1}], s{S_T3}")
    A(f"s_load_dword s65, s[{P_V}:{P_V+1}], s{S_T3}")
    A("s_waitcnt lgkmcnt(0)")
L("L_ldk1")
A(f"s_mov_b32 m0, s{S_T1}")
A(f"s_add_u32 s{S_T1}, s{S_T1}, 4096")
for i in range(4):
    A(f"buffer_load_dwordx4 v{12+i}, {SA}, s{S_T3} offen offset:{i*1024}{NT} lds")
A(f"s_add_u32 s{S_T3}, s{S_T3}, 4096")
A(f"s_add_u32 s{S_T2}, s{S_T2}, 1")
A(f"s_cmp_lt_u32 s{S_T2}, 16")
A("s_cbranch_scc1 L_ldk1")
stamp(1)
A("s_barrier")
A("s_waitcnt vmcnt(0)")
stamp(4)
lds_set(L_FLAG + 4, 16, 17)
A("s_waitcnt lgkmcnt(0)")
A("s_branch L_exit")
L("L_ldv")
zero_flags()
for j in range(4):
    A(f"v_mov_b32 v{16+j}, -1")
A(f"ds_write_b128 v2, v[16:19] offset:{L_QL}")
for t in range(8):
    A(f"ds_write_b128 v2, v[16:19] offset:{L_SC + t*1024}")
A("s_mov_b64 exec, 0xffff")
A(f"ds_write_b128 v2, v[16:19] offset:{L_MX}")
A("s_mov_b64 exec, -1")
A("v_lshl_add_u32 v12, v9, 8, v11")
A("v_xor_b32 v13, 32, v12")
post_entry()
srd(SRD_B, P_V, 0x2000000)
A("s_barrier")
A(f"buffer_store_dwordx4 v[16:19], v2, {WS}, s{S_PNA} offen sc1")
A(f"buffer_store_dwordx4 v[16:19], v2, {WS}, s{S_PNB} offen sc1")
A(f"s_mov_b32 s{S_T1}, {L_V}")
L("L_ldv1")
A(f"s_mov_b32 m0, s{S_T1}")
A(f"s_add_u32 s{S_T1}, s{S_T1}, 4096")
for be in range(4):
    A(f"buffer_load_dwordx4 v{12 + (be & 1)}, {SB}, s{S_T3} offen offset:{be*1024}{NT} lds")
A(f"s_add_u32 s{S_T3}, s{S_T3}, 4096")
A(f"s_add_u32 s{S_T2}, s{S_T2}, 1")
A(f"s_cmp_lt_u32 s{S_T2}, 16")
A("s_cbranch_scc1 L_ldv1")
stamp(1)
A(f"v_mov_b32 v20, {L_FLAG + 8}")
for t in range(8):
    A(f"v_mov_b32 v21, {t+1}")
    A(f"s_waitcnt vmcnt({56 - 8*t})")
    A("ds_write_b32 v20, v21")
stamp(4)
A("s_waitcnt lgkmcnt(0)")
A("s_branch L_exit")

begin("gv")
L("L_dry2")
A("s_mov_b64 exec, -1")
L("L_GV")
gv_common()
post_entry()
A(f"s_cmp_ge_u32 s{S_WAVE}, 8")
A("s_cbranch_scc1 L_gld")
A(f"s_cmp_lg_u32 s{S_WAVE}, 7")
A("s_cbranch_scc1 L_gv2")
A("s_cmp_lg_u32 s2, 0")
A("s_cbranch_scc1 L_gv0")
C("workgroup 0 publishes the launch tag (4 replicas)")
srd(SRD_C, P_DBG, 256)
A("s_memrealtime s[24:25]")
A("s_waitcnt lgkmcnt(0)")
A("s_or_b32 s25, s25, 0x80000000")
A("v_mov_b32 v14, s24")
A("v_mov_b32 v15, s25")
A("v_lshlrev_b32 v12, 6, v0")
A("s_mov_b64 exec, 15")
A(f"buffer_store_dwordx2 v[14:15], v12, {SC_}, 0 offen sc1")
A("s_mov_b64 exec, -1")
L("L_gv0")
tag_poll(CFG["tsleep0"], S_A, barrier=2)
stamp(5)
A(f"s_mov_b32 s{S_TO}, {CFG['timeout']}")
L("L_echo")
A("ds_write_b64 v102, v[100:101]")
A("ds_read_b32 v103, v102 offset:8")
A(f"s_sub_u32 s{S_TO}, s{S_TO}, 1")
A("s_cbranch_scc1 L_gv2")
A("s_waitcnt lgkmcnt(0)")
A(f"v_readfirstlane_b32 s{S_T0}, v103")
A("s_sleep 2")
A(f"s_cmp_lg_u32 s{S_T0}, s{S_TG}")
A("s_cbranch_scc1 L_echo")
L("L_gv2")
A("s_branch L_qm1")

C("---- GEMV loaders (waves 8,9)")
L("L_gld")
A(f"s_and_b32 s{S_T5}, s{S_WAVE}, 1")
C("WX style lane offsets: ct=l>>5, p=(l>>1)&15 (row), half")
A("v_bfe_u32 v3, v0, 1, 4")
A("v_lshrrev_b32 v12, 5, v0")
A("v_lshlrev_b32 v12, 5, v12")
A("v_lshl_add_u32 v12, v10, 4, v12")
A(f"s_cmp_eq_u32 s{S_ROLE}, 0")
A("s_cbranch_scc1 L_exit")
A(f"s_cmp_eq_u32 s{S_ROLE}, 2")
A("s_cbranch_scc1 L_gld2")
C("wo tile: 512 rows x 128 B; loader i: rows 256i.. (32 instrs of 8 rows)")
srd(SRD_C, P_WO, 0x400000)
A("v_bfe_u32 v3, v0, 1, 3")
A("v_lshlrev_b32 v3, 10, v3")
A("v_lshl_add_u32 v3, v4, 5, v3")
A("v_lshl_add_u32 v3, v10, 4, v3")
A(f"s_lshl_b32 s{S_T3}, s{S_X}, 19")
A(f"s_lshl_b32 s{S_T1}, s{S_T5}, 18")
A(f"s_add_u32 s{S_T3}, s{S_T3}, s{S_T1}")
A(f"s_lshl_b32 s{S_T1}, s{S_SUB}, 7")
A(f"s_add_u32 s{S_T3}, s{S_T3}, s{S_T1}")
A(f"s_lshl_b32 s{S_T4}, s{S_T5}, 15")
A(f"s_add_u32 s{S_T4}, s{S_T4}, {L_WO}")
if CFG["touch2"]:
    for i in range(4):
        A(f"s_add_u32 s{S_T1}, s{S_T3}, {i*65536}")
        A(f"s_load_dword s{64+i}, s[{P_WO}:{P_WO+1}], s{S_T1}")
A(f"s_mov_b32 s{S_T2}, 0")
if CFG["wpre"]:
    lds_wait(L_FL2, 16, 17, sleep=1)
else:
    A("s_barrier")
L("L_gld1")
for i in range(4):
    A(f"s_mov_b32 m0, s{S_T4}")
    A(f"s_add_u32 s{S_T4}, s{S_T4}, 1024")
    A(f"buffer_load_dwordx4 v3, {SC_}, s{S_T3} offen{NT} lds")
    A(f"s_add_u32 s{S_T3}, s{S_T3}, 8192")
A(f"s_add_u32 s{S_T2}, s{S_T2}, 1")
if CFG["wpre"]:
    A(f"s_cmp_lg_u32 s{S_T2}, {CFG['wpre']}")
    A("s_cbranch_scc1 L_gld1b")
    A("s_barrier")
    L("L_gld1b")
A(f"s_cmp_lt_u32 s{S_T2}, 8")
A("s_cbranch_scc1 L_gld1")
A("s_branch L_gld5")
L("L_gld2")
A(f"s_cmp_eq_u32 s{S_T5}, 1")
A("s_cbranch_scc1 L_gld3")
srd(SRD_C, P_W1, 512 * 3584)
A(f"s_lshl_b32 s{S_T3}, s{S_SUB}, 6")
A(f"s_movk_i32 s{S_T1}, 3584")
A(f"v_mul_lo_u32 v13, v3, s{S_T1}")
A("v_add_u32 v13, v13, v12")
if CFG["touch2"]:
    for i in range(14):
        A(f"s_add_u32 s{S_T1}, s{S_T3}, {i*131072}")
        A(f"s_load_dword s{64+i}, s[{P_W1}:{P_W1+1}], s{S_T1}")
A("s_barrier")
A(f"s_mov_b32 s{S_T1}, {L_WX}")
A(f"s_mov_b32 s{S_T2}, 0")
L("L_gld4")
for i in range(4):
    A(f"s_mov_b32 m0, s{S_T1}")
    A(f"s_add_u32 s{S_T1}, s{S_T1}, 1024")
    A(f"buffer_load_dwordx4 v13, {SC_}, s{S_T3} offen{NT} lds")
    A(f"s_add_u32 s{S_T3}, s{S_T3}, {16*3584}")
if CFG["mwin"]:
    A(f"s_waitcnt vmcnt({CFG['mwin']})")
A(f"s_add_u32 s{S_T2}, s{S_T2}, 1")
A(f"s_cmp_lt_u32 s{S_T2}, 8")
A("s_cbranch_scc1 L_gld4")
A("s_branch L_gld5")
L("L_gld3")
srd(SRD_C, P_W2, 1792 * 1024)
A("v_lshl_add_u32 v14, v9, 10, v11")
A("v_xor_b32 v15, 32, v14")
A(f"s_lshl_b32 s{S_T3}, s{S_SUB}, 15")
if CFG["touch2"]:
    A(f"s_load_dword s64, s[{P_W2}:{P_W2+1}], s{S_T3}")
    A(f"s_load_dword s65, s[{P_B1}:{P_B1+1}], 0")
A("s_barrier")
A(f"s_mov_b32 s{S_T1}, {L_W2}")
A(f"s_mov_b32 s{S_T2}, 0")
L("L_gld6")
for be in range(8):
    A(f"s_mov_b32 m0, s{S_T1}")
    A(f"s_add_u32 s{S_T1}, s{S_T1}, 1024")
    A(f"s_add_u32 s{S_T4}, s{S_T3}, {be*4096}")
    A(f"buffer_load_dwordx4 v{14 + (be & 1)}, {SC_}, s{S_T4} offen{NT} lds")
    if CFG["mwin"] and be % 4 == 3:
        A(f"s_waitcnt vmcnt({CFG['mwin']})")
A(f"s_add_u32 s{S_T3}, s{S_T3}, 256")
A(f"s_add_u32 s{S_T2}, s{S_T2}, 1")
A(f"s_cmp_lt_u32 s{S_T2}, 4")
A("s_cbranch_scc1 L_gld6")
L("L_gld5")
A("s_waitcnt vmcnt(0)")
stamp(4)
A("s_barrier")
A("s_branch L_exit")

begin("qc")
C("---- q projection: wave 6 loads and computes everything")
A("v_mov_b32 v16, 0")
A("v_mov_b32 v17, 0")
A(f"ds_write_b64 v16, v[16:17] offset:{L_TAG}")
A(f"ds_write_b32 v16, v16 offset:{L_FL2}")
post_entry()
srd(SRD_A, P_X, 2048)
A(f"buffer_load_dwordx4 v[16:19], v2, {SA}, 0 offen")
A(f"buffer_load_dwordx4 v[20:23], v2, {SA}, 0 offen offset:1024")
if CFG["touch"]:
    A(f"s_lshl_b32 s{S_T1}, s{S_X}, 4")
    A(f"s_add_u32 s{S_T1}, s{S_T1}, s{S_A}")
    A(f"s_lshl_b32 s{S_T1}, s{S_T1}, 9")
    A(f"s_add_u32 s{S_T1}, s{S_T1}, {WS_XQA}")
    A("s_mov_b32 exec_hi, 0")
    A(f"buffer_load_dwordx4 v[72:75], v2, {WS}, s{S_T1} offen sc1")
    A("s_mov_b32 exec_hi, -1")
if CFG["qrep"]:
    C("pull my lines of the q replicas into L2: lane=(r,b)")
    A("v_lshrrev_b32 v76, 1, v0")
    A("v_lshlrev_b32 v76, 15, v76")
    A("v_lshl_add_u32 v76, v10, 11, v76")
    A(f"s_lshl_b32 s{S_T1}, s{S_X}, 12")
    A(f"s_lshl_b32 s{S_T2}, s{S_A}, 7")
    A(f"s_add_u32 s{S_T1}, s{S_T1}, s{S_T2}")
    A(f"s_add_u32 s{S_T1}, s{S_T1}, {WS_QR}")
    A(f"s_mov_b64 exec, {(1 << (2*CFG['qrep'])) - 1:#x}")
    A(f"buffer_load_dword v77, v76, {WS}, s{S_T1} offen")
    A("s_mov_b64 exec, -1")
srd(SRD_B, P_WQ, 0x400000)
A("v_bfe_u32 v13, v0, 1, 3")
A("v_lshlrev_b32 v13, 13, v13")
A("v_lshl_add_u32 v13, v4, 5, v13")
A("v_lshl_add_u32 v13, v10, 4, v13")
A(f"s_and_b32 s{S_B}, s{S_A}, 1")
A(f"s_lshl_b32 s{S_T0}, s{S_B}, 21")
A(f"s_lshl_b32 s{S_T1}, s{S_X}, 10")
A(f"s_add_u32 s{S_T0}, s{S_T0}, s{S_T1}")
A(f"s_lshr_b32 s{S_T1}, s{S_A}, 1")
A(f"s_lshl_b32 s{S_T1}, s{S_T1}, 7")
A(f"s_add_u32 s{S_T0}, s{S_T0}, s{S_T1}")
A(f"s_mov_b32 s{S_T1}, {L_WQ}")
L("L_qc1")
for i in range(4):
    A(f"s_mov_b32 m0, s{S_T1}")
    A(f"s_add_u32 s{S_T1}, s{S_T1}, 1024")
    A(f"buffer_load_dwordx4 v13, {SB}, s{S_T0} offen{NT} lds")
    A(f"s_add_u32 s{S_T0}, s{S_T0}, 0x10000")
A(f"s_cmp_lt_u32 s{S_T1}, {L_WQ + 32768}")
A("s_cbranch_scc1 L_qc1")
if CFG["wpre"]:
    A("v_mov_b32 v24, 0")
    A("v_mov_b32 v25, 1")
    A(f"ds_write_b32 v24, v25 offset:{L_FL2}")
stamp(10)
L("L_dry")
gv_common()
A("v_lshrrev_b32 v12, 2, v0")
A("v_lshlrev_b32 v12, 6, v12")
A("v_lshl_add_u32 v12, v10, 5, v12")
A("v_bfe_u32 v13, v0, 1, 1")
A("v_lshl_add_u32 v12, v13, 3, v12")
A("v_lshlrev_b32 v13, 10, v10")
A("v_lshl_add_u32 v13, v4, 4, v13")
A(f"s_lshl_b32 s{S_T1}, s{S_B}, 9")
A(f"v_add_u32 v13, s{S_T1}, v13")
A("v_lshrrev_b32 v14, 5, v0")
A("v_lshlrev_b32 v14, 10, v14")
A("v_and_b32 v15, 31, v0")
A("v_lshl_add_u32 v14, v15, 3, v14")
C("exchange lane map: n=l&15<8: b=n&1, half2=(n>>1)&1, cs=(n>>2)&1 ; XQ off = cs*256 + b*128 + g*32 + half2*16")
A("v_bfe_u32 v70, v0, 2, 1")
A("v_lshlrev_b32 v69, 6, v70")
A("v_lshl_add_u32 v69, v4, 4, v69")
A("v_lshl_add_u32 v69, v10, 11, v69")
A("v_lshlrev_b32 v70, 8, v70")
A("v_lshl_add_u32 v70, v10, 7, v70")
A("v_lshl_add_u32 v70, v4, 5, v70")
A("v_bfe_u32 v15, v0, 1, 1")
A("v_lshl_add_u32 v70, v15, 4, v70")
A(f"s_lshl_b32 s{S_T5}, s{S_X}, 12")
A(f"s_lshl_b32 s{S_T1}, s{S_A}, 7")
A(f"s_add_u32 s{S_T5}, s{S_T5}, s{S_T1}")
A(f"s_lshl_b32 s{S_T1}, s{S_X}, 4")
A(f"s_add_u32 s{S_T1}, s{S_T1}, s{S_A}")
A(f"s_lshl_b32 s62, s{S_T1}, 9")
A(f"s_xor_b32 s63, s62, 512")
A(f"s_add_u32 s64, s62, {WS_XQB}")
A(f"s_add_u32 s62, s62, {WS_XQA}")
A(f"s_add_u32 s65, s63, {WS_XQB}")
A(f"s_add_u32 s63, s63, {WS_XQA}")
A("s_mov_b32 s66, 0xcccccccc")
A("s_mov_b32 s67, 0xcccccccc")
A("s_mov_b32 s68, 0xf0f0f0f0")
A("s_mov_b32 s69, 0xf0f0f0f0")
stamp(11)
A(f"s_waitcnt vmcnt({32 + CFG['touch'] + (1 if CFG['qrep'] else 0)})")
stamp(12)
unpack(24, 16, 4)
unpack(32, 20, 4)
layernorm([24, 32], 2, 44, [16, 20])
A(f"ds_write_b64 v12, v[16:17] offset:{L_XN}")
A(f"ds_write_b64 v12, v[18:19] offset:{L_XN + 16}")
A(f"ds_write_b64 v12, v[20:21] offset:{L_XN + 1024}")
A(f"ds_write_b64 v12, v[22:23] offset:{L_XN + 1024 + 16}")
A("s_waitcnt lgkmcnt(0)")
XA = 96
for kp in range(8):
    A(f"ds_read_b128 v[{XA+4*kp}:{XA+4*kp+3}], v13 offset:{L_XN + kp*64}")
stamp(1)
A("v_mov_b32 v16, 0")
WF = 24
QD = 144
for kp in range(8):
    if kp == 7:
        C("launch tag from wave 7 (it rewrites the slot until echoed)")
        A("s_cbranch_execz L_dry1")
        lds_wait(L_TAG + 4, 17, 18)
        L("L_dry1")
        A(f"ds_read_b64 v[58:59], v16 offset:{L_TAG}")
        A(f"ds_read_b64 v[62:63], v16 offset:{L_TAG}")
        A("s_waitcnt lgkmcnt(0)")
        A(f"ds_write_b32 v16, v58 offset:{L_TAG + 8}")
    A(f"s_waitcnt vmcnt({28 - 4*kp})")
    if kp == 7:
        stamp(2)
        pass
    for ct in range(4):
        for h in range(2):
            r = WF + ((kp & 1) * 4 + ct) * 4 + 2 * h
            A(f"ds_read_b64_tr_b16 v[{r}:{r+1}], v14 offset:{L_WQ + kp*4096 + h*2048 + ct*256}")
    for ct in range(4):
        A(f"s_waitcnt lgkmcnt({6 - 2*ct})")
        mfma(QD + 4 * ct, WF + ((kp & 1) * 4 + ct) * 4, XA + 4 * kp, None if kp == 0 else QD + 4 * ct)
C("select: lo half cts (0,1) -> v[24:25], hi half cts (2,3) -> v[26:27]")
nop(5)
for hf in range(2):
    a, b = QD + 8 * hf, QD + 8 * hf + 4
    for j in range(2):
        A(f"v_cndmask_b32 v{28+j}, v{a+j}, v{a+2+j}, s[66:67]")
        A(f"v_cndmask_b32 v{30+j}, v{b+j}, v{b+2+j}, s[66:67]")
    for j in range(2):
        A(f"v_cndmask_b32 v{24+2*hf+j}, v{28+j}, v{30+j}, s[68:69]")
A("s_cbranch_execz L_dry2")
A(f"s_cmp_eq_u32 s{S_B}, 0")
A(f"s_cselect_b64 vcc, -1, 0")
set_exec(0x00ff00ff00ff00ff)
A("v_cndmask_b32 v56, v24, v26, vcc")
A("v_cndmask_b32 v57, v25, v27, vcc")
A("v_cndmask_b32 v60, v26, v24, vcc")
A("v_cndmask_b32 v61, v27, v25, vcc")
A(f"buffer_store_dwordx4 v[56:59], v70, {WS}, s{63 if CFG['dual'] else 65} offen{'' if CFG['dual'] else ' sc1'}")
stamp(6)
lx, lxe, lxs = newlbl("Lx"), newlbl("Lxe"), newlbl("Lxs")
A(f"s_mov_b32 s{S_TO}, {CFG['timeout']}")
L(lx)
if CFG["dual"]:
    A(f"s_cmp_lg_u32 s{S_TO}, {CFG['timeout'] - 4}")
    A(f"s_cbranch_scc1 {lxs}")
    C("partner not seen through L2 yet: also send the coherent copy")
    A(f"buffer_store_dwordx4 v[56:59], v70, {WS}, s65 offen sc1")
    L(lxs)
A(f"s_and_b32 s{S_T0}, s{S_TO}, 7")
A(f"s_cmp_eq_u32 s{S_T0}, 1")
A(f"s_cselect_b32 s{S_T1}, s64, s{62 if CFG['dual'] else 64}")
A(f"buffer_load_dwordx4 v[24:27], v70, {WS}, s{S_T1} offen sc1")
A(f"s_sub_u32 s{S_TO}, s{S_TO}, 1")
A(f"s_cbranch_scc1 {lxe}")
A("s_waitcnt vmcnt(0)")
A("v_cmp_ne_u64 vcc, v[26:27], v[58:59]")
A("s_cmp_lg_u64 vcc, 0")
A(f"s_cbranch_scc1 {lx}")
L(lxe)
A("s_waitcnt vmcnt(0)")
A("v_pk_add_f32 v[60:61], v[60:61], v[24:25]")
A("v_cvt_pk_bf16_f32 v60, v60, v61")
nop(2)
A("v_mov_b32_dpp v61, v60 quad_perm:[2,3,0,1] row_mask:0xf bank_mask:0xf")
set_exec(0x0033003300330033)
for r in range(CFG["qrep"]):
    A(f"s_add_u32 s{S_T1}, s{S_T5}, {WS_QR + r*32768}")
    A(f"buffer_store_dwordx4 v[60:63], v69, {WS}, s{S_T1} offen")
A(f"buffer_store_dwordx4 v[60:63], v69, {WS}, s{S_T5} offen sc1")
if CFG["dual"]:
    C("always leave a coherent copy for the partner")
    set_exec(0x00ff00ff00ff00ff)
    A(f"buffer_store_dwordx4 v[56:59], v70, {WS}, s65 offen sc1")
A("s_mov_b64 exec, -1")
stamp(3)
A("s_branch L_qm1")
begin("qm2")
L("L_qm1")
A(f"s_cmp_eq_u32 s{S_ROLE}, 0")
A("s_cbranch_scc1 L_exit")
A("s_barrier")
A(f"v_mov_b32 v{V_T}, 0")
A(f"ds_read_b64 v[{TT+2}:{TT+3}], v{V_T} offset:{L_TAG}")
A(f"ds_read_b128 v[{V_TG}:{V_TG+3}], v{V_T} offset:{L_TAG + 16}")
A(f"s_cmp_eq_u32 s{S_ROLE}, 2")
A("s_cbranch_scc1 L_F")

C("==== E: wo projection, 8 waves: head=w&3, col half=w>>2; wave gathers records 2w,2w+1")
V_WX = 16
A(f"s_lshl_b32 s{S_T1}, s{S_X}, 4")
A(f"s_lshl_b32 s{S_T2}, s{S_WAVE}, 1")
A(f"s_add_u32 s{S_T1}, s{S_T1}, s{S_T2}")
A(f"s_mul_i32 s{S_T1}, s{S_T1}, {RECP}")
A(f"s_add_u32 s{S_PNA}, s{S_T1}, {WS_PNA if CFG['dual'] else WS_PNB}")
A(f"s_add_u32 s{S_PNB}, s{S_T1}, {WS_PNB}")
EA0, EA1, EA2, EA3, EA4, EA5 = V_T + 36, V_T + 37, V_T + 38, V_T + 39, V_T + 2, V_T + 3
C("stats gather addr: lane<8: (l>>2)*RECP + (l&3)*16 (+1024)")
A(f"v_lshrrev_b32 v{EA0}, 2, v0")
A(f"s_movk_i32 s{S_T2}, {RECP}")
A(f"v_mul_lo_u32 v{EA0}, v{EA0}, s{S_T2}")
A(f"v_and_b32 v{EA1}, 3, v0")
A(f"v_lshl_add_u32 v{EA0}, v{EA1}, 4, v{EA0}")
A(f"s_mul_i32 s{S_T2}, s{S_WAVE}, {2*PNP}")
A(f"s_add_u32 s{S_T2}, s{S_T2}, {L_PS}")
A(f"v_add_u32 v{EA1}, s{S_T2}, v2")
A(f"s_lshl_b32 s{S_T2}, s{S_WAVE}, 7")
A(f"v_add_u32 v{EA2}, s{S_T2}, v2")
A(f"s_and_b32 s{S_T4}, s{S_WAVE}, 3")
A(f"s_lshr_b32 s{S_T5}, s{S_WAVE}, 2")
A(f"s_movk_i32 s{S_T2}, {PNP}")
A(f"v_mul_lo_u32 v{EA3}, v6, s{S_T2}")
A(f"v_lshl_add_u32 v{EA3}, v4, 4, v{EA3}")
A(f"s_lshl_b32 s{S_T2}, s{S_T4}, 6")
A(f"s_add_u32 s{S_T2}, s{S_T2}, {L_PS}")
A(f"v_add_u32 v{EA3}, s{S_T2}, v{EA3}")
A(f"v_lshlrev_b32 v{EA4}, 6, v6")
A(f"s_lshl_b32 s{S_T2}, s{S_T4}, 4")
A(f"v_add_u32 v{EA4}, s{S_T2}, v{EA4}")
A(f"s_lshl_b32 s{S_T2}, s{S_T4}, 9")
A(f"s_lshl_b32 s{S_T3}, s{S_T5}, 8")
A(f"s_add_u32 s{S_T2}, s{S_T2}, s{S_T3}")
A(f"v_lshl_add_u32 v{EA5}, v0, 2, s{S_T2}")
C("weights tr-read addr: WO + hd*16384 + ch*512 + (l>>5)*1024 + (l&31)*8")
A(f"v_lshrrev_b32 v{TT}, 5, v0")
A(f"v_lshlrev_b32 v{TT}, 10, v{TT}")
A(f"v_and_b32 v{TT+1}, 31, v0")
A(f"v_lshl_add_u32 v{TT}, v{TT+1}, 3, v{TT}")
A(f"s_lshl_b32 s{S_T2}, s{S_T4}, 14")
A(f"s_lshl_b32 s{S_T3}, s{S_T5}, 9")
A(f"s_add_u32 s{S_T2}, s{S_T2}, s{S_T3}")
A(f"s_add_u32 s{S_T2}, s{S_T2}, {L_WO}")
A(f"v_add_u32 v{TT}, s{S_T2}, v{TT}")
A(f"v_mul_u32_u24 v{V_T+32}, 80, v4")
C("final-stage addresses (wave 0, lanes<32): RED read / AP write")
A(f"v_bfe_u32 v{V_T+33}, v0, 3, 1")
A(f"v_lshlrev_b32 v{V_T+33}, 8, v{V_T+33}")
A(f"v_lshl_add_u32 v{V_T+33}, v4, 7, v{V_T+33}")
A(f"v_and_b32 v{V_T+34}, 7, v0")
A(f"v_lshl_add_u32 v{V_T+33}, v{V_T+34}, 4, v{V_T+33}")
A(f"v_lshlrev_b32 v{V_T+34}, 11, v4")
A(f"v_lshl_add_u32 v{V_T+34}, v6, 4, v{V_T+34}")
A(f"s_lshl_b32 s{S_NT}, s{S_X}, 12")
A(f"s_lshl_b32 s{S_T1}, s{S_SUB}, 8")
A(f"s_add_u32 s{S_NT}, s{S_NT}, s{S_T1}")
A(f"s_add_u32 s{S_NT}, s{S_NT}, {WS_AP}")
if CFG["dry3"]:
    A("s_waitcnt lgkmcnt(0)")
    A("s_mov_b64 exec, 0")
    A("s_branch L_edry")
L("L_eret")
A("s_waitcnt vmcnt(0) lgkmcnt(0)")
A("s_barrier")
stamp(4)
L("L_edry")
C("DRY{")
for kp in range(4):
    for c in range(2):
        for h in range(2):
            r = V_WX + (kp * 2 + c) * 4 + 2 * h
            A(f"ds_read_b64_tr_b16 v[{r}:{r+1}], v{TT} offset:{kp*4096 + h*2048 + c*256}")
SG = V_G + 8
le, lee = newlbl("Le"), newlbl("Lee")
A(f"s_mov_b32 s{S_TO}, {CFG['timeout']}")
L(le)
A(f"s_and_b32 s{S_T0}, s{S_TO}, {CFG['bmask']}")
A(f"s_cmp_eq_u32 s{S_T0}, 1")
A(f"s_cselect_b32 s{S_T1}, s{S_PNB}, s{S_PNA}")
A(f"v_mov_b32 v{SG+2}, v{TT+2}")
A(f"v_mov_b32 v{SG+3}, v{TT+3}")
A("s_mov_b64 exec, 0xff")
A(f"buffer_load_dwordx4 v[{SG}:{SG+3}], v{EA0}, {WS}, s{S_T1} offen offset:1024 sc1")
A("s_mov_b64 exec, -1")
for i in range(2):
    r = V_G + i * 4
    A(f"buffer_load_dwordx4 v[{r}:{r+3}], v2, {WS}, s{S_T1} offen offset:{i*RECP} sc1")
A(f"s_sub_u32 s{S_TO}, s{S_TO}, 1")
A(f"s_cbranch_scc1 {lee}")
A("s_waitcnt vmcnt(0)")
tree3("v_max3_u32", "v_max_u32", range(V_G, V_G + 8), TT)
A(f"v_cmp_eq_u32 vcc, -1, v{TT}")
A(f"v_cmp_ne_u64 s[{S_T2}:{S_T3}], v[{SG+2}:{SG+3}], v[{TT+2}:{TT+3}]")
A(f"s_or_b64 vcc, vcc, s[{S_T2}:{S_T3}]")
A(f"s_cbranch_scc1 {le}")
L(lee)
A("s_waitcnt vmcnt(0)")
stamp(7)
for i in range(2):
    r = V_G + i * 4
    A(f"ds_write_b128 v{EA1}, v[{r}:{r+3}] offset:{i*PNP}")
A("s_mov_b64 exec, 0xff")
A(f"ds_write_b128 v{EA2}, v[{SG}:{SG+3}] offset:{L_STS}")
A("s_mov_b64 exec, -1")
A("s_waitcnt lgkmcnt(0)")
A("s_barrier")
SM0 = V_T + 4
MG = V_T + 8
FW = V_T + 24
A(f"ds_read_b64 v[{SM0}:{SM0+1}], v{EA4} offset:{L_STS}")
for kp in range(4):
    r = V_G + kp * 4
    A(f"ds_read_b128 v[{r}:{r+3}], v{EA3} offset:{kp*256}")
EA = V_S
A("s_waitcnt lgkmcnt(4)")
A(f"v_mov_b32 v{MG}, v{SM0}")
R8 = ROW_ALL[:3]
fill = []
for c in R8:
    fill.append(["s_nop 0", f"v_max_f32_dpp v{MG}, v{MG}, v{MG} {c} row_mask:0xf bank_mask:0xf"])
fill.append([f"v_sub_f32 v{SM0}, v{SM0}, v{MG}", f"v_exp_f32 v{SM0}, v{SM0}", "s_nop 0", f"v_mul_f32 v{MG}, v{SM0}, v{SM0+1}"])
for c in R8:
    fill.append(["s_nop 0", f"v_add_f32_dpp v{MG}, v{MG}, v{MG} {c} row_mask:0xf bank_mask:0xf"])
fill.append([f"v_rcp_f32 v{MG}, v{MG}", "s_nop 0", f"v_mul_f32 v{SM0}, v{SM0}, v{MG}"])
fi = 0
for kp in range(4):
    A(f"s_waitcnt lgkmcnt({3-kp})")
    for c in range(2):
        d = EA + c * 4
        mfma(d, V_G + kp * 4, V_WX + (kp * 2 + c) * 4, None if kp == 0 else d)
        for ins in fill[fi]:
            A(ins)
        fi += 1
assert fi == len(fill)
for r in range(4):
    A(f"ds_bpermute_b32 v{FW+r}, v{V_T+32}, v{SM0} offset:{4*r}")
A("s_waitcnt lgkmcnt(0)")
for c in range(2):
    d = EA + 4 * c
    A(f"v_mul_f32 v{d}, v{d}, v{FW}")
    A(f"v_mul_f32 v{d+2}, v{d+2}, v{FW+2}")
    A(f"v_fmac_f32 v{d}, v{d+1}, v{FW+1}")
    A(f"v_fmac_f32 v{d+2}, v{d+3}, v{FW+3}")
for c in range(2):
    d = EA + 4 * c
    A(f"v_add_f32 v{d}, v{d}, v{d+2}")
nop(2)
A(f"v_permlane16_swap_b32 v{EA}, v{EA+4}")
A(f"v_add_f32 v{EA}, v{EA}, v{EA+4}")
A(f"ds_write_b32 v{EA5}, v{EA} offset:{L_RED}")
A("s_waitcnt lgkmcnt(0)")
A("s_barrier")
A(f"s_cmp_lg_u32 s{S_WAVE}, 0")
A("s_cbranch_scc1 L_exit")
A("s_mov_b32 exec_hi, 0")
for i in range(4):
    A(f"ds_read_b128 v[{V_G+4*i}:{V_G+4*i+3}], v{V_T+33} offset:{L_RED + i*512}")
A("s_waitcnt lgkmcnt(0)")
for j in (0, 2):
    A(f"v_pk_add_f32 v[{V_G+j}:{V_G+j+1}], v[{V_G+j}:{V_G+j+1}], v[{V_G+4+j}:{V_G+5+j}]")
    A(f"v_pk_add_f32 v[{V_G+8+j}:{V_G+9+j}], v[{V_G+8+j}:{V_G+9+j}], v[{V_G+12+j}:{V_G+13+j}]")
for j in (0, 2):
    A(f"v_pk_add_f32 v[{V_G+j}:{V_G+j+1}], v[{V_G+j}:{V_G+j+1}], v[{V_G+8+j}:{V_G+9+j}]")
tag(V_G, V_TG)
A(f"buffer_store_dwordx4 v[{V_G}:{V_G+3}], v{V_T+34}, {WS}, s{S_NT} offen sc1")
stamp(8)
A("s_branch L_exit")

C("}DRY")
L("L_F")
C("==== F: MLP. 8 waves gather (b=w>>2, 128-col quarter q=w&3); waves 0..3 also do w1/gelu/w2")
V_W2 = 128
FG = 48
HX = 64
C("x[b][128q + 4(l&31)..] ; b1[mi*32 + (l&31)]")
srd(SRD_A, P_X, 2048)
A("v_and_b32 v12, 31, v0")
A("v_lshlrev_b32 v13, 3, v12")
A(f"s_lshl_b32 s{S_T0}, s{S_WAVE}, 8")
A(f"buffer_load_dwordx2 v[{V_SM}:{V_SM+1}], v13, {SA}, s{S_T0} offen")
srd(SRD_C, P_B1, 3584)
A("v_lshlrev_b32 v13, 1, v12")
A(f"s_lshl_b32 s{S_T0}, s{S_SUB}, 6")
A(f"buffer_load_ushort v{V_SM+2}, v13, {SC_}, s{S_T0} offen")
C("gather addr: (l>>5)*4096 + (l&31)*16 ; soffset = AP + w*512 + i*8192")
GAD, HA, STW, STR = V_T, V_T + 1, V_T + 2, V_T + 3
A(f"v_lshrrev_b32 v{GAD}, 5, v0")
A(f"v_lshlrev_b32 v{GAD}, 12, v{GAD}")
A(f"v_lshl_add_u32 v{GAD}, v12, 4, v{GAD}")
A(f"s_lshl_b32 s{S_T0}, s{S_WAVE}, 9")
A(f"s_add_u32 s{S_T0}, s{S_T0}, {WS_AP}")
SX = 62
for i in range(4):
    A(f"s_add_u32 s{SX+i}, s{S_T0}, {i*8192}")
C("hn write addr (cols 4j.., j=l&31): w*256 + (j>>3)*64 + (j&3)*16 + ((j>>2)&1)*8")
A(f"v_lshrrev_b32 v{HA}, 3, v12")
A(f"v_lshlrev_b32 v{HA}, 6, v{HA}")
A("v_and_b32 v13, 3, v0")
A(f"v_lshl_add_u32 v{HA}, v13, 4, v{HA}")
A("v_bfe_u32 v13, v0, 2, 1")
A(f"v_lshl_add_u32 v{HA}, v13, 3, v{HA}")
A(f"s_lshl_b32 s{S_T0}, s{S_WAVE}, 8")
A(f"v_add_u32 v{HA}, s{S_T0}, v{HA}")
C("LN stats exchange: STS + w*8 ; read STS + b*32 (sentinel initialised)")
A(f"s_lshl_b32 s{S_T0}, s{S_WAVE}, 3")
A(f"v_mov_b32 v{STW}, s{S_T0}")
A(f"s_lshr_b32 s{S_T0}, s{S_WAVE}, 2")
A(f"s_lshl_b32 s{S_T0}, s{S_T0}, 5")
A(f"v_mov_b32 v{STR}, s{S_T0}")
A("v_mov_b32 v14, -1")
A("v_mov_b32 v15, -1")
A(f"ds_write_b64 v{STW}, v[14:15] offset:{L_STS}")
C("compute-wave addresses")
vw2_addr()
A(f"s_lshl_b32 s{S_T0}, s{S_WAVE}, 13")
A(f"s_add_u32 s{S_T1}, s{S_T0}, {L_W2}")
A(f"v_add_u32 v{VB0}, s{S_T1}, v{VA0}")
A(f"v_add_u32 v{VB1}, s{S_T1}, v{VA1}")
A(f"s_add_u32 s{S_T1}, s{S_T0}, {L_WX}")
A(f"v_lshl_add_u32 v{TT}, v0, 3, s{S_T1}")
A0, A1, A2, YAD = V_T + 36, V_T + 37, V_T + 38, V_T + 39
A(f"v_lshlrev_b32 v{A0}, 10, v10")
A(f"v_lshl_add_u32 v{A0}, v4, 4, v{A0}")
A(f"s_lshl_b32 s{S_T0}, s{S_WAVE}, 8")
A(f"v_add_u32 v{A0}, s{S_T0}, v{A0}")
A(f"v_lshlrev_b32 v{A1}, 7, v6")
A(f"v_lshl_add_u32 v{A1}, v4, 4, v{A1}")
A(f"v_add_u32 v{A1}, s{S_T0}, v{A1}")
C("h1 write addr: lane (b=l>>5, c=l&31): H1 + w*128 + b*64 + ((c>>2)&3)*16 + (c>>4)*8 + (c&3)*2")
A(f"v_lshrrev_b32 v{A2}, 5, v0")
A(f"v_lshlrev_b32 v{A2}, 6, v{A2}")
A("v_bfe_u32 v13, v0, 2, 2")
A(f"v_lshl_add_u32 v{A2}, v13, 4, v{A2}")
A("v_bfe_u32 v13, v0, 4, 1")
A(f"v_lshl_add_u32 v{A2}, v13, 3, v{A2}")
A("v_and_b32 v13, 3, v0")
A(f"v_lshl_add_u32 v{A2}, v13, 1, v{A2}")
A(f"s_lshl_b32 s{S_T1}, s{S_WAVE}, 7")
A(f"s_add_u32 s{S_T1}, s{S_T1}, {L_H1}")
A(f"v_add_u32 v{A2}, s{S_T1}, v{A2}")
C("B_ct operand addresses: (n>>1)==ct ? H1 + w*128 + (n&1)*64 + g*16 : ZERO")
BA = V_T + 24
A("v_lshlrev_b32 v13, 6, v10")
A("v_lshl_add_u32 v13, v4, 4, v13")
A(f"v_add_u32 v13, s{S_T1}, v13")
A(f"v_mov_b32 v14, {L_ZERO}")
A("v_bfe_u32 v15, v0, 1, 3")
for ct in range(8):
    A(f"v_cmp_eq_u32 vcc, {ct}, v15")
    A("s_nop 1")
    A(f"v_cndmask_b32 v{BA+ct}, v14, v13, vcc")
for j in range(4):
    A(f"v_mov_b32 v{16+j}, 0")
A(f"ds_write_b128 v14, v[16:19]")
C("Y store addr: (n&1)*2048 + (n>>1)*64 + g*16 ; soff = Y + mi*YP + w*512")
A(f"v_lshlrev_b32 v{YAD}, 11, v10")
A(f"v_lshl_add_u32 v{YAD}, v15, 6, v{YAD}")
A(f"v_lshl_add_u32 v{YAD}, v4, 4, v{YAD}")
S_Y = 70
A(f"s_mul_i32 s{S_Y}, s{S_SUB}, {YP}")
A(f"s_lshl_b32 s{S_T1}, s{S_WAVE}, 9")
A(f"s_add_u32 s{S_Y}, s{S_Y}, s{S_T1}")
A(f"s_add_u32 s{S_Y}, s{S_Y}, {WS_Y}")
A("v_lshlrev_b32 v3, 2, v0")
if CFG["dry3"]:
    A("s_waitcnt lgkmcnt(0)")
    A("s_mov_b64 exec, 0")
    A("s_branch L_fdry")
L("L_fret")
A("s_waitcnt vmcnt(0) lgkmcnt(0)")
unpack(HX, V_SM, 2)
A(f"v_lshlrev_b32 v{V_SM+2}, 16, v{V_SM+2}")
A("s_barrier")
stamp(4)
L("L_fdry")
C("DRY{")
A(f"s_cmp_ge_u32 s{S_WAVE}, 4")
A("s_cbranch_scc1 L_F1")
for kp in range(4):
    for ct in range(2):
        for h in range(2):
            r = V_WX + (kp * 2 + ct) * 4 + 2 * h
            A(f"ds_read_b64_tr_b16 v[{r}:{r+1}], v{TT} offset:{kp*2048 + h*1024 + ct*512}")
A("s_waitcnt lgkmcnt(0)")
for ct in range(8):
    for h in range(2):
        r = V_W2 + ct * 4 + 2 * h
        A(f"ds_read_b64_tr_b16 v[{r}:{r+1}], v{VB0 + (ct & 1)} offset:{(ct >> 1)*256 + h*4096}")
L("L_F1")


def f_loads():
    for i in range(4):
        r = FG + i * 4
        A(f"buffer_load_dwordx4 v[{r}:{r+3}], v{GAD}, {WS}, s{SX+i} offen sc1")


tpoll(f_loads, range(FG, FG + 16), TT, V_TG, CFG['fsl'])
stamp(7)
for j in (0, 2):
    A(f"v_pk_add_f32 v[{FG+j}:{FG+j+1}], v[{FG+j}:{FG+j+1}], v[{FG+4+j}:{FG+5+j}]")
    A(f"v_pk_add_f32 v[{FG+8+j}:{FG+9+j}], v[{FG+8+j}:{FG+9+j}], v[{FG+12+j}:{FG+13+j}]")
for j in (0, 2):
    A(f"v_pk_add_f32 v[{FG+j}:{FG+j+1}], v[{FG+j}:{FG+j+1}], v[{FG+8+j}:{FG+9+j}]")
swap_steps("v_add_f32", [FG + j for j in range(4)], [FG + 4 + j for j in range(4)], which=(32,))
HP = FG + 8
pack(HP, FG, 2)
unpack(FG, HP, 2)
for j in range(4):
    A(f"v_add_f32 v{HX+j}, v{HX+j}, v{FG+j}")
pack(HP, HX, 2)
unpack(HX, HP, 2)
C("local stats around pivot c = h[first]")
A("s_nop 0")
A(f"v_readfirstlane_b32 s{S_T2}, v{HX}")
A("s_nop 1")
for j in range(4):
    A(f"v_subrev_f32 v{FG+j}, s{S_T2}, v{HX+j}")
SS, SQ = FG + 10, FG + 11
A(f"v_add_f32 v{SS}, v{FG}, v{FG+1}")
A(f"v_mul_f32 v{SQ}, v{FG}, v{FG}")
A(f"v_add_f32 v{FG+4}, v{FG+2}, v{FG+3}")
A(f"v_fmac_f32 v{SQ}, v{FG+1}, v{FG+1}")
A(f"v_add_f32 v{SS}, v{SS}, v{FG+4}")
A(f"v_fmac_f32 v{SQ}, v{FG+2}, v{FG+2}")
A(f"v_fmac_f32 v{SQ}, v{FG+3}, v{FG+3}")
nop(1)
dpp_steps("v_add_f32", [SS, SQ], ROW_ALL)
swap_steps("v_add_f32", [SS, SQ], [FG + 4, FG + 5], which=(16,))
C("mean_w = c + s/128 ; M2_w = ss - s*s/128")
A(f"v_mul_f32 v{FG+4}, {f2u(1.0/128):#x}, v{SS}")
A(f"v_fma_f32 v{SQ}, -v{FG+4}, v{SS}, v{SQ}")
A(f"v_add_f32 v{SS}, s{S_T2}, v{FG+4}")
A("s_mov_b64 exec, 1")
A(f"ds_write_b64 v{STW}, v[{SS}:{SQ}] offset:{L_STS}")
A("s_mov_b64 exec, -1")
l3, l3e = newlbl("Lst"), newlbl("Lste")
A(f"s_mov_b32 s{S_TO}, {CFG['timeout']}")
L(l3)
A(f"ds_read_b128 v[{FG}:{FG+3}], v{STR} offset:{L_STS}")
A(f"ds_read_b128 v[{FG+4}:{FG+7}], v{STR} offset:{L_STS + 16}")
A(f"s_sub_u32 s{S_TO}, s{S_TO}, 1")
A(f"s_cbranch_scc1 {l3e}")
A("s_waitcnt lgkmcnt(0)")
tree3("v_max3_u32", "v_max_u32", range(FG, FG + 8), TT)
A(f"v_cmp_eq_u32 vcc, -1, v{TT}")
A("s_cmp_lg_u64 vcc, 0")
A(f"s_cbranch_scc1 {l3}")
L(l3e)
A("s_waitcnt lgkmcnt(0)")
MEAN, VAR, TM = FG + 8, FG + 9, FG + 10
A(f"v_add_f32 v{MEAN}, v{FG}, v{FG+2}")
A(f"v_add_f32 v{TM}, v{FG+4}, v{FG+6}")
A(f"v_add_f32 v{VAR}, v{FG+1}, v{FG+3}")
A(f"v_add_f32 v{MEAN}, v{MEAN}, v{TM}")
A(f"v_add_f32 v{TM}, v{FG+5}, v{FG+7}")
A(f"v_mul_f32 v{MEAN}, 0.25, v{MEAN}" if False else f"v_mul_f32 v{MEAN}, {f2u(0.25):#x}, v{MEAN}")
A(f"v_add_f32 v{VAR}, v{VAR}, v{TM}")
for j in range(4):
    A(f"v_sub_f32 v{FG+2*j}, v{FG+2*j}, v{MEAN}")
A(f"v_mul_f32 v{TM}, v{FG}, v{FG}")
for j in range(1, 4):
    A(f"v_fmac_f32 v{TM}, v{FG+2*j}, v{FG+2*j}")
A(f"v_mul_f32 v{VAR}, {f2u(1.0/512):#x}, v{VAR}")
A(f"v_fmac_f32 v{VAR}, {f2u(0.25):#x}, v{TM}")
bf16r(MEAN, MEAN)
bf16r(VAR, VAR)
for j in range(4):
    A(f"v_sub_f32 v{FG+j}, v{HX+j}, v{MEAN}")
A(f"v_add_f32 v{VAR}, {f2u(1e-5):#x}, v{VAR}")
pack(HP + 4, FG, 2)
bf16r(VAR, VAR)
unpack(FG, HP + 4, 2)
A(f"v_sqrt_f32 v{VAR}, v{VAR}")
nop(1)
bf16r(VAR, VAR)
A(f"v_rcp_f32 v{VAR}, v{VAR}")
nop(1)
for j in range(4):
    A(f"v_mul_f32 v{FG+j}, v{FG+j}, v{VAR}")
pack(HP + 4, FG, 2)
A("s_mov_b32 exec_hi, 0")
A(f"ds_write_b64 v{HA}, v[{HP+4}:{HP+5}] offset:{L_HN}")
A("s_mov_b32 exec_hi, -1")
c0 = math.sqrt(2.0 / math.pi)
k0 = -2.0 * c0 * LOG2E
k1 = k0 * 0.044715
A(f"s_mov_b32 s{S_T1}, {f2u(k1):#x}")
A(f"v_mov_b32 v{TT}, {f2u(k0):#x}")
A("s_waitcnt lgkmcnt(0)")
A("s_barrier")
stamp(8)
A(f"s_cmp_ge_u32 s{S_WAVE}, 4")
A("s_cbranch_scc1 L_exit")
for kp in range(4):
    A(f"ds_read_b128 v[{V_Q+4*kp}:{V_Q+4*kp+3}], v{A0} offset:{L_HN + kp*64}")
for kp in range(4):
    A(f"s_waitcnt lgkmcnt({3-kp})")
    for ct in range(2):
        mfma(V_S + 4 * ct, V_WX + (kp * 2 + ct) * 4, V_Q + 4 * kp, None if kp == 0 else V_S + 4 * ct)
nop(6)
set_exec(MASK_N2)
A(f"ds_write_b128 v{A1}, v[{V_S}:{V_S+3}] offset:{L_RED}")
A(f"ds_write_b128 v{A1}, v[{V_S+4}:{V_S+7}] offset:{L_RED + 64}")
A("s_mov_b64 exec, -1")
A("s_waitcnt lgkmcnt(0)")
A("s_barrier")
U = 16
for wp in range(4):
    A(f"ds_read_b32 v{U+wp}, v3 offset:{L_RED + wp*256}")
A("s_waitcnt lgkmcnt(0)")
A(f"v_add_f32 v{U}, v{U}, v{U+1}")
A(f"v_add_f32 v{U+2}, v{U+2}, v{U+3}")
A(f"v_add_f32 v{U}, v{U}, v{U+2}")
bf16r(U, U)
A(f"v_add_f32 v{U}, v{U}, v{V_SM+2}")
bf16r(U, U)
A(f"v_mul_f32 v{U+1}, v{U}, v{U}")
A(f"v_fma_f32 v{U+1}, v{U+1}, s{S_T1}, v{TT}")
A(f"v_mul_f32 v{U+1}, v{U+1}, v{U}")
A(f"v_exp_f32 v{U+1}, v{U+1}")
nop(1)
A(f"v_add_f32 v{U+1}, 1.0, v{U+1}")
A(f"v_rcp_f32 v{U+1}, v{U+1}")
nop(1)
A(f"v_mul_f32 v{U}, v{U}, v{U+1}")
A(f"v_cvt_pk_bf16_f32 v{U}, v{U}, v{U}")
A(f"ds_write_b16 v{A2}, v{U}")
BO = 32
for ct in range(8):
    A(f"ds_read_b128 v[{BO+4*ct}:{BO+4*ct+3}], v{BA+ct}")
YA = 24
for ct in range(8):
    A(f"s_waitcnt lgkmcnt({7-ct})")
    mfma(YA, V_W2 + 4 * ct, BO + 4 * ct, None if ct == 0 else YA)
nop(8)
tag(YA, V_TG)
A(f"buffer_store_dwordx4 v[{YA}:{YA+3}], v{YAD}, {WS}, s{S_Y} offen sc1")
stamp(9)
A("s_branch L_exit")
C("}DRY")
if CFG["dry2"]:
    for r, ret in ((1, "L_kret"), (2, "L_eret"), (3, "L_fret")):
        L(f"L_exit_{r}")
        A("s_cbranch_execnz L_exit")
        A("s_mov_b64 exec, -1")
        A(f"s_branch {ret}")
L("L_exit")
stamp_flush()
L("L_end")
A("s_endpgm")

out.append(f""".section .rodata,"a"
.p2align 6
.amdhsa_kernel {NAME}_kernel
  .amdhsa_next_free_vgpr 168
  .amdhsa_next_free_sgpr 102
  .amdhsa_accum_offset 168
  .amdhsa_group_segment_fixed_size 0
  .amdhsa_kernarg_size 104
  .amdhsa_user_sgpr_count 2
  .amdhsa_user_sgpr_kernarg_segment_ptr 1
  .amdhsa_system_sgpr_workgroup_id_x 1
.end_amdhsa_kernel""")

order = CFG_ORDER
lines = [l for b in order for l in BLK[b]]


def dry_pass(lines):
    res, indry, k = [], False, 0
    i = 0

    def is_mem(t):
        return t.startswith(("buffer_", "global_", "s_load", "s_atomic", "s_barrier"))

    def exec_write(t):
        return t.startswith(("s_mov_b64 exec", "s_mov_b32 exec", "s_and_b64 exec"))

    def restores(t):
        return t in ("s_mov_b64 exec, -1", "s_mov_b32 exec_hi, -1")
    open_span, masked, nd = None, False, False
    for l in lines:
        t = l.strip()
        if t == "; DRY{":
            indry = True
            i += 1
            continue
        if t == "; }DRY":
            assert open_span is None or True
            if open_span:
                res.append(open_span + ":")
                open_span = None
            masked = False
            indry = False
            continue
        if not (indry and CFG["dry2"]):
            if t not in ("; ND{", "; }ND"):
                res.append(l)
            continue
        if t == "; ND{":
            nd = True
            if not open_span:
                k += 1
                open_span = f"L_sk{k}"
                res.append(f"    s_cbranch_execz {open_span}")
            continue
        if t == "; }ND":
            nd = False
            continue
        unsafe = nd or masked or is_mem(t) or exec_write(t)
        if masked and t == "s_branch L_exit":
            unsafe = False
            masked = False
        if t.endswith(" L_exit"):
            l = l + f"_{i}"
        if unsafe:
            if not open_span:
                k += 1
                open_span = f"L_sk{k}"
                res.append(f"    s_cbranch_execz {open_span}")
            res.append(l)
            if exec_write(t):
                masked = not restores(t)
        else:
            if open_span:
                res.append(open_span + ":")
                open_span = None
            res.append(l)
    return res


print("\n".join(dry_pass(lines)))
```

```python
import sys, struct, math

NAME = "sequential_preLN__sliding_block_cached__dense_activation_gelu__decode"

CFG = dict(nt=1, timeout=1 << 18, stamps=0, dual=1, tsleep0=10, tsleep=3, tsleepa=24, qsleep=0, mwin=4, touch=1, bmask=15, fsl=0, g1sl=0, g2sl=0, pf=0, pfw=16, touch2=1, kb0=6, kthm=0, kthn=8, dry=1, dry2=1, dry3=1, korder=0, ktouch=0, tl2=6, qrep=16, qsl=2, wpre=0)
for a in sys.argv[1:]:
    if "=" in a:
        k, v = a.split("=")
        CFG[k] = int(v)
NT = " nt" if CFG["nt"] else ""

WS_Q = 0x00000
RECP = 1152
WS_PNA = 0x10000
WS_PNB = 0x50000
WS_XQA = 0x90000
WS_XQB = 0x80000
WS_AP = 0xA8000
WS_Y = 0xB0000
YP = 4096 + 128
WS_TS = 0xF0000
WS_QR = 0x140000
WS_SIZE = 0x200000

L_QL = 0
L_XN = 0
L_SC = 2048
L_QR = 2048
L_HN = 4096
L_RED = 6144
L_STS = 8192
L_QS = 9216
L_H1 = 9216
L_ZERO = 9728
L_MX = 10240
L_LS = 10368
L_FLAG = 10496
L_TAG = 10512
L_FL2 = 10544
L_DUM = 10560
BIG = 11264
L_K = BIG
L_V = BIG + 65536
L_WQ = BIG
L_WO = BIG + 32768
L_WX = BIG + 32768
L_W2 = BIG + 65536
L_PS = BIG + 98304
PNP = 1040
LDS_BYTES = BIG + 131072

LOG2E = 1.4426950408889634
SCALE = 128 ** -0.5


def f2u(f):
    return struct.unpack("<I", struct.pack("<f", f))[0]


out = []


def A(s):
    out.append("    " + s)


def L(s):
    out.append(s + ":")


def C(s):
    out.append("    ; " + s)


def nop(n):
    while n > 0:
        k = min(n, 16)
        A(f"s_nop {k-1}")
        n -= k


_lbl = [0]


def newlbl(p="L"):
    _lbl[0] += 1
    return f"{p}_{_lbl[0]}"


P_X, P_K, P_V, P_WQ, P_WO, P_BX, P_W1, P_B1, P_W2, P_B2, P_OUT, P_DBG, P_WS = [36 + 2 * i for i in range(13)]
S_WAVE, S_X, S_A, S_B, S_SPL = 3, 4, 5, 6, 7
SRD_WS, SRD_A, SRD_B, SRD_C = 8, 12, 16, 20
S_T0, S_T1, S_T2, S_T3, S_T4, S_T5 = 24, 25, 26, 27, 28, 29
S_TO, S_ROLE, S_SUB, S_NT, S_PNA, S_PNB = 30, 31, 32, 33, 34, 35
S_Q = 36
S_TG = 100
WS = f"s[{SRD_WS}:{SRD_WS+3}]"
SA = f"s[{SRD_A}:{SRD_A+3}]"
SB = f"s[{SRD_B}:{SRD_B+3}]"
SC_ = f"s[{SRD_C}:{SRD_C+3}]"
V_ST = 1
S_DRY = 7
CFG_ORDER = ["head", "qc", "ldr", "gv", "att", "qm2"]
V_MSK = 5


def srd(d, p, size):
    A(f"s_mov_b32 s{d}, s{p}")
    A(f"s_mov_b32 s{d+1}, s{p+1}")
    A(f"s_mov_b32 s{d+2}, {size:#x}")
    A(f"s_mov_b32 s{d+3}, 0x00020000")


GVMODE = [False]


def stamp(slot):
    if GVMODE[0] and CFG.get("probe2", -1) == slot:
        l = newlbl("Lpr")
        C("ND{")
        A(f"s_cmp_lg_u32 s{S_WAVE}, {CFG['pw']}")
        A(f"s_cbranch_scc1 {l}")
        A(f"s_cmp_lg_u32 s{S_ROLE}, {CFG['prole']}")
        A(f"s_cbranch_scc1 {l}")
        A("s_memrealtime s[0:1]")
        A("s_waitcnt lgkmcnt(0)")
        A(f"s_atomic_umax s0, s[{P_DBG}:{P_DBG+1}], 32")
        L(l)
        C("}ND")
    if CFG.get("probe", -1) == slot:
        A("s_memrealtime s[0:1]")
        A("s_waitcnt lgkmcnt(0)")
        A("s_mov_b32 s7, s0")
    if CFG["stamps"]:
        A("s_memrealtime s[0:1]")
        A("s_waitcnt lgkmcnt(0)")
        A(f"v_writelane_b32 v{V_ST}, s0, {slot}")


def stamp_flush():
    if not CFG["stamps"]:
        return
    if CFG["stamps"] == 2:
        A("s_mov_b64 exec, -1")
        A(f"v_mov_b32 v2, {L_TAG}")
        A("ds_read_b32 v3, v2")
        A("s_waitcnt lgkmcnt(0)")
        A(f"v_sub_u32 v3, v{V_ST}, v3")
        A("v_max_i32 v3, 0, v3")
        A("v_lshlrev_b32 v2, 2, v0")
        A("v_add_co_u32 v166, vcc, v166, v2")
        A("v_addc_co_u32 v167, vcc, 0, v167, vcc")
        A(f"v_cmp_ne_u32 vcc, 0, v{V_ST}")
        A("s_bitcmp1_b32 vcc_lo, 11")
        A("s_cbranch_scc0 L_end")
        A("s_and_b64 exec, vcc, 0x1fff")
        A("s_cbranch_execz L_end")
        A("global_atomic_umax v[166:167], v3, off offset:8")
        return
    A("s_mov_b64 exec, -1")
    A("s_lshl_b32 s0, s2, 10")
    A(f"s_lshl_b32 s1, s{S_WAVE}, 6")
    A("s_add_u32 s0, s0, s1")
    A(f"s_add_u32 s0, s0, {WS_TS}")
    A("v_lshlrev_b32 v2, 2, v0")
    A("s_mov_b64 exec, 0xffff")
    A(f"buffer_store_dword v{V_ST}, v2, {WS}, s0 offen")


def dpp_steps(op, regs, ctrls):
    for c in ctrls:
        pad = max(0, 2 - (len(regs) - 1))
        if pad:
            nop(pad)
        for r in regs:
            A(f"{op}_dpp v{r}, v{r}, v{r} {c} row_mask:0xf bank_mask:0xf")


ROW_ALL = ["quad_perm:[1,0,3,2]", "quad_perm:[2,3,0,1]", "row_half_mirror", "row_mirror"]
ROW_HI = ["row_ror:4", "row_ror:8"]


def swap_steps(op, regs, tmps, which=(16, 32)):
    for wd in which:
        sw = f"v_permlane{wd}_swap_b32"
        for r, t in zip(regs, tmps):
            A(f"v_mov_b32 v{t}, v{r}")
        pad = max(0, 2 - (len(regs) - 1))
        if pad:
            nop(pad)
        for r, t in zip(regs, tmps):
            A(f"{sw} v{r}, v{t}")
        for r, t in zip(regs, tmps):
            A(f"{op} v{r}, v{r}, v{t}")


def allreduce(op, regs, tmps):
    nop(2)
    dpp_steps(op, regs, ROW_ALL)
    swap_steps(op, regs, tmps)


def lds_wait(flag_off, vt, va, sleep=0):
    l, e = newlbl("Lw"), newlbl("Lwe")
    A(f"v_mov_b32 v{va}, {flag_off}")
    A(f"s_mov_b32 s{S_TO}, {CFG['timeout']}")
    L(l)
    if sleep:
        A(f"s_sleep {sleep}")
    A(f"ds_read_b32 v{vt}, v{va}")
    A(f"s_sub_u32 s{S_TO}, s{S_TO}, 1")
    A(f"s_cbranch_scc1 {e}")
    A("s_waitcnt lgkmcnt(0)")
    A(f"v_readfirstlane_b32 s{S_T0}, v{vt}")
    A(f"s_cmp_eq_u32 s{S_T0}, 0")
    A(f"s_cbranch_scc1 {l}")
    L(e)
    A("s_waitcnt lgkmcnt(0)")


def lds_set(flag_off, vt, va):
    A("s_waitcnt lgkmcnt(0)")
    A(f"v_mov_b32 v{va}, {flag_off}")
    A(f"v_mov_b32 v{vt}, 1")
    A(f"ds_write_b32 v{va}, v{vt}")


def lds_sync(cnt_off, n, vt, va):
    l, e = newlbl("Ls"), newlbl("Lse")
    A(f"v_mov_b32 v{va}, {cnt_off}")
    A(f"v_mov_b32 v{vt}, 1")
    A("s_mov_b64 exec, 1")
    A(f"ds_add_u32 v{va}, v{vt}")
    A("s_mov_b64 exec, -1")
    A(f"s_mov_b32 s{S_TO}, {CFG['timeout']}")
    L(l)
    A(f"ds_read_b32 v{vt}, v{va}")
    A(f"s_sub_u32 s{S_TO}, s{S_TO}, 1")
    A(f"s_cbranch_scc1 {e}")
    A("s_waitcnt lgkmcnt(0)")
    A(f"v_readfirstlane_b32 s{S_T0}, v{vt}")
    A(f"s_cmp_lt_u32 s{S_T0}, {n}")
    A(f"s_cbranch_scc1 {l}")
    L(e)
    A("s_waitcnt lgkmcnt(0)")


def tree3(op3, op2, regs, t):
    regs = list(regs)
    A(f"{op3} v{t}, v{regs[0]}, v{regs[1]}, v{regs[2]}")
    i = 3
    while i + 1 < len(regs):
        A(f"{op3} v{t}, v{t}, v{regs[i]}, v{regs[i+1]}")
        i += 2
    if i < len(regs):
        A(f"{op2} v{t}, v{t}, v{regs[i]}")


def tag(quad, tg):
    for j in range(4):
        A(f"v_add_u32 v{quad+j}, 0x200, v{quad+j}")
    for j in range(4):
        A(f"v_bfi_b32 v{quad+j}, v{V_MSK}, v{tg+j}, v{quad+j}")


def tpoll(loads, regs, t, tg, sleep=0):
    l, e = newlbl("Lt"), newlbl("Lte")
    regs = list(regs)
    A(f"s_mov_b32 s{S_TO}, {CFG['timeout']}")
    L(l)
    if sleep:
        A(f"s_sleep {sleep}")
    loads()
    A(f"s_sub_u32 s{S_TO}, s{S_TO}, 1")
    A(f"s_cbranch_scc1 {e}")
    A("s_waitcnt vmcnt(0)")
    for i, r in enumerate(regs):
        A(f"v_xor_b32 v{r}, v{r}, v{tg + (i & 3)}")
    tree3("v_or3_b32", "v_or_b32", regs, t)
    A(f"v_and_b32 v{t}, v{V_MSK}, v{t}")
    A(f"v_cmp_ne_u32 vcc, 0, v{t}")
    A("s_cmp_lg_u64 vcc, 0")
    A(f"s_cbranch_scc1 {l}")
    L(e)
    A("s_waitcnt vmcnt(0)")


def tpoll2(loads, nld, bases, nreg, t, tg, consume):
    l, eA, eB, done = newlbl("Lu"), newlbl("LuA"), newlbl("LuB"), newlbl("Lud")

    def check(base, target):
        A(f"s_waitcnt vmcnt({nld})")
        regs = list(range(base, base + nreg))
        for i, r in enumerate(regs):
            A(f"v_xor_b32 v{r}, v{r}, v{tg + (i & 3)}")
        tree3("v_or3_b32", "v_or_b32", regs, t)
        A(f"v_and_b32 v{t}, v{V_MSK}, v{t}")
        A(f"v_cmp_ne_u32 vcc, 0, v{t}")
        A("s_cmp_eq_u64 vcc, 0")
        A(f"s_cbranch_scc1 {target}")
    A(f"s_mov_b32 s{S_TO}, {CFG['timeout']}")
    loads(bases[0])
    L(l)
    loads(bases[1])
    check(bases[0], eA)
    loads(bases[0])
    check(bases[1], eB)
    A(f"s_sub_u32 s{S_TO}, s{S_TO}, 1")
    A(f"s_cbranch_scc0 {l}")
    A("s_waitcnt vmcnt(0)")
    L(eA)
    consume(bases[0])
    A(f"s_branch {done}")
    L(eB)
    consume(bases[1])
    L(done)


def bf16r(dst, src):
    A(f"v_cvt_pk_bf16_f32 v{dst}, v{src}, v{src}")
    A(f"v_lshlrev_b32 v{dst}, 16, v{dst}")


def unpack(dst, src, n):
    for i in range(n):
        A(f"v_lshlrev_b32 v{dst+2*i}, 16, v{src+i}")
        A(f"v_and_b32 v{dst+2*i+1}, 0xffff0000, v{src+i}")


def pack(dst, src, n):
    for i in range(n):
        A(f"v_cvt_pk_bf16_f32 v{dst+i}, v{src+2*i}, v{src+2*i+1}")


def layernorm(xs, nb, tmp, outp):
    s = [tmp + i for i in range(nb)]
    q = [tmp + nb + i for i in range(nb)]
    t = [tmp + 2 * nb + i for i in range(nb)]
    mb = [tmp + 3 * nb + i for i in range(nb)]
    d = [tmp + 4 * nb + 8 * i for i in range(nb)]
    for i in range(nb):
        x = xs[i]
        A(f"v_add_f32 v{s[i]}, v{x}, v{x+1}")
        A(f"v_add_f32 v{t[i]}, v{x+2}, v{x+3}")
        A(f"v_add_f32 v{q[i]}, v{x+4}, v{x+5}")
        A(f"v_add_f32 v{mb[i]}, v{x+6}, v{x+7}")
        A(f"v_add_f32 v{s[i]}, v{s[i]}, v{t[i]}")
        A(f"v_add_f32 v{q[i]}, v{q[i]}, v{mb[i]}")
        A(f"v_add_f32 v{s[i]}, v{s[i]}, v{q[i]}")
    allreduce("v_add_f32", s, t)
    for i in range(nb):
        A(f"v_mul_f32 v{s[i]}, {f2u(1.0/512):#x}, v{s[i]}")
    for i in range(nb):
        x = xs[i]
        for j in range(8):
            A(f"v_sub_f32 v{d[i]+j}, v{x+j}, v{s[i]}")
        A(f"v_mul_f32 v{q[i]}, v{d[i]}, v{d[i]}")
        for j in range(1, 8):
            A(f"v_fmac_f32 v{q[i]}, v{d[i]+j}, v{d[i]+j}")
        bf16r(mb[i], s[i])
    nop(2)
    dpp_steps("v_add_f32", q, ROW_ALL)
    for i in range(nb):
        x = xs[i]
        for j in range(8):
            A(f"v_sub_f32 v{d[i]+j}, v{x+j}, v{mb[i]}")
        pack(outp[i], d[i], 4)
        unpack(d[i], outp[i], 4)
    swap_steps("v_add_f32", q, t)
    for i in range(nb):
        A(f"v_mul_f32 v{q[i]}, {f2u(1.0/512):#x}, v{q[i]}")
        bf16r(q[i], q[i])
        A(f"v_add_f32 v{q[i]}, {f2u(1e-5):#x}, v{q[i]}")
        bf16r(q[i], q[i])
        A(f"v_sqrt_f32 v{q[i]}, v{q[i]}")
        nop(1)
        bf16r(q[i], q[i])
        A(f"v_rcp_f32 v{q[i]}, v{q[i]}")
    nop(1)
    for i in range(nb):
        for j in range(8):
            A(f"v_mul_f32 v{d[i]+j}, v{d[i]+j}, v{q[i]}")
        pack(outp[i], d[i], 4)


def mfma(d, a, b, c=None):
    cc = f"v[{c}:{c+3}]" if c is not None else "0"
    A(f"v_mfma_f32_16x16x32_bf16 v[{d}:{d+3}], v[{a}:{a+3}], v[{b}:{b+3}], {cc}")


MASK_N2 = 0x0003000300030003
MASK_N4 = 0x000f000f000f000f


def set_exec(mask):
    A(f"s_mov_b32 exec_lo, {mask & 0xffffffff:#x}")
    A(f"s_mov_b32 exec_hi, {mask >> 32:#x}")


def tag_poll(sleep0, sel, barrier=False):
    lt, lte = newlbl(), newlbl()
    A(f"s_and_b32 s{S_T1}, s{sel}, 3")
    A(f"s_lshl_b32 s{S_T1}, s{S_T1}, 6")
    A(f"s_mov_b32 s{S_TO}, {CFG['timeout']}")
    if sleep0:
        A(f"s_sleep {sleep0}")
    if CFG["tl2"]:
        C("first attempts through the caches, one replica line each (a line is never re-read that way)")
        for r in range(4):
            A(f"s_load_dwordx2 s[{S_TG}:{S_TG+1}], s[{P_DBG}:{P_DBG+1}], {64*r}")
            A("s_waitcnt lgkmcnt(0)")
            A(f"s_cmp_lg_u32 s{S_TG+1}, 0")
            A(f"s_cbranch_scc1 {lte}")
            A(f"s_sleep {CFG['tl2']}")
    L(lt)
    A(f"s_load_dwordx2 s[{S_TG}:{S_TG+1}], s[{P_DBG}:{P_DBG+1}], s{S_T1} glc")
    A(f"s_sub_u32 s{S_TO}, s{S_TO}, 1")
    A(f"s_cbranch_scc1 {lte}")
    A("s_waitcnt lgkmcnt(0)")
    A(f"s_cmp_lg_u32 s{S_TG+1}, 0")
    A(f"s_cbranch_scc1 {lte}")
    A(f"s_sleep {CFG['tsleep']}")
    A(f"s_branch {lt}")
    L(lte)
    A("s_waitcnt lgkmcnt(0)")
    A(f"v_mov_b32 v100, s{S_TG}")
    A(f"v_mov_b32 v101, s{S_TG+1}")
    A("v_and_b32 v104, 0x3ff, v100")
    A("v_bfe_u32 v105, v100, 10, 10")
    A("v_bfe_u32 v106, v100, 20, 10")
    A("v_alignbit_b32 v107, v101, v100, 30")
    A("v_and_b32 v107, 0x3ff, v107")
    A(f"v_mov_b32 v102, {L_TAG}")
    if barrier == 1:
        A("s_barrier")
    A("ds_write_b64 v102, v[100:101]")
    A("ds_write_b128 v102, v[104:107] offset:16")
    if barrier == 2:
        A("s_waitcnt lgkmcnt(0)")
    else:
        lds_set(L_FLAG, 100, 101)


XNT = ' nt' if CFG.get('xnt', 0) else ''
out.append(f"""; fused pre-LN attention(decode, sliding window) + gelu MLP, persistent kernel
; @launch grid=(256,1,1) block=(640,1,1) lds={LDS_BYTES}
.amdgcn_target "amdgcn-amd-amdhsa--gfx950"
.text
.globl {NAME}_kernel
.p2align 8
.type {NAME}_kernel,@function
{NAME}_kernel:""")

BLK = {"head": out}


def begin(name):
    global out
    BLK[name] = []
    out = BLK[name]


def post_entry():
    A("s_waitcnt lgkmcnt(0)")
    srd(SRD_WS, P_WS, WS_SIZE)
    if CFG["stamps"] == 2:
        A(f"v_mov_b32 v166, s{P_DBG}")
        A(f"v_mov_b32 v167, s{P_DBG+1}")
    stamp(0)


def att_common():
    A(f"s_sub_u32 s{S_A}, s{S_A}, 16")
    A(f"s_lshr_b32 s{S_B}, s{S_A}, 3")
    A(f"s_lshl_b32 s{S_T0}, s{S_X}, 4")
    A(f"s_add_u32 s{S_T0}, s{S_T0}, s{S_A}")
    A(f"s_mul_i32 s{S_T0}, s{S_T0}, {RECP}")
    A(f"s_add_u32 s{S_PNA}, s{S_T0}, {WS_PNA}")
    A(f"s_add_u32 s{S_PNB}, s{S_T0}, {WS_PNB}")


def gv_common():
    A(f"s_mul_i32 s{S_SUB}, s{S_X}, 7")
    A(f"s_add_u32 s{S_SUB}, s{S_SUB}, s{S_A}")
    A(f"s_sub_u32 s{S_SUB}, s{S_SUB}, 8")
    A(f"s_mov_b32 s{S_ROLE}, 2")
    A(f"s_cmp_lt_u32 s{S_A}, 8")
    A(f"s_cselect_b32 s{S_ROLE}, 1, s{S_ROLE}")
    A(f"s_cselect_b32 s{S_SUB}, s{S_A}, s{S_SUB}")
    A(f"s_cmp_eq_u32 s{S_A}, 15")
    A(f"s_cselect_b32 s{S_ROLE}, 0, s{S_ROLE}")


def zero_flags():
    for j in range(4):
        A(f"v_mov_b32 v{12+j}, 0")
    A(f"v_mov_b32 v3, {L_FLAG}")
    A("ds_write_b128 v3, v[12:15]")
    A(f"ds_write_b128 v3, v[12:15] offset:{L_FL2 - L_FLAG}")


if CFG.get("probe", -1) == 15:
    A("s_memrealtime s[6:7]")
    A("s_waitcnt lgkmcnt(0)")
    A("s_mov_b32 s7, s6")
A("s_cmp_ge_u32 s2, 256")
A("s_cbranch_scc1 L_end")
A("s_load_dwordx16 s[36:51], s[0:1], 0")
A("s_load_dwordx8 s[52:59], s[0:1], 64")
A("s_load_dwordx2 s[60:61], s[0:1], 96")
A("v_lshrrev_b32 v1, 6, v0")
A("v_and_b32 v0, 63, v0")
A(f"s_and_b32 s{S_X}, s2, 7")
A(f"v_readfirstlane_b32 s{S_WAVE}, v1")
A(f"s_lshr_b32 s{S_A}, s2, 3")
if CFG["pf"]:
    C("early workgroups: waves 0..5 pull the kernel's code into L2 (striped)")
    A(f"s_cmp_ge_u32 s{S_WAVE}, 5")
    A("s_cbranch_scc1 L_pfe")
    A(f"s_cmp_ge_u32 s{S_A}, {CFG['pfw']}")
    A("s_cbranch_scc1 L_pfe")
    A("s_getpc_b64 s[24:25]")
    L("L_pcref")
    A(f"s_lshl_b32 s26, s{S_WAVE}, 7")
    L("L_pf")
    A("s_load_dword s27, s[24:25], s26")
    A("s_add_u32 s26, s26, 640")
    A("s_cmp_lt_u32 s26, L_end-L_pcref")
    A("s_cbranch_scc1 L_pf")
    L("L_pfe")
A("v_lshlrev_b32 v2, 4, v0")
A("v_lshrrev_b32 v4, 4, v0")
A(f"v_mov_b32 v{V_MSK}, 0x3ff")
A("v_and_b32 v6, 15, v0")
A("v_lshrrev_b32 v8, 3, v0")
A("v_bfe_u32 v9, v0, 1, 2")
A("v_and_b32 v10, 1, v0")
A("v_lshlrev_b32 v11, 5, v8")
A("v_lshl_add_u32 v11, v10, 4, v11")
if CFG["stamps"]:
    A(f"v_mov_b32 v{V_ST}, 0")
C("dispatch before waiting for the kernel arguments")
A(f"s_lshr_b32 s{S_T0}, s{S_A}, 4")
A(f"s_lshl_b32 s{S_T0}, s{S_T0}, 4")
A(f"s_or_b32 s{S_T0}, s{S_T0}, s{S_WAVE}")
A(f"s_cmp_ge_u32 s{S_T0}, 24")
A("s_cbranch_scc1 L_ldr")
A(f"s_cmp_ge_u32 s{S_T0}, 16")
A("s_cbranch_scc1 L_att")
if CFG["dry"]:
    A(f"s_cmp_lg_u32 s{S_T0}, 5")
    A("s_cbranch_scc1 L_nd")
    C("wave 5 walks the q wave's register/LDS code with EXEC=0 to warm the instruction cache")
    A("s_mov_b64 exec, 0")
    A("s_branch L_dry")
    L("L_nd")
A(f"s_cmp_lg_u32 s{S_T0}, 6")
A("s_cbranch_scc1 L_GV")

V_K = 16
V_Q = 48
V_S = 64
V_SM = 72
V_PNA = 80
V_T = 84
V_TG = 124
V_G = 128

begin("att")
L("L_att")
att_common()
post_entry()
srd(SRD_C, P_OUT, 2048)
srd(SRD_A, P_DBG, 256)
A(f"s_lshl_b32 s{S_T1}, s{S_WAVE}, 8")
A(f"s_add_u32 s{S_PNA}, s{S_PNA}, s{S_T1}")
A(f"s_add_u32 s{S_PNB}, s{S_PNB}, s{S_T1}")
A(f"v_lshlrev_b32 v{V_PNA}, 6, v6")
A(f"v_lshl_add_u32 v{V_PNA}, v4, 4, v{V_PNA}")
C("G role: even a -> gi = x*8 + a/2 (wave 0)")
A(f"s_lshl_b32 s{S_T0}, s{S_X}, 3")
A(f"s_lshr_b32 s{S_T1}, s{S_A}, 1")
A(f"s_add_u32 s{S_SUB}, s{S_T0}, s{S_T1}")
A(f"s_and_b32 s{S_ROLE}, s{S_A}, 1")
A(f"s_or_b32 s{S_ROLE}, s{S_ROLE}, s{S_WAVE}")
A(f"s_cmp_lg_u32 s{S_ROLE}, 0")
A("s_cbranch_scc1 L_nogsm")
srd(SRD_B, P_X, 2048)
A(f"v_and_b32 v{V_T}, 3, v0")
A(f"v_lshlrev_b32 v{V_T}, 3, v{V_T}")
A(f"s_lshl_b32 s{S_T0}, s{S_SUB}, 5")
A(f"buffer_load_dwordx2 v[{V_SM}:{V_SM+1}], v{V_T}, {SB}, s{S_T0} offen{XNT}")
if CFG["touch2"]:
    A(f"buffer_load_dwordx2 v[{V_SM+4}:{V_SM+5}], v{V_T}, {SC_}, s{S_T0} offen")
srd(SRD_B, P_B2, 1024)
A(f"s_and_b32 s{S_T0}, s{S_T0}, 1023")
A(f"buffer_load_dwordx2 v[{V_SM+2}:{V_SM+3}], v{V_T}, {SB}, s{S_T0} offen{XNT}")
L("L_nogsm")
C("pre-touch this wave's q lines so that they are resident at the memory side")
A(f"s_lshl_b32 s{S_T1}, s{S_X}, 12")
A(f"s_lshl_b32 s{S_T2}, s{S_B}, 11")
A(f"s_add_u32 s{S_T1}, s{S_T1}, s{S_T2}")
A(f"s_lshl_b32 s{S_T2}, s{S_WAVE}, 8")
A(f"s_add_u32 s{S_T1}, s{S_T1}, s{S_T2}")
A(f"s_add_u32 s{S_T2}, s{SRD_WS}, s{S_T1}")
A(f"s_addc_u32 s{S_T3}, s{SRD_WS+1}, 0")
if CFG["touch"]:
    for i in range(4):
        A(f"s_load_dword s{64+i}, s[{S_T2}:{S_T3}], {WS_Q + 64*i} glc")
C("K fragment addresses: K + w*8192 + m*256 + ((4k+g)^m)*16")
KA = V_T + 36
A(f"s_lshl_b32 s{S_T0}, s{S_WAVE}, 13")
A(f"s_add_u32 s{S_T0}, s{S_T0}, {L_K}")
for kp in range(4):
    A(f"v_add_u32 v{KA+kp}, {4*kp}, v4")
    A(f"v_xor_b32 v{KA+kp}, v{KA+kp}, v6")
    A(f"v_lshlrev_b32 v{KA+kp}, 4, v{KA+kp}")
    A(f"v_lshl_add_u32 v{KA+kp}, v6, 8, v{KA+kp}")
    A(f"v_add_u32 v{KA+kp}, s{S_T0}, v{KA+kp}")
A(f"s_cmp_lg_u32 s{S_WAVE}, 7")
A("s_cbranch_scc1 L_ntp")
tag_poll(CFG["tsleepa"], S_A, barrier=2)
L("L_ntp")
A("s_barrier")
A(f"v_mov_b32 v{V_T}, 0")
A(f"ds_read_b64 v[{V_T+2}:{V_T+3}], v{V_T} offset:{L_TAG}")
A(f"ds_read_b128 v[{V_TG}:{V_TG+3}], v{V_T} offset:{L_TAG + 16}")
A("s_waitcnt lgkmcnt(0)")
A(f"v_readfirstlane_b32 s{S_TG}, v{V_T+2}")
A(f"v_readfirstlane_b32 s{S_TG+1}, v{V_T+3}")
stamp(1)
S2 = V_T + 4
PK = V_T + 12
MM = V_T + 16
TT = V_T + 20
EX = V_T + 24
QA = V_T + 1
A(f"s_lshl_b32 s{S_T0}, s{S_WAVE}, 7")
A(f"v_lshl_add_u32 v{QA}, v0, 2, s{S_T0}")
A(f"v_and_b32 v{V_T+2}, 3, v0")
A(f"v_lshlrev_b32 v{V_T+3}, 8, v{V_T+2}")
A(f"v_lshl_add_u32 v{V_T+3}, v4, 4, v{V_T+3}")
A(f"s_lshl_b32 s{S_T0}, s{S_WAVE}, 2")
A(f"v_lshl_add_u32 v{TT+2}, v0, 5, s{S_T0}")
A(f"v_lshlrev_b32 v{TT+3}, 5, v{V_T+2}")
C("---- scalar gather of q: this wave's 256 bytes (16 granules {d0,d1,T0,T1})")
lq, lqe, lqk = newlbl("Lq"), newlbl("Lqe"), newlbl("Lqk")
stamp(12)


def k_frags():
    for kp in range(4):
        for tt in range(2):
            r = V_K + (tt * 4 + kp) * 4
            A(f"ds_read_b128 v[{r}:{r+3}], v{KA+kp} offset:{tt*4096}")


A(f"v_mov_b32 v{TT}, {L_FLAG + 4}")
A(f"s_mov_b32 s{S_NT}, 0")
A(f"s_mov_b32 s{S_TO}, {CFG['timeout']}")
if CFG["qrep"]:
    A(f"s_mov_b32 s7, {WS_QR}")
L(lq)
if CFG["qrep"]:
    A(f"s_cmp_ge_u32 s7, {WS_QR + CFG['qrep']*32768}")
    A(f"s_cbranch_scc1 {lq}_g")
    C("attempt through the caches: a replica is read only once")
    A(f"s_add_u32 s{S_T4}, s{S_T2}, s7")
    A(f"s_addc_u32 s{S_T5}, s{S_T3}, 0")
    A("s_add_u32 s7, s7, 32768")
    for i in range(4):
        A(f"s_load_dwordx16 s[{S_Q+16*i}:{S_Q+16*i+15}], s[{S_T4}:{S_T5}], {64*i}")
    if CFG["qsl"]:
        A(f"s_sleep {CFG['qsl']}")
    A(f"s_branch {lq}_h")
    L(f"{lq}_g")
for i in range(4):
    A(f"s_load_dwordx16 s[{S_Q+16*i}:{S_Q+16*i+15}], s[{S_T2}:{S_T3}], {WS_Q + 64*i} glc")
if CFG["qrep"]:
    L(f"{lq}_h")
A(f"ds_read_b32 v{TT+1}, v{TT}")
A(f"s_sub_u32 s{S_TO}, s{S_TO}, 1")
A(f"s_cbranch_scc1 {lqe}")
A("s_waitcnt lgkmcnt(0)")
A(f"v_readfirstlane_b32 s{S_T0}, v{TT+1}")
A(f"s_andn2_b32 s{S_T0}, s{S_T0}, s{S_NT}")
A(f"s_cbranch_scc0 {lqk}")
A(f"s_mov_b32 s{S_NT}, 1")
k_frags()
L(lqk)
A(f"s_and_b64 s[{S_T4}:{S_T5}], s[{S_Q+2}:{S_Q+3}], s[{S_Q+6}:{S_Q+7}]")
A(f"s_or_b64 s[{S_T0}:{S_T1}], s[{S_Q+2}:{S_Q+3}], s[{S_Q+6}:{S_Q+7}]")
for gq in range(2, 16):
    A(f"s_and_b64 s[{S_T4}:{S_T5}], s[{S_T4}:{S_T5}], s[{S_Q+4*gq+2}:{S_Q+4*gq+3}]")
    A(f"s_or_b64 s[{S_T0}:{S_T1}], s[{S_T0}:{S_T1}], s[{S_Q+4*gq+2}:{S_Q+4*gq+3}]")
A(f"s_xor_b64 s[{S_T4}:{S_T5}], s[{S_T4}:{S_T5}], s[{S_TG}:{S_TG+1}]")
A(f"s_xor_b64 s[{S_T0}:{S_T1}], s[{S_T0}:{S_T1}], s[{S_TG}:{S_TG+1}]")
A(f"s_or_b64 s[{S_T4}:{S_T5}], s[{S_T4}:{S_T5}], s[{S_T0}:{S_T1}]")
A(f"s_cbranch_scc1 {lq}")
L(lqe)
A("s_waitcnt lgkmcnt(0)")
stamp(8)
if CFG["stamps"] == 1:
    A(f"s_sub_u32 s0, {CFG['timeout']}, s{S_TO}")
    A(f"v_writelane_b32 v{V_ST}, s0, 9")
for gq in range(16):
    A(f"v_writelane_b32 v{V_T}, s{S_Q+4*gq}, {2*gq}")
    A(f"v_writelane_b32 v{V_T}, s{S_Q+4*gq+1}, {2*gq+1}")
A("s_mov_b32 exec_hi, 0")
A(f"ds_write_b32 v{QA}, v{V_T} offset:{L_QL}")
A("s_mov_b32 exec_hi, -1")
A(f"s_cmp_lg_u32 s{S_NT}, 0")
A("s_cbranch_scc1 L_kok")
lds_wait(L_FLAG + 4, V_T, TT, sleep=1)
k_frags()
L("L_kok")
C("poll the q operand itself (LDS sentinel)")
l1, l1e = newlbl("Lqo"), newlbl("Lqoe")
A(f"s_mov_b32 s{S_TO}, {CFG['timeout']}")
L(l1)
for kp in range(4):
    A(f"ds_read_b128 v[{V_Q+4*kp}:{V_Q+4*kp+3}], v{V_T+3} offset:{L_QL + kp*64}")
A(f"s_sub_u32 s{S_TO}, s{S_TO}, 1")
A(f"s_cbranch_scc1 {l1e}")
A("s_waitcnt lgkmcnt(0)")
tree3("v_max3_u32", "v_max_u32", range(V_Q, V_Q + 16), TT)
A(f"v_cmp_eq_u32 vcc, -1, v{TT}")
A("s_cmp_lg_u64 vcc, 0")
A(f"s_cbranch_scc1 {l1}")
L(l1e)
A("s_waitcnt lgkmcnt(0)")
for kp in range(4):
    for tt in range(2):
        mfma(V_S + 4 * tt, V_K + (tt * 4 + kp) * 4, V_Q + 4 * kp, None if kp == 0 else V_S + 4 * tt)
stamp(2)
A(f"v_mov_b32 v{EX}, {f2u(SCALE):#x}")
A(f"v_mov_b32 v{EX+1}, {f2u(SCALE):#x}")
A(f"s_mov_b32 s{S_T1}, {f2u(LOG2E):#x}")
nop(5)
pack(PK, V_S, 4)
unpack(S2, PK, 4)
for j in range(0, 8, 2):
    A(f"v_pk_mul_f32 v[{S2+j}:{S2+j+1}], v[{S2+j}:{S2+j+1}], v[{EX}:{EX+1}]")
pack(PK, S2, 4)
unpack(S2, PK, 4)
A(f"v_max3_f32 v{MM}, v{S2}, v{S2+1}, v{S2+2}")
A(f"v_max3_f32 v{MM}, v{MM}, v{S2+3}, v{S2+4}")
A(f"v_max3_f32 v{MM}, v{MM}, v{S2+5}, v{S2+6}")
A(f"v_max_f32 v{MM}, v{MM}, v{S2+7}")
swap_steps("v_max_f32", [MM], [TT])
A("s_mov_b64 exec, 15")
A(f"ds_write_b32 v{TT+2}, v{MM} offset:{L_MX}")
A("s_mov_b64 exec, -1")
for j in range(8):
    A(f"v_mul_f32 v{S2+j}, s{S_T1}, v{S2+j}")
l2, l2e = newlbl("Lmx"), newlbl("Lmxe")
A(f"s_mov_b32 s{S_TO}, {CFG['timeout']}")
L(l2)
A(f"ds_read_b128 v[{EX}:{EX+3}], v{TT+3} offset:{L_MX}")
A(f"ds_read_b128 v[{EX+4}:{EX+7}], v{TT+3} offset:{L_MX + 16}")
A(f"s_sub_u32 s{S_TO}, s{S_TO}, 1")
A(f"s_cbranch_scc1 {l2e}")
A("s_waitcnt lgkmcnt(0)")
tree3("v_max3_u32", "v_max_u32", range(EX, EX + 8), TT)
tree3("v_max3_f32", "v_max_f32", range(EX, EX + 8), MM)
A(f"v_cmp_eq_u32 vcc, -1, v{TT}")
A("s_cmp_lg_u64 vcc, 0")
A(f"s_cbranch_scc1 {l2}")
L(l2e)
A("s_waitcnt lgkmcnt(0)")
A(f"v_mul_f32 v{MM}, s{S_T1}, v{MM}")
for j in range(8):
    A(f"v_sub_f32 v{EX+j}, v{S2+j}, v{MM}")
for j in range(8):
    A(f"v_exp_f32 v{EX+j}, v{EX+j}")
A(f"s_lshl_b32 s{S_T0}, s{S_WAVE}, 10")
A(f"v_add_u32 v{TT}, s{S_T0}, v2")
pack(PK, EX, 4)
A(f"ds_write_b128 v{TT}, v[{PK}:{PK+3}] offset:{L_SC}")
A(f"v_add_f32 v{MM+1}, v{EX}, v{EX+1}")
A(f"v_add_f32 v{TT}, v{EX+2}, v{EX+3}")
A(f"v_add_f32 v{TT+1}, v{EX+4}, v{EX+5}")
A(f"v_add_f32 v{EX}, v{EX+6}, v{EX+7}")
A(f"v_add_f32 v{MM+1}, v{MM+1}, v{TT}")
A(f"v_add_f32 v{EX}, v{EX}, v{TT+1}")
A(f"v_add_f32 v{MM+1}, v{MM+1}, v{EX}")
swap_steps("v_add_f32", [MM + 1], [TT])
A("s_mov_b64 exec, 15")
A(f"ds_write_b32 v{TT+2}, v{MM+1} offset:{L_LS}")
A("s_mov_b64 exec, -1")
stamp(3)
VA0, VA1, VB0, VB1 = V_T + 32, V_T + 33, V_T + 34, V_T + 35


def vw2_addr():
    A(f"v_lshlrev_b32 v{VA0}, 10, v4")
    A(f"v_lshl_add_u32 v{VA0}, v6, 3, v{VA0}")
    A(f"v_and_b32 v{VA1}, 1, v4")
    A(f"v_lshl_add_u32 v{VA0}, v{VA1}, 7, v{VA0}")
    A(f"v_xor_b32 v{VA1}, 128, v{VA0}")


vw2_addr()
A(f"s_lshl_b32 s{S_T0}, s{S_WAVE}, 8")
A(f"s_add_u32 s{S_T0}, s{S_T0}, {L_V}")
A(f"v_add_u32 v{VB0}, s{S_T0}, v{VA0}")
A(f"v_add_u32 v{VB1}, s{S_T0}, v{VA1}")
A(f"s_cmp_gt_u32 s{S_WAVE}, 4")
A("s_cbranch_scc1 L_exit")
A(f"v_mov_b32 v{V_T+1}, {L_FLAG + 8}")
A(f"s_mov_b32 s{S_NT}, 0")


def wait_progress(n):
    l, ok = newlbl("Lvp"), newlbl("Lvo")
    A(f"s_cmp_ge_u32 s{S_NT}, {n}")
    A(f"s_cbranch_scc1 {ok}")
    A(f"s_mov_b32 s{S_TO}, {CFG['timeout']}")
    L(l)
    A(f"ds_read_b32 v{V_T}, v{V_T+1}")
    A(f"s_sub_u32 s{S_TO}, s{S_TO}, 1")
    A(f"s_cbranch_scc1 {ok}")
    A("s_waitcnt lgkmcnt(0)")
    A(f"v_readfirstlane_b32 s{S_NT}, v{V_T}")
    A(f"s_cmp_lt_u32 s{S_NT}, {n}")
    A(f"s_cbranch_scc1 {l}")
    L(ok)


A(f"s_cmp_lt_u32 s{S_WAVE}, 4")
A("s_cbranch_scc1 L_pv")
C("---- wave 4: publish stats {m,l,T0,T1} per head (lanes 0..3) once all l are in and the PN clears completed")
wait_progress(1)
A(f"v_mov_b32 v{MM+2}, s{S_TG}")
A(f"v_mov_b32 v{MM+3}, s{S_TG+1}")
l4, l4e = newlbl("Lls"), newlbl("Llse")
A(f"s_mov_b32 s{S_TO}, {CFG['timeout']}")
L(l4)
A(f"ds_read_b128 v[{EX}:{EX+3}], v{TT+3} offset:{L_LS}")
A(f"ds_read_b128 v[{EX+4}:{EX+7}], v{TT+3} offset:{L_LS + 16}")
A(f"s_sub_u32 s{S_TO}, s{S_TO}, 1")
A(f"s_cbranch_scc1 {l4e}")
A("s_waitcnt lgkmcnt(0)")
tree3("v_max3_u32", "v_max_u32", range(EX, EX + 8), TT)
A(f"v_cmp_eq_u32 vcc, -1, v{TT}")
A("s_cmp_lg_u64 vcc, 0")
A(f"s_cbranch_scc1 {l4}")
L(l4e)
A("s_waitcnt lgkmcnt(0)")
for j in range(4):
    A(f"v_add_f32 v{EX+j}, v{EX+j}, v{EX+4+j}")
A(f"v_add_f32 v{EX}, v{EX}, v{EX+1}")
A(f"v_add_f32 v{EX+2}, v{EX+2}, v{EX+3}")
A(f"v_add_f32 v{MM+1}, v{EX}, v{EX+2}")
A("s_mov_b64 exec, 15")
if CFG["dual"]:
    A(f"buffer_store_dwordx4 v[{MM}:{MM+3}], v2, {WS}, s{S_PNA} offen")
A(f"buffer_store_dwordx4 v[{MM}:{MM+3}], v2, {WS}, s{S_PNB} offen sc1")
A("s_branch L_exit")
L("L_pv")
C("---- PV (waves 0..3, 32 dims each): tiles are consumed as they land")
PB = V_G
VF = V_K
l5, l5e = newlbl("Lpp"), newlbl("Lppe")
A(f"s_mov_b32 s{S_TO}, {CFG['timeout']}")
L(l5)
for t in range(8):
    A(f"ds_read_b128 v[{PB+4*t}:{PB+4*t+3}], v2 offset:{L_SC + t*1024}")
A(f"ds_read_b32 v{V_T}, v{V_T+1}")
A(f"s_sub_u32 s{S_TO}, s{S_TO}, 1")
A(f"s_cbranch_scc1 {l5e}")
A("s_waitcnt lgkmcnt(0)")
tree3("v_max3_u32", "v_max_u32", [PB + 4 * t + j for t in range(8) for j in (0, 3)], TT)
A(f"v_readfirstlane_b32 s{S_NT}, v{V_T}")
A(f"v_cmp_eq_u32 vcc, -1, v{TT}")
A("s_cmp_lg_u64 vcc, 0")
A(f"s_cbranch_scc1 {l5}")
L(l5e)
A("s_waitcnt lgkmcnt(0)")
stamp(5)


def v_reads(t):
    for c2 in range(2):
        for h in range(2):
            r = VF + ((t % 6) * 2 + c2) * 4 + 2 * h
            A(f"ds_read_b64_tr_b16 v[{r}:{r+1}], v{VB0 + c2} offset:{t*8192 + h*4096}")


def v_mfma(t):
    for c2 in range(2):
        mfma(V_S + 4 * c2, VF + ((t % 6) * 2 + c2) * 4, PB + 4 * t, None if t == 0 else V_S + 4 * c2)


A(f"s_cmp_ge_u32 s{S_NT}, 8")
A("s_cbranch_scc1 L_pvf")
for t in range(8):
    wait_progress(t + 1)
    v_reads(t)
    if t >= 1:
        A("s_waitcnt lgkmcnt(4)")
        v_mfma(t - 1)
A("s_waitcnt lgkmcnt(0)")
v_mfma(7)
A("s_branch L_pve")
L("L_pvf")
for t in range(3):
    v_reads(t)
for t in range(8):
    A(f"s_waitcnt lgkmcnt({min(2, 7 - t)*4})")
    v_mfma(t)
    if t + 3 < 8:
        v_reads(t + 3)
L("L_pve")
nop(7)
pack(PK, V_S, 4)
set_exec(MASK_N4)
if CFG["dual"]:
    A(f"buffer_store_dwordx4 v[{PK}:{PK+3}], v{V_PNA}, {WS}, s{S_PNA} offen")
A(f"buffer_store_dwordx4 v[{PK}:{PK+3}], v{V_PNA}, {WS}, s{S_PNB} offen sc1")
A("s_mov_b64 exec, -1")
stamp(6)
A(f"s_cmp_lg_u32 s{S_ROLE}, 0")
A("s_cbranch_scc1 L_exit")

C("==== G: final reduce of 16 outputs (16gi..16gi+15)")
A(f"s_lshl_b32 s{S_T2}, s{S_SUB}, 6")
A(f"s_add_u32 s{S_T3}, s{S_T2}, {WS_AP}")
A(f"s_add_u32 s{S_T2}, s{S_T2}, {WS_Y}")
A(f"v_lshrrev_b32 v{TT+2}, 2, v0")
A(f"v_and_b32 v{TT+3}, 3, v0")
A(f"v_lshlrev_b32 v{TT}, 12, v{TT+2}")
A(f"v_lshl_add_u32 v{TT}, v{TT+3}, 4, v{TT}")
A(f"s_movk_i32 s{S_T0}, {YP}")
A(f"v_mul_lo_u32 v{TT+2}, v{TT+2}, s{S_T0}")
A(f"v_lshl_add_u32 v{TT+2}, v{TT+3}, 4, v{TT+2}")
for i in range(1, 4):
    A(f"s_add_u32 s{40+i}, s{S_T2}, {16*i*YP}")
GA = V_G
if CFG["dry2"]:
    C("walk the rest of this path once with EXEC=0 (instruction cache warm-up)")
    A("s_mov_b64 exec, 0")
L("L_kret")
C("DRY{")
A("s_mov_b32 exec_hi, 0")


def g1_loads():
    A(f"buffer_load_dwordx4 v[{GA}:{GA+3}], v{TT}, {WS}, s{S_T3} offen sc1")


tpoll(g1_loads, range(GA, GA + 4), V_T, V_TG, CFG['g1sl'])
A("s_mov_b64 exec, -1")
stamp(7)
A(f"s_cmp_lg_u32 s{S_SUB}, 0")
A("s_cbranch_scc1 L_gnz")
C("every workgroup has consumed the launch tag by now: leave d_debug clean")
A(f"v_mov_b32 v{V_T}, 0")
A(f"v_mov_b32 v{V_T+1}, 0")
A(f"v_lshlrev_b32 v{V_T+2}, 6, v0")
A("s_mov_b64 exec, 15")
A(f"buffer_store_dwordx2 v[{V_T}:{V_T+1}], v{V_T+2}, {SA}, 0 offen sc1")
A("s_mov_b64 exec, -1")
L("L_gnz")
nop(1)
dpp_steps("v_add_f32", [GA + j for j in range(4)], ROW_HI)
swap_steps("v_add_f32", [GA + j for j in range(4)], [GA + 4 + j for j in range(4)], which=(16,))
GH = V_G + 8
GP = V_G + 16
GB = V_G + 20
pack(GP, GA, 2)
unpack(GA, GP, 2)
unpack(GH, V_SM, 2)
for j in range(4):
    A(f"v_add_f32 v{GH+j}, v{GH+j}, v{GA+j}")
pack(GP, GH, 2)
unpack(GH, GP, 2)
unpack(GB, V_SM + 2, 2)
GY = V_K


def g2_loads():
    for j in range(4):
        A(f"v_mov_b32 v{GY+12+j}, v{V_TG+j}")
    A(f"buffer_load_dwordx4 v[{GY}:{GY+3}], v{TT+2}, {WS}, s{S_T2} offen sc1")
    A(f"buffer_load_dwordx4 v[{GY+4}:{GY+7}], v{TT+2}, {WS}, s41 offen sc1")
    A(f"buffer_load_dwordx4 v[{GY+8}:{GY+11}], v{TT+2}, {WS}, s42 offen sc1")
    A("s_mov_b32 exec_hi, 0")
    A(f"buffer_load_dwordx4 v[{GY+12}:{GY+15}], v{TT+2}, {WS}, s43 offen sc1")
    A("s_mov_b32 exec_hi, -1")


tpoll(g2_loads, range(GY, GY + 16), V_T, V_TG, CFG['g2sl'])
stamp(10)
for j in range(4):
    A(f"v_add_f32 v{GY+j}, v{GY+j}, v{GY+4+j}")
    A(f"v_add_f32 v{GY+8+j}, v{GY+8+j}, v{GY+12+j}")
for j in range(4):
    A(f"v_add_f32 v{GY+j}, v{GY+j}, v{GY+8+j}")
dpp_steps("v_add_f32", [GY + j for j in range(4)], ROW_HI)
swap_steps("v_add_f32", [GY + j for j in range(4)], [GY + 4 + j for j in range(4)])
pack(GP, GY, 2)
unpack(GY, GP, 2)
for j in range(4):
    A(f"v_add_f32 v{GY+j}, v{GY+j}, v{GB+j}")
pack(GP, GY, 2)
unpack(GY, GP, 2)
for j in range(4):
    A(f"v_add_f32 v{GY+j}, v{GY+j}, v{GH+j}")
pack(GP, GY, 2)
if CFG.get("padto", 0):
    C("ND{")
    A(f"s_mov_b32 s{S_T5}, {CFG['padto']}")
    if CFG.get("probe2", -1) >= 0:
        A(f"s_load_dword s7, s[{SRD_A}:{SRD_A+1}], 32 glc")
        A("s_waitcnt lgkmcnt(0)")
    if CFG.get("probe", -1) >= 0 or CFG.get("probe2", -1) >= 0:
        A(f"s_sub_u32 s0, s7, s{S_TG}" if not CFG.get("neg", 0) else f"s_sub_u32 s0, s{S_TG}, s7")
        A("s_max_i32 s0, s0, 0")
        A("s_mul_i32 s0, s0, 3")
        A(f"s_add_u32 s{S_T5}, s{S_T5}, s0")
    L("L_pad")
    A("s_memrealtime s[0:1]")
    A("s_waitcnt lgkmcnt(0)")
    A(f"s_sub_u32 s0, s0, s{S_TG}")
    A(f"s_cmp_lt_u32 s0, s{S_T5}")
    A("s_cbranch_scc1 L_pad")
    C("}ND")
A(f"s_lshl_b32 s{S_T4}, s{S_SUB}, 5")
A("v_lshlrev_b32 v3, 3, v0")
A("s_mov_b64 exec, 15")
A(f"buffer_store_dwordx2 v[{GP}:{GP+1}], v3, {SC_}, s{S_T4} offen")
stamp(11)
A("s_branch L_exit")

C("}DRY")
begin("ldr")
L("L_ldr")
att_common()
C("kv byte offset: ((b*8+x)*8192 + 6144 + 256 s)*256")
A(f"s_lshl_b32 s{S_T0}, s{S_B}, 3")
A(f"s_add_u32 s{S_T0}, s{S_T0}, s{S_X}")
A(f"s_lshl_b32 s{S_T0}, s{S_T0}, 5")
A(f"s_and_b32 s{S_T1}, s{S_A}, 7")
A(f"s_add_u32 s{S_T0}, s{S_T0}, s{S_T1}")
A(f"s_add_u32 s{S_T0}, s{S_T0}, 24")
A(f"s_lshl_b32 s{S_T3}, s{S_T0}, 16")
A(f"s_mov_b32 s{S_T2}, 0")
A(f"s_cmp_eq_u32 s{S_WAVE}, 9")
A("s_cbranch_scc1 L_ldv")
C("K DMA lane offsets: r4=l>>4, p=l&15: r4*256 + ((p ^ (4i+r4))*16)")
for i in range(4):
    A(f"v_add_u32 v{12+i}, {4*i}, v4")
    A(f"v_xor_b32 v{12+i}, v{12+i}, v6")
    A(f"v_lshlrev_b32 v{12+i}, 4, v{12+i}")
    A(f"v_lshl_add_u32 v{12+i}, v4, 8, v{12+i}")
A(f"s_mov_b32 s{S_T1}, {L_K}")
post_entry()
srd(SRD_A, P_K, 0x2000000)
if CFG.get("ksleep", 0):
    A(f"s_sleep {CFG['ksleep']}")
if CFG["ktouch"]:
    C("resolve the K/V translations first; the q-projection loads get a head start meanwhile")
    A(f"s_load_dword s64, s[{P_K}:{P_K+1}], s{S_T3}")
    A(f"s_load_dword s65, s[{P_V}:{P_V+1}], s{S_T3}")
    A("s_waitcnt lgkmcnt(0)")
L("L_ldk1")
A(f"s_mov_b32 m0, s{S_T1}")
A(f"s_add_u32 s{S_T1}, s{S_T1}, 4096")
for i in range(4):
    A(f"buffer_load_dwordx4 v{12+i}, {SA}, s{S_T3} offen offset:{i*1024}{NT} lds")
A(f"s_add_u32 s{S_T3}, s{S_T3}, 4096")
A(f"s_add_u32 s{S_T2}, s{S_T2}, 1")
A(f"s_cmp_lt_u32 s{S_T2}, 16")
A("s_cbranch_scc1 L_ldk1")
stamp(1)
A("s_barrier")
A("s_waitcnt vmcnt(0)")
stamp(4)
lds_set(L_FLAG + 4, 16, 17)
A("s_waitcnt lgkmcnt(0)")
A("s_branch L_exit")
L("L_ldv")
zero_flags()
for j in range(4):
    A(f"v_mov_b32 v{16+j}, -1")
A(f"ds_write_b128 v2, v[16:19] offset:{L_QL}")
for t in range(8):
    A(f"ds_write_b128 v2, v[16:19] offset:{L_SC + t*1024}")
A("s_mov_b64 exec, 0xffff")
A(f"ds_write_b128 v2, v[16:19] offset:{L_MX}")
A("s_mov_b64 exec, -1")
A("v_lshl_add_u32 v12, v9, 8, v11")
A("v_xor_b32 v13, 32, v12")
post_entry()
srd(SRD_B, P_V, 0x2000000)
A("s_barrier")
A(f"buffer_store_dwordx4 v[16:19], v2, {WS}, s{S_PNA} offen sc1")
A(f"buffer_store_dwordx4 v[16:19], v2, {WS}, s{S_PNB} offen sc1")
A(f"s_mov_b32 s{S_T1}, {L_V}")
L("L_ldv1")
A(f"s_mov_b32 m0, s{S_T1}")
A(f"s_add_u32 s{S_T1}, s{S_T1}, 4096")
for be in range(4):
    A(f"buffer_load_dwordx4 v{12 + (be & 1)}, {SB}, s{S_T3} offen offset:{be*1024}{NT} lds")
A(f"s_add_u32 s{S_T3}, s{S_T3}, 4096")
A(f"s_add_u32 s{S_T2}, s{S_T2}, 1")
A(f"s_cmp_lt_u32 s{S_T2}, 16")
A("s_cbranch_scc1 L_ldv1")
stamp(1)
A(f"v_mov_b32 v20, {L_FLAG + 8}")
for t in range(8):
    A(f"v_mov_b32 v21, {t+1}")
    A(f"s_waitcnt vmcnt({56 - 8*t})")
    A("ds_write_b32 v20, v21")
stamp(4)
A("s_waitcnt lgkmcnt(0)")
A("s_branch L_exit")

GVMODE[0] = True
begin("gv")
L("L_dry2")
A("s_mov_b64 exec, -1")
L("L_GV")
gv_common()
post_entry()
A(f"s_cmp_ge_u32 s{S_WAVE}, 8")
A("s_cbranch_scc1 L_gld")
A(f"s_cmp_lg_u32 s{S_WAVE}, 7")
A("s_cbranch_scc1 L_gv2")
A("s_cmp_lg_u32 s2, 0")
A("s_cbranch_scc1 L_gv0")
C("workgroup 0 publishes the launch tag (4 replicas)")
srd(SRD_C, P_DBG, 256)
A("s_memrealtime s[24:25]")
A("s_waitcnt lgkmcnt(0)")
A("s_or_b32 s25, s25, 0x80000000")
A("v_mov_b32 v14, s24")
A("v_mov_b32 v15, s25")
A("v_lshlrev_b32 v12, 6, v0")
A("s_mov_b64 exec, 15")
A(f"buffer_store_dwordx2 v[14:15], v12, {SC_}, 0 offen sc1")
A("s_mov_b64 exec, -1")
L("L_gv0")
tag_poll(CFG["tsleep0"], S_A, barrier=2)
stamp(5)
A(f"s_mov_b32 s{S_TO}, {CFG['timeout']}")
L("L_echo")
A("ds_write_b64 v102, v[100:101]")
A("ds_read_b32 v103, v102 offset:8")
A(f"s_sub_u32 s{S_TO}, s{S_TO}, 1")
A("s_cbranch_scc1 L_gv2")
A("s_waitcnt lgkmcnt(0)")
A(f"v_readfirstlane_b32 s{S_T0}, v103")
A("s_sleep 2")
A(f"s_cmp_lg_u32 s{S_T0}, s{S_TG}")
A("s_cbranch_scc1 L_echo")
L("L_gv2")
A("s_branch L_qm1")

C("---- GEMV loaders (waves 8,9)")
L("L_gld")
A(f"s_and_b32 s{S_T5}, s{S_WAVE}, 1")
C("WX style lane offsets: ct=l>>5, p=(l>>1)&15 (row), half")
A("v_bfe_u32 v3, v0, 1, 4")
A("v_lshrrev_b32 v12, 5, v0")
A("v_lshlrev_b32 v12, 5, v12")
A("v_lshl_add_u32 v12, v10, 4, v12")
A(f"s_cmp_eq_u32 s{S_ROLE}, 0")
A("s_cbranch_scc1 L_exit")
A(f"s_cmp_eq_u32 s{S_ROLE}, 2")
A("s_cbranch_scc1 L_gld2")
C("wo tile: 512 rows x 128 B; loader i: rows 256i.. (32 instrs of 8 rows)")
srd(SRD_C, P_WO, 0x400000)
A("v_bfe_u32 v3, v0, 1, 3")
A("v_lshlrev_b32 v3, 10, v3")
A("v_lshl_add_u32 v3, v4, 5, v3")
A("v_lshl_add_u32 v3, v10, 4, v3")
A(f"s_lshl_b32 s{S_T3}, s{S_X}, 19")
A(f"s_lshl_b32 s{S_T1}, s{S_T5}, 18")
A(f"s_add_u32 s{S_T3}, s{S_T3}, s{S_T1}")
A(f"s_lshl_b32 s{S_T1}, s{S_SUB}, 7")
A(f"s_add_u32 s{S_T3}, s{S_T3}, s{S_T1}")
A(f"s_lshl_b32 s{S_T4}, s{S_T5}, 15")
A(f"s_add_u32 s{S_T4}, s{S_T4}, {L_WO}")
if CFG["touch2"]:
    for i in range(4):
        A(f"s_add_u32 s{S_T1}, s{S_T3}, {i*65536}")
        A(f"s_load_dword s{64+i}, s[{P_WO}:{P_WO+1}], s{S_T1}")
A(f"s_mov_b32 s{S_T2}, 0")
if CFG["wpre"]:
    lds_wait(L_FL2, 16, 17, sleep=1)
else:
    A("s_barrier")
L("L_gld1")
for i in range(4):
    A(f"s_mov_b32 m0, s{S_T4}")
    A(f"s_add_u32 s{S_T4}, s{S_T4}, 1024")
    A(f"buffer_load_dwordx4 v3, {SC_}, s{S_T3} offen{NT} lds")
    A(f"s_add_u32 s{S_T3}, s{S_T3}, 8192")
A(f"s_add_u32 s{S_T2}, s{S_T2}, 1")
if CFG["wpre"]:
    A(f"s_cmp_lg_u32 s{S_T2}, {CFG['wpre']}")
    A("s_cbranch_scc1 L_gld1b")
    A("s_barrier")
    L("L_gld1b")
A(f"s_cmp_lt_u32 s{S_T2}, 8")
A("s_cbranch_scc1 L_gld1")
A("s_branch L_gld5")
L("L_gld2")
A(f"s_cmp_eq_u32 s{S_T5}, 1")
A("s_cbranch_scc1 L_gld3")
srd(SRD_C, P_W1, 512 * 3584)
A(f"s_lshl_b32 s{S_T3}, s{S_SUB}, 6")
A(f"s_movk_i32 s{S_T1}, 3584")
A(f"v_mul_lo_u32 v13, v3, s{S_T1}")
A("v_add_u32 v13, v13, v12")
if CFG["touch2"]:
    for i in range(14):
        A(f"s_add_u32 s{S_T1}, s{S_T3}, {i*131072}")
        A(f"s_load_dword s{64+i}, s[{P_W1}:{P_W1+1}], s{S_T1}")
A("s_barrier")
A(f"s_mov_b32 s{S_T1}, {L_WX}")
A(f"s_mov_b32 s{S_T2}, 0")
L("L_gld4")
for i in range(4):
    A(f"s_mov_b32 m0, s{S_T1}")
    A(f"s_add_u32 s{S_T1}, s{S_T1}, 1024")
    A(f"buffer_load_dwordx4 v13, {SC_}, s{S_T3} offen{NT} lds")
    A(f"s_add_u32 s{S_T3}, s{S_T3}, {16*3584}")
if CFG["mwin"]:
    A(f"s_waitcnt vmcnt({CFG['mwin']})")
A(f"s_add_u32 s{S_T2}, s{S_T2}, 1")
A(f"s_cmp_lt_u32 s{S_T2}, 8")
A("s_cbranch_scc1 L_gld4")
A("s_branch L_gld5")
L("L_gld3")
srd(SRD_C, P_W2, 1792 * 1024)
A("v_lshl_add_u32 v14, v9, 10, v11")
A("v_xor_b32 v15, 32, v14")
A(f"s_lshl_b32 s{S_T3}, s{S_SUB}, 15")
if CFG["touch2"]:
    A(f"s_load_dword s64, s[{P_W2}:{P_W2+1}], s{S_T3}")
    A(f"s_load_dword s65, s[{P_B1}:{P_B1+1}], 0")
A("s_barrier")
A(f"s_mov_b32 s{S_T1}, {L_W2}")
A(f"s_mov_b32 s{S_T2}, 0")
L("L_gld6")
for be in range(8):
    A(f"s_mov_b32 m0, s{S_T1}")
    A(f"s_add_u32 s{S_T1}, s{S_T1}, 1024")
    A(f"s_add_u32 s{S_T4}, s{S_T3}, {be*4096}")
    A(f"buffer_load_dwordx4 v{14 + (be & 1)}, {SC_}, s{S_T4} offen{NT} lds")
    if CFG["mwin"] and be % 4 == 3:
        A(f"s_waitcnt vmcnt({CFG['mwin']})")
A(f"s_add_u32 s{S_T3}, s{S_T3}, 256")
A(f"s_add_u32 s{S_T2}, s{S_T2}, 1")
A(f"s_cmp_lt_u32 s{S_T2}, 4")
A("s_cbranch_scc1 L_gld6")
L("L_gld5")
A("s_waitcnt vmcnt(0)")
stamp(4)
A("s_barrier")
A("s_branch L_exit")

begin("qc")
C("---- q projection: wave 6 loads and computes everything")
A("v_mov_b32 v16, 0")
A("v_mov_b32 v17, 0")
A(f"ds_write_b64 v16, v[16:17] offset:{L_TAG}")
A(f"ds_write_b32 v16, v16 offset:{L_FL2}")
post_entry()
srd(SRD_A, P_X, 2048)
A(f"buffer_load_dwordx4 v[16:19], v2, {SA}, 0 offen")
A(f"buffer_load_dwordx4 v[20:23], v2, {SA}, 0 offen offset:1024")
if CFG["touch"]:
    A(f"s_lshl_b32 s{S_T1}, s{S_X}, 4")
    A(f"s_add_u32 s{S_T1}, s{S_T1}, s{S_A}")
    A(f"s_lshl_b32 s{S_T1}, s{S_T1}, 9")
    A(f"s_add_u32 s{S_T1}, s{S_T1}, {WS_XQA}")
    A("s_mov_b32 exec_hi, 0")
    A(f"buffer_load_dwordx4 v[72:75], v2, {WS}, s{S_T1} offen sc1")
    A("s_mov_b32 exec_hi, -1")
if CFG["qrep"]:
    C("pull my lines of the q replicas into L2: lane=(r,b)")
    A("v_lshrrev_b32 v76, 1, v0")
    A("v_lshlrev_b32 v76, 15, v76")
    A("v_lshl_add_u32 v76, v10, 11, v76")
    A(f"s_lshl_b32 s{S_T1}, s{S_X}, 12")
    A(f"s_lshl_b32 s{S_T2}, s{S_A}, 7")
    A(f"s_add_u32 s{S_T1}, s{S_T1}, s{S_T2}")
    A(f"s_add_u32 s{S_T1}, s{S_T1}, {WS_QR}")
    A(f"s_mov_b64 exec, {(1 << (2*CFG['qrep'])) - 1:#x}")
    A(f"buffer_load_dword v77, v76, {WS}, s{S_T1} offen")
    A("s_mov_b64 exec, -1")
srd(SRD_B, P_WQ, 0x400000)
A("v_bfe_u32 v13, v0, 1, 3")
A("v_lshlrev_b32 v13, 13, v13")
A("v_lshl_add_u32 v13, v4, 5, v13")
A("v_lshl_add_u32 v13, v10, 4, v13")
A(f"s_and_b32 s{S_B}, s{S_A}, 1")
A(f"s_lshl_b32 s{S_T0}, s{S_B}, 21")
A(f"s_lshl_b32 s{S_T1}, s{S_X}, 10")
A(f"s_add_u32 s{S_T0}, s{S_T0}, s{S_T1}")
A(f"s_lshr_b32 s{S_T1}, s{S_A}, 1")
A(f"s_lshl_b32 s{S_T1}, s{S_T1}, 7")
A(f"s_add_u32 s{S_T0}, s{S_T0}, s{S_T1}")
A(f"s_mov_b32 s{S_T1}, {L_WQ}")
L("L_qc1")
for i in range(4):
    A(f"s_mov_b32 m0, s{S_T1}")
    A(f"s_add_u32 s{S_T1}, s{S_T1}, 1024")
    A(f"buffer_load_dwordx4 v13, {SB}, s{S_T0} offen{NT} lds")
    A(f"s_add_u32 s{S_T0}, s{S_T0}, 0x10000")
A(f"s_cmp_lt_u32 s{S_T1}, {L_WQ + 32768}")
A("s_cbranch_scc1 L_qc1")
if CFG["wpre"]:
    A("v_mov_b32 v24, 0")
    A("v_mov_b32 v25, 1")
    A(f"ds_write_b32 v24, v25 offset:{L_FL2}")
stamp(10)
L("L_dry")
gv_common()
A("v_lshrrev_b32 v12, 2, v0")
A("v_lshlrev_b32 v12, 6, v12")
A("v_lshl_add_u32 v12, v10, 5, v12")
A("v_bfe_u32 v13, v0, 1, 1")
A("v_lshl_add_u32 v12, v13, 3, v12")
A("v_lshlrev_b32 v13, 10, v10")
A("v_lshl_add_u32 v13, v4, 4, v13")
A(f"s_lshl_b32 s{S_T1}, s{S_B}, 9")
A(f"v_add_u32 v13, s{S_T1}, v13")
A("v_lshrrev_b32 v14, 5, v0")
A("v_lshlrev_b32 v14, 10, v14")
A("v_and_b32 v15, 31, v0")
A("v_lshl_add_u32 v14, v15, 3, v14")
C("exchange lane map: n=l&15<8: b=n&1, half2=(n>>1)&1, cs=(n>>2)&1 ; XQ off = cs*256 + b*128 + g*32 + half2*16")
A("v_bfe_u32 v70, v0, 2, 1")
A("v_lshlrev_b32 v69, 6, v70")
A("v_lshl_add_u32 v69, v4, 4, v69")
A("v_lshl_add_u32 v69, v10, 11, v69")
A("v_lshlrev_b32 v70, 8, v70")
A("v_lshl_add_u32 v70, v10, 7, v70")
A("v_lshl_add_u32 v70, v4, 5, v70")
A("v_bfe_u32 v15, v0, 1, 1")
A("v_lshl_add_u32 v70, v15, 4, v70")
A(f"s_lshl_b32 s{S_T5}, s{S_X}, 12")
A(f"s_lshl_b32 s{S_T1}, s{S_A}, 7")
A(f"s_add_u32 s{S_T5}, s{S_T5}, s{S_T1}")
A(f"s_lshl_b32 s{S_T1}, s{S_X}, 4")
A(f"s_add_u32 s{S_T1}, s{S_T1}, s{S_A}")
A(f"s_lshl_b32 s62, s{S_T1}, 9")
A(f"s_xor_b32 s63, s62, 512")
A(f"s_add_u32 s64, s62, {WS_XQB}")
A(f"s_add_u32 s62, s62, {WS_XQA}")
A(f"s_add_u32 s65, s63, {WS_XQB}")
A(f"s_add_u32 s63, s63, {WS_XQA}")
A("s_mov_b32 s66, 0xcccccccc")
A("s_mov_b32 s67, 0xcccccccc")
A("s_mov_b32 s68, 0xf0f0f0f0")
A("s_mov_b32 s69, 0xf0f0f0f0")
stamp(11)
A(f"s_waitcnt vmcnt({32 + CFG['touch'] + (1 if CFG['qrep'] else 0)})")
stamp(12)
unpack(24, 16, 4)
unpack(32, 20, 4)
layernorm([24, 32], 2, 44, [16, 20])
A(f"ds_write_b64 v12, v[16:17] offset:{L_XN}")
A(f"ds_write_b64 v12, v[18:19] offset:{L_XN + 16}")
A(f"ds_write_b64 v12, v[20:21] offset:{L_XN + 1024}")
A(f"ds_write_b64 v12, v[22:23] offset:{L_XN + 1024 + 16}")
A("s_waitcnt lgkmcnt(0)")
XA = 96
for kp in range(8):
    A(f"ds_read_b128 v[{XA+4*kp}:{XA+4*kp+3}], v13 offset:{L_XN + kp*64}")
stamp(1)
A("v_mov_b32 v16, 0")
WF = 24
QD = 144
for kp in range(8):
    if kp == 7:
        C("launch tag from wave 7 (it rewrites the slot until echoed)")
        A("s_cbranch_execz L_dry1")
        lds_wait(L_TAG + 4, 17, 18)
        L("L_dry1")
        A(f"ds_read_b64 v[58:59], v16 offset:{L_TAG}")
        A(f"ds_read_b64 v[62:63], v16 offset:{L_TAG}")
        A("s_waitcnt lgkmcnt(0)")
        A(f"ds_write_b32 v16, v58 offset:{L_TAG + 8}")
    A(f"s_waitcnt vmcnt({28 - 4*kp})")
    if kp == 7:
        stamp(2)
        pass
    for ct in range(4):
        for h in range(2):
            r = WF + ((kp & 1) * 4 + ct) * 4 + 2 * h
            A(f"ds_read_b64_tr_b16 v[{r}:{r+1}], v14 offset:{L_WQ + kp*4096 + h*2048 + ct*256}")
    for ct in range(4):
        A(f"s_waitcnt lgkmcnt({6 - 2*ct})")
        mfma(QD + 4 * ct, WF + ((kp & 1) * 4 + ct) * 4, XA + 4 * kp, None if kp == 0 else QD + 4 * ct)
C("select: lo half cts (0,1) -> v[24:25], hi half cts (2,3) -> v[26:27]")
nop(5)
for hf in range(2):
    a, b = QD + 8 * hf, QD + 8 * hf + 4
    for j in range(2):
        A(f"v_cndmask_b32 v{28+j}, v{a+j}, v{a+2+j}, s[66:67]")
        A(f"v_cndmask_b32 v{30+j}, v{b+j}, v{b+2+j}, s[66:67]")
    for j in range(2):
        A(f"v_cndmask_b32 v{24+2*hf+j}, v{28+j}, v{30+j}, s[68:69]")
A("s_cbranch_execz L_dry2")
A(f"s_cmp_eq_u32 s{S_B}, 0")
A(f"s_cselect_b64 vcc, -1, 0")
set_exec(0x00ff00ff00ff00ff)
A("v_cndmask_b32 v56, v24, v26, vcc")
A("v_cndmask_b32 v57, v25, v27, vcc")
A("v_cndmask_b32 v60, v26, v24, vcc")
A("v_cndmask_b32 v61, v27, v25, vcc")
A(f"buffer_store_dwordx4 v[56:59], v70, {WS}, s{63 if CFG['dual'] else 65} offen{'' if CFG['dual'] else ' sc1'}")
stamp(6)
lx, lxe, lxs = newlbl("Lx"), newlbl("Lxe"), newlbl("Lxs")
A(f"s_mov_b32 s{S_TO}, {CFG['timeout']}")
L(lx)
if CFG["dual"]:
    A(f"s_cmp_lg_u32 s{S_TO}, {CFG['timeout'] - 4}")
    A(f"s_cbranch_scc1 {lxs}")
    C("partner not seen through L2 yet: also send the coherent copy")
    A(f"buffer_store_dwordx4 v[56:59], v70, {WS}, s65 offen sc1")
    L(lxs)
A(f"s_and_b32 s{S_T0}, s{S_TO}, 7")
A(f"s_cmp_eq_u32 s{S_T0}, 1")
A(f"s_cselect_b32 s{S_T1}, s64, s{62 if CFG['dual'] else 64}")
A(f"buffer_load_dwordx4 v[24:27], v70, {WS}, s{S_T1} offen sc1")
A(f"s_sub_u32 s{S_TO}, s{S_TO}, 1")
A(f"s_cbranch_scc1 {lxe}")
A("s_waitcnt vmcnt(0)")
A("v_cmp_ne_u64 vcc, v[26:27], v[58:59]")
A("s_cmp_lg_u64 vcc, 0")
A(f"s_cbranch_scc1 {lx}")
L(lxe)
A("s_waitcnt vmcnt(0)")
A("v_pk_add_f32 v[60:61], v[60:61], v[24:25]")
A("v_cvt_pk_bf16_f32 v60, v60, v61")
nop(2)
A("v_mov_b32_dpp v61, v60 quad_perm:[2,3,0,1] row_mask:0xf bank_mask:0xf")
set_exec(0x0033003300330033)
for r in range(CFG["qrep"]):
    A(f"s_add_u32 s{S_T1}, s{S_T5}, {WS_QR + r*32768}")
    A(f"buffer_store_dwordx4 v[60:63], v69, {WS}, s{S_T1} offen")
A(f"buffer_store_dwordx4 v[60:63], v69, {WS}, s{S_T5} offen sc1")
if CFG["dual"]:
    C("always leave a coherent copy for the partner")
    set_exec(0x00ff00ff00ff00ff)
    A(f"buffer_store_dwordx4 v[56:59], v70, {WS}, s65 offen sc1")
A("s_mov_b64 exec, -1")
stamp(3)
A("s_branch L_qm1")
begin("qm2")
L("L_qm1")
A(f"s_cmp_eq_u32 s{S_ROLE}, 0")
A("s_cbranch_scc1 L_exit")
A("s_barrier")
A(f"v_mov_b32 v{V_T}, 0")
A(f"ds_read_b64 v[{TT+2}:{TT+3}], v{V_T} offset:{L_TAG}")
A(f"ds_read_b128 v[{V_TG}:{V_TG+3}], v{V_T} offset:{L_TAG + 16}")
A(f"s_cmp_eq_u32 s{S_ROLE}, 2")
A("s_cbranch_scc1 L_F")

C("==== E: wo projection, 8 waves: head=w&3, col half=w>>2; wave gathers records 2w,2w+1")
V_WX = 16
A(f"s_lshl_b32 s{S_T1}, s{S_X}, 4")
A(f"s_lshl_b32 s{S_T2}, s{S_WAVE}, 1")
A(f"s_add_u32 s{S_T1}, s{S_T1}, s{S_T2}")
A(f"s_mul_i32 s{S_T1}, s{S_T1}, {RECP}")
A(f"s_add_u32 s{S_PNA}, s{S_T1}, {WS_PNA if CFG['dual'] else WS_PNB}")
A(f"s_add_u32 s{S_PNB}, s{S_T1}, {WS_PNB}")
EA0, EA1, EA2, EA3, EA4, EA5 = V_T + 36, V_T + 37, V_T + 38, V_T + 39, V_T + 2, V_T + 3
C("stats gather addr: lane<8: (l>>2)*RECP + (l&3)*16 (+1024)")
A(f"v_lshrrev_b32 v{EA0}, 2, v0")
A(f"s_movk_i32 s{S_T2}, {RECP}")
A(f"v_mul_lo_u32 v{EA0}, v{EA0}, s{S_T2}")
A(f"v_and_b32 v{EA1}, 3, v0")
A(f"v_lshl_add_u32 v{EA0}, v{EA1}, 4, v{EA0}")
A(f"s_mul_i32 s{S_T2}, s{S_WAVE}, {2*PNP}")
A(f"s_add_u32 s{S_T2}, s{S_T2}, {L_PS}")
A(f"v_add_u32 v{EA1}, s{S_T2}, v2")
A(f"s_lshl_b32 s{S_T2}, s{S_WAVE}, 7")
A(f"v_add_u32 v{EA2}, s{S_T2}, v2")
A(f"s_and_b32 s{S_T4}, s{S_WAVE}, 3")
A(f"s_lshr_b32 s{S_T5}, s{S_WAVE}, 2")
A(f"s_movk_i32 s{S_T2}, {PNP}")
A(f"v_mul_lo_u32 v{EA3}, v6, s{S_T2}")
A(f"v_lshl_add_u32 v{EA3}, v4, 4, v{EA3}")
A(f"s_lshl_b32 s{S_T2}, s{S_T4}, 6")
A(f"s_add_u32 s{S_T2}, s{S_T2}, {L_PS}")
A(f"v_add_u32 v{EA3}, s{S_T2}, v{EA3}")
A(f"v_lshlrev_b32 v{EA4}, 6, v6")
A(f"s_lshl_b32 s{S_T2}, s{S_T4}, 4")
A(f"v_add_u32 v{EA4}, s{S_T2}, v{EA4}")
A(f"s_lshl_b32 s{S_T2}, s{S_T4}, 9")
A(f"s_lshl_b32 s{S_T3}, s{S_T5}, 8")
A(f"s_add_u32 s{S_T2}, s{S_T2}, s{S_T3}")
A(f"v_lshl_add_u32 v{EA5}, v0, 2, s{S_T2}")
C("weights tr-read addr: WO + hd*16384 + ch*512 + (l>>5)*1024 + (l&31)*8")
A(f"v_lshrrev_b32 v{TT}, 5, v0")
A(f"v_lshlrev_b32 v{TT}, 10, v{TT}")
A(f"v_and_b32 v{TT+1}, 31, v0")
A(f"v_lshl_add_u32 v{TT}, v{TT+1}, 3, v{TT}")
A(f"s_lshl_b32 s{S_T2}, s{S_T4}, 14")
A(f"s_lshl_b32 s{S_T3}, s{S_T5}, 9")
A(f"s_add_u32 s{S_T2}, s{S_T2}, s{S_T3}")
A(f"s_add_u32 s{S_T2}, s{S_T2}, {L_WO}")
A(f"v_add_u32 v{TT}, s{S_T2}, v{TT}")
A(f"v_mul_u32_u24 v{V_T+32}, 80, v4")
C("final-stage addresses (wave 0, lanes<32): RED read / AP write")
A(f"v_bfe_u32 v{V_T+33}, v0, 3, 1")
A(f"v_lshlrev_b32 v{V_T+33}, 8, v{V_T+33}")
A(f"v_lshl_add_u32 v{V_T+33}, v4, 7, v{V_T+33}")
A(f"v_and_b32 v{V_T+34}, 7, v0")
A(f"v_lshl_add_u32 v{V_T+33}, v{V_T+34}, 4, v{V_T+33}")
A(f"v_lshlrev_b32 v{V_T+34}, 11, v4")
A(f"v_lshl_add_u32 v{V_T+34}, v6, 4, v{V_T+34}")
A(f"s_lshl_b32 s{S_NT}, s{S_X}, 12")
A(f"s_lshl_b32 s{S_T1}, s{S_SUB}, 8")
A(f"s_add_u32 s{S_NT}, s{S_NT}, s{S_T1}")
A(f"s_add_u32 s{S_NT}, s{S_NT}, {WS_AP}")
if CFG["dry3"]:
    A("s_waitcnt lgkmcnt(0)")
    A("s_mov_b64 exec, 0")
    A("s_branch L_edry")
L("L_eret")
A("s_waitcnt vmcnt(0) lgkmcnt(0)")
A("s_barrier")
stamp(4)
L("L_edry")
C("DRY{")
for kp in range(4):
    for c in range(2):
        for h in range(2):
            r = V_WX + (kp * 2 + c) * 4 + 2 * h
            A(f"ds_read_b64_tr_b16 v[{r}:{r+1}], v{TT} offset:{kp*4096 + h*2048 + c*256}")
SG = V_G + 8
le, lee = newlbl("Le"), newlbl("Lee")
A(f"s_mov_b32 s{S_TO}, {CFG['timeout']}")
L(le)
A(f"s_and_b32 s{S_T0}, s{S_TO}, {CFG['bmask']}")
A(f"s_cmp_eq_u32 s{S_T0}, 1")
A(f"s_cselect_b32 s{S_T1}, s{S_PNB}, s{S_PNA}")
A(f"v_mov_b32 v{SG+2}, v{TT+2}")
A(f"v_mov_b32 v{SG+3}, v{TT+3}")
A("s_mov_b64 exec, 0xff")
A(f"buffer_load_dwordx4 v[{SG}:{SG+3}], v{EA0}, {WS}, s{S_T1} offen offset:1024 sc1")
A("s_mov_b64 exec, -1")
for i in range(2):
    r = V_G + i * 4
    A(f"buffer_load_dwordx4 v[{r}:{r+3}], v2, {WS}, s{S_T1} offen offset:{i*RECP} sc1")
A(f"s_sub_u32 s{S_TO}, s{S_TO}, 1")
A(f"s_cbranch_scc1 {lee}")
A("s_waitcnt vmcnt(0)")
tree3("v_max3_u32", "v_max_u32", range(V_G, V_G + 8), TT)
A(f"v_cmp_eq_u32 vcc, -1, v{TT}")
A(f"v_cmp_ne_u64 s[{S_T2}:{S_T3}], v[{SG+2}:{SG+3}], v[{TT+2}:{TT+3}]")
A(f"s_or_b64 vcc, vcc, s[{S_T2}:{S_T3}]")
A(f"s_cbranch_scc1 {le}")
L(lee)
A("s_waitcnt vmcnt(0)")
stamp(7)
for i in range(2):
    r = V_G + i * 4
    A(f"ds_write_b128 v{EA1}, v[{r}:{r+3}] offset:{i*PNP}")
A("s_mov_b64 exec, 0xff")
A(f"ds_write_b128 v{EA2}, v[{SG}:{SG+3}] offset:{L_STS}")
A("s_mov_b64 exec, -1")
A("s_waitcnt lgkmcnt(0)")
A("s_barrier")
SM0 = V_T + 4
MG = V_T + 8
FW = V_T + 24
A(f"ds_read_b64 v[{SM0}:{SM0+1}], v{EA4} offset:{L_STS}")
for kp in range(4):
    r = V_G + kp * 4
    A(f"ds_read_b128 v[{r}:{r+3}], v{EA3} offset:{kp*256}")
EA = V_S
A("s_waitcnt lgkmcnt(4)")
A(f"v_mov_b32 v{MG}, v{SM0}")
R8 = ROW_ALL[:3]
fill = []
for c in R8:
    fill.append(["s_nop 0", f"v_max_f32_dpp v{MG}, v{MG}, v{MG} {c} row_mask:0xf bank_mask:0xf"])
fill.append([f"v_sub_f32 v{SM0}, v{SM0}, v{MG}", f"v_exp_f32 v{SM0}, v{SM0}", "s_nop 0", f"v_mul_f32 v{MG}, v{SM0}, v{SM0+1}"])
for c in R8:
    fill.append(["s_nop 0", f"v_add_f32_dpp v{MG}, v{MG}, v{MG} {c} row_mask:0xf bank_mask:0xf"])
fill.append([f"v_rcp_f32 v{MG}, v{MG}", "s_nop 0", f"v_mul_f32 v{SM0}, v{SM0}, v{MG}"])
fi = 0
for kp in range(4):
    A(f"s_waitcnt lgkmcnt({3-kp})")
    for c in range(2):
        d = EA + c * 4
        mfma(d, V_G + kp * 4, V_WX + (kp * 2 + c) * 4, None if kp == 0 else d)
        for ins in fill[fi]:
            A(ins)
        fi += 1
assert fi == len(fill)
for r in range(4):
    A(f"ds_bpermute_b32 v{FW+r}, v{V_T+32}, v{SM0} offset:{4*r}")
A("s_waitcnt lgkmcnt(0)")
for c in range(2):
    d = EA + 4 * c
    A(f"v_mul_f32 v{d}, v{d}, v{FW}")
    A(f"v_mul_f32 v{d+2}, v{d+2}, v{FW+2}")
    A(f"v_fmac_f32 v{d}, v{d+1}, v{FW+1}")
    A(f"v_fmac_f32 v{d+2}, v{d+3}, v{FW+3}")
for c in range(2):
    d = EA + 4 * c
    A(f"v_add_f32 v{d}, v{d}, v{d+2}")
nop(2)
A(f"v_permlane16_swap_b32 v{EA}, v{EA+4}")
A(f"v_add_f32 v{EA}, v{EA}, v{EA+4}")
A(f"ds_write_b32 v{EA5}, v{EA} offset:{L_RED}")
A("s_waitcnt lgkmcnt(0)")
A("s_barrier")
A(f"s_cmp_lg_u32 s{S_WAVE}, 0")
A("s_cbranch_scc1 L_exit")
A("s_mov_b32 exec_hi, 0")
for i in range(4):
    A(f"ds_read_b128 v[{V_G+4*i}:{V_G+4*i+3}], v{V_T+33} offset:{L_RED + i*512}")
A("s_waitcnt lgkmcnt(0)")
for j in (0, 2):
    A(f"v_pk_add_f32 v[{V_G+j}:{V_G+j+1}], v[{V_G+j}:{V_G+j+1}], v[{V_G+4+j}:{V_G+5+j}]")
    A(f"v_pk_add_f32 v[{V_G+8+j}:{V_G+9+j}], v[{V_G+8+j}:{V_G+9+j}], v[{V_G+12+j}:{V_G+13+j}]")
for j in (0, 2):
    A(f"v_pk_add_f32 v[{V_G+j}:{V_G+j+1}], v[{V_G+j}:{V_G+j+1}], v[{V_G+8+j}:{V_G+9+j}]")
tag(V_G, V_TG)
A(f"buffer_store_dwordx4 v[{V_G}:{V_G+3}], v{V_T+34}, {WS}, s{S_NT} offen sc1")
stamp(8)
A("s_branch L_exit")

C("}DRY")
L("L_F")
C("==== F: MLP. 8 waves gather (b=w>>2, 128-col quarter q=w&3); waves 0..3 also do w1/gelu/w2")
V_W2 = 128
FG = 48
HX = 64
C("x[b][128q + 4(l&31)..] ; b1[mi*32 + (l&31)]")
srd(SRD_A, P_X, 2048)
A("v_and_b32 v12, 31, v0")
A("v_lshlrev_b32 v13, 3, v12")
A(f"s_lshl_b32 s{S_T0}, s{S_WAVE}, 8")
A(f"buffer_load_dwordx2 v[{V_SM}:{V_SM+1}], v13, {SA}, s{S_T0} offen")
srd(SRD_C, P_B1, 3584)
A("v_lshlrev_b32 v13, 1, v12")
A(f"s_lshl_b32 s{S_T0}, s{S_SUB}, 6")
A(f"buffer_load_ushort v{V_SM+2}, v13, {SC_}, s{S_T0} offen")
C("gather addr: (l>>5)*4096 + (l&31)*16 ; soffset = AP + w*512 + i*8192")
GAD, HA, STW, STR = V_T, V_T + 1, V_T + 2, V_T + 3
A(f"v_lshrrev_b32 v{GAD}, 5, v0")
A(f"v_lshlrev_b32 v{GAD}, 12, v{GAD}")
A(f"v_lshl_add_u32 v{GAD}, v12, 4, v{GAD}")
A(f"s_lshl_b32 s{S_T0}, s{S_WAVE}, 9")
A(f"s_add_u32 s{S_T0}, s{S_T0}, {WS_AP}")
SX = 62
for i in range(4):
    A(f"s_add_u32 s{SX+i}, s{S_T0}, {i*8192}")
C("hn write addr (cols 4j.., j=l&31): w*256 + (j>>3)*64 + (j&3)*16 + ((j>>2)&1)*8")
A(f"v_lshrrev_b32 v{HA}, 3, v12")
A(f"v_lshlrev_b32 v{HA}, 6, v{HA}")
A("v_and_b32 v13, 3, v0")
A(f"v_lshl_add_u32 v{HA}, v13, 4, v{HA}")
A("v_bfe_u32 v13, v0, 2, 1")
A(f"v_lshl_add_u32 v{HA}, v13, 3, v{HA}")
A(f"s_lshl_b32 s{S_T0}, s{S_WAVE}, 8")
A(f"v_add_u32 v{HA}, s{S_T0}, v{HA}")
C("LN stats exchange: STS + w*8 ; read STS + b*32 (sentinel initialised)")
A(f"s_lshl_b32 s{S_T0}, s{S_WAVE}, 3")
A(f"v_mov_b32 v{STW}, s{S_T0}")
A(f"s_lshr_b32 s{S_T0}, s{S_WAVE}, 2")
A(f"s_lshl_b32 s{S_T0}, s{S_T0}, 5")
A(f"v_mov_b32 v{STR}, s{S_T0}")
A("v_mov_b32 v14, -1")
A("v_mov_b32 v15, -1")
A(f"ds_write_b64 v{STW}, v[14:15] offset:{L_STS}")
C("compute-wave addresses")
vw2_addr()
A(f"s_lshl_b32 s{S_T0}, s{S_WAVE}, 13")
A(f"s_add_u32 s{S_T1}, s{S_T0}, {L_W2}")
A(f"v_add_u32 v{VB0}, s{S_T1}, v{VA0}")
A(f"v_add_u32 v{VB1}, s{S_T1}, v{VA1}")
A(f"s_add_u32 s{S_T1}, s{S_T0}, {L_WX}")
A(f"v_lshl_add_u32 v{TT}, v0, 3, s{S_T1}")
A0, A1, A2, YAD = V_T + 36, V_T + 37, V_T + 38, V_T + 39
A(f"v_lshlrev_b32 v{A0}, 10, v10")
A(f"v_lshl_add_u32 v{A0}, v4, 4, v{A0}")
A(f"s_lshl_b32 s{S_T0}, s{S_WAVE}, 8")
A(f"v_add_u32 v{A0}, s{S_T0}, v{A0}")
A(f"v_lshlrev_b32 v{A1}, 7, v6")
A(f"v_lshl_add_u32 v{A1}, v4, 4, v{A1}")
A(f"v_add_u32 v{A1}, s{S_T0}, v{A1}")
C("h1 write addr: lane (b=l>>5, c=l&31): H1 + w*128 + b*64 + ((c>>2)&3)*16 + (c>>4)*8 + (c&3)*2")
A(f"v_lshrrev_b32 v{A2}, 5, v0")
A(f"v_lshlrev_b32 v{A2}, 6, v{A2}")
A("v_bfe_u32 v13, v0, 2, 2")
A(f"v_lshl_add_u32 v{A2}, v13, 4, v{A2}")
A("v_bfe_u32 v13, v0, 4, 1")
A(f"v_lshl_add_u32 v{A2}, v13, 3, v{A2}")
A("v_and_b32 v13, 3, v0")
A(f"v_lshl_add_u32 v{A2}, v13, 1, v{A2}")
A(f"s_lshl_b32 s{S_T1}, s{S_WAVE}, 7")
A(f"s_add_u32 s{S_T1}, s{S_T1}, {L_H1}")
A(f"v_add_u32 v{A2}, s{S_T1}, v{A2}")
C("B_ct operand addresses: (n>>1)==ct ? H1 + w*128 + (n&1)*64 + g*16 : ZERO")
BA = V_T + 24
A("v_lshlrev_b32 v13, 6, v10")
A("v_lshl_add_u32 v13, v4, 4, v13")
A(f"v_add_u32 v13, s{S_T1}, v13")
A(f"v_mov_b32 v14, {L_ZERO}")
A("v_bfe_u32 v15, v0, 1, 3")
for ct in range(8):
    A(f"v_cmp_eq_u32 vcc, {ct}, v15")
    A("s_nop 1")
    A(f"v_cndmask_b32 v{BA+ct}, v14, v13, vcc")
for j in range(4):
    A(f"v_mov_b32 v{16+j}, 0")
A(f"ds_write_b128 v14, v[16:19]")
C("Y store addr: (n&1)*2048 + (n>>1)*64 + g*16 ; soff = Y + mi*YP + w*512")
A(f"v_lshlrev_b32 v{YAD}, 11, v10")
A(f"v_lshl_add_u32 v{YAD}, v15, 6, v{YAD}")
A(f"v_lshl_add_u32 v{YAD}, v4, 4, v{YAD}")
S_Y = 70
A(f"s_mul_i32 s{S_Y}, s{S_SUB}, {YP}")
A(f"s_lshl_b32 s{S_T1}, s{S_WAVE}, 9")
A(f"s_add_u32 s{S_Y}, s{S_Y}, s{S_T1}")
A(f"s_add_u32 s{S_Y}, s{S_Y}, {WS_Y}")
A("v_lshlrev_b32 v3, 2, v0")
if CFG["dry3"]:
    A("s_waitcnt lgkmcnt(0)")
    A("s_mov_b64 exec, 0")
    A("s_branch L_fdry")
L("L_fret")
A("s_waitcnt vmcnt(0) lgkmcnt(0)")
unpack(HX, V_SM, 2)
A(f"v_lshlrev_b32 v{V_SM+2}, 16, v{V_SM+2}")
A("s_barrier")
stamp(4)
L("L_fdry")
C("DRY{")
A(f"s_cmp_ge_u32 s{S_WAVE}, 4")
A("s_cbranch_scc1 L_F1")
for kp in range(4):
    for ct in range(2):
        for h in range(2):
            r = V_WX + (kp * 2 + ct) * 4 + 2 * h
            A(f"ds_read_b64_tr_b16 v[{r}:{r+1}], v{TT} offset:{kp*2048 + h*1024 + ct*512}")
A("s_waitcnt lgkmcnt(0)")
for ct in range(8):
    for h in range(2):
        r = V_W2 + ct * 4 + 2 * h
        A(f"ds_read_b64_tr_b16 v[{r}:{r+1}], v{VB0 + (ct & 1)} offset:{(ct >> 1)*256 + h*4096}")
L("L_F1")


def f_loads():
    for i in range(4):
        r = FG + i * 4
        A(f"buffer_load_dwordx4 v[{r}:{r+3}], v{GAD}, {WS}, s{SX+i} offen sc1")


tpoll(f_loads, range(FG, FG + 16), TT, V_TG, CFG['fsl'])
stamp(7)
for j in (0, 2):
    A(f"v_pk_add_f32 v[{FG+j}:{FG+j+1}], v[{FG+j}:{FG+j+1}], v[{FG+4+j}:{FG+5+j}]")
    A(f"v_pk_add_f32 v[{FG+8+j}:{FG+9+j}], v[{FG+8+j}:{FG+9+j}], v[{FG+12+j}:{FG+13+j}]")
for j in (0, 2):
    A(f"v_pk_add_f32 v[{FG+j}:{FG+j+1}], v[{FG+j}:{FG+j+1}], v[{FG+8+j}:{FG+9+j}]")
swap_steps("v_add_f32", [FG + j for j in range(4)], [FG + 4 + j for j in range(4)], which=(32,))
HP = FG + 8
pack(HP, FG, 2)
unpack(FG, HP, 2)
for j in range(4):
    A(f"v_add_f32 v{HX+j}, v{HX+j}, v{FG+j}")
pack(HP, HX, 2)
unpack(HX, HP, 2)
C("local stats around pivot c = h[first]")
A("s_nop 0")
A(f"v_readfirstlane_b32 s{S_T2}, v{HX}")
A("s_nop 1")
for j in range(4):
    A(f"v_subrev_f32 v{FG+j}, s{S_T2}, v{HX+j}")
SS, SQ = FG + 10, FG + 11
A(f"v_add_f32 v{SS}, v{FG}, v{FG+1}")
A(f"v_mul_f32 v{SQ}, v{FG}, v{FG}")
A(f"v_add_f32 v{FG+4}, v{FG+2}, v{FG+3}")
A(f"v_fmac_f32 v{SQ}, v{FG+1}, v{FG+1}")
A(f"v_add_f32 v{SS}, v{SS}, v{FG+4}")
A(f"v_fmac_f32 v{SQ}, v{FG+2}, v{FG+2}")
A(f"v_fmac_f32 v{SQ}, v{FG+3}, v{FG+3}")
nop(1)
dpp_steps("v_add_f32", [SS, SQ], ROW_ALL)
swap_steps("v_add_f32", [SS, SQ], [FG + 4, FG + 5], which=(16,))
C("mean_w = c + s/128 ; M2_w = ss - s*s/128")
A(f"v_mul_f32 v{FG+4}, {f2u(1.0/128):#x}, v{SS}")
A(f"v_fma_f32 v{SQ}, -v{FG+4}, v{SS}, v{SQ}")
A(f"v_add_f32 v{SS}, s{S_T2}, v{FG+4}")
A("s_mov_b64 exec, 1")
A(f"ds_write_b64 v{STW}, v[{SS}:{SQ}] offset:{L_STS}")
A("s_mov_b64 exec, -1")
l3, l3e = newlbl("Lst"), newlbl("Lste")
A(f"s_mov_b32 s{S_TO}, {CFG['timeout']}")
L(l3)
A(f"ds_read_b128 v[{FG}:{FG+3}], v{STR} offset:{L_STS}")
A(f"ds_read_b128 v[{FG+4}:{FG+7}], v{STR} offset:{L_STS + 16}")
A(f"s_sub_u32 s{S_TO}, s{S_TO}, 1")
A(f"s_cbranch_scc1 {l3e}")
A("s_waitcnt lgkmcnt(0)")
tree3("v_max3_u32", "v_max_u32", range(FG, FG + 8), TT)
A(f"v_cmp_eq_u32 vcc, -1, v{TT}")
A("s_cmp_lg_u64 vcc, 0")
A(f"s_cbranch_scc1 {l3}")
L(l3e)
A("s_waitcnt lgkmcnt(0)")
MEAN, VAR, TM = FG + 8, FG + 9, FG + 10
A(f"v_add_f32 v{MEAN}, v{FG}, v{FG+2}")
A(f"v_add_f32 v{TM}, v{FG+4}, v{FG+6}")
A(f"v_add_f32 v{VAR}, v{FG+1}, v{FG+3}")
A(f"v_add_f32 v{MEAN}, v{MEAN}, v{TM}")
A(f"v_add_f32 v{TM}, v{FG+5}, v{FG+7}")
A(f"v_mul_f32 v{MEAN}, 0.25, v{MEAN}" if False else f"v_mul_f32 v{MEAN}, {f2u(0.25):#x}, v{MEAN}")
A(f"v_add_f32 v{VAR}, v{VAR}, v{TM}")
for j in range(4):
    A(f"v_sub_f32 v{FG+2*j}, v{FG+2*j}, v{MEAN}")
A(f"v_mul_f32 v{TM}, v{FG}, v{FG}")
for j in range(1, 4):
    A(f"v_fmac_f32 v{TM}, v{FG+2*j}, v{FG+2*j}")
A(f"v_mul_f32 v{VAR}, {f2u(1.0/512):#x}, v{VAR}")
A(f"v_fmac_f32 v{VAR}, {f2u(0.25):#x}, v{TM}")
bf16r(MEAN, MEAN)
bf16r(VAR, VAR)
for j in range(4):
    A(f"v_sub_f32 v{FG+j}, v{HX+j}, v{MEAN}")
A(f"v_add_f32 v{VAR}, {f2u(1e-5):#x}, v{VAR}")
pack(HP + 4, FG, 2)
bf16r(VAR, VAR)
unpack(FG, HP + 4, 2)
A(f"v_sqrt_f32 v{VAR}, v{VAR}")
nop(1)
bf16r(VAR, VAR)
A(f"v_rcp_f32 v{VAR}, v{VAR}")
nop(1)
for j in range(4):
    A(f"v_mul_f32 v{FG+j}, v{FG+j}, v{VAR}")
pack(HP + 4, FG, 2)
A("s_mov_b32 exec_hi, 0")
A(f"ds_write_b64 v{HA}, v[{HP+4}:{HP+5}] offset:{L_HN}")
A("s_mov_b32 exec_hi, -1")
c0 = math.sqrt(2.0 / math.pi)
k0 = -2.0 * c0 * LOG2E
k1 = k0 * 0.044715
A(f"s_mov_b32 s{S_T1}, {f2u(k1):#x}")
A(f"v_mov_b32 v{TT}, {f2u(k0):#x}")
A("s_waitcnt lgkmcnt(0)")
A("s_barrier")
stamp(8)
A(f"s_cmp_ge_u32 s{S_WAVE}, 4")
A("s_cbranch_scc1 L_exit")
for kp in range(4):
    A(f"ds_read_b128 v[{V_Q+4*kp}:{V_Q+4*kp+3}], v{A0} offset:{L_HN + kp*64}")
for kp in range(4):
    A(f"s_waitcnt lgkmcnt({3-kp})")
    for ct in range(2):
        mfma(V_S + 4 * ct, V_WX + (kp * 2 + ct) * 4, V_Q + 4 * kp, None if kp == 0 else V_S + 4 * ct)
nop(6)
set_exec(MASK_N2)
A(f"ds_write_b128 v{A1}, v[{V_S}:{V_S+3}] offset:{L_RED}")
A(f"ds_write_b128 v{A1}, v[{V_S+4}:{V_S+7}] offset:{L_RED + 64}")
A("s_mov_b64 exec, -1")
A("s_waitcnt lgkmcnt(0)")
A("s_barrier")
U = 16
for wp in range(4):
    A(f"ds_read_b32 v{U+wp}, v3 offset:{L_RED + wp*256}")
A("s_waitcnt lgkmcnt(0)")
A(f"v_add_f32 v{U}, v{U}, v{U+1}")
A(f"v_add_f32 v{U+2}, v{U+2}, v{U+3}")
A(f"v_add_f32 v{U}, v{U}, v{U+2}")
bf16r(U, U)
A(f"v_add_f32 v{U}, v{U}, v{V_SM+2}")
bf16r(U, U)
A(f"v_mul_f32 v{U+1}, v{U}, v{U}")
A(f"v_fma_f32 v{U+1}, v{U+1}, s{S_T1}, v{TT}")
A(f"v_mul_f32 v{U+1}, v{U+1}, v{U}")
A(f"v_exp_f32 v{U+1}, v{U+1}")
nop(1)
A(f"v_add_f32 v{U+1}, 1.0, v{U+1}")
A(f"v_rcp_f32 v{U+1}, v{U+1}")
nop(1)
A(f"v_mul_f32 v{U}, v{U}, v{U+1}")
A(f"v_cvt_pk_bf16_f32 v{U}, v{U}, v{U}")
A(f"ds_write_b16 v{A2}, v{U}")
BO = 32
for ct in range(8):
    A(f"ds_read_b128 v[{BO+4*ct}:{BO+4*ct+3}], v{BA+ct}")
YA = 24
for ct in range(8):
    A(f"s_waitcnt lgkmcnt({7-ct})")
    mfma(YA, V_W2 + 4 * ct, BO + 4 * ct, None if ct == 0 else YA)
nop(8)
tag(YA, V_TG)
A(f"buffer_store_dwordx4 v[{YA}:{YA+3}], v{YAD}, {WS}, s{S_Y} offen sc1")
stamp(9)
A("s_branch L_exit")
C("}DRY")
if CFG["dry2"]:
    for r, ret in ((1, "L_kret"), (2, "L_eret"), (3, "L_fret")):
        L(f"L_exit_{r}")
        A("s_cbranch_execnz L_exit")
        A("s_mov_b64 exec, -1")
        A(f"s_branch {ret}")
L("L_exit")
stamp_flush()
L("L_end")
A("s_endpgm")

out.append(f""".section .rodata,"a"
.p2align 6
.amdhsa_kernel {NAME}_kernel
  .amdhsa_next_free_vgpr 168
  .amdhsa_next_free_sgpr 102
  .amdhsa_accum_offset 168
  .amdhsa_group_segment_fixed_size 0
  .amdhsa_kernarg_size 104
  .amdhsa_user_sgpr_count 2
  .amdhsa_user_sgpr_kernarg_segment_ptr 1
  .amdhsa_system_sgpr_workgroup_id_x 1
.end_amdhsa_kernel""")

order = CFG_ORDER
lines = [l for b in order for l in BLK[b]]


def dry_pass(lines):
    res, indry, k = [], False, 0
    i = 0

    def is_mem(t):
        return t.startswith(("buffer_", "global_", "s_load", "s_atomic", "s_barrier"))

    def exec_write(t):
        return t.startswith(("s_mov_b64 exec", "s_mov_b32 exec", "s_and_b64 exec"))

    def restores(t):
        return t in ("s_mov_b64 exec, -1", "s_mov_b32 exec_hi, -1")
    open_span, masked, nd = None, False, False
    for l in lines:
        t = l.strip()
        if t == "; DRY{":
            indry = True
            i += 1
            continue
        if t == "; }DRY":
            assert open_span is None or True
            if open_span:
                res.append(open_span + ":")
                open_span = None
            masked = False
            indry = False
            continue
        if not (indry and CFG["dry2"]):
            if t not in ("; ND{", "; }ND"):
                res.append(l)
            continue
        if t == "; ND{":
            nd = True
            if not open_span:
                k += 1
                open_span = f"L_sk{k}"
                res.append(f"    s_cbranch_execz {open_span}")
            continue
        if t == "; }ND":
            nd = False
            continue
        unsafe = nd or masked or is_mem(t) or exec_write(t)
        if masked and t == "s_branch L_exit":
            unsafe = False
            masked = False
        if t.endswith(" L_exit"):
            l = l + f"_{i}"
        if unsafe:
            if not open_span:
                k += 1
                open_span = f"L_sk{k}"
                res.append(f"    s_cbranch_execz {open_span}")
            res.append(l)
            if exec_write(t):
                masked = not restores(t)
        else:
            if open_span:
                res.append(open_span + ":")
                open_span = None
            res.append(l)
    return res


print("\n".join(dry_pass(lines)))
```

```python
import sys, struct, math

NAME = "sequential_preLN__sliding_block_cached__dense_activation_gelu__decode"

CFG = dict(nt=1, timeout=1 << 18, stamps=0, dual=1, tsleep0=10, tsleep=3, tsleepa=24, qsleep=0, mwin=4, touch=1, bmask=15, fsl=0, g1sl=0, g2sl=0, pf=0, pfw=16, touch2=1, kb0=6, kthm=0, kthn=8, dry=1, dry2=1, dry3=1, korder=0, ktouch=0, tl2=6, qrep=16, qsl=2, wpre=0)
for a in sys.argv[1:]:
    if "=" in a:
        k, v = a.split("=")
        CFG[k] = int(v)
NT = " nt" if CFG["nt"] else ""

WS_Q = 0x00000
RECP = 1152
WS_PNA = 0x10000
WS_PNB = 0x50000
WS_XQA = 0x90000
WS_XQB = 0x80000
WS_AP = 0xA8000
WS_Y = 0xB0000
YP = 4096 + 128
WS_TS = 0xF0000
WS_QR = 0x140000
WS_SIZE = 0x200000

L_QL = 0
L_XN = 0
L_SC = 2048
L_QR = 2048
L_HN = 4096
L_RED = 6144
L_STS = 8192
L_QS = 9216
L_H1 = 9216
L_ZERO = 9728
L_MX = 10240
L_LS = 10368
L_FLAG = 10496
L_TAG = 10512
L_FL2 = 10544
L_DUM = 10560
BIG = 11264
L_K = BIG
L_V = BIG + 65536
L_WQ = BIG
L_WO = BIG + 32768
L_WX = BIG + 32768
L_W2 = BIG + 65536
L_PS = BIG + 98304
PNP = 1040
LDS_BYTES = BIG + 131072

LOG2E = 1.4426950408889634
SCALE = 128 ** -0.5


def f2u(f):
    return struct.unpack("<I", struct.pack("<f", f))[0]


out = []


def A(s):
    out.append("    " + s)


def L(s):
    out.append(s + ":")


def C(s):
    out.append("    ; " + s)


def nop(n):
    while n > 0:
        k = min(n, 16)
        A(f"s_nop {k-1}")
        n -= k


_lbl = [0]


def newlbl(p="L"):
    _lbl[0] += 1
    return f"{p}_{_lbl[0]}"


P_X, P_K, P_V, P_WQ, P_WO, P_BX, P_W1, P_B1, P_W2, P_B2, P_OUT, P_DBG, P_WS = [36 + 2 * i for i in range(13)]
S_WAVE, S_X, S_A, S_B, S_SPL = 3, 4, 5, 6, 7
SRD_WS, SRD_A, SRD_B, SRD_C = 8, 12, 16, 20
S_T0, S_T1, S_T2, S_T3, S_T4, S_T5 = 24, 25, 26, 27, 28, 29
S_TO, S_ROLE, S_SUB, S_NT, S_PNA, S_PNB = 30, 31, 32, 33, 34, 35
S_Q = 36
S_TG = 100
WS = f"s[{SRD_WS}:{SRD_WS+3}]"
SA = f"s[{SRD_A}:{SRD_A+3}]"
SB = f"s[{SRD_B}:{SRD_B+3}]"
SC_ = f"s[{SRD_C}:{SRD_C+3}]"
V_ST = 1
S_DRY = 7
CFG_ORDER = ["head", "qc", "ldr", "gv", "att", "qm2"]
V_MSK = 5


def srd(d, p, size):
    A(f"s_mov_b32 s{d}, s{p}")
    A(f"s_mov_b32 s{d+1}, s{p+1}")
    A(f"s_mov_b32 s{d+2}, {size:#x}")
    A(f"s_mov_b32 s{d+3}, 0x00020000")


GVMODE = [False, False]


def stamp(slot):
    if (not GVMODE[0]) and CFG.get("probe3", -1) == slot and GVMODE[1]:
        l = newlbl("Lpr")
        A(f"s_cmp_lg_u32 s{S_WAVE}, {CFG.get('pw3', 0)}")
        A(f"s_cbranch_scc1 {l}")
        A("s_memrealtime s[0:1]")
        A("s_waitcnt lgkmcnt(0)")
        A(f"s_atomic_umax s0, s[{SRD_A}:{SRD_A+1}], 36")
        L(l)
    if GVMODE[0] and CFG.get("probe4", -1) == slot:
        l = newlbl("Lpr")
        C("ND{")
        A(f"s_cmp_lg_u32 s{S_WAVE}, {CFG['pw']}")
        A(f"s_cbranch_scc1 {l}")
        A(f"s_cmp_lg_u32 s{S_ROLE}, {CFG['prole4']}")
        A(f"s_cbranch_scc1 {l}")
        A("s_memrealtime s[0:1]")
        A("s_waitcnt lgkmcnt(0)")
        A(f"s_atomic_umax s0, s[{P_DBG}:{P_DBG+1}], 36")
        L(l)
        C("}ND")
    if GVMODE[0] and CFG.get("probe2", -1) == slot:
        l = newlbl("Lpr")
        C("ND{")
        A(f"s_cmp_lg_u32 s{S_WAVE}, {CFG['pw']}")
        A(f"s_cbranch_scc1 {l}")
        A(f"s_cmp_lg_u32 s{S_ROLE}, {CFG['prole']}")
        A(f"s_cbranch_scc1 {l}")
        A("s_memrealtime s[0:1]")
        A("s_waitcnt lgkmcnt(0)")
        A(f"s_atomic_umax s0, s[{P_DBG}:{P_DBG+1}], 32")
        L(l)
        C("}ND")
    if CFG.get("probe", -1) == slot:
        A("s_memrealtime s[0:1]")
        A("s_waitcnt lgkmcnt(0)")
        A("s_mov_b32 s7, s0")
    if CFG["stamps"]:
        A("s_memrealtime s[0:1]")
        A("s_waitcnt lgkmcnt(0)")
        A(f"v_writelane_b32 v{V_ST}, s0, {slot}")


def stamp_flush():
    if not CFG["stamps"]:
        return
    if CFG["stamps"] == 2:
        A("s_mov_b64 exec, -1")
        A(f"v_mov_b32 v2, {L_TAG}")
        A("ds_read_b32 v3, v2")
        A("s_waitcnt lgkmcnt(0)")
        A(f"v_sub_u32 v3, v{V_ST}, v3")
        A("v_max_i32 v3, 0, v3")
        A("v_lshlrev_b32 v2, 2, v0")
        A("v_add_co_u32 v166, vcc, v166, v2")
        A("v_addc_co_u32 v167, vcc, 0, v167, vcc")
        A(f"v_cmp_ne_u32 vcc, 0, v{V_ST}")
        A("s_bitcmp1_b32 vcc_lo, 11")
        A("s_cbranch_scc0 L_end")
        A("s_and_b64 exec, vcc, 0x1fff")
        A("s_cbranch_execz L_end")
        A("global_atomic_umax v[166:167], v3, off offset:8")
        return
    A("s_mov_b64 exec, -1")
    A("s_lshl_b32 s0, s2, 10")
    A(f"s_lshl_b32 s1, s{S_WAVE}, 6")
    A("s_add_u32 s0, s0, s1")
    A(f"s_add_u32 s0, s0, {WS_TS}")
    A("v_lshlrev_b32 v2, 2, v0")
    A("s_mov_b64 exec, 0xffff")
    A(f"buffer_store_dword v{V_ST}, v2, {WS}, s0 offen")


def dpp_steps(op, regs, ctrls):
    for c in ctrls:
        pad = max(0, 2 - (len(regs) - 1))
        if pad:
            nop(pad)
        for r in regs:
            A(f"{op}_dpp v{r}, v{r}, v{r} {c} row_mask:0xf bank_mask:0xf")


ROW_ALL = ["quad_perm:[1,0,3,2]", "quad_perm:[2,3,0,1]", "row_half_mirror", "row_mirror"]
ROW_HI = ["row_ror:4", "row_ror:8"]


def swap_steps(op, regs, tmps, which=(16, 32)):
    for wd in which:
        sw = f"v_permlane{wd}_swap_b32"
        for r, t in zip(regs, tmps):
            A(f"v_mov_b32 v{t}, v{r}")
        pad = max(0, 2 - (len(regs) - 1))
        if pad:
            nop(pad)
        for r, t in zip(regs, tmps):
            A(f"{sw} v{r}, v{t}")
        for r, t in zip(regs, tmps):
            A(f"{op} v{r}, v{r}, v{t}")


def allreduce(op, regs, tmps):
    nop(2)
    dpp_steps(op, regs, ROW_ALL)
    swap_steps(op, regs, tmps)


def lds_wait(flag_off, vt, va, sleep=0):
    l, e = newlbl("Lw"), newlbl("Lwe")
    A(f"v_mov_b32 v{va}, {flag_off}")
    A(f"s_mov_b32 s{S_TO}, {CFG['timeout']}")
    L(l)
    if sleep:
        A(f"s_sleep {sleep}")
    A(f"ds_read_b32 v{vt}, v{va}")
    A(f"s_sub_u32 s{S_TO}, s{S_TO}, 1")
    A(f"s_cbranch_scc1 {e}")
    A("s_waitcnt lgkmcnt(0)")
    A(f"v_readfirstlane_b32 s{S_T0}, v{vt}")
    A(f"s_cmp_eq_u32 s{S_T0}, 0")
    A(f"s_cbranch_scc1 {l}")
    L(e)
    A("s_waitcnt lgkmcnt(0)")


def lds_set(flag_off, vt, va):
    A("s_waitcnt lgkmcnt(0)")
    A(f"v_mov_b32 v{va}, {flag_off}")
    A(f"v_mov_b32 v{vt}, 1")
    A(f"ds_write_b32 v{va}, v{vt}")


def lds_sync(cnt_off, n, vt, va):
    l, e = newlbl("Ls"), newlbl("Lse")
    A(f"v_mov_b32 v{va}, {cnt_off}")
    A(f"v_mov_b32 v{vt}, 1")
    A("s_mov_b64 exec, 1")
    A(f"ds_add_u32 v{va}, v{vt}")
    A("s_mov_b64 exec, -1")
    A(f"s_mov_b32 s{S_TO}, {CFG['timeout']}")
    L(l)
    A(f"ds_read_b32 v{vt}, v{va}")
    A(f"s_sub_u32 s{S_TO}, s{S_TO}, 1")
    A(f"s_cbranch_scc1 {e}")
    A("s_waitcnt lgkmcnt(0)")
    A(f"v_readfirstlane_b32 s{S_T0}, v{vt}")
    A(f"s_cmp_lt_u32 s{S_T0}, {n}")
    A(f"s_cbranch_scc1 {l}")
    L(e)
    A("s_waitcnt lgkmcnt(0)")


def tree3(op3, op2, regs, t):
    regs = list(regs)
    A(f"{op3} v{t}, v{regs[0]}, v{regs[1]}, v{regs[2]}")
    i = 3
    while i + 1 < len(regs):
        A(f"{op3} v{t}, v{t}, v{regs[i]}, v{regs[i+1]}")
        i += 2
    if i < len(regs):
        A(f"{op2} v{t}, v{t}, v{regs[i]}")


def tag(quad, tg):
    for j in range(4):
        A(f"v_add_u32 v{quad+j}, 0x200, v{quad+j}")
    for j in range(4):
        A(f"v_bfi_b32 v{quad+j}, v{V_MSK}, v{tg+j}, v{quad+j}")


def tpoll(loads, regs, t, tg, sleep=0):
    l, e = newlbl("Lt"), newlbl("Lte")
    regs = list(regs)
    A(f"s_mov_b32 s{S_TO}, {CFG['timeout']}")
    L(l)
    if sleep:
        A(f"s_sleep {sleep}")
    loads()
    A(f"s_sub_u32 s{S_TO}, s{S_TO}, 1")
    A(f"s_cbranch_scc1 {e}")
    A("s_waitcnt vmcnt(0)")
    for i, r in enumerate(regs):
        A(f"v_xor_b32 v{r}, v{r}, v{tg + (i & 3)}")
    tree3("v_or3_b32", "v_or_b32", regs, t)
    A(f"v_and_b32 v{t}, v{V_MSK}, v{t}")
    A(f"v_cmp_ne_u32 vcc, 0, v{t}")
    A("s_cmp_lg_u64 vcc, 0")
    A(f"s_cbranch_scc1 {l}")
    L(e)
    A("s_waitcnt vmcnt(0)")


def tpoll2(loads, nld, bases, nreg, t, tg, consume):
    l, eA, eB, done = newlbl("Lu"), newlbl("LuA"), newlbl("LuB"), newlbl("Lud")

    def check(base, target):
        A(f"s_waitcnt vmcnt({nld})")
        regs = list(range(base, base + nreg))
        for i, r in enumerate(regs):
            A(f"v_xor_b32 v{r}, v{r}, v{tg + (i & 3)}")
        tree3("v_or3_b32", "v_or_b32", regs, t)
        A(f"v_and_b32 v{t}, v{V_MSK}, v{t}")
        A(f"v_cmp_ne_u32 vcc, 0, v{t}")
        A("s_cmp_eq_u64 vcc, 0")
        A(f"s_cbranch_scc1 {target}")
    A(f"s_mov_b32 s{S_TO}, {CFG['timeout']}")
    loads(bases[0])
    L(l)
    loads(bases[1])
    check(bases[0], eA)
    loads(bases[0])
    check(bases[1], eB)
    A(f"s_sub_u32 s{S_TO}, s{S_TO}, 1")
    A(f"s_cbranch_scc0 {l}")
    A("s_waitcnt vmcnt(0)")
    L(eA)
    consume(bases[0])
    A(f"s_branch {done}")
    L(eB)
    consume(bases[1])
    L(done)


def bf16r(dst, src):
    A(f"v_cvt_pk_bf16_f32 v{dst}, v{src}, v{src}")
    A(f"v_lshlrev_b32 v{dst}, 16, v{dst}")


def unpack(dst, src, n):
    for i in range(n):
        A(f"v_lshlrev_b32 v{dst+2*i}, 16, v{src+i}")
        A(f"v_and_b32 v{dst+2*i+1}, 0xffff0000, v{src+i}")


def pack(dst, src, n):
    for i in range(n):
        A(f"v_cvt_pk_bf16_f32 v{dst+i}, v{src+2*i}, v{src+2*i+1}")


def layernorm(xs, nb, tmp, outp):
    s = [tmp + i for i in range(nb)]
    q = [tmp + nb + i for i in range(nb)]
    t = [tmp + 2 * nb + i for i in range(nb)]
    mb = [tmp + 3 * nb + i for i in range(nb)]
    d = [tmp + 4 * nb + 8 * i for i in range(nb)]
    for i in range(nb):
        x = xs[i]
        A(f"v_add_f32 v{s[i]}, v{x}, v{x+1}")
        A(f"v_add_f32 v{t[i]}, v{x+2}, v{x+3}")
        A(f"v_add_f32 v{q[i]}, v{x+4}, v{x+5}")
        A(f"v_add_f32 v{mb[i]}, v{x+6}, v{x+7}")
        A(f"v_add_f32 v{s[i]}, v{s[i]}, v{t[i]}")
        A(f"v_add_f32 v{q[i]}, v{q[i]}, v{mb[i]}")
        A(f"v_add_f32 v{s[i]}, v{s[i]}, v{q[i]}")
    allreduce("v_add_f32", s, t)
    for i in range(nb):
        A(f"v_mul_f32 v{s[i]}, {f2u(1.0/512):#x}, v{s[i]}")
    for i in range(nb):
        x = xs[i]
        for j in range(8):
            A(f"v_sub_f32 v{d[i]+j}, v{x+j}, v{s[i]}")
        A(f"v_mul_f32 v{q[i]}, v{d[i]}, v{d[i]}")
        for j in range(1, 8):
            A(f"v_fmac_f32 v{q[i]}, v{d[i]+j}, v{d[i]+j}")
        bf16r(mb[i], s[i])
    nop(2)
    dpp_steps("v_add_f32", q, ROW_ALL)
    for i in range(nb):
        x = xs[i]
        for j in range(8):
            A(f"v_sub_f32 v{d[i]+j}, v{x+j}, v{mb[i]}")
        pack(outp[i], d[i], 4)
        unpack(d[i], outp[i], 4)
    swap_steps("v_add_f32", q, t)
    for i in range(nb):
        A(f"v_mul_f32 v{q[i]}, {f2u(1.0/512):#x}, v{q[i]}")
        bf16r(q[i], q[i])
        A(f"v_add_f32 v{q[i]}, {f2u(1e-5):#x}, v{q[i]}")
        bf16r(q[i], q[i])
        A(f"v_sqrt_f32 v{q[i]}, v{q[i]}")
        nop(1)
        bf16r(q[i], q[i])
        A(f"v_rcp_f32 v{q[i]}, v{q[i]}")
    nop(1)
    for i in range(nb):
        for j in range(8):
            A(f"v_mul_f32 v{d[i]+j}, v{d[i]+j}, v{q[i]}")
        pack(outp[i], d[i], 4)


def mfma(d, a, b, c=None):
    cc = f"v[{c}:{c+3}]" if c is not None else "0"
    A(f"v_mfma_f32_16x16x32_bf16 v[{d}:{d+3}], v[{a}:{a+3}], v[{b}:{b+3}], {cc}")


MASK_N2 = 0x0003000300030003
MASK_N4 = 0x000f000f000f000f


def set_exec(mask):
    A(f"s_mov_b32 exec_lo, {mask & 0xffffffff:#x}")
    A(f"s_mov_b32 exec_hi, {mask >> 32:#x}")


def tag_poll(sleep0, sel, barrier=False):
    lt, lte = newlbl(), newlbl()
    A(f"s_and_b32 s{S_T1}, s{sel}, 3")
    A(f"s_lshl_b32 s{S_T1}, s{S_T1}, 6")
    A(f"s_mov_b32 s{S_TO}, {CFG['timeout']}")
    if sleep0:
        A(f"s_sleep {sleep0}")
    if CFG["tl2"]:
        C("first attempts through the caches, one replica line each (a line is never re-read that way)")
        for r in range(4):
            A(f"s_load_dwordx2 s[{S_TG}:{S_TG+1}], s[{P_DBG}:{P_DBG+1}], {64*r}")
            A("s_waitcnt lgkmcnt(0)")
            A(f"s_cmp_lg_u32 s{S_TG+1}, 0")
            A(f"s_cbranch_scc1 {lte}")
            A(f"s_sleep {CFG['tl2']}")
    L(lt)
    A(f"s_load_dwordx2 s[{S_TG}:{S_TG+1}], s[{P_DBG}:{P_DBG+1}], s{S_T1} glc")
    A(f"s_sub_u32 s{S_TO}, s{S_TO}, 1")
    A(f"s_cbranch_scc1 {lte}")
    A("s_waitcnt lgkmcnt(0)")
    A(f"s_cmp_lg_u32 s{S_TG+1}, 0")
    A(f"s_cbranch_scc1 {lte}")
    A(f"s_sleep {CFG['tsleep']}")
    A(f"s_branch {lt}")
    L(lte)
    A("s_waitcnt lgkmcnt(0)")
    A(f"v_mov_b32 v100, s{S_TG}")
    A(f"v_mov_b32 v101, s{S_TG+1}")
    A("v_and_b32 v104, 0x3ff, v100")
    A("v_bfe_u32 v105, v100, 10, 10")
    A("v_bfe_u32 v106, v100, 20, 10")
    A("v_alignbit_b32 v107, v101, v100, 30")
    A("v_and_b32 v107, 0x3ff, v107")
    A(f"v_mov_b32 v102, {L_TAG}")
    if barrier == 1:
        A("s_barrier")
    A("ds_write_b64 v102, v[100:101]")
    A("ds_write_b128 v102, v[104:107] offset:16")
    if barrier == 2:
        A("s_waitcnt lgkmcnt(0)")
    else:
        lds_set(L_FLAG, 100, 101)


XNT = ' nt' if CFG.get('xnt', 0) else ''
out.append(f"""; fused pre-LN attention(decode, sliding window) + gelu MLP, persistent kernel
; @launch grid=(256,1,1) block=(640,1,1) lds={LDS_BYTES}
.amdgcn_target "amdgcn-amd-amdhsa--gfx950"
.text
.globl {NAME}_kernel
.p2align 8
.type {NAME}_kernel,@function
{NAME}_kernel:""")

BLK = {"head": out}


def begin(name):
    global out
    BLK[name] = []
    out = BLK[name]


def post_entry():
    A("s_waitcnt lgkmcnt(0)")
    srd(SRD_WS, P_WS, WS_SIZE)
    if CFG["stamps"] == 2:
        A(f"v_mov_b32 v166, s{P_DBG}")
        A(f"v_mov_b32 v167, s{P_DBG+1}")
    stamp(0)


def att_common():
    A(f"s_sub_u32 s{S_A}, s{S_A}, 16")
    A(f"s_lshr_b32 s{S_B}, s{S_A}, 3")
    A(f"s_lshl_b32 s{S_T0}, s{S_X}, 4")
    A(f"s_add_u32 s{S_T0}, s{S_T0}, s{S_A}")
    A(f"s_mul_i32 s{S_T0}, s{S_T0}, {RECP}")
    A(f"s_add_u32 s{S_PNA}, s{S_T0}, {WS_PNA}")
    A(f"s_add_u32 s{S_PNB}, s{S_T0}, {WS_PNB}")


def gv_common():
    A(f"s_mul_i32 s{S_SUB}, s{S_X}, 7")
    A(f"s_add_u32 s{S_SUB}, s{S_SUB}, s{S_A}")
    A(f"s_sub_u32 s{S_SUB}, s{S_SUB}, 8")
    A(f"s_mov_b32 s{S_ROLE}, 2")
    A(f"s_cmp_lt_u32 s{S_A}, 8")
    A(f"s_cselect_b32 s{S_ROLE}, 1, s{S_ROLE}")
    A(f"s_cselect_b32 s{S_SUB}, s{S_A}, s{S_SUB}")
    A(f"s_cmp_eq_u32 s{S_A}, 15")
    A(f"s_cselect_b32 s{S_ROLE}, 0, s{S_ROLE}")


def zero_flags():
    for j in range(4):
        A(f"v_mov_b32 v{12+j}, 0")
    A(f"v_mov_b32 v3, {L_FLAG}")
    A("ds_write_b128 v3, v[12:15]")
    A(f"ds_write_b128 v3, v[12:15] offset:{L_FL2 - L_FLAG}")


if CFG.get("probe", -1) == 15:
    A("s_memrealtime s[6:7]")
    A("s_waitcnt lgkmcnt(0)")
    A("s_mov_b32 s7, s6")
A("s_cmp_ge_u32 s2, 256")
A("s_cbranch_scc1 L_end")
A("s_load_dwordx16 s[36:51], s[0:1], 0")
A("s_load_dwordx8 s[52:59], s[0:1], 64")
A("s_load_dwordx2 s[60:61], s[0:1], 96")
A("v_lshrrev_b32 v1, 6, v0")
A("v_and_b32 v0, 63, v0")
A(f"s_and_b32 s{S_X}, s2, 7")
A(f"v_readfirstlane_b32 s{S_WAVE}, v1")
A(f"s_lshr_b32 s{S_A}, s2, 3")
if CFG["pf"]:
    C("early workgroups: waves 0..5 pull the kernel's code into L2 (striped)")
    A(f"s_cmp_ge_u32 s{S_WAVE}, 5")
    A("s_cbranch_scc1 L_pfe")
    A(f"s_cmp_ge_u32 s{S_A}, {CFG['pfw']}")
    A("s_cbranch_scc1 L_pfe")
    A("s_getpc_b64 s[24:25]")
    L("L_pcref")
    A(f"s_lshl_b32 s26, s{S_WAVE}, 7")
    L("L_pf")
    A("s_load_dword s27, s[24:25], s26")
    A("s_add_u32 s26, s26, 640")
    A("s_cmp_lt_u32 s26, L_end-L_pcref")
    A("s_cbranch_scc1 L_pf")
    L("L_pfe")
A("v_lshlrev_b32 v2, 4, v0")
A("v_lshrrev_b32 v4, 4, v0")
A(f"v_mov_b32 v{V_MSK}, 0x3ff")
A("v_and_b32 v6, 15, v0")
A("v_lshrrev_b32 v8, 3, v0")
A("v_bfe_u32 v9, v0, 1, 2")
A("v_and_b32 v10, 1, v0")
A("v_lshlrev_b32 v11, 5, v8")
A("v_lshl_add_u32 v11, v10, 4, v11")
if CFG["stamps"]:
    A(f"v_mov_b32 v{V_ST}, 0")
C("dispatch before waiting for the kernel arguments")
A(f"s_lshr_b32 s{S_T0}, s{S_A}, 4")
A(f"s_lshl_b32 s{S_T0}, s{S_T0}, 4")
A(f"s_or_b32 s{S_T0}, s{S_T0}, s{S_WAVE}")
A(f"s_cmp_ge_u32 s{S_T0}, 24")
A("s_cbranch_scc1 L_ldr")
A(f"s_cmp_ge_u32 s{S_T0}, 16")
A("s_cbranch_scc1 L_att")
if CFG["dry"]:
    A(f"s_cmp_lg_u32 s{S_T0}, 5")
    A("s_cbranch_scc1 L_nd")
    C("wave 5 walks the q wave's register/LDS code with EXEC=0 to warm the instruction cache")
    A("s_mov_b64 exec, 0")
    A("s_branch L_dry")
    L("L_nd")
A(f"s_cmp_lg_u32 s{S_T0}, 6")
A("s_cbranch_scc1 L_GV")

V_K = 16
V_Q = 48
V_S = 64
V_SM = 72
V_PNA = 80
V_T = 84
V_TG = 124
V_G = 128

GVMODE[1] = True
begin("att")
L("L_att")
att_common()
post_entry()
srd(SRD_C, P_OUT, 2048)
srd(SRD_A, P_DBG, 256)
A(f"s_lshl_b32 s{S_T1}, s{S_WAVE}, 8")
A(f"s_add_u32 s{S_PNA}, s{S_PNA}, s{S_T1}")
A(f"s_add_u32 s{S_PNB}, s{S_PNB}, s{S_T1}")
A(f"v_lshlrev_b32 v{V_PNA}, 6, v6")
A(f"v_lshl_add_u32 v{V_PNA}, v4, 4, v{V_PNA}")
C("G role: even a -> gi = x*8 + a/2 (wave 0)")
A(f"s_lshl_b32 s{S_T0}, s{S_X}, 3")
A(f"s_lshr_b32 s{S_T1}, s{S_A}, 1")
A(f"s_add_u32 s{S_SUB}, s{S_T0}, s{S_T1}")
A(f"s_and_b32 s{S_ROLE}, s{S_A}, 1")
A(f"s_or_b32 s{S_ROLE}, s{S_ROLE}, s{S_WAVE}")
A(f"s_cmp_lg_u32 s{S_ROLE}, 0")
A("s_cbranch_scc1 L_nogsm")
srd(SRD_B, P_X, 2048)
A(f"v_and_b32 v{V_T}, 3, v0")
A(f"v_lshlrev_b32 v{V_T}, 3, v{V_T}")
A(f"s_lshl_b32 s{S_T0}, s{S_SUB}, 5")
A(f"buffer_load_dwordx2 v[{V_SM}:{V_SM+1}], v{V_T}, {SB}, s{S_T0} offen{XNT}")
if CFG["touch2"]:
    A(f"buffer_load_dwordx2 v[{V_SM+4}:{V_SM+5}], v{V_T}, {SC_}, s{S_T0} offen")
srd(SRD_B, P_B2, 1024)
A(f"s_and_b32 s{S_T0}, s{S_T0}, 1023")
A(f"buffer_load_dwordx2 v[{V_SM+2}:{V_SM+3}], v{V_T}, {SB}, s{S_T0} offen{XNT}")
L("L_nogsm")
C("pre-touch this wave's q lines so that they are resident at the memory side")
A(f"s_lshl_b32 s{S_T1}, s{S_X}, 12")
A(f"s_lshl_b32 s{S_T2}, s{S_B}, 11")
A(f"s_add_u32 s{S_T1}, s{S_T1}, s{S_T2}")
A(f"s_lshl_b32 s{S_T2}, s{S_WAVE}, 8")
A(f"s_add_u32 s{S_T1}, s{S_T1}, s{S_T2}")
A(f"s_add_u32 s{S_T2}, s{SRD_WS}, s{S_T1}")
A(f"s_addc_u32 s{S_T3}, s{SRD_WS+1}, 0")
if CFG["touch"]:
    for i in range(4):
        A(f"s_load_dword s{64+i}, s[{S_T2}:{S_T3}], {WS_Q + 64*i} glc")
C("K fragment addresses: K + w*8192 + m*256 + ((4k+g)^m)*16")
KA = V_T + 36
A(f"s_lshl_b32 s{S_T0}, s{S_WAVE}, 13")
A(f"s_add_u32 s{S_T0}, s{S_T0}, {L_K}")
for kp in range(4):
    A(f"v_add_u32 v{KA+kp}, {4*kp}, v4")
    A(f"v_xor_b32 v{KA+kp}, v{KA+kp}, v6")
    A(f"v_lshlrev_b32 v{KA+kp}, 4, v{KA+kp}")
    A(f"v_lshl_add_u32 v{KA+kp}, v6, 8, v{KA+kp}")
    A(f"v_add_u32 v{KA+kp}, s{S_T0}, v{KA+kp}")
A(f"s_cmp_lg_u32 s{S_WAVE}, 7")
A("s_cbranch_scc1 L_ntp")
tag_poll(CFG["tsleepa"], S_A, barrier=2)
L("L_ntp")
A("s_barrier")
A(f"v_mov_b32 v{V_T}, 0")
A(f"ds_read_b64 v[{V_T+2}:{V_T+3}], v{V_T} offset:{L_TAG}")
A(f"ds_read_b128 v[{V_TG}:{V_TG+3}], v{V_T} offset:{L_TAG + 16}")
A("s_waitcnt lgkmcnt(0)")
A(f"v_readfirstlane_b32 s{S_TG}, v{V_T+2}")
A(f"v_readfirstlane_b32 s{S_TG+1}, v{V_T+3}")
stamp(1)
S2 = V_T + 4
PK = V_T + 12
MM = V_T + 16
TT = V_T + 20
EX = V_T + 24
QA = V_T + 1
A(f"s_lshl_b32 s{S_T0}, s{S_WAVE}, 7")
A(f"v_lshl_add_u32 v{QA}, v0, 2, s{S_T0}")
A(f"v_and_b32 v{V_T+2}, 3, v0")
A(f"v_lshlrev_b32 v{V_T+3}, 8, v{V_T+2}")
A(f"v_lshl_add_u32 v{V_T+3}, v4, 4, v{V_T+3}")
A(f"s_lshl_b32 s{S_T0}, s{S_WAVE}, 2")
A(f"v_lshl_add_u32 v{TT+2}, v0, 5, s{S_T0}")
A(f"v_lshlrev_b32 v{TT+3}, 5, v{V_T+2}")
C("---- scalar gather of q: this wave's 256 bytes (16 granules {d0,d1,T0,T1})")
lq, lqe, lqk = newlbl("Lq"), newlbl("Lqe"), newlbl("Lqk")
stamp(12)


def k_frags():
    for kp in range(4):
        for tt in range(2):
            r = V_K + (tt * 4 + kp) * 4
            A(f"ds_read_b128 v[{r}:{r+3}], v{KA+kp} offset:{tt*4096}")


A(f"v_mov_b32 v{TT}, {L_FLAG + 4}")
A(f"s_mov_b32 s{S_NT}, 0")
A(f"s_mov_b32 s{S_TO}, {CFG['timeout']}")
if CFG["qrep"]:
    A(f"s_mov_b32 s7, {WS_QR}")
L(lq)
if CFG["qrep"]:
    A(f"s_cmp_ge_u32 s7, {WS_QR + CFG['qrep']*32768}")
    A(f"s_cbranch_scc1 {lq}_g")
    C("attempt through the caches: a replica is read only once")
    A(f"s_add_u32 s{S_T4}, s{S_T2}, s7")
    A(f"s_addc_u32 s{S_T5}, s{S_T3}, 0")
    A("s_add_u32 s7, s7, 32768")
    for i in range(4):
        A(f"s_load_dwordx16 s[{S_Q+16*i}:{S_Q+16*i+15}], s[{S_T4}:{S_T5}], {64*i}")
    if CFG["qsl"]:
        A(f"s_sleep {CFG['qsl']}")
    A(f"s_branch {lq}_h")
    L(f"{lq}_g")
for i in range(4):
    A(f"s_load_dwordx16 s[{S_Q+16*i}:{S_Q+16*i+15}], s[{S_T2}:{S_T3}], {WS_Q + 64*i} glc")
if CFG["qrep"]:
    L(f"{lq}_h")
A(f"ds_read_b32 v{TT+1}, v{TT}")
A(f"s_sub_u32 s{S_TO}, s{S_TO}, 1")
A(f"s_cbranch_scc1 {lqe}")
A("s_waitcnt lgkmcnt(0)")
A(f"v_readfirstlane_b32 s{S_T0}, v{TT+1}")
A(f"s_andn2_b32 s{S_T0}, s{S_T0}, s{S_NT}")
A(f"s_cbranch_scc0 {lqk}")
A(f"s_mov_b32 s{S_NT}, 1")
k_frags()
L(lqk)
A(f"s_and_b64 s[{S_T4}:{S_T5}], s[{S_Q+2}:{S_Q+3}], s[{S_Q+6}:{S_Q+7}]")
A(f"s_or_b64 s[{S_T0}:{S_T1}], s[{S_Q+2}:{S_Q+3}], s[{S_Q+6}:{S_Q+7}]")
for gq in range(2, 16):
    A(f"s_and_b64 s[{S_T4}:{S_T5}], s[{S_T4}:{S_T5}], s[{S_Q+4*gq+2}:{S_Q+4*gq+3}]")
    A(f"s_or_b64 s[{S_T0}:{S_T1}], s[{S_T0}:{S_T1}], s[{S_Q+4*gq+2}:{S_Q+4*gq+3}]")
A(f"s_xor_b64 s[{S_T4}:{S_T5}], s[{S_T4}:{S_T5}], s[{S_TG}:{S_TG+1}]")
A(f"s_xor_b64 s[{S_T0}:{S_T1}], s[{S_T0}:{S_T1}], s[{S_TG}:{S_TG+1}]")
A(f"s_or_b64 s[{S_T4}:{S_T5}], s[{S_T4}:{S_T5}], s[{S_T0}:{S_T1}]")
A(f"s_cbranch_scc1 {lq}")
L(lqe)
A("s_waitcnt lgkmcnt(0)")
stamp(8)
if CFG["stamps"] == 1:
    A(f"s_sub_u32 s0, {CFG['timeout']}, s{S_TO}")
    A(f"v_writelane_b32 v{V_ST}, s0, 9")
for gq in range(16):
    A(f"v_writelane_b32 v{V_T}, s{S_Q+4*gq}, {2*gq}")
    A(f"v_writelane_b32 v{V_T}, s{S_Q+4*gq+1}, {2*gq+1}")
A("s_mov_b32 exec_hi, 0")
A(f"ds_write_b32 v{QA}, v{V_T} offset:{L_QL}")
A("s_mov_b32 exec_hi, -1")
A(f"s_cmp_lg_u32 s{S_NT}, 0")
A("s_cbranch_scc1 L_kok")
lds_wait(L_FLAG + 4, V_T, TT, sleep=1)
k_frags()
L("L_kok")
C("poll the q operand itself (LDS sentinel)")
l1, l1e = newlbl("Lqo"), newlbl("Lqoe")
A(f"s_mov_b32 s{S_TO}, {CFG['timeout']}")
L(l1)
for kp in range(4):
    A(f"ds_read_b128 v[{V_Q+4*kp}:{V_Q+4*kp+3}], v{V_T+3} offset:{L_QL + kp*64}")
A(f"s_sub_u32 s{S_TO}, s{S_TO}, 1")
A(f"s_cbranch_scc1 {l1e}")
A("s_waitcnt lgkmcnt(0)")
tree3("v_max3_u32", "v_max_u32", range(V_Q, V_Q + 16), TT)
A(f"v_cmp_eq_u32 vcc, -1, v{TT}")
A("s_cmp_lg_u64 vcc, 0")
A(f"s_cbranch_scc1 {l1}")
L(l1e)
A("s_waitcnt lgkmcnt(0)")
for kp in range(4):
    for tt in range(2):
        mfma(V_S + 4 * tt, V_K + (tt * 4 + kp) * 4, V_Q + 4 * kp, None if kp == 0 else V_S + 4 * tt)
stamp(2)
A(f"v_mov_b32 v{EX}, {f2u(SCALE):#x}")
A(f"v_mov_b32 v{EX+1}, {f2u(SCALE):#x}")
A(f"s_mov_b32 s{S_T1}, {f2u(LOG2E):#x}")
nop(5)
pack(PK, V_S, 4)
unpack(S2, PK, 4)
for j in range(0, 8, 2):
    A(f"v_pk_mul_f32 v[{S2+j}:{S2+j+1}], v[{S2+j}:{S2+j+1}], v[{EX}:{EX+1}]")
pack(PK, S2, 4)
unpack(S2, PK, 4)
A(f"v_max3_f32 v{MM}, v{S2}, v{S2+1}, v{S2+2}")
A(f"v_max3_f32 v{MM}, v{MM}, v{S2+3}, v{S2+4}")
A(f"v_max3_f32 v{MM}, v{MM}, v{S2+5}, v{S2+6}")
A(f"v_max_f32 v{MM}, v{MM}, v{S2+7}")
swap_steps("v_max_f32", [MM], [TT])
A("s_mov_b64 exec, 15")
A(f"ds_write_b32 v{TT+2}, v{MM} offset:{L_MX}")
A("s_mov_b64 exec, -1")
for j in range(8):
    A(f"v_mul_f32 v{S2+j}, s{S_T1}, v{S2+j}")
l2, l2e = newlbl("Lmx"), newlbl("Lmxe")
A(f"s_mov_b32 s{S_TO}, {CFG['timeout']}")
L(l2)
A(f"ds_read_b128 v[{EX}:{EX+3}], v{TT+3} offset:{L_MX}")
A(f"ds_read_b128 v[{EX+4}:{EX+7}], v{TT+3} offset:{L_MX + 16}")
A(f"s_sub_u32 s{S_TO}, s{S_TO}, 1")
A(f"s_cbranch_scc1 {l2e}")
A("s_waitcnt lgkmcnt(0)")
tree3("v_max3_u32", "v_max_u32", range(EX, EX + 8), TT)
tree3("v_max3_f32", "v_max_f32", range(EX, EX + 8), MM)
A(f"v_cmp_eq_u32 vcc, -1, v{TT}")
A("s_cmp_lg_u64 vcc, 0")
A(f"s_cbranch_scc1 {l2}")
L(l2e)
A("s_waitcnt lgkmcnt(0)")
A(f"v_mul_f32 v{MM}, s{S_T1}, v{MM}")
for j in range(8):
    A(f"v_sub_f32 v{EX+j}, v{S2+j}, v{MM}")
for j in range(8):
    A(f"v_exp_f32 v{EX+j}, v{EX+j}")
A(f"s_lshl_b32 s{S_T0}, s{S_WAVE}, 10")
A(f"v_add_u32 v{TT}, s{S_T0}, v2")
pack(PK, EX, 4)
A(f"ds_write_b128 v{TT}, v[{PK}:{PK+3}] offset:{L_SC}")
A(f"v_add_f32 v{MM+1}, v{EX}, v{EX+1}")
A(f"v_add_f32 v{TT}, v{EX+2}, v{EX+3}")
A(f"v_add_f32 v{TT+1}, v{EX+4}, v{EX+5}")
A(f"v_add_f32 v{EX}, v{EX+6}, v{EX+7}")
A(f"v_add_f32 v{MM+1}, v{MM+1}, v{TT}")
A(f"v_add_f32 v{EX}, v{EX}, v{TT+1}")
A(f"v_add_f32 v{MM+1}, v{MM+1}, v{EX}")
swap_steps("v_add_f32", [MM + 1], [TT])
A("s_mov_b64 exec, 15")
A(f"ds_write_b32 v{TT+2}, v{MM+1} offset:{L_LS}")
A("s_mov_b64 exec, -1")
stamp(3)
VA0, VA1, VB0, VB1 = V_T + 32, V_T + 33, V_T + 34, V_T + 35


def vw2_addr():
    A(f"v_lshlrev_b32 v{VA0}, 10, v4")
    A(f"v_lshl_add_u32 v{VA0}, v6, 3, v{VA0}")
    A(f"v_and_b32 v{VA1}, 1, v4")
    A(f"v_lshl_add_u32 v{VA0}, v{VA1}, 7, v{VA0}")
    A(f"v_xor_b32 v{VA1}, 128, v{VA0}")


vw2_addr()
A(f"s_lshl_b32 s{S_T0}, s{S_WAVE}, 8")
A(f"s_add_u32 s{S_T0}, s{S_T0}, {L_V}")
A(f"v_add_u32 v{VB0}, s{S_T0}, v{VA0}")
A(f"v_add_u32 v{VB1}, s{S_T0}, v{VA1}")
A(f"s_cmp_gt_u32 s{S_WAVE}, 4")
A("s_cbranch_scc1 L_exit")
A(f"v_mov_b32 v{V_T+1}, {L_FLAG + 8}")
A(f"s_mov_b32 s{S_NT}, 0")


def wait_progress(n):
    l, ok = newlbl("Lvp"), newlbl("Lvo")
    A(f"s_cmp_ge_u32 s{S_NT}, {n}")
    A(f"s_cbranch_scc1 {ok}")
    A(f"s_mov_b32 s{S_TO}, {CFG['timeout']}")
    L(l)
    A(f"ds_read_b32 v{V_T}, v{V_T+1}")
    A(f"s_sub_u32 s{S_TO}, s{S_TO}, 1")
    A(f"s_cbranch_scc1 {ok}")
    A("s_waitcnt lgkmcnt(0)")
    A(f"v_readfirstlane_b32 s{S_NT}, v{V_T}")
    A(f"s_cmp_lt_u32 s{S_NT}, {n}")
    A(f"s_cbranch_scc1 {l}")
    L(ok)


A(f"s_cmp_lt_u32 s{S_WAVE}, 4")
A("s_cbranch_scc1 L_pv")
C("---- wave 4: publish stats {m,l,T0,T1} per head (lanes 0..3) once all l are in and the PN clears completed")
wait_progress(1)
A(f"v_mov_b32 v{MM+2}, s{S_TG}")
A(f"v_mov_b32 v{MM+3}, s{S_TG+1}")
l4, l4e = newlbl("Lls"), newlbl("Llse")
A(f"s_mov_b32 s{S_TO}, {CFG['timeout']}")
L(l4)
A(f"ds_read_b128 v[{EX}:{EX+3}], v{TT+3} offset:{L_LS}")
A(f"ds_read_b128 v[{EX+4}:{EX+7}], v{TT+3} offset:{L_LS + 16}")
A(f"s_sub_u32 s{S_TO}, s{S_TO}, 1")
A(f"s_cbranch_scc1 {l4e}")
A("s_waitcnt lgkmcnt(0)")
tree3("v_max3_u32", "v_max_u32", range(EX, EX + 8), TT)
A(f"v_cmp_eq_u32 vcc, -1, v{TT}")
A("s_cmp_lg_u64 vcc, 0")
A(f"s_cbranch_scc1 {l4}")
L(l4e)
A("s_waitcnt lgkmcnt(0)")
for j in range(4):
    A(f"v_add_f32 v{EX+j}, v{EX+j}, v{EX+4+j}")
A(f"v_add_f32 v{EX}, v{EX}, v{EX+1}")
A(f"v_add_f32 v{EX+2}, v{EX+2}, v{EX+3}")
A(f"v_add_f32 v{MM+1}, v{EX}, v{EX+2}")
A("s_mov_b64 exec, 15")
if CFG["dual"]:
    A(f"buffer_store_dwordx4 v[{MM}:{MM+3}], v2, {WS}, s{S_PNA} offen")
A(f"buffer_store_dwordx4 v[{MM}:{MM+3}], v2, {WS}, s{S_PNB} offen sc1")
A("s_branch L_exit")
L("L_pv")
C("---- PV (waves 0..3, 32 dims each): tiles are consumed as they land")
PB = V_G
VF = V_K
l5, l5e = newlbl("Lpp"), newlbl("Lppe")
A(f"s_mov_b32 s{S_TO}, {CFG['timeout']}")
L(l5)
for t in range(8):
    A(f"ds_read_b128 v[{PB+4*t}:{PB+4*t+3}], v2 offset:{L_SC + t*1024}")
A(f"ds_read_b32 v{V_T}, v{V_T+1}")
A(f"s_sub_u32 s{S_TO}, s{S_TO}, 1")
A(f"s_cbranch_scc1 {l5e}")
A("s_waitcnt lgkmcnt(0)")
tree3("v_max3_u32", "v_max_u32", [PB + 4 * t + j for t in range(8) for j in (0, 3)], TT)
A(f"v_readfirstlane_b32 s{S_NT}, v{V_T}")
A(f"v_cmp_eq_u32 vcc, -1, v{TT}")
A("s_cmp_lg_u64 vcc, 0")
A(f"s_cbranch_scc1 {l5}")
L(l5e)
A("s_waitcnt lgkmcnt(0)")
stamp(5)


def v_reads(t):
    for c2 in range(2):
        for h in range(2):
            r = VF + ((t % 6) * 2 + c2) * 4 + 2 * h
            A(f"ds_read_b64_tr_b16 v[{r}:{r+1}], v{VB0 + c2} offset:{t*8192 + h*4096}")


def v_mfma(t):
    for c2 in range(2):
        mfma(V_S + 4 * c2, VF + ((t % 6) * 2 + c2) * 4, PB + 4 * t, None if t == 0 else V_S + 4 * c2)


A(f"s_cmp_ge_u32 s{S_NT}, 8")
A("s_cbranch_scc1 L_pvf")
for t in range(8):
    wait_progress(t + 1)
    v_reads(t)
    if t >= 1:
        A("s_waitcnt lgkmcnt(4)")
        v_mfma(t - 1)
A("s_waitcnt lgkmcnt(0)")
v_mfma(7)
A("s_branch L_pve")
L("L_pvf")
for t in range(3):
    v_reads(t)
for t in range(8):
    A(f"s_waitcnt lgkmcnt({min(2, 7 - t)*4})")
    v_mfma(t)
    if t + 3 < 8:
        v_reads(t + 3)
L("L_pve")
nop(7)
pack(PK, V_S, 4)
set_exec(MASK_N4)
if CFG["dual"]:
    A(f"buffer_store_dwordx4 v[{PK}:{PK+3}], v{V_PNA}, {WS}, s{S_PNA} offen")
A(f"buffer_store_dwordx4 v[{PK}:{PK+3}], v{V_PNA}, {WS}, s{S_PNB} offen sc1")
A("s_mov_b64 exec, -1")
stamp(6)
A(f"s_cmp_lg_u32 s{S_ROLE}, 0")
A("s_cbranch_scc1 L_exit")

C("==== G: final reduce of 16 outputs (16gi..16gi+15)")
A(f"s_lshl_b32 s{S_T2}, s{S_SUB}, 6")
A(f"s_add_u32 s{S_T3}, s{S_T2}, {WS_AP}")
A(f"s_add_u32 s{S_T2}, s{S_T2}, {WS_Y}")
A(f"v_lshrrev_b32 v{TT+2}, 2, v0")
A(f"v_and_b32 v{TT+3}, 3, v0")
A(f"v_lshlrev_b32 v{TT}, 12, v{TT+2}")
A(f"v_lshl_add_u32 v{TT}, v{TT+3}, 4, v{TT}")
A(f"s_movk_i32 s{S_T0}, {YP}")
A(f"v_mul_lo_u32 v{TT+2}, v{TT+2}, s{S_T0}")
A(f"v_lshl_add_u32 v{TT+2}, v{TT+3}, 4, v{TT+2}")
for i in range(1, 4):
    A(f"s_add_u32 s{40+i}, s{S_T2}, {16*i*YP}")
GA = V_G
if CFG["dry2"]:
    C("walk the rest of this path once with EXEC=0 (instruction cache warm-up)")
    A("s_mov_b64 exec, 0")
L("L_kret")
C("DRY{")
A("s_mov_b32 exec_hi, 0")


def g1_loads():
    A(f"buffer_load_dwordx4 v[{GA}:{GA+3}], v{TT}, {WS}, s{S_T3} offen sc1")


tpoll(g1_loads, range(GA, GA + 4), V_T, V_TG, CFG['g1sl'])
A("s_mov_b64 exec, -1")
stamp(7)
A(f"s_cmp_lg_u32 s{S_SUB}, 0")
A("s_cbranch_scc1 L_gnz")
C("every workgroup has consumed the launch tag by now: leave d_debug clean")
A(f"v_mov_b32 v{V_T}, 0")
A(f"v_mov_b32 v{V_T+1}, 0")
A(f"v_lshlrev_b32 v{V_T+2}, 6, v0")
A("s_mov_b64 exec, 15")
A(f"buffer_store_dwordx2 v[{V_T}:{V_T+1}], v{V_T+2}, {SA}, 0 offen sc1")
A("s_mov_b64 exec, -1")
L("L_gnz")
nop(1)
dpp_steps("v_add_f32", [GA + j for j in range(4)], ROW_HI)
swap_steps("v_add_f32", [GA + j for j in range(4)], [GA + 4 + j for j in range(4)], which=(16,))
GH = V_G + 8
GP = V_G + 16
GB = V_G + 20
pack(GP, GA, 2)
unpack(GA, GP, 2)
unpack(GH, V_SM, 2)
for j in range(4):
    A(f"v_add_f32 v{GH+j}, v{GH+j}, v{GA+j}")
pack(GP, GH, 2)
unpack(GH, GP, 2)
unpack(GB, V_SM + 2, 2)
GY = V_K


def g2_loads():
    for j in range(4):
        A(f"v_mov_b32 v{GY+12+j}, v{V_TG+j}")
    A(f"buffer_load_dwordx4 v[{GY}:{GY+3}], v{TT+2}, {WS}, s{S_T2} offen sc1")
    A(f"buffer_load_dwordx4 v[{GY+4}:{GY+7}], v{TT+2}, {WS}, s41 offen sc1")
    A(f"buffer_load_dwordx4 v[{GY+8}:{GY+11}], v{TT+2}, {WS}, s42 offen sc1")
    A("s_mov_b32 exec_hi, 0")
    A(f"buffer_load_dwordx4 v[{GY+12}:{GY+15}], v{TT+2}, {WS}, s43 offen sc1")
    A("s_mov_b32 exec_hi, -1")


tpoll(g2_loads, range(GY, GY + 16), V_T, V_TG, CFG['g2sl'])
stamp(10)
for j in range(4):
    A(f"v_add_f32 v{GY+j}, v{GY+j}, v{GY+4+j}")
    A(f"v_add_f32 v{GY+8+j}, v{GY+8+j}, v{GY+12+j}")
for j in range(4):
    A(f"v_add_f32 v{GY+j}, v{GY+j}, v{GY+8+j}")
dpp_steps("v_add_f32", [GY + j for j in range(4)], ROW_HI)
swap_steps("v_add_f32", [GY + j for j in range(4)], [GY + 4 + j for j in range(4)])
pack(GP, GY, 2)
unpack(GY, GP, 2)
for j in range(4):
    A(f"v_add_f32 v{GY+j}, v{GY+j}, v{GB+j}")
pack(GP, GY, 2)
unpack(GY, GP, 2)
for j in range(4):
    A(f"v_add_f32 v{GY+j}, v{GY+j}, v{GH+j}")
pack(GP, GY, 2)
if CFG.get("padto", 0):
    C("ND{")
    A(f"s_mov_b32 s{S_T5}, {CFG['padto']}")
    if CFG.get("probe2", -1) >= 0:
        A(f"s_load_dword s7, s[{SRD_A}:{SRD_A+1}], 32 glc")
        A(f"s_load_dword s6, s[{SRD_A}:{SRD_A+1}], 36 glc")
        A("s_waitcnt lgkmcnt(0)")
        if CFG.get("probe3", -1) >= 0 or CFG.get("probe4", -1) >= 0:
            A("s_sub_u32 s7, s7, s6")
            A(f"s_add_u32 s7, s7, s{S_TG}")
    if CFG.get("probe", -1) >= 0 or CFG.get("probe2", -1) >= 0:
        A(f"s_sub_u32 s0, s7, s{S_TG}" if not CFG.get("neg", 0) else f"s_sub_u32 s0, s{S_TG}, s7")
        A("s_max_i32 s0, s0, 0")
        A("s_mul_i32 s0, s0, 3")
        A(f"s_add_u32 s{S_T5}, s{S_T5}, s0")
    L("L_pad")
    A("s_memrealtime s[0:1]")
    A("s_waitcnt lgkmcnt(0)")
    A(f"s_sub_u32 s0, s0, s{S_TG}")
    A(f"s_cmp_lt_u32 s0, s{S_T5}")
    A("s_cbranch_scc1 L_pad")
    C("}ND")
A(f"s_lshl_b32 s{S_T4}, s{S_SUB}, 5")
A("v_lshlrev_b32 v3, 3, v0")
A("s_mov_b64 exec, 15")
A(f"buffer_store_dwordx2 v[{GP}:{GP+1}], v3, {SC_}, s{S_T4} offen")
stamp(11)
A("s_branch L_exit")

C("}DRY")
GVMODE[1] = False
begin("ldr")
L("L_ldr")
att_common()
C("kv byte offset: ((b*8+x)*8192 + 6144 + 256 s)*256")
A(f"s_lshl_b32 s{S_T0}, s{S_B}, 3")
A(f"s_add_u32 s{S_T0}, s{S_T0}, s{S_X}")
A(f"s_lshl_b32 s{S_T0}, s{S_T0}, 5")
A(f"s_and_b32 s{S_T1}, s{S_A}, 7")
A(f"s_add_u32 s{S_T0}, s{S_T0}, s{S_T1}")
A(f"s_add_u32 s{S_T0}, s{S_T0}, 24")
A(f"s_lshl_b32 s{S_T3}, s{S_T0}, 16")
A(f"s_mov_b32 s{S_T2}, 0")
A(f"s_cmp_eq_u32 s{S_WAVE}, 9")
A("s_cbranch_scc1 L_ldv")
C("K DMA lane offsets: r4=l>>4, p=l&15: r4*256 + ((p ^ (4i+r4))*16)")
for i in range(4):
    A(f"v_add_u32 v{12+i}, {4*i}, v4")
    A(f"v_xor_b32 v{12+i}, v{12+i}, v6")
    A(f"v_lshlrev_b32 v{12+i}, 4, v{12+i}")
    A(f"v_lshl_add_u32 v{12+i}, v4, 8, v{12+i}")
A(f"s_mov_b32 s{S_T1}, {L_K}")
post_entry()
srd(SRD_A, P_K, 0x2000000)
if CFG.get("ksleep", 0):
    A(f"s_sleep {CFG['ksleep']}")
if CFG["ktouch"]:
    C("resolve the K/V translations first; the q-projection loads get a head start meanwhile")
    A(f"s_load_dword s64, s[{P_K}:{P_K+1}], s{S_T3}")
    A(f"s_load_dword s65, s[{P_V}:{P_V+1}], s{S_T3}")
    A("s_waitcnt lgkmcnt(0)")
L("L_ldk1")
A(f"s_mov_b32 m0, s{S_T1}")
A(f"s_add_u32 s{S_T1}, s{S_T1}, 4096")
for i in range(4):
    A(f"buffer_load_dwordx4 v{12+i}, {SA}, s{S_T3} offen offset:{i*1024}{NT} lds")
A(f"s_add_u32 s{S_T3}, s{S_T3}, 4096")
A(f"s_add_u32 s{S_T2}, s{S_T2}, 1")
A(f"s_cmp_lt_u32 s{S_T2}, 16")
A("s_cbranch_scc1 L_ldk1")
stamp(1)
A("s_barrier")
A("s_waitcnt vmcnt(0)")
stamp(4)
lds_set(L_FLAG + 4, 16, 17)
A("s_waitcnt lgkmcnt(0)")
A("s_branch L_exit")
L("L_ldv")
zero_flags()
for j in range(4):
    A(f"v_mov_b32 v{16+j}, -1")
A(f"ds_write_b128 v2, v[16:19] offset:{L_QL}")
for t in range(8):
    A(f"ds_write_b128 v2, v[16:19] offset:{L_SC + t*1024}")
A("s_mov_b64 exec, 0xffff")
A(f"ds_write_b128 v2, v[16:19] offset:{L_MX}")
A("s_mov_b64 exec, -1")
A("v_lshl_add_u32 v12, v9, 8, v11")
A("v_xor_b32 v13, 32, v12")
post_entry()
srd(SRD_B, P_V, 0x2000000)
A("s_barrier")
A(f"buffer_store_dwordx4 v[16:19], v2, {WS}, s{S_PNA} offen sc1")
A(f"buffer_store_dwordx4 v[16:19], v2, {WS}, s{S_PNB} offen sc1")
A(f"s_mov_b32 s{S_T1}, {L_V}")
L("L_ldv1")
A(f"s_mov_b32 m0, s{S_T1}")
A(f"s_add_u32 s{S_T1}, s{S_T1}, 4096")
for be in range(4):
    A(f"buffer_load_dwordx4 v{12 + (be & 1)}, {SB}, s{S_T3} offen offset:{be*1024}{NT} lds")
A(f"s_add_u32 s{S_T3}, s{S_T3}, 4096")
A(f"s_add_u32 s{S_T2}, s{S_T2}, 1")
A(f"s_cmp_lt_u32 s{S_T2}, 16")
A("s_cbranch_scc1 L_ldv1")
stamp(1)
A(f"v_mov_b32 v20, {L_FLAG + 8}")
for t in range(8):
    A(f"v_mov_b32 v21, {t+1}")
    A(f"s_waitcnt vmcnt({56 - 8*t})")
    A("ds_write_b32 v20, v21")
stamp(4)
A("s_waitcnt lgkmcnt(0)")
A("s_branch L_exit")

GVMODE[0] = True
begin("gv")
L("L_dry2")
A("s_mov_b64 exec, -1")
L("L_GV")
gv_common()
post_entry()
A(f"s_cmp_ge_u32 s{S_WAVE}, 8")
A("s_cbranch_scc1 L_gld")
A(f"s_cmp_lg_u32 s{S_WAVE}, 7")
A("s_cbranch_scc1 L_gv2")
A("s_cmp_lg_u32 s2, 0")
A("s_cbranch_scc1 L_gv0")
C("workgroup 0 publishes the launch tag (4 replicas)")
srd(SRD_C, P_DBG, 256)
A("s_memrealtime s[24:25]")
A("s_waitcnt lgkmcnt(0)")
A("s_or_b32 s25, s25, 0x80000000")
A("v_mov_b32 v14, s24")
A("v_mov_b32 v15, s25")
A("v_lshlrev_b32 v12, 6, v0")
A("s_mov_b64 exec, 15")
A(f"buffer_store_dwordx2 v[14:15], v12, {SC_}, 0 offen sc1")
A("s_mov_b64 exec, -1")
L("L_gv0")
tag_poll(CFG["tsleep0"], S_A, barrier=2)
stamp(5)
A(f"s_mov_b32 s{S_TO}, {CFG['timeout']}")
L("L_echo")
A("ds_write_b64 v102, v[100:101]")
A("ds_read_b32 v103, v102 offset:8")
A(f"s_sub_u32 s{S_TO}, s{S_TO}, 1")
A("s_cbranch_scc1 L_gv2")
A("s_waitcnt lgkmcnt(0)")
A(f"v_readfirstlane_b32 s{S_T0}, v103")
A("s_sleep 2")
A(f"s_cmp_lg_u32 s{S_T0}, s{S_TG}")
A("s_cbranch_scc1 L_echo")
L("L_gv2")
A("s_branch L_qm1")

C("---- GEMV loaders (waves 8,9)")
L("L_gld")
A(f"s_and_b32 s{S_T5}, s{S_WAVE}, 1")
C("WX style lane offsets: ct=l>>5, p=(l>>1)&15 (row), half")
A("v_bfe_u32 v3, v0, 1, 4")
A("v_lshrrev_b32 v12, 5, v0")
A("v_lshlrev_b32 v12, 5, v12")
A("v_lshl_add_u32 v12, v10, 4, v12")
A(f"s_cmp_eq_u32 s{S_ROLE}, 0")
A("s_cbranch_scc1 L_exit")
A(f"s_cmp_eq_u32 s{S_ROLE}, 2")
A("s_cbranch_scc1 L_gld2")
C("wo tile: 512 rows x 128 B; loader i: rows 256i.. (32 instrs of 8 rows)")
srd(SRD_C, P_WO, 0x400000)
A("v_bfe_u32 v3, v0, 1, 3")
A("v_lshlrev_b32 v3, 10, v3")
A("v_lshl_add_u32 v3, v4, 5, v3")
A("v_lshl_add_u32 v3, v10, 4, v3")
A(f"s_lshl_b32 s{S_T3}, s{S_X}, 19")
A(f"s_lshl_b32 s{S_T1}, s{S_T5}, 18")
A(f"s_add_u32 s{S_T3}, s{S_T3}, s{S_T1}")
A(f"s_lshl_b32 s{S_T1}, s{S_SUB}, 7")
A(f"s_add_u32 s{S_T3}, s{S_T3}, s{S_T1}")
A(f"s_lshl_b32 s{S_T4}, s{S_T5}, 15")
A(f"s_add_u32 s{S_T4}, s{S_T4}, {L_WO}")
if CFG["touch2"]:
    for i in range(4):
        A(f"s_add_u32 s{S_T1}, s{S_T3}, {i*65536}")
        A(f"s_load_dword s{64+i}, s[{P_WO}:{P_WO+1}], s{S_T1}")
A(f"s_mov_b32 s{S_T2}, 0")
if CFG["wpre"]:
    lds_wait(L_FL2, 16, 17, sleep=1)
else:
    A("s_barrier")
L("L_gld1")
for i in range(4):
    A(f"s_mov_b32 m0, s{S_T4}")
    A(f"s_add_u32 s{S_T4}, s{S_T4}, 1024")
    A(f"buffer_load_dwordx4 v3, {SC_}, s{S_T3} offen{NT} lds")
    A(f"s_add_u32 s{S_T3}, s{S_T3}, 8192")
A(f"s_add_u32 s{S_T2}, s{S_T2}, 1")
if CFG["wpre"]:
    A(f"s_cmp_lg_u32 s{S_T2}, {CFG['wpre']}")
    A("s_cbranch_scc1 L_gld1b")
    A("s_barrier")
    L("L_gld1b")
A(f"s_cmp_lt_u32 s{S_T2}, 8")
A("s_cbranch_scc1 L_gld1")
A("s_branch L_gld5")
L("L_gld2")
A(f"s_cmp_eq_u32 s{S_T5}, 1")
A("s_cbranch_scc1 L_gld3")
srd(SRD_C, P_W1, 512 * 3584)
A(f"s_lshl_b32 s{S_T3}, s{S_SUB}, 6")
A(f"s_movk_i32 s{S_T1}, 3584")
A(f"v_mul_lo_u32 v13, v3, s{S_T1}")
A("v_add_u32 v13, v13, v12")
if CFG["touch2"]:
    for i in range(14):
        A(f"s_add_u32 s{S_T1}, s{S_T3}, {i*131072}")
        A(f"s_load_dword s{64+i}, s[{P_W1}:{P_W1+1}], s{S_T1}")
A("s_barrier")
A(f"s_mov_b32 s{S_T1}, {L_WX}")
A(f"s_mov_b32 s{S_T2}, 0")
L("L_gld4")
for i in range(4):
    A(f"s_mov_b32 m0, s{S_T1}")
    A(f"s_add_u32 s{S_T1}, s{S_T1}, 1024")
    A(f"buffer_load_dwordx4 v13, {SC_}, s{S_T3} offen{NT} lds")
    A(f"s_add_u32 s{S_T3}, s{S_T3}, {16*3584}")
if CFG["mwin"]:
    A(f"s_waitcnt vmcnt({CFG['mwin']})")
A(f"s_add_u32 s{S_T2}, s{S_T2}, 1")
A(f"s_cmp_lt_u32 s{S_T2}, 8")
A("s_cbranch_scc1 L_gld4")
A("s_branch L_gld5")
L("L_gld3")
srd(SRD_C, P_W2, 1792 * 1024)
A("v_lshl_add_u32 v14, v9, 10, v11")
A("v_xor_b32 v15, 32, v14")
A(f"s_lshl_b32 s{S_T3}, s{S_SUB}, 15")
if CFG["touch2"]:
    A(f"s_load_dword s64, s[{P_W2}:{P_W2+1}], s{S_T3}")
    A(f"s_load_dword s65, s[{P_B1}:{P_B1+1}], 0")
A("s_barrier")
A(f"s_mov_b32 s{S_T1}, {L_W2}")
A(f"s_mov_b32 s{S_T2}, 0")
L("L_gld6")
for be in range(8):
    A(f"s_mov_b32 m0, s{S_T1}")
    A(f"s_add_u32 s{S_T1}, s{S_T1}, 1024")
    A(f"s_add_u32 s{S_T4}, s{S_T3}, {be*4096}")
    A(f"buffer_load_dwordx4 v{14 + (be & 1)}, {SC_}, s{S_T4} offen{NT} lds")
    if CFG["mwin"] and be % 4 == 3:
        A(f"s_waitcnt vmcnt({CFG['mwin']})")
A(f"s_add_u32 s{S_T3}, s{S_T3}, 256")
A(f"s_add_u32 s{S_T2}, s{S_T2}, 1")
A(f"s_cmp_lt_u32 s{S_T2}, 4")
A("s_cbranch_scc1 L_gld6")
L("L_gld5")
A("s_waitcnt vmcnt(0)")
stamp(4)
A("s_barrier")
A("s_branch L_exit")

begin("qc")
C("---- q projection: wave 6 loads and computes everything")
A("v_mov_b32 v16, 0")
A("v_mov_b32 v17, 0")
A(f"ds_write_b64 v16, v[16:17] offset:{L_TAG}")
A(f"ds_write_b32 v16, v16 offset:{L_FL2}")
post_entry()
srd(SRD_A, P_X, 2048)
A(f"buffer_load_dwordx4 v[16:19], v2, {SA}, 0 offen")
A(f"buffer_load_dwordx4 v[20:23], v2, {SA}, 0 offen offset:1024")
if CFG["touch"]:
    A(f"s_lshl_b32 s{S_T1}, s{S_X}, 4")
    A(f"s_add_u32 s{S_T1}, s{S_T1}, s{S_A}")
    A(f"s_lshl_b32 s{S_T1}, s{S_T1}, 9")
    A(f"s_add_u32 s{S_T1}, s{S_T1}, {WS_XQA}")
    A("s_mov_b32 exec_hi, 0")
    A(f"buffer_load_dwordx4 v[72:75], v2, {WS}, s{S_T1} offen sc1")
    A("s_mov_b32 exec_hi, -1")
if CFG["qrep"]:
    C("pull my lines of the q replicas into L2: lane=(r,b)")
    A("v_lshrrev_b32 v76, 1, v0")
    A("v_lshlrev_b32 v76, 15, v76")
    A("v_lshl_add_u32 v76, v10, 11, v76")
    A(f"s_lshl_b32 s{S_T1}, s{S_X}, 12")
    A(f"s_lshl_b32 s{S_T2}, s{S_A}, 7")
    A(f"s_add_u32 s{S_T1}, s{S_T1}, s{S_T2}")
    A(f"s_add_u32 s{S_T1}, s{S_T1}, {WS_QR}")
    A(f"s_mov_b64 exec, {(1 << (2*CFG['qrep'])) - 1:#x}")
    A(f"buffer_load_dword v77, v76, {WS}, s{S_T1} offen")
    A("s_mov_b64 exec, -1")
srd(SRD_B, P_WQ, 0x400000)
A("v_bfe_u32 v13, v0, 1, 3")
A("v_lshlrev_b32 v13, 13, v13")
A("v_lshl_add_u32 v13, v4, 5, v13")
A("v_lshl_add_u32 v13, v10, 4, v13")
A(f"s_and_b32 s{S_B}, s{S_A}, 1")
A(f"s_lshl_b32 s{S_T0}, s{S_B}, 21")
A(f"s_lshl_b32 s{S_T1}, s{S_X}, 10")
A(f"s_add_u32 s{S_T0}, s{S_T0}, s{S_T1}")
A(f"s_lshr_b32 s{S_T1}, s{S_A}, 1")
A(f"s_lshl_b32 s{S_T1}, s{S_T1}, 7")
A(f"s_add_u32 s{S_T0}, s{S_T0}, s{S_T1}")
A(f"s_mov_b32 s{S_T1}, {L_WQ}")
L("L_qc1")
for i in range(4):
    A(f"s_mov_b32 m0, s{S_T1}")
    A(f"s_add_u32 s{S_T1}, s{S_T1}, 1024")
    A(f"buffer_load_dwordx4 v13, {SB}, s{S_T0} offen{NT} lds")
    A(f"s_add_u32 s{S_T0}, s{S_T0}, 0x10000")
A(f"s_cmp_lt_u32 s{S_T1}, {L_WQ + 32768}")
A("s_cbranch_scc1 L_qc1")
if CFG["wpre"]:
    A("v_mov_b32 v24, 0")
    A("v_mov_b32 v25, 1")
    A(f"ds_write_b32 v24, v25 offset:{L_FL2}")
stamp(10)
L("L_dry")
gv_common()
A("v_lshrrev_b32 v12, 2, v0")
A("v_lshlrev_b32 v12, 6, v12")
A("v_lshl_add_u32 v12, v10, 5, v12")
A("v_bfe_u32 v13, v0, 1, 1")
A("v_lshl_add_u32 v12, v13, 3, v12")
A("v_lshlrev_b32 v13, 10, v10")
A("v_lshl_add_u32 v13, v4, 4, v13")
A(f"s_lshl_b32 s{S_T1}, s{S_B}, 9")
A(f"v_add_u32 v13, s{S_T1}, v13")
A("v_lshrrev_b32 v14, 5, v0")
A("v_lshlrev_b32 v14, 10, v14")
A("v_and_b32 v15, 31, v0")
A("v_lshl_add_u32 v14, v15, 3, v14")
C("exchange lane map: n=l&15<8: b=n&1, half2=(n>>1)&1, cs=(n>>2)&1 ; XQ off = cs*256 + b*128 + g*32 + half2*16")
A("v_bfe_u32 v70, v0, 2, 1")
A("v_lshlrev_b32 v69, 6, v70")
A("v_lshl_add_u32 v69, v4, 4, v69")
A("v_lshl_add_u32 v69, v10, 11, v69")
A("v_lshlrev_b32 v70, 8, v70")
A("v_lshl_add_u32 v70, v10, 7, v70")
A("v_lshl_add_u32 v70, v4, 5, v70")
A("v_bfe_u32 v15, v0, 1, 1")
A("v_lshl_add_u32 v70, v15, 4, v70")
A(f"s_lshl_b32 s{S_T5}, s{S_X}, 12")
A(f"s_lshl_b32 s{S_T1}, s{S_A}, 7")
A(f"s_add_u32 s{S_T5}, s{S_T5}, s{S_T1}")
A(f"s_lshl_b32 s{S_T1}, s{S_X}, 4")
A(f"s_add_u32 s{S_T1}, s{S_T1}, s{S_A}")
A(f"s_lshl_b32 s62, s{S_T1}, 9")
A(f"s_xor_b32 s63, s62, 512")
A(f"s_add_u32 s64, s62, {WS_XQB}")
A(f"s_add_u32 s62, s62, {WS_XQA}")
A(f"s_add_u32 s65, s63, {WS_XQB}")
A(f"s_add_u32 s63, s63, {WS_XQA}")
A("s_mov_b32 s66, 0xcccccccc")
A("s_mov_b32 s67, 0xcccccccc")
A("s_mov_b32 s68, 0xf0f0f0f0")
A("s_mov_b32 s69, 0xf0f0f0f0")
stamp(11)
A(f"s_waitcnt vmcnt({32 + CFG['touch'] + (1 if CFG['qrep'] else 0)})")
stamp(12)
unpack(24, 16, 4)
unpack(32, 20, 4)
layernorm([24, 32], 2, 44, [16, 20])
A(f"ds_write_b64 v12, v[16:17] offset:{L_XN}")
A(f"ds_write_b64 v12, v[18:19] offset:{L_XN + 16}")
A(f"ds_write_b64 v12, v[20:21] offset:{L_XN + 1024}")
A(f"ds_write_b64 v12, v[22:23] offset:{L_XN + 1024 + 16}")
A("s_waitcnt lgkmcnt(0)")
XA = 96
for kp in range(8):
    A(f"ds_read_b128 v[{XA+4*kp}:{XA+4*kp+3}], v13 offset:{L_XN + kp*64}")
stamp(1)
A("v_mov_b32 v16, 0")
WF = 24
QD = 144
for kp in range(8):
    if kp == 7:
        C("launch tag from wave 7 (it rewrites the slot until echoed)")
        A("s_cbranch_execz L_dry1")
        lds_wait(L_TAG + 4, 17, 18)
        L("L_dry1")
        A(f"ds_read_b64 v[58:59], v16 offset:{L_TAG}")
        A(f"ds_read_b64 v[62:63], v16 offset:{L_TAG}")
        A("s_waitcnt lgkmcnt(0)")
        A(f"ds_write_b32 v16, v58 offset:{L_TAG + 8}")
    A(f"s_waitcnt vmcnt({28 - 4*kp})")
    if kp == 7:
        stamp(2)
        pass
    for ct in range(4):
        for h in range(2):
            r = WF + ((kp & 1) * 4 + ct) * 4 + 2 * h
            A(f"ds_read_b64_tr_b16 v[{r}:{r+1}], v14 offset:{L_WQ + kp*4096 + h*2048 + ct*256}")
    for ct in range(4):
        A(f"s_waitcnt lgkmcnt({6 - 2*ct})")
        mfma(QD + 4 * ct, WF + ((kp & 1) * 4 + ct) * 4, XA + 4 * kp, None if kp == 0 else QD + 4 * ct)
C("select: lo half cts (0,1) -> v[24:25], hi half cts (2,3) -> v[26:27]")
nop(5)
for hf in range(2):
    a, b = QD + 8 * hf, QD + 8 * hf + 4
    for j in range(2):
        A(f"v_cndmask_b32 v{28+j}, v{a+j}, v{a+2+j}, s[66:67]")
        A(f"v_cndmask_b32 v{30+j}, v{b+j}, v{b+2+j}, s[66:67]")
    for j in range(2):
        A(f"v_cndmask_b32 v{24+2*hf+j}, v{28+j}, v{30+j}, s[68:69]")
A("s_cbranch_execz L_dry2")
A(f"s_cmp_eq_u32 s{S_B}, 0")
A(f"s_cselect_b64 vcc, -1, 0")
set_exec(0x00ff00ff00ff00ff)
A("v_cndmask_b32 v56, v24, v26, vcc")
A("v_cndmask_b32 v57, v25, v27, vcc")
A("v_cndmask_b32 v60, v26, v24, vcc")
A("v_cndmask_b32 v61, v27, v25, vcc")
A(f"buffer_store_dwordx4 v[56:59], v70, {WS}, s{63 if CFG['dual'] else 65} offen{'' if CFG['dual'] else ' sc1'}")
stamp(6)
lx, lxe, lxs = newlbl("Lx"), newlbl("Lxe"), newlbl("Lxs")
A(f"s_mov_b32 s{S_TO}, {CFG['timeout']}")
L(lx)
if CFG["dual"]:
    A(f"s_cmp_lg_u32 s{S_TO}, {CFG['timeout'] - 4}")
    A(f"s_cbranch_scc1 {lxs}")
    C("partner not seen through L2 yet: also send the coherent copy")
    A(f"buffer_store_dwordx4 v[56:59], v70, {WS}, s65 offen sc1")
    L(lxs)
A(f"s_and_b32 s{S_T0}, s{S_TO}, 7")
A(f"s_cmp_eq_u32 s{S_T0}, 1")
A(f"s_cselect_b32 s{S_T1}, s64, s{62 if CFG['dual'] else 64}")
A(f"buffer_load_dwordx4 v[24:27], v70, {WS}, s{S_T1} offen sc1")
A(f"s_sub_u32 s{S_TO}, s{S_TO}, 1")
A(f"s_cbranch_scc1 {lxe}")
A("s_waitcnt vmcnt(0)")
A("v_cmp_ne_u64 vcc, v[26:27], v[58:59]")
A("s_cmp_lg_u64 vcc, 0")
A(f"s_cbranch_scc1 {lx}")
L(lxe)
A("s_waitcnt vmcnt(0)")
A("v_pk_add_f32 v[60:61], v[60:61], v[24:25]")
A("v_cvt_pk_bf16_f32 v60, v60, v61")
nop(2)
A("v_mov_b32_dpp v61, v60 quad_perm:[2,3,0,1] row_mask:0xf bank_mask:0xf")
set_exec(0x0033003300330033)
for r in range(CFG["qrep"]):
    A(f"s_add_u32 s{S_T1}, s{S_T5}, {WS_QR + r*32768}")
    A(f"buffer_store_dwordx4 v[60:63], v69, {WS}, s{S_T1} offen")
A(f"buffer_store_dwordx4 v[60:63], v69, {WS}, s{S_T5} offen sc1")
if CFG["dual"]:
    C("always leave a coherent copy for the partner")
    set_exec(0x00ff00ff00ff00ff)
    A(f"buffer_store_dwordx4 v[56:59], v70, {WS}, s65 offen sc1")
A("s_mov_b64 exec, -1")
stamp(3)
A("s_branch L_qm1")
begin("qm2")
L("L_qm1")
A(f"s_cmp_eq_u32 s{S_ROLE}, 0")
A("s_cbranch_scc1 L_exit")
A("s_barrier")
A(f"v_mov_b32 v{V_T}, 0")
A(f"ds_read_b64 v[{TT+2}:{TT+3}], v{V_T} offset:{L_TAG}")
A(f"ds_read_b128 v[{V_TG}:{V_TG+3}], v{V_T} offset:{L_TAG + 16}")
A(f"s_cmp_eq_u32 s{S_ROLE}, 2")
A("s_cbranch_scc1 L_F")

C("==== E: wo projection, 8 waves: head=w&3, col half=w>>2; wave gathers records 2w,2w+1")
V_WX = 16
A(f"s_lshl_b32 s{S_T1}, s{S_X}, 4")
A(f"s_lshl_b32 s{S_T2}, s{S_WAVE}, 1")
A(f"s_add_u32 s{S_T1}, s{S_T1}, s{S_T2}")
A(f"s_mul_i32 s{S_T1}, s{S_T1}, {RECP}")
A(f"s_add_u32 s{S_PNA}, s{S_T1}, {WS_PNA if CFG['dual'] else WS_PNB}")
A(f"s_add_u32 s{S_PNB}, s{S_T1}, {WS_PNB}")
EA0, EA1, EA2, EA3, EA4, EA5 = V_T + 36, V_T + 37, V_T + 38, V_T + 39, V_T + 2, V_T + 3
C("stats gather addr: lane<8: (l>>2)*RECP + (l&3)*16 (+1024)")
A(f"v_lshrrev_b32 v{EA0}, 2, v0")
A(f"s_movk_i32 s{S_T2}, {RECP}")
A(f"v_mul_lo_u32 v{EA0}, v{EA0}, s{S_T2}")
A(f"v_and_b32 v{EA1}, 3, v0")
A(f"v_lshl_add_u32 v{EA0}, v{EA1}, 4, v{EA0}")
A(f"s_mul_i32 s{S_T2}, s{S_WAVE}, {2*PNP}")
A(f"s_add_u32 s{S_T2}, s{S_T2}, {L_PS}")
A(f"v_add_u32 v{EA1}, s{S_T2}, v2")
A(f"s_lshl_b32 s{S_T2}, s{S_WAVE}, 7")
A(f"v_add_u32 v{EA2}, s{S_T2}, v2")
A(f"s_and_b32 s{S_T4}, s{S_WAVE}, 3")
A(f"s_lshr_b32 s{S_T5}, s{S_WAVE}, 2")
A(f"s_movk_i32 s{S_T2}, {PNP}")
A(f"v_mul_lo_u32 v{EA3}, v6, s{S_T2}")
A(f"v_lshl_add_u32 v{EA3}, v4, 4, v{EA3}")
A(f"s_lshl_b32 s{S_T2}, s{S_T4}, 6")
A(f"s_add_u32 s{S_T2}, s{S_T2}, {L_PS}")
A(f"v_add_u32 v{EA3}, s{S_T2}, v{EA3}")
A(f"v_lshlrev_b32 v{EA4}, 6, v6")
A(f"s_lshl_b32 s{S_T2}, s{S_T4}, 4")
A(f"v_add_u32 v{EA4}, s{S_T2}, v{EA4}")
A(f"s_lshl_b32 s{S_T2}, s{S_T4}, 9")
A(f"s_lshl_b32 s{S_T3}, s{S_T5}, 8")
A(f"s_add_u32 s{S_T2}, s{S_T2}, s{S_T3}")
A(f"v_lshl_add_u32 v{EA5}, v0, 2, s{S_T2}")
C("weights tr-read addr: WO + hd*16384 + ch*512 + (l>>5)*1024 + (l&31)*8")
A(f"v_lshrrev_b32 v{TT}, 5, v0")
A(f"v_lshlrev_b32 v{TT}, 10, v{TT}")
A(f"v_and_b32 v{TT+1}, 31, v0")
A(f"v_lshl_add_u32 v{TT}, v{TT+1}, 3, v{TT}")
A(f"s_lshl_b32 s{S_T2}, s{S_T4}, 14")
A(f"s_lshl_b32 s{S_T3}, s{S_T5}, 9")
A(f"s_add_u32 s{S_T2}, s{S_T2}, s{S_T3}")
A(f"s_add_u32 s{S_T2}, s{S_T2}, {L_WO}")
A(f"v_add_u32 v{TT}, s{S_T2}, v{TT}")
A(f"v_mul_u32_u24 v{V_T+32}, 80, v4")
C("final-stage addresses (wave 0, lanes<32): RED read / AP write")
A(f"v_bfe_u32 v{V_T+33}, v0, 3, 1")
A(f"v_lshlrev_b32 v{V_T+33}, 8, v{V_T+33}")
A(f"v_lshl_add_u32 v{V_T+33}, v4, 7, v{V_T+33}")
A(f"v_and_b32 v{V_T+34}, 7, v0")
A(f"v_lshl_add_u32 v{V_T+33}, v{V_T+34}, 4, v{V_T+33}")
A(f"v_lshlrev_b32 v{V_T+34}, 11, v4")
A(f"v_lshl_add_u32 v{V_T+34}, v6, 4, v{V_T+34}")
A(f"s_lshl_b32 s{S_NT}, s{S_X}, 12")
A(f"s_lshl_b32 s{S_T1}, s{S_SUB}, 8")
A(f"s_add_u32 s{S_NT}, s{S_NT}, s{S_T1}")
A(f"s_add_u32 s{S_NT}, s{S_NT}, {WS_AP}")
if CFG["dry3"]:
    A("s_waitcnt lgkmcnt(0)")
    A("s_mov_b64 exec, 0")
    A("s_branch L_edry")
L("L_eret")
A("s_waitcnt vmcnt(0) lgkmcnt(0)")
A("s_barrier")
stamp(4)
L("L_edry")
C("DRY{")
for kp in range(4):
    for c in range(2):
        for h in range(2):
            r = V_WX + (kp * 2 + c) * 4 + 2 * h
            A(f"ds_read_b64_tr_b16 v[{r}:{r+1}], v{TT} offset:{kp*4096 + h*2048 + c*256}")
SG = V_G + 8
le, lee = newlbl("Le"), newlbl("Lee")
A(f"s_mov_b32 s{S_TO}, {CFG['timeout']}")
L(le)
A(f"s_and_b32 s{S_T0}, s{S_TO}, {CFG['bmask']}")
A(f"s_cmp_eq_u32 s{S_T0}, 1")
A(f"s_cselect_b32 s{S_T1}, s{S_PNB}, s{S_PNA}")
A(f"v_mov_b32 v{SG+2}, v{TT+2}")
A(f"v_mov_b32 v{SG+3}, v{TT+3}")
A("s_mov_b64 exec, 0xff")
A(f"buffer_load_dwordx4 v[{SG}:{SG+3}], v{EA0}, {WS}, s{S_T1} offen offset:1024 sc1")
A("s_mov_b64 exec, -1")
for i in range(2):
    r = V_G + i * 4
    A(f"buffer_load_dwordx4 v[{r}:{r+3}], v2, {WS}, s{S_T1} offen offset:{i*RECP} sc1")
A(f"s_sub_u32 s{S_TO}, s{S_TO}, 1")
A(f"s_cbranch_scc1 {lee}")
A("s_waitcnt vmcnt(0)")
tree3("v_max3_u32", "v_max_u32", range(V_G, V_G + 8), TT)
A(f"v_cmp_eq_u32 vcc, -1, v{TT}")
A(f"v_cmp_ne_u64 s[{S_T2}:{S_T3}], v[{SG+2}:{SG+3}], v[{TT+2}:{TT+3}]")
A(f"s_or_b64 vcc, vcc, s[{S_T2}:{S_T3}]")
A(f"s_cbranch_scc1 {le}")
L(lee)
A("s_waitcnt vmcnt(0)")
stamp(7)
for i in range(2):
    r = V_G + i * 4
    A(f"ds_write_b128 v{EA1}, v[{r}:{r+3}] offset:{i*PNP}")
A("s_mov_b64 exec, 0xff")
A(f"ds_write_b128 v{EA2}, v[{SG}:{SG+3}] offset:{L_STS}")
A("s_mov_b64 exec, -1")
A("s_waitcnt lgkmcnt(0)")
A("s_barrier")
SM0 = V_T + 4
MG = V_T + 8
FW = V_T + 24
A(f"ds_read_b64 v[{SM0}:{SM0+1}], v{EA4} offset:{L_STS}")
for kp in range(4):
    r = V_G + kp * 4
    A(f"ds_read_b128 v[{r}:{r+3}], v{EA3} offset:{kp*256}")
EA = V_S
A("s_waitcnt lgkmcnt(4)")
A(f"v_mov_b32 v{MG}, v{SM0}")
R8 = ROW_ALL[:3]
fill = []
for c in R8:
    fill.append(["s_nop 0", f"v_max_f32_dpp v{MG}, v{MG}, v{MG} {c} row_mask:0xf bank_mask:0xf"])
fill.append([f"v_sub_f32 v{SM0}, v{SM0}, v{MG}", f"v_exp_f32 v{SM0}, v{SM0}", "s_nop 0", f"v_mul_f32 v{MG}, v{SM0}, v{SM0+1}"])
for c in R8:
    fill.append(["s_nop 0", f"v_add_f32_dpp v{MG}, v{MG}, v{MG} {c} row_mask:0xf bank_mask:0xf"])
fill.append([f"v_rcp_f32 v{MG}, v{MG}", "s_nop 0", f"v_mul_f32 v{SM0}, v{SM0}, v{MG}"])
fi = 0
for kp in range(4):
    A(f"s_waitcnt lgkmcnt({3-kp})")
    for c in range(2):
        d = EA + c * 4
        mfma(d, V_G + kp * 4, V_WX + (kp * 2 + c) * 4, None if kp == 0 else d)
        for ins in fill[fi]:
            A(ins)
        fi += 1
assert fi == len(fill)
for r in range(4):
    A(f"ds_bpermute_b32 v{FW+r}, v{V_T+32}, v{SM0} offset:{4*r}")
A("s_waitcnt lgkmcnt(0)")
for c in range(2):
    d = EA + 4 * c
    A(f"v_mul_f32 v{d}, v{d}, v{FW}")
    A(f"v_mul_f32 v{d+2}, v{d+2}, v{FW+2}")
    A(f"v_fmac_f32 v{d}, v{d+1}, v{FW+1}")
    A(f"v_fmac_f32 v{d+2}, v{d+3}, v{FW+3}")
for c in range(2):
    d = EA + 4 * c
    A(f"v_add_f32 v{d}, v{d}, v{d+2}")
nop(2)
A(f"v_permlane16_swap_b32 v{EA}, v{EA+4}")
A(f"v_add_f32 v{EA}, v{EA}, v{EA+4}")
A(f"ds_write_b32 v{EA5}, v{EA} offset:{L_RED}")
A("s_waitcnt lgkmcnt(0)")
A("s_barrier")
A(f"s_cmp_lg_u32 s{S_WAVE}, 0")
A("s_cbranch_scc1 L_exit")
A("s_mov_b32 exec_hi, 0")
for i in range(4):
    A(f"ds_read_b128 v[{V_G+4*i}:{V_G+4*i+3}], v{V_T+33} offset:{L_RED + i*512}")
A("s_waitcnt lgkmcnt(0)")
for j in (0, 2):
    A(f"v_pk_add_f32 v[{V_G+j}:{V_G+j+1}], v[{V_G+j}:{V_G+j+1}], v[{V_G+4+j}:{V_G+5+j}]")
    A(f"v_pk_add_f32 v[{V_G+8+j}:{V_G+9+j}], v[{V_G+8+j}:{V_G+9+j}], v[{V_G+12+j}:{V_G+13+j}]")
for j in (0, 2):
    A(f"v_pk_add_f32 v[{V_G+j}:{V_G+j+1}], v[{V_G+j}:{V_G+j+1}], v[{V_G+8+j}:{V_G+9+j}]")
tag(V_G, V_TG)
A(f"buffer_store_dwordx4 v[{V_G}:{V_G+3}], v{V_T+34}, {WS}, s{S_NT} offen sc1")
stamp(8)
A("s_branch L_exit")

C("}DRY")
L("L_F")
C("==== F: MLP. 8 waves gather (b=w>>2, 128-col quarter q=w&3); waves 0..3 also do w1/gelu/w2")
V_W2 = 128
FG = 48
HX = 64
C("x[b][128q + 4(l&31)..] ; b1[mi*32 + (l&31)]")
srd(SRD_A, P_X, 2048)
A("v_and_b32 v12, 31, v0")
A("v_lshlrev_b32 v13, 3, v12")
A(f"s_lshl_b32 s{S_T0}, s{S_WAVE}, 8")
A(f"buffer_load_dwordx2 v[{V_SM}:{V_SM+1}], v13, {SA}, s{S_T0} offen")
srd(SRD_C, P_B1, 3584)
A("v_lshlrev_b32 v13, 1, v12")
A(f"s_lshl_b32 s{S_T0}, s{S_SUB}, 6")
A(f"buffer_load_ushort v{V_SM+2}, v13, {SC_}, s{S_T0} offen")
C("gather addr: (l>>5)*4096 + (l&31)*16 ; soffset = AP + w*512 + i*8192")
GAD, HA, STW, STR = V_T, V_T + 1, V_T + 2, V_T + 3
A(f"v_lshrrev_b32 v{GAD}, 5, v0")
A(f"v_lshlrev_b32 v{GAD}, 12, v{GAD}")
A(f"v_lshl_add_u32 v{GAD}, v12, 4, v{GAD}")
A(f"s_lshl_b32 s{S_T0}, s{S_WAVE}, 9")
A(f"s_add_u32 s{S_T0}, s{S_T0}, {WS_AP}")
SX = 62
for i in range(4):
    A(f"s_add_u32 s{SX+i}, s{S_T0}, {i*8192}")
C("hn write addr (cols 4j.., j=l&31): w*256 + (j>>3)*64 + (j&3)*16 + ((j>>2)&1)*8")
A(f"v_lshrrev_b32 v{HA}, 3, v12")
A(f"v_lshlrev_b32 v{HA}, 6, v{HA}")
A("v_and_b32 v13, 3, v0")
A(f"v_lshl_add_u32 v{HA}, v13, 4, v{HA}")
A("v_bfe_u32 v13, v0, 2, 1")
A(f"v_lshl_add_u32 v{HA}, v13, 3, v{HA}")
A(f"s_lshl_b32 s{S_T0}, s{S_WAVE}, 8")
A(f"v_add_u32 v{HA}, s{S_T0}, v{HA}")
C("LN stats exchange: STS + w*8 ; read STS + b*32 (sentinel initialised)")
A(f"s_lshl_b32 s{S_T0}, s{S_WAVE}, 3")
A(f"v_mov_b32 v{STW}, s{S_T0}")
A(f"s_lshr_b32 s{S_T0}, s{S_WAVE}, 2")
A(f"s_lshl_b32 s{S_T0}, s{S_T0}, 5")
A(f"v_mov_b32 v{STR}, s{S_T0}")
A("v_mov_b32 v14, -1")
A("v_mov_b32 v15, -1")
A(f"ds_write_b64 v{STW}, v[14:15] offset:{L_STS}")
C("compute-wave addresses")
vw2_addr()
A(f"s_lshl_b32 s{S_T0}, s{S_WAVE}, 13")
A(f"s_add_u32 s{S_T1}, s{S_T0}, {L_W2}")
A(f"v_add_u32 v{VB0}, s{S_T1}, v{VA0}")
A(f"v_add_u32 v{VB1}, s{S_T1}, v{VA1}")
A(f"s_add_u32 s{S_T1}, s{S_T0}, {L_WX}")
A(f"v_lshl_add_u32 v{TT}, v0, 3, s{S_T1}")
A0, A1, A2, YAD = V_T + 36, V_T + 37, V_T + 38, V_T + 39
A(f"v_lshlrev_b32 v{A0}, 10, v10")
A(f"v_lshl_add_u32 v{A0}, v4, 4, v{A0}")
A(f"s_lshl_b32 s{S_T0}, s{S_WAVE}, 8")
A(f"v_add_u32 v{A0}, s{S_T0}, v{A0}")
A(f"v_lshlrev_b32 v{A1}, 7, v6")
A(f"v_lshl_add_u32 v{A1}, v4, 4, v{A1}")
A(f"v_add_u32 v{A1}, s{S_T0}, v{A1}")
C("h1 write addr: lane (b=l>>5, c=l&31): H1 + w*128 + b*64 + ((c>>2)&3)*16 + (c>>4)*8 + (c&3)*2")
A(f"v_lshrrev_b32 v{A2}, 5, v0")
A(f"v_lshlrev_b32 v{A2}, 6, v{A2}")
A("v_bfe_u32 v13, v0, 2, 2")
A(f"v_lshl_add_u32 v{A2}, v13, 4, v{A2}")
A("v_bfe_u32 v13, v0, 4, 1")
A(f"v_lshl_add_u32 v{A2}, v13, 3, v{A2}")
A("v_and_b32 v13, 3, v0")
A(f"v_lshl_add_u32 v{A2}, v13, 1, v{A2}")
A(f"s_lshl_b32 s{S_T1}, s{S_WAVE}, 7")
A(f"s_add_u32 s{S_T1}, s{S_T1}, {L_H1}")
A(f"v_add_u32 v{A2}, s{S_T1}, v{A2}")
C("B_ct operand addresses: (n>>1)==ct ? H1 + w*128 + (n&1)*64 + g*16 : ZERO")
BA = V_T + 24
A("v_lshlrev_b32 v13, 6, v10")
A("v_lshl_add_u32 v13, v4, 4, v13")
A(f"v_add_u32 v13, s{S_T1}, v13")
A(f"v_mov_b32 v14, {L_ZERO}")
A("v_bfe_u32 v15, v0, 1, 3")
for ct in range(8):
    A(f"v_cmp_eq_u32 vcc, {ct}, v15")
    A("s_nop 1")
    A(f"v_cndmask_b32 v{BA+ct}, v14, v13, vcc")
for j in range(4):
    A(f"v_mov_b32 v{16+j}, 0")
A(f"ds_write_b128 v14, v[16:19]")
C("Y store addr: (n&1)*2048 + (n>>1)*64 + g*16 ; soff = Y + mi*YP + w*512")
A(f"v_lshlrev_b32 v{YAD}, 11, v10")
A(f"v_lshl_add_u32 v{YAD}, v15, 6, v{YAD}")
A(f"v_lshl_add_u32 v{YAD}, v4, 4, v{YAD}")
S_Y = 70
A(f"s_mul_i32 s{S_Y}, s{S_SUB}, {YP}")
A(f"s_lshl_b32 s{S_T1}, s{S_WAVE}, 9")
A(f"s_add_u32 s{S_Y}, s{S_Y}, s{S_T1}")
A(f"s_add_u32 s{S_Y}, s{S_Y}, {WS_Y}")
A("v_lshlrev_b32 v3, 2, v0")
if CFG["dry3"]:
    A("s_waitcnt lgkmcnt(0)")
    A("s_mov_b64 exec, 0")
    A("s_branch L_fdry")
L("L_fret")
A("s_waitcnt vmcnt(0) lgkmcnt(0)")
unpack(HX, V_SM, 2)
A(f"v_lshlrev_b32 v{V_SM+2}, 16, v{V_SM+2}")
A("s_barrier")
stamp(4)
L("L_fdry")
C("DRY{")
A(f"s_cmp_ge_u32 s{S_WAVE}, 4")
A("s_cbranch_scc1 L_F1")
for kp in range(4):
    for ct in range(2):
        for h in range(2):
            r = V_WX + (kp * 2 + ct) * 4 + 2 * h
            A(f"ds_read_b64_tr_b16 v[{r}:{r+1}], v{TT} offset:{kp*2048 + h*1024 + ct*512}")
A("s_waitcnt lgkmcnt(0)")
for ct in range(8):
    for h in range(2):
        r = V_W2 + ct * 4 + 2 * h
        A(f"ds_read_b64_tr_b16 v[{r}:{r+1}], v{VB0 + (ct & 1)} offset:{(ct >> 1)*256 + h*4096}")
L("L_F1")


def f_loads():
    for i in range(4):
        r = FG + i * 4
        A(f"buffer_load_dwordx4 v[{r}:{r+3}], v{GAD}, {WS}, s{SX+i} offen sc1")


tpoll(f_loads, range(FG, FG + 16), TT, V_TG, CFG['fsl'])
stamp(7)
for j in (0, 2):
    A(f"v_pk_add_f32 v[{FG+j}:{FG+j+1}], v[{FG+j}:{FG+j+1}], v[{FG+4+j}:{FG+5+j}]")
    A(f"v_pk_add_f32 v[{FG+8+j}:{FG+9+j}], v[{FG+8+j}:{FG+9+j}], v[{FG+12+j}:{FG+13+j}]")
for j in (0, 2):
    A(f"v_pk_add_f32 v[{FG+j}:{FG+j+1}], v[{FG+j}:{FG+j+1}], v[{FG+8+j}:{FG+9+j}]")
swap_steps("v_add_f32", [FG + j for j in range(4)], [FG + 4 + j for j in range(4)], which=(32,))
HP = FG + 8
pack(HP, FG, 2)
unpack(FG, HP, 2)
for j in range(4):
    A(f"v_add_f32 v{HX+j}, v{HX+j}, v{FG+j}")
pack(HP, HX, 2)
unpack(HX, HP, 2)
C("local stats around pivot c = h[first]")
A("s_nop 0")
A(f"v_readfirstlane_b32 s{S_T2}, v{HX}")
A("s_nop 1")
for j in range(4):
    A(f"v_subrev_f32 v{FG+j}, s{S_T2}, v{HX+j}")
SS, SQ = FG + 10, FG + 11
A(f"v_add_f32 v{SS}, v{FG}, v{FG+1}")
A(f"v_mul_f32 v{SQ}, v{FG}, v{FG}")
A(f"v_add_f32 v{FG+4}, v{FG+2}, v{FG+3}")
A(f"v_fmac_f32 v{SQ}, v{FG+1}, v{FG+1}")
A(f"v_add_f32 v{SS}, v{SS}, v{FG+4}")
A(f"v_fmac_f32 v{SQ}, v{FG+2}, v{FG+2}")
A(f"v_fmac_f32 v{SQ}, v{FG+3}, v{FG+3}")
nop(1)
dpp_steps("v_add_f32", [SS, SQ], ROW_ALL)
swap_steps("v_add_f32", [SS, SQ], [FG + 4, FG + 5], which=(16,))
C("mean_w = c + s/128 ; M2_w = ss - s*s/128")
A(f"v_mul_f32 v{FG+4}, {f2u(1.0/128):#x}, v{SS}")
A(f"v_fma_f32 v{SQ}, -v{FG+4}, v{SS}, v{SQ}")
A(f"v_add_f32 v{SS}, s{S_T2}, v{FG+4}")
A("s_mov_b64 exec, 1")
A(f"ds_write_b64 v{STW}, v[{SS}:{SQ}] offset:{L_STS}")
A("s_mov_b64 exec, -1")
l3, l3e = newlbl("Lst"), newlbl("Lste")
A(f"s_mov_b32 s{S_TO}, {CFG['timeout']}")
L(l3)
A(f"ds_read_b128 v[{FG}:{FG+3}], v{STR} offset:{L_STS}")
A(f"ds_read_b128 v[{FG+4}:{FG+7}], v{STR} offset:{L_STS + 16}")
A(f"s_sub_u32 s{S_TO}, s{S_TO}, 1")
A(f"s_cbranch_scc1 {l3e}")
A("s_waitcnt lgkmcnt(0)")
tree3("v_max3_u32", "v_max_u32", range(FG, FG + 8), TT)
A(f"v_cmp_eq_u32 vcc, -1, v{TT}")
A("s_cmp_lg_u64 vcc, 0")
A(f"s_cbranch_scc1 {l3}")
L(l3e)
A("s_waitcnt lgkmcnt(0)")
MEAN, VAR, TM = FG + 8, FG + 9, FG + 10
A(f"v_add_f32 v{MEAN}, v{FG}, v{FG+2}")
A(f"v_add_f32 v{TM}, v{FG+4}, v{FG+6}")
A(f"v_add_f32 v{VAR}, v{FG+1}, v{FG+3}")
A(f"v_add_f32 v{MEAN}, v{MEAN}, v{TM}")
A(f"v_add_f32 v{TM}, v{FG+5}, v{FG+7}")
A(f"v_mul_f32 v{MEAN}, 0.25, v{MEAN}" if False else f"v_mul_f32 v{MEAN}, {f2u(0.25):#x}, v{MEAN}")
A(f"v_add_f32 v{VAR}, v{VAR}, v{TM}")
for j in range(4):
    A(f"v_sub_f32 v{FG+2*j}, v{FG+2*j}, v{MEAN}")
A(f"v_mul_f32 v{TM}, v{FG}, v{FG}")
for j in range(1, 4):
    A(f"v_fmac_f32 v{TM}, v{FG+2*j}, v{FG+2*j}")
A(f"v_mul_f32 v{VAR}, {f2u(1.0/512):#x}, v{VAR}")
A(f"v_fmac_f32 v{VAR}, {f2u(0.25):#x}, v{TM}")
bf16r(MEAN, MEAN)
bf16r(VAR, VAR)
for j in range(4):
    A(f"v_sub_f32 v{FG+j}, v{HX+j}, v{MEAN}")
A(f"v_add_f32 v{VAR}, {f2u(1e-5):#x}, v{VAR}")
pack(HP + 4, FG, 2)
bf16r(VAR, VAR)
unpack(FG, HP + 4, 2)
A(f"v_sqrt_f32 v{VAR}, v{VAR}")
nop(1)
bf16r(VAR, VAR)
A(f"v_rcp_f32 v{VAR}, v{VAR}")
nop(1)
for j in range(4):
    A(f"v_mul_f32 v{FG+j}, v{FG+j}, v{VAR}")
pack(HP + 4, FG, 2)
A("s_mov_b32 exec_hi, 0")
A(f"ds_write_b64 v{HA}, v[{HP+4}:{HP+5}] offset:{L_HN}")
A("s_mov_b32 exec_hi, -1")
c0 = math.sqrt(2.0 / math.pi)
k0 = -2.0 * c0 * LOG2E
k1 = k0 * 0.044715
A(f"s_mov_b32 s{S_T1}, {f2u(k1):#x}")
A(f"v_mov_b32 v{TT}, {f2u(k0):#x}")
A("s_waitcnt lgkmcnt(0)")
A("s_barrier")
stamp(8)
A(f"s_cmp_ge_u32 s{S_WAVE}, 4")
A("s_cbranch_scc1 L_exit")
for kp in range(4):
    A(f"ds_read_b128 v[{V_Q+4*kp}:{V_Q+4*kp+3}], v{A0} offset:{L_HN + kp*64}")
for kp in range(4):
    A(f"s_waitcnt lgkmcnt({3-kp})")
    for ct in range(2):
        mfma(V_S + 4 * ct, V_WX + (kp * 2 + ct) * 4, V_Q + 4 * kp, None if kp == 0 else V_S + 4 * ct)
nop(6)
set_exec(MASK_N2)
A(f"ds_write_b128 v{A1}, v[{V_S}:{V_S+3}] offset:{L_RED}")
A(f"ds_write_b128 v{A1}, v[{V_S+4}:{V_S+7}] offset:{L_RED + 64}")
A("s_mov_b64 exec, -1")
A("s_waitcnt lgkmcnt(0)")
A("s_barrier")
U = 16
for wp in range(4):
    A(f"ds_read_b32 v{U+wp}, v3 offset:{L_RED + wp*256}")
A("s_waitcnt lgkmcnt(0)")
A(f"v_add_f32 v{U}, v{U}, v{U+1}")
A(f"v_add_f32 v{U+2}, v{U+2}, v{U+3}")
A(f"v_add_f32 v{U}, v{U}, v{U+2}")
bf16r(U, U)
A(f"v_add_f32 v{U}, v{U}, v{V_SM+2}")
bf16r(U, U)
A(f"v_mul_f32 v{U+1}, v{U}, v{U}")
A(f"v_fma_f32 v{U+1}, v{U+1}, s{S_T1}, v{TT}")
A(f"v_mul_f32 v{U+1}, v{U+1}, v{U}")
A(f"v_exp_f32 v{U+1}, v{U+1}")
nop(1)
A(f"v_add_f32 v{U+1}, 1.0, v{U+1}")
A(f"v_rcp_f32 v{U+1}, v{U+1}")
nop(1)
A(f"v_mul_f32 v{U}, v{U}, v{U+1}")
A(f"v_cvt_pk_bf16_f32 v{U}, v{U}, v{U}")
A(f"ds_write_b16 v{A2}, v{U}")
BO = 32
for ct in range(8):
    A(f"ds_read_b128 v[{BO+4*ct}:{BO+4*ct+3}], v{BA+ct}")
YA = 24
for ct in range(8):
    A(f"s_waitcnt lgkmcnt({7-ct})")
    mfma(YA, V_W2 + 4 * ct, BO + 4 * ct, None if ct == 0 else YA)
nop(8)
tag(YA, V_TG)
A(f"buffer_store_dwordx4 v[{YA}:{YA+3}], v{YAD}, {WS}, s{S_Y} offen sc1")
stamp(9)
A("s_branch L_exit")
C("}DRY")
if CFG["dry2"]:
    for r, ret in ((1, "L_kret"), (2, "L_eret"), (3, "L_fret")):
        L(f"L_exit_{r}")
        A("s_cbranch_execnz L_exit")
        A("s_mov_b64 exec, -1")
        A(f"s_branch {ret}")
L("L_exit")
stamp_flush()
L("L_end")
A("s_endpgm")

out.append(f""".section .rodata,"a"
.p2align 6
.amdhsa_kernel {NAME}_kernel
  .amdhsa_next_free_vgpr 168
  .amdhsa_next_free_sgpr 102
  .amdhsa_accum_offset 168
  .amdhsa_group_segment_fixed_size 0
  .amdhsa_kernarg_size 104
  .amdhsa_user_sgpr_count 2
  .amdhsa_user_sgpr_kernarg_segment_ptr 1
  .amdhsa_system_sgpr_workgroup_id_x 1
.end_amdhsa_kernel""")

order = CFG_ORDER
lines = [l for b in order for l in BLK[b]]


def dry_pass(lines):
    res, indry, k = [], False, 0
    i = 0

    def is_mem(t):
        return t.startswith(("buffer_", "global_", "s_load", "s_atomic", "s_barrier"))

    def exec_write(t):
        return t.startswith(("s_mov_b64 exec", "s_mov_b32 exec", "s_and_b64 exec"))

    def restores(t):
        return t in ("s_mov_b64 exec, -1", "s_mov_b32 exec_hi, -1")
    open_span, masked, nd = None, False, False
    for l in lines:
        t = l.strip()
        if t == "; DRY{":
            indry = True
            i += 1
            continue
        if t == "; }DRY":
            assert open_span is None or True
            if open_span:
                res.append(open_span + ":")
                open_span = None
            masked = False
            indry = False
            continue
        if not (indry and CFG["dry2"]):
            if t not in ("; ND{", "; }ND"):
                res.append(l)
            continue
        if t == "; ND{":
            nd = True
            if not open_span:
                k += 1
                open_span = f"L_sk{k}"
                res.append(f"    s_cbranch_execz {open_span}")
            continue
        if t == "; }ND":
            nd = False
            continue
        unsafe = nd or masked or is_mem(t) or exec_write(t)
        if masked and t == "s_branch L_exit":
            unsafe = False
            masked = False
        if t.endswith(" L_exit"):
            l = l + f"_{i}"
        if unsafe:
            if not open_span:
                k += 1
                open_span = f"L_sk{k}"
                res.append(f"    s_cbranch_execz {open_span}")
            res.append(l)
            if exec_write(t):
                masked = not restores(t)
        else:
            if open_span:
                res.append(open_span + ":")
                open_span = None
            res.append(l)
    return res


print("\n".join(dry_pass(lines)))
```

```python
import sys, struct, math

NAME = "sequential_preLN__sliding_block_cached__dense_activation_gelu__decode"

CFG = dict(nt=1, timeout=1 << 18, stamps=0, dual=1, tsleep0=10, tsleep=3, tsleepa=24, qsleep=0, mwin=4, touch=1, bmask=15, fsl=0, g1sl=0, g2sl=0, pf=0, pfw=16, touch2=1, kb0=6, kthm=0, kthn=8, dry=1, dry2=1, dry3=1, korder=0, ktouch=0, tl2=6, qrep=16, qsl=2, wpre=0)
for a in sys.argv[1:]:
    if "=" in a:
        k, v = a.split("=")
        CFG[k] = int(v)
NT = " nt" if CFG["nt"] else ""

WS_Q = 0x00000
RECP = 1152
WS_PNA = 0x10000
WS_PNB = 0x50000
WS_XQA = 0x90000
WS_XQB = 0x80000
WS_AP = 0xA8000
WS_Y = 0xB0000
YP = 4096 + 128
WS_TS = 0xF0000
WS_QR = 0x140000
WS_SIZE = 0x200000

L_QL = 0
L_XN = 0
L_SC = 2048
L_QR = 2048
L_HN = 4096
L_RED = 6144
L_STS = 8192
L_QS = 9216
L_H1 = 9216
L_ZERO = 9728
L_MX = 10240
L_LS = 10368
L_FLAG = 10496
L_TAG = 10512
L_FL2 = 10544
L_DUM = 10560
BIG = 11264
L_K = BIG
L_V = BIG + 65536
L_WQ = BIG
L_WO = BIG + 32768
L_WX = BIG + 32768
L_W2 = BIG + 65536
L_PS = BIG + 98304
PNP = 1040
LDS_BYTES = BIG + 131072

LOG2E = 1.4426950408889634
SCALE = 128 ** -0.5


def f2u(f):
    return struct.unpack("<I", struct.pack("<f", f))[0]


out = []


def A(s):
    out.append("    " + s)


def L(s):
    out.append(s + ":")


def C(s):
    out.append("    ; " + s)


def nop(n):
    while n > 0:
        k = min(n, 16)
        A(f"s_nop {k-1}")
        n -= k


_lbl = [0]


def newlbl(p="L"):
    _lbl[0] += 1
    return f"{p}_{_lbl[0]}"


P_X, P_K, P_V, P_WQ, P_WO, P_BX, P_W1, P_B1, P_W2, P_B2, P_OUT, P_DBG, P_WS = [36 + 2 * i for i in range(13)]
S_WAVE, S_X, S_A, S_B, S_SPL = 3, 4, 5, 6, 7
SRD_WS, SRD_A, SRD_B, SRD_C = 8, 12, 16, 20
S_T0, S_T1, S_T2, S_T3, S_T4, S_T5 = 24, 25, 26, 27, 28, 29
S_TO, S_ROLE, S_SUB, S_NT, S_PNA, S_PNB = 30, 31, 32, 33, 34, 35
S_Q = 36
S_TG = 100
WS = f"s[{SRD_WS}:{SRD_WS+3}]"
SA = f"s[{SRD_A}:{SRD_A+3}]"
SB = f"s[{SRD_B}:{SRD_B+3}]"
SC_ = f"s[{SRD_C}:{SRD_C+3}]"
V_ST = 1
S_DRY = 7
CFG_ORDER = ["head", "qc", "ldr", "gv", "att", "qm2"]
V_MSK = 5


def srd(d, p, size):
    A(f"s_mov_b32 s{d}, s{p}")
    A(f"s_mov_b32 s{d+1}, s{p+1}")
    A(f"s_mov_b32 s{d+2}, {size:#x}")
    A(f"s_mov_b32 s{d+3}, 0x00020000")


GVMODE = [False, False]


def stamp(slot):
    if (not GVMODE[0]) and CFG.get("probe3", -1) == slot and GVMODE[1]:
        l = newlbl("Lpr")
        A(f"s_cmp_lg_u32 s{S_WAVE}, {CFG.get('pw3', 0)}")
        A(f"s_cbranch_scc1 {l}")
        A("s_memrealtime s[0:1]")
        A("s_waitcnt lgkmcnt(0)")
        A(f"s_atomic_umax s0, s[{SRD_A}:{SRD_A+1}], 36")
        L(l)
    if GVMODE[0] and CFG.get("probe4", -1) == slot:
        l = newlbl("Lpr")
        C("ND{")
        A(f"s_cmp_lg_u32 s{S_WAVE}, {CFG['pw']}")
        A(f"s_cbranch_scc1 {l}")
        A(f"s_cmp_lg_u32 s{S_ROLE}, {CFG['prole4']}")
        A(f"s_cbranch_scc1 {l}")
        A("s_memrealtime s[0:1]")
        A("s_waitcnt lgkmcnt(0)")
        A(f"s_atomic_umax s0, s[{P_DBG}:{P_DBG+1}], 36")
        L(l)
        C("}ND")
    if GVMODE[0] and CFG.get("probe2", -1) == slot:
        l = newlbl("Lpr")
        C("ND{")
        A(f"s_cmp_lg_u32 s{S_WAVE}, {CFG['pw']}")
        A(f"s_cbranch_scc1 {l}")
        A(f"s_cmp_lg_u32 s{S_ROLE}, {CFG['prole']}")
        A(f"s_cbranch_scc1 {l}")
        A("s_memrealtime s[0:1]")
        A("s_waitcnt lgkmcnt(0)")
        A(f"s_atomic_umax s0, s[{P_DBG}:{P_DBG+1}], 32")
        L(l)
        C("}ND")
    if CFG.get("probe", -1) == slot:
        A("s_memrealtime s[0:1]")
        A("s_waitcnt lgkmcnt(0)")
        A("s_mov_b32 s7, s0")
    if CFG["stamps"]:
        A("s_memrealtime s[0:1]")
        A("s_waitcnt lgkmcnt(0)")
        A(f"v_writelane_b32 v{V_ST}, s0, {slot}")


def stamp_flush():
    if not CFG["stamps"]:
        return
    if CFG["stamps"] == 2:
        A("s_mov_b64 exec, -1")
        A(f"v_mov_b32 v2, {L_TAG}")
        A("ds_read_b32 v3, v2")
        A("s_waitcnt lgkmcnt(0)")
        A(f"v_sub_u32 v3, v{V_ST}, v3")
        A("v_max_i32 v3, 0, v3")
        A("v_lshlrev_b32 v2, 2, v0")
        A("v_add_co_u32 v166, vcc, v166, v2")
        A("v_addc_co_u32 v167, vcc, 0, v167, vcc")
        A(f"v_cmp_ne_u32 vcc, 0, v{V_ST}")
        A("s_bitcmp1_b32 vcc_lo, 11")
        A("s_cbranch_scc0 L_end")
        A("s_and_b64 exec, vcc, 0x1fff")
        A("s_cbranch_execz L_end")
        A("global_atomic_umax v[166:167], v3, off offset:8")
        return
    A("s_mov_b64 exec, -1")
    A("s_lshl_b32 s0, s2, 10")
    A(f"s_lshl_b32 s1, s{S_WAVE}, 6")
    A("s_add_u32 s0, s0, s1")
    A(f"s_add_u32 s0, s0, {WS_TS}")
    A("v_lshlrev_b32 v2, 2, v0")
    A("s_mov_b64 exec, 0xffff")
    A(f"buffer_store_dword v{V_ST}, v2, {WS}, s0 offen")


def dpp_steps(op, regs, ctrls):
    for c in ctrls:
        pad = max(0, 2 - (len(regs) - 1))
        if pad:
            nop(pad)
        for r in regs:
            A(f"{op}_dpp v{r}, v{r}, v{r} {c} row_mask:0xf bank_mask:0xf")


ROW_ALL = ["quad_perm:[1,0,3,2]", "quad_perm:[2,3,0,1]", "row_half_mirror", "row_mirror"]
ROW_HI = ["row_ror:4", "row_ror:8"]


def swap_steps(op, regs, tmps, which=(16, 32)):
    for wd in which:
        sw = f"v_permlane{wd}_swap_b32"
        for r, t in zip(regs, tmps):
            A(f"v_mov_b32 v{t}, v{r}")
        pad = max(0, 2 - (len(regs) - 1))
        if pad:
            nop(pad)
        for r, t in zip(regs, tmps):
            A(f"{sw} v{r}, v{t}")
        for r, t in zip(regs, tmps):
            A(f"{op} v{r}, v{r}, v{t}")


def allreduce(op, regs, tmps):
    nop(2)
    dpp_steps(op, regs, ROW_ALL)
    swap_steps(op, regs, tmps)


def lds_wait(flag_off, vt, va, sleep=0):
    l, e = newlbl("Lw"), newlbl("Lwe")
    A(f"v_mov_b32 v{va}, {flag_off}")
    A(f"s_mov_b32 s{S_TO}, {CFG['timeout']}")
    L(l)
    if sleep:
        A(f"s_sleep {sleep}")
    A(f"ds_read_b32 v{vt}, v{va}")
    A(f"s_sub_u32 s{S_TO}, s{S_TO}, 1")
    A(f"s_cbranch_scc1 {e}")
    A("s_waitcnt lgkmcnt(0)")
    A(f"v_readfirstlane_b32 s{S_T0}, v{vt}")
    A(f"s_cmp_eq_u32 s{S_T0}, 0")
    A(f"s_cbranch_scc1 {l}")
    L(e)
    A("s_waitcnt lgkmcnt(0)")


def lds_set(flag_off, vt, va):
    A("s_waitcnt lgkmcnt(0)")
    A(f"v_mov_b32 v{va}, {flag_off}")
    A(f"v_mov_b32 v{vt}, 1")
    A(f"ds_write_b32 v{va}, v{vt}")


def lds_sync(cnt_off, n, vt, va):
    l, e = newlbl("Ls"), newlbl("Lse")
    A(f"v_mov_b32 v{va}, {cnt_off}")
    A(f"v_mov_b32 v{vt}, 1")
    A("s_mov_b64 exec, 1")
    A(f"ds_add_u32 v{va}, v{vt}")
    A("s_mov_b64 exec, -1")
    A(f"s_mov_b32 s{S_TO}, {CFG['timeout']}")
    L(l)
    A(f"ds_read_b32 v{vt}, v{va}")
    A(f"s_sub_u32 s{S_TO}, s{S_TO}, 1")
    A(f"s_cbranch_scc1 {e}")
    A("s_waitcnt lgkmcnt(0)")
    A(f"v_readfirstlane_b32 s{S_T0}, v{vt}")
    A(f"s_cmp_lt_u32 s{S_T0}, {n}")
    A(f"s_cbranch_scc1 {l}")
    L(e)
    A("s_waitcnt lgkmcnt(0)")


def tree3(op3, op2, regs, t):
    regs = list(regs)
    A(f"{op3} v{t}, v{regs[0]}, v{regs[1]}, v{regs[2]}")
    i = 3
    while i + 1 < len(regs):
        A(f"{op3} v{t}, v{t}, v{regs[i]}, v{regs[i+1]}")
        i += 2
    if i < len(regs):
        A(f"{op2} v{t}, v{t}, v{regs[i]}")


def tag(quad, tg):
    for j in range(4):
        A(f"v_add_u32 v{quad+j}, 0x200, v{quad+j}")
    for j in range(4):
        A(f"v_bfi_b32 v{quad+j}, v{V_MSK}, v{tg+j}, v{quad+j}")


def tpoll(loads, regs, t, tg, sleep=0):
    l, e = newlbl("Lt"), newlbl("Lte")
    regs = list(regs)
    A(f"s_mov_b32 s{S_TO}, {CFG['timeout']}")
    L(l)
    if sleep:
        A(f"s_sleep {sleep}")
    loads()
    A(f"s_sub_u32 s{S_TO}, s{S_TO}, 1")
    A(f"s_cbranch_scc1 {e}")
    A("s_waitcnt vmcnt(0)")
    for i, r in enumerate(regs):
        A(f"v_xor_b32 v{r}, v{r}, v{tg + (i & 3)}")
    tree3("v_or3_b32", "v_or_b32", regs, t)
    A(f"v_and_b32 v{t}, v{V_MSK}, v{t}")
    A(f"v_cmp_ne_u32 vcc, 0, v{t}")
    A("s_cmp_lg_u64 vcc, 0")
    A(f"s_cbranch_scc1 {l}")
    L(e)
    A("s_waitcnt vmcnt(0)")


def tpoll2(loads, nld, bases, nreg, t, tg, consume):
    l, eA, eB, done = newlbl("Lu"), newlbl("LuA"), newlbl("LuB"), newlbl("Lud")

    def check(base, target):
        A(f"s_waitcnt vmcnt({nld})")
        regs = list(range(base, base + nreg))
        for i, r in enumerate(regs):
            A(f"v_xor_b32 v{r}, v{r}, v{tg + (i & 3)}")
        tree3("v_or3_b32", "v_or_b32", regs, t)
        A(f"v_and_b32 v{t}, v{V_MSK}, v{t}")
        A(f"v_cmp_ne_u32 vcc, 0, v{t}")
        A("s_cmp_eq_u64 vcc, 0")
        A(f"s_cbranch_scc1 {target}")
    A(f"s_mov_b32 s{S_TO}, {CFG['timeout']}")
    loads(bases[0])
    L(l)
    loads(bases[1])
    check(bases[0], eA)
    loads(bases[0])
    check(bases[1], eB)
    A(f"s_sub_u32 s{S_TO}, s{S_TO}, 1")
    A(f"s_cbranch_scc0 {l}")
    A("s_waitcnt vmcnt(0)")
    L(eA)
    consume(bases[0])
    A(f"s_branch {done}")
    L(eB)
    consume(bases[1])
    L(done)


def bf16r(dst, src):
    A(f"v_cvt_pk_bf16_f32 v{dst}, v{src}, v{src}")
    A(f"v_lshlrev_b32 v{dst}, 16, v{dst}")


def unpack(dst, src, n):
    for i in range(n):
        A(f"v_lshlrev_b32 v{dst+2*i}, 16, v{src+i}")
        A(f"v_and_b32 v{dst+2*i+1}, 0xffff0000, v{src+i}")


def pack(dst, src, n):
    for i in range(n):
        A(f"v_cvt_pk_bf16_f32 v{dst+i}, v{src+2*i}, v{src+2*i+1}")


def layernorm(xs, nb, tmp, outp):
    s = [tmp + i for i in range(nb)]
    q = [tmp + nb + i for i in range(nb)]
    t = [tmp + 2 * nb + i for i in range(nb)]
    mb = [tmp + 3 * nb + i for i in range(nb)]
    d = [tmp + 4 * nb + 8 * i for i in range(nb)]
    for i in range(nb):
        x = xs[i]
        A(f"v_add_f32 v{s[i]}, v{x}, v{x+1}")
        A(f"v_add_f32 v{t[i]}, v{x+2}, v{x+3}")
        A(f"v_add_f32 v{q[i]}, v{x+4}, v{x+5}")
        A(f"v_add_f32 v{mb[i]}, v{x+6}, v{x+7}")
        A(f"v_add_f32 v{s[i]}, v{s[i]}, v{t[i]}")
        A(f"v_add_f32 v{q[i]}, v{q[i]}, v{mb[i]}")
        A(f"v_add_f32 v{s[i]}, v{s[i]}, v{q[i]}")
    allreduce("v_add_f32", s, t)
    for i in range(nb):
        A(f"v_mul_f32 v{s[i]}, {f2u(1.0/512):#x}, v{s[i]}")
    for i in range(nb):
        x = xs[i]
        for j in range(8):
            A(f"v_sub_f32 v{d[i]+j}, v{x+j}, v{s[i]}")
        A(f"v_mul_f32 v{q[i]}, v{d[i]}, v{d[i]}")
        for j in range(1, 8):
            A(f"v_fmac_f32 v{q[i]}, v{d[i]+j}, v{d[i]+j}")
        bf16r(mb[i], s[i])
    nop(2)
    dpp_steps("v_add_f32", q, ROW_ALL)
    for i in range(nb):
        x = xs[i]
        for j in range(8):
            A(f"v_sub_f32 v{d[i]+j}, v{x+j}, v{mb[i]}")
        pack(outp[i], d[i], 4)
        unpack(d[i], outp[i], 4)
    swap_steps("v_add_f32", q, t)
    for i in range(nb):
        A(f"v_mul_f32 v{q[i]}, {f2u(1.0/512):#x}, v{q[i]}")
        bf16r(q[i], q[i])
        A(f"v_add_f32 v{q[i]}, {f2u(1e-5):#x}, v{q[i]}")
        bf16r(q[i], q[i])
        A(f"v_sqrt_f32 v{q[i]}, v{q[i]}")
        nop(1)
        bf16r(q[i], q[i])
        A(f"v_rcp_f32 v{q[i]}, v{q[i]}")
    nop(1)
    for i in range(nb):
        for j in range(8):
            A(f"v_mul_f32 v{d[i]+j}, v{d[i]+j}, v{q[i]}")
        pack(outp[i], d[i], 4)


def mfma(d, a, b, c=None):
    cc = f"v[{c}:{c+3}]" if c is not None else "0"
    A(f"v_mfma_f32_16x16x32_bf16 v[{d}:{d+3}], v[{a}:{a+3}], v[{b}:{b+3}], {cc}")


MASK_N2 = 0x0003000300030003
MASK_N4 = 0x000f000f000f000f


def set_exec(mask):
    A(f"s_mov_b32 exec_lo, {mask & 0xffffffff:#x}")
    A(f"s_mov_b32 exec_hi, {mask >> 32:#x}")


def tag_poll(sleep0, sel, barrier=False):
    lt, lte = newlbl(), newlbl()
    A(f"s_and_b32 s{S_T1}, s{sel}, 3")
    A(f"s_lshl_b32 s{S_T1}, s{S_T1}, 6")
    A(f"s_mov_b32 s{S_TO}, {CFG['timeout']}")
    if sleep0:
        A(f"s_sleep {sleep0}")
    if CFG["tl2"]:
        C("first attempts through the caches, one replica line each (a line is never re-read that way)")
        for r in range(4):
            A(f"s_load_dwordx2 s[{S_TG}:{S_TG+1}], s[{P_DBG}:{P_DBG+1}], {64*r}")
            A("s_waitcnt lgkmcnt(0)")
            A(f"s_cmp_lg_u32 s{S_TG+1}, 0")
            A(f"s_cbranch_scc1 {lte}")
            A(f"s_sleep {CFG['tl2']}")
    L(lt)
    A(f"s_load_dwordx2 s[{S_TG}:{S_TG+1}], s[{P_DBG}:{P_DBG+1}], s{S_T1} glc")
    A(f"s_sub_u32 s{S_TO}, s{S_TO}, 1")
    A(f"s_cbranch_scc1 {lte}")
    A("s_waitcnt lgkmcnt(0)")
    A(f"s_cmp_lg_u32 s{S_TG+1}, 0")
    A(f"s_cbranch_scc1 {lte}")
    A(f"s_sleep {CFG['tsleep']}")
    A(f"s_branch {lt}")
    L(lte)
    A("s_waitcnt lgkmcnt(0)")
    A(f"v_mov_b32 v100, s{S_TG}")
    A(f"v_mov_b32 v101, s{S_TG+1}")
    A("v_and_b32 v104, 0x3ff, v100")
    A("v_bfe_u32 v105, v100, 10, 10")
    A("v_bfe_u32 v106, v100, 20, 10")
    A("v_alignbit_b32 v107, v101, v100, 30")
    A("v_and_b32 v107, 0x3ff, v107")
    A(f"v_mov_b32 v102, {L_TAG}")
    if barrier == 1:
        A("s_barrier")
    A("ds_write_b64 v102, v[100:101]")
    A("ds_write_b128 v102, v[104:107] offset:16")
    if barrier == 2:
        A("s_waitcnt lgkmcnt(0)")
    else:
        lds_set(L_FLAG, 100, 101)


XNT = ' nt' if CFG.get('xnt', 0) else ''
out.append(f"""; fused pre-LN attention(decode, sliding window) + gelu MLP, one persistent launch (generated by gen/gen16.py)
; @launch grid=(256,1,1) block=(640,1,1) lds={LDS_BYTES}
.amdgcn_target "amdgcn-amd-amdhsa--gfx950"
.text
.globl {NAME}_kernel
.p2align 8
.type {NAME}_kernel,@function
{NAME}_kernel:""")

BLK = {"head": out}


def begin(name):
    global out
    BLK[name] = []
    out = BLK[name]


def post_entry():
    A("s_waitcnt lgkmcnt(0)")
    srd(SRD_WS, P_WS, WS_SIZE)
    if CFG["stamps"] == 2:
        A(f"v_mov_b32 v166, s{P_DBG}")
        A(f"v_mov_b32 v167, s{P_DBG+1}")
    stamp(0)


def att_common():
    A(f"s_sub_u32 s{S_A}, s{S_A}, 16")
    A(f"s_lshr_b32 s{S_B}, s{S_A}, 3")
    A(f"s_lshl_b32 s{S_T0}, s{S_X}, 4")
    A(f"s_add_u32 s{S_T0}, s{S_T0}, s{S_A}")
    A(f"s_mul_i32 s{S_T0}, s{S_T0}, {RECP}")
    A(f"s_add_u32 s{S_PNA}, s{S_T0}, {WS_PNA}")
    A(f"s_add_u32 s{S_PNB}, s{S_T0}, {WS_PNB}")


def gv_common():
    A(f"s_mul_i32 s{S_SUB}, s{S_X}, 7")
    A(f"s_add_u32 s{S_SUB}, s{S_SUB}, s{S_A}")
    A(f"s_sub_u32 s{S_SUB}, s{S_SUB}, 8")
    A(f"s_mov_b32 s{S_ROLE}, 2")
    A(f"s_cmp_lt_u32 s{S_A}, 8")
    A(f"s_cselect_b32 s{S_ROLE}, 1, s{S_ROLE}")
    A(f"s_cselect_b32 s{S_SUB}, s{S_A}, s{S_SUB}")
    A(f"s_cmp_eq_u32 s{S_A}, 15")
    A(f"s_cselect_b32 s{S_ROLE}, 0, s{S_ROLE}")


def zero_flags():
    for j in range(4):
        A(f"v_mov_b32 v{12+j}, 0")
    A(f"v_mov_b32 v3, {L_FLAG}")
    A("ds_write_b128 v3, v[12:15]")
    A(f"ds_write_b128 v3, v[12:15] offset:{L_FL2 - L_FLAG}")


if CFG.get("probe", -1) == 15:
    A("s_memrealtime s[6:7]")
    A("s_waitcnt lgkmcnt(0)")
    A("s_mov_b32 s7, s6")
A("s_cmp_ge_u32 s2, 256")
A("s_cbranch_scc1 L_end")
A("s_load_dwordx16 s[36:51], s[0:1], 0")
A("s_load_dwordx8 s[52:59], s[0:1], 64")
A("s_load_dwordx2 s[60:61], s[0:1], 96")
A("v_lshrrev_b32 v1, 6, v0")
A("v_and_b32 v0, 63, v0")
A(f"s_and_b32 s{S_X}, s2, 7")
A(f"v_readfirstlane_b32 s{S_WAVE}, v1")
A(f"s_lshr_b32 s{S_A}, s2, 3")
if CFG["pf"]:
    C("early workgroups: waves 0..5 pull the kernel's code into L2 (striped)")
    A(f"s_cmp_ge_u32 s{S_WAVE}, 5")
    A("s_cbranch_scc1 L_pfe")
    A(f"s_cmp_ge_u32 s{S_A}, {CFG['pfw']}")
    A("s_cbranch_scc1 L_pfe")
    A("s_getpc_b64 s[24:25]")
    L("L_pcref")
    A(f"s_lshl_b32 s26, s{S_WAVE}, 7")
    L("L_pf")
    A("s_load_dword s27, s[24:25], s26")
    A("s_add_u32 s26, s26, 640")
    A("s_cmp_lt_u32 s26, L_end-L_pcref")
    A("s_cbranch_scc1 L_pf")
    L("L_pfe")
A("v_lshlrev_b32 v2, 4, v0")
A("v_lshrrev_b32 v4, 4, v0")
A(f"v_mov_b32 v{V_MSK}, 0x3ff")
A("v_and_b32 v6, 15, v0")
A("v_lshrrev_b32 v8, 3, v0")
A("v_bfe_u32 v9, v0, 1, 2")
A("v_and_b32 v10, 1, v0")
A("v_lshlrev_b32 v11, 5, v8")
A("v_lshl_add_u32 v11, v10, 4, v11")
if CFG["stamps"]:
    A(f"v_mov_b32 v{V_ST}, 0")
C("dispatch before waiting for the kernel arguments")
A(f"s_lshr_b32 s{S_T0}, s{S_A}, 4")
A(f"s_lshl_b32 s{S_T0}, s{S_T0}, 4")
A(f"s_or_b32 s{S_T0}, s{S_T0}, s{S_WAVE}")
A(f"s_cmp_ge_u32 s{S_T0}, 24")
A("s_cbranch_scc1 L_ldr")
A(f"s_cmp_ge_u32 s{S_T0}, 16")
A("s_cbranch_scc1 L_att")
if CFG["dry"]:
    A(f"s_cmp_lg_u32 s{S_T0}, 5")
    A("s_cbranch_scc1 L_nd")
    C("wave 5 walks the q wave's register/LDS code with EXEC=0 to warm the instruction cache")
    A("s_mov_b64 exec, 0")
    A("s_branch L_dry")
    L("L_nd")
A(f"s_cmp_lg_u32 s{S_T0}, 6")
A("s_cbranch_scc1 L_GV")

V_K = 16
V_Q = 48
V_S = 64
V_SM = 72
V_PNA = 80
V_T = 84
V_TG = 124
V_G = 128

begin("att")
L("L_att")
att_common()
post_entry()
srd(SRD_C, P_OUT, 2048)
srd(SRD_A, P_DBG, 256)
A(f"s_lshl_b32 s{S_T1}, s{S_WAVE}, 8")
A(f"s_add_u32 s{S_PNA}, s{S_PNA}, s{S_T1}")
A(f"s_add_u32 s{S_PNB}, s{S_PNB}, s{S_T1}")
A(f"v_lshlrev_b32 v{V_PNA}, 6, v6")
A(f"v_lshl_add_u32 v{V_PNA}, v4, 4, v{V_PNA}")
C("G role: even a -> gi = x*8 + a/2 (wave 0)")
A(f"s_lshl_b32 s{S_T0}, s{S_X}, 3")
A(f"s_lshr_b32 s{S_T1}, s{S_A}, 1")
A(f"s_add_u32 s{S_SUB}, s{S_T0}, s{S_T1}")
A(f"s_and_b32 s{S_ROLE}, s{S_A}, 1")
A(f"s_or_b32 s{S_ROLE}, s{S_ROLE}, s{S_WAVE}")
A(f"s_cmp_lg_u32 s{S_ROLE}, 0")
A("s_cbranch_scc1 L_nogsm")
srd(SRD_B, P_X, 2048)
A(f"v_and_b32 v{V_T}, 3, v0")
A(f"v_lshlrev_b32 v{V_T}, 3, v{V_T}")
A(f"s_lshl_b32 s{S_T0}, s{S_SUB}, 5")
A(f"buffer_load_dwordx2 v[{V_SM}:{V_SM+1}], v{V_T}, {SB}, s{S_T0} offen{XNT}")
if CFG["touch2"]:
    A(f"buffer_load_dwordx2 v[{V_SM+4}:{V_SM+5}], v{V_T}, {SC_}, s{S_T0} offen")
srd(SRD_B, P_B2, 1024)
A(f"s_and_b32 s{S_T0}, s{S_T0}, 1023")
A(f"buffer_load_dwordx2 v[{V_SM+2}:{V_SM+3}], v{V_T}, {SB}, s{S_T0} offen{XNT}")
L("L_nogsm")
C("pre-touch this wave's q lines so that they are resident at the memory side")
A(f"s_lshl_b32 s{S_T1}, s{S_X}, 12")
A(f"s_lshl_b32 s{S_T2}, s{S_B}, 11")
A(f"s_add_u32 s{S_T1}, s{S_T1}, s{S_T2}")
A(f"s_lshl_b32 s{S_T2}, s{S_WAVE}, 8")
A(f"s_add_u32 s{S_T1}, s{S_T1}, s{S_T2}")
A(f"s_add_u32 s{S_T2}, s{SRD_WS}, s{S_T1}")
A(f"s_addc_u32 s{S_T3}, s{SRD_WS+1}, 0")
if CFG["touch"]:
    for i in range(4):
        A(f"s_load_dword s{64+i}, s[{S_T2}:{S_T3}], {WS_Q + 64*i} glc")
C("K fragment addresses: K + w*8192 + m*256 + ((4k+g)^m)*16")
KA = V_T + 36
A(f"s_lshl_b32 s{S_T0}, s{S_WAVE}, 13")
A(f"s_add_u32 s{S_T0}, s{S_T0}, {L_K}")
for kp in range(4):
    A(f"v_add_u32 v{KA+kp}, {4*kp}, v4")
    A(f"v_xor_b32 v{KA+kp}, v{KA+kp}, v6")
    A(f"v_lshlrev_b32 v{KA+kp}, 4, v{KA+kp}")
    A(f"v_lshl_add_u32 v{KA+kp}, v6, 8, v{KA+kp}")
    A(f"v_add_u32 v{KA+kp}, s{S_T0}, v{KA+kp}")
A(f"s_cmp_lg_u32 s{S_WAVE}, 7")
A("s_cbranch_scc1 L_ntp")
tag_poll(CFG["tsleepa"], S_A, barrier=2)
L("L_ntp")
A("s_barrier")
A(f"v_mov_b32 v{V_T}, 0")
A(f"ds_read_b64 v[{V_T+2}:{V_T+3}], v{V_T} offset:{L_TAG}")
A(f"ds_read_b128 v[{V_TG}:{V_TG+3}], v{V_T} offset:{L_TAG + 16}")
A("s_waitcnt lgkmcnt(0)")
A(f"v_readfirstlane_b32 s{S_TG}, v{V_T+2}")
A(f"v_readfirstlane_b32 s{S_TG+1}, v{V_T+3}")
stamp(1)
S2 = V_T + 4
PK = V_T + 12
MM = V_T + 16
TT = V_T + 20
EX = V_T + 24
QA = V_T + 1
A(f"s_lshl_b32 s{S_T0}, s{S_WAVE}, 7")
A(f"v_lshl_add_u32 v{QA}, v0, 2, s{S_T0}")
A(f"v_and_b32 v{V_T+2}, 3, v0")
A(f"v_lshlrev_b32 v{V_T+3}, 8, v{V_T+2}")
A(f"v_lshl_add_u32 v{V_T+3}, v4, 4, v{V_T+3}")
A(f"s_lshl_b32 s{S_T0}, s{S_WAVE}, 2")
A(f"v_lshl_add_u32 v{TT+2}, v0, 5, s{S_T0}")
A(f"v_lshlrev_b32 v{TT+3}, 5, v{V_T+2}")
C("---- scalar gather of q: this wave's 256 bytes (16 granules {d0,d1,T0,T1})")
lq, lqe, lqk = newlbl("Lq"), newlbl("Lqe"), newlbl("Lqk")
stamp(12)


def k_frags():
    for kp in range(4):
        for tt in range(2):
            r = V_K + (tt * 4 + kp) * 4
            A(f"ds_read_b128 v[{r}:{r+3}], v{KA+kp} offset:{tt*4096}")


A(f"v_mov_b32 v{TT}, {L_FLAG + 4}")
A(f"s_mov_b32 s{S_NT}, 0")
A(f"s_mov_b32 s{S_TO}, {CFG['timeout']}")
L(lq)
for i in range(4):
    A(f"s_load_dwordx16 s[{S_Q+16*i}:{S_Q+16*i+15}], s[{S_T2}:{S_T3}], {WS_Q + 64*i} glc")
A(f"ds_read_b32 v{TT+1}, v{TT}")
A(f"s_sub_u32 s{S_TO}, s{S_TO}, 1")
A(f"s_cbranch_scc1 {lqe}")
A("s_waitcnt lgkmcnt(0)")
A(f"v_readfirstlane_b32 s{S_T0}, v{TT+1}")
A(f"s_andn2_b32 s{S_T0}, s{S_T0}, s{S_NT}")
A(f"s_cbranch_scc0 {lqk}")
A(f"s_mov_b32 s{S_NT}, 1")
k_frags()
L(lqk)
A(f"s_and_b64 s[{S_T4}:{S_T5}], s[{S_Q+2}:{S_Q+3}], s[{S_Q+6}:{S_Q+7}]")
A(f"s_or_b64 s[{S_T0}:{S_T1}], s[{S_Q+2}:{S_Q+3}], s[{S_Q+6}:{S_Q+7}]")
for gq in range(2, 16):
    A(f"s_and_b64 s[{S_T4}:{S_T5}], s[{S_T4}:{S_T5}], s[{S_Q+4*gq+2}:{S_Q+4*gq+3}]")
    A(f"s_or_b64 s[{S_T0}:{S_T1}], s[{S_T0}:{S_T1}], s[{S_Q+4*gq+2}:{S_Q+4*gq+3}]")
A(f"s_xor_b64 s[{S_T4}:{S_T5}], s[{S_T4}:{S_T5}], s[{S_TG}:{S_TG+1}]")
A(f"s_xor_b64 s[{S_T0}:{S_T1}], s[{S_T0}:{S_T1}], s[{S_TG}:{S_TG+1}]")
A(f"s_or_b64 s[{S_T4}:{S_T5}], s[{S_T4}:{S_T5}], s[{S_T0}:{S_T1}]")
A(f"s_cbranch_scc1 {lq}")
L(lqe)
A("s_waitcnt lgkmcnt(0)")
stamp(8)
if CFG["stamps"] == 1:
    A(f"s_sub_u32 s0, {CFG['timeout']}, s{S_TO}")
    A(f"v_writelane_b32 v{V_ST}, s0, 9")
for gq in range(16):
    A(f"v_writelane_b32 v{V_T}, s{S_Q+4*gq}, {2*gq}")
    A(f"v_writelane_b32 v{V_T}, s{S_Q+4*gq+1}, {2*gq+1}")
A("s_mov_b32 exec_hi, 0")
A(f"ds_write_b32 v{QA}, v{V_T} offset:{L_QL}")
A("s_mov_b32 exec_hi, -1")
A(f"s_cmp_lg_u32 s{S_NT}, 0")
A("s_cbranch_scc1 L_kok")
lds_wait(L_FLAG + 4, V_T, TT, sleep=1)
k_frags()
L("L_kok")
C("poll the q operand itself (LDS sentinel)")
l1, l1e = newlbl("Lqo"), newlbl("Lqoe")
A(f"s_mov_b32 s{S_TO}, {CFG['timeout']}")
L(l1)
for kp in range(4):
    A(f"ds_read_b128 v[{V_Q+4*kp}:{V_Q+4*kp+3}], v{V_T+3} offset:{L_QL + kp*64}")
A(f"s_sub_u32 s{S_TO}, s{S_TO}, 1")
A(f"s_cbranch_scc1 {l1e}")
A("s_waitcnt lgkmcnt(0)")
tree3("v_max3_u32", "v_max_u32", range(V_Q, V_Q + 16), TT)
A(f"v_cmp_eq_u32 vcc, -1, v{TT}")
A("s_cmp_lg_u64 vcc, 0")
A(f"s_cbranch_scc1 {l1}")
L(l1e)
A("s_waitcnt lgkmcnt(0)")
for kp in range(4):
    for tt in range(2):
        mfma(V_S + 4 * tt, V_K + (tt * 4 + kp) * 4, V_Q + 4 * kp, None if kp == 0 else V_S + 4 * tt)
stamp(2)
A(f"v_mov_b32 v{EX}, {f2u(SCALE):#x}")
A(f"v_mov_b32 v{EX+1}, {f2u(SCALE):#x}")
A(f"s_mov_b32 s{S_T1}, {f2u(LOG2E):#x}")
nop(5)
pack(PK, V_S, 4)
unpack(S2, PK, 4)
for j in range(0, 8, 2):
    A(f"v_pk_mul_f32 v[{S2+j}:{S2+j+1}], v[{S2+j}:{S2+j+1}], v[{EX}:{EX+1}]")
pack(PK, S2, 4)
unpack(S2, PK, 4)
A(f"v_max3_f32 v{MM}, v{S2}, v{S2+1}, v{S2+2}")
A(f"v_max3_f32 v{MM}, v{MM}, v{S2+3}, v{S2+4}")
A(f"v_max3_f32 v{MM}, v{MM}, v{S2+5}, v{S2+6}")
A(f"v_max_f32 v{MM}, v{MM}, v{S2+7}")
swap_steps("v_max_f32", [MM], [TT])
A("s_mov_b64 exec, 15")
A(f"ds_write_b32 v{TT+2}, v{MM} offset:{L_MX}")
A("s_mov_b64 exec, -1")
for j in range(8):
    A(f"v_mul_f32 v{S2+j}, s{S_T1}, v{S2+j}")
l2, l2e = newlbl("Lmx"), newlbl("Lmxe")
A(f"s_mov_b32 s{S_TO}, {CFG['timeout']}")
L(l2)
A(f"ds_read_b128 v[{EX}:{EX+3}], v{TT+3} offset:{L_MX}")
A(f"ds_read_b128 v[{EX+4}:{EX+7}], v{TT+3} offset:{L_MX + 16}")
A(f"s_sub_u32 s{S_TO}, s{S_TO}, 1")
A(f"s_cbranch_scc1 {l2e}")
A("s_waitcnt lgkmcnt(0)")
tree3("v_max3_u32", "v_max_u32", range(EX, EX + 8), TT)
tree3("v_max3_f32", "v_max_f32", range(EX, EX + 8), MM)
A(f"v_cmp_eq_u32 vcc, -1, v{TT}")
A("s_cmp_lg_u64 vcc, 0")
A(f"s_cbranch_scc1 {l2}")
L(l2e)
A("s_waitcnt lgkmcnt(0)")
A(f"v_mul_f32 v{MM}, s{S_T1}, v{MM}")
for j in range(8):
    A(f"v_sub_f32 v{EX+j}, v{S2+j}, v{MM}")
for j in range(8):
    A(f"v_exp_f32 v{EX+j}, v{EX+j}")
A(f"s_lshl_b32 s{S_T0}, s{S_WAVE}, 10")
A(f"v_add_u32 v{TT}, s{S_T0}, v2")
pack(PK, EX, 4)
A(f"ds_write_b128 v{TT}, v[{PK}:{PK+3}] offset:{L_SC}")
A(f"v_add_f32 v{MM+1}, v{EX}, v{EX+1}")
A(f"v_add_f32 v{TT}, v{EX+2}, v{EX+3}")
A(f"v_add_f32 v{TT+1}, v{EX+4}, v{EX+5}")
A(f"v_add_f32 v{EX}, v{EX+6}, v{EX+7}")
A(f"v_add_f32 v{MM+1}, v{MM+1}, v{TT}")
A(f"v_add_f32 v{EX}, v{EX}, v{TT+1}")
A(f"v_add_f32 v{MM+1}, v{MM+1}, v{EX}")
swap_steps("v_add_f32", [MM + 1], [TT])
A("s_mov_b64 exec, 15")
A(f"ds_write_b32 v{TT+2}, v{MM+1} offset:{L_LS}")
A("s_mov_b64 exec, -1")
stamp(3)
VA0, VA1, VB0, VB1 = V_T + 32, V_T + 33, V_T + 34, V_T + 35


def vw2_addr():
    A(f"v_lshlrev_b32 v{VA0}, 10, v4")
    A(f"v_lshl_add_u32 v{VA0}, v6, 3, v{VA0}")
    A(f"v_and_b32 v{VA1}, 1, v4")
    A(f"v_lshl_add_u32 v{VA0}, v{VA1}, 7, v{VA0}")
    A(f"v_xor_b32 v{VA1}, 128, v{VA0}")


vw2_addr()
A(f"s_lshl_b32 s{S_T0}, s{S_WAVE}, 8")
A(f"s_add_u32 s{S_T0}, s{S_T0}, {L_V}")
A(f"v_add_u32 v{VB0}, s{S_T0}, v{VA0}")
A(f"v_add_u32 v{VB1}, s{S_T0}, v{VA1}")
A(f"s_cmp_gt_u32 s{S_WAVE}, 4")
A("s_cbranch_scc1 L_exit")
A(f"v_mov_b32 v{V_T+1}, {L_FLAG + 8}")
A(f"s_mov_b32 s{S_NT}, 0")


def wait_progress(n):
    l, ok = newlbl("Lvp"), newlbl("Lvo")
    A(f"s_cmp_ge_u32 s{S_NT}, {n}")
    A(f"s_cbranch_scc1 {ok}")
    A(f"s_mov_b32 s{S_TO}, {CFG['timeout']}")
    L(l)
    A(f"ds_read_b32 v{V_T}, v{V_T+1}")
    A(f"s_sub_u32 s{S_TO}, s{S_TO}, 1")
    A(f"s_cbranch_scc1 {ok}")
    A("s_waitcnt lgkmcnt(0)")
    A(f"v_readfirstlane_b32 s{S_NT}, v{V_T}")
    A(f"s_cmp_lt_u32 s{S_NT}, {n}")
    A(f"s_cbranch_scc1 {l}")
    L(ok)


A(f"s_cmp_lt_u32 s{S_WAVE}, 4")
A("s_cbranch_scc1 L_pv")
C("---- wave 4: publish stats {m,l,T0,T1} per head (lanes 0..3) once all l are in and the PN clears completed")
wait_progress(1)
A(f"v_mov_b32 v{MM+2}, s{S_TG}")
A(f"v_mov_b32 v{MM+3}, s{S_TG+1}")
l4, l4e = newlbl("Lls"), newlbl("Llse")
A(f"s_mov_b32 s{S_TO}, {CFG['timeout']}")
L(l4)
A(f"ds_read_b128 v[{EX}:{EX+3}], v{TT+3} offset:{L_LS}")
A(f"ds_read_b128 v[{EX+4}:{EX+7}], v{TT+3} offset:{L_LS + 16}")
A(f"s_sub_u32 s{S_TO}, s{S_TO}, 1")
A(f"s_cbranch_scc1 {l4e}")
A("s_waitcnt lgkmcnt(0)")
tree3("v_max3_u32", "v_max_u32", range(EX, EX + 8), TT)
A(f"v_cmp_eq_u32 vcc, -1, v{TT}")
A("s_cmp_lg_u64 vcc, 0")
A(f"s_cbranch_scc1 {l4}")
L(l4e)
A("s_waitcnt lgkmcnt(0)")
for j in range(4):
    A(f"v_add_f32 v{EX+j}, v{EX+j}, v{EX+4+j}")
A(f"v_add_f32 v{EX}, v{EX}, v{EX+1}")
A(f"v_add_f32 v{EX+2}, v{EX+2}, v{EX+3}")
A(f"v_add_f32 v{MM+1}, v{EX}, v{EX+2}")
A("s_mov_b64 exec, 15")
if CFG["dual"]:
    A(f"buffer_store_dwordx4 v[{MM}:{MM+3}], v2, {WS}, s{S_PNA} offen")
A(f"buffer_store_dwordx4 v[{MM}:{MM+3}], v2, {WS}, s{S_PNB} offen sc1")
A("s_branch L_exit")
L("L_pv")
C("---- PV (waves 0..3, 32 dims each): tiles are consumed as they land")
PB = V_G
VF = V_K
l5, l5e = newlbl("Lpp"), newlbl("Lppe")
A(f"s_mov_b32 s{S_TO}, {CFG['timeout']}")
L(l5)
for t in range(8):
    A(f"ds_read_b128 v[{PB+4*t}:{PB+4*t+3}], v2 offset:{L_SC + t*1024}")
A(f"ds_read_b32 v{V_T}, v{V_T+1}")
A(f"s_sub_u32 s{S_TO}, s{S_TO}, 1")
A(f"s_cbranch_scc1 {l5e}")
A("s_waitcnt lgkmcnt(0)")
tree3("v_max3_u32", "v_max_u32", [PB + 4 * t + j for t in range(8) for j in (0, 3)], TT)
A(f"v_readfirstlane_b32 s{S_NT}, v{V_T}")
A(f"v_cmp_eq_u32 vcc, -1, v{TT}")
A("s_cmp_lg_u64 vcc, 0")
A(f"s_cbranch_scc1 {l5}")
L(l5e)
A("s_waitcnt lgkmcnt(0)")
stamp(5)


def v_reads(t):
    for c2 in range(2):
        for h in range(2):
            r = VF + ((t % 6) * 2 + c2) * 4 + 2 * h
            A(f"ds_read_b64_tr_b16 v[{r}:{r+1}], v{VB0 + c2} offset:{t*8192 + h*4096}")


def v_mfma(t):
    for c2 in range(2):
        mfma(V_S + 4 * c2, VF + ((t % 6) * 2 + c2) * 4, PB + 4 * t, None if t == 0 else V_S + 4 * c2)


A(f"s_cmp_ge_u32 s{S_NT}, 8")
A("s_cbranch_scc1 L_pvf")
for t in range(8):
    wait_progress(t + 1)
    v_reads(t)
    if t >= 1:
        A("s_waitcnt lgkmcnt(4)")
        v_mfma(t - 1)
A("s_waitcnt lgkmcnt(0)")
v_mfma(7)
A("s_branch L_pve")
L("L_pvf")
for t in range(3):
    v_reads(t)
for t in range(8):
    A(f"s_waitcnt lgkmcnt({min(2, 7 - t)*4})")
    v_mfma(t)
    if t + 3 < 8:
        v_reads(t + 3)
L("L_pve")
nop(7)
pack(PK, V_S, 4)
set_exec(MASK_N4)
if CFG["dual"]:
    A(f"buffer_store_dwordx4 v[{PK}:{PK+3}], v{V_PNA}, {WS}, s{S_PNA} offen")
A(f"buffer_store_dwordx4 v[{PK}:{PK+3}], v{V_PNA}, {WS}, s{S_PNB} offen sc1")
A("s_mov_b64 exec, -1")
stamp(6)
A(f"s_cmp_lg_u32 s{S_ROLE}, 0")
A("s_cbranch_scc1 L_exit")

C("==== G: final reduce of 16 outputs (16gi..16gi+15)")
A(f"s_lshl_b32 s{S_T2}, s{S_SUB}, 6")
A(f"s_add_u32 s{S_T3}, s{S_T2}, {WS_AP}")
A(f"s_add_u32 s{S_T2}, s{S_T2}, {WS_Y}")
A(f"v_lshrrev_b32 v{TT+2}, 2, v0")
A(f"v_and_b32 v{TT+3}, 3, v0")
A(f"v_lshlrev_b32 v{TT}, 12, v{TT+2}")
A(f"v_lshl_add_u32 v{TT}, v{TT+3}, 4, v{TT}")
A(f"s_movk_i32 s{S_T0}, {YP}")
A(f"v_mul_lo_u32 v{TT+2}, v{TT+2}, s{S_T0}")
A(f"v_lshl_add_u32 v{TT+2}, v{TT+3}, 4, v{TT+2}")
for i in range(1, 4):
    A(f"s_add_u32 s{40+i}, s{S_T2}, {16*i*YP}")
GA = V_G
if CFG["dry2"]:
    C("walk the rest of this path once with EXEC=0 (instruction cache warm-up)")
    A("s_mov_b64 exec, 0")
L("L_kret")
C("DRY{")
A("s_mov_b32 exec_hi, 0")


def g1_loads():
    A(f"buffer_load_dwordx4 v[{GA}:{GA+3}], v{TT}, {WS}, s{S_T3} offen sc1")


tpoll(g1_loads, range(GA, GA + 4), V_T, V_TG, CFG['g1sl'])
A("s_mov_b64 exec, -1")
stamp(7)
A(f"s_cmp_lg_u32 s{S_SUB}, 0")
A("s_cbranch_scc1 L_gnz")
C("every workgroup has consumed the launch tag by now: leave d_debug clean")
A(f"v_mov_b32 v{V_T}, 0")
A(f"v_mov_b32 v{V_T+1}, 0")
A(f"v_lshlrev_b32 v{V_T+2}, 6, v0")
A("s_mov_b64 exec, 15")
A(f"buffer_store_dwordx2 v[{V_T}:{V_T+1}], v{V_T+2}, {SA}, 0 offen sc1")
A("s_mov_b64 exec, -1")
L("L_gnz")
nop(1)
dpp_steps("v_add_f32", [GA + j for j in range(4)], ROW_HI)
swap_steps("v_add_f32", [GA + j for j in range(4)], [GA + 4 + j for j in range(4)], which=(16,))
GH = V_G + 8
GP = V_G + 16
GB = V_G + 20
pack(GP, GA, 2)
unpack(GA, GP, 2)
unpack(GH, V_SM, 2)
for j in range(4):
    A(f"v_add_f32 v{GH+j}, v{GH+j}, v{GA+j}")
pack(GP, GH, 2)
unpack(GH, GP, 2)
unpack(GB, V_SM + 2, 2)
GY = V_K


def g2_loads():
    for j in range(4):
        A(f"v_mov_b32 v{GY+12+j}, v{V_TG+j}")
    A(f"buffer_load_dwordx4 v[{GY}:{GY+3}], v{TT+2}, {WS}, s{S_T2} offen sc1")
    A(f"buffer_load_dwordx4 v[{GY+4}:{GY+7}], v{TT+2}, {WS}, s41 offen sc1")
    A(f"buffer_load_dwordx4 v[{GY+8}:{GY+11}], v{TT+2}, {WS}, s42 offen sc1")
    A("s_mov_b32 exec_hi, 0")
    A(f"buffer_load_dwordx4 v[{GY+12}:{GY+15}], v{TT+2}, {WS}, s43 offen sc1")
    A("s_mov_b32 exec_hi, -1")


tpoll(g2_loads, range(GY, GY + 16), V_T, V_TG, CFG['g2sl'])
stamp(10)
for j in range(4):
    A(f"v_add_f32 v{GY+j}, v{GY+j}, v{GY+4+j}")
    A(f"v_add_f32 v{GY+8+j}, v{GY+8+j}, v{GY+12+j}")
for j in range(4):
    A(f"v_add_f32 v{GY+j}, v{GY+j}, v{GY+8+j}")
dpp_steps("v_add_f32", [GY + j for j in range(4)], ROW_HI)
swap_steps("v_add_f32", [GY + j for j in range(4)], [GY + 4 + j for j in range(4)])
pack(GP, GY, 2)
unpack(GY, GP, 2)
for j in range(4):
    A(f"v_add_f32 v{GY+j}, v{GY+j}, v{GB+j}")
pack(GP, GY, 2)
unpack(GY, GP, 2)
for j in range(4):
    A(f"v_add_f32 v{GY+j}, v{GY+j}, v{GH+j}")
pack(GP, GY, 2)
if CFG.get("padto", 0):
    C("ND{")
    A(f"s_mov_b32 s{S_T5}, {CFG['padto']}")
    if CFG.get("probe", -1) >= 0:
        A(f"s_sub_u32 s0, s7, s{S_TG}" if not CFG.get("neg", 0) else f"s_sub_u32 s0, s{S_TG}, s7")
        A("s_max_i32 s0, s0, 0")
        A("s_mul_i32 s0, s0, 3")
        A(f"s_add_u32 s{S_T5}, s{S_T5}, s0")
    L("L_pad")
    A("s_memrealtime s[0:1]")
    A("s_waitcnt lgkmcnt(0)")
    A(f"s_sub_u32 s0, s0, s{S_TG}")
    A(f"s_cmp_lt_u32 s0, s{S_T5}")
    A("s_cbranch_scc1 L_pad")
    C("}ND")
A(f"s_lshl_b32 s{S_T4}, s{S_SUB}, 5")
A("v_lshlrev_b32 v3, 3, v0")
A("s_mov_b64 exec, 15")
A(f"buffer_store_dwordx2 v[{GP}:{GP+1}], v3, {SC_}, s{S_T4} offen")
stamp(11)
A("s_branch L_exit")

C("}DRY")
begin("ldr")
L("L_ldr")
att_common()
C("kv byte offset: ((b*8+x)*8192 + 6144 + 256 s)*256")
A(f"s_lshl_b32 s{S_T0}, s{S_B}, 3")
A(f"s_add_u32 s{S_T0}, s{S_T0}, s{S_X}")
A(f"s_lshl_b32 s{S_T0}, s{S_T0}, 5")
A(f"s_and_b32 s{S_T1}, s{S_A}, 7")
A(f"s_add_u32 s{S_T0}, s{S_T0}, s{S_T1}")
A(f"s_add_u32 s{S_T0}, s{S_T0}, 24")
A(f"s_lshl_b32 s{S_T3}, s{S_T0}, 16")
A(f"s_mov_b32 s{S_T2}, 0")
A(f"s_cmp_eq_u32 s{S_WAVE}, 9")
A("s_cbranch_scc1 L_ldv")
C("K DMA lane offsets: r4=l>>4, p=l&15: r4*256 + ((p ^ (4i+r4))*16)")
for i in range(4):
    A(f"v_add_u32 v{12+i}, {4*i}, v4")
    A(f"v_xor_b32 v{12+i}, v{12+i}, v6")
    A(f"v_lshlrev_b32 v{12+i}, 4, v{12+i}")
    A(f"v_lshl_add_u32 v{12+i}, v4, 8, v{12+i}")
A(f"s_mov_b32 s{S_T1}, {L_K}")
post_entry()
srd(SRD_A, P_K, 0x2000000)
if CFG.get("ksleep", 0):
    A(f"s_sleep {CFG['ksleep']}")
if CFG["ktouch"]:
    C("resolve the K/V translations first; the q-projection loads get a head start meanwhile")
    A(f"s_load_dword s64, s[{P_K}:{P_K+1}], s{S_T3}")
    A(f"s_load_dword s65, s[{P_V}:{P_V+1}], s{S_T3}")
    A("s_waitcnt lgkmcnt(0)")
L("L_ldk1")
A(f"s_mov_b32 m0, s{S_T1}")
A(f"s_add_u32 s{S_T1}, s{S_T1}, 4096")
for i in range(4):
    A(f"buffer_load_dwordx4 v{12+i}, {SA}, s{S_T3} offen offset:{i*1024}{NT} lds")
A(f"s_add_u32 s{S_T3}, s{S_T3}, 4096")
A(f"s_add_u32 s{S_T2}, s{S_T2}, 1")
A(f"s_cmp_lt_u32 s{S_T2}, 16")
A("s_cbranch_scc1 L_ldk1")
stamp(1)
A("s_barrier")
A("s_waitcnt vmcnt(0)")
stamp(4)
lds_set(L_FLAG + 4, 16, 17)
A("s_waitcnt lgkmcnt(0)")
A("s_branch L_exit")
L("L_ldv")
zero_flags()
for j in range(4):
    A(f"v_mov_b32 v{16+j}, -1")
A(f"ds_write_b128 v2, v[16:19] offset:{L_QL}")
for t in range(8):
    A(f"ds_write_b128 v2, v[16:19] offset:{L_SC + t*1024}")
A("s_mov_b64 exec, 0xffff")
A(f"ds_write_b128 v2, v[16:19] offset:{L_MX}")
A("s_mov_b64 exec, -1")
A("v_lshl_add_u32 v12, v9, 8, v11")
A("v_xor_b32 v13, 32, v12")
post_entry()
srd(SRD_B, P_V, 0x2000000)
A("s_barrier")
A(f"buffer_store_dwordx4 v[16:19], v2, {WS}, s{S_PNA} offen sc1")
A(f"buffer_store_dwordx4 v[16:19], v2, {WS}, s{S_PNB} offen sc1")
A(f"s_mov_b32 s{S_T1}, {L_V}")
L("L_ldv1")
A(f"s_mov_b32 m0, s{S_T1}")
A(f"s_add_u32 s{S_T1}, s{S_T1}, 4096")
for be in range(4):
    A(f"buffer_load_dwordx4 v{12 + (be & 1)}, {SB}, s{S_T3} offen offset:{be*1024}{NT} lds")
A(f"s_add_u32 s{S_T3}, s{S_T3}, 4096")
A(f"s_add_u32 s{S_T2}, s{S_T2}, 1")
A(f"s_cmp_lt_u32 s{S_T2}, 16")
A("s_cbranch_scc1 L_ldv1")
stamp(1)
A(f"v_mov_b32 v20, {L_FLAG + 8}")
for t in range(8):
    A(f"v_mov_b32 v21, {t+1}")
    A(f"s_waitcnt vmcnt({56 - 8*t})")
    A("ds_write_b32 v20, v21")
stamp(4)
A("s_waitcnt lgkmcnt(0)")
A("s_branch L_exit")

begin("gv")
L("L_dry2")
A("s_mov_b64 exec, -1")
L("L_GV")
gv_common()
post_entry()
A(f"s_cmp_ge_u32 s{S_WAVE}, 8")
A("s_cbranch_scc1 L_gld")
A(f"s_cmp_lg_u32 s{S_WAVE}, 7")
A("s_cbranch_scc1 L_gv2")
A("s_cmp_lg_u32 s2, 0")
A("s_cbranch_scc1 L_gv0")
C("workgroup 0 publishes the launch tag (4 replicas)")
srd(SRD_C, P_DBG, 256)
A("s_memrealtime s[24:25]")
A("s_waitcnt lgkmcnt(0)")
A("s_or_b32 s25, s25, 0x80000000")
A("v_mov_b32 v14, s24")
A("v_mov_b32 v15, s25")
A("v_lshlrev_b32 v12, 6, v0")
A("s_mov_b64 exec, 15")
A(f"buffer_store_dwordx2 v[14:15], v12, {SC_}, 0 offen sc1")
A("s_mov_b64 exec, -1")
L("L_gv0")
tag_poll(CFG["tsleep0"], S_A, barrier=2)
stamp(5)
A(f"s_mov_b32 s{S_TO}, {CFG['timeout']}")
L("L_echo")
A("ds_write_b64 v102, v[100:101]")
A("ds_read_b32 v103, v102 offset:8")
A(f"s_sub_u32 s{S_TO}, s{S_TO}, 1")
A("s_cbranch_scc1 L_gv2")
A("s_waitcnt lgkmcnt(0)")
A(f"v_readfirstlane_b32 s{S_T0}, v103")
A("s_sleep 2")
A(f"s_cmp_lg_u32 s{S_T0}, s{S_TG}")
A("s_cbranch_scc1 L_echo")
L("L_gv2")
A("s_branch L_qm1")

C("---- GEMV loaders (waves 8,9)")
L("L_gld")
A(f"s_and_b32 s{S_T5}, s{S_WAVE}, 1")
C("WX style lane offsets: ct=l>>5, p=(l>>1)&15 (row), half")
A("v_bfe_u32 v3, v0, 1, 4")
A("v_lshrrev_b32 v12, 5, v0")
A("v_lshlrev_b32 v12, 5, v12")
A("v_lshl_add_u32 v12, v10, 4, v12")
A(f"s_cmp_eq_u32 s{S_ROLE}, 0")
A("s_cbranch_scc1 L_exit")
A(f"s_cmp_eq_u32 s{S_ROLE}, 2")
A("s_cbranch_scc1 L_gld2")
C("wo tile: 512 rows x 128 B; loader i: rows 256i.. (32 instrs of 8 rows)")
srd(SRD_C, P_WO, 0x400000)
A("v_bfe_u32 v3, v0, 1, 3")
A("v_lshlrev_b32 v3, 10, v3")
A("v_lshl_add_u32 v3, v4, 5, v3")
A("v_lshl_add_u32 v3, v10, 4, v3")
A(f"s_lshl_b32 s{S_T3}, s{S_X}, 19")
A(f"s_lshl_b32 s{S_T1}, s{S_T5}, 18")
A(f"s_add_u32 s{S_T3}, s{S_T3}, s{S_T1}")
A(f"s_lshl_b32 s{S_T1}, s{S_SUB}, 7")
A(f"s_add_u32 s{S_T3}, s{S_T3}, s{S_T1}")
A(f"s_lshl_b32 s{S_T4}, s{S_T5}, 15")
A(f"s_add_u32 s{S_T4}, s{S_T4}, {L_WO}")
if CFG["touch2"]:
    for i in range(4):
        A(f"s_add_u32 s{S_T1}, s{S_T3}, {i*65536}")
        A(f"s_load_dword s{64+i}, s[{P_WO}:{P_WO+1}], s{S_T1}")
A("s_barrier")
A(f"s_mov_b32 s{S_T2}, 0")
L("L_gld1")
for i in range(4):
    A(f"s_mov_b32 m0, s{S_T4}")
    A(f"s_add_u32 s{S_T4}, s{S_T4}, 1024")
    A(f"buffer_load_dwordx4 v3, {SC_}, s{S_T3} offen{NT} lds")
    A(f"s_add_u32 s{S_T3}, s{S_T3}, 8192")
A(f"s_add_u32 s{S_T2}, s{S_T2}, 1")
A(f"s_cmp_lt_u32 s{S_T2}, 8")
A("s_cbranch_scc1 L_gld1")
A("s_branch L_gld5")
L("L_gld2")
A(f"s_cmp_eq_u32 s{S_T5}, 1")
A("s_cbranch_scc1 L_gld3")
srd(SRD_C, P_W1, 512 * 3584)
A(f"s_lshl_b32 s{S_T3}, s{S_SUB}, 6")
A(f"s_movk_i32 s{S_T1}, 3584")
A(f"v_mul_lo_u32 v13, v3, s{S_T1}")
A("v_add_u32 v13, v13, v12")
if CFG["touch2"]:
    for i in range(14):
        A(f"s_add_u32 s{S_T1}, s{S_T3}, {i*131072}")
        A(f"s_load_dword s{64+i}, s[{P_W1}:{P_W1+1}], s{S_T1}")
A("s_barrier")
A(f"s_mov_b32 s{S_T1}, {L_WX}")
A(f"s_mov_b32 s{S_T2}, 0")
L("L_gld4")
for i in range(4):
    A(f"s_mov_b32 m0, s{S_T1}")
    A(f"s_add_u32 s{S_T1}, s{S_T1}, 1024")
    A(f"buffer_load_dwordx4 v13, {SC_}, s{S_T3} offen{NT} lds")
    A(f"s_add_u32 s{S_T3}, s{S_T3}, {16*3584}")
if CFG["mwin"]:
    A(f"s_waitcnt vmcnt({CFG['mwin']})")
A(f"s_add_u32 s{S_T2}, s{S_T2}, 1")
A(f"s_cmp_lt_u32 s{S_T2}, 8")
A("s_cbranch_scc1 L_gld4")
A("s_branch L_gld5")
L("L_gld3")
srd(SRD_C, P_W2, 1792 * 1024)
A("v_lshl_add_u32 v14, v9, 10, v11")
A("v_xor_b32 v15, 32, v14")
A(f"s_lshl_b32 s{S_T3}, s{S_SUB}, 15")
if CFG["touch2"]:
    A(f"s_load_dword s64, s[{P_W2}:{P_W2+1}], s{S_T3}")
    A(f"s_load_dword s65, s[{P_B1}:{P_B1+1}], 0")
A("s_barrier")
A(f"s_mov_b32 s{S_T1}, {L_W2}")
A(f"s_mov_b32 s{S_T2}, 0")
L("L_gld6")
for be in range(8):
    A(f"s_mov_b32 m0, s{S_T1}")
    A(f"s_add_u32 s{S_T1}, s{S_T1}, 1024")
    A(f"s_add_u32 s{S_T4}, s{S_T3}, {be*4096}")
    A(f"buffer_load_dwordx4 v{14 + (be & 1)}, {SC_}, s{S_T4} offen{NT} lds")
    if CFG["mwin"] and be % 4 == 3:
        A(f"s_waitcnt vmcnt({CFG['mwin']})")
A(f"s_add_u32 s{S_T3}, s{S_T3}, 256")
A(f"s_add_u32 s{S_T2}, s{S_T2}, 1")
A(f"s_cmp_lt_u32 s{S_T2}, 4")
A("s_cbranch_scc1 L_gld6")
L("L_gld5")
A("s_waitcnt vmcnt(0)")
stamp(4)
A("s_barrier")
A("s_branch L_exit")

begin("qc")
C("---- q projection: wave 6 loads and computes everything")
A("v_mov_b32 v16, 0")
A("v_mov_b32 v17, 0")
A(f"ds_write_b64 v16, v[16:17] offset:{L_TAG}")
post_entry()
srd(SRD_A, P_X, 2048)
A(f"buffer_load_dwordx4 v[16:19], v2, {SA}, 0 offen")
A(f"buffer_load_dwordx4 v[20:23], v2, {SA}, 0 offen offset:1024")
if CFG["touch"]:
    A(f"s_lshl_b32 s{S_T1}, s{S_X}, 4")
    A(f"s_add_u32 s{S_T1}, s{S_T1}, s{S_A}")
    A(f"s_lshl_b32 s{S_T1}, s{S_T1}, 9")
    A(f"s_add_u32 s{S_T1}, s{S_T1}, {WS_XQA}")
    A("s_mov_b32 exec_hi, 0")
    A(f"buffer_load_dwordx4 v[72:75], v2, {WS}, s{S_T1} offen sc1")
    A("s_mov_b32 exec_hi, -1")
srd(SRD_B, P_WQ, 0x400000)
A("v_bfe_u32 v13, v0, 1, 3")
A("v_lshlrev_b32 v13, 13, v13")
A("v_lshl_add_u32 v13, v4, 5, v13")
A("v_lshl_add_u32 v13, v10, 4, v13")
A(f"s_and_b32 s{S_B}, s{S_A}, 1")
A(f"s_lshl_b32 s{S_T0}, s{S_B}, 21")
A(f"s_lshl_b32 s{S_T1}, s{S_X}, 10")
A(f"s_add_u32 s{S_T0}, s{S_T0}, s{S_T1}")
A(f"s_lshr_b32 s{S_T1}, s{S_A}, 1")
A(f"s_lshl_b32 s{S_T1}, s{S_T1}, 7")
A(f"s_add_u32 s{S_T0}, s{S_T0}, s{S_T1}")
A(f"s_mov_b32 s{S_T1}, {L_WQ}")
L("L_qc1")
for i in range(4):
    A(f"s_mov_b32 m0, s{S_T1}")
    A(f"s_add_u32 s{S_T1}, s{S_T1}, 1024")
    A(f"buffer_load_dwordx4 v13, {SB}, s{S_T0} offen{NT} lds")
    A(f"s_add_u32 s{S_T0}, s{S_T0}, 0x10000")
A(f"s_cmp_lt_u32 s{S_T1}, {L_WQ + 32768}")
A("s_cbranch_scc1 L_qc1")
stamp(10)
L("L_dry")
gv_common()
A("v_lshrrev_b32 v12, 2, v0")
A("v_lshlrev_b32 v12, 6, v12")
A("v_lshl_add_u32 v12, v10, 5, v12")
A("v_bfe_u32 v13, v0, 1, 1")
A("v_lshl_add_u32 v12, v13, 3, v12")
A("v_lshlrev_b32 v13, 10, v10")
A("v_lshl_add_u32 v13, v4, 4, v13")
A(f"s_lshl_b32 s{S_T1}, s{S_B}, 9")
A(f"v_add_u32 v13, s{S_T1}, v13")
A("v_lshrrev_b32 v14, 5, v0")
A("v_lshlrev_b32 v14, 10, v14")
A("v_and_b32 v15, 31, v0")
A("v_lshl_add_u32 v14, v15, 3, v14")
C("exchange lane map: n=l&15<8: b=n&1, half2=(n>>1)&1, cs=(n>>2)&1 ; XQ off = cs*256 + b*128 + g*32 + half2*16")
A("v_bfe_u32 v70, v0, 2, 1")
A("v_lshlrev_b32 v69, 6, v70")
A("v_lshl_add_u32 v69, v4, 4, v69")
A("v_lshl_add_u32 v69, v10, 11, v69")
A("v_lshlrev_b32 v70, 8, v70")
A("v_lshl_add_u32 v70, v10, 7, v70")
A("v_lshl_add_u32 v70, v4, 5, v70")
A("v_bfe_u32 v15, v0, 1, 1")
A("v_lshl_add_u32 v70, v15, 4, v70")
A(f"s_lshl_b32 s{S_T5}, s{S_X}, 12")
A(f"s_lshl_b32 s{S_T1}, s{S_A}, 7")
A(f"s_add_u32 s{S_T5}, s{S_T5}, s{S_T1}")
A(f"s_lshl_b32 s{S_T1}, s{S_X}, 4")
A(f"s_add_u32 s{S_T1}, s{S_T1}, s{S_A}")
A(f"s_lshl_b32 s62, s{S_T1}, 9")
A(f"s_xor_b32 s63, s62, 512")
A(f"s_add_u32 s64, s62, {WS_XQB}")
A(f"s_add_u32 s62, s62, {WS_XQA}")
A(f"s_add_u32 s65, s63, {WS_XQB}")
A(f"s_add_u32 s63, s63, {WS_XQA}")
A("s_mov_b32 s66, 0xcccccccc")
A("s_mov_b32 s67, 0xcccccccc")
A("s_mov_b32 s68, 0xf0f0f0f0")
A("s_mov_b32 s69, 0xf0f0f0f0")
stamp(11)
A(f"s_waitcnt vmcnt({32 + CFG['touch']})")
stamp(12)
unpack(24, 16, 4)
unpack(32, 20, 4)
layernorm([24, 32], 2, 44, [16, 20])
A(f"ds_write_b64 v12, v[16:17] offset:{L_XN}")
A(f"ds_write_b64 v12, v[18:19] offset:{L_XN + 16}")
A(f"ds_write_b64 v12, v[20:21] offset:{L_XN + 1024}")
A(f"ds_write_b64 v12, v[22:23] offset:{L_XN + 1024 + 16}")
A("s_waitcnt lgkmcnt(0)")
XA = 96
for kp in range(8):
    A(f"ds_read_b128 v[{XA+4*kp}:{XA+4*kp+3}], v13 offset:{L_XN + kp*64}")
stamp(1)
A("v_mov_b32 v16, 0")
WF = 24
QD = 144
for kp in range(8):
    if kp == 7:
        C("launch tag from wave 7 (it rewrites the slot until echoed)")
        A("s_cbranch_execz L_dry1")
        lds_wait(L_TAG + 4, 17, 18)
        L("L_dry1")
        A(f"ds_read_b64 v[58:59], v16 offset:{L_TAG}")
        A(f"ds_read_b64 v[62:63], v16 offset:{L_TAG}")
        A("s_waitcnt lgkmcnt(0)")
        A(f"ds_write_b32 v16, v58 offset:{L_TAG + 8}")
    A(f"s_waitcnt vmcnt({28 - 4*kp})")
    if kp == 7:
        stamp(2)
        pass
    for ct in range(4):
        for h in range(2):
            r = WF + ((kp & 1) * 4 + ct) * 4 + 2 * h
            A(f"ds_read_b64_tr_b16 v[{r}:{r+1}], v14 offset:{L_WQ + kp*4096 + h*2048 + ct*256}")
    for ct in range(4):
        A(f"s_waitcnt lgkmcnt({6 - 2*ct})")
        mfma(QD + 4 * ct, WF + ((kp & 1) * 4 + ct) * 4, XA + 4 * kp, None if kp == 0 else QD + 4 * ct)
C("select: lo half cts (0,1) -> v[24:25], hi half cts (2,3) -> v[26:27]")
nop(5)
for hf in range(2):
    a, b = QD + 8 * hf, QD + 8 * hf + 4
    for j in range(2):
        A(f"v_cndmask_b32 v{28+j}, v{a+j}, v{a+2+j}, s[66:67]")
        A(f"v_cndmask_b32 v{30+j}, v{b+j}, v{b+2+j}, s[66:67]")
    for j in range(2):
        A(f"v_cndmask_b32 v{24+2*hf+j}, v{28+j}, v{30+j}, s[68:69]")
A("s_cbranch_execz L_dry2")
A(f"s_cmp_eq_u32 s{S_B}, 0")
A(f"s_cselect_b64 vcc, -1, 0")
set_exec(0x00ff00ff00ff00ff)
A("v_cndmask_b32 v56, v24, v26, vcc")
A("v_cndmask_b32 v57, v25, v27, vcc")
A("v_cndmask_b32 v60, v26, v24, vcc")
A("v_cndmask_b32 v61, v27, v25, vcc")
A(f"buffer_store_dwordx4 v[56:59], v70, {WS}, s{63 if CFG['dual'] else 65} offen{'' if CFG['dual'] else ' sc1'}")
stamp(6)
lx, lxe, lxs = newlbl("Lx"), newlbl("Lxe"), newlbl("Lxs")
A(f"s_mov_b32 s{S_TO}, {CFG['timeout']}")
L(lx)
if CFG["dual"]:
    A(f"s_cmp_lg_u32 s{S_TO}, {CFG['timeout'] - 4}")
    A(f"s_cbranch_scc1 {lxs}")
    C("partner not seen through L2 yet: also send the coherent copy")
    A(f"buffer_store_dwordx4 v[56:59], v70, {WS}, s65 offen sc1")
    L(lxs)
A(f"s_and_b32 s{S_T0}, s{S_TO}, 7")
A(f"s_cmp_eq_u32 s{S_T0}, 1")
A(f"s_cselect_b32 s{S_T1}, s64, s{62 if CFG['dual'] else 64}")
A(f"buffer_load_dwordx4 v[24:27], v70, {WS}, s{S_T1} offen sc1")
A(f"s_sub_u32 s{S_TO}, s{S_TO}, 1")
A(f"s_cbranch_scc1 {lxe}")
A("s_waitcnt vmcnt(0)")
A("v_cmp_ne_u64 vcc, v[26:27], v[58:59]")
A("s_cmp_lg_u64 vcc, 0")
A(f"s_cbranch_scc1 {lx}")
L(lxe)
A("s_waitcnt vmcnt(0)")
A("v_pk_add_f32 v[60:61], v[60:61], v[24:25]")
A("v_cvt_pk_bf16_f32 v60, v60, v61")
nop(2)
A("v_mov_b32_dpp v61, v60 quad_perm:[2,3,0,1] row_mask:0xf bank_mask:0xf")
set_exec(0x0033003300330033)
A(f"buffer_store_dwordx4 v[60:63], v69, {WS}, s{S_T5} offen sc1")
if CFG["dual"]:
    C("always leave a coherent copy for the partner")
    set_exec(0x00ff00ff00ff00ff)
    A(f"buffer_store_dwordx4 v[56:59], v70, {WS}, s65 offen sc1")
A("s_mov_b64 exec, -1")
stamp(3)
A("s_branch L_qm1")
begin("qm2")
L("L_qm1")
A(f"s_cmp_eq_u32 s{S_ROLE}, 0")
A("s_cbranch_scc1 L_exit")
A("s_barrier")
A(f"v_mov_b32 v{V_T}, 0")
A(f"ds_read_b64 v[{TT+2}:{TT+3}], v{V_T} offset:{L_TAG}")
A(f"ds_read_b128 v[{V_TG}:{V_TG+3}], v{V_T} offset:{L_TAG + 16}")
A(f"s_cmp_eq_u32 s{S_ROLE}, 2")
A("s_cbranch_scc1 L_F")

C("==== E: wo projection, 8 waves: head=w&3, col half=w>>2; wave gathers records 2w,2w+1")
V_WX = 16
A(f"s_lshl_b32 s{S_T1}, s{S_X}, 4")
A(f"s_lshl_b32 s{S_T2}, s{S_WAVE}, 1")
A(f"s_add_u32 s{S_T1}, s{S_T1}, s{S_T2}")
A(f"s_mul_i32 s{S_T1}, s{S_T1}, {RECP}")
A(f"s_add_u32 s{S_PNA}, s{S_T1}, {WS_PNA if CFG['dual'] else WS_PNB}")
A(f"s_add_u32 s{S_PNB}, s{S_T1}, {WS_PNB}")
EA0, EA1, EA2, EA3, EA4, EA5 = V_T + 36, V_T + 37, V_T + 38, V_T + 39, V_T + 2, V_T + 3
C("stats gather addr: lane<8: (l>>2)*RECP + (l&3)*16 (+1024)")
A(f"v_lshrrev_b32 v{EA0}, 2, v0")
A(f"s_movk_i32 s{S_T2}, {RECP}")
A(f"v_mul_lo_u32 v{EA0}, v{EA0}, s{S_T2}")
A(f"v_and_b32 v{EA1}, 3, v0")
A(f"v_lshl_add_u32 v{EA0}, v{EA1}, 4, v{EA0}")
A(f"s_mul_i32 s{S_T2}, s{S_WAVE}, {2*PNP}")
A(f"s_add_u32 s{S_T2}, s{S_T2}, {L_PS}")
A(f"v_add_u32 v{EA1}, s{S_T2}, v2")
A(f"s_lshl_b32 s{S_T2}, s{S_WAVE}, 7")
A(f"v_add_u32 v{EA2}, s{S_T2}, v2")
A(f"s_and_b32 s{S_T4}, s{S_WAVE}, 3")
A(f"s_lshr_b32 s{S_T5}, s{S_WAVE}, 2")
A(f"s_movk_i32 s{S_T2}, {PNP}")
A(f"v_mul_lo_u32 v{EA3}, v6, s{S_T2}")
A(f"v_lshl_add_u32 v{EA3}, v4, 4, v{EA3}")
A(f"s_lshl_b32 s{S_T2}, s{S_T4}, 6")
A(f"s_add_u32 s{S_T2}, s{S_T2}, {L_PS}")
A(f"v_add_u32 v{EA3}, s{S_T2}, v{EA3}")
A(f"v_lshlrev_b32 v{EA4}, 6, v6")
A(f"s_lshl_b32 s{S_T2}, s{S_T4}, 4")
A(f"v_add_u32 v{EA4}, s{S_T2}, v{EA4}")
A(f"s_lshl_b32 s{S_T2}, s{S_T4}, 9")
A(f"s_lshl_b32 s{S_T3}, s{S_T5}, 8")
A(f"s_add_u32 s{S_T2}, s{S_T2}, s{S_T3}")
A(f"v_lshl_add_u32 v{EA5}, v0, 2, s{S_T2}")
C("weights tr-read addr: WO + hd*16384 + ch*512 + (l>>5)*1024 + (l&31)*8")
A(f"v_lshrrev_b32 v{TT}, 5, v0")
A(f"v_lshlrev_b32 v{TT}, 10, v{TT}")
A(f"v_and_b32 v{TT+1}, 31, v0")
A(f"v_lshl_add_u32 v{TT}, v{TT+1}, 3, v{TT}")
A(f"s_lshl_b32 s{S_T2}, s{S_T4}, 14")
A(f"s_lshl_b32 s{S_T3}, s{S_T5}, 9")
A(f"s_add_u32 s{S_T2}, s{S_T2}, s{S_T3}")
A(f"s_add_u32 s{S_T2}, s{S_T2}, {L_WO}")
A(f"v_add_u32 v{TT}, s{S_T2}, v{TT}")
A(f"v_mul_u32_u24 v{V_T+32}, 80, v4")
C("final-stage addresses (wave 0, lanes<32): RED read / AP write")
A(f"v_bfe_u32 v{V_T+33}, v0, 3, 1")
A(f"v_lshlrev_b32 v{V_T+33}, 8, v{V_T+33}")
A(f"v_lshl_add_u32 v{V_T+33}, v4, 7, v{V_T+33}")
A(f"v_and_b32 v{V_T+34}, 7, v0")
A(f"v_lshl_add_u32 v{V_T+33}, v{V_T+34}, 4, v{V_T+33}")
A(f"v_lshlrev_b32 v{V_T+34}, 11, v4")
A(f"v_lshl_add_u32 v{V_T+34}, v6, 4, v{V_T+34}")
A(f"s_lshl_b32 s{S_NT}, s{S_X}, 12")
A(f"s_lshl_b32 s{S_T1}, s{S_SUB}, 8")
A(f"s_add_u32 s{S_NT}, s{S_NT}, s{S_T1}")
A(f"s_add_u32 s{S_NT}, s{S_NT}, {WS_AP}")
if CFG["dry3"]:
    A("s_waitcnt lgkmcnt(0)")
    A("s_mov_b64 exec, 0")
    A("s_branch L_edry")
L("L_eret")
A("s_waitcnt vmcnt(0) lgkmcnt(0)")
A("s_barrier")
stamp(4)
L("L_edry")
C("DRY{")
for kp in range(4):
    for c in range(2):
        for h in range(2):
            r = V_WX + (kp * 2 + c) * 4 + 2 * h
            A(f"ds_read_b64_tr_b16 v[{r}:{r+1}], v{TT} offset:{kp*4096 + h*2048 + c*256}")
SG = V_G + 8
le, lee = newlbl("Le"), newlbl("Lee")
A(f"s_mov_b32 s{S_TO}, {CFG['timeout']}")
L(le)
A(f"s_and_b32 s{S_T0}, s{S_TO}, {CFG['bmask']}")
A(f"s_cmp_eq_u32 s{S_T0}, 1")
A(f"s_cselect_b32 s{S_T1}, s{S_PNB}, s{S_PNA}")
A(f"v_mov_b32 v{SG+2}, v{TT+2}")
A(f"v_mov_b32 v{SG+3}, v{TT+3}")
A("s_mov_b64 exec, 0xff")
A(f"buffer_load_dwordx4 v[{SG}:{SG+3}], v{EA0}, {WS}, s{S_T1} offen offset:1024 sc1")
A("s_mov_b64 exec, -1")
for i in range(2):
    r = V_G + i * 4
    A(f"buffer_load_dwordx4 v[{r}:{r+3}], v2, {WS}, s{S_T1} offen offset:{i*RECP} sc1")
A(f"s_sub_u32 s{S_TO}, s{S_TO}, 1")
A(f"s_cbranch_scc1 {lee}")
A("s_waitcnt vmcnt(0)")
tree3("v_max3_u32", "v_max_u32", range(V_G, V_G + 8), TT)
A(f"v_cmp_eq_u32 vcc, -1, v{TT}")
A(f"v_cmp_ne_u64 s[{S_T2}:{S_T3}], v[{SG+2}:{SG+3}], v[{TT+2}:{TT+3}]")
A(f"s_or_b64 vcc, vcc, s[{S_T2}:{S_T3}]")
A(f"s_cbranch_scc1 {le}")
L(lee)
A("s_waitcnt vmcnt(0)")
stamp(7)
for i in range(2):
    r = V_G + i * 4
    A(f"ds_write_b128 v{EA1}, v[{r}:{r+3}] offset:{i*PNP}")
A("s_mov_b64 exec, 0xff")
A(f"ds_write_b128 v{EA2}, v[{SG}:{SG+3}] offset:{L_STS}")
A("s_mov_b64 exec, -1")
A("s_waitcnt lgkmcnt(0)")
A("s_barrier")
SM0 = V_T + 4
MG = V_T + 8
FW = V_T + 24
A(f"ds_read_b64 v[{SM0}:{SM0+1}], v{EA4} offset:{L_STS}")
for kp in range(4):
    r = V_G + kp * 4
    A(f"ds_read_b128 v[{r}:{r+3}], v{EA3} offset:{kp*256}")
EA = V_S
A("s_waitcnt lgkmcnt(4)")
A(f"v_mov_b32 v{MG}, v{SM0}")
R8 = ROW_ALL[:3]
fill = []
for c in R8:
    fill.append(["s_nop 0", f"v_max_f32_dpp v{MG}, v{MG}, v{MG} {c} row_mask:0xf bank_mask:0xf"])
fill.append([f"v_sub_f32 v{SM0}, v{SM0}, v{MG}", f"v_exp_f32 v{SM0}, v{SM0}", "s_nop 0", f"v_mul_f32 v{MG}, v{SM0}, v{SM0+1}"])
for c in R8:
    fill.append(["s_nop 0", f"v_add_f32_dpp v{MG}, v{MG}, v{MG} {c} row_mask:0xf bank_mask:0xf"])
fill.append([f"v_rcp_f32 v{MG}, v{MG}", "s_nop 0", f"v_mul_f32 v{SM0}, v{SM0}, v{MG}"])
fi = 0
for kp in range(4):
    A(f"s_waitcnt lgkmcnt({3-kp})")
    for c in range(2):
        d = EA + c * 4
        mfma(d, V_G + kp * 4, V_WX + (kp * 2 + c) * 4, None if kp == 0 else d)
        for ins in fill[fi]:
            A(ins)
        fi += 1
assert fi == len(fill)
for r in range(4):
    A(f"ds_bpermute_b32 v{FW+r}, v{V_T+32}, v{SM0} offset:{4*r}")
A("s_waitcnt lgkmcnt(0)")
for c in range(2):
    d = EA + 4 * c
    A(f"v_mul_f32 v{d}, v{d}, v{FW}")
    A(f"v_mul_f32 v{d+2}, v{d+2}, v{FW+2}")
    A(f"v_fmac_f32 v{d}, v{d+1}, v{FW+1}")
    A(f"v_fmac_f32 v{d+2}, v{d+3}, v{FW+3}")
for c in range(2):
    d = EA + 4 * c
    A(f"v_add_f32 v{d}, v{d}, v{d+2}")
nop(2)
A(f"v_permlane16_swap_b32 v{EA}, v{EA+4}")
A(f"v_add_f32 v{EA}, v{EA}, v{EA+4}")
A(f"ds_write_b32 v{EA5}, v{EA} offset:{L_RED}")
A("s_waitcnt lgkmcnt(0)")
A("s_barrier")
A(f"s_cmp_lg_u32 s{S_WAVE}, 0")
A("s_cbranch_scc1 L_exit")
A("s_mov_b32 exec_hi, 0")
for i in range(4):
    A(f"ds_read_b128 v[{V_G+4*i}:{V_G+4*i+3}], v{V_T+33} offset:{L_RED + i*512}")
A("s_waitcnt lgkmcnt(0)")
for j in (0, 2):
    A(f"v_pk_add_f32 v[{V_G+j}:{V_G+j+1}], v[{V_G+j}:{V_G+j+1}], v[{V_G+4+j}:{V_G+5+j}]")
    A(f"v_pk_add_f32 v[{V_G+8+j}:{V_G+9+j}], v[{V_G+8+j}:{V_G+9+j}], v[{V_G+12+j}:{V_G+13+j}]")
for j in (0, 2):
    A(f"v_pk_add_f32 v[{V_G+j}:{V_G+j+1}], v[{V_G+j}:{V_G+j+1}], v[{V_G+8+j}:{V_G+9+j}]")
tag(V_G, V_TG)
A(f"buffer_store_dwordx4 v[{V_G}:{V_G+3}], v{V_T+34}, {WS}, s{S_NT} offen sc1")
stamp(8)
A("s_branch L_exit")

C("}DRY")
L("L_F")
C("==== F: MLP. 8 waves gather (b=w>>2, 128-col quarter q=w&3); waves 0..3 also do w1/gelu/w2")
V_W2 = 128
FG = 48
HX = 64
C("x[b][128q + 4(l&31)..] ; b1[mi*32 + (l&31)]")
srd(SRD_A, P_X, 2048)
A("v_and_b32 v12, 31, v0")
A("v_lshlrev_b32 v13, 3, v12")
A(f"s_lshl_b32 s{S_T0}, s{S_WAVE}, 8")
A(f"buffer_load_dwordx2 v[{V_SM}:{V_SM+1}], v13, {SA}, s{S_T0} offen")
srd(SRD_C, P_B1, 3584)
A("v_lshlrev_b32 v13, 1, v12")
A(f"s_lshl_b32 s{S_T0}, s{S_SUB}, 6")
A(f"buffer_load_ushort v{V_SM+2}, v13, {SC_}, s{S_T0} offen")
C("gather addr: (l>>5)*4096 + (l&31)*16 ; soffset = AP + w*512 + i*8192")
GAD, HA, STW, STR = V_T, V_T + 1, V_T + 2, V_T + 3
A(f"v_lshrrev_b32 v{GAD}, 5, v0")
A(f"v_lshlrev_b32 v{GAD}, 12, v{GAD}")
A(f"v_lshl_add_u32 v{GAD}, v12, 4, v{GAD}")
A(f"s_lshl_b32 s{S_T0}, s{S_WAVE}, 9")
A(f"s_add_u32 s{S_T0}, s{S_T0}, {WS_AP}")
SX = 62
for i in range(4):
    A(f"s_add_u32 s{SX+i}, s{S_T0}, {i*8192}")
C("hn write addr (cols 4j.., j=l&31): w*256 + (j>>3)*64 + (j&3)*16 + ((j>>2)&1)*8")
A(f"v_lshrrev_b32 v{HA}, 3, v12")
A(f"v_lshlrev_b32 v{HA}, 6, v{HA}")
A("v_and_b32 v13, 3, v0")
A(f"v_lshl_add_u32 v{HA}, v13, 4, v{HA}")
A("v_bfe_u32 v13, v0, 2, 1")
A(f"v_lshl_add_u32 v{HA}, v13, 3, v{HA}")
A(f"s_lshl_b32 s{S_T0}, s{S_WAVE}, 8")
A(f"v_add_u32 v{HA}, s{S_T0}, v{HA}")
C("LN stats exchange: STS + w*8 ; read STS + b*32 (sentinel initialised)")
A(f"s_lshl_b32 s{S_T0}, s{S_WAVE}, 3")
A(f"v_mov_b32 v{STW}, s{S_T0}")
A(f"s_lshr_b32 s{S_T0}, s{S_WAVE}, 2")
A(f"s_lshl_b32 s{S_T0}, s{S_T0}, 5")
A(f"v_mov_b32 v{STR}, s{S_T0}")
A("v_mov_b32 v14, -1")
A("v_mov_b32 v15, -1")
A(f"ds_write_b64 v{STW}, v[14:15] offset:{L_STS}")
C("compute-wave addresses")
vw2_addr()
A(f"s_lshl_b32 s{S_T0}, s{S_WAVE}, 13")
A(f"s_add_u32 s{S_T1}, s{S_T0}, {L_W2}")
A(f"v_add_u32 v{VB0}, s{S_T1}, v{VA0}")
A(f"v_add_u32 v{VB1}, s{S_T1}, v{VA1}")
A(f"s_add_u32 s{S_T1}, s{S_T0}, {L_WX}")
A(f"v_lshl_add_u32 v{TT}, v0, 3, s{S_T1}")
A0, A1, A2, YAD = V_T + 36, V_T + 37, V_T + 38, V_T + 39
A(f"v_lshlrev_b32 v{A0}, 10, v10")
A(f"v_lshl_add_u32 v{A0}, v4, 4, v{A0}")
A(f"s_lshl_b32 s{S_T0}, s{S_WAVE}, 8")
A(f"v_add_u32 v{A0}, s{S_T0}, v{A0}")
A(f"v_lshlrev_b32 v{A1}, 7, v6")
A(f"v_lshl_add_u32 v{A1}, v4, 4, v{A1}")
A(f"v_add_u32 v{A1}, s{S_T0}, v{A1}")
C("h1 write addr: lane (b=l>>5, c=l&31): H1 + w*128 + b*64 + ((c>>2)&3)*16 + (c>>4)*8 + (c&3)*2")
A(f"v_lshrrev_b32 v{A2}, 5, v0")
A(f"v_lshlrev_b32 v{A2}, 6, v{A2}")
A("v_bfe_u32 v13, v0, 2, 2")
A(f"v_lshl_add_u32 v{A2}, v13, 4, v{A2}")
A("v_bfe_u32 v13, v0, 4, 1")
A(f"v_lshl_add_u32 v{A2}, v13, 3, v{A2}")
A("v_and_b32 v13, 3, v0")
A(f"v_lshl_add_u32 v{A2}, v13, 1, v{A2}")
A(f"s_lshl_b32 s{S_T1}, s{S_WAVE}, 7")
A(f"s_add_u32 s{S_T1}, s{S_T1}, {L_H1}")
A(f"v_add_u32 v{A2}, s{S_T1}, v{A2}")
C("B_ct operand addresses: (n>>1)==ct ? H1 + w*128 + (n&1)*64 + g*16 : ZERO")
BA = V_T + 24
A("v_lshlrev_b32 v13, 6, v10")
A("v_lshl_add_u32 v13, v4, 4, v13")
A(f"v_add_u32 v13, s{S_T1}, v13")
A(f"v_mov_b32 v14, {L_ZERO}")
A("v_bfe_u32 v15, v0, 1, 3")
for ct in range(8):
    A(f"v_cmp_eq_u32 vcc, {ct}, v15")
    A("s_nop 1")
    A(f"v_cndmask_b32 v{BA+ct}, v14, v13, vcc")
for j in range(4):
    A(f"v_mov_b32 v{16+j}, 0")
A(f"ds_write_b128 v14, v[16:19]")
C("Y store addr: (n&1)*2048 + (n>>1)*64 + g*16 ; soff = Y + mi*YP + w*512")
A(f"v_lshlrev_b32 v{YAD}, 11, v10")
A(f"v_lshl_add_u32 v{YAD}, v15, 6, v{YAD}")
A(f"v_lshl_add_u32 v{YAD}, v4, 4, v{YAD}")
S_Y = 70
A(f"s_mul_i32 s{S_Y}, s{S_SUB}, {YP}")
A(f"s_lshl_b32 s{S_T1}, s{S_WAVE}, 9")
A(f"s_add_u32 s{S_Y}, s{S_Y}, s{S_T1}")
A(f"s_add_u32 s{S_Y}, s{S_Y}, {WS_Y}")
A("v_lshlrev_b32 v3, 2, v0")
if CFG["dry3"]:
    A("s_waitcnt lgkmcnt(0)")
    A("s_mov_b64 exec, 0")
    A("s_branch L_fdry")
L("L_fret")
A("s_waitcnt vmcnt(0) lgkmcnt(0)")
unpack(HX, V_SM, 2)
A(f"v_lshlrev_b32 v{V_SM+2}, 16, v{V_SM+2}")
A("s_barrier")
stamp(4)
L("L_fdry")
C("DRY{")
A(f"s_cmp_ge_u32 s{S_WAVE}, 4")
A("s_cbranch_scc1 L_F1")
for kp in range(4):
    for ct in range(2):
        for h in range(2):
            r = V_WX + (kp * 2 + ct) * 4 + 2 * h
            A(f"ds_read_b64_tr_b16 v[{r}:{r+1}], v{TT} offset:{kp*2048 + h*1024 + ct*512}")
A("s_waitcnt lgkmcnt(0)")
for ct in range(8):
    for h in range(2):
        r = V_W2 + ct * 4 + 2 * h
        A(f"ds_read_b64_tr_b16 v[{r}:{r+1}], v{VB0 + (ct & 1)} offset:{(ct >> 1)*256 + h*4096}")
L("L_F1")


def f_loads():
    for i in range(4):
        r = FG + i * 4
        A(f"buffer_load_dwordx4 v[{r}:{r+3}], v{GAD}, {WS}, s{SX+i} offen sc1")


tpoll(f_loads, range(FG, FG + 16), TT, V_TG, CFG['fsl'])
stamp(7)
for j in (0, 2):
    A(f"v_pk_add_f32 v[{FG+j}:{FG+j+1}], v[{FG+j}:{FG+j+1}], v[{FG+4+j}:{FG+5+j}]")
    A(f"v_pk_add_f32 v[{FG+8+j}:{FG+9+j}], v[{FG+8+j}:{FG+9+j}], v[{FG+12+j}:{FG+13+j}]")
for j in (0, 2):
    A(f"v_pk_add_f32 v[{FG+j}:{FG+j+1}], v[{FG+j}:{FG+j+1}], v[{FG+8+j}:{FG+9+j}]")
swap_steps("v_add_f32", [FG + j for j in range(4)], [FG + 4 + j for j in range(4)], which=(32,))
HP = FG + 8
pack(HP, FG, 2)
unpack(FG, HP, 2)
for j in range(4):
    A(f"v_add_f32 v{HX+j}, v{HX+j}, v{FG+j}")
pack(HP, HX, 2)
unpack(HX, HP, 2)
C("local stats around pivot c = h[first]")
A("s_nop 0")
A(f"v_readfirstlane_b32 s{S_T2}, v{HX}")
A("s_nop 1")
for j in range(4):
    A(f"v_subrev_f32 v{FG+j}, s{S_T2}, v{HX+j}")
SS, SQ = FG + 10, FG + 11
A(f"v_add_f32 v{SS}, v{FG}, v{FG+1}")
A(f"v_mul_f32 v{SQ}, v{FG}, v{FG}")
A(f"v_add_f32 v{FG+4}, v{FG+2}, v{FG+3}")
A(f"v_fmac_f32 v{SQ}, v{FG+1}, v{FG+1}")
A(f"v_add_f32 v{SS}, v{SS}, v{FG+4}")
A(f"v_fmac_f32 v{SQ}, v{FG+2}, v{FG+2}")
A(f"v_fmac_f32 v{SQ}, v{FG+3}, v{FG+3}")
nop(1)
dpp_steps("v_add_f32", [SS, SQ], ROW_ALL)
swap_steps("v_add_f32", [SS, SQ], [FG + 4, FG + 5], which=(16,))
C("mean_w = c + s/128 ; M2_w = ss - s*s/128")
A(f"v_mul_f32 v{FG+4}, {f2u(1.0/128):#x}, v{SS}")
A(f"v_fma_f32 v{SQ}, -v{FG+4}, v{SS}, v{SQ}")
A(f"v_add_f32 v{SS}, s{S_T2}, v{FG+4}")
A("s_mov_b64 exec, 1")
A(f"ds_write_b64 v{STW}, v[{SS}:{SQ}] offset:{L_STS}")
A("s_mov_b64 exec, -1")
l3, l3e = newlbl("Lst"), newlbl("Lste")
A(f"s_mov_b32 s{S_TO}, {CFG['timeout']}")
L(l3)
A(f"ds_read_b128 v[{FG}:{FG+3}], v{STR} offset:{L_STS}")
A(f"ds_read_b128 v[{FG+4}:{FG+7}], v{STR} offset:{L_STS + 16}")
A(f"s_sub_u32 s{S_TO}, s{S_TO}, 1")
A(f"s_cbranch_scc1 {l3e}")
A("s_waitcnt lgkmcnt(0)")
tree3("v_max3_u32", "v_max_u32", range(FG, FG + 8), TT)
A(f"v_cmp_eq_u32 vcc, -1, v{TT}")
A("s_cmp_lg_u64 vcc, 0")
A(f"s_cbranch_scc1 {l3}")
L(l3e)
A("s_waitcnt lgkmcnt(0)")
MEAN, VAR, TM = FG + 8, FG + 9, FG + 10
A(f"v_add_f32 v{MEAN}, v{FG}, v{FG+2}")
A(f"v_add_f32 v{TM}, v{FG+4}, v{FG+6}")
A(f"v_add_f32 v{VAR}, v{FG+1}, v{FG+3}")
A(f"v_add_f32 v{MEAN}, v{MEAN}, v{TM}")
A(f"v_add_f32 v{TM}, v{FG+5}, v{FG+7}")
A(f"v_mul_f32 v{MEAN}, 0.25, v{MEAN}" if False else f"v_mul_f32 v{MEAN}, {f2u(0.25):#x}, v{MEAN}")
A(f"v_add_f32 v{VAR}, v{VAR}, v{TM}")
for j in range(4):
    A(f"v_sub_f32 v{FG+2*j}, v{FG+2*j}, v{MEAN}")
A(f"v_mul_f32 v{TM}, v{FG}, v{FG}")
for j in range(1, 4):
    A(f"v_fmac_f32 v{TM}, v{FG+2*j}, v{FG+2*j}")
A(f"v_mul_f32 v{VAR}, {f2u(1.0/512):#x}, v{VAR}")
A(f"v_fmac_f32 v{VAR}, {f2u(0.25):#x}, v{TM}")
bf16r(MEAN, MEAN)
bf16r(VAR, VAR)
for j in range(4):
    A(f"v_sub_f32 v{FG+j}, v{HX+j}, v{MEAN}")
A(f"v_add_f32 v{VAR}, {f2u(1e-5):#x}, v{VAR}")
pack(HP + 4, FG, 2)
bf16r(VAR, VAR)
unpack(FG, HP + 4, 2)
A(f"v_sqrt_f32 v{VAR}, v{VAR}")
nop(1)
bf16r(VAR, VAR)
A(f"v_rcp_f32 v{VAR}, v{VAR}")
nop(1)
for j in range(4):
    A(f"v_mul_f32 v{FG+j}, v{FG+j}, v{VAR}")
pack(HP + 4, FG, 2)
A("s_mov_b32 exec_hi, 0")
A(f"ds_write_b64 v{HA}, v[{HP+4}:{HP+5}] offset:{L_HN}")
A("s_mov_b32 exec_hi, -1")
c0 = math.sqrt(2.0 / math.pi)
k0 = -2.0 * c0 * LOG2E
k1 = k0 * 0.044715
A(f"s_mov_b32 s{S_T1}, {f2u(k1):#x}")
A(f"v_mov_b32 v{TT}, {f2u(k0):#x}")
A("s_waitcnt lgkmcnt(0)")
A("s_barrier")
stamp(8)
A(f"s_cmp_ge_u32 s{S_WAVE}, 4")
A("s_cbranch_scc1 L_exit")
for kp in range(4):
    A(f"ds_read_b128 v[{V_Q+4*kp}:{V_Q+4*kp+3}], v{A0} offset:{L_HN + kp*64}")
for kp in range(4):
    A(f"s_waitcnt lgkmcnt({3-kp})")
    for ct in range(2):
        mfma(V_S + 4 * ct, V_WX + (kp * 2 + ct) * 4, V_Q + 4 * kp, None if kp == 0 else V_S + 4 * ct)
nop(6)
set_exec(MASK_N2)
A(f"ds_write_b128 v{A1}, v[{V_S}:{V_S+3}] offset:{L_RED}")
A(f"ds_write_b128 v{A1}, v[{V_S+4}:{V_S+7}] offset:{L_RED + 64}")
A("s_mov_b64 exec, -1")
A("s_waitcnt lgkmcnt(0)")
A("s_barrier")
U = 16
for wp in range(4):
    A(f"ds_read_b32 v{U+wp}, v3 offset:{L_RED + wp*256}")
A("s_waitcnt lgkmcnt(0)")
A(f"v_add_f32 v{U}, v{U}, v{U+1}")
A(f"v_add_f32 v{U+2}, v{U+2}, v{U+3}")
A(f"v_add_f32 v{U}, v{U}, v{U+2}")
bf16r(U, U)
A(f"v_add_f32 v{U}, v{U}, v{V_SM+2}")
bf16r(U, U)
A(f"v_mul_f32 v{U+1}, v{U}, v{U}")
A(f"v_fma_f32 v{U+1}, v{U+1}, s{S_T1}, v{TT}")
A(f"v_mul_f32 v{U+1}, v{U+1}, v{U}")
A(f"v_exp_f32 v{U+1}, v{U+1}")
nop(1)
A(f"v_add_f32 v{U+1}, 1.0, v{U+1}")
A(f"v_rcp_f32 v{U+1}, v{U+1}")
nop(1)
A(f"v_mul_f32 v{U}, v{U}, v{U+1}")
A(f"v_cvt_pk_bf16_f32 v{U}, v{U}, v{U}")
A(f"ds_write_b16 v{A2}, v{U}")
BO = 32
for ct in range(8):
    A(f"ds_read_b128 v[{BO+4*ct}:{BO+4*ct+3}], v{BA+ct}")
YA = 24
for ct in range(8):
    A(f"s_waitcnt lgkmcnt({7-ct})")
    mfma(YA, V_W2 + 4 * ct, BO + 4 * ct, None if ct == 0 else YA)
nop(8)
tag(YA, V_TG)
A(f"buffer_store_dwordx4 v[{YA}:{YA+3}], v{YAD}, {WS}, s{S_Y} offen sc1")
stamp(9)
A("s_branch L_exit")
C("}DRY")
if CFG["dry2"]:
    for r, ret in ((1, "L_kret"), (2, "L_eret"), (3, "L_fret")):
        L(f"L_exit_{r}")
        A("s_cbranch_execnz L_exit")
        A("s_mov_b64 exec, -1")
        A(f"s_branch {ret}")
L("L_exit")
stamp_flush()
L("L_end")
A("s_endpgm")

out.append(f""".section .rodata,"a"
.p2align 6
.amdhsa_kernel {NAME}_kernel
  .amdhsa_next_free_vgpr 168
  .amdhsa_next_free_sgpr 102
  .amdhsa_accum_offset 168
  .amdhsa_group_segment_fixed_size 0
  .amdhsa_kernarg_size 104
  .amdhsa_user_sgpr_count 2
  .amdhsa_user_sgpr_kernarg_segment_ptr 1
  .amdhsa_system_sgpr_workgroup_id_x 1
.end_amdhsa_kernel""")

order = CFG_ORDER
lines = [l for b in order for l in BLK[b]]


def dry_pass(lines):
    res, indry, k = [], False, 0
    i = 0

    def is_mem(t):
        return t.startswith(("buffer_", "global_", "s_load", "s_atomic", "s_barrier"))

    def exec_write(t):
        return t.startswith(("s_mov_b64 exec", "s_mov_b32 exec", "s_and_b64 exec"))

    def restores(t):
        return t in ("s_mov_b64 exec, -1", "s_mov_b32 exec_hi, -1")
    open_span, masked, nd = None, False, False
    for l in lines:
        t = l.strip()
        if t == "; DRY{":
            indry = True
            i += 1
            continue
        if t == "; }DRY":
            assert open_span is None or True
            if open_span:
                res.append(open_span + ":")
                open_span = None
            masked = False
            indry = False
            continue
        if not (indry and CFG["dry2"]):
            if t not in ("; ND{", "; }ND"):
                res.append(l)
            continue
        if t == "; ND{":
            nd = True
            if not open_span:
                k += 1
                open_span = f"L_sk{k}"
                res.append(f"    s_cbranch_execz {open_span}")
            continue
        if t == "; }ND":
            nd = False
            continue
        unsafe = nd or masked or is_mem(t) or exec_write(t)
        if masked and t == "s_branch L_exit":
            unsafe = False
            masked = False
        if t.endswith(" L_exit"):
            l = l + f"_{i}"
        if unsafe:
            if not open_span:
                k += 1
                open_span = f"L_sk{k}"
                res.append(f"    s_cbranch_execz {open_span}")
            res.append(l)
            if exec_write(t):
                masked = not restores(t)
        else:
            if open_span:
                res.append(open_span + ":")
                open_span = None
            res.append(l)
    return res


print("\n".join(dry_pass(lines)))
```
